```python
import torch

def _softmax(x, axis=-1):
    return torch.softmax(x, dim=axis)
def _gelu(x):
    return torch.nn.functional.gelu(x, approximate="tanh")
def _silu(x):
    return torch.nn.functional.silu(x)
def _sigmoid(x):
    return torch.sigmoid(x)
def _layernorm(x, axis=-1, eps=1e-5):
    m = x.mean(dim=axis, keepdim=True)
    v = x.var(dim=axis, keepdim=True, unbiased=False)
    return (x - m) / torch.sqrt(v + eps)
def _scatter_add(tgt, idx, src, axis=0):
    return tgt.clone().index_add_(axis, idx, src)
def _segment_sum(src, seg, n):
    out = torch.zeros((n,) + src.shape[1:], dtype=src.dtype)
    return out.index_add_(0, seg, src)
def _pad(x, pw):
    flat = tuple(v for pair in reversed(pw) for v in pair)
    return torch.nn.functional.pad(x, flat)

kernel_name = 'recurrent_scan__spectral_gfnet__dense_activation_relu__prompt'

def setup_inputs():

    _w = (lambda a: (lambda t: t.to(torch.bfloat16) if t.is_floating_point() else t)(torch.as_tensor(a)))
    def _A_setup():
        B, S, D = 1, 2048, 512
        Df = D // 2 + 1
        return {
            "x": _w((lambda *s: torch.randn(*s, dtype=torch.bfloat16) * 0.05)(B, S, D)),
            "w_r": _w((lambda *s: torch.randn(*s, dtype=torch.bfloat16) * 0.1)(S, Df) * 0.02),
            "w_i": _w((lambda *s: torch.randn(*s, dtype=torch.bfloat16) * 0.1)(S, Df) * 0.02),
        }
    _A_in = _A_setup()

    def _B_setup():
        B, S, D, Dff = 1, 2048, 512, 1792
        return {
            "x": _w((lambda *s: torch.randn(*s, dtype=torch.bfloat16) * 0.05)(B, S, D)),
            "w1": _w((lambda *s: torch.randn(*s, dtype=torch.bfloat16) * 0.05)(D, Dff)),
            "w2": _w((lambda *s: torch.randn(*s, dtype=torch.bfloat16) * 0.05)(Dff, D)),
        }
    _B_in = _B_setup()

    return {
        "A_x": _A_in["x"],
        "A_w_r": _A_in["w_r"],
        "A_w_i": _A_in["w_i"],
        "B_x": _B_in["x"],
        "B_w1": _B_in["w1"],
        "B_w2": _B_in["w2"],
    }

def reference(A_x, A_w_r, A_w_i, B_x, B_w1, B_w2):
    def _A_ref(x, w_r, w_i):
        B, S, D = x.shape
        X = (lambda x, axes=(-2,-1): torch.fft.rfft2(x.float(), dim=axes))(x, axes=(-2, -1))
        W = w_r + 1j * w_i
        X = X * W
        y = (lambda x, s, axes=(-2,-1): torch.fft.irfft2(x, s=s, dim=axes).to(torch.bfloat16))(X, (S, D), axes=(-2, -1))
        return y

    def _B_ref(x, w1, w2):
        h = torch.einsum("bsd,df->bsf", x, w1)
        zero = torch.zeros_like(h)
        h = torch.maximum(h, zero)
        return torch.einsum("bsf,fd->bsd", h, w2)

    x = A_x
    xn = _layernorm(x, axis=-1)
    s = _A_ref(xn, A_w_r, A_w_i)
    g = _silu(_B_ref(xn, B_w1, B_w2))
    return x + s * g
```

```python
import struct


def f2u(x):
    return struct.unpack("<I", struct.pack("<f", x))[0]


def hexf(x):
    return "0x%08x" % f2u(x)


def vr(a, n=1):
    return "v%d" % a if n == 1 else "v[%d:%d]" % (a, a + n - 1)


def sr(a, n=1):
    return "s%d" % a if n == 1 else "s[%d:%d]" % (a, a + n - 1)


class Counter:
    def __init__(self, maxv):
        self.q = []
        self.maxv = maxv
        self.seen = set()
        self.done = set()

    def issue(self, tag):
        self.q.append(tag)
        self.seen.add(tag)

    def need(self, tags):
        if not isinstance(tags, (list, set)):
            tags = [tags]
        tags = set(tags)
        last = -1
        for i, t in enumerate(self.q):
            if t in tags:
                last = i
        if last < 0:
            assert all(t in self.done for t in tags if t in self.seen) and any(t in self.seen for t in tags), ("wait on unknown tag", tags)
            return None
        n = len(self.q) - 1 - last
        self.done.update(self.q[:last + 1])
        self.q = self.q[last + 1:]
        assert n < self.maxv, "counter overflow"
        return n

    def clear(self):
        self.done.update(self.q)
        self.q = []


class K:
    def __init__(self, name):
        self.name = name
        self.lines = []
        self.vm = Counter(63)
        self.lg = Counter(15)

    def e(self, s):
        self.lines.append("    " + s)

    def lab(self, s):
        self.lines.append(s + ":")

    def c(self, s):
        self.lines.append("    ; " + s)

    def nop(self, n):
        while n > 0:
            m = min(n, 16)
            self.e("s_nop %d" % (m - 1))
            n -= m

    def wait_vm(self, tags):
        n = self.vm.need(tags)
        if n is not None:
            self.e("s_waitcnt vmcnt(%d)" % n)

    def wait_lg(self, tags):
        n = self.lg.need(tags)
        if n is not None:
            self.e("s_waitcnt lgkmcnt(%d)" % n)

    def wait_all(self):
        self.e("s_waitcnt vmcnt(0) lgkmcnt(0)")
        self.vm.clear()
        self.lg.clear()

    def wait_lg0(self):
        self.e("s_waitcnt lgkmcnt(0)")
        self.lg.clear()

    def wait_vm0(self):
        self.e("s_waitcnt vmcnt(0)")
        self.vm.clear()

    def srd(self, d, base, nbytes):
        self.e("s_mov_b32 s%d, s%d" % (d, base))
        self.e("s_and_b32 s%d, s%d, 0xffff" % (d + 1, base + 1))
        self.e("s_mov_b32 s%d, 0x%x" % (d + 2, nbytes))
        self.e("s_mov_b32 s%d, 0x00020000" % (d + 3))

    def text(self):
        hdr = [
            ".globl %s" % self.name,
            ".p2align 8",
            ".type %s,@function" % self.name,
            "%s:" % self.name,
        ]
        return "\n".join(hdr + self.lines) + "\n"


def descriptor(name, vgprs, sgprs=102, agprs=0):
    acc = (vgprs + 3) // 4 * 4
    nfv = acc + agprs if agprs else vgprs
    return """.p2align 6
.amdhsa_kernel %s
  .amdhsa_next_free_vgpr %d
  .amdhsa_next_free_sgpr %d
  .amdhsa_accum_offset %d
  .amdhsa_group_segment_fixed_size 0
  .amdhsa_kernarg_size 72
  .amdhsa_user_sgpr_count 2
  .amdhsa_user_sgpr_kernarg_segment_ptr 1
  .amdhsa_system_sgpr_workgroup_id_x 1
  .amdhsa_float_denorm_mode_32 3
.end_amdhsa_kernel
""" % (name, nfv, sgprs, min(acc, 256))
```

```python
import sys, os
sys.path.insert(0, os.path.dirname(os.path.abspath(__file__)))
from asmlib import *

XN_OFF = 0x0000000
X1T_OFF = 0x0200000
WT_OFF = 0x0400000
H_OFF = 0x0800000
ZT_OFF = 0x1000000
WS_BYTES = 0x1200000
OOB = 0x7f000000

X_BYTES = 2048 * 512 * 2
W_BYTES = 2048 * 257 * 2
W1_BYTES = 512 * 1792 * 2


def mfma(k, d, a, b, c=None):
    k.e("v_mfma_f32_16x16x32_bf16 %s, %s, %s, %s" % (d, a, b, c if c is not None else d))


def row16_sum(k, v, tmp):
    for sh in (8, 4, 2, 1):
        k.nop(2)
        k.e("v_add_f32_dpp %s, %s, %s row_ror:%d row_mask:0xf bank_mask:0xf" % (vr(v), vr(v), vr(v), sh))


def bf16_round(k, v):
    k.e("v_cvt_pk_bf16_f32 %s, %s, %s" % (vr(v), vr(v), vr(v)))
    k.e("v_lshlrev_b32 %s, 16, %s" % (vr(v), vr(v)))


def gen_k0():
    k = K("ln_rfft_kernel")
    e = k.e
    e("s_cmp_ge_u32 s2, 256")
    e("s_cbranch_scc1 L0_done")
    e("s_load_dwordx4 s[4:7], s[0:1], 0")
    e("s_load_dwordx2 s[8:9], s[0:1], 16")
    e("s_load_dwordx2 s[10:11], s[0:1], 64")
    e("s_and_b32 s28, s2, 7")
    e("s_lshl_b32 s28, s28, 3")
    e("s_lshr_b32 s29, s2, 5")
    e("s_add_u32 s28, s28, s29")
    e("s_lshr_b32 s29, s2, 3")
    e("s_and_b32 s29, s29, 3")
    e("v_and_b32 v1, 63, v0")
    e("v_lshrrev_b32 v2, 6, v0")
    e("v_and_b32 v3, 15, v0")
    e("v_lshrrev_b32 v4, 4, v0")
    e("v_bfe_u32 v5, v0, 4, 2")
    e("v_lshlrev_b32 v6, 15, v4")
    e("v_lshl_add_u32 v6, v3, 4, v6")
    e("s_and_b32 s30, s28, 1")
    e("s_lshl_b32 s30, s30, 20")
    e("s_lshr_b32 s31, s28, 1")
    e("s_lshl_b32 s31, s31, 10")
    e("s_add_u32 s30, s30, s31")
    e("s_lshr_b32 s32, s28, 4")
    e("s_lshl_b32 s32, s32, 4")
    e("s_and_b32 s33, s28, 1")
    e("s_lshl_b32 s33, s33, 3")
    e("s_add_u32 s32, s32, s33")
    e("s_lshr_b32 s33, s28, 1")
    e("s_and_b32 s33, s33, 7")
    e("s_lshl_b32 s33, s33, 8")
    e("s_add_u32 s32, s32, s33")
    e("s_mul_i32 s32, s32, 514")
    e("s_lshl_b32 s33, s29, 7")
    e("s_add_u32 s32, s32, s33")
    e("s_add_u32 s33, s32, %d" % 32896)
    e("s_add_u32 s34, s32, %d" % (2 * 32896))
    e("s_add_u32 s35, s32, %d" % (3 * 32896))
    e("v_mul_u32_u24 v7, 257, v2")
    e("v_add_lshl_u32 v7, v7, v1, 1")
    e("s_waitcnt lgkmcnt(0)")
    k.srd(12, 4, X_BYTES)
    k.srd(16, 6, W_BYTES)
    k.srd(20, 8, W_BYTES)
    k.srd(24, 10, WS_BYTES)
    XD = 8
    for u in range(4):
        e("buffer_load_dwordx4 %s, v6, s[12:15], s30 offen offset:%d" % (vr(XD + 4 * u, 4), 256 * u))
        k.vm.issue("x")
    WD = 56
    for r in range(4):
        e("buffer_load_ushort %s, v7, s[16:19], s%d offen" % (vr(WD + r), 32 + r))
        k.vm.issue("w")
        e("buffer_load_ushort %s, v7, s[20:23], s%d offen" % (vr(WD + 4 + r), 32 + r))
        k.vm.issue("w")
    WE = 128
    e("v_mul_u32_u24 v136, 257, v2")
    e("v_add_lshl_u32 v136, v136, 64, 1")
    for r in range(4):
        e("buffer_load_ushort %s, v136, s[16:19], s%d offen" % (vr(WE + r), 32 + r))
        k.vm.issue("w2")
        e("buffer_load_ushort %s, v136, s[20:23], s%d offen" % (vr(WE + 4 + r), 32 + r))
        k.vm.issue("w2")

    k.c("generate DFT B-fragments")
    FB = 64
    e("s_lshl_b32 s36, s29, 7")
    e("v_lshl_add_u32 v140, v2, 4, v3")
    e("v_add_u32 v140, s36, v140")
    e("v_lshrrev_b32 v141, 1, v140")
    e("v_and_b32 v142, 1, v140")
    e("v_cvt_f32_u32 v142, v142")
    e("v_mul_f32 v142, 0.25, v142".replace("0.25", hexf(0.25)))
    e("v_cmp_eq_u32 vcc, 1, v140")
    e("v_mov_b32 v143, 256")
    k.nop(1)
    e("v_cndmask_b32 v141, v141, v143, vcc")
    e("v_cndmask_b32 v142, v142, 0, vcc".replace(", 0, vcc", ", 0, vcc"))
    e("v_cvt_f32_u32 v141, v141")
    e("v_mul_f32 v141, %s, v141" % hexf(1.0 / 512))
    e("v_lshlrev_b32 v143, 3, v5")
    e("v_cvt_f32_u32 v143, v143")
    e("v_fma_f32 v142, v143, v141, v142")
    e("v_fract_f32 v142, v142")
    for jj in range(1, 8):
        e("v_mul_f32 v%d, %s, v141" % (144 + jj, hexf(float(jj))))
    e("v_mul_f32 v152, %s, v141" % hexf(32.0))
    e("v_fract_f32 v152, v152")
    for T in range(16):
        t0 = 160 + (T & 1) * 8
        e("v_cos_f32 v%d, v142" % t0)
        for jj in range(1, 8):
            e("v_add_f32 v%d, v142, v%d" % (t0 + jj, 144 + jj))
        for jj in range(1, 8):
            e("v_cos_f32 v%d, v%d" % (t0 + jj, t0 + jj))
        e("v_add_f32 v142, v142, v152")
        e("v_fract_f32 v142, v142")
        for d in range(4):
            e("v_cvt_pk_bf16_f32 v%d, v%d, v%d" % (FB + 4 * T + d, t0 + 2 * d, t0 + 2 * d + 1))

    k.c("layernorm")
    XF = 24
    k.wait_vm("x")
    for d in range(16):
        e("v_lshlrev_b32 v%d, 16, v%d" % (XF + 2 * d, XD + d))
        e("v_and_b32 v%d, 0xffff0000, v%d" % (XF + 2 * d + 1, XD + d))
    e("v_pk_add_f32 v[176:177], v[%d:%d], v[%d:%d]" % (XF, XF + 1, XF + 2, XF + 3))
    e("v_pk_add_f32 v[178:179], v[%d:%d], v[%d:%d]" % (XF + 4, XF + 5, XF + 6, XF + 7))
    for d in range(4, 16):
        a = 176 + 2 * (d & 1)
        e("v_pk_add_f32 v[%d:%d], v[%d:%d], v[%d:%d]" % (a, a + 1, a, a + 1, XF + 2 * d, XF + 2 * d + 1))
    e("v_pk_add_f32 v[176:177], v[176:177], v[178:179]")
    e("v_add_f32 v176, v176, v177")
    row16_sum(k, 176, None)
    e("v_mul_f32 v180, %s, v176" % hexf(-1.0 / 512))
    for d in range(16):
        e("v_pk_add_f32 v[%d:%d], v[%d:%d], v[180:181] op_sel_hi:[1,0]" % (XF + 2 * d, XF + 2 * d + 1, XF + 2 * d, XF + 2 * d + 1))
    e("v_pk_mul_f32 v[176:177], v[%d:%d], v[%d:%d]" % (XF, XF + 1, XF, XF + 1))
    e("v_pk_mul_f32 v[178:179], v[%d:%d], v[%d:%d]" % (XF + 2, XF + 3, XF + 2, XF + 3))
    for d in range(2, 16):
        a = 176 + 2 * (d & 1)
        e("v_pk_fma_f32 v[%d:%d], v[%d:%d], v[%d:%d], v[%d:%d]" % (a, a + 1, XF + 2 * d, XF + 2 * d + 1, XF + 2 * d, XF + 2 * d + 1, a, a + 1))
    e("v_pk_add_f32 v[176:177], v[176:177], v[178:179]")
    e("v_add_f32 v176, v176, v177")
    row16_sum(k, 176, None)
    e("v_mul_f32 v176, %s, v176" % hexf(1.0 / 512))
    bf16_round(k, 176)
    e("v_add_f32 v176, %s, v176" % hexf(1e-5))
    bf16_round(k, 176)
    e("v_sqrt_f32 v176, v176")
    k.nop(1)
    bf16_round(k, 176)
    e("v_rcp_f32 v182, v176")
    e("v_mov_b32 v178, v180")
    bf16_round(k, 178)
    e("v_sub_f32 v178, v178, v180")
    e("v_mul_f32 v184, v178, v182")
    for d in range(16):
        e("v_pk_fma_f32 v[%d:%d], v[%d:%d], v[182:183], v[184:185] op_sel_hi:[1,0,0]" % (XF + 2 * d, XF + 2 * d + 1, XF + 2 * d, XF + 2 * d + 1))
    for d in range(16):
        e("v_cvt_pk_bf16_f32 v%d, v%d, v%d" % (XD + d, XF + 2 * d, XF + 2 * d + 1))
    e("v_lshrrev_b32 v176, 3, v4")
    e("v_and_b32 v177, 3, v4")
    e("v_lshl_add_u32 v176, v176, 2, v177")
    e("v_xor_b32 v176, v176, v3")
    e("v_lshlrev_b32 v176, 4, v176")
    e("v_lshl_add_u32 v176, v4, 10, v176")
    for u in range(4):
        e("ds_write_b128 v176, %s offset:%d" % (vr(XD + 4 * u, 4), 256 * u))
    e("v_lshrrev_b32 v177, 4, v4")
    e("v_lshlrev_b32 v177, 14, v177")
    e("v_lshl_add_u32 v177, v3, 8, v177")
    e("v_and_b32 v178, 15, v4")
    e("v_lshl_add_u32 v177, v178, 4, v177")
    e("s_lshl_b32 s37, s28, 15")
    e("s_lshl_b32 s38, s29, 12")
    e("s_add_u32 s37, s37, s38")
    if XN_OFF:
        e("s_add_u32 s37, s37, 0x%x" % XN_OFF)
    for u in range(4):
        e("s_cmp_lg_u32 s29, %d" % u)
        e("s_cbranch_scc1 L0_xn%d" % u)
        e("buffer_store_dwordx4 %s, v177, s[24:27], s37 offen" % vr(XD + 4 * u, 4))
        k.lab("L0_xn%d" % u)
    k.vm.issue("xnst")
    k.c("W re-layout")
    k.wait_vm(["w", "w2"])
    for r in range(4):
        e("v_lshl_or_b32 v%d, v%d, 16, v%d" % (WD + r, WD + 4 + r, WD + r))
        e("v_lshl_or_b32 v%d, v%d, 16, v%d" % (WE + r, WE + 4 + r, WE + r))
    e("v_lshlrev_b32 v178, 13, v1")
    e("v_lshl_add_u32 v178, v2, 4, v178")
    e("s_lshl_b32 s38, s29, 19")
    e("s_lshl_b32 s39, s28, 7")
    e("s_add_u32 s38, s38, s39")
    e("s_add_u32 s38, s38, 0x%x" % WT_OFF)
    e("buffer_store_dwordx4 %s, v178, s[24:27], s38 offen" % vr(WD, 4))
    e("s_cmp_lg_u32 s29, 3")
    e("s_cbranch_scc1 L0_now256")
    e("s_add_u32 s38, s38, 0x%x" % (64 * 8192))
    e("s_mov_b64 exec, 1")
    e("buffer_store_dwordx4 %s, v178, s[24:27], s38 offen" % vr(WE, 4))
    e("s_mov_b64 exec, -1")
    k.lab("L0_now256")

    k.c("DFT GEMM")
    e("v_lshrrev_b32 v176, 2, v3")
    e("v_and_b32 v177, 3, v3")
    e("v_lshl_add_u32 v176, v176, 3, v177")
    e("v_lshlrev_b32 v176, 10, v176")
    for t in range(4):
        e("v_add_u32 v177, %d, v5" % (4 * t))
        e("v_xor_b32 v177, v177, v3")
        e("v_lshl_add_u32 v%d, v177, 4, v176" % (188 + t))
    e("s_waitcnt lgkmcnt(0)")
    e("s_barrier")
    AB = 192
    ACC = 224
    seq = [(T, u) for T in range(16) for u in range(2)]

    def rd(n):
        T, u = seq[n]
        e("ds_read_b128 %s, v%d offset:%d" % (vr(AB + 4 * (n % 8), 4), 188 + (T & 3), (T >> 2) * 256 + u * 4096))
        k.lg.issue(n)
    for n in range(8):
        rd(n)
    for n in range(32):
        T, u = seq[n]
        k.wait_lg(n)
        mfma(k, vr(ACC + 4 * u, 4), vr(AB + 4 * (n % 8), 4), vr(FB + 4 * T, 4), vr(ACC + 4 * u, 4) if T else "0")
        if n + 8 < 32:
            rd(n + 8)
    e("v_lshlrev_b32 v176, 12, v140")
    e("v_lshl_add_u32 v176, v5, 4, v176")
    e("s_lshl_b32 s38, s28, 6")
    e("s_add_u32 s38, s38, 0x%x" % X1T_OFF)
    k.nop(8)
    for d in range(4):
        e("v_cvt_pk_bf16_f32 v%d, v%d, v%d" % (232 + d, ACC + 2 * d, ACC + 2 * d + 1))
    e("buffer_store_dwordx4 v[232:235], v176, s[24:27], s38 offen")
    k.lab("L0_done")
    e("s_endpgm")
    return k, 236


G1_SLOTS = 5


def gen_k1():
    k = K("gemm1_sfft_kernel")
    e = k.e
    e("s_cmp_ge_u32 s2, 481")
    e("s_cbranch_scc1 L1_done")
    e("s_load_dwordx2 s[4:5], s[0:1], 32")
    e("s_load_dwordx2 s[10:11], s[0:1], 64")
    e("v_and_b32 v1, 63, v0")
    e("v_lshrrev_b32 v2, 6, v0")
    e("v_and_b32 v3, 15, v0")
    e("v_bfe_u32 v5, v0, 4, 2")
    k.nop(1)
    e("v_readfirstlane_b32 s27, v2")
    e("s_waitcnt lgkmcnt(0)")
    k.srd(12, 4, W1_BYTES)
    k.srd(16, 10, WS_BYTES)
    e("s_cmp_ge_u32 s2, 224")
    e("s_cbranch_scc1 L1_fft")

    e("s_and_b32 s28, s2, 7")
    e("s_lshl_b32 s28, s28, 1")
    e("s_lshr_b32 s29, s2, 3")
    e("s_cmp_ge_u32 s29, 14")
    e("s_cselect_b32 s30, 1, 0")
    e("s_cselect_b32 s31, 14, 0")
    e("s_add_u32 s28, s28, s30")
    e("s_sub_u32 s29, s29, s31")
    XB = 0 + 8
    ACC = 136
    AF = 200
    TRB = 232
    DMA = 240
    XA = 244
    e("v_lshl_add_u32 v6, v2, 4, v5")
    e("v_mul_u32_u24 v6, 3584, v6")
    for ee in range(4):
        e("v_or_b32 v7, %d, v5" % ((ee >> 1) << 2))
        e("v_lshlrev_b32 v7, 1, v7")
        e("v_xor_b32 v7, v7, v3")
        e("v_lshl_add_u32 v7, v7, 4, v6")
        e("v_add_u32 v%d, %d, v7" % (DMA + ee, 4 * ee * 3584))
    e("s_lshl_b32 s32, s29, 8")
    e("s_lshl_b32 s33, s27, 12")
    e("v_lshlrev_b32 v%d, 4, v1" % XA)
    e("s_lshl_b32 s34, s28, 3")
    e("s_lshl_b32 s35, s27, 1")
    e("s_add_u32 s34, s34, s35")
    e("s_lshl_b32 s35, s34, 14")
    if XN_OFF:
        e("s_add_u32 s35, s35, 0x%x" % XN_OFF)

    def dma(st):
        slot = st % G1_SLOTS
        e("s_add_u32 s36, s32, 0x%x" % (st * 64 * 3584))
        for ee in range(4):
            e("s_add_u32 m0, s33, 0x%x" % (slot * 16384 + ee * 1024))
            k.nop(1)
            e("buffer_load_dwordx4 v%d, s[12:15], s36 offen lds" % (DMA + ee))
            k.vm.issue(("D", st))

    def xld(st):
        for ks in range(2):
            T = 2 * st + ks
            for u in range(2):
                off = u * 16384 + T * 1024
                e("s_add_u32 s37, s35, 0x%x" % (off & ~0xfff))
                e("buffer_load_dwordx4 %s, v%d, s[16:19], s37 offen offset:%d" % (vr(XB + 4 * (u * 16 + T), 4), XA, off & 0xfff))
                k.vm.issue(("X", st))
    for st in range(8):
        if st < G1_SLOTS:
            dma(st)
        xld(st)
    e("v_lshrrev_b32 v6, 2, v3")
    e("v_lshl_add_u32 v7, v5, 3, v6")
    e("v_lshlrev_b32 v7, 8, v7")
    e("v_and_b32 v245, 1, v3")
    e("v_lshl_add_u32 v7, v245, 3, v7")
    e("v_and_b32 v245, 1, v5")
    e("v_lshl_or_b32 v6, v245, 2, v6")
    e("v_lshlrev_b32 v6, 1, v6")
    e("v_bfe_u32 v245, v3, 1, 1")
    e("v_or_b32 v6, v6, v245")
    for ft in range(8):
        e("v_xor_b32 v245, %d, v6" % (2 * ft))
        e("v_lshl_add_u32 v%d, v245, 4, v7" % (TRB + ft))
    if G1_SLOTS > 4:
        pass

    def rd(st, ks, ft):
        slot = st % G1_SLOTS
        for hh in range(2):
            off = slot * 16384 + ks * 8192 + hh * 1024
            if off < 65536:
                e("ds_read_b64_tr_b16 %s, v%d offset:%d" % (vr(AF + 4 * ft + 2 * hh, 2), TRB + ft, off))
            else:
                e("ds_read_b64_tr_b16 %s, v%d offset:%d" % (vr(AF + 4 * ft + 2 * hh, 2), 246 + ft, off - 65536))
            k.lg.issue((st, ks, ft))
    if G1_SLOTS > 4:
        for ft in range(8):
            e("v_add_u32 v%d, 0x10000, v%d" % (246 + ft, TRB + ft))
    k.wait_vm([("D", 0), ("X", 0)])
    e("s_barrier")
    for ft in range(8):
        rd(0, 0, ft)
    for st in range(8):
        for ks in range(2):
            T = 2 * st + ks
            if ks == 1 and st < 7:
                k.wait_vm([("D", st + 1), ("X", st + 1)])
                e("s_barrier")
                if st >= 1 and st - 1 + G1_SLOTS < 8:
                    dma(st - 1 + G1_SLOTS)
            for ft in range(8):
                k.wait_lg((st, ks, ft))
                for u in range(2):
                    a = ACC + 8 * ft + 4 * u
                    mfma(k, vr(a, 4), vr(AF + 4 * ft, 4), vr(XB + 4 * (u * 16 + T), 4), vr(a, 4) if T else "0")
                if ks == 0:
                    rd(st, 1, ft)
                elif st < 7:
                    rd(st + 1, 0, ft)
    e("s_mul_i32 s36, s34, %d" % (56 * 1024))
    e("s_lshl_b32 s37, s29, 12")
    e("s_add_u32 s36, s36, s37")
    e("s_add_u32 s36, s36, 0x%x" % H_OFF)
    e("s_add_u32 s37, s36, %d" % (56 * 1024))
    k.nop(4)
    for tt in range(4):
        for u in range(2):
            o = 8 + 4 * (2 * tt + u)
            for half in range(2):
                a = ACC + 8 * (2 * tt + half) + 4 * u
                e("v_cvt_pk_bf16_f32 v%d, v%d, v%d" % (o + 2 * half, a, a + 1))
                e("v_cvt_pk_bf16_f32 v%d, v%d, v%d" % (o + 2 * half + 1, a + 2, a + 3))
            for d in range(4):
                e("v_pk_max_i16 v%d, v%d, 0" % (o + d, o + d))
            e("buffer_store_dwordx4 %s, v%d, s[16:19], s%d offen offset:%d" % (vr(o, 4), XA, 36 + u, tt * 1024))
    e("s_endpgm")

    k.lab("L1_fft")
    k.vm.clear()
    k.lg.clear()
    e("s_sub_u32 s28, s2, 224")
    e("s_lshl_b32 s29, s28, 13")
    e("s_add_u32 s30, s29, 4096")
    e("s_cmp_eq_u32 s28, 256")
    e("s_cselect_b32 s29, 4096, s29")
    e("s_and_b32 s31, s28, 255")
    e("s_cmp_eq_u32 s31, 0")
    e("s_cselect_b32 s30, 0x%x, s30" % OOB)
    e("s_mov_b32 s40, %s" % hexf(2.0 ** -19))
    e("s_cselect_b32 s40, %s, s40" % hexf(2.0 ** -20))
    e("s_add_u32 s32, s29, 0x%x" % X1T_OFF)
    e("s_add_u32 s33, s30, 0x%x" % X1T_OFF)
    e("s_add_u32 s34, s29, 0x%x" % ZT_OFF)
    e("s_add_u32 s35, s30, 0x%x" % ZT_OFF)
    e("v_lshlrev_b32 v6, 7, v3")
    e("v_lshl_add_u32 v6, v5, 4, v6")
    XI = 8
    for pl in range(2):
        for v in range(2):
            for t in range(2):
                e("buffer_load_dwordx4 %s, v6, s[16:19], s%d offen offset:%d" % (vr(XI + 4 * ((pl * 2 + v) * 2 + t), 4), 32 + pl, v * 2048 + t * 64))
                k.vm.issue("x")
    WR = 40
    e("v_lshlrev_b32 v7, 4, v1")
    e("s_lshl_b32 s36, s28, 13")
    e("s_lshl_b32 s37, s27, 11")
    e("s_add_u32 s36, s36, s37")
    e("s_add_u32 s36, s36, 0x%x" % WT_OFF)
    for v in range(2):
        e("buffer_load_dwordx4 %s, v7, s[16:19], s36 offen offset:%d" % (vr(WR + 4 * v, 4), v * 1024))
        k.vm.issue("w")
    C64 = 48
    S64 = 56
    N64 = 64
    C32 = 72
    S32 = 80
    N32 = 88
    T1C = 96
    T1S = 104
    T2C = 112
    T2S = 120
    TM = 128
    e("v_lshl_add_u32 v160, v2, 4, v3")
    e("v_cvt_f32_u32 v161, v160")
    e("v_mul_f32 v162, %s, v161" % hexf(1.0 / 64))
    e("v_cvt_f32_u32 v163, v5")
    e("v_cvt_f32_u32 v164, v3")
    e("v_mul_f32 v165, %s, v163" % hexf(8.0))
    for t in range(2):
        for jj in range(8):
            e("v_add_f32 v%d, %s, v165" % (TM + jj, hexf(float(32 * t + jj))))
        for jj in range(8):
            e("v_mul_f32 v%d, v%d, v162" % (TM + jj, TM + jj))
        for jj in range(8):
            e("v_cos_f32 v%d, v%d" % (TM + 8 + jj, TM + jj))
            e("v_sin_f32 v%d, v%d" % (TM + 16 + jj, TM + jj))
        k.nop(1)
        for d in range(4):
            e("v_cvt_pk_bf16_f32 v%d, v%d, v%d" % (C64 + 4 * t + d, TM + 8 + 2 * d, TM + 9 + 2 * d))
            e("v_cvt_pk_bf16_f32 v%d, v%d, v%d" % (S64 + 4 * t + d, TM + 16 + 2 * d, TM + 17 + 2 * d))
            e("v_xor_b32 v%d, 0x80008000, v%d" % (N64 + 4 * t + d, S64 + 4 * t + d))
    e("v_mul_f32 v165, 4.0, v163")
    for v in range(2):
        e("v_add_f32 v166, %s, v164" % hexf(16.0 * v))
        e("v_mul_f32 v166, %s, v166" % hexf(1.0 / 32))
        for jj in range(8):
            e("v_add_f32 v%d, %s, v165" % (TM + jj, hexf(float(16 * (jj >> 2) + (jj & 3)))))
        for jj in range(8):
            e("v_mul_f32 v%d, v%d, v166" % (TM + jj, TM + jj))
        for jj in range(8):
            e("v_cos_f32 v%d, v%d" % (TM + 8 + jj, TM + jj))
            e("v_sin_f32 v%d, v%d" % (TM + 16 + jj, TM + jj))
        k.nop(1)
        for d in range(4):
            e("v_cvt_pk_bf16_f32 v%d, v%d, v%d" % (C32 + 4 * v + d, TM + 8 + 2 * d, TM + 9 + 2 * d))
            e("v_cvt_pk_bf16_f32 v%d, v%d, v%d" % (S32 + 4 * v + d, TM + 16 + 2 * d, TM + 17 + 2 * d))
            e("v_xor_b32 v%d, 0x80008000, v%d" % (N32 + 4 * v + d, S32 + 4 * v + d))
    e("v_mul_f32 v166, %s, v161" % hexf(1.0 / 2048))
    for v in range(2):
        for r in range(4):
            i = 4 * v + r
            e("v_add_f32 v%d, %s, v165" % (TM + i, hexf(float(16 * v + r))))
            e("v_mul_f32 v%d, v%d, v166" % (TM + i, TM + i))
    for i in range(8):
        e("v_cos_f32 v%d, v%d" % (T1C + i, TM + i))
        e("v_sin_f32 v%d, v%d" % (T1S + i, TM + i))
    e("v_cvt_f32_u32 v167, v2")
    e("v_fma_f32 v167, v167, 4.0, v163")
    e("v_mul_f32 v167, 4.0, v167")
    for v in range(2):
        e("v_add_f32 v166, %s, v164" % hexf(16.0 * v))
        e("v_mul_f32 v166, %s, v166" % hexf(1.0 / 2048))
        for r in range(4):
            i = 4 * v + r
            e("v_add_f32 v%d, %s, v167" % (TM + i, hexf(float(r))))
            e("v_mul_f32 v%d, v%d, v166" % (TM + i, TM + i))
    for i in range(8):
        e("v_cos_f32 v%d, v%d" % (T2C + i, TM + i))
        e("v_sin_f32 v%d, v%d" % (T2S + i, TM + i))
    k.nop(1)
    for i in range(8):
        e("v_mul_f32 v%d, s40, v%d" % (T2C + i, T2C + i))
        e("v_mul_f32 v%d, s40, v%d" % (T2S + i, T2S + i))
    e("v_lshrrev_b32 v168, 1, v5")
    e("v_lshl_add_u32 v168, v2, 1, v168")
    e("v_and_b32 v169, 7, v3")
    e("v_xor_b32 v168, v168, v169")
    e("v_lshlrev_b32 v168, 4, v168")
    e("v_and_b32 v170, 1, v5")
    e("v_lshl_add_u32 v168, v170, 3, v168")
    e("v_lshl_add_u32 v168, v3, 7, v168")
    for t in range(2):
        e("v_add_u32 v170, %d, v5" % (4 * t))
        e("v_xor_b32 v170, v170, v169")
        e("v_lshlrev_b32 v170, 4, v170")
        e("v_lshl_add_u32 v%d, v3, 7, v170" % (171 + t))
    e("v_lshlrev_b32 v173, 7, v3")
    e("v_lshl_add_u32 v173, v2, 5, v173")
    e("v_lshl_add_u32 v173, v5, 3, v173")

    DR = 176
    DI = 184
    PR = 192
    PI = 196

    def xin(pl, v, t):
        return vr(XI + 4 * ((pl * 2 + v) * 2 + t), 4)
    k.wait_vm("x")
    for v in range(2):
        dr, di = vr(DR + 4 * v, 4), vr(DI + 4 * v, 4)
        for t in range(2):
            mfma(k, dr, xin(0, v, t), vr(C64 + 4 * t, 4), dr if t else "0")
            mfma(k, di, xin(1, v, t), vr(C64 + 4 * t, 4), di if t else "0")
            mfma(k, dr, xin(1, v, t), vr(S64 + 4 * t, 4))
            mfma(k, di, xin(0, v, t), vr(N64 + 4 * t, 4))
    k.nop(8)

    def cmul(cr, ci, conj):
        for i in range(8):
            e("v_mul_f32 v%d, v%d, v%d" % (TM + i, DR + i, cr + i))
            e("v_mul_f32 v%d, v%d, v%d" % (TM + 8 + i, DI + i, cr + i))
        for i in range(8):
            if conj:
                e("v_fma_f32 v%d, v%d, v%d, v%d" % (TM + i, DI + i, ci + i, TM + i))
                e("v_fma_f32 v%d, -v%d, v%d, v%d" % (TM + 8 + i, DR + i, ci + i, TM + 8 + i))
            else:
                e("v_fma_f32 v%d, -v%d, v%d, v%d" % (TM + i, DI + i, ci + i, TM + i))
                e("v_fma_f32 v%d, v%d, v%d, v%d" % (TM + 8 + i, DR + i, ci + i, TM + 8 + i))
        for d in range(4):
            e("v_cvt_pk_bf16_f32 v%d, v%d, v%d" % (PR + d, TM + 2 * d, TM + 2 * d + 1))
            e("v_cvt_pk_bf16_f32 v%d, v%d, v%d" % (PI + d, TM + 8 + 2 * d, TM + 9 + 2 * d))
        k.nop(2)
    cmul(T1C, T1S, True)
    pr, pi = vr(PR, 4), vr(PI, 4)
    for v in range(2):
        dr, di = vr(DR + 4 * v, 4), vr(DI + 4 * v, 4)
        mfma(k, dr, vr(C32 + 4 * v, 4), pr, "0")
        mfma(k, di, vr(C32 + 4 * v, 4), pi, "0")
        mfma(k, dr, vr(S32 + 4 * v, 4), pi)
        mfma(k, di, vr(N32 + 4 * v, 4), pr)
    k.wait_vm("w")
    WRf, WIf = 144, 152
    for i in range(8):
        e("v_lshlrev_b32 v%d, 16, v%d" % (WRf + i, WR + i))
        e("v_and_b32 v%d, 0xffff0000, v%d" % (WIf + i, WR + i))
    cmul(WRf, WIf, False)
    for v in range(2):
        dr, di = vr(DR + 4 * v, 4), vr(DI + 4 * v, 4)
        mfma(k, dr, pr, vr(C32 + 4 * v, 4), "0")
        mfma(k, di, pi, vr(C32 + 4 * v, 4), "0")
        mfma(k, dr, pi, vr(N32 + 4 * v, 4))
        mfma(k, di, pr, vr(S32 + 4 * v, 4))
    k.nop(8)
    cmul(T2C, T2S, False)
    for v in range(2):
        e("ds_write_b64 v168, %s offset:%d" % (vr(PR + 2 * v, 2), v * 2048))
        e("ds_write_b64 v168, %s offset:%d" % (vr(PI + 2 * v, 2), 4096 + v * 2048))
    e("s_waitcnt lgkmcnt(0)")
    e("s_barrier")
    for pl in range(2):
        for v in range(2):
            for t in range(2):
                e("ds_read_b128 %s, v%d offset:%d" % (xin(pl, v, t), 171 + t, pl * 4096 + v * 2048))
    e("s_waitcnt lgkmcnt(0)")
    for v in range(2):
        dr, di = vr(DR + 4 * v, 4), vr(DI + 4 * v, 4)
        for t in range(2):
            mfma(k, dr, vr(C64 + 4 * t, 4), xin(0, v, t), dr if t else "0")
            mfma(k, di, vr(C64 + 4 * t, 4), xin(1, v, t), di if t else "0")
            mfma(k, dr, vr(N64 + 4 * t, 4), xin(1, v, t))
            mfma(k, di, vr(S64 + 4 * t, 4), xin(0, v, t))
    k.nop(8)
    for d in range(4):
        e("v_cvt_pk_bf16_f32 v%d, v%d, v%d" % (PR + d, DR + 2 * d, DR + 2 * d + 1))
        e("v_cvt_pk_bf16_f32 v%d, v%d, v%d" % (PI + d, DI + 2 * d, DI + 2 * d + 1))
    for v in range(2):
        e("buffer_store_dwordx2 %s, v173, s[16:19], s34 offen offset:%d" % (vr(PR + 2 * v, 2), v * 2048))
        e("buffer_store_dwordx2 %s, v173, s[16:19], s35 offen offset:%d" % (vr(PI + 2 * v, 2), v * 2048))
    k.lab("L1_done")
    e("s_endpgm")
    return k, 254


G2_SLOTS = 8


def gen_k2():
    k = K("gemm2_irfft_kernel")
    e = k.e
    e("s_cmp_ge_u32 s2, 256")
    e("s_cbranch_scc1 L2_done")
    e("s_load_dwordx2 s[4:5], s[0:1], 0")
    e("s_load_dwordx4 s[8:11], s[0:1], 40")
    e("s_load_dwordx2 s[6:7], s[0:1], 64")
    e("v_and_b32 v1, 63, v0")
    e("v_lshrrev_b32 v2, 6, v0")
    e("v_and_b32 v3, 15, v0")
    e("v_bfe_u32 v5, v0, 4, 2")
    k.nop(1)
    e("v_readfirstlane_b32 s27, v2")
    e("s_and_b32 s28, s2, 7")
    e("s_lshl_b32 s28, s28, 2")
    e("s_lshr_b32 s29, s2, 6")
    e("s_add_u32 s28, s28, s29")
    e("s_lshr_b32 s29, s2, 3")
    e("s_and_b32 s29, s29, 7")
    e("s_and_b32 s30, s27, 1")
    e("s_lshr_b32 s31, s27, 1")
    e("s_waitcnt lgkmcnt(0)")
    k.srd(12, 8, W1_BYTES)
    k.srd(16, 6, WS_BYTES)
    k.srd(20, 4, X_BYTES)
    k.srd(40, 10, X_BYTES)
    e("v_lshrrev_b32 v6, 3, v1")
    e("v_and_b32 v7, 7, v1")
    e("v_lshlrev_b32 v8, 1, v5")
    e("v_xor_b32 v7, v7, v8")
    e("v_lshlrev_b32 v7, 4, v7")
    DW = 10
    DZ = 14
    for ee in range(4):
        e("v_add_u32 v8, %d, v6" % (8 * ee))
        e("v_lshl_add_u32 v%d, v8, 10, v7" % (DW + ee))
        e("v_lshl_add_u32 v%d, v8, 12, v7" % (DZ + ee))
    e("s_mul_i32 s32, s31, 896")
    e("s_lshl_b32 s33, s30, 5")
    e("s_add_u32 s32, s32, s33")
    e("s_lshl_b32 s32, s32, 10")
    e("s_lshl_b32 s34, s29, 7")
    e("s_add_u32 s32, s32, s34")
    e("s_lshl_b32 s34, s31, 8")
    e("s_add_u32 s34, s34, s33")
    e("s_lshl_b32 s34, s34, 12")
    e("s_lshl_b32 s35, s28, 7")
    e("s_add_u32 s34, s34, s35")
    e("s_add_u32 s34, s34, 0x%x" % ZT_OFF)
    e("s_lshl_b32 s33, s27, 12")
    e("s_lshl_b32 s35, s28, 2")
    e("s_lshl_b32 s36, s30, 1")
    e("s_add_u32 s35, s35, s36")
    e("s_mul_i32 s35, s35, 56")
    e("s_mul_i32 s36, s31, 28")
    e("s_add_u32 s35, s35, s36")
    e("s_lshl_b32 s35, s35, 10")
    e("s_add_u32 s35, s35, 0x%x" % H_OFF)
    e("v_lshlrev_b32 v9, 4, v1")
    NST = 18
    HB = 0
    AY = 128
    AS = 160

    def ar(a, n):
        return "a[%d:%d]" % (a, a + n - 1)

    def issue(st):
        slot = st % G2_SLOTS
        if st < 14:
            e("s_add_u32 s36, s32, 0x%x" % (st * 65536))
            srd, dv = "s[12:15]", DW
        else:
            e("s_add_u32 s36, s34, 0x%x" % ((st - 14) * 64 * 4096))
            srd, dv = "s[16:19]", DZ
        for ee in range(4):
            e("s_add_u32 m0, s33, 0x%x" % (slot * 16384 + ee * 1024))
            k.nop(1)
            e("buffer_load_dwordx4 v%d, %s, s36 offen lds" % (dv + ee, srd))
            k.vm.issue(("D", st))
        if st < 14:
            for pt in range(2):
                e("s_add_u32 s37, s35, 0x%x" % (pt * 56 * 1024 + st * 2048))
                for ks in range(2):
                    e("buffer_load_dwordx4 %s, v9, s[16:19], s37 offen offset:%d" % (ar(HB + (st % 8) * 16 + (ks * 2 + pt) * 4, 4), ks * 1024))
                    k.vm.issue(("H", st))
    for st in range(7):
        issue(st)
    TRB = 18
    e("v_lshrrev_b32 v6, 2, v3")
    e("v_lshl_add_u32 v6, v5, 2, v6")
    e("v_bfe_u32 v7, v6, 1, 2")
    e("v_lshlrev_b32 v7, 1, v7")
    e("v_bfe_u32 v8, v3, 1, 1")
    e("v_or_b32 v7, v7, v8")
    e("v_lshlrev_b32 v6, 7, v6")
    e("v_and_b32 v8, 1, v3")
    e("v_lshl_add_u32 v6, v8, 3, v6")
    e("s_lshl_b32 s36, s31, 13")
    e("v_add_u32 v6, s36, v6")
    for dt in range(4):
        e("v_xor_b32 v8, %d, v7" % (2 * dt))
        e("v_lshl_add_u32 v%d, v8, 4, v6" % (TRB + dt))
        e("v_add_u32 v%d, 0x10000, v%d" % (TRB + 4 + dt, TRB + dt))
    e("s_lshl_b32 s36, s30, 2")
    for pt in range(2):
        e("v_xor_b32 v8, s36, v7")
        e("v_xor_b32 v8, %d, v8" % (2 * pt))
        e("v_lshl_add_u32 v%d, v8, 4, v6" % (26 + pt))
        e("v_add_u32 v%d, 0x10000, v%d" % (28 + pt, 26 + pt))
    GB = 128
    k.c("generate inverse-DFT A-fragments")
    e("s_lshl_b32 s36, s29, 6")
    e("v_add_u32 v30, s36, v3")
    e("v_cvt_f32_u32 v30, v30")
    e("s_lshl_b32 s36, s31, 7")
    e("v_lshlrev_b32 v31, 1, v5")
    e("v_add_u32 v31, s36, v31")
    e("v_cvt_f32_u32 v31, v31")
    for dt in range(4):
        e("v_add_f32 v%d, %s, v30" % (32 + dt, hexf(16.0 * dt)))
        e("v_mul_f32 v%d, %s, v%d" % (32 + dt, hexf(1.0 / 512), 32 + dt))
        for dw in range(4):
            e("v_add_f32 v56, %s, v31" % hexf(float(8 * (dw >> 1) + (dw & 1))))
            e("v_mul_f32 v56, v56, v%d" % (32 + dt))
            e("v_fract_f32 v%d, v56" % (36 + 4 * dt + dw))
        e("v_mul_f32 v56, %s, v%d" % (hexf(16.0), 32 + dt))
        e("v_fract_f32 v%d, v56" % (52 + dt))
    for T in range(8):
        for dt in range(4):
            tb = 64 + 8 * (dt & 1)
            for dw in range(4):
                a = 36 + 4 * dt + dw
                e("v_cos_f32 v%d, v%d" % (tb + 2 * dw, a))
                e("v_sin_f32_e64 v%d, -v%d" % (tb + 2 * dw + 1, a))
            if T < 7:
                for dw in range(4):
                    a = 36 + 4 * dt + dw
                    e("v_add_f32 v%d, v%d, v%d" % (a, a, 52 + dt))
            else:
                k.nop(1)
            if T == 0:
                if dt == 0:
                    e("v_and_b32 v57, 1, v3")
                    e("v_cvt_f32_u32 v57, v57")
                    e("v_fma_f32 v57, v57, -2.0, 1.0")
                    e("v_cmp_eq_f32 vcc, 0, v31")
                    k.nop(2)
                e("v_cndmask_b32 v%d, v%d, v57, vcc" % (tb + 1, tb + 1))
            for dw in range(4):
                e("v_cvt_pk_bf16_f32 v%d, v%d, v%d" % (GB + (T * 4 + dt) * 4 + dw, tb + 2 * dw, tb + 2 * dw + 1))
    AF = 80

    def rd(st, ks, i):
        slot = st % G2_SLOTS
        for hh in range(2):
            off = slot * 16384 + ks * 4096 + hh * 2048
            hi = off >= 65536
            if st < 14:
                base = TRB + i + (4 if hi else 0)
                dst = AF + 4 * i
            else:
                base = 26 + i + (2 if hi else 0)
                dst = AF + 4 * (2 * ks + i)
            e("ds_read_b64_tr_b16 %s, v%d offset:%d" % (vr(dst + 2 * hh, 2), base, off & 0xffff))
            k.lg.issue((st, ks, i))

    def nfr(st):
        return 4 if st < 14 else 2
    k.wait_vm([("D", 0), ("H", 0)])
    e("s_barrier")
    for i in range(4):
        rd(0, 0, i)
    for st in range(NST):
        for ks in range(2):
            if ks == 1 and st < NST - 1:
                k.wait_vm([("D", st + 1), ("H", st + 1)])
                e("s_barrier")
                if st + 7 < NST:
                    issue(st + 7)
            nxt = (st, 1) if ks == 0 else (st + 1, 0)
            if st < 14:
                first = (st == 0 and ks == 0)
                for dt in range(4):
                    k.wait_lg((st, ks, dt))
                    for pt in range(2):
                        a = ar(AY + 8 * dt + 4 * pt, 4)
                        mfma(k, a, vr(AF + 4 * dt, 4), ar(HB + (st % 8) * 16 + (ks * 2 + pt) * 4, 4), "0" if first else a)
                    if nxt[0] < 14:
                        rd(nxt[0], nxt[1], dt)
                    elif dt < 2:
                        rd(nxt[0], nxt[1], dt)
            else:
                first = (st == 14 and ks == 0)
                T = 2 * (st - 14) + ks
                if nxt[0] < NST:
                    for pt in range(2):
                        rd(nxt[0], nxt[1], pt)
                for pt in range(2):
                    k.wait_lg((st, ks, pt))
                    for dt in range(4):
                        a = ar(AS + 8 * dt + 4 * pt, 4)
                        mfma(k, a, vr(GB + (T * 4 + dt) * 4, 4), vr(AF + 4 * (2 * ks + pt), 4), "0" if first else a)
    e("v_lshlrev_b32 v30, 15, v3")
    e("v_lshl_add_u32 v30, v5, 3, v30")
    e("s_lshl_b32 s36, s30, 20")
    e("s_lshl_b32 s37, s28, 10")
    e("s_add_u32 s36, s36, s37")
    e("s_lshl_b32 s37, s29, 7")
    e("s_add_u32 s36, s36, s37")
    e("s_lshl_b32 s37, s31, 6")
    e("s_add_u32 s36, s36, s37")
    e("s_add_u32 s37, s36, 0x%x" % (16 * 32768))
    XV = 32
    for a in range(2):
        for pt in range(2):
            e("buffer_load_dwordx2 %s, v30, s[20:23], s%d offen offset:%d" % (vr(XV + 2 * (a * 2 + pt), 2), 36 + pt, a * 32))
    e("s_waitcnt lgkmcnt(0)")
    k.lg.clear()
    e("s_barrier")
    e("s_lshl_b32 s38, s27, 13")
    e("v_add_u32 v31, s38, v9")
    e("s_xor_b32 s38, s38, 0x4000")
    e("v_add_u32 v40, s38, v9")
    k.nop(8)
    e("s_cmp_eq_u32 s31, 0")
    e("s_cbranch_scc0 L2_kh1")
    for kh in range(2):
        if kh == 1:
            k.lab("L2_kh1")
        snd = 2 * (1 - kh)
        kp = 2 * kh
        idx = 0
        for base in (AY, AS):
            for a in range(2):
                for pt in range(2):
                    e("ds_write_b128 v31, %s offset:%d" % (ar(base + 8 * (snd + a) + 4 * pt, 4), idx * 1024))
                    idx += 1
        idx = 0
        for base in (AY, AS):
            for a in range(2):
                for pt in range(2):
                    for r in range(4):
                        e("v_accvgpr_read_b32 v%d, a%d" % (64 + 4 * idx + r, base + 8 * (kp + a) + 4 * pt + r))
                    idx += 1
        if kh == 0:
            e("s_branch L2_join")
    k.lab("L2_join")
    e("s_waitcnt lgkmcnt(0)")
    e("s_barrier")
    for idx in range(8):
        e("ds_read_b128 %s, v40 offset:%d" % (vr(96 + 4 * idx, 4), idx * 1024))
    e("s_waitcnt lgkmcnt(0)")
    for i in range(16):
        e("v_pk_add_f32 v[%d:%d], v[%d:%d], v[%d:%d]" % (64 + 2 * i, 65 + 2 * i, 64 + 2 * i, 65 + 2 * i, 96 + 2 * i, 97 + 2 * i))
    for i in range(16):
        e("v_cvt_pk_bf16_f32 v%d, v%d, v%d" % (96 + i, 64 + 2 * i, 65 + 2 * i))
    for i in range(16):
        e("v_lshlrev_b32 v%d, 16, v%d" % (64 + 2 * i, 96 + i))
        e("v_and_b32 v%d, 0xffff0000, v%d" % (65 + 2 * i, 96 + i))
    for i in range(16):
        e("v_mul_f32 v%d, %s, v%d" % (96 + i, hexf(-1.4426950408889634), 64 + i))
    for i in range(16):
        e("v_exp_f32 v%d, v%d" % (96 + i, 96 + i))
    k.nop(1)
    for i in range(16):
        e("v_add_f32 v%d, 1.0, v%d" % (96 + i, 96 + i))
    for i in range(16):
        e("v_rcp_f32 v%d, v%d" % (96 + i, 96 + i))
    k.nop(1)
    for i in range(16):
        e("v_mul_f32 v%d, v%d, v%d" % (64 + i, 64 + i, 96 + i))
    for i in range(8):
        e("v_cvt_pk_bf16_f32 v%d, v%d, v%d" % (96 + i, 64 + 2 * i, 65 + 2 * i))
    for i in range(8):
        e("v_lshlrev_b32 v%d, 16, v%d" % (64 + 2 * i, 96 + i))
        e("v_and_b32 v%d, 0xffff0000, v%d" % (65 + 2 * i, 96 + i))
    for i in range(16):
        e("v_mul_f32 v%d, v%d, v%d" % (64 + i, 64 + i, 80 + i))
    for i in range(8):
        e("v_cvt_pk_bf16_f32 v%d, v%d, v%d" % (96 + i, 64 + 2 * i, 65 + 2 * i))
    for i in range(8):
        e("v_lshlrev_b32 v%d, 16, v%d" % (64 + 2 * i, 96 + i))
        e("v_and_b32 v%d, 0xffff0000, v%d" % (65 + 2 * i, 96 + i))
    e("s_waitcnt vmcnt(0)")
    for i in range(8):
        e("v_lshlrev_b32 v%d, 16, v%d" % (80 + 2 * i, XV + i))
        e("v_and_b32 v%d, 0xffff0000, v%d" % (81 + 2 * i, XV + i))
    for i in range(16):
        e("v_add_f32 v%d, v%d, v%d" % (64 + i, 64 + i, 80 + i))
    for i in range(8):
        e("v_cvt_pk_bf16_f32 v%d, v%d, v%d" % (96 + i, 64 + 2 * i, 65 + 2 * i))
    for a in range(2):
        for pt in range(2):
            e("buffer_store_dwordx2 %s, v30, s[40:43], s%d offen offset:%d" % (vr(96 + 2 * (a * 2 + pt), 2), 36 + pt, a * 32))
    k.lab("L2_done")
    e("s_endpgm")
    return k, 256


HEADER = open(os.path.join(os.path.dirname(os.path.abspath(__file__)), "header.txt")).read()


def main(out):
    k0, v0 = gen_k0()
    k1, v1 = gen_k1()
    k2, v2 = gen_k2()
    s = HEADER
    s += "; @launch kernel=%s grid=(256,1,1) block=(512,1,1) lds=32768\n" % k0.name
    s += "; @launch kernel=%s grid=(481,1,1) block=(256,1,1) lds=%d\n" % (k1.name, G1_SLOTS * 16384)
    s += "; @launch kernel=%s grid=(256,1,1) block=(256,1,1) lds=%d\n" % (k2.name, G2_SLOTS * 16384)
    s += '.amdgcn_target "amdgcn-amd-amdhsa--gfx950"\n.text\n'
    s += k0.text() + k1.text() + k2.text()
    s += '.section .rodata,"a"\n'
    s += descriptor(k0.name, v0, 48)
    s += descriptor(k1.name, v1, 48)
    s += descriptor(k2.name, v2, 48, agprs=192)
    open(out, "w").write(s)


if __name__ == "__main__":
    main(sys.argv[1] if len(sys.argv) > 1 else "recurrent_scan__spectral_gfnet__dense_activation_relu__prompt.s")
```

```python
import struct, os
DIAG = bool(int(os.environ.get("DIAG", "0")))


def f2u(x):
    return struct.unpack("<I", struct.pack("<f", x))[0]


def hexf(x):
    return "0x%08x" % f2u(x)


def vr(a, n=1):
    return "v%d" % a if n == 1 else "v[%d:%d]" % (a, a + n - 1)


def sr(a, n=1):
    return "s%d" % a if n == 1 else "s[%d:%d]" % (a, a + n - 1)


class Counter:
    def __init__(self, maxv):
        self.q = []
        self.maxv = maxv
        self.seen = set()
        self.done = set()

    def issue(self, tag):
        self.q.append(tag)
        self.seen.add(tag)

    def need(self, tags):
        if not isinstance(tags, (list, set)):
            tags = [tags]
        tags = set(tags)
        last = -1
        for i, t in enumerate(self.q):
            if t in tags:
                last = i
        if last < 0:
            assert all(t in self.done for t in tags if t in self.seen) and any(t in self.seen for t in tags), ("wait on unknown tag", tags)
            return None
        n = len(self.q) - 1 - last
        self.done.update(self.q[:last + 1])
        self.q = self.q[last + 1:]
        return min(n, self.maxv - 1)

    def clear(self):
        self.done.update(self.q)
        self.q = []


class K:
    def __init__(self, name):
        self.name = name
        self.lines = []
        self.vm = Counter(63)
        self.lg = Counter(15)
        self.diag = DIAG

    def e(self, s):
        self.lines.append("    " + s)

    def lab(self, s):
        self.lines.append(s + ":")

    def c(self, s):
        self.lines.append("    ; " + s)

    def nop(self, n):
        while n > 0:
            m = min(n, 16)
            self.e("s_nop %d" % (m - 1))
            n -= m

    def wait_vm(self, tags):
        n = self.vm.need(tags)
        if n is not None:
            self.e("s_waitcnt vmcnt(%d)" % n)

    def wait_lg(self, tags):
        n = self.lg.need(tags)
        if n is not None:
            self.e("s_waitcnt lgkmcnt(%d)" % n)

    def wait_all(self):
        self.e("s_waitcnt vmcnt(0) lgkmcnt(0)")
        self.vm.clear()
        self.lg.clear()

    def wait_lg0(self):
        self.e("s_waitcnt lgkmcnt(0)")
        self.lg.clear()

    def wait_vm0(self):
        self.e("s_waitcnt vmcnt(0)")
        self.vm.clear()

    STAMP_S = 64
    def stamp(self, i, real=False):
        if not self.diag:
            return
        self.e("%s s[%d:%d]" % ("s_memrealtime" if real else "s_memtime", self.STAMP_S + 2 * i, self.STAMP_S + 2 * i + 1))

    def stamp_flush(self, srd, kidx, wave_sgpr_expr_v, vt):
        if not self.diag:
            return
        e = self.e
        e("s_waitcnt vmcnt(0) lgkmcnt(0)")
        self.stamp(14)
        self.stamp(15, real=True)
        e("s_getreg_b32 s96, hwreg(HW_REG_XCC_ID)")
        e("s_getreg_b32 s97, hwreg(HW_REG_HW_ID)")
        e("s_waitcnt lgkmcnt(0)")
        e("s_mov_b64 exec, 1")
        e("s_lshl_b32 s98, s2, 10")
        e("s_add_u32 s98, s98, 0x%x" % (0x1400000 + kidx * 0x100000))
        e("v_lshlrev_b32 v%d, 7, v%d" % (vt, wave_sgpr_expr_v))
        for i in range(16):
            e("v_mov_b32 v%d, s%d" % (vt + 1, self.STAMP_S + 2 * i))
            e("buffer_store_dword v%d, v%d, s[%d:%d], s98 offen offset:%d" % (vt + 1, vt, srd, srd + 3, 4 * i))
            e("s_nop 1")
        e("v_mov_b32 v%d, s96" % (vt + 1))
        e("buffer_store_dword v%d, v%d, s[%d:%d], s98 offen offset:64" % (vt + 1, vt, srd, srd + 3))
        e("s_nop 1")
        e("v_mov_b32 v%d, s97" % (vt + 1))
        e("buffer_store_dword v%d, v%d, s[%d:%d], s98 offen offset:68" % (vt + 1, vt, srd, srd + 3))

    def srd(self, d, base, nbytes):
        self.e("s_mov_b32 s%d, s%d" % (d, base))
        self.e("s_and_b32 s%d, s%d, 0xffff" % (d + 1, base + 1))
        self.e("s_mov_b32 s%d, 0x%x" % (d + 2, nbytes))
        self.e("s_mov_b32 s%d, 0x00020000" % (d + 3))

    def text(self):
        hdr = [
            ".globl %s" % self.name,
            ".p2align 8",
            ".type %s,@function" % self.name,
            "%s:" % self.name,
        ]
        return "\n".join(hdr + self.lines) + "\n"


def descriptor(name, vgprs, sgprs=102, agprs=0):
    acc = (vgprs + 3) // 4 * 4
    nfv = acc + agprs if agprs else vgprs
    return """.p2align 6
.amdhsa_kernel %s
  .amdhsa_next_free_vgpr %d
  .amdhsa_next_free_sgpr %d
  .amdhsa_accum_offset %d
  .amdhsa_group_segment_fixed_size 0
  .amdhsa_kernarg_size 72
  .amdhsa_user_sgpr_count 2
  .amdhsa_user_sgpr_kernarg_segment_ptr 1
  .amdhsa_system_sgpr_workgroup_id_x 1
  .amdhsa_float_denorm_mode_32 3
.end_amdhsa_kernel
""" % (name, nfv, sgprs, min(acc, 256))
```

```python
import sys, os
sys.path.insert(0, os.path.dirname(os.path.abspath(__file__)))
from asmlib import *

NAME = "recurrent_scan__spectral_gfnet__dense_activation_relu__prompt_kernel"

X1C_OFF = 0x0200000
WT_OFF = 0x0400000
H_OFF = 0x0800000
ZT_OFF = 0x1000000
FX_OFF = 0x0000000
FHA_OFF = 0x0001000
FHB_OFF = 0x0002000
FZ_OFF = 0x0003000
EPOCH_OFF = 0x0004000
WS_BYTES = 0x1800000 if DIAG else 0x1200000
OOB = 0x7f000000
TAGC = 0x9E3779B9

X_BYTES = 2048 * 512 * 2
W_BYTES = 2048 * 257 * 2
W1_BYTES = 512 * 1792 * 2

SX, SWR, SWI, SW1, SW2, SOUT, SWS = 12, 16, 20, 24, 28, 32, 36
sW, sPB, sCBK, sF0, sJT, sR, sTAG, sA, sWP, sDB, sISJ, sXB = 3, 4, 5, 6, 7, 8, 9, 10, 11, 40, 41, 42
sT0, sT1, sT2, sT3, sT4 = 43, 44, 45, 46, 47
sWOFF = 48
sCNT = 49
sTV = 50

LA, LB, LS = 0, 65536, 131072
L_CS = LS
L_C1 = LS + 8192
L_C2 = LS + 16384

vLANE, vC, vQ, vTAG = 1, 3, 4, 5
XF = 128


def ar(a, n=1):
    return "a%d" % a if n == 1 else "a[%d:%d]" % (a, a + n - 1)


def srd(n):
    return "s[%d:%d]" % (n, n + 3)


def gen():
    k = K(NAME)
    e = k.e

    def mfma(d, a, b, c=None):
        e("v_mfma_f32_16x16x32_bf16 %s, %s, %s, %s" % (d, a, b, c if c is not None else d))

    def bf16_round(v):
        e("v_cvt_pk_bf16_f32 v%d, v%d, v%d" % (v, v, v))
        e("v_lshlrev_b32 v%d, 16, v%d" % (v, v))

    def publish(soff):
        e("s_mov_b64 exec, 1")
        e("buffer_store_dword v%d, off, %s, %s sc1" % (vTAG, srd(SWS), soff))
        k.vm.issue("flag")
        e("s_mov_b64 exec, -1")

    pollno = [0]

    def poll(vaddr, soff, vt, width=1, mask=None):
        n = pollno[0]
        pollno[0] += 1
        e("s_mov_b32 s%d, 0" % sCNT)
        k.lab("L_poll%d" % n)
        if width == 1:
            e("buffer_load_dword v%d, v%d, %s, %s offen sc1" % (vt, vaddr, srd(SWS), soff))
            e("s_waitcnt vmcnt(0)")
            e("v_cmp_ne_u32 vcc, v%d, v%d" % (vt, vTAG))
        else:
            e("buffer_load_dwordx4 %s, v%d, %s, %s offen sc1" % (vr(vt, 4), vaddr, srd(SWS), soff))
            e("s_waitcnt vmcnt(0)")
            e("v_xor_b32 v%d, v%d, v%d" % (vt, vt, vTAG))
            e("v_xor_b32 v%d, v%d, v%d" % (vt + 1, vt + 1, vTAG))
            e("v_xor_b32 v%d, v%d, v%d" % (vt + 2, vt + 2, vTAG))
            e("v_xor_b32 v%d, v%d, v%d" % (vt + 3, vt + 3, vTAG))
            e("v_or3_b32 v%d, v%d, v%d, v%d" % (vt, vt, vt + 1, vt + 2))
            e("v_or_b32 v%d, v%d, v%d" % (vt, vt, vt + 3))
            e("v_cmp_ne_u32 vcc, 0, v%d" % vt)
        k.vm.clear()
        if mask is not None:
            e("s_and_b32 vcc_lo, vcc_lo, 0x%x" % (mask & 0xffffffff))
            e("s_and_b32 vcc_hi, vcc_hi, 0x%x" % (mask >> 32))
        e("s_cmp_eq_u64 vcc, 0")
        e("s_cbranch_scc1 L_polled%d" % n)
        e("s_add_u32 s%d, s%d, 1" % (sCNT, sCNT))
        e("s_cmp_lt_u32 s%d, 0x40000" % sCNT)
        e("s_cbranch_scc1 L_poll%d" % n)
        k.lab("L_polled%d" % n)

    e("s_cmp_ge_u32 s2, 256")
    e("s_cbranch_scc1 L_done")
    k.stamp(0)
    k.stamp(1, real=True)
    e("s_load_dwordx2 s[%d:%d], s[0:1], 0" % (SX, SX + 1))
    e("s_load_dwordx2 s[%d:%d], s[0:1], 32" % (SW1, SW1 + 1))
    e("s_load_dwordx2 s[%d:%d], s[0:1], 64" % (SWS, SWS + 1))
    e("s_load_dwordx2 s[%d:%d], s[0:1], 8" % (SWR, SWR + 1))
    e("s_load_dwordx2 s[%d:%d], s[0:1], 16" % (SWI, SWI + 1))
    e("s_load_dwordx2 s[%d:%d], s[0:1], 40" % (SW2, SW2 + 1))
    e("s_load_dwordx2 s[%d:%d], s[0:1], 48" % (SOUT, SOUT + 1))
    for s_, nb in ((SX, X_BYTES), (SWR, W_BYTES), (SWI, W_BYTES), (SW1, W1_BYTES), (SW2, W1_BYTES), (SOUT, X_BYTES), (SWS, WS_BYTES)):
        e("s_mov_b32 s%d, 0x%x" % (s_ + 2, nb))
        e("s_mov_b32 s%d, 0x00020000" % (s_ + 3))
    e("v_lshrrev_b32 v2, 6, v0")
    e("v_and_b32 v%d, 63, v0" % vLANE)
    e("v_and_b32 v%d, 15, v0" % vC)
    e("v_readfirstlane_b32 s%d, v2" % sW)
    e("v_bfe_u32 v%d, v0, 4, 2" % vQ)
    e("s_and_b32 s%d, s2, 7" % sA)
    e("s_lshr_b32 s%d, s2, 6" % sWP)
    e("s_lshr_b32 s%d, s2, 3" % sDB)
    e("s_and_b32 s%d, s%d, 7" % (sDB, sDB))
    e("s_lshr_b32 s%d, s%d, 1" % (sPB, sA))
    e("s_lshl_b32 s%d, s%d, 2" % (sPB, sPB))
    e("s_add_u32 s%d, s%d, s%d" % (sPB, sPB, sWP))
    e("s_and_b32 s%d, s%d, 1" % (sT0, sA))
    e("s_lshl_b32 s%d, s%d, 3" % (sCBK, sT0))
    e("s_add_u32 s%d, s%d, s%d" % (sCBK, sCBK, sDB))
    e("s_lshl_b32 s%d, s%d, 1" % (sR, sWP))
    e("s_add_u32 s%d, s%d, s%d" % (sR, sR, sDB))
    e("s_and_b32 s%d, s%d, 7" % (sR, sR))
    e("s_lshl_b32 s%d, s%d, 7" % (sT1, sDB))
    e("s_lshl_b32 s%d, s%d, 6" % (sT2, sDB))
    e("s_add_u32 s%d, s%d, 384" % (sT2, sT2))
    e("s_mul_i32 s%d, s%d, 5" % (sT3, sDB))
    e("s_sub_u32 s%d, s%d, 24" % (sT3, sT3))
    e("s_cmp_ge_u32 s%d, 6" % sDB)
    e("s_cselect_b32 s%d, 1, 0" % sISJ)
    e("s_cselect_b32 s%d, s%d, s%d" % (sF0, sT2, sT1))
    e("s_cselect_b32 s%d, s%d, s%d" % (sJT, sT3, sDB))
    e("s_mul_i32 s%d, s%d, 896" % (sT1, sT0))
    e("s_add_u32 s%d, s%d, s%d" % (sF0, sF0, sT1))
    e("s_lshl_b32 s%d, s%d, 4" % (sT1, sT0))
    e("s_add_u32 s%d, s%d, s%d" % (sJT, sJT, sT1))
    e("s_and_b32 s%d, s%d, 1" % (sXB, sW))
    e("s_lshl_b32 s%d, s%d, 20" % (sXB, sXB))
    e("s_lshl_b32 s%d, s%d, 1" % (sT1, sPB))
    e("s_lshr_b32 s%d, s%d, 1" % (sT2, sW))
    e("s_add_u32 s%d, s%d, s%d" % (sT1, sT1, sT2))
    e("s_lshl_b32 s%d, s%d, 10" % (sT1, sT1))
    e("s_add_u32 s%d, s%d, s%d" % (sXB, sXB, sT1))
    vXA = 6
    e("v_lshlrev_b32 v6, 15, v%d" % vC)
    e("v_lshl_add_u32 v6, v%d, 4, v6" % vQ)
    e("v_add_u32 v7, 0x80000, v6")
    vD1 = 8
    e("v_lshrrev_b32 v10, 3, v%d" % vLANE)
    e("v_lshl_add_u32 v11, v2, 4, v10")
    e("v_mul_u32_u24 v11, 3584, v11")
    e("v_and_b32 v12, 7, v%d" % vLANE)
    e("v_and_b32 v13, 1, v%d" % vQ)
    e("v_lshlrev_b32 v13, 1, v13")
    e("v_xor_b32 v13, v13, v12")
    e("v_lshl_add_u32 v8, v13, 4, v11")
    e("v_xor_b32 v13, 4, v13")
    e("v_lshl_add_u32 v9, v13, 4, v11")
    e("v_add_u32 v9, %d, v9" % (8 * 3584))
    vWL, vWS = 14, 15
    e("v_mul_u32_u24 v14, 257, v12")
    e("v_add_lshl_u32 v14, v14, v10, 1")
    e("v_lshlrev_b32 v15, 13, v10")
    e("v_lshl_add_u32 v15, v12, 4, v15")
    sRS = 62
    e("s_lshl_b32 s%d, s%d, 2" % (sRS, sPB))
    e("s_add_u32 s%d, s%d, s%d" % (sRS, sRS, sW))
    e("s_lshr_b32 s%d, s%d, 4" % (sT1, sRS))
    e("s_lshl_b32 s%d, s%d, 4" % (sT1, sT1))
    e("s_and_b32 s%d, s%d, 1" % (sT2, sRS))
    e("s_lshl_b32 s%d, s%d, 3" % (sT2, sT2))
    e("s_add_u32 s%d, s%d, s%d" % (sT1, sT1, sT2))
    e("s_bfe_u32 s%d, s%d, 0x30001" % (sT2, sRS))
    e("s_lshl_b32 s%d, s%d, 8" % (sT2, sT2))
    e("s_add_u32 s%d, s%d, s%d" % (sT1, sT1, sT2))
    e("s_mul_i32 s%d, s%d, 514" % (sWOFF, sT1))
    sM0W = 63
    e("s_lshl_b32 s%d, s%d, 11" % (sM0W, sW))
    e("s_waitcnt lgkmcnt(0)")
    e("s_load_dword s%d, s[%d:%d], 0x%x" % (sTAG, SWS, SWS + 1, EPOCH_OFF))

    def xload(kk):
        e("s_add_u32 s%d, s%d, %d" % (sT0, sR, kk))
        e("s_and_b32 s%d, s%d, 7" % (sT0, sT0))
        e("s_lshl_b32 s%d, s%d, 7" % (sT0, sT0))
        e("s_add_u32 s%d, s%d, s%d" % (sT0, sT0, sXB))
        for u in range(2):
            for ks in range(2):
                e("buffer_load_dwordx4 %s, v%d, %s, s%d offen offset:%d" % (vr(XF + (u * 16 + 2 * kk + ks) * 4, 4), vXA + u, srd(SX), sT0, ks * 64))
                k.vm.issue(("X", kk))

    def w1dma(kkF, regF, kkJ, tag):
        if kkJ is None:
            e("s_add_u32 s%d, s%d, %d" % (sT0, sR, kkF))
            e("s_add_u32 s%d, s%d, %d" % (sT2, sM0W, (LB if regF else LA) + kkF * 8192))
            e("s_mov_b32 s%d, %d" % (sT1, 128 if regF else 0))
        else:
            e("s_cmp_eq_u32 s%d, 1" % sISJ)
            e("s_cselect_b32 s%d, %d, %d" % (sT0, kkJ, kkF))
            e("s_mov_b32 s%d, %d" % (sT2, (LB if regF else LA) + kkF * 8192))
            e("s_cselect_b32 s%d, %d, s%d" % (sT2, LB + kkJ * 8192, sT2))
            e("s_cselect_b32 s%d, 0, %d" % (sT1, 128 if regF else 0))
            e("s_add_u32 s%d, s%d, s%d" % (sT0, sT0, sR))
            e("s_add_u32 s%d, s%d, s%d" % (sT2, sT2, sM0W))
        e("s_and_b32 s%d, s%d, 7" % (sT0, sT0))
        e("s_mul_i32 s%d, s%d, %d" % (sT0, sT0, 64 * 3584))
        e("s_lshl1_add_u32 s%d, s%d, s%d" % (sT0, sF0, sT0))
        e("s_add_u32 s%d, s%d, s%d" % (sT0, sT0, sT1))
        for ee in range(2):
            e("s_add_u32 m0, s%d, %d" % (sT2, ee * 1024))
            k.nop(1)
            e("buffer_load_dwordx4 v%d, %s, s%d offen lds" % (vD1 + ee, srd(SW1), sT0))
            k.vm.issue(tag)

    WG = 116

    def wgather(colreg_s, tag):
        e("s_lshl1_add_u32 s%d, s%d, s%d" % (sT0, colreg_s, sWOFF))
        for r in range(4):
            if r:
                e("s_add_u32 s%d, s%d, 32896" % (sT0, sT0))
            e("buffer_load_ushort v%d, v%d, %s, s%d offen" % (WG + r, vWL, srd(SWR), sT0))
            k.vm.issue(tag)
            e("buffer_load_ushort v%d, v%d, %s, s%d offen" % (WG + 4 + r, vWL, srd(SWI), sT0))
            k.vm.issue(tag)

    def wstore(colreg_s, tag):
        for r in range(4):
            e("v_lshl_or_b32 v%d, v%d, 16, v%d" % (WG + r, WG + 4 + r, WG + r))
        e("s_lshl_b32 s%d, s%d, 13" % (sT0, colreg_s))
        e("s_lshl_b32 s%d, s%d, 7" % (sT1, sRS))
        e("s_add_u32 s%d, s%d, s%d" % (sT0, sT0, sT1))
        e("s_add_u32 s%d, s%d, 0x%x" % (sT0, sT0, WT_OFF))
        e("buffer_store_dwordx4 %s, v%d, %s, s%d offen sc1" % (vr(WG, 4), vWS, srd(SWS), sT0))
        k.vm.issue(tag)

    grpF = [(0, 0), (1, 0), (0, 1), (1, 1), (2, 0), (3, 0), (4, 0), (5, 0)]

    def grp(g):
        kkF, regF = grpF[g]
        w1dma(kkF, regF, g, ("W1", regF, kkF))

    xload(0)
    for g in range(4):
        grp(g)
    sCOL = 61
    e("s_lshl_b32 s%d, s%d, 3" % (sCOL, sJT))
    wgather(sCOL, "wg")
    xload(1)
    k.stamp(2)

    FB = 68
    TMP = 84

    def fgen():
        t = TMP
        e("s_lshl_b32 s%d, s%d, 4" % (sT0, sJT))
        e("v_add_u32 v%d, s%d, v%d" % (t, sT0, vC))
        e("v_lshrrev_b32 v%d, 1, v%d" % (t + 1, t))
        e("v_and_b32 v%d, 1, v%d" % (t + 2, t))
        e("v_cvt_f32_u32 v%d, v%d" % (t + 2, t + 2))
        e("v_mul_f32 v%d, %s, v%d" % (t + 2, hexf(0.25), t + 2))
        e("v_cmp_eq_u32 vcc, 1, v%d" % t)
        e("v_mov_b32 v%d, 256" % (t + 3))
        e("s_lshl_b32 s%d, s%d, 6" % (sT0, sR))
        e("v_cndmask_b32 v%d, v%d, v%d, vcc" % (t + 1, t + 1, t + 3))
        e("v_cndmask_b32 v%d, v%d, 0, vcc" % (t + 2, t + 2))
        e("v_cvt_f32_u32 v%d, v%d" % (t + 1, t + 1))
        e("v_mul_f32 v%d, %s, v%d" % (t + 1, hexf(1.0 / 512), t + 1))
        e("v_lshl_add_u32 v%d, v%d, 3, s%d" % (t + 3, vQ, sT0))
        e("v_cvt_f32_u32 v%d, v%d" % (t + 3, t + 3))
        e("v_fma_f32 v%d, v%d, v%d, v%d" % (t + 2, t + 3, t + 1, t + 2))
        e("v_fract_f32 v%d, v%d" % (t + 2, t + 2))
        e("v_mul_f32 v%d, %s, v%d" % (t + 3, hexf(32.0), t + 1))
        e("v_fract_f32 v%d, v%d" % (t + 3, t + 3))
        e("v_mov_b32 v%d, v%d" % (t + 8, t + 2))
        for jj in range(1, 8):
            e("v_add_f32 v%d, v%d, v%d" % (t + 8 + jj, t + 7 + jj, t + 1))
        for Tf in range(4):
            for jj in range(8):
                e("v_cos_f32 v%d, v%d" % (t + 16 + jj, t + 8 + jj))
            if Tf < 3:
                for jj in range(8):
                    e("v_add_f32 v%d, v%d, v%d" % (t + 8 + jj, t + 8 + jj, t + 3))
            else:
                k.nop(1)
            for d in range(4):
                e("v_cvt_pk_bf16_f32 v%d, v%d, v%d" % (FB + 4 * Tf + d, t + 16 + 2 * d, t + 17 + 2 * d))

    fgen()
    vSG, vAL, vBE = 16, 17, 18
    e("v_bfe_u32 v19, v%d, 1, 2" % vC)
    e("v_cvt_f32_u32 v19, v19")
    e("v_mul_f32 v19, %s, v19" % hexf(0.25))
    e("v_cos_f32 v%d, v19" % vAL)
    e("v_sin_f32 v%d, v19" % vBE)
    e("v_add_f32 v19, v19, v19")
    e("v_cos_f32 v%d, v19" % vSG)
    e("v_rndne_f32 v%d, v%d" % (vAL, vAL))
    e("v_rndne_f32 v%d, v%d" % (vBE, vBE))
    e("v_lshlrev_b32 v19, 31, v%d" % vC)
    e("v_rndne_f32 v%d, v%d" % (vSG, vSG))
    e("v_xor_b32 v%d, v19, v%d" % (vBE, vBE))
    ONES = 124
    for d in range(4):
        e("v_mov_b32 v%d, 0x3f803f80" % (ONES + d))

    aC64, aS64, aN64, aC32, aS32, aN32, aT1C, aT1S, aT2C, aT2S = 176, 184, 192, 200, 208, 216, 224, 232, 240, 248
    t = 32
    e("v_lshl_add_u32 v%d, v2, 4, v%d" % (t + 24, vC))
    e("v_cvt_f32_u32 v%d, v%d" % (t + 25, t + 24))
    e("v_cvt_f32_u32 v%d, v%d" % (t + 27, vQ))
    e("v_mul_f32 v%d, 4.0, v%d" % (t + 27, t + 27))
    e("v_cvt_f32_u32 v%d, v%d" % (t + 28, vC))

    def cs_frag(scale_reg, offs, aC, aS, aN):
        for jj in range(8):
            e("v_add_f32 v%d, %s, v%d" % (t + jj, hexf(float(offs[jj])), t + 27))
        for jj in range(8):
            e("v_mul_f32 v%d, v%d, v%d" % (t + jj, t + jj, scale_reg))
        for jj in range(8):
            e("v_cos_f32 v%d, v%d" % (t + 8 + jj, t + jj))
            e("v_sin_f32 v%d, v%d" % (t + 16 + jj, t + jj))
        k.nop(1)
        for d in range(4):
            e("v_cvt_pk_bf16_f32 v%d, v%d, v%d" % (t + d, t + 8 + 2 * d, t + 9 + 2 * d))
            e("v_cvt_pk_bf16_f32 v%d, v%d, v%d" % (t + 4 + d, t + 16 + 2 * d, t + 17 + 2 * d))
        for d in range(4):
            e("v_accvgpr_write_b32 a%d, v%d" % (aC + d, t + d))
            e("v_accvgpr_write_b32 a%d, v%d" % (aS + d, t + 4 + d))
            e("v_xor_b32 v%d, 0x80008000, v%d" % (t + 4 + d, t + 4 + d))
        for d in range(4):
            e("v_accvgpr_write_b32 a%d, v%d" % (aN + d, t + 4 + d))
    slot = [16 * (jj >> 2) + (jj & 3) for jj in range(8)]
    e("v_mul_f32 v%d, %s, v%d" % (t + 26, hexf(1.0 / 64), t + 25))
    for tt in range(2):
        cs_frag(t + 26, [32 * tt + s_ for s_ in slot], aC64 + 4 * tt, aS64 + 4 * tt, aN64 + 4 * tt)
    for v in range(2):
        e("v_add_f32 v%d, %s, v%d" % (t + 26, hexf(16.0 * v), t + 28))
        e("v_mul_f32 v%d, %s, v%d" % (t + 26, hexf(1.0 / 32), t + 26))
        cs_frag(t + 26, slot, aC32 + 4 * v, aS32 + 4 * v, aN32 + 4 * v)
    e("v_mul_f32 v%d, %s, v%d" % (t + 26, hexf(1.0 / 2048), t + 25))
    for i in range(8):
        e("v_add_f32 v%d, %s, v%d" % (t + i, hexf(float(16 * (i >> 2) + (i & 3))), t + 27))
    for i in range(8):
        e("v_mul_f32 v%d, v%d, v%d" % (t + i, t + i, t + 26))
    for i in range(8):
        e("v_cos_f32 v%d, v%d" % (t + 8 + i, t + i))
        e("v_sin_f32 v%d, v%d" % (t + 16 + i, t + i))
    k.nop(1)
    for i in range(8):
        e("v_accvgpr_write_b32 a%d, v%d" % (aT1C + i, t + 8 + i))
        e("v_accvgpr_write_b32 a%d, v%d" % (aT1S + i, t + 16 + i))
    e("v_cvt_f32_u32 v%d, v2" % (t + 29))
    e("v_mul_f32 v%d, %s, v%d" % (t + 29, hexf(16.0), t + 29))
    e("v_add_f32 v%d, v%d, v%d" % (t + 29, t + 29, t + 27))
    for v in range(2):
        e("v_add_f32 v%d, %s, v%d" % (t + 26, hexf(16.0 * v), t + 28))
        e("v_mul_f32 v%d, %s, v%d" % (t + 26, hexf(1.0 / 2048), t + 26))
        for r in range(4):
            e("v_add_f32 v%d, %s, v%d" % (t + 4 * v + r, hexf(float(r)), t + 29))
            e("v_mul_f32 v%d, v%d, v%d" % (t + 4 * v + r, t + 4 * v + r, t + 26))
    for i in range(8):
        e("v_cos_f32 v%d, v%d" % (t + 8 + i, t + i))
        e("v_sin_f32 v%d, v%d" % (t + 16 + i, t + i))
    k.nop(1)
    for i in range(8):
        e("v_accvgpr_write_b32 a%d, v%d" % (aT2C + i, t + 8 + i))
        e("v_accvgpr_write_b32 a%d, v%d" % (aT2S + i, t + 16 + i))
    k.stamp(3)

    PA = 32
    ST = 20
    for i in range(4):
        e("v_mov_b32 v%d, 0" % (ST + i))

    def X(u, T):
        return XF + (u * 16 + T) * 4

    for kk in range(8):
        if kk + 2 < 8:
            xload(kk + 2)
        if kk >= 4:
            grp(kk)
        k.wait_vm(("X", kk))
        for u in range(2):
            for ks in range(2):
                for d in range(4):
                    x = X(u, 2 * kk + ks) + d
                    e("v_dot2_f32_bf16 v%d, v%d, v%d, v%d" % (ST + u, x, ONES, ST + u))
                    e("v_dot2_f32_bf16 v%d, v%d, v%d, v%d" % (ST + 2 + u, x, x, ST + 2 + u))
        for ks in range(2):
            T = 2 * kk + ks
            for u in range(2):
                p = vr(PA + ((T >> 2) * 2 + u) * 4, 4)
                mfma(p, vr(X(u, T), 4), vr(FB + 4 * (T & 3), 4), p if (T & 3) else "0")
    k.stamp(4)
    k.nop(3)
    for sw in ("v_permlane32_swap_b32", "v_permlane16_swap_b32"):
        for i in range(4):
            e("v_mov_b32 v%d, v%d" % (TMP + i, ST + i))
        k.nop(2)
        for i in range(4):
            e("%s v%d, v%d" % (sw, ST + i, TMP + i))
        k.nop(1)
        for i in range(4):
            e("v_add_f32 v%d, v%d, v%d" % (ST + i, ST + i, TMP + i))
    vRS, vNM, vD0 = 24, 26, 28
    for u in range(2):
        m, q2 = ST + u, ST + 2 + u
        e("v_mul_f32 v%d, %s, v%d" % (m, hexf(1.0 / 512), m))
        e("v_mul_f32 v%d, %s, v%d" % (q2, hexf(1.0 / 512), q2))
        e("v_fma_f32 v%d, -v%d, v%d, v%d" % (q2, m, m, q2))
        e("v_max_f32 v%d, 0, v%d" % (q2, q2))
        bf16_round(q2)
        e("v_add_f32 v%d, %s, v%d" % (q2, hexf(1e-5), q2))
        bf16_round(q2)
        e("v_sqrt_f32 v%d, v%d" % (q2, q2))
        e("v_sub_f32 v%d, 0, v%d" % (vNM + u, m))
        bf16_round(q2)
        e("v_rcp_f32 v%d, v%d" % (vRS + u, q2))
        bf16_round(vNM + u)
        e("v_add_f32 v%d, v%d, v%d" % (vD0 + u, m, vNM + u))
        e("v_mul_f32 v%d, %s, v%d" % (vD0 + u, hexf(512.0), vD0 + u))
        e("v_mul_f32 v%d, v%d, v%d" % (vD0 + u, vD0 + u, vRS + u))
    RT, D0T = 104, 96
    e("v_lshlrev_b32 v30, 4, v%d" % vQ)
    for u in range(2):
        for r in range(4):
            e("ds_bpermute_b32 v%d, v30, v%d offset:%d" % (RT + 4 * u + r, vRS + u, 4 * r))
            e("ds_bpermute_b32 v%d, v30, v%d offset:%d" % (D0T + 4 * u + r, vD0 + u, 4 * r))
    vX1 = 31
    e("v_lshrrev_b32 v31, 1, v%d" % vC)
    e("v_lshlrev_b32 v31, 13, v31")
    e("v_and_b32 v19, 1, v%d" % vC)
    e("v_lshl_add_u32 v31, v19, 6, v31")
    e("v_lshl_add_u32 v31, v%d, 4, v31" % vQ)
    e("s_waitcnt lgkmcnt(0)")
    e("s_add_u32 s%d, s%d, 0x%x" % (sTAG, sTAG, TAGC))
    e("v_mov_b32 v%d, s%d" % (vTAG, sTAG))

    def dft_finish(first, tag):
        for i in range(8):
            p0, p1, p2, p3 = PA + i, PA + 8 + i, PA + 16 + i, PA + 24 + i
            e("v_fmac_f32 v%d, v%d, v%d" % (p1, vSG, p3))
            e("v_fmac_f32 v%d, v%d, v%d" % (p0, vSG, p2))
        for i in range(8):
            e("v_fmac_f32 v%d, v%d, v%d" % (PA + i, vAL, PA + 8 + i))
        for i in range(8):
            e("v_fmac_f32_dpp v%d, v%d, v%d quad_perm:[1,0,3,2] row_mask:0xf bank_mask:0xf" % (PA + i, PA + 8 + i, vBE))
        for i in range(8):
            e("v_mul_f32 v%d, v%d, v%d" % (PA + i, PA + i, RT + i))
        if first:
            e("s_lshl_b32 s%d, s%d, 4" % (sT0, sJT))
            e("v_add_u32 v19, s%d, v%d" % (sT0, vC))
            e("v_cmp_eq_u32 vcc, 0, v19")
            k.nop(2)
            for i in range(8):
                e("v_cndmask_b32 v%d, v%d, v%d, vcc" % (PA + i, PA + i, D0T + i))
        for d in range(4):
            e("v_cvt_pk_bf16_f32 v%d, v%d, v%d" % (112 + d, PA + 2 * d, PA + 2 * d + 1))
        e("s_lshl_b32 s%d, s%d, 16" % (sT0, sJT))
        e("s_lshl_b32 s%d, s%d, 7" % (sT1, sRS))
        e("s_add_u32 s%d, s%d, s%d" % (sT0, sT0, sT1))
        e("s_add_u32 s%d, s%d, 0x%x" % (sT0, sT0, X1C_OFF))
        e("buffer_store_dwordx4 v[112:115], v%d, %s, s%d offen sc1" % (vX1, srd(SWS), sT0))
        k.vm.issue(tag)

    dft_finish(True, "x1st")
    wstore(sCOL, "x1st")
    e("s_cmp_lg_u32 s%d, 0" % sJT)
    e("s_cbranch_scc1 L_no256")
    save_q = list(k.vm.q)
    e("s_movk_i32 s%d, 256" % sCOL)
    e("s_mov_b64 exec, 0xff")
    k.nop(2)
    wgather(sCOL, "wg256")
    e("s_waitcnt vmcnt(0)")
    wstore(sCOL, "x1st256")
    e("s_waitcnt vmcnt(0)")
    e("s_mov_b64 exec, -1")
    k.vm.q = save_q
    k.lab("L_no256")
    sFX, sFH = 59, 60
    e("s_lshl_b32 s%d, s%d, 8" % (sFX, sCBK))
    e("s_lshl2_add_u32 s%d, s%d, s%d" % (sFX, sRS, sFX))
    if FX_OFF:
        e("s_add_u32 s%d, s%d, 0x%x" % (sFX, sFX, FX_OFF))
    e("s_lshl_b32 s%d, s%d, 6" % (sFH, sRS))
    e("s_lshl2_add_u32 s%d, s%d, s%d" % (sFH, sCBK, sFH))
    e("s_add_u32 s%d, s%d, 0x%x" % (sFH, sFH, FHA_OFF))
    TRB = 10
    e("v_lshrrev_b32 v19, 2, v%d" % vC)
    e("v_lshl_add_u32 v30, v%d, 3, v19" % vQ)
    e("v_lshlrev_b32 v30, 7, v30")
    e("v_and_b32 v%d, 1, v%d" % (TMP, vC))
    e("v_lshl_add_u32 v30, v%d, 3, v30" % TMP)
    e("v_bfe_u32 v19, v%d, 3, 1" % vC)
    e("v_and_b32 v%d, 1, v%d" % (TMP, vQ))
    e("v_lshl_or_b32 v19, v%d, 1, v19" % TMP)
    e("v_xor_b32 v19, s%d, v19" % sW)
    e("v_lshlrev_b32 v19, 1, v19")
    e("v_bfe_u32 v%d, v%d, 1, 1" % (TMP, vC))
    e("v_or_b32 v19, v19, v%d" % TMP)
    for l in range(4):
        e("v_xor_b32 v%d, %d, v19" % (TMP, 2 * l))
        e("v_lshl_add_u32 v%d, v%d, 4, v30" % (TRB + l, TMP))
    vL16 = 2
    e("v_lshlrev_b32 v%d, 4, v%d" % (vL16, vLANE))
    k.stamp(5)

    ACC = 32
    CS = 64
    AF = 84
    NBAR = 4

    def gemm_pass(reg, hooks, htag):
        base = LB if reg else LA
        NB = 8

        def rd(T, l):
            for hh in range(2):
                off = base % 65536 + T * 4096 + hh * 512
                e("ds_read_b64_tr_b16 %s, v%d offset:%d" % (vr(AF + ((T & 1) * 4 + l) * 4 + 2 * hh, 2), TRB + l, off))
                k.lg.issue(("A", reg, T, l))
        per = 16 // NBAR

        def land(T):
            k.wait_vm([("W1", reg, kk) for kk in range((T + per) // 2)])
            e("s_barrier")
        land(0)
        for l in range(4):
            rd(0, l)
        for T in range(16):
            if T + 1 < 16 and (T + 1) % per == 0:
                land(T + 1)
            for l in range(4):
                if T + 1 < 16:
                    rd(T + 1, l)
                k.wait_lg(("A", reg, T, l))
                a = vr(AF + ((T & 1) * 4 + l) * 4, 4)
                for u in range(2):
                    c = vr(ACC + (l * 2 + u) * 4, 4)
                    mfma(c, a, vr(X(u, T), 4), c if T else "0")
                if l == 0:
                    mfma(vr(CS, 4), a, vr(ONES, 4), vr(CS, 4) if T else "0")
            if T in hooks:
                hooks[T]()
        e("s_lshl_b32 s%d, s%d, 10" % (sT0, sW))
        e("v_add_u32 v30, s%d, v%d" % (sT0, vL16))
        e("v_add_u32 v30, 0x%x, v30" % L_CS)
        k.nop(4)
        e("ds_write_b128 v30, %s" % vr(CS, 4))
        e("s_waitcnt lgkmcnt(0)")
        k.lg.clear()
        e("s_barrier")
        C1 = 68
        for l in range(1, 4):
            e("v_xor_b32 v19, %d, v30" % (l * 1024))
            e("ds_read_b128 %s, v19" % vr(C1 + 4 * (l - 1), 4))
            k.lg.issue(("C1", reg, l))
        e("s_mul_i32 s%d, s%d, %d" % (sT0, sRS, 2 * 56 * 1024))
        e("s_lshl_b32 s%d, s%d, 5" % (sT1, sF0))
        e("s_add_u32 s%d, s%d, s%d" % (sT0, sT0, sT1))
        e("s_add_u32 s%d, s%d, 0x%x" % (sT0, sT0, H_OFF))
        if reg:
            e("s_cmp_eq_u32 s%d, 1" % sISJ)
            e("s_cselect_b32 s%d, 0, 2048" % sT1)
            e("s_add_u32 s%d, s%d, s%d" % (sT0, sT0, sT1))
        e("s_lshr_b32 s%d, s%d, 1" % (sT1, sW))
        e("s_lshl_b32 s%d, s%d, 10" % (sT1, sT1))
        e("v_add_u32 v19, s%d, v%d" % (sT1, vL16))
        e("v_xor_b32 v30, 1024, v19")
        e("s_add_u32 s%d, s%d, %d" % (sT1, sT0, 56 * 1024))
        HO = AF
        for l in range(4):
            if l:
                k.wait_lg(("C1", reg, l))
            c1 = CS if l == 0 else C1 + 4 * (l - 1)
            for u in range(2):
                a = ACC + (l * 2 + u) * 4
                for r in range(4):
                    e("v_fmac_f32 v%d, v%d, v%d" % (a + r, vNM + u, c1 + r))
                for r in range(4):
                    e("v_mul_f32 v%d, v%d, v%d" % (a + r, a + r, vRS + u))
                o = HO + ((l >> 1) * 2 + u) * 4 + (l & 1) * 2
                e("v_cvt_pk_bf16_f32 v%d, v%d, v%d" % (o, a, a + 1))
                e("v_cvt_pk_bf16_f32 v%d, v%d, v%d" % (o + 1, a + 2, a + 3))
        for i in range(16):
            e("v_pk_max_i16 v%d, v%d, 0" % (HO + i, HO + i))
        e("s_bitcmp0_b32 s%d, 0" % sW)
        e("s_cbranch_scc1 L_nosw%d" % reg)
        for i in range(4):
            e("v_swap_b32 v%d, v%d" % (HO + 4 * i, HO + 4 * i + 2))
            e("v_swap_b32 v%d, v%d" % (HO + 4 * i + 1, HO + 4 * i + 3))
        k.lab("L_nosw%d" % reg)
        for pr in range(2):
            for u in range(2):
                e("buffer_store_dwordx4 %s, v%d, %s, s%d offen sc1" % (vr(HO + (pr * 2 + u) * 4, 4), 19 if pr == 0 else 30, srd(SWS), sT0 + u))
                k.vm.issue(htag)

    e("s_cmp_eq_u32 s%d, 1" % sISJ)
    e("s_cbranch_scc1 L_jpath")
    q_vm, q_lg = list(k.vm.q), list(k.lg.q)

    def pubFX():
        k.wait_vm("x1st")
        publish("s%d" % sFX)
    w1dma(6, 0, None, ("W1", 0, 6))
    w1dma(7, 0, None, ("W1", 0, 7))
    hooks = {}
    for i in range(6):
        hooks[2 * i + 1] = (lambda i=i: w1dma(2 + i, 1, None, ("W1", 1, 2 + i)))
    hooks[6] = pubFX
    gemm_pass(0, hooks, "ha")
    e("s_branch L_join")
    qF_vm, qF_lg = list(k.vm.q), list(k.lg.q)

    k.lab("L_jpath")
    k.vm.q, k.lg.q = list(q_vm), list(q_lg)
    e("s_mov_b32 s%d, 0" % sCNT)
    for i in range(8):
        e("v_accvgpr_write_b32 a%d, v%d" % (i, RT + i))
    k.lab("L_jloop")
    e("s_add_u32 s%d, s%d, 1" % (sJT, sJT))
    e("s_lshl_b32 s%d, s%d, 3" % (sCOL, sJT))
    wgather(sCOL, "wgj")
    fgen()
    for i in range(8):
        e("v_accvgpr_read_b32 v%d, a%d" % (RT + i, i))
    for T in range(16):
        for u in range(2):
            p = vr(PA + ((T >> 2) * 2 + u) * 4, 4)
            mfma(p, vr(X(u, T), 4), vr(FB + 4 * (T & 3), 4), p if (T & 3) else "0")
    k.wait_vm("wgj")
    wstore(sCOL, "jst")
    k.nop(4)
    dft_finish(False, "jst")
    e("s_add_u32 s%d, s%d, 1" % (sCNT, sCNT))
    e("s_cmp_lt_u32 s%d, 4" % sCNT)
    e("s_cbranch_scc1 L_jloop")
    e("s_waitcnt vmcnt(0)")
    k.vm.clear()
    publish("s%d" % sFX)
    e("s_waitcnt vmcnt(0)")

    k.lab("L_join")
    k.vm.q, k.lg.q = qF_vm, qF_lg
    k.stamp(6)

    for l in range(4):
        e("v_add_u32 v%d, 0x10000, v%d" % (TRB + l, TRB + l))
    TV = [50, 51, 52, 53, 54, 55, 56, 57, 58, SWR, SWR + 1, SWI, SWI + 1, sWOFF]
    e("s_lshr_b32 s%d, s%d, 1" % (sT0, sW))
    e("s_mul_i32 s%d, s%d, 28" % (sT0, sT0))
    e("s_and_b32 s%d, s%d, 1" % (sT1, sW))
    e("s_add_u32 s%d, s%d, s%d" % (sT0, sT0, sT1))
    e("s_cmp_ge_u32 s%d, 6" % sR)
    e("s_cselect_b32 s%d, 6, 0" % sT1)
    e("s_sub_u32 s%d, s%d, s%d" % (sT1, sR, sT1))
    for i in range(6):
        e("s_lshl2_add_u32 s%d, s%d, s%d" % (TV[i], sT1, sT0))
        if i < 5:
            e("s_add_u32 s%d, s%d, 1" % (sT1, sT1))
            e("s_cmp_eq_u32 s%d, 6" % sT1)
            e("s_cselect_b32 s%d, 0, s%d" % (sT1, sT1))
    for i in range(8):
        e("s_add_u32 s%d, s%d, %d" % (sT1, sR, i))
        e("s_and_b32 s%d, s%d, 7" % (sT1, sT1))
        e("s_lshl1_add_u32 s%d, s%d, 1" % (sT2, sT1))
        e("s_add_u32 s%d, s%d, 6" % (sT3, sT1))
        e("s_cmp_lt_u32 s%d, 6" % sT1)
        e("s_cselect_b32 s%d, s%d, s%d" % (sT2, sT2, sT3))
        e("s_lshl1_add_u32 s%d, s%d, s%d" % (TV[6 + i], sT2, sT0))
    vD2 = 8
    e("v_lshrrev_b32 v8, 3, v%d" % vLANE)
    e("v_and_b32 v9, 7, v%d" % vLANE)
    e("v_lshlrev_b32 v19, 1, v%d" % vQ)
    e("v_xor_b32 v9, v9, v19")
    e("v_lshlrev_b32 v9, 4, v9")
    e("v_lshl_add_u32 v14, v8, 12, v9")
    e("v_lshl_add_u32 v8, v8, 10, v9")
    vDZ = 14
    TR2 = [6, 7, 9, 15]
    e("v_lshrrev_b32 v19, 2, v%d" % vC)
    e("v_lshl_add_u32 v19, v%d, 2, v19" % vQ)
    e("v_bfe_u32 v30, v19, 1, 2")
    e("v_lshlrev_b32 v19, 7, v19")
    e("v_and_b32 v31, 1, v%d" % vC)
    e("v_lshl_add_u32 v19, v31, 3, v19")
    e("v_lshlrev_b32 v30, 1, v30")
    e("v_bfe_u32 v31, v%d, 1, 1" % vC)
    e("v_or_b32 v30, v30, v31")
    e("v_lshl_add_u32 v16, v30, 4, v19")
    e("s_lshl_b32 s%d, s%d, 5" % (sT0, sW))
    e("s_lshl_b32 s%d, s%d, 14" % (sM0W, sW))
    e("v_xor_b32 v30, s%d, v16" % sT0)
    e("v_add_u32 v30, s%d, v30" % sM0W)
    for l in range(4):
        e("v_xor_b32 v%d, %d, v30" % (TR2[l], 32 * l))
    vZB = 16

    def w2reg(i):
        return ("a", 16 * i) if i < 11 else ("v", 128 + 16 * (i - 11))

    st = {"dma": 0, "rd": 0}

    def w2_dma():
        i = st["dma"]
        if i >= 14:
            return
        st["dma"] += 1
        if i >= 4:
            k.wait_lg(("W2R", i - 4))
        e("s_lshl_b32 s%d, s%d, 15" % (sT0, TV[i]))
        e("s_lshl_b32 s%d, s%d, 7" % (sT1, sDB))
        e("s_add_u32 s%d, s%d, s%d" % (sT0, sT0, sT1))
        for ee in range(4):
            e("s_add_u32 m0, s%d, %d" % (sM0W, (i % 4) * 4096 + ee * 1024))
            if ee:
                e("s_add_u32 s%d, s%d, 8192" % (sT0, sT0))
            else:
                k.nop(1)
            e("buffer_load_dwordx4 v%d, %s, s%d offen lds" % (vD2, srd(SW2), sT0))
            k.vm.issue(("W2", i))

    def w2_read():
        i = st["rd"]
        if i >= 14:
            return
        st["rd"] += 1
        k.wait_vm(("W2", i))
        kind, base = w2reg(i)
        for l in range(4):
            for hh in range(2):
                r = base + 4 * l + 2 * hh
                e("ds_read_b64_tr_b16 %s[%d:%d], v%d offset:%d" % (kind, r, r + 1, TR2[l], (i % 4) * 4096 + hh * 2048))
                k.lg.issue(("W2R", i))

    def pubHA():
        k.wait_vm("ha")
        publish("s%d" % sFH)

    def adv():
        w2_read()

    def adv2():
        w2_dma()
    for i in range(4):
        w2_dma()
    hooks = {}
    hooks[3] = pubHA
    for T in (5, 7, 9, 11, 13, 15):
        hooks[T] = adv
    for T in (6, 8, 10, 12, 14):
        hooks[T] = adv2
    gemm_pass(1, hooks, "hb")
    k.stamp(7)
    w2_dma()
    w2_read()
    w2_dma()

    sCC, sPL, sZR, sZI, sSC = sJT, sCOL, sF0, sXB, sISJ
    e("s_xor_b32 s%d, s2, 0x30" % sCC)
    e("s_bfe_u32 s%d, s%d, 0x40003" % (sT0, sCC))
    e("s_min_u32 s%d, s%d, 6" % (sT1, sT0))
    e("s_cmp_ge_u32 s%d, 11" % sT0)
    e("s_cselect_b32 s%d, 7, s%d" % (sT1, sT1))
    e("s_lshr_b32 s%d, s%d, 7" % (sT0, sCC))
    e("s_lshl3_add_u32 s%d, s%d, s%d" % (sT1, sT0, sT1))
    e("s_lshl_b32 s%d, s%d, 8" % (sT4, sT1))
    if FX_OFF:
        e("s_add_u32 s%d, s%d, 0x%x" % (sT4, sT4, FX_OFF))
    e("v_lshlrev_b32 v19, 2, v%d" % vLANE)
    poll(19, "s%d" % sT4, 30)
    e("s_add_u32 s%d, s%d, 0x%x" % (sT0, sFH, FHB_OFF - FHA_OFF))
    publish("s%d" % sT0)
    k.stamp(8)
    e("s_and_b32 s%d, s%d, 1" % (sT0, sW))
    e("s_lshl_b32 s%d, s%d, 3" % (sT0, sT0))
    e("v_add_u32 v19, s%d, v%d" % (sT0, vQ))
    e("v_xor_b32 v30, v19, v%d" % vC)
    e("v_lshlrev_b32 v30, 4, v30")
    e("v_lshl_add_u32 v30, v%d, 8, v30" % vQ)
    e("v_xor_b32 v31, 64, v30")
    e("s_lshl_b32 s%d, s%d, 13" % (sT0, sCC))
    e("s_lshl_b32 s%d, s%d, 11" % (sT1, sW))
    e("s_add_u32 s%d, s%d, s%d" % (sT0, sT0, sT1))
    e("s_add_u32 s%d, s%d, 0x%x" % (sT2, sT0, X1C_OFF))
    e("s_add_u32 m0, s%d, 0x%x" % (sT1, L_C1))
    k.nop(1)
    e("buffer_load_dwordx4 v30, %s, s%d offen sc1 lds" % (srd(SWS), sT2))
    k.vm.issue("cin")
    e("buffer_load_dwordx4 v31, %s, s%d offen offset:1024 sc1 lds" % (srd(SWS), sT2))
    k.vm.issue("cin")
    CW = 64
    e("s_add_u32 s%d, s%d, 0x%x" % (sT2, sT0, WT_OFF))
    for v in range(2):
        e("buffer_load_dwordx4 %s, v%d, %s, s%d offen offset:%d sc1" % (vr(CW + 4 * v, 4), vL16, srd(SWS), sT2, v * 1024))
        k.vm.issue("cw")
    e("v_xor_b32 v20, v%d, v%d" % (vQ, vC))
    e("v_lshlrev_b32 v20, 4, v20")
    e("v_lshl_add_u32 v20, v%d, 8, v20" % vC)
    e("v_add_u32 v20, 0x%x, v20" % L_C1)
    e("v_xor_b32 v21, 64, v20")
    e("v_xor_b32 v22, 128, v20")
    e("v_xor_b32 v23, 192, v20")
    e("s_lshr_b32 s%d, s%d, 1" % (sT0, sW))
    e("s_lshl_b32 s%d, s%d, 7" % (sT0, sT0))
    e("s_and_b32 s%d, s%d, 1" % (sT1, sW))
    e("s_lshl3_add_u32 s%d, s%d, s%d" % (sT0, sT1, sT0))
    e("v_xor_b32 v24, s%d, v20" % sT0)
    e("v_xor_b32 v25, 64, v24")
    e("v_lshlrev_b32 v26, 5, v%d" % vC)
    e("v_lshl_add_u32 v26, v%d, 3, v26" % vQ)
    e("s_lshl_b32 s%d, s%d, 10" % (sT0, sW))
    e("v_add_u32 v26, s%d, v26" % sT0)
    e("s_lshl_b32 s%d, s%d, 13" % (sZR, sCC))
    e("s_add_u32 s%d, s%d, 0x%x" % (sZR, sZR, ZT_OFF))
    e("s_add_u32 s%d, s%d, 4096" % (sZI, sZR))
    e("s_mov_b32 s%d, %s" % (sSC, hexf(2.0 ** -19)))
    e("s_cmp_eq_u32 s%d, 0" % sCC)
    e("s_cselect_b32 s%d, 0x%x, s%d" % (sZI, OOB, sZI))
    e("s_cselect_b32 s%d, %s, s%d" % (sSC, hexf(2.0 ** -20), sSC))
    e("s_mov_b32 s%d, 0" % sPL)
    XI = 32
    TM = 72
    TW = 88
    DR, DI = 104, 112
    PR, PI = 120, 124

    def xin(pl, v, tt):
        return XI + 4 * ((pl * 2 + v) * 2 + tt)
    w2_read()
    k.wait_vm("cin")
    e("s_barrier")
    k.lab("L_ccol")
    for pl in range(2):
        for v in range(2):
            for tt in range(2):
                e("ds_read_b128 %s, v%d offset:%d" % (vr(xin(pl, v, tt), 4), 20 + 2 * tt + pl, v * 4096))
                k.lg.issue("cx")
    for i in range(8):
        e("v_accvgpr_read_b32 v%d, a%d" % (TW + i, aT1C + i))
        e("v_accvgpr_read_b32 v%d, a%d" % (TW + 8 + i, aT1S + i))
    k.wait_lg("cx")
    e("s_cmp_lg_u32 s%d, 0" % sCC)
    e("s_cbranch_scc1 L_cplx")
    e("s_cmp_eq_u32 s%d, 0" % sPL)
    e("s_cbranch_scc1 L_c0")
    for i in range(16):
        e("v_mov_b32 v%d, v%d" % (XI + i, XI + 16 + i))
    k.lab("L_c0")
    for i in range(16):
        e("v_mov_b32 v%d, 0" % (XI + 16 + i))
    k.nop(2)
    k.lab("L_cplx")
    for v in range(2):
        dr, di = vr(DR + 4 * v, 4), vr(DI + 4 * v, 4)
        for tt in range(2):
            mfma(dr, vr(xin(0, v, tt), 4), ar(aC64 + 4 * tt, 4), dr if tt else "0")
            mfma(di, vr(xin(1, v, tt), 4), ar(aC64 + 4 * tt, 4), di if tt else "0")
            mfma(dr, vr(xin(1, v, tt), 4), ar(aS64 + 4 * tt, 4))
            mfma(di, vr(xin(0, v, tt), 4), ar(aN64 + 4 * tt, 4))
    k.nop(8)

    def cmul(conj):
        cr, ci = TW, TW + 8
        for i in range(8):
            e("v_mul_f32 v%d, v%d, v%d" % (TM + i, DR + i, cr + i))
            e("v_mul_f32 v%d, v%d, v%d" % (TM + 8 + i, DI + i, cr + i))
        for i in range(8):
            if conj:
                e("v_fma_f32 v%d, v%d, v%d, v%d" % (TM + i, DI + i, ci + i, TM + i))
                e("v_fma_f32 v%d, -v%d, v%d, v%d" % (TM + 8 + i, DR + i, ci + i, TM + 8 + i))
            else:
                e("v_fma_f32 v%d, -v%d, v%d, v%d" % (TM + i, DI + i, ci + i, TM + i))
                e("v_fma_f32 v%d, v%d, v%d, v%d" % (TM + 8 + i, DR + i, ci + i, TM + 8 + i))
        for d in range(4):
            e("v_cvt_pk_bf16_f32 v%d, v%d, v%d" % (PR + d, TM + 2 * d, TM + 2 * d + 1))
            e("v_cvt_pk_bf16_f32 v%d, v%d, v%d" % (PI + d, TM + 8 + 2 * d, TM + 9 + 2 * d))
        k.nop(2)
    cmul(True)
    pr, pi = vr(PR, 4), vr(PI, 4)
    for v in range(2):
        dr, di = vr(DR + 4 * v, 4), vr(DI + 4 * v, 4)
        mfma(dr, ar(aC32 + 4 * v, 4), pr, "0")
        mfma(di, ar(aC32 + 4 * v, 4), pi, "0")
        mfma(dr, ar(aS32 + 4 * v, 4), pi)
        mfma(di, ar(aN32 + 4 * v, 4), pr)
    e("s_waitcnt vmcnt(0)")
    k.vm.clear()
    for i in range(8):
        e("v_lshlrev_b32 v%d, 16, v%d" % (TW + i, CW + i))
        e("v_and_b32 v%d, 0xffff0000, v%d" % (TW + 8 + i, CW + i))
    cmul(False)
    for v in range(2):
        dr, di = vr(DR + 4 * v, 4), vr(DI + 4 * v, 4)
        mfma(dr, pr, ar(aC32 + 4 * v, 4), "0")
        mfma(di, pi, ar(aC32 + 4 * v, 4), "0")
        mfma(dr, pi, ar(aN32 + 4 * v, 4))
        mfma(di, pr, ar(aS32 + 4 * v, 4))
    for i in range(8):
        e("v_accvgpr_read_b32 v%d, a%d" % (TW + i, aT2C + i))
        e("v_accvgpr_read_b32 v%d, a%d" % (TW + 8 + i, aT2S + i))
    cmul(False)
    for v in range(2):
        e("ds_write_b64 v24, %s offset:%d" % (vr(PR + 2 * v, 2), 8192 + v * 4096))
        e("ds_write_b64 v25, %s offset:%d" % (vr(PI + 2 * v, 2), 8192 + v * 4096))
    e("s_waitcnt lgkmcnt(0)")
    k.lg.clear()
    e("s_barrier")
    for pl in range(2):
        for v in range(2):
            for tt in range(2):
                e("ds_read_b128 %s, v%d offset:%d" % (vr(xin(pl, v, tt), 4), 20 + 2 * tt + pl, 8192 + v * 4096))
    e("s_waitcnt lgkmcnt(0)")
    for v in range(2):
        dr, di = vr(DR + 4 * v, 4), vr(DI + 4 * v, 4)
        for tt in range(2):
            mfma(dr, ar(aC64 + 4 * tt, 4), vr(xin(0, v, tt), 4), dr if tt else "0")
            mfma(di, ar(aC64 + 4 * tt, 4), vr(xin(1, v, tt), 4), di if tt else "0")
            mfma(dr, ar(aN64 + 4 * tt, 4), vr(xin(1, v, tt), 4))
            mfma(di, ar(aS64 + 4 * tt, 4), vr(xin(0, v, tt), 4))
    k.nop(8)
    for i in range(16):
        e("v_mul_f32 v%d, s%d, v%d" % (DR + i, sSC, DR + i))
    for d in range(4):
        e("v_cvt_pk_bf16_f32 v%d, v%d, v%d" % (PR + d, DR + 2 * d, DR + 2 * d + 1))
        e("v_cvt_pk_bf16_f32 v%d, v%d, v%d" % (PI + d, DI + 2 * d, DI + 2 * d + 1))
    for v in range(2):
        e("buffer_store_dwordx2 %s, v26, %s, s%d offen offset:%d sc1" % (vr(PR + 2 * v, 2), srd(SWS), sZR, v * 512))
        k.vm.issue("zst")
        e("buffer_store_dwordx2 %s, v26, %s, s%d offen offset:%d sc1" % (vr(PI + 2 * v, 2), srd(SWS), sZI, v * 512))
        k.vm.issue("zst")
    e("s_or_b32 s%d, s%d, s%d" % (sT0, sCC, sPL))
    e("s_cbranch_scc1 L_cdone")
    e("s_mov_b32 s%d, 1" % sPL)
    e("s_add_u32 s%d, s%d, 4096" % (sZR, sZR))
    e("s_lshl_b32 s%d, s%d, 11" % (sT2, sW))
    e("s_add_u32 s%d, s%d, 0x%x" % (sT2, sT2, WT_OFF + 256 * 8192))
    for v in range(2):
        e("buffer_load_dwordx4 %s, v%d, %s, s%d offen offset:%d sc1" % (vr(CW + 4 * v, 4), vL16, srd(SWS), sT2, v * 1024))
    e("s_barrier")
    e("s_branch L_ccol")
    k.lab("L_cdone")
    k.stamp(9)

    while st["dma"] < 14 or st["rd"] < st["dma"] - 2:
        if st["rd"] < st["dma"]:
            w2_read()
        w2_dma()
    e("v_lshlrev_b32 v19, 7, v%d" % vQ)
    e("v_lshl_add_u32 v19, v%d, 2, v19" % vC)
    e("s_lshl_b32 s%d, s%d, 9" % (sFH, sA))
    e("s_lshr_b32 s%d, s%d, 1" % (sT0, sWP))
    e("s_lshl_b32 s%d, s%d, 6" % (sT0, sT0))
    e("s_add_u32 s%d, s%d, s%d" % (sFH, sFH, sT0))
    e("s_add_u32 s%d, s%d, 0x%x" % (sFH, sFH, FHA_OFF))
    maskF = 0
    for ln in range(64):
        if (ln & 7) < 6:
            maskF |= 1 << ln
    poll(19, "s%d" % sFH, 30, mask=maskF)
    e("s_barrier")
    e("s_cmp_lg_u32 s%d, 0" % sW)
    e("s_cbranch_scc1 L_nozp")
    e("s_lshl_b32 s%d, s2, 2" % sT0)
    e("s_add_u32 s%d, s%d, 0x%x" % (sT0, sT0, FZ_OFF))
    publish("s%d" % sT0)
    k.vm.q.pop()
    k.lab("L_nozp")
    k.stamp(10)
    HV = [20, 21, 22, 23]
    for pt in range(4):
        e("v_add_u32 v%d, 0x%x, v%d" % (HV[pt], pt * 4 * 56 * 1024, vL16))
    sHB = sFX
    e("s_lshl4_add_u32 s%d, s%d, s%d" % (sHB, sA, sWP))
    e("s_mul_i32 s%d, s%d, %d" % (sHB, sHB, 56 * 1024))
    e("s_add_u32 s%d, s%d, 0x%x" % (sHB, sHB, H_OFF))
    HR = 176
    NHS = 5

    def hload(i):
        e("s_lshl_b32 s%d, s%d, 10" % (sT0, TV[i]))
        e("s_add_u32 s%d, s%d, s%d" % (sT0, sT0, sHB))
        for pt in range(4):
            e("buffer_load_dwordx4 %s, v%d, %s, s%d offen sc1" % (vr(HR + (i % NHS) * 16 + 4 * pt, 4), HV[pt], srd(SWS), sT0))
            k.vm.issue(("H", i))
    for i in range(4):
        hload(i)
    while st["rd"] < 14:
        w2_read()

    GB = 32

    def ggen():
        t0 = 96
        yield "s_lshl_b32 s%d, s%d, 6" % (sT3, sDB)
        yield "s_lshl4_add_u32 s%d, s%d, s%d" % (sT3, sW, sT3)
        yield "v_add_u32 v%d, s%d, v%d" % (t0, sT3, vC)
        yield "v_cvt_f32_u32 v%d, v%d" % (t0 + 1, t0)
        yield "v_lshlrev_b32 v%d, 1, v%d" % (t0 + 2, vQ)
        yield "v_mul_f32 v%d, %s, v%d" % (t0 + 1, hexf(1.0 / 512), t0 + 1)
        yield "v_cvt_f32_u32 v%d, v%d" % (t0 + 2, t0 + 2)
        yield "v_mul_f32 v%d, %s, v%d" % (t0 + 3, hexf(16.0), t0 + 1)
        for dw in range(4):
            yield "v_add_f32 v%d, %s, v%d" % (t0 + 4 + dw, hexf(float(8 * (dw >> 1) + (dw & 1))), t0 + 2)
        yield "v_fract_f32 v%d, v%d" % (t0 + 3, t0 + 3)
        for dw in range(4):
            yield "v_mul_f32 v%d, v%d, v%d" % (t0 + 4 + dw, t0 + 4 + dw, t0 + 1)
        yield "v_and_b32 v%d, 1, v%d" % (t0 + 16, vC)
        yield "v_cvt_f32_u32 v%d, v%d" % (t0 + 16, t0 + 16)
        yield "v_cmp_eq_u32 vcc, 0, v%d" % vQ
        yield "v_fma_f32 v%d, v%d, -2.0, 1.0" % (t0 + 16, t0 + 16)
        for T in range(16):
            for dw in range(4):
                yield "v_cos_f32 v%d, v%d" % (t0 + 8 + 2 * dw, t0 + 4 + dw)
                yield "v_sin_f32_e64 v%d, -v%d" % (t0 + 9 + 2 * dw, t0 + 4 + dw)
            for dw in range(4):
                yield "v_add_f32 v%d, v%d, v%d" % (t0 + 4 + dw, t0 + 4 + dw, t0 + 3)
            if T == 0:
                yield "v_cndmask_b32 v%d, v%d, v%d, vcc" % (t0 + 9, t0 + 9, t0 + 16)
            for dw in range(4):
                yield "v_cvt_pk_bf16_f32 v%d, v%d, v%d" % (GB + 4 * T + dw, t0 + 8 + 2 * dw, t0 + 9 + 2 * dw)
    gs = ggen()
    for _ in range(21 + 8 + 4 + 1):
        e(next(gs))

    AY = 176
    for i in range(14):
        if i == 2:
            pass
        if i + 4 < 14:
            if i + 4 == 6:
                e("s_add_u32 s%d, s%d, 0x%x" % (sT4, sFH, FHB_OFF - FHA_OFF))
                poll(19, "s%d" % sT4, 30)
            hload(i + 4)
        if i == 10:
            e("s_mov_b32 s%d, 0x%x" % (sT4, FZ_OFF))
            poll(vL16, "s%d" % sT4, 24, width=4)
            e("s_lshl_b32 s%d, s%d, 19" % (sT0, sW))
            e("s_lshl_b32 s%d, s%d, 10" % (sT1, sWP))
            e("s_add_u32 s%d, s%d, s%d" % (sT0, sT0, sT1))
            e("s_lshl_b32 s%d, s%d, 7" % (sT1, sA))
            e("s_add_u32 s%d, s%d, s%d" % (sT0, sT0, sT1))
            e("s_add_u32 s%d, s%d, 0x%x" % (sT0, sT0, ZT_OFF))
            for ee in range(16):
                e("s_add_u32 m0, s%d, %d" % (sM0W, LB + ee * 1024))
                if ee:
                    e("s_add_u32 s%d, s%d, 32768" % (sT0, sT0))
                else:
                    k.nop(1)
                e("buffer_load_dwordx4 v%d, %s, s%d offen sc1 lds" % (vDZ, srd(SWS), sT0))
                k.vm.issue("Z")
        k.wait_vm(("H", i))
        k.wait_lg(("W2R", i))
        kind, base = w2reg(i)
        for l in range(4):
            for pt in range(4):
                c = ar(AY + (l * 4 + pt) * 4, 4)
                mfma(c, "%s[%d:%d]" % (kind, base + 4 * l, base + 4 * l + 3), vr(HR + (i % NHS) * 16 + 4 * pt, 4), c if i else "0")
                for _ in range(1 if (pt & 1) else 2):
                    s_ = next(gs, None)
                    if s_:
                        e(s_)
                        if s_.startswith(("v_cos", "v_sin")):
                            break
    for s_ in gs:
        e(s_)
    k.stamp(11)

    e("v_lshlrev_b32 v30, 15, v%d" % vC)
    e("v_lshl_add_u32 v30, v%d, 3, v30" % vQ)
    sXO = sFH
    e("s_lshl_b32 s%d, s%d, 19" % (sXO, sWP))
    e("s_lshl_b32 s%d, s%d, 12" % (sT0, sA))
    e("s_add_u32 s%d, s%d, s%d" % (sXO, sXO, sT0))
    e("s_lshl_b32 s%d, s%d, 7" % (sT0, sDB))
    e("s_add_u32 s%d, s%d, s%d" % (sXO, sXO, sT0))
    e("s_lshl_b32 s%d, s%d, 5" % (sT0, sW))
    e("s_add_u32 s%d, s%d, s%d" % (sXO, sXO, sT0))
    XV = 20
    for pt in range(4):
        e("buffer_load_dwordx2 %s, v30, %s, s%d offen offset:%d" % (vr(XV + 2 * pt, 2), srd(SX), sXO, pt * 1024))
        k.vm.issue("xe")
    e("v_add_u32 v31, s%d, v%d" % (sM0W, vL16))
    for l in range(1, 4):
        for pt in range(4):
            e("ds_write_b128 v31, %s offset:%d" % (ar(AY + (l * 4 + pt) * 4, 4), ((l - 1) * 4 + pt) * 1024))
    e("v_add_u32 v19, 0x%x, v%d" % (LB, vZB))
    for pt in range(4):
        e("v_xor_b32 v%d, %d, v19" % (TR2[pt], 32 * pt))
    k.wait_vm("Z")
    e("s_waitcnt lgkmcnt(0)")
    k.lg.clear()
    e("s_barrier")
    AS = 96
    ZF = 176

    def zrd(T):
        for pt in range(4):
            for hh in range(2):
                r = ZF + ((T & 1) * 4 + pt) * 4 + 2 * hh
                e("ds_read_b64_tr_b16 %s, v%d offset:%d" % (vr(r, 2), TR2[pt], T * 4096 + hh * 2048))
                k.lg.issue(("ZR", T, pt))
    zrd(0)
    YP = 208
    for T in range(16):
        for pt in range(4):
            if T + 1 < 16 and pt == 1:
                zrd(T + 1)
            k.wait_lg(("ZR", T, pt))
            c = vr(AS + 4 * pt, 4)
            mfma(c, vr(GB + 4 * T, 4), vr(ZF + ((T & 1) * 4 + pt) * 4, 4), c if T else "0")
    for l in range(1, 4):
        e("v_xor_b32 v19, 0x%x, v31" % (l * 16384))
        for pt in range(4):
            e("ds_read_b128 %s, v19 offset:%d" % (vr(YP + ((l - 1) * 4 + pt) * 4, 4), ((l - 1) * 4 + pt) * 1024))
    Y = 32
    for i in range(16):
        e("v_accvgpr_read_b32 v%d, a%d" % (Y + i, AY + i))
    e("s_waitcnt lgkmcnt(0)")
    k.lg.clear()
    k.stamp(12)
    for i in range(16):
        e("v_add_f32 v%d, v%d, v%d" % (Y + i, Y + i, YP + i))
        e("v_add_f32 v%d, v%d, v%d" % (YP + 16 + i, YP + 16 + i, YP + 32 + i))
    for i in range(16):
        e("v_add_f32 v%d, v%d, v%d" % (Y + i, Y + i, YP + 16 + i))
    U = 48

    def rnd16(base):
        for i in range(8):
            e("v_cvt_pk_bf16_f32 v%d, v%d, v%d" % (U + i, base + 2 * i, base + 2 * i + 1))
        for i in range(8):
            e("v_lshlrev_b32 v%d, 16, v%d" % (base + 2 * i, U + i))
            e("v_and_b32 v%d, 0xffff0000, v%d" % (base + 2 * i + 1, U + i))
    rnd16(Y)
    U2 = 64
    for i in range(16):
        e("v_mul_f32 v%d, %s, v%d" % (U2 + i, hexf(-1.4426950408889634), Y + i))
    for i in range(16):
        e("v_exp_f32 v%d, v%d" % (U2 + i, U2 + i))
    rnd16(AS)
    for i in range(16):
        e("v_add_f32 v%d, 1.0, v%d" % (U2 + i, U2 + i))
    for i in range(16):
        e("v_rcp_f32 v%d, v%d" % (U2 + i, U2 + i))
    k.nop(1)
    for i in range(16):
        e("v_mul_f32 v%d, v%d, v%d" % (Y + i, Y + i, U2 + i))
    rnd16(Y)
    for i in range(16):
        e("v_mul_f32 v%d, v%d, v%d" % (Y + i, Y + i, AS + i))
    rnd16(Y)
    k.wait_vm("xe")
    for i in range(8):
        e("v_lshlrev_b32 v%d, 16, v%d" % (U2 + 2 * i, XV + i))
        e("v_and_b32 v%d, 0xffff0000, v%d" % (U2 + 2 * i + 1, XV + i))
    for i in range(16):
        e("v_add_f32 v%d, v%d, v%d" % (Y + i, Y + i, U2 + i))
    for i in range(8):
        e("v_cvt_pk_bf16_f32 v%d, v%d, v%d" % (U + i, Y + 2 * i, Y + 2 * i + 1))
    for pt in range(4):
        e("buffer_store_dwordx2 %s, v30, %s, s%d offen offset:%d" % (vr(U + 2 * pt, 2), srd(SOUT), sXO, pt * 1024))
    e("s_or_b32 s%d, s2, s%d" % (sT0, sW))
    e("s_cbranch_scc1 L_noep")
    e("s_mov_b32 s%d, 0x%x" % (sT0, EPOCH_OFF))
    publish("s%d" % sT0)
    k.lab("L_noep")
    k.stamp(13)
    if DIAG:
        e("v_mov_b32 v2, s%d" % sW)
    k.stamp_flush(SWS, 0, 2, 8)
    k.lab("L_done")
    e("s_endpgm")
    return k


HEADER = open(os.path.join(os.path.dirname(os.path.abspath(__file__)), "header.txt")).read()


def main(out):
    k = gen()
    s = HEADER
    s += "; @launch grid=(256,1,1) block=(256,1,1) lds=163840\n"
    s += '.amdgcn_target "amdgcn-amd-amdhsa--gfx950"\n.text\n'
    s += k.text()
    s += '.section .rodata,"a"\n'
    s += descriptor(k.name, 256, 102 if DIAG else 64, agprs=256)
    open(out, "w").write(s)


if __name__ == "__main__":
    main(sys.argv[1] if len(sys.argv) > 1 else "v2.s")
```

```python
import sys, os
sys.path.insert(0, os.path.dirname(os.path.abspath(__file__)))
from asmlib import *

NAME = "recurrent_scan__spectral_gfnet__dense_activation_relu__prompt_kernel"

X1C_OFF = 0x0200000
WT_OFF = 0x0400000
H_OFF = 0x0800000
ZT_OFF = 0x1000000
FX_OFF = 0x0000000
FHA_OFF = 0x0001000
FHB_OFF = 0x0002000
FZ_OFF = 0x0003000
EPOCH_OFF = 0x0004000
WS_BYTES = 0x1800000 if DIAG else 0x1200000
OOB = 0x7f000000
TAGC = 0x9E3779B9

X_BYTES = 2048 * 512 * 2
W_BYTES = 2048 * 257 * 2
W1_BYTES = 512 * 1792 * 2

SX, SWR, SWI, SW1, SW2, SOUT, SWS = 12, 16, 20, 24, 28, 32, 36
sW, sPB, sCBK, sF0, sJT, sR, sTAG, sA, sWP, sDB, sISJ, sXB = 3, 4, 5, 6, 7, 8, 9, 10, 11, 40, 41, 42
sT0, sT1, sT2, sT3, sT4 = 43, 44, 45, 46, 47
sWOFF = 48
sCNT = 49
sTV = 50

LA, LB, LS = 0, 65536, 131072
L_CS = LS
L_C1 = LS + 8192
L_C2 = LS + 16384

vLANE, vC, vQ, vTAG = 1, 3, 4, 5
XF = 128


def ar(a, n=1):
    return "a%d" % a if n == 1 else "a[%d:%d]" % (a, a + n - 1)


def srd(n):
    return "s[%d:%d]" % (n, n + 3)


def gen():
    k = K(NAME)
    e = k.e

    def mfma(d, a, b, c=None):
        e("v_mfma_f32_16x16x32_bf16 %s, %s, %s, %s" % (d, a, b, c if c is not None else d))

    def bf16_round(v):
        e("v_cvt_pk_bf16_f32 v%d, v%d, v%d" % (v, v, v))
        e("v_lshlrev_b32 v%d, 16, v%d" % (v, v))

    def publish(soff):
        e("s_mov_b64 exec, 1")
        e("buffer_store_dword v%d, off, %s, %s sc1" % (vTAG, srd(SWS), soff))
        k.vm.issue("flag")
        e("s_mov_b64 exec, -1")

    pollno = [0]

    def poll(vaddr, soff, vt, width=1, mask=None):
        n = pollno[0]
        pollno[0] += 1
        e("s_mov_b32 s%d, 0" % sCNT)
        k.lab("L_poll%d" % n)
        if width == 1:
            e("buffer_load_dword v%d, v%d, %s, %s offen sc1" % (vt, vaddr, srd(SWS), soff))
            e("s_waitcnt vmcnt(0)")
            e("v_cmp_ne_u32 vcc, v%d, v%d" % (vt, vTAG))
        else:
            e("buffer_load_dwordx4 %s, v%d, %s, %s offen sc1" % (vr(vt, 4), vaddr, srd(SWS), soff))
            e("s_waitcnt vmcnt(0)")
            e("v_xor_b32 v%d, v%d, v%d" % (vt, vt, vTAG))
            e("v_xor_b32 v%d, v%d, v%d" % (vt + 1, vt + 1, vTAG))
            e("v_xor_b32 v%d, v%d, v%d" % (vt + 2, vt + 2, vTAG))
            e("v_xor_b32 v%d, v%d, v%d" % (vt + 3, vt + 3, vTAG))
            e("v_or3_b32 v%d, v%d, v%d, v%d" % (vt, vt, vt + 1, vt + 2))
            e("v_or_b32 v%d, v%d, v%d" % (vt, vt, vt + 3))
            e("v_cmp_ne_u32 vcc, 0, v%d" % vt)
        k.vm.clear()
        if mask is not None:
            e("s_and_b32 vcc_lo, vcc_lo, 0x%x" % (mask & 0xffffffff))
            e("s_and_b32 vcc_hi, vcc_hi, 0x%x" % (mask >> 32))
        e("s_cmp_eq_u64 vcc, 0")
        e("s_cbranch_scc1 L_polled%d" % n)
        e("s_add_u32 s%d, s%d, 1" % (sCNT, sCNT))
        e("s_cmp_lt_u32 s%d, 0x40000" % sCNT)
        e("s_cbranch_scc1 L_poll%d" % n)
        k.lab("L_polled%d" % n)

    e("s_cmp_ge_u32 s2, 256")
    e("s_cbranch_scc1 L_done")
    k.stamp(0)
    k.stamp(1, real=True)
    e("s_load_dwordx2 s[%d:%d], s[0:1], 0" % (SX, SX + 1))
    e("s_load_dwordx2 s[%d:%d], s[0:1], 32" % (SW1, SW1 + 1))
    e("s_load_dwordx2 s[%d:%d], s[0:1], 64" % (SWS, SWS + 1))
    e("s_load_dwordx2 s[%d:%d], s[0:1], 8" % (SWR, SWR + 1))
    e("s_load_dwordx2 s[%d:%d], s[0:1], 16" % (SWI, SWI + 1))
    e("s_load_dwordx2 s[%d:%d], s[0:1], 40" % (SW2, SW2 + 1))
    e("s_load_dwordx2 s[%d:%d], s[0:1], 48" % (SOUT, SOUT + 1))
    for s_, nb in ((SX, X_BYTES), (SWR, W_BYTES), (SWI, W_BYTES), (SW1, W1_BYTES), (SW2, W1_BYTES), (SOUT, X_BYTES), (SWS, WS_BYTES)):
        e("s_mov_b32 s%d, 0x%x" % (s_ + 2, nb))
        e("s_mov_b32 s%d, 0x00020000" % (s_ + 3))
    e("v_lshrrev_b32 v2, 6, v0")
    e("v_and_b32 v%d, 63, v0" % vLANE)
    e("v_and_b32 v%d, 15, v0" % vC)
    e("v_readfirstlane_b32 s%d, v2" % sW)
    e("v_bfe_u32 v%d, v0, 4, 2" % vQ)
    e("s_and_b32 s%d, s2, 7" % sA)
    e("s_lshr_b32 s%d, s2, 6" % sWP)
    e("s_lshr_b32 s%d, s2, 3" % sDB)
    e("s_and_b32 s%d, s%d, 7" % (sDB, sDB))
    e("s_lshr_b32 s%d, s%d, 1" % (sPB, sA))
    e("s_lshl_b32 s%d, s%d, 2" % (sPB, sPB))
    e("s_add_u32 s%d, s%d, s%d" % (sPB, sPB, sWP))
    e("s_and_b32 s%d, s%d, 1" % (sT0, sA))
    e("s_lshl_b32 s%d, s%d, 3" % (sCBK, sT0))
    e("s_add_u32 s%d, s%d, s%d" % (sCBK, sCBK, sDB))
    e("s_lshl_b32 s%d, s%d, 1" % (sR, sWP))
    e("s_add_u32 s%d, s%d, s%d" % (sR, sR, sDB))
    e("s_and_b32 s%d, s%d, 7" % (sR, sR))
    e("s_lshl_b32 s%d, s%d, 7" % (sT1, sDB))
    e("s_lshl_b32 s%d, s%d, 6" % (sT2, sDB))
    e("s_add_u32 s%d, s%d, 384" % (sT2, sT2))
    e("s_mul_i32 s%d, s%d, 5" % (sT3, sDB))
    e("s_sub_u32 s%d, s%d, 24" % (sT3, sT3))
    e("s_cmp_ge_u32 s%d, 6" % sDB)
    e("s_cselect_b32 s%d, 1, 0" % sISJ)
    e("s_cselect_b32 s%d, s%d, s%d" % (sF0, sT2, sT1))
    e("s_cselect_b32 s%d, s%d, s%d" % (sJT, sT3, sDB))
    e("s_mul_i32 s%d, s%d, 896" % (sT1, sT0))
    e("s_add_u32 s%d, s%d, s%d" % (sF0, sF0, sT1))
    e("s_lshl_b32 s%d, s%d, 4" % (sT1, sT0))
    e("s_add_u32 s%d, s%d, s%d" % (sJT, sJT, sT1))
    e("s_and_b32 s%d, s%d, 1" % (sXB, sW))
    e("s_lshl_b32 s%d, s%d, 20" % (sXB, sXB))
    e("s_lshl_b32 s%d, s%d, 1" % (sT1, sPB))
    e("s_lshr_b32 s%d, s%d, 1" % (sT2, sW))
    e("s_add_u32 s%d, s%d, s%d" % (sT1, sT1, sT2))
    e("s_lshl_b32 s%d, s%d, 10" % (sT1, sT1))
    e("s_add_u32 s%d, s%d, s%d" % (sXB, sXB, sT1))
    vXA = 6
    e("v_lshlrev_b32 v6, 15, v%d" % vC)
    e("v_lshl_add_u32 v6, v%d, 4, v6" % vQ)
    e("v_add_u32 v7, 0x80000, v6")
    vD1 = 8
    e("v_lshrrev_b32 v10, 3, v%d" % vLANE)
    e("v_lshl_add_u32 v11, v2, 4, v10")
    e("v_mul_u32_u24 v11, 3584, v11")
    e("v_and_b32 v12, 7, v%d" % vLANE)
    e("v_and_b32 v13, 1, v%d" % vQ)
    e("v_lshlrev_b32 v13, 1, v13")
    e("v_xor_b32 v13, v13, v12")
    e("v_lshl_add_u32 v8, v13, 4, v11")
    e("v_xor_b32 v13, 4, v13")
    e("v_lshl_add_u32 v9, v13, 4, v11")
    e("v_add_u32 v9, %d, v9" % (8 * 3584))
    vWL, vWS = 14, 15
    e("v_mul_u32_u24 v14, 257, v12")
    e("v_add_lshl_u32 v14, v14, v10, 1")
    e("v_lshlrev_b32 v15, 13, v10")
    e("v_lshl_add_u32 v15, v12, 4, v15")
    sRS = 62
    e("s_lshl_b32 s%d, s%d, 2" % (sRS, sPB))
    e("s_add_u32 s%d, s%d, s%d" % (sRS, sRS, sW))
    e("s_lshr_b32 s%d, s%d, 4" % (sT1, sRS))
    e("s_lshl_b32 s%d, s%d, 4" % (sT1, sT1))
    e("s_and_b32 s%d, s%d, 1" % (sT2, sRS))
    e("s_lshl_b32 s%d, s%d, 3" % (sT2, sT2))
    e("s_add_u32 s%d, s%d, s%d" % (sT1, sT1, sT2))
    e("s_bfe_u32 s%d, s%d, 0x30001" % (sT2, sRS))
    e("s_lshl_b32 s%d, s%d, 8" % (sT2, sT2))
    e("s_add_u32 s%d, s%d, s%d" % (sT1, sT1, sT2))
    e("s_mul_i32 s%d, s%d, 514" % (sWOFF, sT1))
    sM0W = 63
    e("s_lshl_b32 s%d, s%d, 11" % (sM0W, sW))
    e("s_waitcnt lgkmcnt(0)")
    e("s_load_dword s%d, s[%d:%d], 0x%x" % (sTAG, SWS, SWS + 1, EPOCH_OFF))

    def xload(kk):
        e("s_add_u32 s%d, s%d, %d" % (sT0, sR, kk))
        e("s_and_b32 s%d, s%d, 7" % (sT0, sT0))
        e("s_lshl_b32 s%d, s%d, 7" % (sT0, sT0))
        e("s_add_u32 s%d, s%d, s%d" % (sT0, sT0, sXB))
        for u in range(2):
            for ks in range(2):
                e("buffer_load_dwordx4 %s, v%d, %s, s%d offen offset:%d" % (vr(XF + (u * 16 + 2 * kk + ks) * 4, 4), vXA + u, srd(SX), sT0, ks * 64))
                k.vm.issue(("X", kk))

    def w1dma(kkF, regF, kkJ, tag):
        if kkJ is None:
            e("s_add_u32 s%d, s%d, %d" % (sT0, sR, kkF))
            e("s_add_u32 s%d, s%d, %d" % (sT2, sM0W, (LB if regF else LA) + kkF * 8192))
            e("s_mov_b32 s%d, %d" % (sT1, 128 if regF else 0))
        else:
            e("s_cmp_eq_u32 s%d, 1" % sISJ)
            e("s_cselect_b32 s%d, %d, %d" % (sT0, kkJ, kkF))
            e("s_mov_b32 s%d, %d" % (sT2, (LB if regF else LA) + kkF * 8192))
            e("s_cselect_b32 s%d, %d, s%d" % (sT2, LB + kkJ * 8192, sT2))
            e("s_cselect_b32 s%d, 0, %d" % (sT1, 128 if regF else 0))
            e("s_add_u32 s%d, s%d, s%d" % (sT0, sT0, sR))
            e("s_add_u32 s%d, s%d, s%d" % (sT2, sT2, sM0W))
        e("s_and_b32 s%d, s%d, 7" % (sT0, sT0))
        e("s_mul_i32 s%d, s%d, %d" % (sT0, sT0, 64 * 3584))
        e("s_lshl1_add_u32 s%d, s%d, s%d" % (sT0, sF0, sT0))
        e("s_add_u32 s%d, s%d, s%d" % (sT0, sT0, sT1))
        for ee in range(2):
            e("s_add_u32 m0, s%d, %d" % (sT2, ee * 1024))
            k.nop(1)
            e("buffer_load_dwordx4 v%d, %s, s%d offen lds" % (vD1 + ee, srd(SW1), sT0))
            k.vm.issue(tag)

    WG = 116

    def wgather(colreg_s, tag):
        e("s_lshl1_add_u32 s%d, s%d, s%d" % (sT0, colreg_s, sWOFF))
        for r in range(4):
            if r:
                e("s_add_u32 s%d, s%d, 32896" % (sT0, sT0))
            e("buffer_load_ushort v%d, v%d, %s, s%d offen" % (WG + r, vWL, srd(SWR), sT0))
            k.vm.issue(tag)
            e("buffer_load_ushort v%d, v%d, %s, s%d offen" % (WG + 4 + r, vWL, srd(SWI), sT0))
            k.vm.issue(tag)

    def wstore(colreg_s, tag):
        for r in range(4):
            e("v_lshl_or_b32 v%d, v%d, 16, v%d" % (WG + r, WG + 4 + r, WG + r))
        e("s_lshl_b32 s%d, s%d, 13" % (sT0, colreg_s))
        e("s_lshl_b32 s%d, s%d, 7" % (sT1, sRS))
        e("s_add_u32 s%d, s%d, s%d" % (sT0, sT0, sT1))
        e("s_add_u32 s%d, s%d, 0x%x" % (sT0, sT0, WT_OFF))
        e("buffer_store_dwordx4 %s, v%d, %s, s%d offen sc1" % (vr(WG, 4), vWS, srd(SWS), sT0))
        k.vm.issue(tag)

    grpF = [(0, 0), (1, 0), (0, 1), (1, 1), (2, 0), (3, 0), (4, 0), (5, 0)]

    def grp(g):
        kkF, regF = grpF[g]
        w1dma(kkF, regF, g, ("W1", regF, kkF))

    xload(0)
    for g in range(4):
        grp(g)
    sCOL = 61
    e("s_lshl_b32 s%d, s%d, 3" % (sCOL, sJT))
    wgather(sCOL, "wg")
    xload(1)
    k.stamp(2)

    FB = 68
    TMP = 84

    def fgen():
        t = TMP
        e("s_lshl_b32 s%d, s%d, 4" % (sT0, sJT))
        e("v_add_u32 v%d, s%d, v%d" % (t, sT0, vC))
        e("v_lshrrev_b32 v%d, 1, v%d" % (t + 1, t))
        e("v_and_b32 v%d, 1, v%d" % (t + 2, t))
        e("v_cvt_f32_u32 v%d, v%d" % (t + 2, t + 2))
        e("v_mul_f32 v%d, %s, v%d" % (t + 2, hexf(0.25), t + 2))
        e("v_cmp_eq_u32 vcc, 1, v%d" % t)
        e("v_mov_b32 v%d, 256" % (t + 3))
        e("s_lshl_b32 s%d, s%d, 6" % (sT0, sR))
        e("v_cndmask_b32 v%d, v%d, v%d, vcc" % (t + 1, t + 1, t + 3))
        e("v_cndmask_b32 v%d, v%d, 0, vcc" % (t + 2, t + 2))
        e("v_cvt_f32_u32 v%d, v%d" % (t + 1, t + 1))
        e("v_mul_f32 v%d, %s, v%d" % (t + 1, hexf(1.0 / 512), t + 1))
        e("v_lshl_add_u32 v%d, v%d, 3, s%d" % (t + 3, vQ, sT0))
        e("v_cvt_f32_u32 v%d, v%d" % (t + 3, t + 3))
        e("v_fma_f32 v%d, v%d, v%d, v%d" % (t + 2, t + 3, t + 1, t + 2))
        e("v_fract_f32 v%d, v%d" % (t + 2, t + 2))
        e("v_mul_f32 v%d, %s, v%d" % (t + 3, hexf(32.0), t + 1))
        e("v_fract_f32 v%d, v%d" % (t + 3, t + 3))
        e("v_mov_b32 v%d, v%d" % (t + 8, t + 2))
        for jj in range(1, 8):
            e("v_add_f32 v%d, v%d, v%d" % (t + 8 + jj, t + 7 + jj, t + 1))
        for Tf in range(4):
            for jj in range(8):
                e("v_cos_f32 v%d, v%d" % (t + 16 + jj, t + 8 + jj))
            if Tf < 3:
                for jj in range(8):
                    e("v_add_f32 v%d, v%d, v%d" % (t + 8 + jj, t + 8 + jj, t + 3))
            else:
                k.nop(1)
            for d in range(4):
                e("v_cvt_pk_bf16_f32 v%d, v%d, v%d" % (FB + 4 * Tf + d, t + 16 + 2 * d, t + 17 + 2 * d))

    fgen()
    vSG, vAL, vBE = 16, 17, 18
    e("v_bfe_u32 v19, v%d, 1, 2" % vC)
    e("v_cvt_f32_u32 v19, v19")
    e("v_mul_f32 v19, %s, v19" % hexf(0.25))
    e("v_cos_f32 v%d, v19" % vAL)
    e("v_sin_f32 v%d, v19" % vBE)
    e("v_add_f32 v19, v19, v19")
    e("v_cos_f32 v%d, v19" % vSG)
    e("v_rndne_f32 v%d, v%d" % (vAL, vAL))
    e("v_rndne_f32 v%d, v%d" % (vBE, vBE))
    e("v_lshlrev_b32 v19, 31, v%d" % vC)
    e("v_rndne_f32 v%d, v%d" % (vSG, vSG))
    e("v_xor_b32 v%d, v19, v%d" % (vBE, vBE))
    ONES = 124
    for d in range(4):
        e("v_mov_b32 v%d, 0x3f803f80" % (ONES + d))

    aC64, aS64, aN64, aC32, aS32, aN32, aT1C, aT1S, aT2C, aT2S = 176, 184, 192, 200, 208, 216, 224, 232, 240, 248
    t = 32
    e("v_lshl_add_u32 v%d, v2, 4, v%d" % (t + 24, vC))
    e("v_cvt_f32_u32 v%d, v%d" % (t + 25, t + 24))
    e("v_cvt_f32_u32 v%d, v%d" % (t + 27, vQ))
    e("v_mul_f32 v%d, 4.0, v%d" % (t + 27, t + 27))
    e("v_cvt_f32_u32 v%d, v%d" % (t + 28, vC))

    def cs_frag(scale_reg, offs, aC, aS, aN):
        for jj in range(8):
            e("v_add_f32 v%d, %s, v%d" % (t + jj, hexf(float(offs[jj])), t + 27))
        for jj in range(8):
            e("v_mul_f32 v%d, v%d, v%d" % (t + jj, t + jj, scale_reg))
        for jj in range(8):
            e("v_cos_f32 v%d, v%d" % (t + 8 + jj, t + jj))
            e("v_sin_f32 v%d, v%d" % (t + 16 + jj, t + jj))
        k.nop(1)
        for d in range(4):
            e("v_cvt_pk_bf16_f32 v%d, v%d, v%d" % (t + d, t + 8 + 2 * d, t + 9 + 2 * d))
            e("v_cvt_pk_bf16_f32 v%d, v%d, v%d" % (t + 4 + d, t + 16 + 2 * d, t + 17 + 2 * d))
        for d in range(4):
            e("v_accvgpr_write_b32 a%d, v%d" % (aC + d, t + d))
            e("v_accvgpr_write_b32 a%d, v%d" % (aS + d, t + 4 + d))
            e("v_xor_b32 v%d, 0x80008000, v%d" % (t + 4 + d, t + 4 + d))
        for d in range(4):
            e("v_accvgpr_write_b32 a%d, v%d" % (aN + d, t + 4 + d))
    slot = [16 * (jj >> 2) + (jj & 3) for jj in range(8)]
    e("v_mul_f32 v%d, %s, v%d" % (t + 26, hexf(1.0 / 64), t + 25))
    for tt in range(2):
        cs_frag(t + 26, [32 * tt + s_ for s_ in slot], aC64 + 4 * tt, aS64 + 4 * tt, aN64 + 4 * tt)
    for v in range(2):
        e("v_add_f32 v%d, %s, v%d" % (t + 26, hexf(16.0 * v), t + 28))
        e("v_mul_f32 v%d, %s, v%d" % (t + 26, hexf(1.0 / 32), t + 26))
        cs_frag(t + 26, slot, aC32 + 4 * v, aS32 + 4 * v, aN32 + 4 * v)
    e("v_mul_f32 v%d, %s, v%d" % (t + 26, hexf(1.0 / 2048), t + 25))
    for i in range(8):
        e("v_add_f32 v%d, %s, v%d" % (t + i, hexf(float(16 * (i >> 2) + (i & 3))), t + 27))
    for i in range(8):
        e("v_mul_f32 v%d, v%d, v%d" % (t + i, t + i, t + 26))
    for i in range(8):
        e("v_cos_f32 v%d, v%d" % (t + 8 + i, t + i))
        e("v_sin_f32 v%d, v%d" % (t + 16 + i, t + i))
    k.nop(1)
    for i in range(8):
        e("v_accvgpr_write_b32 a%d, v%d" % (aT1C + i, t + 8 + i))
        e("v_accvgpr_write_b32 a%d, v%d" % (aT1S + i, t + 16 + i))
    e("v_cvt_f32_u32 v%d, v2" % (t + 29))
    e("v_mul_f32 v%d, %s, v%d" % (t + 29, hexf(16.0), t + 29))
    e("v_add_f32 v%d, v%d, v%d" % (t + 29, t + 29, t + 27))
    for v in range(2):
        e("v_add_f32 v%d, %s, v%d" % (t + 26, hexf(16.0 * v), t + 28))
        e("v_mul_f32 v%d, %s, v%d" % (t + 26, hexf(1.0 / 2048), t + 26))
        for r in range(4):
            e("v_add_f32 v%d, %s, v%d" % (t + 4 * v + r, hexf(float(r)), t + 29))
            e("v_mul_f32 v%d, v%d, v%d" % (t + 4 * v + r, t + 4 * v + r, t + 26))
    for i in range(8):
        e("v_cos_f32 v%d, v%d" % (t + 8 + i, t + i))
        e("v_sin_f32 v%d, v%d" % (t + 16 + i, t + i))
    k.nop(1)
    for i in range(8):
        e("v_accvgpr_write_b32 a%d, v%d" % (aT2C + i, t + 8 + i))
        e("v_accvgpr_write_b32 a%d, v%d" % (aT2S + i, t + 16 + i))
    k.stamp(3)

    PA = 32
    ST = 20
    for i in range(4):
        e("v_mov_b32 v%d, 0" % (ST + i))

    def X(u, T):
        return XF + (u * 16 + T) * 4

    for kk in range(8):
        if kk + 2 < 8:
            xload(kk + 2)
        if kk >= 4:
            grp(kk)
        k.wait_vm(("X", kk))
        for u in range(2):
            for ks in range(2):
                for d in range(4):
                    x = X(u, 2 * kk + ks) + d
                    e("v_dot2_f32_bf16 v%d, v%d, v%d, v%d" % (ST + u, x, ONES, ST + u))
                    e("v_dot2_f32_bf16 v%d, v%d, v%d, v%d" % (ST + 2 + u, x, x, ST + 2 + u))
        for ks in range(2):
            T = 2 * kk + ks
            for u in range(2):
                p = vr(PA + ((T >> 2) * 2 + u) * 4, 4)
                mfma(p, vr(X(u, T), 4), vr(FB + 4 * (T & 3), 4), p if (T & 3) else "0")
    k.stamp(4)
    k.nop(3)
    for sw in ("v_permlane32_swap_b32", "v_permlane16_swap_b32"):
        for i in range(4):
            e("v_mov_b32 v%d, v%d" % (TMP + i, ST + i))
        k.nop(2)
        for i in range(4):
            e("%s v%d, v%d" % (sw, ST + i, TMP + i))
        k.nop(1)
        for i in range(4):
            e("v_add_f32 v%d, v%d, v%d" % (ST + i, ST + i, TMP + i))
    vRS, vNM, vD0 = 24, 26, 28
    for u in range(2):
        m, q2 = ST + u, ST + 2 + u
        e("v_mul_f32 v%d, %s, v%d" % (m, hexf(1.0 / 512), m))
        e("v_mul_f32 v%d, %s, v%d" % (q2, hexf(1.0 / 512), q2))
        e("v_fma_f32 v%d, -v%d, v%d, v%d" % (q2, m, m, q2))
        e("v_max_f32 v%d, 0, v%d" % (q2, q2))
        bf16_round(q2)
        e("v_add_f32 v%d, %s, v%d" % (q2, hexf(1e-5), q2))
        bf16_round(q2)
        e("v_sqrt_f32 v%d, v%d" % (q2, q2))
        e("v_sub_f32 v%d, 0, v%d" % (vNM + u, m))
        bf16_round(q2)
        e("v_rcp_f32 v%d, v%d" % (vRS + u, q2))
        bf16_round(vNM + u)
        e("v_add_f32 v%d, v%d, v%d" % (vD0 + u, m, vNM + u))
        e("v_mul_f32 v%d, %s, v%d" % (vD0 + u, hexf(512.0), vD0 + u))
        e("v_mul_f32 v%d, v%d, v%d" % (vD0 + u, vD0 + u, vRS + u))
    RT, D0T = 104, 96
    e("v_lshlrev_b32 v30, 4, v%d" % vQ)
    for u in range(2):
        for r in range(4):
            e("ds_bpermute_b32 v%d, v30, v%d offset:%d" % (RT + 4 * u + r, vRS + u, 4 * r))
            e("ds_bpermute_b32 v%d, v30, v%d offset:%d" % (D0T + 4 * u + r, vD0 + u, 4 * r))
    vX1 = 31
    e("v_lshrrev_b32 v31, 1, v%d" % vC)
    e("v_lshlrev_b32 v31, 13, v31")
    e("v_and_b32 v19, 1, v%d" % vC)
    e("v_lshl_add_u32 v31, v19, 6, v31")
    e("v_lshl_add_u32 v31, v%d, 4, v31" % vQ)
    e("s_waitcnt lgkmcnt(0)")
    e("s_add_u32 s%d, s%d, 0x%x" % (sTAG, sTAG, TAGC))
    e("v_mov_b32 v%d, s%d" % (vTAG, sTAG))

    def dft_finish(first, tag):
        for i in range(8):
            p0, p1, p2, p3 = PA + i, PA + 8 + i, PA + 16 + i, PA + 24 + i
            e("v_fmac_f32 v%d, v%d, v%d" % (p1, vSG, p3))
            e("v_fmac_f32 v%d, v%d, v%d" % (p0, vSG, p2))
        for i in range(8):
            e("v_fmac_f32 v%d, v%d, v%d" % (PA + i, vAL, PA + 8 + i))
        for i in range(8):
            e("v_fmac_f32_dpp v%d, v%d, v%d quad_perm:[1,0,3,2] row_mask:0xf bank_mask:0xf" % (PA + i, PA + 8 + i, vBE))
        for i in range(8):
            e("v_mul_f32 v%d, v%d, v%d" % (PA + i, PA + i, RT + i))
        if first:
            e("s_lshl_b32 s%d, s%d, 4" % (sT0, sJT))
            e("v_add_u32 v19, s%d, v%d" % (sT0, vC))
            e("v_cmp_eq_u32 vcc, 0, v19")
            k.nop(2)
            for i in range(8):
                e("v_cndmask_b32 v%d, v%d, v%d, vcc" % (PA + i, PA + i, D0T + i))
        for d in range(4):
            e("v_cvt_pk_bf16_f32 v%d, v%d, v%d" % (112 + d, PA + 2 * d, PA + 2 * d + 1))
        e("s_lshl_b32 s%d, s%d, 16" % (sT0, sJT))
        e("s_lshl_b32 s%d, s%d, 7" % (sT1, sRS))
        e("s_add_u32 s%d, s%d, s%d" % (sT0, sT0, sT1))
        e("s_add_u32 s%d, s%d, 0x%x" % (sT0, sT0, X1C_OFF))
        e("buffer_store_dwordx4 v[112:115], v%d, %s, s%d offen sc1" % (vX1, srd(SWS), sT0))
        k.vm.issue(tag)

    dft_finish(True, "x1st")
    wstore(sCOL, "x1st")
    e("s_cmp_lg_u32 s%d, 0" % sJT)
    e("s_cbranch_scc1 L_no256")
    save_q = list(k.vm.q)
    e("s_movk_i32 s%d, 256" % sCOL)
    e("s_mov_b64 exec, 0xff")
    k.nop(2)
    wgather(sCOL, "wg256")
    e("s_waitcnt vmcnt(0)")
    wstore(sCOL, "x1st256")
    e("s_waitcnt vmcnt(0)")
    e("s_mov_b64 exec, -1")
    k.vm.q = save_q
    k.lab("L_no256")
    sFX, sFH = 59, 60
    e("s_lshl_b32 s%d, s%d, 8" % (sFX, sCBK))
    e("s_lshl2_add_u32 s%d, s%d, s%d" % (sFX, sRS, sFX))
    if FX_OFF:
        e("s_add_u32 s%d, s%d, 0x%x" % (sFX, sFX, FX_OFF))
    e("s_lshl_b32 s%d, s%d, 6" % (sFH, sRS))
    e("s_lshl2_add_u32 s%d, s%d, s%d" % (sFH, sCBK, sFH))
    e("s_add_u32 s%d, s%d, 0x%x" % (sFH, sFH, FHA_OFF))
    TRB = 10
    e("v_lshrrev_b32 v19, 2, v%d" % vC)
    e("v_lshl_add_u32 v30, v%d, 3, v19" % vQ)
    e("v_lshlrev_b32 v30, 7, v30")
    e("v_and_b32 v%d, 1, v%d" % (TMP, vC))
    e("v_lshl_add_u32 v30, v%d, 3, v30" % TMP)
    e("v_bfe_u32 v19, v%d, 3, 1" % vC)
    e("v_and_b32 v%d, 1, v%d" % (TMP, vQ))
    e("v_lshl_or_b32 v19, v%d, 1, v19" % TMP)
    e("v_xor_b32 v19, s%d, v19" % sW)
    e("v_lshlrev_b32 v19, 1, v19")
    e("v_bfe_u32 v%d, v%d, 1, 1" % (TMP, vC))
    e("v_or_b32 v19, v19, v%d" % TMP)
    for l in range(4):
        e("v_xor_b32 v%d, %d, v19" % (TMP, 2 * l))
        e("v_lshl_add_u32 v%d, v%d, 4, v30" % (TRB + l, TMP))
    vL16 = 2
    e("v_lshlrev_b32 v%d, 4, v%d" % (vL16, vLANE))
    k.stamp(5)

    ACC = 32
    CS = 64
    AF = 84
    NBAR = 4

    def gemm_pass(reg, hooks, htag):
        base = LB if reg else LA
        NB = 8

        def rd(T, l):
            for hh in range(2):
                off = base % 65536 + T * 4096 + hh * 512
                e("ds_read_b64_tr_b16 %s, v%d offset:%d" % (vr(AF + ((T & 1) * 4 + l) * 4 + 2 * hh, 2), TRB + l, off))
                k.lg.issue(("A", reg, T, l))
        per = 16 // NBAR

        def land(T):
            k.wait_vm([("W1", reg, kk) for kk in range((T + per) // 2)])
            e("s_barrier")
        land(0)
        for l in range(4):
            rd(0, l)
        for T in range(16):
            if T + 1 < 16 and (T + 1) % per == 0:
                land(T + 1)
            for l in range(4):
                if T + 1 < 16:
                    rd(T + 1, l)
                k.wait_lg(("A", reg, T, l))
                a = vr(AF + ((T & 1) * 4 + l) * 4, 4)
                for u in range(2):
                    c = vr(ACC + (l * 2 + u) * 4, 4)
                    mfma(c, a, vr(X(u, T), 4), c if T else "0")
                if l == 0:
                    mfma(vr(CS, 4), a, vr(ONES, 4), vr(CS, 4) if T else "0")
            if T in hooks:
                hooks[T]()
        e("s_lshl_b32 s%d, s%d, 10" % (sT0, sW))
        e("v_add_u32 v30, s%d, v%d" % (sT0, vL16))
        e("v_add_u32 v30, 0x%x, v30" % L_CS)
        k.nop(4)
        e("ds_write_b128 v30, %s" % vr(CS, 4))
        e("s_waitcnt lgkmcnt(0)")
        k.lg.clear()
        e("s_barrier")
        C1 = 68
        for l in range(1, 4):
            e("v_xor_b32 v19, %d, v30" % (l * 1024))
            e("ds_read_b128 %s, v19" % vr(C1 + 4 * (l - 1), 4))
            k.lg.issue(("C1", reg, l))
        e("s_mul_i32 s%d, s%d, %d" % (sT0, sRS, 2 * 56 * 1024))
        e("s_lshl_b32 s%d, s%d, 5" % (sT1, sF0))
        e("s_add_u32 s%d, s%d, s%d" % (sT0, sT0, sT1))
        e("s_add_u32 s%d, s%d, 0x%x" % (sT0, sT0, H_OFF))
        if reg:
            e("s_cmp_eq_u32 s%d, 1" % sISJ)
            e("s_cselect_b32 s%d, 0, 2048" % sT1)
            e("s_add_u32 s%d, s%d, s%d" % (sT0, sT0, sT1))
        e("s_lshr_b32 s%d, s%d, 1" % (sT1, sW))
        e("s_lshl_b32 s%d, s%d, 10" % (sT1, sT1))
        e("v_add_u32 v19, s%d, v%d" % (sT1, vL16))
        e("v_xor_b32 v30, 1024, v19")
        e("s_add_u32 s%d, s%d, %d" % (sT1, sT0, 56 * 1024))
        HO = AF
        for l in range(4):
            if l:
                k.wait_lg(("C1", reg, l))
            c1 = CS if l == 0 else C1 + 4 * (l - 1)
            for u in range(2):
                a = ACC + (l * 2 + u) * 4
                for r in range(4):
                    e("v_fmac_f32 v%d, v%d, v%d" % (a + r, vNM + u, c1 + r))
                for r in range(4):
                    e("v_mul_f32 v%d, v%d, v%d" % (a + r, a + r, vRS + u))
                o = HO + ((l >> 1) * 2 + u) * 4 + (l & 1) * 2
                e("v_cvt_pk_bf16_f32 v%d, v%d, v%d" % (o, a, a + 1))
                e("v_cvt_pk_bf16_f32 v%d, v%d, v%d" % (o + 1, a + 2, a + 3))
        for i in range(16):
            e("v_pk_max_i16 v%d, v%d, 0" % (HO + i, HO + i))
        e("s_bitcmp0_b32 s%d, 0" % sW)
        e("s_cbranch_scc1 L_nosw%d" % reg)
        for i in range(4):
            e("v_swap_b32 v%d, v%d" % (HO + 4 * i, HO + 4 * i + 2))
            e("v_swap_b32 v%d, v%d" % (HO + 4 * i + 1, HO + 4 * i + 3))
        k.lab("L_nosw%d" % reg)
        for pr in range(2):
            for u in range(2):
                e("buffer_store_dwordx4 %s, v%d, %s, s%d offen sc1" % (vr(HO + (pr * 2 + u) * 4, 4), 19 if pr == 0 else 30, srd(SWS), sT0 + u))
                k.vm.issue(htag)

    e("s_cmp_eq_u32 s%d, 1" % sISJ)
    e("s_cbranch_scc1 L_jpath")
    q_vm, q_lg = list(k.vm.q), list(k.lg.q)

    def pubFX():
        k.wait_vm("x1st")
        publish("s%d" % sFX)
    w1dma(6, 0, None, ("W1", 0, 6))
    w1dma(7, 0, None, ("W1", 0, 7))
    hooks = {}
    for i in range(6):
        hooks[2 * i + 1] = (lambda i=i: w1dma(2 + i, 1, None, ("W1", 1, 2 + i)))
    hooks[6] = pubFX
    gemm_pass(0, hooks, "ha")
    e("s_branch L_join")
    qF_vm, qF_lg = list(k.vm.q), list(k.lg.q)

    k.lab("L_jpath")
    k.vm.q, k.lg.q = list(q_vm), list(q_lg)
    e("s_mov_b32 s%d, 0" % sCNT)
    for i in range(8):
        e("v_accvgpr_write_b32 a%d, v%d" % (i, RT + i))
    k.lab("L_jloop")
    e("s_add_u32 s%d, s%d, 1" % (sJT, sJT))
    e("s_lshl_b32 s%d, s%d, 3" % (sCOL, sJT))
    wgather(sCOL, "wgj")
    fgen()
    for i in range(8):
        e("v_accvgpr_read_b32 v%d, a%d" % (RT + i, i))
    for T in range(16):
        for u in range(2):
            p = vr(PA + ((T >> 2) * 2 + u) * 4, 4)
            mfma(p, vr(X(u, T), 4), vr(FB + 4 * (T & 3), 4), p if (T & 3) else "0")
    k.wait_vm("wgj")
    wstore(sCOL, "jst")
    k.nop(4)
    dft_finish(False, "jst")
    e("s_add_u32 s%d, s%d, 1" % (sCNT, sCNT))
    e("s_cmp_lt_u32 s%d, 4" % sCNT)
    e("s_cbranch_scc1 L_jloop")
    e("s_waitcnt vmcnt(0)")
    k.vm.clear()
    publish("s%d" % sFX)
    e("s_waitcnt vmcnt(0)")

    k.lab("L_join")
    k.vm.q, k.lg.q = qF_vm, qF_lg
    k.stamp(6)

    for l in range(4):
        e("v_add_u32 v%d, 0x10000, v%d" % (TRB + l, TRB + l))
    TV = [50, 51, 52, 53, 54, 55, 56, 57, 58, SWR, SWR + 1, SWI, SWI + 1, sWOFF]
    e("s_lshr_b32 s%d, s%d, 1" % (sT0, sW))
    e("s_mul_i32 s%d, s%d, 28" % (sT0, sT0))
    e("s_and_b32 s%d, s%d, 1" % (sT1, sW))
    e("s_add_u32 s%d, s%d, s%d" % (sT0, sT0, sT1))
    e("s_cmp_ge_u32 s%d, 6" % sR)
    e("s_cselect_b32 s%d, 6, 0" % sT1)
    e("s_sub_u32 s%d, s%d, s%d" % (sT1, sR, sT1))
    for i in range(6):
        e("s_lshl2_add_u32 s%d, s%d, s%d" % (TV[i], sT1, sT0))
        if i < 5:
            e("s_add_u32 s%d, s%d, 1" % (sT1, sT1))
            e("s_cmp_eq_u32 s%d, 6" % sT1)
            e("s_cselect_b32 s%d, 0, s%d" % (sT1, sT1))
    for i in range(8):
        e("s_add_u32 s%d, s%d, %d" % (sT1, sR, i))
        e("s_and_b32 s%d, s%d, 7" % (sT1, sT1))
        e("s_lshl1_add_u32 s%d, s%d, 1" % (sT2, sT1))
        e("s_add_u32 s%d, s%d, 6" % (sT3, sT1))
        e("s_cmp_lt_u32 s%d, 6" % sT1)
        e("s_cselect_b32 s%d, s%d, s%d" % (sT2, sT2, sT3))
        e("s_lshl1_add_u32 s%d, s%d, s%d" % (TV[6 + i], sT2, sT0))
    vD2 = 8
    e("v_lshrrev_b32 v8, 3, v%d" % vLANE)
    e("v_and_b32 v9, 7, v%d" % vLANE)
    e("v_lshlrev_b32 v19, 1, v%d" % vQ)
    e("v_xor_b32 v9, v9, v19")
    e("v_lshlrev_b32 v9, 4, v9")
    e("v_lshl_add_u32 v14, v8, 12, v9")
    e("v_lshl_add_u32 v8, v8, 10, v9")
    vDZ = 14
    TR2 = [6, 7, 9, 15]
    e("v_lshrrev_b32 v19, 2, v%d" % vC)
    e("v_lshl_add_u32 v19, v%d, 2, v19" % vQ)
    e("v_bfe_u32 v30, v19, 1, 2")
    e("v_lshlrev_b32 v19, 7, v19")
    e("v_and_b32 v31, 1, v%d" % vC)
    e("v_lshl_add_u32 v19, v31, 3, v19")
    e("v_lshlrev_b32 v30, 1, v30")
    e("v_bfe_u32 v31, v%d, 1, 1" % vC)
    e("v_or_b32 v30, v30, v31")
    e("v_lshl_add_u32 v16, v30, 4, v19")
    e("s_lshl_b32 s%d, s%d, 5" % (sT0, sW))
    e("s_lshl_b32 s%d, s%d, 14" % (sM0W, sW))
    e("v_xor_b32 v30, s%d, v16" % sT0)
    e("v_add_u32 v30, s%d, v30" % sM0W)
    for l in range(4):
        e("v_xor_b32 v%d, %d, v30" % (TR2[l], 32 * l))
    vZB = 16

    def w2reg(i):
        return ("a", 16 * i) if i < 11 else ("v", 128 + 16 * (i - 11))

    st = {"dma": 0, "rd": 0}

    def w2_dma():
        i = st["dma"]
        if i >= 14:
            return
        st["dma"] += 1
        if i >= 4:
            k.wait_lg(("W2R", i - 4))
        e("s_lshl_b32 s%d, s%d, 15" % (sT0, TV[i]))
        e("s_lshl_b32 s%d, s%d, 7" % (sT1, sDB))
        e("s_add_u32 s%d, s%d, s%d" % (sT0, sT0, sT1))
        for ee in range(4):
            e("s_add_u32 m0, s%d, %d" % (sM0W, (i % 4) * 4096 + ee * 1024))
            if ee:
                e("s_add_u32 s%d, s%d, 8192" % (sT0, sT0))
            else:
                k.nop(1)
            e("buffer_load_dwordx4 v%d, %s, s%d offen lds" % (vD2, srd(SW2), sT0))
            k.vm.issue(("W2", i))

    def w2_read():
        i = st["rd"]
        if i >= 14:
            return
        st["rd"] += 1
        k.wait_vm(("W2", i))
        kind, base = w2reg(i)
        for l in range(4):
            for hh in range(2):
                r = base + 4 * l + 2 * hh
                e("ds_read_b64_tr_b16 %s[%d:%d], v%d offset:%d" % (kind, r, r + 1, TR2[l], (i % 4) * 4096 + hh * 2048))
                k.lg.issue(("W2R", i))

    def pubHA():
        k.wait_vm("ha")
        publish("s%d" % sFH)

    def adv():
        w2_read()

    def adv2():
        w2_dma()
    for i in range(4):
        w2_dma()
    hooks = {}
    hooks[3] = pubHA
    for T in (5, 7, 9, 11, 13, 15):
        hooks[T] = adv
    for T in (6, 8, 10, 12, 14):
        hooks[T] = adv2
    gemm_pass(1, hooks, "hb")
    k.stamp(7)
    w2_dma()
    w2_read()
    w2_dma()

    sCC, sPL, sZR, sZI, sSC = sJT, sCOL, sF0, sXB, sISJ
    e("s_xor_b32 s%d, s2, 0x30" % sCC)
    e("s_bfe_u32 s%d, s%d, 0x40003" % (sT0, sCC))
    e("s_min_u32 s%d, s%d, 6" % (sT1, sT0))
    e("s_cmp_ge_u32 s%d, 11" % sT0)
    e("s_cselect_b32 s%d, 7, s%d" % (sT1, sT1))
    e("s_lshr_b32 s%d, s%d, 7" % (sT0, sCC))
    e("s_lshl3_add_u32 s%d, s%d, s%d" % (sT1, sT0, sT1))
    e("s_lshl_b32 s%d, s%d, 8" % (sT4, sT1))
    if FX_OFF:
        e("s_add_u32 s%d, s%d, 0x%x" % (sT4, sT4, FX_OFF))
    e("v_lshlrev_b32 v19, 2, v%d" % vLANE)
    poll(19, "s%d" % sT4, 30)
    e("s_add_u32 s%d, s%d, 0x%x" % (sT0, sFH, FHB_OFF - FHA_OFF))
    publish("s%d" % sT0)
    k.stamp(8)
    e("s_and_b32 s%d, s%d, 1" % (sT0, sW))
    e("s_lshl_b32 s%d, s%d, 3" % (sT0, sT0))
    e("v_add_u32 v19, s%d, v%d" % (sT0, vQ))
    e("v_xor_b32 v30, v19, v%d" % vC)
    e("v_lshlrev_b32 v30, 4, v30")
    e("v_lshl_add_u32 v30, v%d, 8, v30" % vQ)
    e("v_xor_b32 v31, 64, v30")
    e("s_lshl_b32 s%d, s%d, 13" % (sT0, sCC))
    e("s_lshl_b32 s%d, s%d, 11" % (sT1, sW))
    e("s_add_u32 s%d, s%d, s%d" % (sT0, sT0, sT1))
    e("s_add_u32 s%d, s%d, 0x%x" % (sT2, sT0, X1C_OFF))
    e("s_add_u32 m0, s%d, 0x%x" % (sT1, L_C1))
    k.nop(1)
    e("buffer_load_dwordx4 v30, %s, s%d offen sc1 lds" % (srd(SWS), sT2))
    k.vm.issue("cin")
    e("buffer_load_dwordx4 v31, %s, s%d offen offset:1024 sc1 lds" % (srd(SWS), sT2))
    k.vm.issue("cin")
    CW = 64
    e("s_add_u32 s%d, s%d, 0x%x" % (sT2, sT0, WT_OFF))
    for v in range(2):
        e("buffer_load_dwordx4 %s, v%d, %s, s%d offen offset:%d sc1" % (vr(CW + 4 * v, 4), vL16, srd(SWS), sT2, v * 1024))
        k.vm.issue("cw")
    e("v_xor_b32 v20, v%d, v%d" % (vQ, vC))
    e("v_lshlrev_b32 v20, 4, v20")
    e("v_lshl_add_u32 v20, v%d, 8, v20" % vC)
    e("v_add_u32 v20, 0x%x, v20" % L_C1)
    e("v_xor_b32 v21, 64, v20")
    e("v_xor_b32 v22, 128, v20")
    e("v_xor_b32 v23, 192, v20")
    e("s_lshr_b32 s%d, s%d, 1" % (sT0, sW))
    e("s_lshl_b32 s%d, s%d, 7" % (sT0, sT0))
    e("s_and_b32 s%d, s%d, 1" % (sT1, sW))
    e("s_lshl3_add_u32 s%d, s%d, s%d" % (sT0, sT1, sT0))
    e("v_xor_b32 v24, s%d, v20" % sT0)
    e("v_xor_b32 v25, 64, v24")
    e("v_lshlrev_b32 v26, 5, v%d" % vC)
    e("v_lshl_add_u32 v26, v%d, 3, v26" % vQ)
    e("s_lshl_b32 s%d, s%d, 10" % (sT0, sW))
    e("v_add_u32 v26, s%d, v26" % sT0)
    e("s_lshl_b32 s%d, s%d, 13" % (sZR, sCC))
    e("s_add_u32 s%d, s%d, 0x%x" % (sZR, sZR, ZT_OFF))
    e("s_add_u32 s%d, s%d, 4096" % (sZI, sZR))
    e("s_mov_b32 s%d, %s" % (sSC, hexf(2.0 ** -19)))
    e("s_cmp_eq_u32 s%d, 0" % sCC)
    e("s_cselect_b32 s%d, 0x%x, s%d" % (sZI, OOB, sZI))
    e("s_cselect_b32 s%d, %s, s%d" % (sSC, hexf(2.0 ** -20), sSC))
    e("s_mov_b32 s%d, 0" % sPL)
    XI = 32
    TM = 72
    TW = 88
    DR, DI = 104, 112
    PR, PI = 120, 124

    def xin(pl, v, tt):
        return XI + 4 * ((pl * 2 + v) * 2 + tt)
    w2_read()
    k.wait_vm("cin")
    e("s_barrier")
    k.lab("L_ccol")
    for pl in range(2):
        for v in range(2):
            for tt in range(2):
                e("ds_read_b128 %s, v%d offset:%d" % (vr(xin(pl, v, tt), 4), 20 + 2 * tt + pl, v * 4096))
                k.lg.issue("cx")
    for i in range(8):
        e("v_accvgpr_read_b32 v%d, a%d" % (TW + i, aT1C + i))
        e("v_accvgpr_read_b32 v%d, a%d" % (TW + 8 + i, aT1S + i))
    k.wait_lg("cx")
    e("s_cmp_lg_u32 s%d, 0" % sCC)
    e("s_cbranch_scc1 L_cplx")
    e("s_cmp_eq_u32 s%d, 0" % sPL)
    e("s_cbranch_scc1 L_c0")
    for i in range(16):
        e("v_mov_b32 v%d, v%d" % (XI + i, XI + 16 + i))
    k.lab("L_c0")
    for i in range(16):
        e("v_mov_b32 v%d, 0" % (XI + 16 + i))
    k.nop(2)
    k.lab("L_cplx")
    for v in range(2):
        dr, di = vr(DR + 4 * v, 4), vr(DI + 4 * v, 4)
        for tt in range(2):
            mfma(dr, vr(xin(0, v, tt), 4), ar(aC64 + 4 * tt, 4), dr if tt else "0")
            mfma(di, vr(xin(1, v, tt), 4), ar(aC64 + 4 * tt, 4), di if tt else "0")
            mfma(dr, vr(xin(1, v, tt), 4), ar(aS64 + 4 * tt, 4))
            mfma(di, vr(xin(0, v, tt), 4), ar(aN64 + 4 * tt, 4))
    k.nop(8)

    def cmul(conj):
        cr, ci = TW, TW + 8
        for i in range(8):
            e("v_mul_f32 v%d, v%d, v%d" % (TM + i, DR + i, cr + i))
            e("v_mul_f32 v%d, v%d, v%d" % (TM + 8 + i, DI + i, cr + i))
        for i in range(8):
            if conj:
                e("v_fma_f32 v%d, v%d, v%d, v%d" % (TM + i, DI + i, ci + i, TM + i))
                e("v_fma_f32 v%d, -v%d, v%d, v%d" % (TM + 8 + i, DR + i, ci + i, TM + 8 + i))
            else:
                e("v_fma_f32 v%d, -v%d, v%d, v%d" % (TM + i, DI + i, ci + i, TM + i))
                e("v_fma_f32 v%d, v%d, v%d, v%d" % (TM + 8 + i, DR + i, ci + i, TM + 8 + i))
        for d in range(4):
            e("v_cvt_pk_bf16_f32 v%d, v%d, v%d" % (PR + d, TM + 2 * d, TM + 2 * d + 1))
            e("v_cvt_pk_bf16_f32 v%d, v%d, v%d" % (PI + d, TM + 8 + 2 * d, TM + 9 + 2 * d))
        k.nop(2)
    cmul(True)
    pr, pi = vr(PR, 4), vr(PI, 4)
    for v in range(2):
        dr, di = vr(DR + 4 * v, 4), vr(DI + 4 * v, 4)
        mfma(dr, ar(aC32 + 4 * v, 4), pr, "0")
        mfma(di, ar(aC32 + 4 * v, 4), pi, "0")
        mfma(dr, ar(aS32 + 4 * v, 4), pi)
        mfma(di, ar(aN32 + 4 * v, 4), pr)
    e("s_waitcnt vmcnt(0)")
    k.vm.clear()
    for i in range(8):
        e("v_lshlrev_b32 v%d, 16, v%d" % (TW + i, CW + i))
        e("v_and_b32 v%d, 0xffff0000, v%d" % (TW + 8 + i, CW + i))
    cmul(False)
    for v in range(2):
        dr, di = vr(DR + 4 * v, 4), vr(DI + 4 * v, 4)
        mfma(dr, pr, ar(aC32 + 4 * v, 4), "0")
        mfma(di, pi, ar(aC32 + 4 * v, 4), "0")
        mfma(dr, pi, ar(aN32 + 4 * v, 4))
        mfma(di, pr, ar(aS32 + 4 * v, 4))
    for i in range(8):
        e("v_accvgpr_read_b32 v%d, a%d" % (TW + i, aT2C + i))
        e("v_accvgpr_read_b32 v%d, a%d" % (TW + 8 + i, aT2S + i))
    cmul(False)
    for v in range(2):
        e("ds_write_b64 v24, %s offset:%d" % (vr(PR + 2 * v, 2), 8192 + v * 4096))
        e("ds_write_b64 v25, %s offset:%d" % (vr(PI + 2 * v, 2), 8192 + v * 4096))
    e("s_waitcnt lgkmcnt(0)")
    k.lg.clear()
    e("s_barrier")
    for pl in range(2):
        for v in range(2):
            for tt in range(2):
                e("ds_read_b128 %s, v%d offset:%d" % (vr(xin(pl, v, tt), 4), 20 + 2 * tt + pl, 8192 + v * 4096))
    e("s_waitcnt lgkmcnt(0)")
    for v in range(2):
        dr, di = vr(DR + 4 * v, 4), vr(DI + 4 * v, 4)
        for tt in range(2):
            mfma(dr, ar(aC64 + 4 * tt, 4), vr(xin(0, v, tt), 4), dr if tt else "0")
            mfma(di, ar(aC64 + 4 * tt, 4), vr(xin(1, v, tt), 4), di if tt else "0")
            mfma(dr, ar(aN64 + 4 * tt, 4), vr(xin(1, v, tt), 4))
            mfma(di, ar(aS64 + 4 * tt, 4), vr(xin(0, v, tt), 4))
    k.nop(8)
    for i in range(16):
        e("v_mul_f32 v%d, s%d, v%d" % (DR + i, sSC, DR + i))
    for d in range(4):
        e("v_cvt_pk_bf16_f32 v%d, v%d, v%d" % (PR + d, DR + 2 * d, DR + 2 * d + 1))
        e("v_cvt_pk_bf16_f32 v%d, v%d, v%d" % (PI + d, DI + 2 * d, DI + 2 * d + 1))
    for v in range(2):
        e("buffer_store_dwordx2 %s, v26, %s, s%d offen offset:%d sc1" % (vr(PR + 2 * v, 2), srd(SWS), sZR, v * 512))
        k.vm.issue("zst")
        e("buffer_store_dwordx2 %s, v26, %s, s%d offen offset:%d sc1" % (vr(PI + 2 * v, 2), srd(SWS), sZI, v * 512))
        k.vm.issue("zst")
    e("s_or_b32 s%d, s%d, s%d" % (sT0, sCC, sPL))
    e("s_cbranch_scc1 L_cdone")
    e("s_mov_b32 s%d, 1" % sPL)
    e("s_add_u32 s%d, s%d, 4096" % (sZR, sZR))
    e("s_lshl_b32 s%d, s%d, 11" % (sT2, sW))
    e("s_add_u32 s%d, s%d, 0x%x" % (sT2, sT2, WT_OFF + 256 * 8192))
    for v in range(2):
        e("buffer_load_dwordx4 %s, v%d, %s, s%d offen offset:%d sc1" % (vr(CW + 4 * v, 4), vL16, srd(SWS), sT2, v * 1024))
    e("s_barrier")
    e("s_branch L_ccol")
    k.lab("L_cdone")
    k.stamp(9)

    while st["dma"] < 14 or st["rd"] < st["dma"] - 2:
        if st["rd"] < st["dma"]:
            w2_read()
        w2_dma()
    e("v_lshlrev_b32 v19, 7, v%d" % vQ)
    e("v_lshl_add_u32 v19, v%d, 2, v19" % vC)
    e("s_lshl_b32 s%d, s%d, 9" % (sFH, sA))
    e("s_lshr_b32 s%d, s%d, 1" % (sT0, sWP))
    e("s_lshl_b32 s%d, s%d, 6" % (sT0, sT0))
    e("s_add_u32 s%d, s%d, s%d" % (sFH, sFH, sT0))
    e("s_add_u32 s%d, s%d, 0x%x" % (sFH, sFH, FHA_OFF))
    maskF = 0
    for ln in range(64):
        if (ln & 7) < 6:
            maskF |= 1 << ln
    poll(19, "s%d" % sFH, 30, mask=maskF)
    e("s_barrier")
    e("s_cmp_lg_u32 s%d, 0" % sW)
    e("s_cbranch_scc1 L_nozp")
    e("s_lshl_b32 s%d, s2, 2" % sT0)
    e("s_add_u32 s%d, s%d, 0x%x" % (sT0, sT0, FZ_OFF))
    publish("s%d" % sT0)
    k.vm.q.pop()
    k.lab("L_nozp")
    k.stamp(10)
    HV = [20, 21, 22, 23]
    for pt in range(4):
        e("v_add_u32 v%d, 0x%x, v%d" % (HV[pt], pt * 4 * 56 * 1024, vL16))
    sHB = sFX
    e("s_lshl4_add_u32 s%d, s%d, s%d" % (sHB, sA, sWP))
    e("s_mul_i32 s%d, s%d, %d" % (sHB, sHB, 56 * 1024))
    e("s_add_u32 s%d, s%d, 0x%x" % (sHB, sHB, H_OFF))
    HR = 176
    NHS = 5

    def hload(i):
        e("s_lshl_b32 s%d, s%d, 10" % (sT0, TV[i]))
        e("s_add_u32 s%d, s%d, s%d" % (sT0, sT0, sHB))
        for pt in range(4):
            e("buffer_load_dwordx4 %s, v%d, %s, s%d offen sc1" % (vr(HR + (i % NHS) * 16 + 4 * pt, 4), HV[pt], srd(SWS), sT0))
            k.vm.issue(("H", i))
    for i in range(4):
        hload(i)
    while st["rd"] < 14:
        w2_read()

    GB = 32

    def ggen():
        t0 = 96
        yield "s_lshl_b32 s%d, s%d, 6" % (sT3, sDB)
        yield "s_lshl4_add_u32 s%d, s%d, s%d" % (sT3, sW, sT3)
        yield "v_add_u32 v%d, s%d, v%d" % (t0, sT3, vC)
        yield "v_cvt_f32_u32 v%d, v%d" % (t0 + 1, t0)
        yield "v_lshlrev_b32 v%d, 1, v%d" % (t0 + 2, vQ)
        yield "v_mul_f32 v%d, %s, v%d" % (t0 + 1, hexf(1.0 / 512), t0 + 1)
        yield "v_cvt_f32_u32 v%d, v%d" % (t0 + 2, t0 + 2)
        yield "v_mul_f32 v%d, %s, v%d" % (t0 + 3, hexf(16.0), t0 + 1)
        for dw in range(4):
            yield "v_add_f32 v%d, %s, v%d" % (t0 + 4 + dw, hexf(float(8 * (dw >> 1) + (dw & 1))), t0 + 2)
        yield "v_fract_f32 v%d, v%d" % (t0 + 3, t0 + 3)
        for dw in range(4):
            yield "v_mul_f32 v%d, v%d, v%d" % (t0 + 4 + dw, t0 + 4 + dw, t0 + 1)
        yield "v_and_b32 v%d, 1, v%d" % (t0 + 16, vC)
        yield "v_cvt_f32_u32 v%d, v%d" % (t0 + 16, t0 + 16)
        yield "v_cmp_eq_u32 vcc, 0, v%d" % vQ
        yield "v_fma_f32 v%d, v%d, -2.0, 1.0" % (t0 + 16, t0 + 16)
        for T in range(16):
            for dw in range(4):
                yield "v_cos_f32 v%d, v%d" % (t0 + 8 + 2 * dw, t0 + 4 + dw)
                yield "v_sin_f32_e64 v%d, -v%d" % (t0 + 9 + 2 * dw, t0 + 4 + dw)
            for dw in range(4):
                yield "v_add_f32 v%d, v%d, v%d" % (t0 + 4 + dw, t0 + 4 + dw, t0 + 3)
            if T == 0:
                yield "v_cndmask_b32 v%d, v%d, v%d, vcc" % (t0 + 9, t0 + 9, t0 + 16)
            for dw in range(4):
                yield "v_cvt_pk_bf16_f32 v%d, v%d, v%d" % (GB + 4 * T + dw, t0 + 8 + 2 * dw, t0 + 9 + 2 * dw)
    gs = ggen()
    for _ in range(21 + 8 + 4 + 1):
        e(next(gs))

    AY = 176
    for i in range(14):
        if i == 2:
            pass
        if i + 4 < 14:
            if i + 4 == 6:
                e("s_add_u32 s%d, s%d, 0x%x" % (sT4, sFH, FHB_OFF - FHA_OFF))
                poll(19, "s%d" % sT4, 30)
            hload(i + 4)
        if i == 10:
            e("s_mov_b32 s%d, 0x%x" % (sT4, FZ_OFF))
            poll(vL16, "s%d" % sT4, 24, width=4)
            e("s_lshl_b32 s%d, s%d, 19" % (sT0, sW))
            e("s_lshl_b32 s%d, s%d, 10" % (sT1, sWP))
            e("s_add_u32 s%d, s%d, s%d" % (sT0, sT0, sT1))
            e("s_lshl_b32 s%d, s%d, 7" % (sT1, sA))
            e("s_add_u32 s%d, s%d, s%d" % (sT0, sT0, sT1))
            e("s_add_u32 s%d, s%d, 0x%x" % (sT0, sT0, ZT_OFF))
            for ee in range(16):
                e("s_add_u32 m0, s%d, %d" % (sM0W, LB + ee * 1024))
                if ee:
                    e("s_add_u32 s%d, s%d, 32768" % (sT0, sT0))
                else:
                    k.nop(1)
                e("buffer_load_dwordx4 v%d, %s, s%d offen sc1 lds" % (vDZ, srd(SWS), sT0))
                k.vm.issue("Z")
        k.wait_vm(("H", i))
        k.wait_lg(("W2R", i))
        kind, base = w2reg(i)
        for l in range(4):
            for pt in range(4):
                c = ar(AY + (l * 4 + pt) * 4, 4)
                mfma(c, "%s[%d:%d]" % (kind, base + 4 * l, base + 4 * l + 3), vr(HR + (i % NHS) * 16 + 4 * pt, 4), c if i else "0")
                for _ in range(1 if (pt & 1) else 2):
                    s_ = next(gs, None)
                    if s_:
                        e(s_)
                        if s_.startswith(("v_cos", "v_sin")):
                            break
    for s_ in gs:
        e(s_)
    k.stamp(11)

    e("v_lshlrev_b32 v30, 15, v%d" % vC)
    e("v_lshl_add_u32 v30, v%d, 3, v30" % vQ)
    sXO = sFH
    e("s_lshl_b32 s%d, s%d, 19" % (sXO, sWP))
    e("s_lshl_b32 s%d, s%d, 12" % (sT0, sA))
    e("s_add_u32 s%d, s%d, s%d" % (sXO, sXO, sT0))
    e("s_lshl_b32 s%d, s%d, 7" % (sT0, sDB))
    e("s_add_u32 s%d, s%d, s%d" % (sXO, sXO, sT0))
    e("s_lshl_b32 s%d, s%d, 5" % (sT0, sW))
    e("s_add_u32 s%d, s%d, s%d" % (sXO, sXO, sT0))
    XV = 20
    for pt in range(4):
        e("buffer_load_dwordx2 %s, v30, %s, s%d offen offset:%d" % (vr(XV + 2 * pt, 2), srd(SX), sXO, pt * 1024))
        k.vm.issue("xe")
    e("v_add_u32 v31, s%d, v%d" % (sM0W, vL16))
    for l in range(1, 4):
        for pt in range(4):
            e("ds_write_b128 v31, %s offset:%d" % (ar(AY + (l * 4 + pt) * 4, 4), ((l - 1) * 4 + pt) * 1024))
    e("v_add_u32 v19, 0x%x, v%d" % (LB, vZB))
    for pt in range(4):
        e("v_xor_b32 v%d, %d, v19" % (TR2[pt], 32 * pt))
    k.wait_vm("Z")
    e("s_waitcnt lgkmcnt(0)")
    k.lg.clear()
    e("s_barrier")
    AS = 96
    ZF = 176

    def zrd(T):
        for pt in range(4):
            for hh in range(2):
                r = ZF + ((T & 1) * 4 + pt) * 4 + 2 * hh
                e("ds_read_b64_tr_b16 %s, v%d offset:%d" % (vr(r, 2), TR2[pt], T * 4096 + hh * 2048))
                k.lg.issue(("ZR", T, pt))
    zrd(0)
    YP = 208
    for T in range(16):
        for pt in range(4):
            if T + 1 < 16 and pt == 1:
                zrd(T + 1)
            k.wait_lg(("ZR", T, pt))
            c = vr(AS + 4 * pt, 4)
            mfma(c, vr(GB + 4 * T, 4), vr(ZF + ((T & 1) * 4 + pt) * 4, 4), c if T else "0")
    for l in range(1, 4):
        e("v_xor_b32 v19, 0x%x, v31" % (l * 16384))
        for pt in range(4):
            e("ds_read_b128 %s, v19 offset:%d" % (vr(YP + ((l - 1) * 4 + pt) * 4, 4), ((l - 1) * 4 + pt) * 1024))
    Y = 32
    for i in range(16):
        e("v_accvgpr_read_b32 v%d, a%d" % (Y + i, AY + i))
    e("s_waitcnt lgkmcnt(0)")
    k.lg.clear()
    k.stamp(12)
    for i in range(16):
        e("v_add_f32 v%d, v%d, v%d" % (Y + i, Y + i, YP + i))
        e("v_add_f32 v%d, v%d, v%d" % (YP + 16 + i, YP + 16 + i, YP + 32 + i))
    for i in range(16):
        e("v_add_f32 v%d, v%d, v%d" % (Y + i, Y + i, YP + 16 + i))
    U = 48

    def rnd16(base):
        for i in range(8):
            e("v_cvt_pk_bf16_f32 v%d, v%d, v%d" % (U + i, base + 2 * i, base + 2 * i + 1))
        for i in range(8):
            e("v_lshlrev_b32 v%d, 16, v%d" % (base + 2 * i, U + i))
            e("v_and_b32 v%d, 0xffff0000, v%d" % (base + 2 * i + 1, U + i))
    rnd16(Y)
    U2 = 64
    for i in range(16):
        e("v_mul_f32 v%d, %s, v%d" % (U2 + i, hexf(-1.4426950408889634), Y + i))
    for i in range(16):
        e("v_exp_f32 v%d, v%d" % (U2 + i, U2 + i))
    rnd16(AS)
    for i in range(16):
        e("v_add_f32 v%d, 1.0, v%d" % (U2 + i, U2 + i))
    for i in range(16):
        e("v_rcp_f32 v%d, v%d" % (U2 + i, U2 + i))
    k.nop(1)
    for i in range(16):
        e("v_mul_f32 v%d, v%d, v%d" % (Y + i, Y + i, U2 + i))
    rnd16(Y)
    for i in range(16):
        e("v_mul_f32 v%d, v%d, v%d" % (Y + i, Y + i, AS + i))
    rnd16(Y)
    k.wait_vm("xe")
    for i in range(8):
        e("v_lshlrev_b32 v%d, 16, v%d" % (U2 + 2 * i, XV + i))
        e("v_and_b32 v%d, 0xffff0000, v%d" % (U2 + 2 * i + 1, XV + i))
    for i in range(16):
        e("v_add_f32 v%d, v%d, v%d" % (Y + i, Y + i, U2 + i))
    for i in range(8):
        e("v_cvt_pk_bf16_f32 v%d, v%d, v%d" % (U + i, Y + 2 * i, Y + 2 * i + 1))
    for pt in range(4):
        e("buffer_store_dwordx2 %s, v30, %s, s%d offen offset:%d" % (vr(U + 2 * pt, 2), srd(SOUT), sXO, pt * 1024))
    e("s_or_b32 s%d, s2, s%d" % (sT0, sW))
    e("s_cbranch_scc1 L_noep")
    e("s_mov_b32 s%d, 0x%x" % (sT0, EPOCH_OFF))
    publish("s%d" % sT0)
    k.lab("L_noep")
    k.stamp(13)
    if DIAG:
        e("v_mov_b32 v2, s%d" % sW)
    if os.environ.get("DBG"):
        e("s_load_dwordx2 s[%d:%d], s[0:1], 56" % (SX, SX + 1))
        e("s_waitcnt vmcnt(0) lgkmcnt(0)")
        e("s_memtime s[92:93]")
        e("s_memrealtime s[94:95]")
        e("s_mov_b32 s%d, 256" % (SX + 2))
        e("s_waitcnt lgkmcnt(0)")
        e("s_mov_b64 exec, 1")
        e("v_mov_b32 v8, s94")
        e("s_not_b32 s96, s66")
        e("v_mov_b32 v9, s96")
        e("s_sub_u32 s96, s92, s64")
        e("v_mov_b32 v10, s96")
        e("s_sub_u32 s96, s94, s66")
        e("v_mov_b32 v11, s96")
        e("buffer_atomic_umax v8, off, %s, 0" % srd(SX))
        e("buffer_atomic_umax v9, off, %s, 0 offset:4" % srd(SX))
        e("buffer_atomic_umax v10, off, %s, 0 offset:8" % srd(SX))
        e("buffer_atomic_umax v11, off, %s, 0 offset:12" % srd(SX))
        for i in range(2, 14):
            e("s_sub_u32 s96, s%d, s64" % (64 + 2 * i))
            e("v_mov_b32 v%d, s96" % (10 + i))
            e("buffer_atomic_umax v%d, off, %s, 0 offset:%d" % (10 + i, srd(SX), 8 + 4 * i))
    else:
        k.stamp_flush(SWS, 0, 2, 8)
    k.lab("L_done")
    e("s_endpgm")
    return k


HEADER = open(os.path.join(os.path.dirname(os.path.abspath(__file__)), "header.txt")).read()


def main(out):
    k = gen()
    s = HEADER
    s += "; @launch grid=(256,1,1) block=(256,1,1) lds=163840\n"
    s += '.amdgcn_target "amdgcn-amd-amdhsa--gfx950"\n.text\n'
    s += k.text()
    s += '.section .rodata,"a"\n'
    s += descriptor(k.name, 256, 102 if DIAG else 64, agprs=256)
    open(out, "w").write(s)


if __name__ == "__main__":
    main(sys.argv[1] if len(sys.argv) > 1 else "v2.s")
```

```python
import sys, os
sys.path.insert(0, os.path.dirname(os.path.abspath(__file__)))
from asmlib import *

NAME = "recurrent_scan__spectral_gfnet__dense_activation_relu__prompt_kernel"

X1C_OFF = 0x0200000
WT_OFF = 0x0400000
H_OFF = 0x0800000
ZT_OFF = 0x1000000
FX_OFF = 0x0000000
FHA_OFF = 0x0001000
FHB_OFF = 0x0002000
FZ_OFF = 0x0003000
EPOCH_OFF = 0x0004000
WS_BYTES = 0x1800000 if DIAG else 0x1200000
OOB = 0x7f000000
TAGC = 0x9E3779B9

X_BYTES = 2048 * 512 * 2
W_BYTES = 2048 * 257 * 2
W1_BYTES = 512 * 1792 * 2

SX, SWR, SWI, SW1, SW2, SOUT, SWS = 12, 16, 20, 24, 28, 32, 36
sW, sPB, sCBK, sF0, sJT, sR, sTAG, sA, sWP, sDB, sISJ, sXB = 3, 4, 5, 6, 7, 8, 9, 10, 11, 40, 41, 42
sT0, sT1, sT2, sT3, sT4 = 43, 44, 45, 46, 47
sWOFF = 48
sCNT = 49
sTV = 50

LA, LB, LS = 0, 65536, 131072
L_CS = LS
L_C1 = LS + 8192
L_C2 = LS + 16384

vLANE, vC, vQ, vTAG = 1, 3, 4, 5
XF = 128


def ar(a, n=1):
    return "a%d" % a if n == 1 else "a[%d:%d]" % (a, a + n - 1)


def srd(n):
    return "s[%d:%d]" % (n, n + 3)


def gen():
    k = K(NAME)
    e = k.e

    def mfma(d, a, b, c=None):
        e("v_mfma_f32_16x16x32_bf16 %s, %s, %s, %s" % (d, a, b, c if c is not None else d))

    def bf16_round(v):
        e("v_cvt_pk_bf16_f32 v%d, v%d, v%d" % (v, v, v))
        e("v_lshlrev_b32 v%d, 16, v%d" % (v, v))

    def publish(soff):
        e("s_mov_b64 exec, 1")
        e("buffer_store_dword v%d, off, %s, %s sc1" % (vTAG, srd(SWS), soff))
        k.vm.issue("flag")
        e("s_mov_b64 exec, -1")

    pollno = [0]

    def poll(vaddr, soff, vt, width=1, mask=None):
        n = pollno[0]
        pollno[0] += 1
        e("s_mov_b32 s%d, 0" % sCNT)
        k.lab("L_poll%d" % n)
        if width == 1:
            e("buffer_load_dword v%d, v%d, %s, %s offen sc1" % (vt, vaddr, srd(SWS), soff))
            e("s_waitcnt vmcnt(0)")
            e("v_cmp_ne_u32 vcc, v%d, v%d" % (vt, vTAG))
        else:
            e("buffer_load_dwordx4 %s, v%d, %s, %s offen sc1" % (vr(vt, 4), vaddr, srd(SWS), soff))
            e("s_waitcnt vmcnt(0)")
            e("v_xor_b32 v%d, v%d, v%d" % (vt, vt, vTAG))
            e("v_xor_b32 v%d, v%d, v%d" % (vt + 1, vt + 1, vTAG))
            e("v_xor_b32 v%d, v%d, v%d" % (vt + 2, vt + 2, vTAG))
            e("v_xor_b32 v%d, v%d, v%d" % (vt + 3, vt + 3, vTAG))
            e("v_or3_b32 v%d, v%d, v%d, v%d" % (vt, vt, vt + 1, vt + 2))
            e("v_or_b32 v%d, v%d, v%d" % (vt, vt, vt + 3))
            e("v_cmp_ne_u32 vcc, 0, v%d" % vt)
        k.vm.clear()
        if mask is not None:
            e("s_and_b32 vcc_lo, vcc_lo, 0x%x" % (mask & 0xffffffff))
            e("s_and_b32 vcc_hi, vcc_hi, 0x%x" % (mask >> 32))
        e("s_cmp_eq_u64 vcc, 0")
        e("s_cbranch_scc1 L_polled%d" % n)
        e("s_add_u32 s%d, s%d, 1" % (sCNT, sCNT))
        e("s_cmp_lt_u32 s%d, 0x40000" % sCNT)
        e("s_cbranch_scc1 L_poll%d" % n)
        k.lab("L_polled%d" % n)

    e("s_cmp_ge_u32 s2, 256")
    e("s_cbranch_scc1 L_done")
    k.stamp(0)
    k.stamp(1, real=True)
    e("s_load_dwordx2 s[%d:%d], s[0:1], 0" % (SX, SX + 1))
    e("s_load_dwordx2 s[%d:%d], s[0:1], 32" % (SW1, SW1 + 1))
    e("s_load_dwordx2 s[%d:%d], s[0:1], 64" % (SWS, SWS + 1))
    e("s_load_dwordx2 s[%d:%d], s[0:1], 8" % (SWR, SWR + 1))
    e("s_load_dwordx2 s[%d:%d], s[0:1], 16" % (SWI, SWI + 1))
    e("s_load_dwordx2 s[%d:%d], s[0:1], 40" % (SW2, SW2 + 1))
    e("s_load_dwordx2 s[%d:%d], s[0:1], 48" % (SOUT, SOUT + 1))
    for s_, nb in ((SX, X_BYTES), (SWR, W_BYTES), (SWI, W_BYTES), (SW1, W1_BYTES), (SW2, W1_BYTES), (SOUT, X_BYTES), (SWS, WS_BYTES)):
        e("s_mov_b32 s%d, 0x%x" % (s_ + 2, nb))
        e("s_mov_b32 s%d, 0x00020000" % (s_ + 3))
    e("v_lshrrev_b32 v2, 6, v0")
    e("v_and_b32 v%d, 63, v0" % vLANE)
    e("v_and_b32 v%d, 15, v0" % vC)
    e("v_readfirstlane_b32 s%d, v2" % sW)
    e("v_bfe_u32 v%d, v0, 4, 2" % vQ)
    e("s_and_b32 s%d, s2, 7" % sA)
    e("s_lshr_b32 s%d, s2, 6" % sWP)
    e("s_lshr_b32 s%d, s2, 3" % sDB)
    e("s_and_b32 s%d, s%d, 7" % (sDB, sDB))
    e("s_lshr_b32 s%d, s%d, 1" % (sPB, sA))
    e("s_lshl_b32 s%d, s%d, 2" % (sPB, sPB))
    e("s_add_u32 s%d, s%d, s%d" % (sPB, sPB, sWP))
    e("s_and_b32 s%d, s%d, 1" % (sT0, sA))
    e("s_lshl_b32 s%d, s%d, 3" % (sCBK, sT0))
    e("s_add_u32 s%d, s%d, s%d" % (sCBK, sCBK, sDB))
    e("s_lshl_b32 s%d, s%d, 1" % (sR, sWP))
    e("s_add_u32 s%d, s%d, s%d" % (sR, sR, sDB))
    e("s_and_b32 s%d, s%d, 7" % (sR, sR))
    e("s_lshl_b32 s%d, s%d, 7" % (sT1, sDB))
    e("s_lshl_b32 s%d, s%d, 6" % (sT2, sDB))
    e("s_add_u32 s%d, s%d, 384" % (sT2, sT2))
    e("s_mul_i32 s%d, s%d, 5" % (sT3, sDB))
    e("s_sub_u32 s%d, s%d, 24" % (sT3, sT3))
    e("s_cmp_ge_u32 s%d, 6" % sDB)
    e("s_cselect_b32 s%d, 1, 0" % sISJ)
    e("s_cselect_b32 s%d, s%d, s%d" % (sF0, sT2, sT1))
    e("s_cselect_b32 s%d, s%d, s%d" % (sJT, sT3, sDB))
    e("s_mul_i32 s%d, s%d, 896" % (sT1, sT0))
    e("s_add_u32 s%d, s%d, s%d" % (sF0, sF0, sT1))
    e("s_lshl_b32 s%d, s%d, 4" % (sT1, sT0))
    e("s_add_u32 s%d, s%d, s%d" % (sJT, sJT, sT1))
    e("s_and_b32 s%d, s%d, 1" % (sXB, sW))
    e("s_lshl_b32 s%d, s%d, 20" % (sXB, sXB))
    e("s_lshl_b32 s%d, s%d, 1" % (sT1, sPB))
    e("s_lshr_b32 s%d, s%d, 1" % (sT2, sW))
    e("s_add_u32 s%d, s%d, s%d" % (sT1, sT1, sT2))
    e("s_lshl_b32 s%d, s%d, 10" % (sT1, sT1))
    e("s_add_u32 s%d, s%d, s%d" % (sXB, sXB, sT1))
    vXA = 6
    e("v_lshlrev_b32 v6, 15, v%d" % vC)
    e("v_lshl_add_u32 v6, v%d, 4, v6" % vQ)
    e("v_add_u32 v7, 0x80000, v6")
    vD1 = 8
    e("v_lshrrev_b32 v10, 3, v%d" % vLANE)
    e("v_lshl_add_u32 v11, v2, 4, v10")
    e("v_mul_u32_u24 v11, 3584, v11")
    e("v_and_b32 v12, 7, v%d" % vLANE)
    e("v_and_b32 v13, 1, v%d" % vQ)
    e("v_lshlrev_b32 v13, 1, v13")
    e("v_xor_b32 v13, v13, v12")
    e("v_lshl_add_u32 v8, v13, 4, v11")
    e("v_xor_b32 v13, 4, v13")
    e("v_lshl_add_u32 v9, v13, 4, v11")
    e("v_add_u32 v9, %d, v9" % (8 * 3584))
    vWL, vWS = 14, 15
    e("v_mul_u32_u24 v14, 257, v12")
    e("v_add_lshl_u32 v14, v14, v10, 1")
    e("v_lshlrev_b32 v15, 13, v10")
    e("v_lshl_add_u32 v15, v12, 4, v15")
    sRS = 62
    e("s_lshl_b32 s%d, s%d, 2" % (sRS, sPB))
    e("s_add_u32 s%d, s%d, s%d" % (sRS, sRS, sW))
    e("s_lshr_b32 s%d, s%d, 4" % (sT1, sRS))
    e("s_lshl_b32 s%d, s%d, 4" % (sT1, sT1))
    e("s_and_b32 s%d, s%d, 1" % (sT2, sRS))
    e("s_lshl_b32 s%d, s%d, 3" % (sT2, sT2))
    e("s_add_u32 s%d, s%d, s%d" % (sT1, sT1, sT2))
    e("s_bfe_u32 s%d, s%d, 0x30001" % (sT2, sRS))
    e("s_lshl_b32 s%d, s%d, 8" % (sT2, sT2))
    e("s_add_u32 s%d, s%d, s%d" % (sT1, sT1, sT2))
    e("s_mul_i32 s%d, s%d, 514" % (sWOFF, sT1))
    sM0W = 63
    e("s_lshl_b32 s%d, s%d, 11" % (sM0W, sW))
    e("s_waitcnt lgkmcnt(0)")
    e("s_load_dword s%d, s[%d:%d], 0x%x" % (sTAG, SWS, SWS + 1, EPOCH_OFF))

    def xload(kk):
        e("s_add_u32 s%d, s%d, %d" % (sT0, sR, kk))
        e("s_and_b32 s%d, s%d, 7" % (sT0, sT0))
        e("s_lshl_b32 s%d, s%d, 7" % (sT0, sT0))
        e("s_add_u32 s%d, s%d, s%d" % (sT0, sT0, sXB))
        for u in range(2):
            for ks in range(2):
                e("buffer_load_dwordx4 %s, v%d, %s, s%d offen offset:%d" % (vr(XF + (u * 16 + 2 * kk + ks) * 4, 4), vXA + u, srd(SX), sT0, ks * 64))
                k.vm.issue(("X", kk))

    def w1dma(kkF, regF, kkJ, tag):
        if kkJ is None:
            e("s_add_u32 s%d, s%d, %d" % (sT0, sR, kkF))
            e("s_add_u32 s%d, s%d, %d" % (sT2, sM0W, (LB if regF else LA) + kkF * 8192))
            e("s_mov_b32 s%d, %d" % (sT1, 128 if regF else 0))
        else:
            e("s_cmp_eq_u32 s%d, 1" % sISJ)
            e("s_cselect_b32 s%d, %d, %d" % (sT0, kkJ, kkF))
            e("s_mov_b32 s%d, %d" % (sT2, (LB if regF else LA) + kkF * 8192))
            e("s_cselect_b32 s%d, %d, s%d" % (sT2, LB + kkJ * 8192, sT2))
            e("s_cselect_b32 s%d, 0, %d" % (sT1, 128 if regF else 0))
            e("s_add_u32 s%d, s%d, s%d" % (sT0, sT0, sR))
            e("s_add_u32 s%d, s%d, s%d" % (sT2, sT2, sM0W))
        e("s_and_b32 s%d, s%d, 7" % (sT0, sT0))
        e("s_mul_i32 s%d, s%d, %d" % (sT0, sT0, 64 * 3584))
        e("s_lshl1_add_u32 s%d, s%d, s%d" % (sT0, sF0, sT0))
        e("s_add_u32 s%d, s%d, s%d" % (sT0, sT0, sT1))
        for ee in range(2):
            e("s_add_u32 m0, s%d, %d" % (sT2, ee * 1024))
            k.nop(1)
            e("buffer_load_dwordx4 v%d, %s, s%d offen lds" % (vD1 + ee, srd(SW1), sT0))
            k.vm.issue(tag)

    WG = 116

    def wgather(colreg_s, tag):
        e("s_lshl1_add_u32 s%d, s%d, s%d" % (sT0, colreg_s, sWOFF))
        for r in range(4):
            if r:
                e("s_add_u32 s%d, s%d, 32896" % (sT0, sT0))
            e("buffer_load_ushort v%d, v%d, %s, s%d offen" % (WG + r, vWL, srd(SWR), sT0))
            k.vm.issue(tag)
            e("buffer_load_ushort v%d, v%d, %s, s%d offen" % (WG + 4 + r, vWL, srd(SWI), sT0))
            k.vm.issue(tag)

    def wstore(colreg_s, tag):
        for r in range(4):
            e("v_lshl_or_b32 v%d, v%d, 16, v%d" % (WG + r, WG + 4 + r, WG + r))
        e("s_lshl_b32 s%d, s%d, 13" % (sT0, colreg_s))
        e("s_lshl_b32 s%d, s%d, 7" % (sT1, sRS))
        e("s_add_u32 s%d, s%d, s%d" % (sT0, sT0, sT1))
        e("s_add_u32 s%d, s%d, 0x%x" % (sT0, sT0, WT_OFF))
        e("buffer_store_dwordx4 %s, v%d, %s, s%d offen sc1" % (vr(WG, 4), vWS, srd(SWS), sT0))
        k.vm.issue(tag)

    grpF = [(0, 0), (1, 0), (0, 1), (1, 1), (2, 0), (3, 0), (4, 0), (5, 0)]

    def grp(g):
        kkF, regF = grpF[g]
        w1dma(kkF, regF, g, ("W1", regF, kkF))

    xload(0)
    for g in range(4):
        grp(g)
    sCOL = 61
    e("s_lshl_b32 s%d, s%d, 3" % (sCOL, sJT))
    wgather(sCOL, "wg")
    xload(1)
    k.stamp(2)

    FB = 68
    TMP = 84

    def fgen():
        t = TMP
        e("s_lshl_b32 s%d, s%d, 4" % (sT0, sJT))
        e("v_add_u32 v%d, s%d, v%d" % (t, sT0, vC))
        e("v_lshrrev_b32 v%d, 1, v%d" % (t + 1, t))
        e("v_and_b32 v%d, 1, v%d" % (t + 2, t))
        e("v_cvt_f32_u32 v%d, v%d" % (t + 2, t + 2))
        e("v_mul_f32 v%d, %s, v%d" % (t + 2, hexf(0.25), t + 2))
        e("v_cmp_eq_u32 vcc, 1, v%d" % t)
        e("v_mov_b32 v%d, 256" % (t + 3))
        e("s_lshl_b32 s%d, s%d, 6" % (sT0, sR))
        e("v_cndmask_b32 v%d, v%d, v%d, vcc" % (t + 1, t + 1, t + 3))
        e("v_cndmask_b32 v%d, v%d, 0, vcc" % (t + 2, t + 2))
        e("v_cvt_f32_u32 v%d, v%d" % (t + 1, t + 1))
        e("v_mul_f32 v%d, %s, v%d" % (t + 1, hexf(1.0 / 512), t + 1))
        e("v_lshl_add_u32 v%d, v%d, 3, s%d" % (t + 3, vQ, sT0))
        e("v_cvt_f32_u32 v%d, v%d" % (t + 3, t + 3))
        e("v_fma_f32 v%d, v%d, v%d, v%d" % (t + 2, t + 3, t + 1, t + 2))
        e("v_fract_f32 v%d, v%d" % (t + 2, t + 2))
        e("v_mul_f32 v%d, %s, v%d" % (t + 3, hexf(32.0), t + 1))
        e("v_fract_f32 v%d, v%d" % (t + 3, t + 3))
        e("v_mov_b32 v%d, v%d" % (t + 8, t + 2))
        for jj in range(1, 8):
            e("v_add_f32 v%d, v%d, v%d" % (t + 8 + jj, t + 7 + jj, t + 1))
        for Tf in range(4):
            for jj in range(8):
                e("v_cos_f32 v%d, v%d" % (t + 16 + jj, t + 8 + jj))
            if Tf < 3:
                for jj in range(8):
                    e("v_add_f32 v%d, v%d, v%d" % (t + 8 + jj, t + 8 + jj, t + 3))
            else:
                k.nop(1)
            for d in range(4):
                e("v_cvt_pk_bf16_f32 v%d, v%d, v%d" % (FB + 4 * Tf + d, t + 16 + 2 * d, t + 17 + 2 * d))

    fgen()
    vSG, vAL, vBE = 16, 17, 18
    e("v_bfe_u32 v19, v%d, 1, 2" % vC)
    e("v_cvt_f32_u32 v19, v19")
    e("v_mul_f32 v19, %s, v19" % hexf(0.25))
    e("v_cos_f32 v%d, v19" % vAL)
    e("v_sin_f32 v%d, v19" % vBE)
    e("v_add_f32 v19, v19, v19")
    e("v_cos_f32 v%d, v19" % vSG)
    e("v_rndne_f32 v%d, v%d" % (vAL, vAL))
    e("v_rndne_f32 v%d, v%d" % (vBE, vBE))
    e("v_lshlrev_b32 v19, 31, v%d" % vC)
    e("v_rndne_f32 v%d, v%d" % (vSG, vSG))
    e("v_xor_b32 v%d, v19, v%d" % (vBE, vBE))
    ONES = 124
    for d in range(4):
        e("v_mov_b32 v%d, 0x3f803f80" % (ONES + d))

    aC64, aS64, aN64, aC32, aS32, aN32, aT1C, aT1S, aT2C, aT2S = 176, 184, 192, 200, 208, 216, 224, 232, 240, 248
    t = 32
    e("v_lshl_add_u32 v%d, v2, 4, v%d" % (t + 24, vC))
    e("v_cvt_f32_u32 v%d, v%d" % (t + 25, t + 24))
    e("v_cvt_f32_u32 v%d, v%d" % (t + 27, vQ))
    e("v_mul_f32 v%d, 4.0, v%d" % (t + 27, t + 27))
    e("v_cvt_f32_u32 v%d, v%d" % (t + 28, vC))

    def cs_frag(scale_reg, offs, aC, aS, aN):
        for jj in range(8):
            e("v_add_f32 v%d, %s, v%d" % (t + jj, hexf(float(offs[jj])), t + 27))
        for jj in range(8):
            e("v_mul_f32 v%d, v%d, v%d" % (t + jj, t + jj, scale_reg))
        for jj in range(8):
            e("v_cos_f32 v%d, v%d" % (t + 8 + jj, t + jj))
            e("v_sin_f32 v%d, v%d" % (t + 16 + jj, t + jj))
        k.nop(1)
        for d in range(4):
            e("v_cvt_pk_bf16_f32 v%d, v%d, v%d" % (t + d, t + 8 + 2 * d, t + 9 + 2 * d))
            e("v_cvt_pk_bf16_f32 v%d, v%d, v%d" % (t + 4 + d, t + 16 + 2 * d, t + 17 + 2 * d))
        for d in range(4):
            e("v_accvgpr_write_b32 a%d, v%d" % (aC + d, t + d))
            e("v_accvgpr_write_b32 a%d, v%d" % (aS + d, t + 4 + d))
            e("v_xor_b32 v%d, 0x80008000, v%d" % (t + 4 + d, t + 4 + d))
        for d in range(4):
            e("v_accvgpr_write_b32 a%d, v%d" % (aN + d, t + 4 + d))
    slot = [16 * (jj >> 2) + (jj & 3) for jj in range(8)]
    e("v_mul_f32 v%d, %s, v%d" % (t + 26, hexf(1.0 / 64), t + 25))
    for tt in range(2):
        cs_frag(t + 26, [32 * tt + s_ for s_ in slot], aC64 + 4 * tt, aS64 + 4 * tt, aN64 + 4 * tt)
    for v in range(2):
        e("v_add_f32 v%d, %s, v%d" % (t + 26, hexf(16.0 * v), t + 28))
        e("v_mul_f32 v%d, %s, v%d" % (t + 26, hexf(1.0 / 32), t + 26))
        cs_frag(t + 26, slot, aC32 + 4 * v, aS32 + 4 * v, aN32 + 4 * v)
    e("v_mul_f32 v%d, %s, v%d" % (t + 26, hexf(1.0 / 2048), t + 25))
    for i in range(8):
        e("v_add_f32 v%d, %s, v%d" % (t + i, hexf(float(16 * (i >> 2) + (i & 3))), t + 27))
    for i in range(8):
        e("v_mul_f32 v%d, v%d, v%d" % (t + i, t + i, t + 26))
    for i in range(8):
        e("v_cos_f32 v%d, v%d" % (t + 8 + i, t + i))
        e("v_sin_f32 v%d, v%d" % (t + 16 + i, t + i))
    k.nop(1)
    for i in range(8):
        e("v_accvgpr_write_b32 a%d, v%d" % (aT1C + i, t + 8 + i))
        e("v_accvgpr_write_b32 a%d, v%d" % (aT1S + i, t + 16 + i))
    e("v_cvt_f32_u32 v%d, v2" % (t + 29))
    e("v_mul_f32 v%d, %s, v%d" % (t + 29, hexf(16.0), t + 29))
    e("v_add_f32 v%d, v%d, v%d" % (t + 29, t + 29, t + 27))
    for v in range(2):
        e("v_add_f32 v%d, %s, v%d" % (t + 26, hexf(16.0 * v), t + 28))
        e("v_mul_f32 v%d, %s, v%d" % (t + 26, hexf(1.0 / 2048), t + 26))
        for r in range(4):
            e("v_add_f32 v%d, %s, v%d" % (t + 4 * v + r, hexf(float(r)), t + 29))
            e("v_mul_f32 v%d, v%d, v%d" % (t + 4 * v + r, t + 4 * v + r, t + 26))
    for i in range(8):
        e("v_cos_f32 v%d, v%d" % (t + 8 + i, t + i))
        e("v_sin_f32 v%d, v%d" % (t + 16 + i, t + i))
    k.nop(1)
    for i in range(8):
        e("v_accvgpr_write_b32 a%d, v%d" % (aT2C + i, t + 8 + i))
        e("v_accvgpr_write_b32 a%d, v%d" % (aT2S + i, t + 16 + i))
    k.stamp(3)

    PA = 32
    ST = 20
    for i in range(4):
        e("v_mov_b32 v%d, 0" % (ST + i))

    def X(u, T):
        return XF + (u * 16 + T) * 4

    for kk in range(8):
        if kk + 2 < 8:
            xload(kk + 2)
        if kk >= 4:
            grp(kk)
        k.wait_vm(("X", kk))
        for u in range(2):
            for ks in range(2):
                for d in range(4):
                    x = X(u, 2 * kk + ks) + d
                    e("v_dot2_f32_bf16 v%d, v%d, v%d, v%d" % (ST + u, x, ONES, ST + u))
                    e("v_dot2_f32_bf16 v%d, v%d, v%d, v%d" % (ST + 2 + u, x, x, ST + 2 + u))
        for ks in range(2):
            T = 2 * kk + ks
            for u in range(2):
                p = vr(PA + ((T >> 2) * 2 + u) * 4, 4)
                mfma(p, vr(X(u, T), 4), vr(FB + 4 * (T & 3), 4), p if (T & 3) else "0")
    k.stamp(4)
    k.nop(3)
    for sw in ("v_permlane32_swap_b32", "v_permlane16_swap_b32"):
        for i in range(4):
            e("v_mov_b32 v%d, v%d" % (TMP + i, ST + i))
        k.nop(2)
        for i in range(4):
            e("%s v%d, v%d" % (sw, ST + i, TMP + i))
        k.nop(1)
        for i in range(4):
            e("v_add_f32 v%d, v%d, v%d" % (ST + i, ST + i, TMP + i))
    vRS, vNM, vD0 = 24, 26, 28
    for u in range(2):
        m, q2 = ST + u, ST + 2 + u
        e("v_mul_f32 v%d, %s, v%d" % (m, hexf(1.0 / 512), m))
        e("v_mul_f32 v%d, %s, v%d" % (q2, hexf(1.0 / 512), q2))
        e("v_fma_f32 v%d, -v%d, v%d, v%d" % (q2, m, m, q2))
        e("v_max_f32 v%d, 0, v%d" % (q2, q2))
        bf16_round(q2)
        e("v_add_f32 v%d, %s, v%d" % (q2, hexf(1e-5), q2))
        bf16_round(q2)
        e("v_sqrt_f32 v%d, v%d" % (q2, q2))
        e("v_sub_f32 v%d, 0, v%d" % (vNM + u, m))
        bf16_round(q2)
        e("v_rcp_f32 v%d, v%d" % (vRS + u, q2))
        bf16_round(vNM + u)
        e("v_add_f32 v%d, v%d, v%d" % (vD0 + u, m, vNM + u))
        e("v_mul_f32 v%d, %s, v%d" % (vD0 + u, hexf(512.0), vD0 + u))
        e("v_mul_f32 v%d, v%d, v%d" % (vD0 + u, vD0 + u, vRS + u))
    RT, D0T = 104, 96
    e("v_lshlrev_b32 v30, 4, v%d" % vQ)
    for u in range(2):
        for r in range(4):
            e("ds_bpermute_b32 v%d, v30, v%d offset:%d" % (RT + 4 * u + r, vRS + u, 4 * r))
            e("ds_bpermute_b32 v%d, v30, v%d offset:%d" % (D0T + 4 * u + r, vD0 + u, 4 * r))
    vX1 = 31
    e("v_lshrrev_b32 v31, 1, v%d" % vC)
    e("v_lshlrev_b32 v31, 13, v31")
    e("v_and_b32 v19, 1, v%d" % vC)
    e("v_lshl_add_u32 v31, v19, 6, v31")
    e("v_lshl_add_u32 v31, v%d, 4, v31" % vQ)
    e("s_waitcnt lgkmcnt(0)")
    e("s_add_u32 s%d, s%d, 0x%x" % (sTAG, sTAG, TAGC))
    e("v_mov_b32 v%d, s%d" % (vTAG, sTAG))

    def dft_finish(first, tag):
        for i in range(8):
            p0, p1, p2, p3 = PA + i, PA + 8 + i, PA + 16 + i, PA + 24 + i
            e("v_fmac_f32 v%d, v%d, v%d" % (p1, vSG, p3))
            e("v_fmac_f32 v%d, v%d, v%d" % (p0, vSG, p2))
        for i in range(8):
            e("v_fmac_f32 v%d, v%d, v%d" % (PA + i, vAL, PA + 8 + i))
        for i in range(8):
            e("v_fmac_f32_dpp v%d, v%d, v%d quad_perm:[1,0,3,2] row_mask:0xf bank_mask:0xf" % (PA + i, PA + 8 + i, vBE))
        for i in range(8):
            e("v_mul_f32 v%d, v%d, v%d" % (PA + i, PA + i, RT + i))
        if first:
            e("s_lshl_b32 s%d, s%d, 4" % (sT0, sJT))
            e("v_add_u32 v19, s%d, v%d" % (sT0, vC))
            e("v_cmp_eq_u32 vcc, 0, v19")
            k.nop(2)
            for i in range(8):
                e("v_cndmask_b32 v%d, v%d, v%d, vcc" % (PA + i, PA + i, D0T + i))
        for d in range(4):
            e("v_cvt_pk_bf16_f32 v%d, v%d, v%d" % (112 + d, PA + 2 * d, PA + 2 * d + 1))
        e("s_lshl_b32 s%d, s%d, 16" % (sT0, sJT))
        e("s_lshl_b32 s%d, s%d, 7" % (sT1, sRS))
        e("s_add_u32 s%d, s%d, s%d" % (sT0, sT0, sT1))
        e("s_add_u32 s%d, s%d, 0x%x" % (sT0, sT0, X1C_OFF))
        e("buffer_store_dwordx4 v[112:115], v%d, %s, s%d offen sc1" % (vX1, srd(SWS), sT0))
        k.vm.issue(tag)

    dft_finish(True, "x1st")
    wstore(sCOL, "x1st")
    e("s_cmp_lg_u32 s%d, 0" % sJT)
    e("s_cbranch_scc1 L_no256")
    save_q = list(k.vm.q)
    e("s_movk_i32 s%d, 256" % sCOL)
    e("s_mov_b64 exec, 0xff")
    k.nop(2)
    wgather(sCOL, "wg256")
    e("s_waitcnt vmcnt(0)")
    wstore(sCOL, "x1st256")
    e("s_waitcnt vmcnt(0)")
    e("s_mov_b64 exec, -1")
    k.vm.q = save_q
    k.lab("L_no256")
    sFX, sFH = 59, 60
    e("s_lshl_b32 s%d, s%d, 8" % (sFX, sCBK))
    e("s_lshl2_add_u32 s%d, s%d, s%d" % (sFX, sRS, sFX))
    if FX_OFF:
        e("s_add_u32 s%d, s%d, 0x%x" % (sFX, sFX, FX_OFF))
    e("s_lshl_b32 s%d, s%d, 6" % (sFH, sRS))
    e("s_lshl2_add_u32 s%d, s%d, s%d" % (sFH, sCBK, sFH))
    e("s_add_u32 s%d, s%d, 0x%x" % (sFH, sFH, FHA_OFF))
    TRB = 10
    e("v_lshrrev_b32 v19, 2, v%d" % vC)
    e("v_lshl_add_u32 v30, v%d, 3, v19" % vQ)
    e("v_lshlrev_b32 v30, 7, v30")
    e("v_and_b32 v%d, 1, v%d" % (TMP, vC))
    e("v_lshl_add_u32 v30, v%d, 3, v30" % TMP)
    e("v_bfe_u32 v19, v%d, 3, 1" % vC)
    e("v_and_b32 v%d, 1, v%d" % (TMP, vQ))
    e("v_lshl_or_b32 v19, v%d, 1, v19" % TMP)
    e("v_xor_b32 v19, s%d, v19" % sW)
    e("v_lshlrev_b32 v19, 1, v19")
    e("v_bfe_u32 v%d, v%d, 1, 1" % (TMP, vC))
    e("v_or_b32 v19, v19, v%d" % TMP)
    for l in range(4):
        e("v_xor_b32 v%d, %d, v19" % (TMP, 2 * l))
        e("v_lshl_add_u32 v%d, v%d, 4, v30" % (TRB + l, TMP))
    vL16 = 2
    e("v_lshlrev_b32 v%d, 4, v%d" % (vL16, vLANE))
    k.stamp(5)

    ACC = 32
    CS = 64
    AF = 84
    NBAR = 4

    def gemm_pass(reg, hooks, htag):
        base = LB if reg else LA
        NB = 8

        def rd(T, l):
            for hh in range(2):
                off = base % 65536 + T * 4096 + hh * 512
                e("ds_read_b64_tr_b16 %s, v%d offset:%d" % (vr(AF + ((T & 1) * 4 + l) * 4 + 2 * hh, 2), TRB + l, off))
                k.lg.issue(("A", reg, T, l))
        per = 16 // NBAR

        def land(T):
            k.wait_vm([("W1", reg, kk) for kk in range((T + per) // 2)])
            e("s_barrier")
        land(0)
        for l in range(4):
            rd(0, l)
        for T in range(16):
            if T + 1 < 16 and (T + 1) % per == 0:
                land(T + 1)
            for l in range(4):
                if T + 1 < 16:
                    rd(T + 1, l)
                k.wait_lg(("A", reg, T, l))
                a = vr(AF + ((T & 1) * 4 + l) * 4, 4)
                for u in range(2):
                    c = vr(ACC + (l * 2 + u) * 4, 4)
                    mfma(c, a, vr(X(u, T), 4), c if T else "0")
                if l == 0:
                    mfma(vr(CS, 4), a, vr(ONES, 4), vr(CS, 4) if T else "0")
            if T in hooks:
                hooks[T]()
        e("s_lshl_b32 s%d, s%d, 10" % (sT0, sW))
        e("v_add_u32 v30, s%d, v%d" % (sT0, vL16))
        e("v_add_u32 v30, 0x%x, v30" % L_CS)
        k.nop(4)
        e("ds_write_b128 v30, %s" % vr(CS, 4))
        e("s_waitcnt lgkmcnt(0)")
        k.lg.clear()
        e("s_barrier")
        C1 = 68
        for l in range(1, 4):
            e("v_xor_b32 v19, %d, v30" % (l * 1024))
            e("ds_read_b128 %s, v19" % vr(C1 + 4 * (l - 1), 4))
            k.lg.issue(("C1", reg, l))
        e("s_mul_i32 s%d, s%d, %d" % (sT0, sRS, 2 * 56 * 1024))
        e("s_lshl_b32 s%d, s%d, 5" % (sT1, sF0))
        e("s_add_u32 s%d, s%d, s%d" % (sT0, sT0, sT1))
        e("s_add_u32 s%d, s%d, 0x%x" % (sT0, sT0, H_OFF))
        if reg:
            e("s_cmp_eq_u32 s%d, 1" % sISJ)
            e("s_cselect_b32 s%d, 0, 2048" % sT1)
            e("s_add_u32 s%d, s%d, s%d" % (sT0, sT0, sT1))
        e("s_lshr_b32 s%d, s%d, 1" % (sT1, sW))
        e("s_lshl_b32 s%d, s%d, 10" % (sT1, sT1))
        e("v_add_u32 v19, s%d, v%d" % (sT1, vL16))
        e("v_xor_b32 v30, 1024, v19")
        e("s_add_u32 s%d, s%d, %d" % (sT1, sT0, 56 * 1024))
        HO = AF
        for l in range(4):
            if l:
                k.wait_lg(("C1", reg, l))
            c1 = CS if l == 0 else C1 + 4 * (l - 1)
            for u in range(2):
                a = ACC + (l * 2 + u) * 4
                for r in range(4):
                    e("v_fmac_f32 v%d, v%d, v%d" % (a + r, vNM + u, c1 + r))
                for r in range(4):
                    e("v_mul_f32 v%d, v%d, v%d" % (a + r, a + r, vRS + u))
                o = HO + ((l >> 1) * 2 + u) * 4 + (l & 1) * 2
                e("v_cvt_pk_bf16_f32 v%d, v%d, v%d" % (o, a, a + 1))
                e("v_cvt_pk_bf16_f32 v%d, v%d, v%d" % (o + 1, a + 2, a + 3))
        for i in range(16):
            e("v_pk_max_i16 v%d, v%d, 0" % (HO + i, HO + i))
        e("s_bitcmp0_b32 s%d, 0" % sW)
        e("s_cbranch_scc1 L_nosw%d" % reg)
        for i in range(4):
            e("v_swap_b32 v%d, v%d" % (HO + 4 * i, HO + 4 * i + 2))
            e("v_swap_b32 v%d, v%d" % (HO + 4 * i + 1, HO + 4 * i + 3))
        k.lab("L_nosw%d" % reg)
        for pr in range(2):
            for u in range(2):
                e("buffer_store_dwordx4 %s, v%d, %s, s%d offen sc1" % (vr(HO + (pr * 2 + u) * 4, 4), 19 if pr == 0 else 30, srd(SWS), sT0 + u))
                k.vm.issue(htag)

    e("s_cmp_eq_u32 s%d, 1" % sISJ)
    e("s_cbranch_scc1 L_jpath")
    q_vm, q_lg = list(k.vm.q), list(k.lg.q)

    def pubFX():
        k.wait_vm("x1st")
        publish("s%d" % sFX)
    w1dma(6, 0, None, ("W1", 0, 6))
    w1dma(7, 0, None, ("W1", 0, 7))
    hooks = {}
    for i in range(6):
        hooks[2 * i + 1] = (lambda i=i: w1dma(2 + i, 1, None, ("W1", 1, 2 + i)))
    hooks[6] = pubFX
    gemm_pass(0, hooks, "ha")
    e("s_branch L_join")
    qF_vm, qF_lg = list(k.vm.q), list(k.lg.q)

    k.lab("L_jpath")
    k.vm.q, k.lg.q = list(q_vm), list(q_lg)
    e("s_mov_b32 s%d, 0" % sCNT)
    for i in range(8):
        e("v_accvgpr_write_b32 a%d, v%d" % (i, RT + i))
    k.lab("L_jloop")
    e("s_add_u32 s%d, s%d, 1" % (sJT, sJT))
    e("s_lshl_b32 s%d, s%d, 3" % (sCOL, sJT))
    wgather(sCOL, "wgj")
    fgen()
    for i in range(8):
        e("v_accvgpr_read_b32 v%d, a%d" % (RT + i, i))
    for T in range(16):
        for u in range(2):
            p = vr(PA + ((T >> 2) * 2 + u) * 4, 4)
            mfma(p, vr(X(u, T), 4), vr(FB + 4 * (T & 3), 4), p if (T & 3) else "0")
    k.wait_vm("wgj")
    wstore(sCOL, "jst")
    k.nop(4)
    dft_finish(False, "jst")
    e("s_add_u32 s%d, s%d, 1" % (sCNT, sCNT))
    e("s_cmp_lt_u32 s%d, 4" % sCNT)
    e("s_cbranch_scc1 L_jloop")
    e("s_waitcnt vmcnt(0)")
    k.vm.clear()
    publish("s%d" % sFX)
    e("s_waitcnt vmcnt(0)")

    k.lab("L_join")
    k.vm.q, k.lg.q = qF_vm, qF_lg
    k.stamp(6)

    for l in range(4):
        e("v_add_u32 v%d, 0x10000, v%d" % (TRB + l, TRB + l))
    TV = [50, 51, 52, 53, 54, 55, 56, 57, 58, SWR, SWR + 1, SWI, SWI + 1, sWOFF]
    e("s_lshr_b32 s%d, s%d, 1" % (sT0, sW))
    e("s_mul_i32 s%d, s%d, 28" % (sT0, sT0))
    e("s_and_b32 s%d, s%d, 1" % (sT1, sW))
    e("s_add_u32 s%d, s%d, s%d" % (sT0, sT0, sT1))
    e("s_cmp_ge_u32 s%d, 6" % sR)
    e("s_cselect_b32 s%d, 6, 0" % sT1)
    e("s_sub_u32 s%d, s%d, s%d" % (sT1, sR, sT1))
    for i in range(6):
        e("s_lshl2_add_u32 s%d, s%d, s%d" % (TV[i], sT1, sT0))
        if i < 5:
            e("s_add_u32 s%d, s%d, 1" % (sT1, sT1))
            e("s_cmp_eq_u32 s%d, 6" % sT1)
            e("s_cselect_b32 s%d, 0, s%d" % (sT1, sT1))
    for i in range(8):
        e("s_add_u32 s%d, s%d, %d" % (sT1, sR, i))
        e("s_and_b32 s%d, s%d, 7" % (sT1, sT1))
        e("s_lshl1_add_u32 s%d, s%d, 1" % (sT2, sT1))
        e("s_add_u32 s%d, s%d, 6" % (sT3, sT1))
        e("s_cmp_lt_u32 s%d, 6" % sT1)
        e("s_cselect_b32 s%d, s%d, s%d" % (sT2, sT2, sT3))
        e("s_lshl1_add_u32 s%d, s%d, s%d" % (TV[6 + i], sT2, sT0))
    vD2 = 8
    e("v_lshrrev_b32 v8, 3, v%d" % vLANE)
    e("v_and_b32 v9, 7, v%d" % vLANE)
    e("v_lshlrev_b32 v19, 1, v%d" % vQ)
    e("v_xor_b32 v9, v9, v19")
    e("v_lshlrev_b32 v9, 4, v9")
    e("v_lshl_add_u32 v14, v8, 12, v9")
    e("v_lshl_add_u32 v8, v8, 10, v9")
    vDZ = 14
    TR2 = [6, 7, 9, 15]
    e("v_lshrrev_b32 v19, 2, v%d" % vC)
    e("v_lshl_add_u32 v19, v%d, 2, v19" % vQ)
    e("v_bfe_u32 v30, v19, 1, 2")
    e("v_lshlrev_b32 v19, 7, v19")
    e("v_and_b32 v31, 1, v%d" % vC)
    e("v_lshl_add_u32 v19, v31, 3, v19")
    e("v_lshlrev_b32 v30, 1, v30")
    e("v_bfe_u32 v31, v%d, 1, 1" % vC)
    e("v_or_b32 v30, v30, v31")
    e("v_lshl_add_u32 v16, v30, 4, v19")
    e("s_lshl_b32 s%d, s%d, 5" % (sT0, sW))
    e("s_lshl_b32 s%d, s%d, 14" % (sM0W, sW))
    e("v_xor_b32 v30, s%d, v16" % sT0)
    e("v_add_u32 v30, s%d, v30" % sM0W)
    for l in range(4):
        e("v_xor_b32 v%d, %d, v30" % (TR2[l], 32 * l))
    vZB = 16

    def w2reg(i):
        return ("a", 16 * i) if i < 11 else ("v", 128 + 16 * (i - 11))

    st = {"dma": 0, "rd": 0}

    def w2_dma():
        i = st["dma"]
        if i >= 14:
            return
        st["dma"] += 1
        if i >= 4:
            k.wait_lg(("W2R", i - 4))
        e("s_lshl_b32 s%d, s%d, 15" % (sT0, TV[i]))
        e("s_lshl_b32 s%d, s%d, 7" % (sT1, sDB))
        e("s_add_u32 s%d, s%d, s%d" % (sT0, sT0, sT1))
        for ee in range(4):
            e("s_add_u32 m0, s%d, %d" % (sM0W, (i % 4) * 4096 + ee * 1024))
            if ee:
                e("s_add_u32 s%d, s%d, 8192" % (sT0, sT0))
            else:
                k.nop(1)
            e("buffer_load_dwordx4 v%d, %s, s%d offen lds" % (vD2, srd(SW2), sT0))
            k.vm.issue(("W2", i))

    def w2_read():
        i = st["rd"]
        if i >= 14:
            return
        st["rd"] += 1
        k.wait_vm(("W2", i))
        kind, base = w2reg(i)
        for l in range(4):
            for hh in range(2):
                r = base + 4 * l + 2 * hh
                e("ds_read_b64_tr_b16 %s[%d:%d], v%d offset:%d" % (kind, r, r + 1, TR2[l], (i % 4) * 4096 + hh * 2048))
                k.lg.issue(("W2R", i))

    def pubHA():
        k.wait_vm("ha")
        publish("s%d" % sFH)

    def adv():
        w2_read()

    def adv2():
        w2_dma()
    for i in range(4):
        w2_dma()
    hooks = {}
    hooks[3] = pubHA
    for T in (5, 7, 9, 11, 13, 15):
        hooks[T] = adv
    for T in (6, 8, 10, 12, 14):
        hooks[T] = adv2
    gemm_pass(1, hooks, "hb")
    k.stamp(7)
    w2_dma()
    w2_read()
    w2_dma()

    sCC, sPL, sZR, sZI, sSC = sJT, sCOL, sF0, sXB, sISJ
    e("s_xor_b32 s%d, s2, 0x30" % sCC)
    e("s_bfe_u32 s%d, s%d, 0x40003" % (sT0, sCC))
    e("s_min_u32 s%d, s%d, 6" % (sT1, sT0))
    e("s_cmp_ge_u32 s%d, 11" % sT0)
    e("s_cselect_b32 s%d, 7, s%d" % (sT1, sT1))
    e("s_lshr_b32 s%d, s%d, 7" % (sT0, sCC))
    e("s_lshl3_add_u32 s%d, s%d, s%d" % (sT1, sT0, sT1))
    e("s_lshl_b32 s%d, s%d, 8" % (sT4, sT1))
    if FX_OFF:
        e("s_add_u32 s%d, s%d, 0x%x" % (sT4, sT4, FX_OFF))
    e("v_lshlrev_b32 v19, 2, v%d" % vLANE)
    poll(19, "s%d" % sT4, 30)
    e("s_add_u32 s%d, s%d, 0x%x" % (sT0, sFH, FHB_OFF - FHA_OFF))
    publish("s%d" % sT0)
    k.stamp(8)
    e("s_and_b32 s%d, s%d, 1" % (sT0, sW))
    e("s_lshl_b32 s%d, s%d, 3" % (sT0, sT0))
    e("v_add_u32 v19, s%d, v%d" % (sT0, vQ))
    e("v_xor_b32 v30, v19, v%d" % vC)
    e("v_lshlrev_b32 v30, 4, v30")
    e("v_lshl_add_u32 v30, v%d, 8, v30" % vQ)
    e("v_xor_b32 v31, 64, v30")
    e("s_lshl_b32 s%d, s%d, 13" % (sT0, sCC))
    e("s_lshl_b32 s%d, s%d, 11" % (sT1, sW))
    e("s_add_u32 s%d, s%d, s%d" % (sT0, sT0, sT1))
    e("s_add_u32 s%d, s%d, 0x%x" % (sT2, sT0, X1C_OFF))
    e("s_add_u32 m0, s%d, 0x%x" % (sT1, L_C1))
    k.nop(1)
    e("buffer_load_dwordx4 v30, %s, s%d offen sc1 lds" % (srd(SWS), sT2))
    k.vm.issue("cin")
    e("buffer_load_dwordx4 v31, %s, s%d offen offset:1024 sc1 lds" % (srd(SWS), sT2))
    k.vm.issue("cin")
    CW = 64
    e("s_add_u32 s%d, s%d, 0x%x" % (sT2, sT0, WT_OFF))
    for v in range(2):
        e("buffer_load_dwordx4 %s, v%d, %s, s%d offen offset:%d sc1" % (vr(CW + 4 * v, 4), vL16, srd(SWS), sT2, v * 1024))
        k.vm.issue("cw")
    e("v_xor_b32 v20, v%d, v%d" % (vQ, vC))
    e("v_lshlrev_b32 v20, 4, v20")
    e("v_lshl_add_u32 v20, v%d, 8, v20" % vC)
    e("v_add_u32 v20, 0x%x, v20" % L_C1)
    e("v_xor_b32 v21, 64, v20")
    e("v_xor_b32 v22, 128, v20")
    e("v_xor_b32 v23, 192, v20")
    e("s_lshr_b32 s%d, s%d, 1" % (sT0, sW))
    e("s_lshl_b32 s%d, s%d, 7" % (sT0, sT0))
    e("s_and_b32 s%d, s%d, 1" % (sT1, sW))
    e("s_lshl3_add_u32 s%d, s%d, s%d" % (sT0, sT1, sT0))
    e("v_xor_b32 v24, s%d, v20" % sT0)
    e("v_xor_b32 v25, 64, v24")
    e("v_lshlrev_b32 v26, 5, v%d" % vC)
    e("v_lshl_add_u32 v26, v%d, 3, v26" % vQ)
    e("s_lshl_b32 s%d, s%d, 10" % (sT0, sW))
    e("v_add_u32 v26, s%d, v26" % sT0)
    e("s_lshl_b32 s%d, s%d, 13" % (sZR, sCC))
    e("s_add_u32 s%d, s%d, 0x%x" % (sZR, sZR, ZT_OFF))
    e("s_add_u32 s%d, s%d, 4096" % (sZI, sZR))
    e("s_mov_b32 s%d, %s" % (sSC, hexf(2.0 ** -19)))
    e("s_cmp_eq_u32 s%d, 0" % sCC)
    e("s_cselect_b32 s%d, 0x%x, s%d" % (sZI, OOB, sZI))
    e("s_cselect_b32 s%d, %s, s%d" % (sSC, hexf(2.0 ** -20), sSC))
    e("s_mov_b32 s%d, 0" % sPL)
    XI = 32
    TM = 72
    TW = 88
    DR, DI = 104, 112
    PR, PI = 120, 124

    def xin(pl, v, tt):
        return XI + 4 * ((pl * 2 + v) * 2 + tt)
    w2_read()
    k.wait_vm("cin")
    e("s_barrier")
    k.lab("L_ccol")
    for pl in range(2):
        for v in range(2):
            for tt in range(2):
                e("ds_read_b128 %s, v%d offset:%d" % (vr(xin(pl, v, tt), 4), 20 + 2 * tt + pl, v * 4096))
                k.lg.issue("cx")
    for i in range(8):
        e("v_accvgpr_read_b32 v%d, a%d" % (TW + i, aT1C + i))
        e("v_accvgpr_read_b32 v%d, a%d" % (TW + 8 + i, aT1S + i))
    k.wait_lg("cx")
    e("s_cmp_lg_u32 s%d, 0" % sCC)
    e("s_cbranch_scc1 L_cplx")
    e("s_cmp_eq_u32 s%d, 0" % sPL)
    e("s_cbranch_scc1 L_c0")
    for i in range(16):
        e("v_mov_b32 v%d, v%d" % (XI + i, XI + 16 + i))
    k.lab("L_c0")
    for i in range(16):
        e("v_mov_b32 v%d, 0" % (XI + 16 + i))
    k.nop(2)
    k.lab("L_cplx")
    for v in range(2):
        dr, di = vr(DR + 4 * v, 4), vr(DI + 4 * v, 4)
        for tt in range(2):
            mfma(dr, vr(xin(0, v, tt), 4), ar(aC64 + 4 * tt, 4), dr if tt else "0")
            mfma(di, vr(xin(1, v, tt), 4), ar(aC64 + 4 * tt, 4), di if tt else "0")
            mfma(dr, vr(xin(1, v, tt), 4), ar(aS64 + 4 * tt, 4))
            mfma(di, vr(xin(0, v, tt), 4), ar(aN64 + 4 * tt, 4))
    k.nop(8)

    def cmul(conj):
        cr, ci = TW, TW + 8
        for i in range(8):
            e("v_mul_f32 v%d, v%d, v%d" % (TM + i, DR + i, cr + i))
            e("v_mul_f32 v%d, v%d, v%d" % (TM + 8 + i, DI + i, cr + i))
        for i in range(8):
            if conj:
                e("v_fma_f32 v%d, v%d, v%d, v%d" % (TM + i, DI + i, ci + i, TM + i))
                e("v_fma_f32 v%d, -v%d, v%d, v%d" % (TM + 8 + i, DR + i, ci + i, TM + 8 + i))
            else:
                e("v_fma_f32 v%d, -v%d, v%d, v%d" % (TM + i, DI + i, ci + i, TM + i))
                e("v_fma_f32 v%d, v%d, v%d, v%d" % (TM + 8 + i, DR + i, ci + i, TM + 8 + i))
        for d in range(4):
            e("v_cvt_pk_bf16_f32 v%d, v%d, v%d" % (PR + d, TM + 2 * d, TM + 2 * d + 1))
            e("v_cvt_pk_bf16_f32 v%d, v%d, v%d" % (PI + d, TM + 8 + 2 * d, TM + 9 + 2 * d))
        k.nop(2)
    cmul(True)
    pr, pi = vr(PR, 4), vr(PI, 4)
    for v in range(2):
        dr, di = vr(DR + 4 * v, 4), vr(DI + 4 * v, 4)
        mfma(dr, ar(aC32 + 4 * v, 4), pr, "0")
        mfma(di, ar(aC32 + 4 * v, 4), pi, "0")
        mfma(dr, ar(aS32 + 4 * v, 4), pi)
        mfma(di, ar(aN32 + 4 * v, 4), pr)
    e("s_waitcnt vmcnt(0)")
    k.vm.clear()
    for i in range(8):
        e("v_lshlrev_b32 v%d, 16, v%d" % (TW + i, CW + i))
        e("v_and_b32 v%d, 0xffff0000, v%d" % (TW + 8 + i, CW + i))
    cmul(False)
    for v in range(2):
        dr, di = vr(DR + 4 * v, 4), vr(DI + 4 * v, 4)
        mfma(dr, pr, ar(aC32 + 4 * v, 4), "0")
        mfma(di, pi, ar(aC32 + 4 * v, 4), "0")
        mfma(dr, pi, ar(aN32 + 4 * v, 4))
        mfma(di, pr, ar(aS32 + 4 * v, 4))
    for i in range(8):
        e("v_accvgpr_read_b32 v%d, a%d" % (TW + i, aT2C + i))
        e("v_accvgpr_read_b32 v%d, a%d" % (TW + 8 + i, aT2S + i))
    cmul(False)
    for v in range(2):
        e("ds_write_b64 v24, %s offset:%d" % (vr(PR + 2 * v, 2), 8192 + v * 4096))
        e("ds_write_b64 v25, %s offset:%d" % (vr(PI + 2 * v, 2), 8192 + v * 4096))
    e("s_waitcnt lgkmcnt(0)")
    k.lg.clear()
    e("s_barrier")
    for pl in range(2):
        for v in range(2):
            for tt in range(2):
                e("ds_read_b128 %s, v%d offset:%d" % (vr(xin(pl, v, tt), 4), 20 + 2 * tt + pl, 8192 + v * 4096))
    e("s_waitcnt lgkmcnt(0)")
    for v in range(2):
        dr, di = vr(DR + 4 * v, 4), vr(DI + 4 * v, 4)
        for tt in range(2):
            mfma(dr, ar(aC64 + 4 * tt, 4), vr(xin(0, v, tt), 4), dr if tt else "0")
            mfma(di, ar(aC64 + 4 * tt, 4), vr(xin(1, v, tt), 4), di if tt else "0")
            mfma(dr, ar(aN64 + 4 * tt, 4), vr(xin(1, v, tt), 4))
            mfma(di, ar(aS64 + 4 * tt, 4), vr(xin(0, v, tt), 4))
    k.nop(8)
    for i in range(16):
        e("v_mul_f32 v%d, s%d, v%d" % (DR + i, sSC, DR + i))
    for d in range(4):
        e("v_cvt_pk_bf16_f32 v%d, v%d, v%d" % (PR + d, DR + 2 * d, DR + 2 * d + 1))
        e("v_cvt_pk_bf16_f32 v%d, v%d, v%d" % (PI + d, DI + 2 * d, DI + 2 * d + 1))
    for v in range(2):
        e("buffer_store_dwordx2 %s, v26, %s, s%d offen offset:%d sc1" % (vr(PR + 2 * v, 2), srd(SWS), sZR, v * 512))
        k.vm.issue("zst")
        e("buffer_store_dwordx2 %s, v26, %s, s%d offen offset:%d sc1" % (vr(PI + 2 * v, 2), srd(SWS), sZI, v * 512))
        k.vm.issue("zst")
    e("s_or_b32 s%d, s%d, s%d" % (sT0, sCC, sPL))
    e("s_cbranch_scc1 L_cdone")
    e("s_mov_b32 s%d, 1" % sPL)
    e("s_add_u32 s%d, s%d, 4096" % (sZR, sZR))
    e("s_lshl_b32 s%d, s%d, 11" % (sT2, sW))
    e("s_add_u32 s%d, s%d, 0x%x" % (sT2, sT2, WT_OFF + 256 * 8192))
    for v in range(2):
        e("buffer_load_dwordx4 %s, v%d, %s, s%d offen offset:%d sc1" % (vr(CW + 4 * v, 4), vL16, srd(SWS), sT2, v * 1024))
    e("s_barrier")
    e("s_branch L_ccol")
    k.lab("L_cdone")
    k.stamp(9)

    while st["dma"] < 14 or st["rd"] < st["dma"] - 2:
        if st["rd"] < st["dma"]:
            w2_read()
        w2_dma()
    e("v_lshlrev_b32 v19, 7, v%d" % vQ)
    e("v_lshl_add_u32 v19, v%d, 2, v19" % vC)
    e("s_lshl_b32 s%d, s%d, 9" % (sFH, sA))
    e("s_lshr_b32 s%d, s%d, 1" % (sT0, sWP))
    e("s_lshl_b32 s%d, s%d, 6" % (sT0, sT0))
    e("s_add_u32 s%d, s%d, s%d" % (sFH, sFH, sT0))
    e("s_add_u32 s%d, s%d, 0x%x" % (sFH, sFH, FHA_OFF))
    maskF = 0
    for ln in range(64):
        if (ln & 7) < 6:
            maskF |= 1 << ln
    poll(19, "s%d" % sFH, 30, mask=maskF)
    e("s_barrier")
    e("s_cmp_lg_u32 s%d, 0" % sW)
    e("s_cbranch_scc1 L_nozp")
    e("s_lshl_b32 s%d, s2, 2" % sT0)
    e("s_add_u32 s%d, s%d, 0x%x" % (sT0, sT0, FZ_OFF))
    publish("s%d" % sT0)
    k.vm.q.pop()
    k.lab("L_nozp")
    k.stamp(10)
    HV = [20, 21, 22, 23]
    for pt in range(4):
        e("v_add_u32 v%d, 0x%x, v%d" % (HV[pt], pt * 4 * 56 * 1024, vL16))
    sHB = sFX
    e("s_lshl4_add_u32 s%d, s%d, s%d" % (sHB, sA, sWP))
    e("s_mul_i32 s%d, s%d, %d" % (sHB, sHB, 56 * 1024))
    e("s_add_u32 s%d, s%d, 0x%x" % (sHB, sHB, H_OFF))
    HR = 176
    NHS = 5

    def hload(i):
        e("s_lshl_b32 s%d, s%d, 10" % (sT0, TV[i]))
        e("s_add_u32 s%d, s%d, s%d" % (sT0, sT0, sHB))
        for pt in range(4):
            e("buffer_load_dwordx4 %s, v%d, %s, s%d offen sc1" % (vr(HR + (i % NHS) * 16 + 4 * pt, 4), HV[pt], srd(SWS), sT0))
            k.vm.issue(("H", i))
    for i in range(4):
        hload(i)
    while st["rd"] < 14:
        w2_read()

    GB = 32

    def ggen():
        t0 = 96
        yield "s_lshl_b32 s%d, s%d, 6" % (sT3, sDB)
        yield "s_lshl4_add_u32 s%d, s%d, s%d" % (sT3, sW, sT3)
        yield "v_add_u32 v%d, s%d, v%d" % (t0, sT3, vC)
        yield "v_cvt_f32_u32 v%d, v%d" % (t0 + 1, t0)
        yield "v_lshlrev_b32 v%d, 1, v%d" % (t0 + 2, vQ)
        yield "v_mul_f32 v%d, %s, v%d" % (t0 + 1, hexf(1.0 / 512), t0 + 1)
        yield "v_cvt_f32_u32 v%d, v%d" % (t0 + 2, t0 + 2)
        yield "v_mul_f32 v%d, %s, v%d" % (t0 + 3, hexf(16.0), t0 + 1)
        for dw in range(4):
            yield "v_add_f32 v%d, %s, v%d" % (t0 + 4 + dw, hexf(float(8 * (dw >> 1) + (dw & 1))), t0 + 2)
        yield "v_fract_f32 v%d, v%d" % (t0 + 3, t0 + 3)
        for dw in range(4):
            yield "v_mul_f32 v%d, v%d, v%d" % (t0 + 4 + dw, t0 + 4 + dw, t0 + 1)
        yield "v_and_b32 v%d, 1, v%d" % (t0 + 16, vC)
        yield "v_cvt_f32_u32 v%d, v%d" % (t0 + 16, t0 + 16)
        yield "v_cmp_eq_u32 vcc, 0, v%d" % vQ
        yield "v_fma_f32 v%d, v%d, -2.0, 1.0" % (t0 + 16, t0 + 16)
        for T in range(16):
            for dw in range(4):
                yield "v_cos_f32 v%d, v%d" % (t0 + 8 + 2 * dw, t0 + 4 + dw)
                yield "v_sin_f32_e64 v%d, -v%d" % (t0 + 9 + 2 * dw, t0 + 4 + dw)
            for dw in range(4):
                yield "v_add_f32 v%d, v%d, v%d" % (t0 + 4 + dw, t0 + 4 + dw, t0 + 3)
            if T == 0:
                yield "v_cndmask_b32 v%d, v%d, v%d, vcc" % (t0 + 9, t0 + 9, t0 + 16)
            for dw in range(4):
                yield "v_cvt_pk_bf16_f32 v%d, v%d, v%d" % (GB + 4 * T + dw, t0 + 8 + 2 * dw, t0 + 9 + 2 * dw)
    gs = ggen()
    for _ in range(21 + 8 + 4 + 1):
        e(next(gs))

    AY = 176
    for i in range(14):
        if i == 2:
            pass
        if i + 4 < 14:
            if i + 4 == 6:
                e("s_add_u32 s%d, s%d, 0x%x" % (sT4, sFH, FHB_OFF - FHA_OFF))
                poll(19, "s%d" % sT4, 30)
            hload(i + 4)
        if i == 10:
            e("s_mov_b32 s%d, 0x%x" % (sT4, FZ_OFF))
            poll(vL16, "s%d" % sT4, 24, width=4)
            e("s_lshl_b32 s%d, s%d, 19" % (sT0, sW))
            e("s_lshl_b32 s%d, s%d, 10" % (sT1, sWP))
            e("s_add_u32 s%d, s%d, s%d" % (sT0, sT0, sT1))
            e("s_lshl_b32 s%d, s%d, 7" % (sT1, sA))
            e("s_add_u32 s%d, s%d, s%d" % (sT0, sT0, sT1))
            e("s_add_u32 s%d, s%d, 0x%x" % (sT0, sT0, ZT_OFF))
            for ee in range(16):
                e("s_add_u32 m0, s%d, %d" % (sM0W, LB + ee * 1024))
                if ee:
                    e("s_add_u32 s%d, s%d, 32768" % (sT0, sT0))
                else:
                    k.nop(1)
                e("buffer_load_dwordx4 v%d, %s, s%d offen sc1 lds" % (vDZ, srd(SWS), sT0))
                k.vm.issue("Z")
        k.wait_vm(("H", i))
        k.wait_lg(("W2R", i))
        kind, base = w2reg(i)
        for l in range(4):
            for pt in range(4):
                c = ar(AY + (l * 4 + pt) * 4, 4)
                mfma(c, "%s[%d:%d]" % (kind, base + 4 * l, base + 4 * l + 3), vr(HR + (i % NHS) * 16 + 4 * pt, 4), c if i else "0")
                for _ in range(1 if (pt & 1) else 2):
                    s_ = next(gs, None)
                    if s_:
                        e(s_)
                        if s_.startswith(("v_cos", "v_sin")):
                            break
    for s_ in gs:
        e(s_)
    k.stamp(11)

    e("v_lshlrev_b32 v30, 15, v%d" % vC)
    e("v_lshl_add_u32 v30, v%d, 3, v30" % vQ)
    sXO = sFH
    e("s_lshl_b32 s%d, s%d, 19" % (sXO, sWP))
    e("s_lshl_b32 s%d, s%d, 12" % (sT0, sA))
    e("s_add_u32 s%d, s%d, s%d" % (sXO, sXO, sT0))
    e("s_lshl_b32 s%d, s%d, 7" % (sT0, sDB))
    e("s_add_u32 s%d, s%d, s%d" % (sXO, sXO, sT0))
    e("s_lshl_b32 s%d, s%d, 5" % (sT0, sW))
    e("s_add_u32 s%d, s%d, s%d" % (sXO, sXO, sT0))
    XV = 20
    for pt in range(4):
        e("buffer_load_dwordx2 %s, v30, %s, s%d offen offset:%d" % (vr(XV + 2 * pt, 2), srd(SX), sXO, pt * 1024))
        k.vm.issue("xe")
    e("v_add_u32 v31, s%d, v%d" % (sM0W, vL16))
    for l in range(1, 4):
        for pt in range(4):
            e("ds_write_b128 v31, %s offset:%d" % (ar(AY + (l * 4 + pt) * 4, 4), ((l - 1) * 4 + pt) * 1024))
    e("v_add_u32 v19, 0x%x, v%d" % (LB, vZB))
    for pt in range(4):
        e("v_xor_b32 v%d, %d, v19" % (TR2[pt], 32 * pt))
    k.wait_vm("Z")
    e("s_waitcnt lgkmcnt(0)")
    k.lg.clear()
    e("s_barrier")
    AS = 96
    ZF = 176

    def zrd(T):
        for pt in range(4):
            for hh in range(2):
                r = ZF + ((T & 1) * 4 + pt) * 4 + 2 * hh
                e("ds_read_b64_tr_b16 %s, v%d offset:%d" % (vr(r, 2), TR2[pt], T * 4096 + hh * 2048))
                k.lg.issue(("ZR", T, pt))
    zrd(0)
    YP = 208
    for T in range(16):
        for pt in range(4):
            if T + 1 < 16 and pt == 1:
                zrd(T + 1)
            k.wait_lg(("ZR", T, pt))
            c = vr(AS + 4 * pt, 4)
            mfma(c, vr(GB + 4 * T, 4), vr(ZF + ((T & 1) * 4 + pt) * 4, 4), c if T else "0")
    for l in range(1, 4):
        e("v_xor_b32 v19, 0x%x, v31" % (l * 16384))
        for pt in range(4):
            e("ds_read_b128 %s, v19 offset:%d" % (vr(YP + ((l - 1) * 4 + pt) * 4, 4), ((l - 1) * 4 + pt) * 1024))
    Y = 32
    for i in range(16):
        e("v_accvgpr_read_b32 v%d, a%d" % (Y + i, AY + i))
    e("s_waitcnt lgkmcnt(0)")
    k.lg.clear()
    k.stamp(12)
    for i in range(16):
        e("v_add_f32 v%d, v%d, v%d" % (Y + i, Y + i, YP + i))
        e("v_add_f32 v%d, v%d, v%d" % (YP + 16 + i, YP + 16 + i, YP + 32 + i))
    for i in range(16):
        e("v_add_f32 v%d, v%d, v%d" % (Y + i, Y + i, YP + 16 + i))
    U = 48

    def rnd16(base):
        for i in range(8):
            e("v_cvt_pk_bf16_f32 v%d, v%d, v%d" % (U + i, base + 2 * i, base + 2 * i + 1))
        for i in range(8):
            e("v_lshlrev_b32 v%d, 16, v%d" % (base + 2 * i, U + i))
            e("v_and_b32 v%d, 0xffff0000, v%d" % (base + 2 * i + 1, U + i))
    rnd16(Y)
    U2 = 64
    for i in range(16):
        e("v_mul_f32 v%d, %s, v%d" % (U2 + i, hexf(-1.4426950408889634), Y + i))
    for i in range(16):
        e("v_exp_f32 v%d, v%d" % (U2 + i, U2 + i))
    rnd16(AS)
    for i in range(16):
        e("v_add_f32 v%d, 1.0, v%d" % (U2 + i, U2 + i))
    for i in range(16):
        e("v_rcp_f32 v%d, v%d" % (U2 + i, U2 + i))
    k.nop(1)
    for i in range(16):
        e("v_mul_f32 v%d, v%d, v%d" % (Y + i, Y + i, U2 + i))
    rnd16(Y)
    for i in range(16):
        e("v_mul_f32 v%d, v%d, v%d" % (Y + i, Y + i, AS + i))
    rnd16(Y)
    k.wait_vm("xe")
    for i in range(8):
        e("v_lshlrev_b32 v%d, 16, v%d" % (U2 + 2 * i, XV + i))
        e("v_and_b32 v%d, 0xffff0000, v%d" % (U2 + 2 * i + 1, XV + i))
    for i in range(16):
        e("v_add_f32 v%d, v%d, v%d" % (Y + i, Y + i, U2 + i))
    for i in range(8):
        e("v_cvt_pk_bf16_f32 v%d, v%d, v%d" % (U + i, Y + 2 * i, Y + 2 * i + 1))
    for pt in range(4):
        e("buffer_store_dwordx2 %s, v30, %s, s%d offen offset:%d" % (vr(U + 2 * pt, 2), srd(SOUT), sXO, pt * 1024))
    e("s_or_b32 s%d, s2, s%d" % (sT0, sW))
    e("s_cbranch_scc1 L_noep")
    e("s_mov_b32 s%d, 0x%x" % (sT0, EPOCH_OFF))
    publish("s%d" % sT0)
    k.lab("L_noep")
    k.stamp(13)
    if DIAG:
        e("v_mov_b32 v2, s%d" % sW)
    if os.environ.get("DBG") == "2":
        k.lab("L_spin")
        e("s_memrealtime s[94:95]")
        e("s_waitcnt lgkmcnt(0)")
        e("s_sub_u32 s96, s94, s66")
        e("s_cmp_lt_u32 s96, 6000")
        e("s_cbranch_scc1 L_spin")
    elif os.environ.get("DBG"):
        e("s_load_dwordx2 s[%d:%d], s[0:1], 56" % (SX, SX + 1))
        e("s_waitcnt vmcnt(0) lgkmcnt(0)")
        e("s_memtime s[92:93]")
        e("s_memrealtime s[94:95]")
        e("s_mov_b32 s%d, 256" % (SX + 2))
        e("s_waitcnt lgkmcnt(0)")
        e("s_mov_b64 exec, 1")
        e("v_mov_b32 v8, s94")
        e("s_not_b32 s96, s66")
        e("v_mov_b32 v9, s96")
        e("s_sub_u32 s96, s92, s64")
        e("v_mov_b32 v10, s96")
        e("s_sub_u32 s96, s94, s66")
        e("v_mov_b32 v11, s96")
        e("buffer_atomic_umax v8, off, %s, 0" % srd(SX))
        e("buffer_atomic_umax v9, off, %s, 0 offset:4" % srd(SX))
        e("buffer_atomic_umax v10, off, %s, 0 offset:8" % srd(SX))
        e("buffer_atomic_umax v11, off, %s, 0 offset:12" % srd(SX))
        for i in range(2, 14):
            e("s_sub_u32 s96, s%d, s64" % (64 + 2 * i))
            e("v_mov_b32 v%d, s96" % (10 + i))
            e("buffer_atomic_umax v%d, off, %s, 0 offset:%d" % (10 + i, srd(SX), 8 + 4 * i))
    else:
        k.stamp_flush(SWS, 0, 2, 8)
    k.lab("L_done")
    e("s_endpgm")
    return k


HEADER = open(os.path.join(os.path.dirname(os.path.abspath(__file__)), "header.txt")).read()


def main(out):
    k = gen()
    s = HEADER
    s += "; @launch grid=(256,1,1) block=(256,1,1) lds=163840\n"
    s += '.amdgcn_target "amdgcn-amd-amdhsa--gfx950"\n.text\n'
    s += k.text()
    s += '.section .rodata,"a"\n'
    s += descriptor(k.name, 256, 102 if DIAG else 64, agprs=256)
    open(out, "w").write(s)


if __name__ == "__main__":
    main(sys.argv[1] if len(sys.argv) > 1 else "v2.s")
```

```python
import sys, os
sys.path.insert(0, os.path.dirname(os.path.abspath(__file__)))
from asmlib import *

NAME = "recurrent_scan__spectral_gfnet__dense_activation_relu__prompt_kernel"


def P(name, default):
    return int(os.environ.get(name, default))


X1C_OFF = 0x0200000
WT_OFF = 0x0400000
H_OFF = 0x0800000
ZT_OFF = 0x1000000
FX_OFF = 0x0000000
FHA_OFF = 0x0008000
FHB_OFF = 0x0010000
FZ_OFF = 0x0018000
EPOCH_OFF = 0x0020000
WS_BYTES = 0x1800000 if DIAG else 0x1200000
OOB = 0x7f000000
TAGC = 0x9E3779B9

X_BYTES = 2048 * 512 * 2
W_BYTES = 2048 * 257 * 2
W1_BYTES = 512 * 1792 * 2

SX, SWR, SWI, SW1, SW2, SOUT, SWS = 12, 16, 20, 24, 28, 32, 36
sW, sPB, sCBK, sF0, sONE, sR, sTAG, sA, sWP, sDB, sISJ, sXB = 3, 4, 5, 6, 7, 8, 9, 10, 11, 40, 41, 42
sT0, sT1, sT2, sT3, sT4 = 43, 44, 45, 46, 47
sWOFF, sCNT = 48, 49
sXT, sYT, sGT = 50, 51, 52
sHT, sDT = 0, 1
sFX, sFH, sCOL, sRS, sM0W = 59, 60, 61, 62, 63

LA, LB, LS = 0, 65536, 131072
L_CS = LS
L_C1 = LS + 16384

vLANE, vL16, vC, vQ, vTAG = 1, 2, 3, 4, 5
XF = 128


def ar(a, n=1):
    return "a%d" % a if n == 1 else "a[%d:%d]" % (a, a + n - 1)


def srd(n):
    return "s[%d:%d]" % (n, n + 3)


def gen():
    k = K(NAME)
    e = k.e
    tail = []
    FS = P("FS", 0)
    _stamp = k.stamp

    def stamp_n(i, real=False):
        if FS and 2 <= i <= 13:
            return
        _stamp(i, real)
    k.stamp = stamp_n

    def fs(mode, i):
        if FS == mode:
            _stamp(i)

    from collections import deque
    side = deque()
    sch = {"gap": 3, "n": 0, "bg": None, "lds": deque()}

    def mfma(d, a, b, c=None):
        e("v_mfma_f32_16x16x32_bf16 %s, %s, %s, %s" % (d, a, b, c if c is not None else d))

    def mf(d, a, b, c=None):
        mfma(d, a, b, c)
        sch["n"] += 1
        if sch["lds"]:
            sch["lds"].popleft()()
        if side and sch["n"] % sch["gap"] == 0:
            side.popleft()()
        elif sch["bg"] is not None:
            for _ in range(2):
                s_ = next(sch["bg"], None)
                if s_:
                    e(s_)
                    if s_.startswith(("v_cos", "v_sin", "v_exp", "v_rcp")):
                        break

    def flush_side():
        while sch["lds"]:
            sch["lds"].popleft()()
        while side:
            side.popleft()()

    def run(items):
        for f in items:
            f()

    def bf16_round(v):
        e("v_cvt_pk_bf16_f32 v%d, v%d, v%d" % (v, v, v))
        e("v_lshlrev_b32 v%d, 16, v%d" % (v, v))

    def publish(soff):
        e("s_mov_b64 exec, 1")
        e("buffer_store_dword v%d, off, %s, %s sc1" % (vTAG, srd(SWS), soff))
        k.vm.issue("flag")
        e("s_mov_b64 exec, -1")

    pollno = [0]

    def poll_ld(vaddr, soff, vt, width):
        if width == 1:
            return "buffer_load_dword v%d, v%d, %s, %s offen sc1" % (vt, vaddr, srd(SWS), soff)
        return "buffer_load_dwordx4 %s, v%d, %s, %s offen sc1" % (vr(vt, 4), vaddr, srd(SWS), soff)

    def poll_cmp(vt, width, mask):
        o = []
        if width == 1:
            o.append("v_cmp_ne_u32 vcc, v%d, v%d" % (vt, vTAG))
        else:
            for i in range(4):
                o.append("v_xor_b32 v%d, v%d, v%d" % (vt + i, vt + i, vTAG))
            o.append("v_or3_b32 v%d, v%d, v%d, v%d" % (vt, vt, vt + 1, vt + 2))
            o.append("v_or_b32 v%d, v%d, v%d" % (vt, vt, vt + 3))
            o.append("v_cmp_ne_u32 vcc, 0, v%d" % vt)
        if mask is not None:
            o.append("s_and_b32 vcc_lo, vcc_lo, 0x%x" % (mask & 0xffffffff))
            o.append("s_and_b32 vcc_hi, vcc_hi, 0x%x" % (mask >> 32))
        o.append("s_cmp_lg_u64 vcc, 0")
        return o

    def poll_issue(tag, vaddr, soff, vt, width=1):
        e(poll_ld(vaddr, soff, vt, width))
        k.vm.issue(tag)

    def poll_check(tag, vaddr, soff, vt, width=1, mask=None):
        n = pollno[0]
        pollno[0] += 1
        k.wait_vm(tag)
        for s_ in poll_cmp(vt, width, mask):
            e(s_)
        e("s_cbranch_scc1 L_slow%d" % n)
        k.lab("L_back%d" % n)
        tail.append("L_slow%d:" % n)
        tail.append("    s_mov_b32 s%d, 0" % sCNT)
        tail.append("L_spin%d:" % n)
        if P("SLP", 4):
            tail.append("    s_sleep %d" % P("SLP", 4))
        tail.append("    " + poll_ld(vaddr, soff, vt, width))
        tail.append("    s_waitcnt vmcnt(0)")
        for s_ in poll_cmp(vt, width, mask):
            tail.append("    " + s_)
        tail.append("    s_cbranch_scc0 L_back%d" % n)
        tail.append("    s_add_u32 s%d, s%d, 1" % (sCNT, sCNT))
        tail.append("    s_cmp_lt_u32 s%d, 0x40000" % sCNT)
        tail.append("    s_cbranch_scc1 L_spin%d" % n)
        tail.append("    s_branch L_back%d" % n)

    e("s_cmp_ge_u32 s2, 256")
    e("s_cbranch_scc1 L_done")
    k.stamp(0)
    k.stamp(1, real=True)
    e("s_load_dwordx2 s[%d:%d], s[0:1], 0" % (SX, SX + 1))
    e("s_load_dwordx2 s[%d:%d], s[0:1], 32" % (SW1, SW1 + 1))
    e("s_load_dwordx2 s[%d:%d], s[0:1], 64" % (SWS, SWS + 1))
    e("s_load_dwordx2 s[%d:%d], s[0:1], 8" % (SWR, SWR + 1))
    e("s_load_dwordx2 s[%d:%d], s[0:1], 16" % (SWI, SWI + 1))
    e("s_load_dwordx2 s[%d:%d], s[0:1], 40" % (SW2, SW2 + 1))
    e("s_load_dwordx2 s[%d:%d], s[0:1], 48" % (SOUT, SOUT + 1))
    if P("CPF", 1):
        e("s_getpc_b64 s[%d:%d]" % (sT1, sT2))
        k.lab("L_pc")
        e("v_lshlrev_b32 v20, 7, v0")
        e("v_min_u32 v20, L_end-L_pc-4, v20")
        e("v_mov_b32 v21, s%d" % sT2)
        e("v_add_co_u32 v20, vcc, s%d, v20" % sT1)
        k.nop(2)
        e("v_addc_co_u32 v21, vcc, 0, v21, vcc")
        e("global_load_dword a59, v[20:21], off")
        k.vm.issue("touch")
    for s_, nb in ((SX, X_BYTES), (SWR, W_BYTES), (SWI, W_BYTES), (SW1, W1_BYTES), (SW2, W1_BYTES), (SOUT, X_BYTES), (SWS, WS_BYTES)):
        e("s_mov_b32 s%d, 0x%x" % (s_ + 2, nb))
        e("s_mov_b32 s%d, 0x00020000" % (s_ + 3))
    e("v_lshrrev_b32 v19, 6, v0")
    e("v_and_b32 v%d, 63, v0" % vLANE)
    e("v_and_b32 v%d, 15, v0" % vC)
    e("v_readfirstlane_b32 s%d, v19" % sW)
    e("v_bfe_u32 v%d, v0, 4, 2" % vQ)
    e("v_lshlrev_b32 v%d, 4, v%d" % (vL16, vLANE))
    e("s_and_b32 s%d, s2, 7" % sA)
    e("s_lshr_b32 s%d, s2, 6" % sWP)
    e("s_bfe_u32 s%d, s2, 0x30003" % sDB)
    e("s_lshr_b32 s%d, s%d, 1" % (sPB, sA))
    e("s_lshl2_add_u32 s%d, s%d, s%d" % (sPB, sPB, sWP))
    e("s_and_b32 s%d, s%d, 1" % (sT0, sA))
    e("s_lshl3_add_u32 s%d, s%d, s%d" % (sCBK, sT0, sDB))
    e("s_lshl1_add_u32 s%d, s%d, s%d" % (sR, sWP, sDB))
    e("s_and_b32 s%d, s%d, 7" % (sR, sR))
    e("s_sub_u32 s%d, s%d, s%d" % (sF0, sCBK, sT0))
    e("s_lshl_b32 s%d, s%d, 8" % (sF0, sF0))
    e("s_cmp_eq_u32 s%d, 7" % sDB)
    e("s_cselect_b32 s%d, 1, 0" % sISJ)
    e("s_cselect_b32 s%d, 0x%x, s%d" % (sF0, 0x08000000, sF0))
    e("s_mov_b32 s%d, 0x3f803f80" % sONE)
    e("s_and_b32 s%d, s%d, 1" % (sXB, sW))
    e("s_lshl_b32 s%d, s%d, 20" % (sXB, sXB))
    e("s_lshr_b32 s%d, s%d, 1" % (sT2, sW))
    e("s_lshl1_add_u32 s%d, s%d, s%d" % (sT1, sPB, sT2))
    e("s_lshl_b32 s%d, s%d, 10" % (sT1, sT1))
    e("s_add_u32 s%d, s%d, s%d" % (sXB, sXB, sT1))
    vXA = 6
    vD1 = 8
    e("v_lshrrev_b32 v10, 3, v%d" % vLANE)
    e("v_and_b32 v12, 7, v%d" % vLANE)
    e("v_xor_b32 v6, v12, v%d" % vQ)
    e("v_lshlrev_b32 v6, 4, v6")
    e("v_lshl_add_u32 v6, v10, 15, v6")
    e("v_xor_b32 v7, 64, v6")
    e("v_add_u32 v7, 0x40000, v7")
    e("v_lshl_add_u32 v11, v19, 4, v10")
    e("v_mul_u32_u24 v11, 3584, v11")
    e("v_and_b32 v13, 1, v%d" % vQ)
    e("v_lshlrev_b32 v13, 1, v13")
    e("v_xor_b32 v13, v13, v12")
    e("v_lshl_add_u32 v8, v13, 4, v11")
    e("v_xor_b32 v13, 4, v13")
    e("v_lshl_add_u32 v9, v13, 4, v11")
    e("v_add_u32 v9, %d, v9" % (8 * 3584))
    e("s_lshl_b32 s%d, s%d, 11" % (sM0W, sW))
    e("s_waitcnt lgkmcnt(0)")
    e("s_load_dword s%d, s[%d:%d], 0x%x" % (sTAG, SWS, SWS + 1, EPOCH_OFF))

    def X(u, T):
        return ar(XF + (u * 16 + T) * 4, 4)

    XSLOT = [LS, LS + 16384, LB + 32768, LB + 49152, LS, LS + 16384, LS, LS + 16384]

    def xload(kk):
        def item(ee):
            def f():
                e("s_lshl1_add_u32 m0, s%d, %d" % (sM0W, XSLOT[kk] + ee * 1024))
                if ee == 0:
                    e("s_add_u32 s%d, s%d, %d" % (sXT, sR, kk))
                    e("s_and_b32 s%d, s%d, 7" % (sXT, sXT))
                    e("s_lshl_b32 s%d, s%d, 7" % (sXT, sXT))
                    e("s_add_u32 s%d, s%d, s%d" % (sXT, sXT, sXB))
                elif ee == 2:
                    e("s_add_u32 s%d, s%d, 0x80000" % (sXT, sXT))
                else:
                    k.nop(1)
                e("buffer_load_dwordx4 v%d, %s, s%d offen lds" % (vXA + (ee & 1), srd(SX), sXT))
                k.vm.issue(("X", kk))
            return f
        return [item(ee) for ee in range(4)]

    vXR = 20

    def xread(kk):
        items = []
        for u in range(2):
            for ks in range(2):
                def f(u=u, ks=ks):
                    e("ds_read_b128 %s, v%d offset:%d" % (X(u, 2 * kk + ks), vXR + ks, XSLOT[kk] - (LB + 32768) + u * 2048))
                    k.lg.issue(("XR", kk))
                items.append(f)
        return items

    def w1dma(reg, kk):
        off = " offset:128" if reg else ""
        lb = (LB if reg else LA) + kk * 8192 - (128 if reg else 0)

        def f0():
            e("s_add_u32 s%d, s%d, %d" % (sYT, sR, kk))
            e("s_and_b32 s%d, s%d, 7" % (sYT, sYT))
            e("s_mul_i32 s%d, s%d, %d" % (sYT, sYT, 64 * 3584))
            e("s_add_u32 m0, s%d, %d" % (sM0W, lb))
            e("s_add_u32 s%d, s%d, s%d" % (sYT, sYT, sF0))
            e("buffer_load_dwordx4 v%d, %s, s%d offen%s lds" % (vD1, srd(SW1), sYT, off))
            k.vm.issue(("W1", reg, kk))

        def f1():
            e("s_add_u32 m0, s%d, %d" % (sM0W, lb + 1024))
            k.nop(1)
            e("buffer_load_dwordx4 v%d, %s, s%d offen%s lds" % (vD1 + 1, srd(SW1), sYT, off))
            k.vm.issue(("W1", reg, kk))
        return [f0, f1]

    run(xload(0))
    run(w1dma(0, 0))
    run(w1dma(0, 1))
    run(xload(1))
    if P("TOUCH", 0):
        e("v_lshlrev_b32 v19, 21, v%d" % vLANE)
        e("v_add_u32 v19, 0x%x, v19" % 0x5000)
        e("s_mov_b64 exec, 0x1ff")
        e("buffer_load_dword a57, v19, %s, 0 offen sc1" % srd(SWS))
        k.vm.issue("touch")
        e("s_mov_b64 exec, 1")
        e("buffer_load_dword a58, off, %s, 0 sc1" % srd(SOUT))
        k.vm.issue("touch")
        e("s_mov_b64 exec, -1")
    vWL, vWS = 14, 15
    e("v_mul_u32_u24 v14, 257, v12")
    e("v_add_lshl_u32 v14, v14, v10, 1")
    e("v_lshlrev_b32 v15, 13, v10")
    e("v_lshl_add_u32 v15, v12, 4, v15")
    e("s_lshl2_add_u32 s%d, s%d, s%d" % (sRS, sPB, sW))
    e("s_lshr_b32 s%d, s%d, 4" % (sT1, sRS))
    e("s_lshl_b32 s%d, s%d, 4" % (sT1, sT1))
    e("s_and_b32 s%d, s%d, 1" % (sT2, sRS))
    e("s_lshl3_add_u32 s%d, s%d, s%d" % (sT1, sT2, sT1))
    e("s_bfe_u32 s%d, s%d, 0x30001" % (sT2, sRS))
    e("s_lshl_b32 s%d, s%d, 8" % (sT2, sT2))
    e("s_add_u32 s%d, s%d, s%d" % (sT1, sT1, sT2))
    e("s_mul_i32 s%d, s%d, 514" % (sWOFF, sT1))
    k.stamp(2)

    aWG = 40

    def wgather(colbytes_expr, dst, tag, kind="a"):
        for r in range(4):
            if r:
                e("s_add_u32 s%d, s%d, 32896" % (sT0, sT0))
            e("buffer_load_ushort %s%d, v%d, %s, s%d offen offset:%d" % (kind, dst + r, vWL, srd(SWR), sT0, colbytes_expr))
            k.vm.issue(tag)
            e("buffer_load_ushort %s%d, v%d, %s, s%d offen offset:%d" % (kind, dst + 4 + r, vWL, srd(SWI), sT0, colbytes_expr))
            k.vm.issue(tag)

    WGV = 208

    def wg_items():
        items = []
        for r in range(4):
            for arr, sr_ in ((0, SWR), (1, SWI)):
                def f(r=r, arr=arr, sr_=sr_):
                    if arr == 0:
                        if r == 0:
                            e("s_lshl_b32 s%d, s%d, 5" % (sGT, sCBK))
                            e("s_add_u32 s%d, s%d, s%d" % (sGT, sGT, sWOFF))
                        else:
                            e("s_add_u32 s%d, s%d, 32896" % (sGT, sGT))
                    for tl in range(2):
                        e("buffer_load_ushort v%d, v%d, %s, s%d offen offset:%d" % (WGV + 8 * tl + 4 * arr + r, vWL, srd(sr_), sGT, 16 * tl))
                        k.vm.issue("wg")
                items.append(f)
        return items

    PA, FB, ACC = 32, 64, 96
    aAF, aONES, aCS = 0, 32, 36

    def fgen(tl):
        t = ACC
        e("s_lshl_b32 s%d, s%d, 5" % (sT0, sCBK))
        e("v_add_u32 v%d, s%d, v%d" % (t, sT0, vC))
        if tl:
            e("v_add_u32 v%d, 16, v%d" % (t, t))
        e("v_lshrrev_b32 v%d, 1, v%d" % (t + 1, t))
        e("v_and_b32 v%d, 1, v%d" % (t + 2, t))
        e("v_cvt_f32_u32 v%d, v%d" % (t + 2, t + 2))
        e("v_mul_f32 v%d, %s, v%d" % (t + 2, hexf(0.25), t + 2))
        if tl == 0:
            e("v_cmp_eq_u32 vcc, 1, v%d" % t)
            e("v_mov_b32 v%d, 256" % (t + 3))
        e("s_lshl_b32 s%d, s%d, 6" % (sT0, sR))
        if tl == 0:
            e("v_cndmask_b32 v%d, v%d, v%d, vcc" % (t + 1, t + 1, t + 3))
            e("v_cndmask_b32 v%d, v%d, 0, vcc" % (t + 2, t + 2))
        e("v_cvt_f32_u32 v%d, v%d" % (t + 1, t + 1))
        e("v_mul_f32 v%d, %s, v%d" % (t + 1, hexf(1.0 / 512), t + 1))
        e("v_lshl_add_u32 v%d, v%d, 3, s%d" % (t + 3, vQ, sT0))
        e("v_cvt_f32_u32 v%d, v%d" % (t + 3, t + 3))
        e("v_fma_f32 v%d, v%d, v%d, v%d" % (t + 2, t + 3, t + 1, t + 2))
        e("v_fract_f32 v%d, v%d" % (t + 8, t + 2))
        e("v_mul_f32 v%d, %s, v%d" % (t + 3, hexf(32.0), t + 1))
        e("v_fract_f32 v%d, v%d" % (t + 3, t + 3))
        for jj in range(1, 8):
            e("v_add_f32 v%d, v%d, v%d" % (t + 8 + jj, t + 7 + jj, t + 1))
        for Tf in range(4):
            for jj in range(8):
                e("v_cos_f32 v%d, v%d" % (t + 16 + jj, t + 8 + jj))
            if Tf < 3:
                for jj in range(8):
                    e("v_add_f32 v%d, v%d, v%d" % (t + 8 + jj, t + 8 + jj, t + 3))
            else:
                k.nop(1)
            for d in range(4):
                e("v_cvt_pk_bf16_f32 v%d, v%d, v%d" % (FB + 16 * tl + 4 * Tf + d, t + 16 + 2 * d, t + 17 + 2 * d))

    fgen(0)
    fgen(1)
    vSM, vAL, vBE = 16, 17, 18
    e("v_bfe_u32 v19, v%d, 1, 2" % vC)
    e("v_cvt_f32_u32 v19, v19")
    e("v_mul_f32 v19, %s, v19" % hexf(0.25))
    e("v_cos_f32 v%d, v19" % vAL)
    e("v_sin_f32 v%d, v19" % vBE)
    e("v_bfe_u32 v%d, v%d, 1, 1" % (vSM, vC))
    e("v_mul_u32_u24 v%d, 0x8000, v%d" % (vSM, vSM))
    e("v_lshl_or_b32 v%d, v%d, 16, v%d" % (vSM, vSM, vSM))
    e("v_rndne_f32 v%d, v%d" % (vAL, vAL))
    e("v_rndne_f32 v%d, v%d" % (vBE, vBE))
    e("v_lshlrev_b32 v19, 31, v%d" % vC)
    e("v_xor_b32 v%d, v19, v%d" % (vBE, vBE))
    e("v_mov_b32 v19, s%d" % sONE)
    for d in range(4):
        e("v_accvgpr_write_b32 a%d, v19" % (aONES + d))
    TRB = 10
    e("v_lshrrev_b32 v19, 2, v%d" % vC)
    e("v_lshl_add_u32 v30, v%d, 3, v19" % vQ)
    e("v_lshlrev_b32 v30, 7, v30")
    e("v_and_b32 v31, 1, v%d" % vC)
    e("v_lshl_add_u32 v30, v31, 3, v30")
    e("v_bfe_u32 v19, v%d, 3, 1" % vC)
    e("v_and_b32 v31, 1, v%d" % vQ)
    e("v_lshl_or_b32 v19, v31, 1, v19")
    e("v_xor_b32 v19, s%d, v19" % sW)
    e("v_lshlrev_b32 v19, 1, v19")
    e("v_bfe_u32 v31, v%d, 1, 1" % vC)
    e("v_or_b32 v19, v19, v31")
    for l in range(4):
        e("v_xor_b32 v31, %d, v19" % (2 * l))
        e("v_lshl_add_u32 v%d, v31, 4, v30" % (TRB + l))
    ST = 20
    e("v_lshrrev_b32 v19, 1, v%d" % vC)
    e("v_xor_b32 v19, v19, v%d" % vQ)
    e("v_lshlrev_b32 v19, 4, v19")
    e("v_lshl_add_u32 v19, v%d, 7, v19" % vC)
    e("s_lshl1_add_u32 s%d, s%d, 0x%x" % (sT0, sM0W, LB + 32768))
    e("v_add_u32 v20, s%d, v19" % sT0)
    e("v_xor_b32 v21, 64, v20")
    aSUM, aGR = 40, 48
    k.stamp(3)

    XLA = P("XLA", 2)

    def ex_w2touch():
        e("s_lshl2_add_u32 s%d, s2, s%d" % (sT0, sW))
        e("s_mul_i32 s%d, s%d, %d" % (sT0, sT0, 14 * 128))
        e("v_lshlrev_b32 v19, 7, v%d" % vLANE)
        e("s_mov_b64 exec, 0x3fff")
        e("buffer_load_dword a56, v19, %s, s%d offen" % (srd(SW2), sT0))
        k.vm.issue("touch")
        e("s_mov_b64 exec, -1")

    sched = {kk: [] for kk in range(8)}
    run(xload(2))
    run(xload(3))
    wgi = wg_items()
    sched[0] += xload(4) + w1dma(1, 0) + [ex_w2touch]
    sched[1] += xload(5) + w1dma(1, 1) + wgi[0:2]
    sched[2] += w1dma(1, 2) + wgi[2:6]
    sched[3] += w1dma(1, 3) + wgi[6:8]
    sched[4] += xload(6) + w1dma(1, 4)
    sched[5] += xload(7) + w1dma(1, 5)
    sched[6] += w1dma(1, 6) + w1dma(1, 7)

    def rdA_items(reg, T, l, buf):
        def item(hh):
            def f():
                r = aAF + (buf * 4 + l) * 4 + 2 * hh
                e("ds_read_b64_tr_b16 %s, v%d offset:%d" % (ar(r, 2), TRB + l, T * 4096 + hh * 512))
                k.lg.issue(("A", reg, T, l))
            return f
        return [item(0), item(1)]

    def rdA(reg, T, l, buf):
        run(rdA_items(reg, T, l, buf))

    def gemm_step(reg, T, buf, pre=None):
        for l in range(4):
            if pre:
                pre(l)
            k.wait_lg(("A", reg, T, l))
            a = ar(aAF + (buf * 4 + l) * 4, 4)
            for u in range(2):
                c = vr(ACC + (l * 2 + u) * 4, 4)
                mf(c, a, X(u, T), c if T else "0")
            if l == 0:
                mf(ar(aCS, 4), a, ar(aONES, 4), ar(aCS, 4) if T else "0")

    BARN = P("BARN", 1)
    sch["gap"] = P("GAP1", 3)
    k.wait_vm(("X", 0))
    run(xread(0))
    for kk in range(8):
        k.wait_lg(("XR", kk))
        if kk % BARN == 0:
            k.wait_vm([("W1", 0, j) for j in range(kk + BARN)])
            e("s_barrier")
        for ks in range(2):
            for l in range(4):
                sch["lds"].extend(rdA_items(0, 2 * kk + ks, l, ks))
        if kk + 2 < 8:
            side.extend(w1dma(0, kk + 2))
        side.extend(sched[kk])
        if kk == 4:
            for i in range(32):
                e("v_xor_b32 v%d, v%d, v%d" % (FB + i, vSM, FB + i))
            k.nop(2)
        for ks in range(2):
            T = 2 * kk + ks
            for u in range(2):
                for tl in range(2):
                    p = vr(PA + ((tl * 2 + ((T >> 2) & 1)) * 2 + u) * 4, 4)
                    mf(p, X(u, T), vr(FB + 16 * tl + 4 * (T & 3), 4), "0" if T in (0, 4) else p)
                mf(ar(aSUM + 4 * u, 4), ar(aONES, 4), X(u, T), ar(aSUM + 4 * u, 4) if T else "0")
                mf(ar(aGR + 4 * u, 4), X(u, T), X(u, T), ar(aGR + 4 * u, 4) if T else "0")
        gemm_step(0, 2 * kk, 0)
        if kk + 1 < 8:
            k.wait_vm(("X", kk + 1))
            sch["lds"].extend(xread(kk + 1))
        gemm_step(0, 2 * kk + 1, 1)
        flush_side()
    k.stamp(4)
    TMP = FB
    e("v_and_b32 v19, 3, v%d" % vC)
    for u in range(2):
        e("v_accvgpr_read_b32 v%d, a%d" % (ST + u, aSUM + 4 * u))
        for r in range(4):
            e("v_accvgpr_read_b32 v%d, a%d" % (TMP + 4 * u + r, aGR + 4 * u + r))
    for r in range(1, 4):
        e("v_cmp_eq_u32 vcc, %d, v19" % r)
        k.nop(2)
        for u in range(2):
            e("v_cndmask_b32 v%d, v%d, v%d, vcc" % (TMP + 4 * u, TMP + 4 * u, TMP + 4 * u + r))
    e("v_lshrrev_b32 v19, 2, v%d" % vC)
    e("v_lshl_add_u32 v19, v19, 4, v%d" % vC)
    e("v_lshlrev_b32 v19, 2, v19")
    for u in range(2):
        e("ds_bpermute_b32 v%d, v19, v%d" % (ST + 2 + u, TMP + 4 * u))
    vCSA = 31
    e("s_lshl_b32 s%d, s%d, 12" % (sT0, sW))
    e("s_add_u32 s%d, s%d, 0x%x" % (sT0, sT0, L_CS))
    e("v_add_u32 v%d, s%d, v%d" % (vCSA, sT0, vL16))
    e("ds_write_b128 v%d, %s" % (vCSA, ar(aCS, 4)))
    for tl in range(2):
        for i in range(8):
            e("v_fmac_f32 v%d, v%d, v%d" % (PA + 16 * tl + i, vAL, PA + 16 * tl + 8 + i))
        for i in range(8):
            e("v_fmac_f32_dpp v%d, v%d, v%d quad_perm:[1,0,3,2] row_mask:0xf bank_mask:0xf" % (PA + 16 * tl + i, PA + 16 * tl + 8 + i, vBE))
    e("s_waitcnt lgkmcnt(0)")
    k.lg.clear()
    vRS, vNM, vD0 = 24, 26, 28
    for u in range(2):
        m, q2 = ST + u, ST + 2 + u
        e("v_mul_f32 v%d, %s, v%d" % (m, hexf(1.0 / 512), m))
        e("v_mul_f32 v%d, %s, v%d" % (q2, hexf(1.0 / 512), q2))
        e("v_fma_f32 v%d, -v%d, v%d, v%d" % (q2, m, m, q2))
        e("v_max_f32 v%d, 0, v%d" % (q2, q2))
        bf16_round(q2)
        e("v_add_f32 v%d, %s, v%d" % (q2, hexf(1e-5), q2))
        bf16_round(q2)
        e("v_sqrt_f32 v%d, v%d" % (q2, q2))
        e("v_sub_f32 v%d, 0, v%d" % (vNM + u, m))
        bf16_round(q2)
        e("v_rcp_f32 v%d, v%d" % (vRS + u, q2))
        bf16_round(vNM + u)
        e("v_add_f32 v%d, v%d, v%d" % (vD0 + u, m, vNM + u))
        e("v_mul_f32 v%d, %s, v%d" % (vD0 + u, hexf(512.0), vD0 + u))
    RT, D0T = FB, FB + 8
    e("v_lshlrev_b32 v30, 4, v%d" % vQ)
    for u in range(2):
        for r in range(4):
            e("ds_bpermute_b32 v%d, v30, v%d offset:%d" % (RT + 4 * u + r, vRS + u, 4 * r))
            e("ds_bpermute_b32 v%d, v30, v%d offset:%d" % (D0T + 4 * u + r, vD0 + u, 4 * r))
    k.wait_vm("wg")
    for tl in range(2):
        for r in range(4):
            e("v_lshl_or_b32 v%d, v%d, 16, v%d" % (WGV + 8 * tl + r, WGV + 8 * tl + 4 + r, WGV + 8 * tl + r))
    vX1 = 6
    e("v_lshrrev_b32 v6, 1, v%d" % vC)
    e("v_lshlrev_b32 v6, 13, v6")
    e("v_and_b32 v19, 1, v%d" % vC)
    e("v_lshl_add_u32 v6, v19, 6, v6")
    e("v_lshl_add_u32 v6, v%d, 4, v6" % vQ)
    e("v_or_b32 v19, s%d, v%d" % (sCBK, vC))
    e("v_cmp_eq_u32 vcc, 0, v19")
    e("s_lshl_b32 s%d, s%d, 17" % (sT0, sCBK))
    e("s_lshl_b32 s%d, s%d, 7" % (sT1, sRS))
    e("s_add_u32 s%d, s%d, s%d" % (sT0, sT0, sT1))
    e("s_add_u32 s%d, s%d, 0x%x" % (sT1, sT0, X1C_OFF))
    e("s_add_u32 s%d, s%d, 0x%x" % (sT2, sT0, X1C_OFF + 65536))
    e("s_add_u32 s%d, s%d, 0x%x" % (sT3, sT0, WT_OFF))
    e("s_add_u32 s%d, s%d, 0x%x" % (sT4, sT0, WT_OFF + 65536))
    e("s_waitcnt lgkmcnt(0)")
    k.lg.clear()
    e("s_add_u32 s%d, s%d, 0x%x" % (sTAG, sTAG, TAGC))
    e("v_mov_b32 v%d, s%d" % (vTAG, sTAG))
    for i in range(8):
        e("v_cndmask_b32 v%d, v%d, v%d, vcc" % (PA + i, PA + i, D0T + i))
    for tl in range(2):
        for i in range(8):
            e("v_mul_f32 v%d, v%d, v%d" % (PA + 16 * tl + i, PA + 16 * tl + i, RT + i))
        o = PA + 16 * tl + 8
        for d in range(4):
            e("v_cvt_pk_bf16_f32 v%d, v%d, v%d" % (o + d, PA + 16 * tl + 2 * d, PA + 16 * tl + 2 * d + 1))
        e("buffer_store_dwordx4 %s, v%d, %s, s%d offen sc1" % (vr(o, 4), vX1, srd(SWS), sT1 + tl))
        k.vm.issue("x1st")
    for tl in range(2):
        e("buffer_store_dwordx4 %s, v%d, %s, s%d offen sc1" % (vr(WGV + 8 * tl, 4), vWS, srd(SWS), sT3 + tl))
        k.vm.issue("x1st")
    e("s_lshl4_add_u32 s%d, s%d, s%d" % (sFX, sCBK, sPB))
    e("s_lshl_b32 s%d, s%d, 7" % (sFX, sFX))
    e("s_lshl2_add_u32 s%d, s%d, s%d" % (sFX, sW, sFX))
    e("s_lshr_b32 s%d, s%d, 3" % (sFH, sRS))
    e("s_and_b32 s%d, s%d, 1" % (sT0, sRS))
    e("s_lshl1_add_u32 s%d, s%d, s%d" % (sFH, sFH, sT0))
    e("s_lshl4_add_u32 s%d, s%d, s%d" % (sFH, sFH, sCBK))
    e("s_lshl_b32 s%d, s%d, 7" % (sFH, sFH))
    e("s_bfe_u32 s%d, s%d, 0x20001" % (sT0, sRS))
    e("s_lshl2_add_u32 s%d, s%d, s%d" % (sFH, sT0, sFH))
    e("s_add_u32 s%d, s%d, 0x%x" % (sFH, sFH, FHA_OFF))
    k.stamp(5)

    def h_epilogue(reg, htag):
        e("s_barrier")
        C1 = PA
        for l in range(4):
            if l:
                e("v_xor_b32 v19, %d, v%d" % (l * 4096, vCSA))
            e("ds_read_b128 %s, v%d" % (vr(C1 + 4 * l, 4), 19 if l else vCSA))
            k.lg.issue(("C1", reg, l))
        e("s_mul_i32 s%d, s%d, %d" % (sT0, sRS, 2 * 56 * 1024))
        e("s_lshl4_add_u32 s%d, s%d, s%d" % (sT0, sF0, sT0))
        e("s_add_u32 s%d, s%d, 0x%x" % (sT0, sT0, H_OFF + 2048 * reg))
        e("s_lshr_b32 s%d, s%d, 1" % (sT1, sW))
        e("s_lshl_b32 s%d, s%d, 10" % (sT1, sT1))
        e("v_add_u32 v19, s%d, v%d" % (sT1, vL16))
        e("v_xor_b32 v30, 1024, v19")
        e("s_add_u32 s%d, s%d, %d" % (sT1, sT0, 56 * 1024))
        HO = PA + 16
        for l in range(4):
            k.wait_lg(("C1", reg, l))
            for u in range(2):
                a = ACC + (l * 2 + u) * 4
                for r in range(4):
                    e("v_fmac_f32 v%d, v%d, v%d" % (a + r, vNM + u, C1 + 4 * l + r))
                for r in range(4):
                    e("v_mul_f32 v%d, v%d, v%d" % (a + r, a + r, vRS + u))
                o = HO + ((l >> 1) * 2 + u) * 4 + (l & 1) * 2
                e("v_cvt_pk_bf16_f32 v%d, v%d, v%d" % (o, a, a + 1))
                e("v_cvt_pk_bf16_f32 v%d, v%d, v%d" % (o + 1, a + 2, a + 3))
        for i in range(16):
            e("v_pk_max_i16 v%d, v%d, 0" % (HO + i, HO + i))
        e("s_bitcmp0_b32 s%d, 0" % sW)
        e("s_cbranch_scc1 L_nosw%d" % reg)
        for i in range(4):
            e("v_swap_b32 v%d, v%d" % (HO + 4 * i, HO + 4 * i + 2))
            e("v_swap_b32 v%d, v%d" % (HO + 4 * i + 1, HO + 4 * i + 3))
        k.lab("L_nosw%d" % reg)
        for pr in range(2):
            for u in range(2):
                e("buffer_store_dwordx4 %s, v%d, %s, s%d offen sc1" % (vr(HO + (pr * 2 + u) * 4, 4), 19 if pr == 0 else 30, srd(SWS), sT0 + u))
                k.vm.issue(htag)

    h_epilogue(0, "ha")
    k.stamp(6)

    TV = [50, 51, 52, 53, 54, 55, 56]
    e("s_lshr_b32 s%d, s%d, 1" % (sT0, sW))
    e("s_mul_i32 s%d, s%d, 28" % (sT0, sT0))
    e("s_and_b32 s%d, s%d, 1" % (sT1, sW))
    e("s_add_u32 s%d, s%d, s%d" % (sT0, sT0, sT1))
    e("s_cmp_eq_u32 s%d, 7" % sR)
    e("s_cselect_b32 s%d, 0, s%d" % (sT1, sR))
    for i in range(7):
        e("s_lshl2_add_u32 s%d, s%d, s%d" % (TV[i], sT1, sT0))
        if i < 6:
            e("s_add_u32 s%d, s%d, 1" % (sT1, sT1))
            e("s_cmp_eq_u32 s%d, 7" % sT1)
            e("s_cselect_b32 s%d, 0, s%d" % (sT1, sT1))
    vD2, vDZ = 8, 9
    e("v_lshrrev_b32 v8, 3, v%d" % vLANE)
    e("v_and_b32 v7, 7, v%d" % vLANE)
    e("v_lshlrev_b32 v19, 1, v%d" % vQ)
    e("v_xor_b32 v7, v7, v19")
    e("v_lshlrev_b32 v7, 4, v7")
    e("v_lshl_add_u32 v9, v8, 12, v7")
    e("v_lshl_add_u32 v8, v8, 10, v7")
    TR2 = [16, 17, 18, 7]
    vZB = 6
    e("v_lshrrev_b32 v19, 2, v%d" % vC)
    e("v_lshl_add_u32 v19, v%d, 2, v19" % vQ)
    e("v_bfe_u32 v30, v19, 1, 2")
    e("v_lshlrev_b32 v19, 7, v19")
    e("v_and_b32 v7, 1, v%d" % vC)
    e("v_lshl_add_u32 v19, v7, 3, v19")
    e("v_lshlrev_b32 v30, 1, v30")
    e("v_bfe_u32 v7, v%d, 1, 1" % vC)
    e("v_or_b32 v30, v30, v7")
    e("v_lshl_add_u32 v%d, v30, 4, v19" % vZB)
    e("s_lshl_b32 s%d, s%d, 14" % (sM0W, sW))
    e("v_add_u32 v30, s%d, v%d" % (sM0W, vZB))
    for l in range(4):
        e("v_xor_b32 v%d, %d, v30" % (TR2[l], 32 * l))
    sW2B = 57
    e("s_lshl_b32 s%d, s%d, 7" % (sW2B, sDB))

    def w2_dma(i):
        def item(ee):
            def f():
                e("s_add_u32 m0, s%d, %d" % (sM0W, (i % 4) * 4096 + ee * 1024))
                if ee == 0:
                    e("s_lshl_b32 s%d, s%d, 15" % (sDT, TV[i % 7]))
                    e("s_add_u32 s%d, s%d, s%d" % (sDT, sDT, sW2B))
                    if i >= 7:
                        e("s_add_u32 s%d, s%d, 0x10000" % (sDT, sDT))
                else:
                    e("s_add_u32 s%d, s%d, 8192" % (sDT, sDT))
                e("buffer_load_dwordx4 v%d, %s, s%d offen lds" % (vD2, srd(SW2), sDT))
                k.vm.issue(("W2", i))
            return f
        return [item(ee) for ee in range(4)]

    aAF2 = 208

    def w2_read_items(i):
        items = []
        for l in range(4):
            for hh in range(2):
                def f(l=l, hh=hh):
                    r = aAF2 + (i & 1) * 16 + 4 * l + 2 * hh
                    e("ds_read_b64_tr_b16 %s, v%d offset:%d" % (ar(r, 2), TR2[l], (i % 4) * 4096 + hh * 2048))
                    k.lg.issue(("W2R", i))
                items.append(f)
        return items

    e("s_cmp_eq_u32 s%d, 1" % sISJ)
    e("s_cbranch_scc1 L_jpath")
    q_vm, q_lg = list(k.vm.q), list(k.lg.q)
    for l in range(4):
        e("v_add_u32 v%d, 0x10000, v%d" % (TRB + l, TRB + l))

    def pubFX():
        fs(3, 2)
        k.wait_vm("x1st")
        fs(3, 3)
        publish("s%d" % sFX)

    def pubHA():
        fs(3, 4)
        k.wait_vm("ha")
        fs(3, 5)
        publish("s%d" % sFH)
    hooks = {T: [] for T in range(16)}
    for i in range(4):
        hooks[P("W2T0", 0) + 2 * i].append(lambda i=i: side.extend(w2_dma(i)))
    hooks[P("PFX", 3)].append(pubFX)
    hooks[P("PHA", 7)].append(pubHA)
    fs(2, 2)
    k.wait_vm([("W1", 1, kk) for kk in range(8)])
    fs(2, 3)
    e("s_barrier")
    fs(2, 4)
    sch["gap"] = P("GAP2", 4)
    for l in range(4):
        rdA(1, 0, l, 0)
    for T in range(16):
        gemm_step(1, T, T & 1, pre=(lambda l, T=T: rdA(1, T + 1, l, (T + 1) & 1)) if T < 15 else None)
        for f in hooks[T]:
            f()
        if T < 9:
            fs(2, 5 + T)
    flush_side()
    k.nop(6)
    e("ds_write_b128 v%d, %s" % (vCSA, ar(aCS, 4)))
    e("s_waitcnt lgkmcnt(0)")
    k.lg.clear()
    fs(3, 6)
    h_epilogue(1, "hb")
    fs(3, 7)
    k.lab("L_join")
    qF_vm, qF_lg = list(k.vm.q), list(k.lg.q)
    main_lines = k.lines
    k.lines = []
    k.vm.q, k.lg.q = list(q_vm), list(q_lg)
    k.lab("L_jpath")
    for i in range(4):
        run(w2_dma(i))
    e("s_cmp_lg_u32 s%d, 7" % sCBK)
    e("s_cbranch_scc1 L_no256")
    e("s_mov_b32 s%d, s%d" % (sT0, sWOFF))
    e("s_mov_b64 exec, 0xff")
    wgather(512, 32, "wg256", kind="v")
    e("s_waitcnt vmcnt(0)")
    for r in range(4):
        e("v_lshl_or_b32 v%d, v%d, 16, v%d" % (32 + r, 36 + r, 32 + r))
    e("s_lshl_b32 s%d, s%d, 7" % (sT0, sRS))
    e("s_add_u32 s%d, s%d, 0x%x" % (sT0, sT0, WT_OFF + 256 * 8192))
    e("buffer_store_dwordx4 v[32:35], v%d, %s, s%d offen sc1" % (vWS, srd(SWS), sT0))
    e("s_mov_b64 exec, -1")
    k.lab("L_no256")
    e("s_waitcnt vmcnt(0)")
    publish("s%d" % sFX)
    e("s_waitcnt vmcnt(0)")
    e("s_branch L_join")
    tail.extend(k.lines)
    k.lines = main_lines
    k.vm.q, k.lg.q = qF_vm, qF_lg
    k.stamp(7)

    sCC, sPL, sZR, sZI, sSC, sFHC, sFXC = sCOL, sF0, sXB, sISJ, sONE, sWOFF, 58
    vFH, vFL, vFZ = 14, 15, 29
    for vv, n in ((vFH, 27), (vFL, 15), (vFZ, 63)):
        e("v_min_u32 v19, %d, v%d" % (n, vLANE))
        e("v_lshrrev_b32 v%d, 2, v19" % vv)
        e("v_lshlrev_b32 v%d, 7, v%d" % (vv, vv))
        e("v_and_b32 v19, 3, v19")
        e("v_lshl_add_u32 v%d, v19, 2, v%d" % (vv, vv))
    e("s_lshr_b32 s%d, s%d, 1" % (sT0, sWP))
    e("s_lshl1_add_u32 s%d, s%d, s%d" % (sFHC, sA, sT0))
    e("s_lshr_b32 s%d, s%d, 1" % (sT0, sW))
    e("s_lshl1_add_u32 s%d, s%d, s%d" % (sFHC, sFHC, sT0))
    e("s_lshl_b32 s%d, s%d, 10" % (sFHC, sFHC))
    e("s_add_u32 s%d, s%d, 0x%x" % (sFHC, sFHC, FHA_OFF))
    e("s_xor_b32 s%d, s2, 0x38" % sCC)
    e("s_lshr_b32 s%d, s%d, 4" % (sFXC, sCC))
    e("s_lshl2_add_u32 s%d, s%d, s%d" % (sFXC, sFXC, sW))
    e("s_lshl_b32 s%d, s%d, 9" % (sFXC, sFXC))
    maskF = None
    poll_issue("pha", vFH, "s%d" % sFHC, 30)
    HV = [10, 11, 12, 13]
    for pt in range(4):
        e("v_add_u32 v%d, 0x%x, v%d" % (HV[pt], pt * 4 * 56 * 1024, vL16))
    sHB = sFX
    e("s_lshl4_add_u32 s%d, s%d, s%d" % (sHB, sA, sWP))
    e("s_mul_i32 s%d, s%d, %d" % (sHB, sHB, 56 * 1024))
    e("s_add_u32 s%d, s%d, 0x%x" % (sHB, sHB, H_OFF))
    aHR, NHS, aAY = 128, 5, 64

    def hload(i):
        def item(pt):
            def f():
                if pt == 0:
                    e("s_lshl_b32 s%d, s%d, 10" % (sHT, TV[i % 7]))
                    e("s_add_u32 s%d, s%d, s%d" % (sHT, sHT, sHB))
                e("buffer_load_dwordx4 %s, v%d, %s, s%d offen offset:%d sc1" % (ar(aHR + (i % NHS) * 16 + 4 * pt, 4), HV[pt], srd(SWS), sHT, 2048 if i >= 7 else 0))
                k.vm.issue(("H", i))
            return f
        return [item(pt) for pt in range(4)]

    C64, S64, N64, C32, S32, N32, T1C, T1S, T2C, T2S = 128, 136, 144, 152, 160, 168, 176, 184, 192, 200

    def cconst():
        t = 32
        slot = [16 * (jj >> 2) + (jj & 3) for jj in range(8)]
        yield "s_lshl_b32 s%d, s%d, 4" % (sT3, sW)
        yield "v_add_u32 v%d, s%d, v%d" % (t + 24, sT3, vC)
        yield "v_cvt_f32_u32 v%d, v%d" % (t + 27, vQ)
        yield "v_cvt_f32_u32 v%d, v%d" % (t + 25, t + 24)
        yield "v_mul_f32 v%d, 4.0, v%d" % (t + 27, t + 27)
        yield "v_cvt_f32_u32 v%d, v%d" % (t + 28, vC)
        yield "v_and_b32 v%d, 1, v%d" % (t + 30, vC)
        for jj in range(8):
            yield "v_add_f32 v%d, %s, v%d" % (t + 32 + jj, hexf(float(slot[jj])), t + 27)
        yield "v_mul_u32_u24 v%d, 0x8000, v%d" % (t + 30, t + 30)
        yield "v_mul_f32 v%d, %s, v%d" % (t + 26, hexf(1.0 / 64), t + 25)
        yield "v_lshl_or_b32 v%d, v%d, 16, v%d" % (t + 30, t + 30, t + 30)
        for (scale, Cb, Sb, Nb, flip) in ((t + 26, C64, S64, N64, "v%d" % (t + 30)), (t + 29, C32, S32, N32, "0x80000000")):
            if Cb == C32:
                yield "v_mul_f32 v%d, %s, v%d" % (t + 29, hexf(1.0 / 32), t + 28)
                yield "v_mul_f32 v%d, %s, v%d" % (t + 26, hexf(1.0 / 2048), t + 25)
            for jj in range(8):
                yield "v_mul_f32 v%d, v%d, v%d" % (t + jj, t + 32 + jj, scale)
            for jj in range(8):
                yield "v_cos_f32 v%d, v%d" % (t + 8 + jj, t + jj)
            for jj in range(8):
                yield "v_sin_f32 v%d, v%d" % (t + 16 + jj, t + jj)
            for d in range(4):
                yield "v_cvt_pk_bf16_f32 v%d, v%d, v%d" % (Cb + d, t + 8 + 2 * d, t + 9 + 2 * d)
            for d in range(4):
                yield "v_cvt_pk_bf16_f32 v%d, v%d, v%d" % (Sb + d, t + 16 + 2 * d, t + 17 + 2 * d)
            for d in range(4):
                yield "v_xor_b32 v%d, %s, v%d" % (Cb + 4 + d, flip, Cb + d)
            for d in range(4):
                yield "v_xor_b32 v%d, %s, v%d" % (Sb + 4 + d, flip, Sb + d)
            for d in range(8):
                yield "v_xor_b32 v%d, 0x80008000, v%d" % (Nb + d, Sb + d)
        for i in range(8):
            yield "v_mul_f32 v%d, v%d, v%d" % (t + i, t + 32 + i, t + 26)
        yield "v_cvt_f32_u32 v%d, s%d" % (t + 29, sT3)
        for i in range(8):
            yield "v_cos_f32 v%d, v%d" % (T1C + i, t + i)
            yield "v_sin_f32 v%d, v%d" % (T1S + i, t + i)
        yield "v_mul_f32 v%d, %s, v%d" % (t + 26, hexf(1.0 / 2048), t + 28)
        for r in range(4):
            yield "v_add_f32 v%d, v%d, v%d" % (t + 8 + r, t + 29, t + 32 + r)
        yield "v_add_f32 v%d, %s, v%d" % (t + 25, hexf(16.0 / 2048), t + 26)
        for r in range(4):
            yield "v_mul_f32 v%d, v%d, v%d" % (t + r, t + 8 + r, t + 26)
        for r in range(4):
            yield "v_mul_f32 v%d, v%d, v%d" % (t + 4 + r, t + 8 + r, t + 25)
        for i in range(8):
            yield "v_cos_f32 v%d, v%d" % (T2C + i, t + i)
            yield "v_sin_f32 v%d, v%d" % (T2S + i, t + i)

    GB = 128

    def ggen():
        t0 = 96
        yield "s_lshl_b32 s%d, s%d, 6" % (sT3, sDB)
        yield "s_lshl4_add_u32 s%d, s%d, s%d" % (sT3, sW, sT3)
        yield "v_add_u32 v%d, s%d, v%d" % (t0, sT3, vC)
        yield "v_lshlrev_b32 v%d, 1, v%d" % (t0 + 2, vQ)
        yield "v_cvt_f32_u32 v%d, v%d" % (t0 + 1, t0)
        yield "v_cvt_f32_u32 v%d, v%d" % (t0 + 2, t0 + 2)
        yield "v_mul_f32 v%d, %s, v%d" % (t0 + 1, hexf(1.0 / 512), t0 + 1)
        yield "v_mul_f32 v%d, %s, v%d" % (t0 + 3, hexf(16.0), t0 + 1)
        for dw in range(4):
            yield "v_add_f32 v%d, %s, v%d" % (t0 + 4 + dw, hexf(float(8 * (dw >> 1) + (dw & 1))), t0 + 2)
        yield "v_fract_f32 v%d, v%d" % (t0 + 3, t0 + 3)
        for dw in range(4):
            yield "v_mul_f32 v%d, v%d, v%d" % (t0 + 4 + dw, t0 + 4 + dw, t0 + 1)
        yield "v_lshlrev_b32 v%d, 31, v%d" % (t0 + 16, vC)
        yield "v_min_u32 v%d, 1, v%d" % (t0 + 17, vQ)
        yield "v_or_b32 v%d, 0x3f800000, v%d" % (t0 + 16, t0 + 16)
        yield "v_sub_u32 v%d, v%d, 1" % (t0 + 17, t0 + 17)
        yield "v_and_b32 v%d, 0xffff0000, v%d" % (t0 + 17, t0 + 17)
        for T in range(16):
            for dw in range(4):
                yield "v_cos_f32 v%d, v%d" % (t0 + 8 + 2 * dw, t0 + 4 + dw)
                yield "v_sin_f32_e64 v%d, -v%d" % (t0 + 9 + 2 * dw, t0 + 4 + dw)
            for dw in range(4):
                yield "v_add_f32 v%d, v%d, v%d" % (t0 + 4 + dw, t0 + 4 + dw, t0 + 3)
            for dw in range(4):
                yield "v_cvt_pk_bf16_f32 v%d, v%d, v%d" % (GB + 4 * T + dw, t0 + 8 + 2 * dw, t0 + 9 + 2 * dw)
            if T == 0:
                yield "v_bfi_b32 v%d, v%d, v%d, v%d" % (GB, t0 + 17, t0 + 16, GB)

    XI, CW, TM, TW, DR, DI, PR, PI = 32, 64, 72, 88, 104, 112, 120, 124

    def xin(pl, v, tt):
        return XI + 4 * ((pl * 2 + v) * 2 + tt)

    def c_inputs():
        e("s_and_b32 s%d, s%d, 1" % (sT0, sW))
        e("s_lshl_b32 s%d, s%d, 3" % (sT0, sT0))
        e("v_add_u32 v19, s%d, v%d" % (sT0, vQ))
        e("v_xor_b32 v30, v19, v%d" % vC)
        e("v_lshlrev_b32 v30, 4, v30")
        e("v_lshl_add_u32 v30, v%d, 8, v30" % vQ)
        e("v_xor_b32 v31, 64, v30")
        e("s_lshl_b32 s%d, s%d, 13" % (sT0, sCC))
        e("s_lshl_b32 s%d, s%d, 11" % (sT1, sW))
        e("s_add_u32 s%d, s%d, s%d" % (sT0, sT0, sT1))
        e("s_add_u32 s%d, s%d, 0x%x" % (sT2, sT0, X1C_OFF))
        e("s_add_u32 m0, s%d, 0x%x" % (sT1, L_C1))
        k.nop(1)
        e("buffer_load_dwordx4 v30, %s, s%d offen sc1 lds" % (srd(SWS), sT2))
        k.vm.issue("cin")
        e("buffer_load_dwordx4 v31, %s, s%d offen offset:1024 sc1 lds" % (srd(SWS), sT2))
        k.vm.issue("cin")
        e("s_add_u32 s%d, s%d, 0x%x" % (sT2, sT0, WT_OFF))
        for v in range(2):
            e("buffer_load_dwordx4 %s, v%d, %s, s%d offen offset:%d sc1" % (vr(208 + 4 * v, 4), vL16, srd(SWS), sT2, v * 1024))
            k.vm.issue("cw")

    def c_block():
        CWL = 208
        e("v_xor_b32 v20, v%d, v%d" % (vQ, vC))
        e("v_lshlrev_b32 v20, 4, v20")
        e("v_lshl_add_u32 v20, v%d, 8, v20" % vC)
        e("v_add_u32 v20, 0x%x, v20" % L_C1)
        e("v_xor_b32 v21, 64, v20")
        e("v_xor_b32 v22, 128, v20")
        e("v_xor_b32 v23, 192, v20")
        e("s_lshr_b32 s%d, s%d, 1" % (sT0, sW))
        e("s_lshl_b32 s%d, s%d, 7" % (sT0, sT0))
        e("s_and_b32 s%d, s%d, 1" % (sT1, sW))
        e("s_lshl3_add_u32 s%d, s%d, s%d" % (sT0, sT1, sT0))
        e("v_xor_b32 v24, s%d, v20" % sT0)
        e("v_xor_b32 v25, 64, v24")
        e("v_lshlrev_b32 v26, 5, v%d" % vC)
        e("v_lshl_add_u32 v26, v%d, 3, v26" % vQ)
        e("s_lshl_b32 s%d, s%d, 10" % (sT0, sW))
        e("v_add_u32 v26, s%d, v26" % sT0)
        e("s_lshl_b32 s%d, s%d, 13" % (sZR, sCC))
        e("s_add_u32 s%d, s%d, 0x%x" % (sZR, sZR, ZT_OFF))
        e("s_add_u32 s%d, s%d, 4096" % (sZI, sZR))
        e("s_mov_b32 s%d, %s" % (sSC, hexf(2.0 ** -19)))
        e("s_cmp_eq_u32 s%d, 0" % sCC)
        e("s_cselect_b32 s%d, 0x%x, s%d" % (sZI, OOB, sZI))
        e("s_cselect_b32 s%d, %s, s%d" % (sSC, hexf(2.0 ** -20), sSC))
        e("s_mov_b32 s%d, 0" % sPL)
        for i in range(16):
            e("v_mul_f32 v%d, s%d, v%d" % (T2C + i, sSC, T2C + i))
        k.wait_vm("cin")
        e("s_barrier")
        k.lab("L_ccol")
        for pl in range(2):
            for v in range(2):
                for tt in range(2):
                    e("ds_read_b128 %s, v%d offset:%d" % (vr(xin(pl, v, tt), 4), 20 + 2 * tt + pl, v * 4096))
        e("s_waitcnt lgkmcnt(0)")
        k.lg.clear()
        e("s_cmp_eq_u32 s%d, 0" % sCC)
        e("s_cbranch_scc1 L_creal")
        k.lab("L_cplx")
        tail.append("L_creal:")
        tail.append("    s_cmp_eq_u32 s%d, 0" % sPL)
        tail.append("    s_cbranch_scc1 L_c0")
        for i in range(16):
            tail.append("    v_mov_b32 v%d, v%d" % (XI + i, XI + 16 + i))
        tail.append("L_c0:")
        for i in range(16):
            tail.append("    v_mov_b32 v%d, 0" % (XI + 16 + i))
        tail.append("    s_nop 1")
        tail.append("    s_branch L_cplx")
        for v in range(2):
            dr, di = vr(DR + 4 * v, 4), vr(DI + 4 * v, 4)
            for tt in range(2):
                mfma(dr, vr(xin(0, v, tt), 4), vr(C64 + 4 * tt, 4), dr if tt else "0")
                mfma(di, vr(xin(1, v, tt), 4), vr(C64 + 4 * tt, 4), di if tt else "0")
                mfma(dr, vr(xin(1, v, tt), 4), vr(S64 + 4 * tt, 4))
                mfma(di, vr(xin(0, v, tt), 4), vr(N64 + 4 * tt, 4))

        def cmul(cr, ci, conj):
            for h in range(2):
                for i in range(4 * h, 4 * h + 4):
                    e("v_mul_f32 v%d, v%d, v%d" % (TM + i, DR + i, cr + i))
                    e("v_mul_f32 v%d, v%d, v%d" % (TM + 8 + i, DI + i, cr + i))
                for i in range(4 * h, 4 * h + 4):
                    if conj:
                        e("v_fma_f32 v%d, v%d, v%d, v%d" % (TM + i, DI + i, ci + i, TM + i))
                        e("v_fma_f32 v%d, -v%d, v%d, v%d" % (TM + 8 + i, DR + i, ci + i, TM + 8 + i))
                    else:
                        e("v_fma_f32 v%d, -v%d, v%d, v%d" % (TM + i, DI + i, ci + i, TM + i))
                        e("v_fma_f32 v%d, v%d, v%d, v%d" % (TM + 8 + i, DR + i, ci + i, TM + 8 + i))
            for d in range(4):
                e("v_cvt_pk_bf16_f32 v%d, v%d, v%d" % (PR + d, TM + 2 * d, TM + 2 * d + 1))
                e("v_cvt_pk_bf16_f32 v%d, v%d, v%d" % (PI + d, TM + 8 + 2 * d, TM + 9 + 2 * d))
            k.nop(2)
        cmul(T1C, T1S, True)
        pr, pi = vr(PR, 4), vr(PI, 4)
        for v in range(2):
            dr, di = vr(DR + 4 * v, 4), vr(DI + 4 * v, 4)
            mfma(dr, vr(C32 + 4 * v, 4), pr, "0")
            mfma(di, vr(C32 + 4 * v, 4), pi, "0")
            mfma(dr, vr(S32 + 4 * v, 4), pi)
            mfma(di, vr(N32 + 4 * v, 4), pr)
        k.wait_vm("cw")
        for i in range(8):
            e("v_lshlrev_b32 v%d, 16, v%d" % (TW + i, CWL + i))
            e("v_and_b32 v%d, 0xffff0000, v%d" % (TW + 8 + i, CWL + i))
        cmul(TW, TW + 8, False)
        for v in range(2):
            dr, di = vr(DR + 4 * v, 4), vr(DI + 4 * v, 4)
            mfma(dr, pr, vr(C32 + 4 * v, 4), "0")
            mfma(di, pi, vr(C32 + 4 * v, 4), "0")
            mfma(dr, pi, vr(N32 + 4 * v, 4))
            mfma(di, pr, vr(S32 + 4 * v, 4))
        k.nop(4)
        cmul(T2C, T2S, False)
        for v in range(2):
            e("ds_write_b64 v24, %s offset:%d" % (vr(PR + 2 * v, 2), 8192 + v * 4096))
            e("ds_write_b64 v25, %s offset:%d" % (vr(PI + 2 * v, 2), 8192 + v * 4096))
        e("s_waitcnt lgkmcnt(0)")
        e("s_barrier")
        for v in range(2):
            for tt in range(2):
                for pl in range(2):
                    e("ds_read_b128 %s, v%d offset:%d" % (vr(xin(pl, v, tt), 4), 20 + 2 * tt + pl, 8192 + v * 4096))
                    k.lg.issue(("cy", v, tt))
        for v in range(2):
            dr, di = vr(DR + 4 * v, 4), vr(DI + 4 * v, 4)
            for tt in range(2):
                k.wait_lg(("cy", v, tt))
                mfma(dr, vr(C64 + 4 * tt, 4), vr(xin(0, v, tt), 4), dr if tt else "0")
                mfma(di, vr(C64 + 4 * tt, 4), vr(xin(1, v, tt), 4), di if tt else "0")
                mfma(dr, vr(N64 + 4 * tt, 4), vr(xin(1, v, tt), 4))
                mfma(di, vr(S64 + 4 * tt, 4), vr(xin(0, v, tt), 4))
        for v in range(2):
            if v:
                k.nop(4)
            for d in range(2):
                e("v_cvt_pk_bf16_f32 v%d, v%d, v%d" % (PR + 2 * v + d, DR + 4 * v + 2 * d, DR + 4 * v + 2 * d + 1))
                e("v_cvt_pk_bf16_f32 v%d, v%d, v%d" % (PI + 2 * v + d, DI + 4 * v + 2 * d, DI + 4 * v + 2 * d + 1))
            e("buffer_store_dwordx2 %s, v26, %s, s%d offen offset:%d sc1" % (vr(PR + 2 * v, 2), srd(SWS), sZR, v * 512))
            k.vm.issue("zst")
            e("buffer_store_dwordx2 %s, v26, %s, s%d offen offset:%d sc1" % (vr(PI + 2 * v, 2), srd(SWS), sZI, v * 512))
            k.vm.issue("zst")
        e("s_or_b32 s%d, s%d, s%d" % (sT0, sCC, sPL))
        e("s_cbranch_scc0 L_csecond")
        tail.append("L_csecond:")
        tail.append("    s_mov_b32 s%d, 1" % sPL)
        tail.append("    s_add_u32 s%d, s%d, 4096" % (sZR, sZR))
        tail.append("    s_mov_b32 s%d, 0" % sCNT)
        tail.append("    s_add_u32 s%d, s%d, 0x%x" % (sT4, sFXC, FX_OFF + 7 * 2048))
        tail.append("L_spin256:")
        tail.append("    " + poll_ld(vFL, "s%d" % sT4, 30, 1))
        tail.append("    s_waitcnt vmcnt(0)")
        for s_ in poll_cmp(30, 1, None):
            tail.append("    " + s_)
        tail.append("    s_cbranch_scc0 L_got256")
        tail.append("    s_add_u32 s%d, s%d, 1" % (sCNT, sCNT))
        tail.append("    s_cmp_lt_u32 s%d, 0x40000" % sCNT)
        tail.append("    s_cbranch_scc1 L_spin256")
        tail.append("L_got256:")
        tail.append("    s_lshl_b32 s%d, s%d, 11" % (sT2, sW))
        tail.append("    s_add_u32 s%d, s%d, 0x%x" % (sT2, sT2, WT_OFF + 256 * 8192))
        for v in range(2):
            tail.append("    buffer_load_dwordx4 %s, v%d, %s, s%d offen offset:%d sc1" % (vr(CWL + 4 * v, 4), vL16, srd(SWS), sT2, v * 1024))
        tail.append("    s_waitcnt vmcnt(0)")
        tail.append("    s_barrier")
        tail.append("    s_branch L_ccol")

    def zdma():
        e("s_lshl_b32 s%d, s%d, 19" % (sDT, sW))
        e("s_lshl_b32 s%d, s%d, 10" % (sT1, sWP))
        e("s_add_u32 s%d, s%d, s%d" % (sDT, sDT, sT1))
        e("s_lshl_b32 s%d, s%d, 7" % (sT1, sA))
        e("s_add_u32 s%d, s%d, s%d" % (sDT, sDT, sT1))
        e("s_add_u32 s%d, s%d, 0x%x" % (sDT, sDT, ZT_OFF - 32768))

        def item(ee):
            def f():
                e("s_add_u32 m0, s%d, %d" % (sM0W, LB + ee * 1024))
                e("s_add_u32 s%d, s%d, 32768" % (sDT, sDT))
                e("buffer_load_dwordx4 v%d, %s, s%d offen sc1 lds" % (vDZ, srd(SWS), sDT))
                k.vm.issue("Z")
            return f
        return [item(ee) for ee in range(16)]

    cs = cconst()
    for s_ in cs:
        e(s_)
    fs(3, 8)
    poll_issue("pfx", vFL, "s%d" % sFXC, 31)
    if FS == 3:
        k.wait_vm("pha")
        k.vm.done.add("pha")
        fs(3, 9)
    poll_check("pha", vFH, "s%d" % sFHC, 30, mask=maskF)
    fs(3, 10)
    e("s_add_u32 s%d, s%d, 0x%x" % (sT0, sFH, FHB_OFF - FHA_OFF))
    publish("s%d" % sT0)
    k.stamp(8)
    poll_check("pfx", vFL, "s%d" % sFXC, 31)
    fs(3, 11)
    c_inputs()
    for i in range(4):
        run(hload(i))
    fs(3, 12)
    k.wait_vm(("W2", 0))
    run(w2_read_items(0))
    sch["gap"] = P("GAP3", 2)
    CSTEP = P("CSTEP", 2)
    ZP = P("ZP", 12)
    bg = None
    sFZC = sFXC
    for i in range(14):
        if i == CSTEP:
            k.stamp(9)
            fs(3, 13)
            c_block()
            k.stamp(10)
            sch["bg"] = ggen()
        if i == 1:
            e("s_add_u32 s%d, s%d, 0x%x" % (sFHC, sFHC, FHB_OFF - FHA_OFF))
            poll_issue("phb", vFH, "s%d" % sFHC, 27)
        if i == CSTEP + P("ZPUB", 2):
            k.wait_vm("zst")
            e("s_lshr_b32 s%d, s%d, 2" % (sT0, sCC))
            e("s_lshl_b32 s%d, s%d, 6" % (sT1, sW))
            e("s_add_u32 s%d, s%d, s%d" % (sT0, sT0, sT1))
            e("s_lshl_b32 s%d, s%d, 7" % (sT0, sT0))
            e("s_and_b32 s%d, s%d, 3" % (sT1, sCC))
            e("s_lshl2_add_u32 s%d, s%d, s%d" % (sT0, sT1, sT0))
            e("s_add_u32 s%d, s%d, 0x%x" % (sT0, sT0, FZ_OFF))
            publish("s%d" % sT0)
        if i == ZP - 1:
            e("s_lshl2_add_u32 s%d, s%d, s%d" % (sFZC, sWP, sW))
            e("s_lshl_b32 s%d, s%d, 11" % (sFZC, sFZC))
            e("s_add_u32 s%d, s%d, 0x%x" % (sFZC, sFZC, FZ_OFF))
            poll_issue("pz", vFZ, "s%d" % sFZC, 20)
        if i == ZP:
            poll_check("pz", vFZ, "s%d" % sFZC, 20)
            side.extend(zdma())
        k.wait_lg(("W2R", i))
        if i + 4 < 14:
            if i + 4 == 7:
                poll_check("phb", vFH, "s%d" % sFHC, 27, mask=maskF)
            side.extend(w2_dma(i + 4))
            side.extend(hload(i + 4))
        k.wait_vm([("H", i)] + ([("W2", i + 1)] if i + 1 < 14 else []))
        if i + 1 < 14:
            sch["lds"].extend(w2_read_items(i + 1))
        for l in range(4):
            for pt in range(4):
                c = ar(aAY + (l * 4 + pt) * 4, 4)
                mf(c, ar(aAF2 + (i & 1) * 16 + 4 * l, 4), ar(aHR + (i % NHS) * 16 + 4 * pt, 4), c if i else "0")
        if i < ZP:
            flush_side()
    flush_side()
    for s_ in sch["bg"]:
        e(s_)
    sch["bg"] = None
    k.stamp(11)

    e("v_xor_b32 v19, v%d, v%d" % (vQ, vC))
    e("v_lshlrev_b32 v19, 4, v19")
    e("v_lshl_add_u32 v19, v%d, 8, v19" % vC)
    e("v_add_u32 v24, s%d, v19" % sM0W)
    for dt in range(1, 4):
        e("v_xor_b32 v%d, %d, v24" % (24 + dt, 64 * dt))
    e("s_lshl_b32 s%d, s%d, 6" % (sT0, sW))
    e("v_xor_b32 v28, s%d, v19" % sT0)
    e("v_add_u32 v28, 0x%x, v28" % LS)
    for dt in range(4):
        for pt in range(4):
            e("ds_write_b128 v%d, %s offset:%d" % (24 + dt, ar(aAY + (dt * 4 + pt) * 4, 4), pt * 4096))
    e("v_lshrrev_b32 v19, 3, v%d" % vLANE)
    e("v_and_b32 v29, 7, v%d" % vLANE)
    e("v_lshlrev_b32 v30, 15, v19")
    e("v_lshl_add_u32 v30, v29, 4, v30")
    e("v_lshlrev_b32 v29, 1, v29")
    e("v_xor_b32 v29, v29, v19")
    e("v_lshlrev_b32 v29, 4, v29")
    e("v_lshl_add_u32 v29, v19, 8, v29")
    e("s_lshl_b32 s%d, s%d, 12" % (sT0, sW))
    e("v_add_u32 v10, s%d, v29" % sT0)
    e("v_xor_b32 v11, 16, v10")
    e("v_xor_b32 v12, 0x880, v10")
    e("v_xor_b32 v13, 16, v12")
    sXO = sFH
    e("s_lshl_b32 s%d, s%d, 19" % (sXO, sWP))
    e("s_lshl2_add_u32 s%d, s%d, s%d" % (sT0, sA, sW))
    e("s_lshl_b32 s%d, s%d, 10" % (sT0, sT0))
    e("s_add_u32 s%d, s%d, s%d" % (sXO, sXO, sT0))
    e("s_add_u32 s%d, s%d, s%d" % (sXO, sXO, sW2B))
    e("s_add_u32 s%d, s%d, 0x40000" % (sT4, sXO))
    XV = 64
    for ee in range(2):
        e("buffer_load_dwordx4 %s, v30, %s, s%d offen" % (vr(XV + 4 * ee, 4), srd(SX), sT4 if ee else sXO))
        k.vm.issue("xe")
    e("v_add_u32 v19, 0x%x, v%d" % (LB, vZB))
    for pt in range(4):
        e("v_xor_b32 v%d, %d, v19" % (TR2[pt], 32 * pt))
    k.wait_vm("Z")
    e("s_waitcnt lgkmcnt(0)")
    k.lg.clear()
    e("s_barrier")
    k.stamp(12)
    AS, YP, U2, Y = 96, 192, 48, 32
    aZF = 0

    def zrd(T):
        for pt in range(4):
            for hh in range(2):
                r = aZF + ((T & 1) * 4 + pt) * 4 + 2 * hh
                e("ds_read_b64_tr_b16 %s, v%d offset:%d" % (ar(r, 2), TR2[pt], T * 4096 + hh * 2048))
                k.lg.issue(("ZR", T, pt))
    zrd(0)
    for src in range(4):
        for i in range(4):
            e("ds_read_b128 %s, v%d offset:%d" % (vr(YP + 16 * src + 4 * i, 4), 10 + i, src * 16384))
            k.lg.issue("yp")

    def silu():
        for i in range(16):
            yield "v_add_f32 v%d, v%d, v%d" % (Y + i, YP + i, YP + 16 + i)
            yield "v_add_f32 v%d, v%d, v%d" % (YP + 32 + i, YP + 32 + i, YP + 48 + i)
        for i in range(16):
            yield "v_add_f32 v%d, v%d, v%d" % (Y + i, Y + i, YP + 32 + i)
        for i in range(16):
            yield "v_mul_f32 v%d, %s, v%d" % (U2 + i, hexf(-1.4426950408889634), Y + i)
        for i in range(16):
            yield "v_exp_f32 v%d, v%d" % (U2 + i, U2 + i)
        for i in range(16):
            yield "v_add_f32 v%d, 1.0, v%d" % (U2 + i, U2 + i)
        for i in range(16):
            yield "v_rcp_f32 v%d, v%d" % (U2 + i, U2 + i)
        for i in range(16):
            yield "v_mul_f32 v%d, v%d, v%d" % (Y + i, Y + i, U2 + i)
    for T in range(16):
        for pt in range(4):
            if T + 1 < 16 and pt == 1:
                zrd(T + 1)
            k.wait_lg(("ZR", T, pt))
            if T == 1 and pt == 0:
                sch["bg"] = silu()
            c = vr(AS + 4 * pt, 4)
            mf(c, vr(GB + 4 * T, 4), ar(aZF + ((T & 1) * 4 + pt) * 4, 4), c if T else "0")
    n = 0
    for s_ in sch["bg"]:
        e(s_)
        n += 1
    sch["bg"] = None
    k.wait_vm("xe")
    for i in range(8):
        e("v_lshlrev_b32 v%d, 16, v%d" % (U2 + 2 * i, XV + i))
        e("v_and_b32 v%d, 0xffff0000, v%d" % (U2 + 2 * i + 1, XV + i))
        if i == 3:
            for pt in range(4):
                e("ds_write_b128 v28, %s offset:%d" % (vr(AS + 4 * pt, 4), pt * 4096))
    for i in range(4):
        e("v_add_u32 v%d, 0x%x, v%d" % (10 + i, LS, 10 + i))
    e("s_waitcnt lgkmcnt(0)")
    e("s_barrier")
    for i in range(4):
        e("ds_read_b128 %s, v%d" % (vr(YP + 4 * i, 4), 10 + i))
        k.lg.issue(("sr", i))
    for ee in range(2):
        for i in range(8 * ee, 8 * ee + 8):
            if i % 4 == 0:
                k.wait_lg(("sr", i // 4))
            e("v_fmac_f32 v%d, v%d, v%d" % (U2 + i, Y + i, YP + i))
        for d in range(4):
            e("v_cvt_pk_bf16_f32 v%d, v%d, v%d" % (72 + 4 * ee + d, U2 + 8 * ee + 2 * d, U2 + 8 * ee + 2 * d + 1))
        e("buffer_store_dwordx4 %s, v30, %s, s%d offen" % (vr(72 + 4 * ee, 4), srd(SOUT), sT4 if ee else sXO))
    e("s_or_b32 s%d, s2, s%d" % (sT0, sW))
    e("s_cbranch_scc1 L_noep")
    e("s_mov_b32 s%d, 0x%x" % (sT0, EPOCH_OFF))
    publish("s%d" % sT0)
    k.lab("L_noep")
    k.stamp(13)
    if DIAG:
        e("v_mov_b32 v2, s%d" % sW)
    k.stamp_flush(SWS, 0, 2, 8)
    k.lab("L_done")
    e("s_endpgm")
    k.lines += tail
    k.lab("L_end")
    return k


HEADER = open(os.path.join(os.path.dirname(os.path.abspath(__file__)), "header.txt")).read()


def main(out):
    k = gen()
    s = HEADER
    s += "; @launch grid=(256,1,1) block=(256,1,1) lds=163840\n"
    s += '.amdgcn_target "amdgcn-amd-amdhsa--gfx950"\n.text\n'
    s += k.text()
    s += '.section .rodata,"a"\n'
    s += descriptor(k.name, 256, 102 if DIAG else 64, agprs=256)
    open(out, "w").write(s)


if __name__ == "__main__":
    main(sys.argv[1] if len(sys.argv) > 1 else "v5.s")
```

```python
import sys, os
sys.path.insert(0, os.path.dirname(os.path.abspath(__file__)))
from asmlib import *

NAME = "recurrent_scan__spectral_gfnet__dense_activation_relu__prompt_kernel"


def P(name, default):
    return int(os.environ.get(name, default))


X1C_OFF = 0x0200000
WT_OFF = 0x0400000
H_OFF = 0x0800000
ZT_OFF = 0x1000000
FX_OFF = 0x0000000
FHA_OFF = 0x0008000
FHB_OFF = 0x0010000
FZ_OFF = 0x0018000
EPOCH_OFF = 0x0020000
WS_BYTES = 0x1800000 if DIAG else 0x1200000
OOB = 0x7f000000
TAGC = 0x9E3779B9

X_BYTES = 2048 * 512 * 2
W_BYTES = 2048 * 257 * 2
W1_BYTES = 512 * 1792 * 2

SX, SWR, SWI, SW1, SW2, SOUT, SWS = 12, 16, 20, 24, 28, 32, 36
sW, sPB, sCBK, sF0, sONE, sR, sTAG, sA, sWP, sDB, sISJ, sXB = 3, 4, 5, 6, 7, 8, 9, 10, 11, 40, 41, 42
sT0, sT1, sT2, sT3, sT4 = 43, 44, 45, 46, 47
sWOFF, sCNT = 48, 49
sXT, sYT, sGT = 50, 51, 52
sHT, sDT = 0, 1
sFX, sFH, sCOL, sRS, sM0W = 59, 60, 61, 62, 63

LA, LB, LS = 0, 65536, 131072
L_CS = LS
L_C1 = LS + 16384

vLANE, vL16, vC, vQ, vTAG = 1, 2, 3, 4, 5
XF = 128


def ar(a, n=1):
    return "a%d" % a if n == 1 else "a[%d:%d]" % (a, a + n - 1)


def srd(n):
    return "s[%d:%d]" % (n, n + 3)


def gen():
    k = K(NAME)
    e = k.e
    tail = []
    FS = P("FS", 0)
    _stamp = k.stamp

    ENC = P("ENC", 0)

    def stamp_n(i, real=False):
        if ENC:
            if i == 1 or i == ENC:
                _stamp(i, True)
            return
        if FS and 2 <= i <= 13:
            return
        _stamp(i, real)
    k.stamp = stamp_n

    def fs(mode, i):
        if FS == mode:
            _stamp(i)

    from collections import deque
    side = deque()
    sch = {"gap": 3, "n": 0, "bg": None, "lds": deque()}

    def mfma(d, a, b, c=None):
        e("v_mfma_f32_16x16x32_bf16 %s, %s, %s, %s" % (d, a, b, c if c is not None else d))

    def mf(d, a, b, c=None):
        mfma(d, a, b, c)
        sch["n"] += 1
        if sch["lds"]:
            sch["lds"].popleft()()
        if side and sch["n"] % sch["gap"] == 0:
            side.popleft()()
        elif sch["bg"] is not None:
            for _ in range(2):
                s_ = next(sch["bg"], None)
                if s_:
                    e(s_)
                    if s_.startswith(("v_cos", "v_sin", "v_exp", "v_rcp")):
                        break

    def flush_side():
        while sch["lds"]:
            sch["lds"].popleft()()
        while side:
            side.popleft()()

    def run(items):
        for f in items:
            f()

    def bf16_round(v):
        e("v_cvt_pk_bf16_f32 v%d, v%d, v%d" % (v, v, v))
        e("v_lshlrev_b32 v%d, 16, v%d" % (v, v))

    def publish(soff):
        e("s_mov_b64 exec, 1")
        e("buffer_store_dword v%d, off, %s, %s sc1" % (vTAG, srd(SWS), soff))
        k.vm.issue("flag")
        e("s_mov_b64 exec, -1")

    pollno = [0]

    def poll_ld(vaddr, soff, vt, width):
        if width == 1:
            return "buffer_load_dword v%d, v%d, %s, %s offen sc1" % (vt, vaddr, srd(SWS), soff)
        return "buffer_load_dwordx4 %s, v%d, %s, %s offen sc1" % (vr(vt, 4), vaddr, srd(SWS), soff)

    def poll_cmp(vt, width, mask):
        o = []
        if width == 1:
            o.append("v_cmp_ne_u32 vcc, v%d, v%d" % (vt, vTAG))
        else:
            for i in range(4):
                o.append("v_xor_b32 v%d, v%d, v%d" % (vt + i, vt + i, vTAG))
            o.append("v_or3_b32 v%d, v%d, v%d, v%d" % (vt, vt, vt + 1, vt + 2))
            o.append("v_or_b32 v%d, v%d, v%d" % (vt, vt, vt + 3))
            o.append("v_cmp_ne_u32 vcc, 0, v%d" % vt)
        if mask is not None:
            o.append("s_and_b32 vcc_lo, vcc_lo, 0x%x" % (mask & 0xffffffff))
            o.append("s_and_b32 vcc_hi, vcc_hi, 0x%x" % (mask >> 32))
        o.append("s_cmp_lg_u64 vcc, 0")
        return o

    def poll_issue(tag, vaddr, soff, vt, width=1):
        e(poll_ld(vaddr, soff, vt, width))
        k.vm.issue(tag)

    def poll_check(tag, vaddr, soff, vt, width=1, mask=None):
        n = pollno[0]
        pollno[0] += 1
        k.wait_vm(tag)
        for s_ in poll_cmp(vt, width, mask):
            e(s_)
        e("s_cbranch_scc1 L_slow%d" % n)
        k.lab("L_back%d" % n)
        tail.append("L_slow%d:" % n)
        tail.append("    s_mov_b32 s%d, 0" % sCNT)
        tail.append("L_spin%d:" % n)
        if P("SLP", 4):
            tail.append("    s_sleep %d" % P("SLP", 4))
        tail.append("    " + poll_ld(vaddr, soff, vt, width))
        tail.append("    s_waitcnt vmcnt(0)")
        for s_ in poll_cmp(vt, width, mask):
            tail.append("    " + s_)
        tail.append("    s_cbranch_scc0 L_back%d" % n)
        tail.append("    s_add_u32 s%d, s%d, 1" % (sCNT, sCNT))
        tail.append("    s_cmp_lt_u32 s%d, 0x40000" % sCNT)
        tail.append("    s_cbranch_scc1 L_spin%d" % n)
        tail.append("    s_branch L_back%d" % n)

    e("s_cmp_ge_u32 s2, 256")
    e("s_cbranch_scc1 L_done")
    k.stamp(0)
    k.stamp(1, real=True)
    e("s_load_dwordx2 s[%d:%d], s[0:1], 0" % (SX, SX + 1))
    e("s_load_dwordx2 s[%d:%d], s[0:1], 32" % (SW1, SW1 + 1))
    e("s_load_dwordx2 s[%d:%d], s[0:1], 64" % (SWS, SWS + 1))
    e("s_load_dwordx2 s[%d:%d], s[0:1], 8" % (SWR, SWR + 1))
    e("s_load_dwordx2 s[%d:%d], s[0:1], 16" % (SWI, SWI + 1))
    e("s_load_dwordx2 s[%d:%d], s[0:1], 40" % (SW2, SW2 + 1))
    e("s_load_dwordx2 s[%d:%d], s[0:1], 48" % (SOUT, SOUT + 1))
    if P("CPF", 1):
        e("s_getpc_b64 s[%d:%d]" % (sT1, sT2))
        k.lab("L_pc")
        e("v_lshlrev_b32 v20, 7, v0")
        e("v_min_u32 v20, L_end-L_pc-4, v20")
        e("v_mov_b32 v21, s%d" % sT2)
        e("v_add_co_u32 v20, vcc, s%d, v20" % sT1)
        k.nop(2)
        e("v_addc_co_u32 v21, vcc, 0, v21, vcc")
        e("global_load_dword a59, v[20:21], off")
        k.vm.issue("touch")
    for s_, nb in ((SX, X_BYTES), (SWR, W_BYTES), (SWI, W_BYTES), (SW1, W1_BYTES), (SW2, W1_BYTES), (SOUT, X_BYTES), (SWS, WS_BYTES)):
        e("s_mov_b32 s%d, 0x%x" % (s_ + 2, nb))
        e("s_mov_b32 s%d, 0x00020000" % (s_ + 3))
    e("v_lshrrev_b32 v19, 6, v0")
    e("v_and_b32 v%d, 63, v0" % vLANE)
    e("v_and_b32 v%d, 15, v0" % vC)
    e("v_readfirstlane_b32 s%d, v19" % sW)
    e("v_bfe_u32 v%d, v0, 4, 2" % vQ)
    e("v_lshlrev_b32 v%d, 4, v%d" % (vL16, vLANE))
    e("s_and_b32 s%d, s2, 7" % sA)
    e("s_lshr_b32 s%d, s2, 6" % sWP)
    e("s_bfe_u32 s%d, s2, 0x30003" % sDB)
    e("s_lshr_b32 s%d, s%d, 1" % (sPB, sA))
    e("s_lshl2_add_u32 s%d, s%d, s%d" % (sPB, sPB, sWP))
    e("s_and_b32 s%d, s%d, 1" % (sT0, sA))
    e("s_lshl3_add_u32 s%d, s%d, s%d" % (sCBK, sT0, sDB))
    e("s_lshl1_add_u32 s%d, s%d, s%d" % (sR, sWP, sDB))
    e("s_and_b32 s%d, s%d, 7" % (sR, sR))
    e("s_sub_u32 s%d, s%d, s%d" % (sF0, sCBK, sT0))
    e("s_lshl_b32 s%d, s%d, 8" % (sF0, sF0))
    e("s_cmp_eq_u32 s%d, 7" % sDB)
    e("s_cselect_b32 s%d, 1, 0" % sISJ)
    e("s_cselect_b32 s%d, 0x%x, s%d" % (sF0, 0x08000000, sF0))
    e("s_mov_b32 s%d, 0x3f803f80" % sONE)
    e("s_and_b32 s%d, s%d, 1" % (sXB, sW))
    e("s_lshl_b32 s%d, s%d, 20" % (sXB, sXB))
    e("s_lshr_b32 s%d, s%d, 1" % (sT2, sW))
    e("s_lshl1_add_u32 s%d, s%d, s%d" % (sT1, sPB, sT2))
    e("s_lshl_b32 s%d, s%d, 10" % (sT1, sT1))
    e("s_add_u32 s%d, s%d, s%d" % (sXB, sXB, sT1))
    vXA = 6
    vD1 = 8
    e("v_lshrrev_b32 v10, 3, v%d" % vLANE)
    e("v_and_b32 v12, 7, v%d" % vLANE)
    e("v_xor_b32 v6, v12, v%d" % vQ)
    e("v_lshlrev_b32 v6, 4, v6")
    e("v_lshl_add_u32 v6, v10, 15, v6")
    e("v_xor_b32 v7, 64, v6")
    e("v_add_u32 v7, 0x40000, v7")
    e("v_lshl_add_u32 v11, v19, 4, v10")
    e("v_mul_u32_u24 v11, 3584, v11")
    e("v_and_b32 v13, 1, v%d" % vQ)
    e("v_lshlrev_b32 v13, 1, v13")
    e("v_xor_b32 v13, v13, v12")
    e("v_lshl_add_u32 v8, v13, 4, v11")
    e("v_xor_b32 v13, 4, v13")
    e("v_lshl_add_u32 v9, v13, 4, v11")
    e("v_add_u32 v9, %d, v9" % (8 * 3584))
    e("s_lshl_b32 s%d, s%d, 11" % (sM0W, sW))
    e("s_waitcnt lgkmcnt(0)")
    e("s_load_dword s%d, s[%d:%d], 0x%x" % (sTAG, SWS, SWS + 1, EPOCH_OFF))

    def X(u, T):
        return ar(XF + (u * 16 + T) * 4, 4)

    XSLOT = [LS, LS + 16384, LB + 32768, LB + 49152, LS, LS + 16384, LS, LS + 16384]

    def xload(kk):
        def item(ee):
            def f():
                e("s_lshl1_add_u32 m0, s%d, %d" % (sM0W, XSLOT[kk] + ee * 1024))
                if ee == 0:
                    e("s_add_u32 s%d, s%d, %d" % (sXT, sR, kk))
                    e("s_and_b32 s%d, s%d, 7" % (sXT, sXT))
                    e("s_lshl_b32 s%d, s%d, 7" % (sXT, sXT))
                    e("s_add_u32 s%d, s%d, s%d" % (sXT, sXT, sXB))
                elif ee == 2:
                    e("s_add_u32 s%d, s%d, 0x80000" % (sXT, sXT))
                else:
                    k.nop(1)
                e("buffer_load_dwordx4 v%d, %s, s%d offen lds" % (vXA + (ee & 1), srd(SX), sXT))
                k.vm.issue(("X", kk))
            return f
        return [item(ee) for ee in range(4)]

    vXR = 20

    def xread(kk):
        items = []
        for u in range(2):
            for ks in range(2):
                def f(u=u, ks=ks):
                    e("ds_read_b128 %s, v%d offset:%d" % (X(u, 2 * kk + ks), vXR + ks, XSLOT[kk] - (LB + 32768) + u * 2048))
                    k.lg.issue(("XR", kk))
                items.append(f)
        return items

    def w1dma(reg, kk):
        off = " offset:128" if reg else ""
        lb = (LB if reg else LA) + kk * 8192 - (128 if reg else 0)

        def f0():
            e("s_add_u32 s%d, s%d, %d" % (sYT, sR, kk))
            e("s_and_b32 s%d, s%d, 7" % (sYT, sYT))
            e("s_mul_i32 s%d, s%d, %d" % (sYT, sYT, 64 * 3584))
            e("s_add_u32 m0, s%d, %d" % (sM0W, lb))
            e("s_add_u32 s%d, s%d, s%d" % (sYT, sYT, sF0))
            e("buffer_load_dwordx4 v%d, %s, s%d offen%s lds" % (vD1, srd(SW1), sYT, off))
            k.vm.issue(("W1", reg, kk))

        def f1():
            e("s_add_u32 m0, s%d, %d" % (sM0W, lb + 1024))
            k.nop(1)
            e("buffer_load_dwordx4 v%d, %s, s%d offen%s lds" % (vD1 + 1, srd(SW1), sYT, off))
            k.vm.issue(("W1", reg, kk))
        return [f0, f1]

    run(xload(0))
    run(w1dma(0, 0))
    run(w1dma(0, 1))
    run(xload(1))
    if P("TOUCH", 0):
        e("v_lshlrev_b32 v19, 21, v%d" % vLANE)
        e("v_add_u32 v19, 0x%x, v19" % 0x5000)
        e("s_mov_b64 exec, 0x1ff")
        e("buffer_load_dword a57, v19, %s, 0 offen sc1" % srd(SWS))
        k.vm.issue("touch")
        e("s_mov_b64 exec, 1")
        e("buffer_load_dword a58, off, %s, 0 sc1" % srd(SOUT))
        k.vm.issue("touch")
        e("s_mov_b64 exec, -1")
    vWL, vWS = 14, 15
    e("v_mul_u32_u24 v14, 257, v12")
    e("v_add_lshl_u32 v14, v14, v10, 1")
    e("v_lshlrev_b32 v15, 13, v10")
    e("v_lshl_add_u32 v15, v12, 4, v15")
    e("s_lshl2_add_u32 s%d, s%d, s%d" % (sRS, sPB, sW))
    e("s_lshr_b32 s%d, s%d, 4" % (sT1, sRS))
    e("s_lshl_b32 s%d, s%d, 4" % (sT1, sT1))
    e("s_and_b32 s%d, s%d, 1" % (sT2, sRS))
    e("s_lshl3_add_u32 s%d, s%d, s%d" % (sT1, sT2, sT1))
    e("s_bfe_u32 s%d, s%d, 0x30001" % (sT2, sRS))
    e("s_lshl_b32 s%d, s%d, 8" % (sT2, sT2))
    e("s_add_u32 s%d, s%d, s%d" % (sT1, sT1, sT2))
    e("s_mul_i32 s%d, s%d, 514" % (sWOFF, sT1))
    k.stamp(2)

    aWG = 40

    def wgather(colbytes_expr, dst, tag, kind="a"):
        for r in range(4):
            if r:
                e("s_add_u32 s%d, s%d, 32896" % (sT0, sT0))
            e("buffer_load_ushort %s%d, v%d, %s, s%d offen offset:%d" % (kind, dst + r, vWL, srd(SWR), sT0, colbytes_expr))
            k.vm.issue(tag)
            e("buffer_load_ushort %s%d, v%d, %s, s%d offen offset:%d" % (kind, dst + 4 + r, vWL, srd(SWI), sT0, colbytes_expr))
            k.vm.issue(tag)

    WGV = 208

    def wg_items():
        items = []
        for r in range(4):
            for arr, sr_ in ((0, SWR), (1, SWI)):
                def f(r=r, arr=arr, sr_=sr_):
                    if arr == 0:
                        if r == 0:
                            e("s_lshl_b32 s%d, s%d, 5" % (sGT, sCBK))
                            e("s_add_u32 s%d, s%d, s%d" % (sGT, sGT, sWOFF))
                        else:
                            e("s_add_u32 s%d, s%d, 32896" % (sGT, sGT))
                    for tl in range(2):
                        e("buffer_load_ushort v%d, v%d, %s, s%d offen offset:%d" % (WGV + 8 * tl + 4 * arr + r, vWL, srd(sr_), sGT, 16 * tl))
                        k.vm.issue("wg")
                items.append(f)
        return items

    PA, FB, ACC = 32, 64, 96
    aAF, aONES, aCS = 0, 32, 36

    def fgen(tl):
        t = ACC
        e("s_lshl_b32 s%d, s%d, 5" % (sT0, sCBK))
        e("v_add_u32 v%d, s%d, v%d" % (t, sT0, vC))
        if tl:
            e("v_add_u32 v%d, 16, v%d" % (t, t))
        e("v_lshrrev_b32 v%d, 1, v%d" % (t + 1, t))
        e("v_and_b32 v%d, 1, v%d" % (t + 2, t))
        e("v_cvt_f32_u32 v%d, v%d" % (t + 2, t + 2))
        e("v_mul_f32 v%d, %s, v%d" % (t + 2, hexf(0.25), t + 2))
        if tl == 0:
            e("v_cmp_eq_u32 vcc, 1, v%d" % t)
            e("v_mov_b32 v%d, 256" % (t + 3))
        e("s_lshl_b32 s%d, s%d, 6" % (sT0, sR))
        if tl == 0:
            e("v_cndmask_b32 v%d, v%d, v%d, vcc" % (t + 1, t + 1, t + 3))
            e("v_cndmask_b32 v%d, v%d, 0, vcc" % (t + 2, t + 2))
        e("v_cvt_f32_u32 v%d, v%d" % (t + 1, t + 1))
        e("v_mul_f32 v%d, %s, v%d" % (t + 1, hexf(1.0 / 512), t + 1))
        e("v_lshl_add_u32 v%d, v%d, 3, s%d" % (t + 3, vQ, sT0))
        e("v_cvt_f32_u32 v%d, v%d" % (t + 3, t + 3))
        e("v_fma_f32 v%d, v%d, v%d, v%d" % (t + 2, t + 3, t + 1, t + 2))
        e("v_fract_f32 v%d, v%d" % (t + 8, t + 2))
        e("v_mul_f32 v%d, %s, v%d" % (t + 3, hexf(32.0), t + 1))
        e("v_fract_f32 v%d, v%d" % (t + 3, t + 3))
        for jj in range(1, 8):
            e("v_add_f32 v%d, v%d, v%d" % (t + 8 + jj, t + 7 + jj, t + 1))
        for Tf in range(4):
            for jj in range(8):
                e("v_cos_f32 v%d, v%d" % (t + 16 + jj, t + 8 + jj))
            if Tf < 3:
                for jj in range(8):
                    e("v_add_f32 v%d, v%d, v%d" % (t + 8 + jj, t + 8 + jj, t + 3))
            else:
                k.nop(1)
            for d in range(4):
                e("v_cvt_pk_bf16_f32 v%d, v%d, v%d" % (FB + 16 * tl + 4 * Tf + d, t + 16 + 2 * d, t + 17 + 2 * d))

    fgen(0)
    fgen(1)
    vSM, vAL, vBE = 16, 17, 18
    e("v_bfe_u32 v19, v%d, 1, 2" % vC)
    e("v_cvt_f32_u32 v19, v19")
    e("v_mul_f32 v19, %s, v19" % hexf(0.25))
    e("v_cos_f32 v%d, v19" % vAL)
    e("v_sin_f32 v%d, v19" % vBE)
    e("v_bfe_u32 v%d, v%d, 1, 1" % (vSM, vC))
    e("v_mul_u32_u24 v%d, 0x8000, v%d" % (vSM, vSM))
    e("v_lshl_or_b32 v%d, v%d, 16, v%d" % (vSM, vSM, vSM))
    e("v_rndne_f32 v%d, v%d" % (vAL, vAL))
    e("v_rndne_f32 v%d, v%d" % (vBE, vBE))
    e("v_lshlrev_b32 v19, 31, v%d" % vC)
    e("v_xor_b32 v%d, v19, v%d" % (vBE, vBE))
    e("v_mov_b32 v19, s%d" % sONE)
    for d in range(4):
        e("v_accvgpr_write_b32 a%d, v19" % (aONES + d))
    TRB = 10
    e("v_lshrrev_b32 v19, 2, v%d" % vC)
    e("v_lshl_add_u32 v30, v%d, 3, v19" % vQ)
    e("v_lshlrev_b32 v30, 7, v30")
    e("v_and_b32 v31, 1, v%d" % vC)
    e("v_lshl_add_u32 v30, v31, 3, v30")
    e("v_bfe_u32 v19, v%d, 3, 1" % vC)
    e("v_and_b32 v31, 1, v%d" % vQ)
    e("v_lshl_or_b32 v19, v31, 1, v19")
    e("v_xor_b32 v19, s%d, v19" % sW)
    e("v_lshlrev_b32 v19, 1, v19")
    e("v_bfe_u32 v31, v%d, 1, 1" % vC)
    e("v_or_b32 v19, v19, v31")
    for l in range(4):
        e("v_xor_b32 v31, %d, v19" % (2 * l))
        e("v_lshl_add_u32 v%d, v31, 4, v30" % (TRB + l))
    ST = 20
    e("v_lshrrev_b32 v19, 1, v%d" % vC)
    e("v_xor_b32 v19, v19, v%d" % vQ)
    e("v_lshlrev_b32 v19, 4, v19")
    e("v_lshl_add_u32 v19, v%d, 7, v19" % vC)
    e("s_lshl1_add_u32 s%d, s%d, 0x%x" % (sT0, sM0W, LB + 32768))
    e("v_add_u32 v20, s%d, v19" % sT0)
    e("v_xor_b32 v21, 64, v20")
    aSUM, aGR = 40, 48
    k.stamp(3)

    XLA = P("XLA", 2)

    def ex_w2touch():
        e("s_lshl2_add_u32 s%d, s2, s%d" % (sT0, sW))
        e("s_mul_i32 s%d, s%d, %d" % (sT0, sT0, 14 * 128))
        e("v_lshlrev_b32 v19, 7, v%d" % vLANE)
        e("s_mov_b64 exec, 0x3fff")
        e("buffer_load_dword a56, v19, %s, s%d offen" % (srd(SW2), sT0))
        k.vm.issue("touch")
        e("s_mov_b64 exec, -1")

    sched = {kk: [] for kk in range(8)}
    run(xload(2))
    run(xload(3))
    wgi = wg_items()
    sched[0] += xload(4) + w1dma(1, 0) + [ex_w2touch]
    sched[1] += xload(5) + w1dma(1, 1) + wgi[0:2]
    sched[2] += w1dma(1, 2) + wgi[2:6]
    sched[3] += w1dma(1, 3) + wgi[6:8]
    sched[4] += xload(6) + w1dma(1, 4)
    sched[5] += xload(7) + w1dma(1, 5)
    sched[6] += w1dma(1, 6) + w1dma(1, 7)

    def rdA_items(reg, T, l, buf):
        def item(hh):
            def f():
                r = aAF + (buf * 4 + l) * 4 + 2 * hh
                e("ds_read_b64_tr_b16 %s, v%d offset:%d" % (ar(r, 2), TRB + l, T * 4096 + hh * 512))
                k.lg.issue(("A", reg, T, l))
            return f
        return [item(0), item(1)]

    def rdA(reg, T, l, buf):
        run(rdA_items(reg, T, l, buf))

    def gemm_step(reg, T, buf, pre=None):
        for l in range(4):
            if pre:
                pre(l)
            k.wait_lg(("A", reg, T, l))
            a = ar(aAF + (buf * 4 + l) * 4, 4)
            for u in range(2):
                c = vr(ACC + (l * 2 + u) * 4, 4)
                mf(c, a, X(u, T), c if T else "0")
            if l == 0:
                mf(ar(aCS, 4), a, ar(aONES, 4), ar(aCS, 4) if T else "0")

    BARN = P("BARN", 1)
    sch["gap"] = P("GAP1", 3)
    k.wait_vm(("X", 0))
    run(xread(0))
    for kk in range(8):
        k.wait_lg(("XR", kk))
        if kk % BARN == 0:
            k.wait_vm([("W1", 0, j) for j in range(kk + BARN)])
            e("s_barrier")
        for ks in range(2):
            for l in range(4):
                sch["lds"].extend(rdA_items(0, 2 * kk + ks, l, ks))
        if kk + 2 < 8:
            side.extend(w1dma(0, kk + 2))
        side.extend(sched[kk])
        if kk == 4:
            for i in range(32):
                e("v_xor_b32 v%d, v%d, v%d" % (FB + i, vSM, FB + i))
            k.nop(2)
        for ks in range(2):
            T = 2 * kk + ks
            for u in range(2):
                for tl in range(2):
                    p = vr(PA + ((tl * 2 + ((T >> 2) & 1)) * 2 + u) * 4, 4)
                    mf(p, X(u, T), vr(FB + 16 * tl + 4 * (T & 3), 4), "0" if T in (0, 4) else p)
                mf(ar(aSUM + 4 * u, 4), ar(aONES, 4), X(u, T), ar(aSUM + 4 * u, 4) if T else "0")
                mf(ar(aGR + 4 * u, 4), X(u, T), X(u, T), ar(aGR + 4 * u, 4) if T else "0")
        gemm_step(0, 2 * kk, 0)
        if kk + 1 < 8:
            k.wait_vm(("X", kk + 1))
            sch["lds"].extend(xread(kk + 1))
        gemm_step(0, 2 * kk + 1, 1)
        flush_side()
    k.stamp(4)
    TMP = FB
    e("v_and_b32 v19, 3, v%d" % vC)
    for u in range(2):
        e("v_accvgpr_read_b32 v%d, a%d" % (ST + u, aSUM + 4 * u))
        for r in range(4):
            e("v_accvgpr_read_b32 v%d, a%d" % (TMP + 4 * u + r, aGR + 4 * u + r))
    for r in range(1, 4):
        e("v_cmp_eq_u32 vcc, %d, v19" % r)
        k.nop(2)
        for u in range(2):
            e("v_cndmask_b32 v%d, v%d, v%d, vcc" % (TMP + 4 * u, TMP + 4 * u, TMP + 4 * u + r))
    e("v_lshrrev_b32 v19, 2, v%d" % vC)
    e("v_lshl_add_u32 v19, v19, 4, v%d" % vC)
    e("v_lshlrev_b32 v19, 2, v19")
    for u in range(2):
        e("ds_bpermute_b32 v%d, v19, v%d" % (ST + 2 + u, TMP + 4 * u))
    vCSA = 31
    e("s_lshl_b32 s%d, s%d, 12" % (sT0, sW))
    e("s_add_u32 s%d, s%d, 0x%x" % (sT0, sT0, L_CS))
    e("v_add_u32 v%d, s%d, v%d" % (vCSA, sT0, vL16))
    e("ds_write_b128 v%d, %s" % (vCSA, ar(aCS, 4)))
    for tl in range(2):
        for i in range(8):
            e("v_fmac_f32 v%d, v%d, v%d" % (PA + 16 * tl + i, vAL, PA + 16 * tl + 8 + i))
        for i in range(8):
            e("v_fmac_f32_dpp v%d, v%d, v%d quad_perm:[1,0,3,2] row_mask:0xf bank_mask:0xf" % (PA + 16 * tl + i, PA + 16 * tl + 8 + i, vBE))
    e("s_waitcnt lgkmcnt(0)")
    k.lg.clear()
    vRS, vNM, vD0 = 24, 26, 28
    for u in range(2):
        m, q2 = ST + u, ST + 2 + u
        e("v_mul_f32 v%d, %s, v%d" % (m, hexf(1.0 / 512), m))
        e("v_mul_f32 v%d, %s, v%d" % (q2, hexf(1.0 / 512), q2))
        e("v_fma_f32 v%d, -v%d, v%d, v%d" % (q2, m, m, q2))
        e("v_max_f32 v%d, 0, v%d" % (q2, q2))
        bf16_round(q2)
        e("v_add_f32 v%d, %s, v%d" % (q2, hexf(1e-5), q2))
        bf16_round(q2)
        e("v_sqrt_f32 v%d, v%d" % (q2, q2))
        e("v_sub_f32 v%d, 0, v%d" % (vNM + u, m))
        bf16_round(q2)
        e("v_rcp_f32 v%d, v%d" % (vRS + u, q2))
        bf16_round(vNM + u)
        e("v_add_f32 v%d, v%d, v%d" % (vD0 + u, m, vNM + u))
        e("v_mul_f32 v%d, %s, v%d" % (vD0 + u, hexf(512.0), vD0 + u))
    RT, D0T = FB, FB + 8
    e("v_lshlrev_b32 v30, 4, v%d" % vQ)
    for u in range(2):
        for r in range(4):
            e("ds_bpermute_b32 v%d, v30, v%d offset:%d" % (RT + 4 * u + r, vRS + u, 4 * r))
            e("ds_bpermute_b32 v%d, v30, v%d offset:%d" % (D0T + 4 * u + r, vD0 + u, 4 * r))
    k.wait_vm("wg")
    for tl in range(2):
        for r in range(4):
            e("v_lshl_or_b32 v%d, v%d, 16, v%d" % (WGV + 8 * tl + r, WGV + 8 * tl + 4 + r, WGV + 8 * tl + r))
    vX1 = 6
    e("v_lshrrev_b32 v6, 1, v%d" % vC)
    e("v_lshlrev_b32 v6, 13, v6")
    e("v_and_b32 v19, 1, v%d" % vC)
    e("v_lshl_add_u32 v6, v19, 6, v6")
    e("v_lshl_add_u32 v6, v%d, 4, v6" % vQ)
    e("v_or_b32 v19, s%d, v%d" % (sCBK, vC))
    e("v_cmp_eq_u32 vcc, 0, v19")
    e("s_lshl_b32 s%d, s%d, 17" % (sT0, sCBK))
    e("s_lshl_b32 s%d, s%d, 7" % (sT1, sRS))
    e("s_add_u32 s%d, s%d, s%d" % (sT0, sT0, sT1))
    e("s_add_u32 s%d, s%d, 0x%x" % (sT1, sT0, X1C_OFF))
    e("s_add_u32 s%d, s%d, 0x%x" % (sT2, sT0, X1C_OFF + 65536))
    e("s_add_u32 s%d, s%d, 0x%x" % (sT3, sT0, WT_OFF))
    e("s_add_u32 s%d, s%d, 0x%x" % (sT4, sT0, WT_OFF + 65536))
    e("s_waitcnt lgkmcnt(0)")
    k.lg.clear()
    e("s_add_u32 s%d, s%d, 0x%x" % (sTAG, sTAG, TAGC))
    e("v_mov_b32 v%d, s%d" % (vTAG, sTAG))
    for i in range(8):
        e("v_cndmask_b32 v%d, v%d, v%d, vcc" % (PA + i, PA + i, D0T + i))
    for tl in range(2):
        for i in range(8):
            e("v_mul_f32 v%d, v%d, v%d" % (PA + 16 * tl + i, PA + 16 * tl + i, RT + i))
        o = PA + 16 * tl + 8
        for d in range(4):
            e("v_cvt_pk_bf16_f32 v%d, v%d, v%d" % (o + d, PA + 16 * tl + 2 * d, PA + 16 * tl + 2 * d + 1))
        e("buffer_store_dwordx4 %s, v%d, %s, s%d offen sc1" % (vr(o, 4), vX1, srd(SWS), sT1 + tl))
        k.vm.issue("x1st")
    for tl in range(2):
        e("buffer_store_dwordx4 %s, v%d, %s, s%d offen sc1" % (vr(WGV + 8 * tl, 4), vWS, srd(SWS), sT3 + tl))
        k.vm.issue("x1st")
    e("s_lshl4_add_u32 s%d, s%d, s%d" % (sFX, sCBK, sPB))
    e("s_lshl_b32 s%d, s%d, 7" % (sFX, sFX))
    e("s_lshl2_add_u32 s%d, s%d, s%d" % (sFX, sW, sFX))
    e("s_lshr_b32 s%d, s%d, 3" % (sFH, sRS))
    e("s_and_b32 s%d, s%d, 1" % (sT0, sRS))
    e("s_lshl1_add_u32 s%d, s%d, s%d" % (sFH, sFH, sT0))
    e("s_lshl4_add_u32 s%d, s%d, s%d" % (sFH, sFH, sCBK))
    e("s_lshl_b32 s%d, s%d, 7" % (sFH, sFH))
    e("s_bfe_u32 s%d, s%d, 0x20001" % (sT0, sRS))
    e("s_lshl2_add_u32 s%d, s%d, s%d" % (sFH, sT0, sFH))
    e("s_add_u32 s%d, s%d, 0x%x" % (sFH, sFH, FHA_OFF))
    k.stamp(5)

    def h_epilogue(reg, htag):
        e("s_barrier")
        C1 = PA
        for l in range(4):
            if l:
                e("v_xor_b32 v19, %d, v%d" % (l * 4096, vCSA))
            e("ds_read_b128 %s, v%d" % (vr(C1 + 4 * l, 4), 19 if l else vCSA))
            k.lg.issue(("C1", reg, l))
        e("s_mul_i32 s%d, s%d, %d" % (sT0, sRS, 2 * 56 * 1024))
        e("s_lshl4_add_u32 s%d, s%d, s%d" % (sT0, sF0, sT0))
        e("s_add_u32 s%d, s%d, 0x%x" % (sT0, sT0, H_OFF + 2048 * reg))
        e("s_lshr_b32 s%d, s%d, 1" % (sT1, sW))
        e("s_lshl_b32 s%d, s%d, 10" % (sT1, sT1))
        e("v_add_u32 v19, s%d, v%d" % (sT1, vL16))
        e("v_xor_b32 v30, 1024, v19")
        e("s_add_u32 s%d, s%d, %d" % (sT1, sT0, 56 * 1024))
        HO = PA + 16
        for l in range(4):
            k.wait_lg(("C1", reg, l))
            for u in range(2):
                a = ACC + (l * 2 + u) * 4
                for r in range(4):
                    e("v_fmac_f32 v%d, v%d, v%d" % (a + r, vNM + u, C1 + 4 * l + r))
                for r in range(4):
                    e("v_mul_f32 v%d, v%d, v%d" % (a + r, a + r, vRS + u))
                o = HO + ((l >> 1) * 2 + u) * 4 + (l & 1) * 2
                e("v_cvt_pk_bf16_f32 v%d, v%d, v%d" % (o, a, a + 1))
                e("v_cvt_pk_bf16_f32 v%d, v%d, v%d" % (o + 1, a + 2, a + 3))
        for i in range(16):
            e("v_pk_max_i16 v%d, v%d, 0" % (HO + i, HO + i))
        e("s_bitcmp0_b32 s%d, 0" % sW)
        e("s_cbranch_scc1 L_nosw%d" % reg)
        for i in range(4):
            e("v_swap_b32 v%d, v%d" % (HO + 4 * i, HO + 4 * i + 2))
            e("v_swap_b32 v%d, v%d" % (HO + 4 * i + 1, HO + 4 * i + 3))
        k.lab("L_nosw%d" % reg)
        for pr in range(2):
            for u in range(2):
                e("buffer_store_dwordx4 %s, v%d, %s, s%d offen sc1" % (vr(HO + (pr * 2 + u) * 4, 4), 19 if pr == 0 else 30, srd(SWS), sT0 + u))
                k.vm.issue(htag)

    h_epilogue(0, "ha")
    k.stamp(6)

    TV = [50, 51, 52, 53, 54, 55, 56]
    e("s_lshr_b32 s%d, s%d, 1" % (sT0, sW))
    e("s_mul_i32 s%d, s%d, 28" % (sT0, sT0))
    e("s_and_b32 s%d, s%d, 1" % (sT1, sW))
    e("s_add_u32 s%d, s%d, s%d" % (sT0, sT0, sT1))
    e("s_cmp_eq_u32 s%d, 7" % sR)
    e("s_cselect_b32 s%d, 0, s%d" % (sT1, sR))
    for i in range(7):
        e("s_lshl2_add_u32 s%d, s%d, s%d" % (TV[i], sT1, sT0))
        if i < 6:
            e("s_add_u32 s%d, s%d, 1" % (sT1, sT1))
            e("s_cmp_eq_u32 s%d, 7" % sT1)
            e("s_cselect_b32 s%d, 0, s%d" % (sT1, sT1))
    vD2, vDZ = 8, 9
    e("v_lshrrev_b32 v8, 3, v%d" % vLANE)
    e("v_and_b32 v7, 7, v%d" % vLANE)
    e("v_lshlrev_b32 v19, 1, v%d" % vQ)
    e("v_xor_b32 v7, v7, v19")
    e("v_lshlrev_b32 v7, 4, v7")
    e("v_lshl_add_u32 v9, v8, 12, v7")
    e("v_lshl_add_u32 v8, v8, 10, v7")
    TR2 = [16, 17, 18, 7]
    vZB = 6
    e("v_lshrrev_b32 v19, 2, v%d" % vC)
    e("v_lshl_add_u32 v19, v%d, 2, v19" % vQ)
    e("v_bfe_u32 v30, v19, 1, 2")
    e("v_lshlrev_b32 v19, 7, v19")
    e("v_and_b32 v7, 1, v%d" % vC)
    e("v_lshl_add_u32 v19, v7, 3, v19")
    e("v_lshlrev_b32 v30, 1, v30")
    e("v_bfe_u32 v7, v%d, 1, 1" % vC)
    e("v_or_b32 v30, v30, v7")
    e("v_lshl_add_u32 v%d, v30, 4, v19" % vZB)
    e("s_lshl_b32 s%d, s%d, 14" % (sM0W, sW))
    e("v_add_u32 v30, s%d, v%d" % (sM0W, vZB))
    for l in range(4):
        e("v_xor_b32 v%d, %d, v30" % (TR2[l], 32 * l))
    sW2B = 57
    e("s_lshl_b32 s%d, s%d, 7" % (sW2B, sDB))

    def w2_dma(i):
        def item(ee):
            def f():
                e("s_add_u32 m0, s%d, %d" % (sM0W, (i % 4) * 4096 + ee * 1024))
                if ee == 0:
                    e("s_lshl_b32 s%d, s%d, 15" % (sDT, TV[i % 7]))
                    e("s_add_u32 s%d, s%d, s%d" % (sDT, sDT, sW2B))
                    if i >= 7:
                        e("s_add_u32 s%d, s%d, 0x10000" % (sDT, sDT))
                else:
                    e("s_add_u32 s%d, s%d, 8192" % (sDT, sDT))
                e("buffer_load_dwordx4 v%d, %s, s%d offen lds" % (vD2, srd(SW2), sDT))
                k.vm.issue(("W2", i))
            return f
        return [item(ee) for ee in range(4)]

    aAF2 = 208

    def w2_read_items(i):
        items = []
        for l in range(4):
            for hh in range(2):
                def f(l=l, hh=hh):
                    r = aAF2 + (i & 1) * 16 + 4 * l + 2 * hh
                    e("ds_read_b64_tr_b16 %s, v%d offset:%d" % (ar(r, 2), TR2[l], (i % 4) * 4096 + hh * 2048))
                    k.lg.issue(("W2R", i))
                items.append(f)
        return items

    e("s_cmp_eq_u32 s%d, 1" % sISJ)
    e("s_cbranch_scc1 L_jpath")
    q_vm, q_lg = list(k.vm.q), list(k.lg.q)
    for l in range(4):
        e("v_add_u32 v%d, 0x10000, v%d" % (TRB + l, TRB + l))

    def pubFX():
        fs(3, 2)
        k.wait_vm("x1st")
        fs(3, 3)
        publish("s%d" % sFX)

    def pubHA():
        fs(3, 4)
        k.wait_vm("ha")
        fs(3, 5)
        publish("s%d" % sFH)
    hooks = {T: [] for T in range(16)}
    for i in range(4):
        hooks[P("W2T0", 0) + 2 * i].append(lambda i=i: side.extend(w2_dma(i)))
    hooks[P("PFX", 3)].append(pubFX)
    hooks[P("PHA", 7)].append(pubHA)
    fs(2, 2)
    k.wait_vm([("W1", 1, kk) for kk in range(8)])
    fs(2, 3)
    e("s_barrier")
    fs(2, 4)
    sch["gap"] = P("GAP2", 4)
    for l in range(4):
        rdA(1, 0, l, 0)
    for T in range(16):
        gemm_step(1, T, T & 1, pre=(lambda l, T=T: rdA(1, T + 1, l, (T + 1) & 1)) if T < 15 else None)
        for f in hooks[T]:
            f()
        if T < 9:
            fs(2, 5 + T)
    flush_side()
    k.nop(6)
    e("ds_write_b128 v%d, %s" % (vCSA, ar(aCS, 4)))
    e("s_waitcnt lgkmcnt(0)")
    k.lg.clear()
    fs(3, 6)
    h_epilogue(1, "hb")
    fs(3, 7)
    k.lab("L_join")
    qF_vm, qF_lg = list(k.vm.q), list(k.lg.q)
    main_lines = k.lines
    k.lines = []
    k.vm.q, k.lg.q = list(q_vm), list(q_lg)
    k.lab("L_jpath")
    for i in range(4):
        run(w2_dma(i))
    e("s_cmp_lg_u32 s%d, 7" % sCBK)
    e("s_cbranch_scc1 L_no256")
    e("s_mov_b32 s%d, s%d" % (sT0, sWOFF))
    e("s_mov_b64 exec, 0xff")
    wgather(512, 32, "wg256", kind="v")
    e("s_waitcnt vmcnt(0)")
    for r in range(4):
        e("v_lshl_or_b32 v%d, v%d, 16, v%d" % (32 + r, 36 + r, 32 + r))
    e("s_lshl_b32 s%d, s%d, 7" % (sT0, sRS))
    e("s_add_u32 s%d, s%d, 0x%x" % (sT0, sT0, WT_OFF + 256 * 8192))
    e("buffer_store_dwordx4 v[32:35], v%d, %s, s%d offen sc1" % (vWS, srd(SWS), sT0))
    e("s_mov_b64 exec, -1")
    k.lab("L_no256")
    e("s_waitcnt vmcnt(0)")
    publish("s%d" % sFX)
    e("s_waitcnt vmcnt(0)")
    e("s_branch L_join")
    tail.extend(k.lines)
    k.lines = main_lines
    k.vm.q, k.lg.q = qF_vm, qF_lg
    k.stamp(7)

    sCC, sPL, sZR, sZI, sSC, sFHC, sFXC = sCOL, sF0, sXB, sISJ, sONE, sWOFF, 58
    vFH, vFL, vFZ = 14, 15, 29
    for vv, n in ((vFH, 27), (vFL, 15), (vFZ, 63)):
        e("v_min_u32 v19, %d, v%d" % (n, vLANE))
        e("v_lshrrev_b32 v%d, 2, v19" % vv)
        e("v_lshlrev_b32 v%d, 7, v%d" % (vv, vv))
        e("v_and_b32 v19, 3, v19")
        e("v_lshl_add_u32 v%d, v19, 2, v%d" % (vv, vv))
    e("s_lshr_b32 s%d, s%d, 1" % (sT0, sWP))
    e("s_lshl1_add_u32 s%d, s%d, s%d" % (sFHC, sA, sT0))
    e("s_lshr_b32 s%d, s%d, 1" % (sT0, sW))
    e("s_lshl1_add_u32 s%d, s%d, s%d" % (sFHC, sFHC, sT0))
    e("s_lshl_b32 s%d, s%d, 10" % (sFHC, sFHC))
    e("s_add_u32 s%d, s%d, 0x%x" % (sFHC, sFHC, FHA_OFF))
    e("s_xor_b32 s%d, s2, 0x38" % sCC)
    e("s_lshr_b32 s%d, s%d, 4" % (sFXC, sCC))
    e("s_lshl2_add_u32 s%d, s%d, s%d" % (sFXC, sFXC, sW))
    e("s_lshl_b32 s%d, s%d, 9" % (sFXC, sFXC))
    maskF = None
    poll_issue("pha", vFH, "s%d" % sFHC, 30)
    HV = [10, 11, 12, 13]
    for pt in range(4):
        e("v_add_u32 v%d, 0x%x, v%d" % (HV[pt], pt * 4 * 56 * 1024, vL16))
    sHB = sFX
    e("s_lshl4_add_u32 s%d, s%d, s%d" % (sHB, sA, sWP))
    e("s_mul_i32 s%d, s%d, %d" % (sHB, sHB, 56 * 1024))
    e("s_add_u32 s%d, s%d, 0x%x" % (sHB, sHB, H_OFF))
    aHR, NHS, aAY = 128, 5, 64

    def hload(i):
        def item(pt):
            def f():
                if pt == 0:
                    e("s_lshl_b32 s%d, s%d, 10" % (sHT, TV[i % 7]))
                    e("s_add_u32 s%d, s%d, s%d" % (sHT, sHT, sHB))
                e("buffer_load_dwordx4 %s, v%d, %s, s%d offen offset:%d sc1" % (ar(aHR + (i % NHS) * 16 + 4 * pt, 4), HV[pt], srd(SWS), sHT, 2048 if i >= 7 else 0))
                k.vm.issue(("H", i))
            return f
        return [item(pt) for pt in range(4)]

    C64, S64, N64, C32, S32, N32, T1C, T1S, T2C, T2S = 128, 136, 144, 152, 160, 168, 176, 184, 192, 200

    def cconst():
        t = 32
        slot = [16 * (jj >> 2) + (jj & 3) for jj in range(8)]
        yield "s_lshl_b32 s%d, s%d, 4" % (sT3, sW)
        yield "v_add_u32 v%d, s%d, v%d" % (t + 24, sT3, vC)
        yield "v_cvt_f32_u32 v%d, v%d" % (t + 27, vQ)
        yield "v_cvt_f32_u32 v%d, v%d" % (t + 25, t + 24)
        yield "v_mul_f32 v%d, 4.0, v%d" % (t + 27, t + 27)
        yield "v_cvt_f32_u32 v%d, v%d" % (t + 28, vC)
        yield "v_and_b32 v%d, 1, v%d" % (t + 30, vC)
        for jj in range(8):
            yield "v_add_f32 v%d, %s, v%d" % (t + 32 + jj, hexf(float(slot[jj])), t + 27)
        yield "v_mul_u32_u24 v%d, 0x8000, v%d" % (t + 30, t + 30)
        yield "v_mul_f32 v%d, %s, v%d" % (t + 26, hexf(1.0 / 64), t + 25)
        yield "v_lshl_or_b32 v%d, v%d, 16, v%d" % (t + 30, t + 30, t + 30)
        for (scale, Cb, Sb, Nb, flip) in ((t + 26, C64, S64, N64, "v%d" % (t + 30)), (t + 29, C32, S32, N32, "0x80000000")):
            if Cb == C32:
                yield "v_mul_f32 v%d, %s, v%d" % (t + 29, hexf(1.0 / 32), t + 28)
                yield "v_mul_f32 v%d, %s, v%d" % (t + 26, hexf(1.0 / 2048), t + 25)
            for jj in range(8):
                yield "v_mul_f32 v%d, v%d, v%d" % (t + jj, t + 32 + jj, scale)
            for jj in range(8):
                yield "v_cos_f32 v%d, v%d" % (t + 8 + jj, t + jj)
            for jj in range(8):
                yield "v_sin_f32 v%d, v%d" % (t + 16 + jj, t + jj)
            for d in range(4):
                yield "v_cvt_pk_bf16_f32 v%d, v%d, v%d" % (Cb + d, t + 8 + 2 * d, t + 9 + 2 * d)
            for d in range(4):
                yield "v_cvt_pk_bf16_f32 v%d, v%d, v%d" % (Sb + d, t + 16 + 2 * d, t + 17 + 2 * d)
            for d in range(4):
                yield "v_xor_b32 v%d, %s, v%d" % (Cb + 4 + d, flip, Cb + d)
            for d in range(4):
                yield "v_xor_b32 v%d, %s, v%d" % (Sb + 4 + d, flip, Sb + d)
            for d in range(8):
                yield "v_xor_b32 v%d, 0x80008000, v%d" % (Nb + d, Sb + d)
        for i in range(8):
            yield "v_mul_f32 v%d, v%d, v%d" % (t + i, t + 32 + i, t + 26)
        yield "v_cvt_f32_u32 v%d, s%d" % (t + 29, sT3)
        for i in range(8):
            yield "v_cos_f32 v%d, v%d" % (T1C + i, t + i)
            yield "v_sin_f32 v%d, v%d" % (T1S + i, t + i)
        yield "v_mul_f32 v%d, %s, v%d" % (t + 26, hexf(1.0 / 2048), t + 28)
        for r in range(4):
            yield "v_add_f32 v%d, v%d, v%d" % (t + 8 + r, t + 29, t + 32 + r)
        yield "v_add_f32 v%d, %s, v%d" % (t + 25, hexf(16.0 / 2048), t + 26)
        for r in range(4):
            yield "v_mul_f32 v%d, v%d, v%d" % (t + r, t + 8 + r, t + 26)
        for r in range(4):
            yield "v_mul_f32 v%d, v%d, v%d" % (t + 4 + r, t + 8 + r, t + 25)
        for i in range(8):
            yield "v_cos_f32 v%d, v%d" % (T2C + i, t + i)
            yield "v_sin_f32 v%d, v%d" % (T2S + i, t + i)

    GB = 128

    def ggen():
        t0 = 96
        yield "s_lshl_b32 s%d, s%d, 6" % (sT3, sDB)
        yield "s_lshl4_add_u32 s%d, s%d, s%d" % (sT3, sW, sT3)
        yield "v_add_u32 v%d, s%d, v%d" % (t0, sT3, vC)
        yield "v_lshlrev_b32 v%d, 1, v%d" % (t0 + 2, vQ)
        yield "v_cvt_f32_u32 v%d, v%d" % (t0 + 1, t0)
        yield "v_cvt_f32_u32 v%d, v%d" % (t0 + 2, t0 + 2)
        yield "v_mul_f32 v%d, %s, v%d" % (t0 + 1, hexf(1.0 / 512), t0 + 1)
        yield "v_mul_f32 v%d, %s, v%d" % (t0 + 3, hexf(16.0), t0 + 1)
        for dw in range(4):
            yield "v_add_f32 v%d, %s, v%d" % (t0 + 4 + dw, hexf(float(8 * (dw >> 1) + (dw & 1))), t0 + 2)
        yield "v_fract_f32 v%d, v%d" % (t0 + 3, t0 + 3)
        for dw in range(4):
            yield "v_mul_f32 v%d, v%d, v%d" % (t0 + 4 + dw, t0 + 4 + dw, t0 + 1)
        yield "v_lshlrev_b32 v%d, 31, v%d" % (t0 + 16, vC)
        yield "v_min_u32 v%d, 1, v%d" % (t0 + 17, vQ)
        yield "v_or_b32 v%d, 0x3f800000, v%d" % (t0 + 16, t0 + 16)
        yield "v_sub_u32 v%d, v%d, 1" % (t0 + 17, t0 + 17)
        yield "v_and_b32 v%d, 0xffff0000, v%d" % (t0 + 17, t0 + 17)
        for T in range(16):
            for dw in range(4):
                yield "v_cos_f32 v%d, v%d" % (t0 + 8 + 2 * dw, t0 + 4 + dw)
                yield "v_sin_f32_e64 v%d, -v%d" % (t0 + 9 + 2 * dw, t0 + 4 + dw)
            for dw in range(4):
                yield "v_add_f32 v%d, v%d, v%d" % (t0 + 4 + dw, t0 + 4 + dw, t0 + 3)
            for dw in range(4):
                yield "v_cvt_pk_bf16_f32 v%d, v%d, v%d" % (GB + 4 * T + dw, t0 + 8 + 2 * dw, t0 + 9 + 2 * dw)
            if T == 0:
                yield "v_bfi_b32 v%d, v%d, v%d, v%d" % (GB, t0 + 17, t0 + 16, GB)

    XI, CW, TM, TW, DR, DI, PR, PI = 32, 64, 72, 88, 104, 112, 120, 124

    def xin(pl, v, tt):
        return XI + 4 * ((pl * 2 + v) * 2 + tt)

    def c_inputs():
        e("s_and_b32 s%d, s%d, 1" % (sT0, sW))
        e("s_lshl_b32 s%d, s%d, 3" % (sT0, sT0))
        e("v_add_u32 v19, s%d, v%d" % (sT0, vQ))
        e("v_xor_b32 v30, v19, v%d" % vC)
        e("v_lshlrev_b32 v30, 4, v30")
        e("v_lshl_add_u32 v30, v%d, 8, v30" % vQ)
        e("v_xor_b32 v31, 64, v30")
        e("s_lshl_b32 s%d, s%d, 13" % (sT0, sCC))
        e("s_lshl_b32 s%d, s%d, 11" % (sT1, sW))
        e("s_add_u32 s%d, s%d, s%d" % (sT0, sT0, sT1))
        e("s_add_u32 s%d, s%d, 0x%x" % (sT2, sT0, X1C_OFF))
        e("s_add_u32 m0, s%d, 0x%x" % (sT1, L_C1))
        k.nop(1)
        e("buffer_load_dwordx4 v30, %s, s%d offen sc1 lds" % (srd(SWS), sT2))
        k.vm.issue("cin")
        e("buffer_load_dwordx4 v31, %s, s%d offen offset:1024 sc1 lds" % (srd(SWS), sT2))
        k.vm.issue("cin")
        e("s_add_u32 s%d, s%d, 0x%x" % (sT2, sT0, WT_OFF))
        for v in range(2):
            e("buffer_load_dwordx4 %s, v%d, %s, s%d offen offset:%d sc1" % (vr(208 + 4 * v, 4), vL16, srd(SWS), sT2, v * 1024))
            k.vm.issue("cw")

    def c_block():
        CWL = 208
        e("v_xor_b32 v20, v%d, v%d" % (vQ, vC))
        e("v_lshlrev_b32 v20, 4, v20")
        e("v_lshl_add_u32 v20, v%d, 8, v20" % vC)
        e("v_add_u32 v20, 0x%x, v20" % L_C1)
        e("v_xor_b32 v21, 64, v20")
        e("v_xor_b32 v22, 128, v20")
        e("v_xor_b32 v23, 192, v20")
        e("s_lshr_b32 s%d, s%d, 1" % (sT0, sW))
        e("s_lshl_b32 s%d, s%d, 7" % (sT0, sT0))
        e("s_and_b32 s%d, s%d, 1" % (sT1, sW))
        e("s_lshl3_add_u32 s%d, s%d, s%d" % (sT0, sT1, sT0))
        e("v_xor_b32 v24, s%d, v20" % sT0)
        e("v_xor_b32 v25, 64, v24")
        e("v_lshlrev_b32 v26, 5, v%d" % vC)
        e("v_lshl_add_u32 v26, v%d, 3, v26" % vQ)
        e("s_lshl_b32 s%d, s%d, 10" % (sT0, sW))
        e("v_add_u32 v26, s%d, v26" % sT0)
        e("s_lshl_b32 s%d, s%d, 13" % (sZR, sCC))
        e("s_add_u32 s%d, s%d, 0x%x" % (sZR, sZR, ZT_OFF))
        e("s_add_u32 s%d, s%d, 4096" % (sZI, sZR))
        e("s_mov_b32 s%d, %s" % (sSC, hexf(2.0 ** -19)))
        e("s_cmp_eq_u32 s%d, 0" % sCC)
        e("s_cselect_b32 s%d, 0x%x, s%d" % (sZI, OOB, sZI))
        e("s_cselect_b32 s%d, %s, s%d" % (sSC, hexf(2.0 ** -20), sSC))
        e("s_mov_b32 s%d, 0" % sPL)
        for i in range(16):
            e("v_mul_f32 v%d, s%d, v%d" % (T2C + i, sSC, T2C + i))
        k.wait_vm("cin")
        e("s_barrier")
        k.lab("L_ccol")
        for pl in range(2):
            for v in range(2):
                for tt in range(2):
                    e("ds_read_b128 %s, v%d offset:%d" % (vr(xin(pl, v, tt), 4), 20 + 2 * tt + pl, v * 4096))
        e("s_waitcnt lgkmcnt(0)")
        k.lg.clear()
        e("s_cmp_eq_u32 s%d, 0" % sCC)
        e("s_cbranch_scc1 L_creal")
        k.lab("L_cplx")
        tail.append("L_creal:")
        tail.append("    s_cmp_eq_u32 s%d, 0" % sPL)
        tail.append("    s_cbranch_scc1 L_c0")
        for i in range(16):
            tail.append("    v_mov_b32 v%d, v%d" % (XI + i, XI + 16 + i))
        tail.append("L_c0:")
        for i in range(16):
            tail.append("    v_mov_b32 v%d, 0" % (XI + 16 + i))
        tail.append("    s_nop 1")
        tail.append("    s_branch L_cplx")
        for v in range(2):
            dr, di = vr(DR + 4 * v, 4), vr(DI + 4 * v, 4)
            for tt in range(2):
                mfma(dr, vr(xin(0, v, tt), 4), vr(C64 + 4 * tt, 4), dr if tt else "0")
                mfma(di, vr(xin(1, v, tt), 4), vr(C64 + 4 * tt, 4), di if tt else "0")
                mfma(dr, vr(xin(1, v, tt), 4), vr(S64 + 4 * tt, 4))
                mfma(di, vr(xin(0, v, tt), 4), vr(N64 + 4 * tt, 4))

        def cmul(cr, ci, conj):
            for h in range(2):
                for i in range(4 * h, 4 * h + 4):
                    e("v_mul_f32 v%d, v%d, v%d" % (TM + i, DR + i, cr + i))
                    e("v_mul_f32 v%d, v%d, v%d" % (TM + 8 + i, DI + i, cr + i))
                for i in range(4 * h, 4 * h + 4):
                    if conj:
                        e("v_fma_f32 v%d, v%d, v%d, v%d" % (TM + i, DI + i, ci + i, TM + i))
                        e("v_fma_f32 v%d, -v%d, v%d, v%d" % (TM + 8 + i, DR + i, ci + i, TM + 8 + i))
                    else:
                        e("v_fma_f32 v%d, -v%d, v%d, v%d" % (TM + i, DI + i, ci + i, TM + i))
                        e("v_fma_f32 v%d, v%d, v%d, v%d" % (TM + 8 + i, DR + i, ci + i, TM + 8 + i))
            for d in range(4):
                e("v_cvt_pk_bf16_f32 v%d, v%d, v%d" % (PR + d, TM + 2 * d, TM + 2 * d + 1))
                e("v_cvt_pk_bf16_f32 v%d, v%d, v%d" % (PI + d, TM + 8 + 2 * d, TM + 9 + 2 * d))
            k.nop(2)
        cmul(T1C, T1S, True)
        pr, pi = vr(PR, 4), vr(PI, 4)
        for v in range(2):
            dr, di = vr(DR + 4 * v, 4), vr(DI + 4 * v, 4)
            mfma(dr, vr(C32 + 4 * v, 4), pr, "0")
            mfma(di, vr(C32 + 4 * v, 4), pi, "0")
            mfma(dr, vr(S32 + 4 * v, 4), pi)
            mfma(di, vr(N32 + 4 * v, 4), pr)
        k.wait_vm("cw")
        for i in range(8):
            e("v_lshlrev_b32 v%d, 16, v%d" % (TW + i, CWL + i))
            e("v_and_b32 v%d, 0xffff0000, v%d" % (TW + 8 + i, CWL + i))
        cmul(TW, TW + 8, False)
        for v in range(2):
            dr, di = vr(DR + 4 * v, 4), vr(DI + 4 * v, 4)
            mfma(dr, pr, vr(C32 + 4 * v, 4), "0")
            mfma(di, pi, vr(C32 + 4 * v, 4), "0")
            mfma(dr, pi, vr(N32 + 4 * v, 4))
            mfma(di, pr, vr(S32 + 4 * v, 4))
        k.nop(4)
        cmul(T2C, T2S, False)
        for v in range(2):
            e("ds_write_b64 v24, %s offset:%d" % (vr(PR + 2 * v, 2), 8192 + v * 4096))
            e("ds_write_b64 v25, %s offset:%d" % (vr(PI + 2 * v, 2), 8192 + v * 4096))
        e("s_waitcnt lgkmcnt(0)")
        e("s_barrier")
        for v in range(2):
            for tt in range(2):
                for pl in range(2):
                    e("ds_read_b128 %s, v%d offset:%d" % (vr(xin(pl, v, tt), 4), 20 + 2 * tt + pl, 8192 + v * 4096))
                    k.lg.issue(("cy", v, tt))
        for v in range(2):
            dr, di = vr(DR + 4 * v, 4), vr(DI + 4 * v, 4)
            for tt in range(2):
                k.wait_lg(("cy", v, tt))
                mfma(dr, vr(C64 + 4 * tt, 4), vr(xin(0, v, tt), 4), dr if tt else "0")
                mfma(di, vr(C64 + 4 * tt, 4), vr(xin(1, v, tt), 4), di if tt else "0")
                mfma(dr, vr(N64 + 4 * tt, 4), vr(xin(1, v, tt), 4))
                mfma(di, vr(S64 + 4 * tt, 4), vr(xin(0, v, tt), 4))
        for v in range(2):
            if v:
                k.nop(4)
            for d in range(2):
                e("v_cvt_pk_bf16_f32 v%d, v%d, v%d" % (PR + 2 * v + d, DR + 4 * v + 2 * d, DR + 4 * v + 2 * d + 1))
                e("v_cvt_pk_bf16_f32 v%d, v%d, v%d" % (PI + 2 * v + d, DI + 4 * v + 2 * d, DI + 4 * v + 2 * d + 1))
            e("buffer_store_dwordx2 %s, v26, %s, s%d offen offset:%d sc1" % (vr(PR + 2 * v, 2), srd(SWS), sZR, v * 512))
            k.vm.issue("zst")
            e("buffer_store_dwordx2 %s, v26, %s, s%d offen offset:%d sc1" % (vr(PI + 2 * v, 2), srd(SWS), sZI, v * 512))
            k.vm.issue("zst")
        e("s_or_b32 s%d, s%d, s%d" % (sT0, sCC, sPL))
        e("s_cbranch_scc0 L_csecond")
        tail.append("L_csecond:")
        tail.append("    s_mov_b32 s%d, 1" % sPL)
        tail.append("    s_add_u32 s%d, s%d, 4096" % (sZR, sZR))
        tail.append("    s_mov_b32 s%d, 0" % sCNT)
        tail.append("    s_add_u32 s%d, s%d, 0x%x" % (sT4, sFXC, FX_OFF + 7 * 2048))
        tail.append("L_spin256:")
        tail.append("    " + poll_ld(vFL, "s%d" % sT4, 30, 1))
        tail.append("    s_waitcnt vmcnt(0)")
        for s_ in poll_cmp(30, 1, None):
            tail.append("    " + s_)
        tail.append("    s_cbranch_scc0 L_got256")
        tail.append("    s_add_u32 s%d, s%d, 1" % (sCNT, sCNT))
        tail.append("    s_cmp_lt_u32 s%d, 0x40000" % sCNT)
        tail.append("    s_cbranch_scc1 L_spin256")
        tail.append("L_got256:")
        tail.append("    s_lshl_b32 s%d, s%d, 11" % (sT2, sW))
        tail.append("    s_add_u32 s%d, s%d, 0x%x" % (sT2, sT2, WT_OFF + 256 * 8192))
        for v in range(2):
            tail.append("    buffer_load_dwordx4 %s, v%d, %s, s%d offen offset:%d sc1" % (vr(CWL + 4 * v, 4), vL16, srd(SWS), sT2, v * 1024))
        tail.append("    s_waitcnt vmcnt(0)")
        tail.append("    s_barrier")
        tail.append("    s_branch L_ccol")

    def zdma():
        e("s_lshl_b32 s%d, s%d, 19" % (sDT, sW))
        e("s_lshl_b32 s%d, s%d, 10" % (sT1, sWP))
        e("s_add_u32 s%d, s%d, s%d" % (sDT, sDT, sT1))
        e("s_lshl_b32 s%d, s%d, 7" % (sT1, sA))
        e("s_add_u32 s%d, s%d, s%d" % (sDT, sDT, sT1))
        e("s_add_u32 s%d, s%d, 0x%x" % (sDT, sDT, ZT_OFF - 32768))

        def item(ee):
            def f():
                e("s_add_u32 m0, s%d, %d" % (sM0W, LB + ee * 1024))
                e("s_add_u32 s%d, s%d, 32768" % (sDT, sDT))
                e("buffer_load_dwordx4 v%d, %s, s%d offen sc1 lds" % (vDZ, srd(SWS), sDT))
                k.vm.issue("Z")
            return f
        return [item(ee) for ee in range(16)]

    cs = cconst()
    for s_ in cs:
        e(s_)
    fs(3, 8)
    poll_issue("pfx", vFL, "s%d" % sFXC, 31)
    if FS == 3:
        k.wait_vm("pha")
        k.vm.done.add("pha")
        fs(3, 9)
    poll_check("pha", vFH, "s%d" % sFHC, 30, mask=maskF)
    fs(3, 10)
    e("s_add_u32 s%d, s%d, 0x%x" % (sT0, sFH, FHB_OFF - FHA_OFF))
    publish("s%d" % sT0)
    k.stamp(8)
    poll_check("pfx", vFL, "s%d" % sFXC, 31)
    fs(3, 11)
    c_inputs()
    for i in range(4):
        run(hload(i))
    fs(3, 12)
    k.wait_vm(("W2", 0))
    run(w2_read_items(0))
    sch["gap"] = P("GAP3", 2)
    CSTEP = P("CSTEP", 2)
    ZP = P("ZP", 12)
    bg = None
    sFZC = sFXC
    for i in range(14):
        if i == CSTEP:
            k.stamp(9)
            fs(3, 13)
            c_block()
            k.stamp(10)
            sch["bg"] = ggen()
        if i == 1:
            e("s_add_u32 s%d, s%d, 0x%x" % (sFHC, sFHC, FHB_OFF - FHA_OFF))
            poll_issue("phb", vFH, "s%d" % sFHC, 27)
        if i == CSTEP + P("ZPUB", 2):
            k.wait_vm("zst")
            e("s_lshr_b32 s%d, s%d, 2" % (sT0, sCC))
            e("s_lshl_b32 s%d, s%d, 6" % (sT1, sW))
            e("s_add_u32 s%d, s%d, s%d" % (sT0, sT0, sT1))
            e("s_lshl_b32 s%d, s%d, 7" % (sT0, sT0))
            e("s_and_b32 s%d, s%d, 3" % (sT1, sCC))
            e("s_lshl2_add_u32 s%d, s%d, s%d" % (sT0, sT1, sT0))
            e("s_add_u32 s%d, s%d, 0x%x" % (sT0, sT0, FZ_OFF))
            publish("s%d" % sT0)
        if i == ZP - 1:
            e("s_lshl2_add_u32 s%d, s%d, s%d" % (sFZC, sWP, sW))
            e("s_lshl_b32 s%d, s%d, 11" % (sFZC, sFZC))
            e("s_add_u32 s%d, s%d, 0x%x" % (sFZC, sFZC, FZ_OFF))
            poll_issue("pz", vFZ, "s%d" % sFZC, 20)
        if i == ZP:
            poll_check("pz", vFZ, "s%d" % sFZC, 20)
            side.extend(zdma())
        k.wait_lg(("W2R", i))
        if i + 4 < 14:
            if i + 4 == 7:
                poll_check("phb", vFH, "s%d" % sFHC, 27, mask=maskF)
            side.extend(w2_dma(i + 4))
            side.extend(hload(i + 4))
        k.wait_vm([("H", i)] + ([("W2", i + 1)] if i + 1 < 14 else []))
        if i + 1 < 14:
            sch["lds"].extend(w2_read_items(i + 1))
        for l in range(4):
            for pt in range(4):
                c = ar(aAY + (l * 4 + pt) * 4, 4)
                mf(c, ar(aAF2 + (i & 1) * 16 + 4 * l, 4), ar(aHR + (i % NHS) * 16 + 4 * pt, 4), c if i else "0")
        if i < ZP:
            flush_side()
    flush_side()
    for s_ in sch["bg"]:
        e(s_)
    sch["bg"] = None
    k.stamp(11)

    e("v_xor_b32 v19, v%d, v%d" % (vQ, vC))
    e("v_lshlrev_b32 v19, 4, v19")
    e("v_lshl_add_u32 v19, v%d, 8, v19" % vC)
    e("v_add_u32 v24, s%d, v19" % sM0W)
    for dt in range(1, 4):
        e("v_xor_b32 v%d, %d, v24" % (24 + dt, 64 * dt))
    e("s_lshl_b32 s%d, s%d, 6" % (sT0, sW))
    e("v_xor_b32 v28, s%d, v19" % sT0)
    e("v_add_u32 v28, 0x%x, v28" % LS)
    for dt in range(4):
        for pt in range(4):
            e("ds_write_b128 v%d, %s offset:%d" % (24 + dt, ar(aAY + (dt * 4 + pt) * 4, 4), pt * 4096))
    e("v_lshrrev_b32 v19, 3, v%d" % vLANE)
    e("v_and_b32 v29, 7, v%d" % vLANE)
    e("v_lshlrev_b32 v30, 15, v19")
    e("v_lshl_add_u32 v30, v29, 4, v30")
    e("v_lshlrev_b32 v29, 1, v29")
    e("v_xor_b32 v29, v29, v19")
    e("v_lshlrev_b32 v29, 4, v29")
    e("v_lshl_add_u32 v29, v19, 8, v29")
    e("s_lshl_b32 s%d, s%d, 12" % (sT0, sW))
    e("v_add_u32 v10, s%d, v29" % sT0)
    e("v_xor_b32 v11, 16, v10")
    e("v_xor_b32 v12, 0x880, v10")
    e("v_xor_b32 v13, 16, v12")
    sXO = sFH
    e("s_lshl_b32 s%d, s%d, 19" % (sXO, sWP))
    e("s_lshl2_add_u32 s%d, s%d, s%d" % (sT0, sA, sW))
    e("s_lshl_b32 s%d, s%d, 10" % (sT0, sT0))
    e("s_add_u32 s%d, s%d, s%d" % (sXO, sXO, sT0))
    e("s_add_u32 s%d, s%d, s%d" % (sXO, sXO, sW2B))
    e("s_add_u32 s%d, s%d, 0x40000" % (sT4, sXO))
    XV = 64
    for ee in range(2):
        e("buffer_load_dwordx4 %s, v30, %s, s%d offen" % (vr(XV + 4 * ee, 4), srd(SX), sT4 if ee else sXO))
        k.vm.issue("xe")
    e("v_add_u32 v19, 0x%x, v%d" % (LB, vZB))
    for pt in range(4):
        e("v_xor_b32 v%d, %d, v19" % (TR2[pt], 32 * pt))
    k.wait_vm("Z")
    e("s_waitcnt lgkmcnt(0)")
    k.lg.clear()
    e("s_barrier")
    k.stamp(12)
    AS, YP, U2, Y = 96, 192, 48, 32
    aZF = 0

    def zrd(T):
        for pt in range(4):
            for hh in range(2):
                r = aZF + ((T & 1) * 4 + pt) * 4 + 2 * hh
                e("ds_read_b64_tr_b16 %s, v%d offset:%d" % (ar(r, 2), TR2[pt], T * 4096 + hh * 2048))
                k.lg.issue(("ZR", T, pt))
    zrd(0)
    for src in range(4):
        for i in range(4):
            e("ds_read_b128 %s, v%d offset:%d" % (vr(YP + 16 * src + 4 * i, 4), 10 + i, src * 16384))
            k.lg.issue("yp")

    def silu():
        for i in range(16):
            yield "v_add_f32 v%d, v%d, v%d" % (Y + i, YP + i, YP + 16 + i)
            yield "v_add_f32 v%d, v%d, v%d" % (YP + 32 + i, YP + 32 + i, YP + 48 + i)
        for i in range(16):
            yield "v_add_f32 v%d, v%d, v%d" % (Y + i, Y + i, YP + 32 + i)
        for i in range(16):
            yield "v_mul_f32 v%d, %s, v%d" % (U2 + i, hexf(-1.4426950408889634), Y + i)
        for i in range(16):
            yield "v_exp_f32 v%d, v%d" % (U2 + i, U2 + i)
        for i in range(16):
            yield "v_add_f32 v%d, 1.0, v%d" % (U2 + i, U2 + i)
        for i in range(16):
            yield "v_rcp_f32 v%d, v%d" % (U2 + i, U2 + i)
        for i in range(16):
            yield "v_mul_f32 v%d, v%d, v%d" % (Y + i, Y + i, U2 + i)
    for T in range(16):
        for pt in range(4):
            if T + 1 < 16 and pt == 1:
                zrd(T + 1)
            k.wait_lg(("ZR", T, pt))
            if T == 1 and pt == 0:
                sch["bg"] = silu()
            c = vr(AS + 4 * pt, 4)
            mf(c, vr(GB + 4 * T, 4), ar(aZF + ((T & 1) * 4 + pt) * 4, 4), c if T else "0")
    n = 0
    for s_ in sch["bg"]:
        e(s_)
        n += 1
    sch["bg"] = None
    k.wait_vm("xe")
    for i in range(8):
        e("v_lshlrev_b32 v%d, 16, v%d" % (U2 + 2 * i, XV + i))
        e("v_and_b32 v%d, 0xffff0000, v%d" % (U2 + 2 * i + 1, XV + i))
        if i == 3:
            for pt in range(4):
                e("ds_write_b128 v28, %s offset:%d" % (vr(AS + 4 * pt, 4), pt * 4096))
    for i in range(4):
        e("v_add_u32 v%d, 0x%x, v%d" % (10 + i, LS, 10 + i))
    e("s_waitcnt lgkmcnt(0)")
    e("s_barrier")
    for i in range(4):
        e("ds_read_b128 %s, v%d" % (vr(YP + 4 * i, 4), 10 + i))
        k.lg.issue(("sr", i))
    for ee in range(2):
        for i in range(8 * ee, 8 * ee + 8):
            if i % 4 == 0:
                k.wait_lg(("sr", i // 4))
            e("v_fmac_f32 v%d, v%d, v%d" % (U2 + i, Y + i, YP + i))
        for d in range(4):
            e("v_cvt_pk_bf16_f32 v%d, v%d, v%d" % (72 + 4 * ee + d, U2 + 8 * ee + 2 * d, U2 + 8 * ee + 2 * d + 1))
        e("buffer_store_dwordx4 %s, v30, %s, s%d offen" % (vr(72 + 4 * ee, 4), srd(SOUT), sT4 if ee else sXO))
    e("s_or_b32 s%d, s2, s%d" % (sT0, sW))
    e("s_cbranch_scc1 L_noep")
    e("s_mov_b32 s%d, 0x%x" % (sT0, EPOCH_OFF))
    publish("s%d" % sT0)
    k.lab("L_noep")
    k.stamp(13)
    if DIAG:
        e("v_mov_b32 v2, s%d" % sW)
    if ENC:
        e("s_waitcnt lgkmcnt(0)")
        e("s_sub_u32 s97, s%d, s66" % (64 + 2 * ENC))
        e("s_add_u32 s97, s97, 6000")
        k.lab("L_espin")
        e("s_memrealtime s[94:95]")
        e("s_waitcnt lgkmcnt(0)")
        e("s_sub_u32 s96, s94, s66")
        e("s_cmp_lt_u32 s96, s97")
        e("s_cbranch_scc1 L_espin")
    else:
        k.stamp_flush(SWS, 0, 2, 8)
    k.lab("L_done")
    e("s_endpgm")
    k.lines += tail
    k.lab("L_end")
    return k


HEADER = open(os.path.join(os.path.dirname(os.path.abspath(__file__)), "header.txt")).read()


def main(out):
    k = gen()
    s = HEADER
    s += "; @launch grid=(256,1,1) block=(256,1,1) lds=163840\n"
    s += '.amdgcn_target "amdgcn-amd-amdhsa--gfx950"\n.text\n'
    s += k.text()
    s += '.section .rodata,"a"\n'
    s += descriptor(k.name, 256, 102 if DIAG else 64, agprs=256)
    open(out, "w").write(s)


if __name__ == "__main__":
    main(sys.argv[1] if len(sys.argv) > 1 else "v5.s")
```

```python
import sys, os
from collections import deque
sys.path.insert(0, os.path.dirname(os.path.abspath(__file__)))
from asmlib import *

NAME = "recurrent_scan__spectral_gfnet__dense_activation_relu__prompt_kernel"


def P(name, default):
    return int(os.environ.get(name, default))


X1C_OFF = 0x0200000
WT_OFF = 0x0400000
H_OFF = 0x0800000
ZT_OFF = 0x1000000
FX_OFF = 0x0000000
FW_OFF = 0x0010000
FH_OFF = 0x0020000
FHB_D = 0x0008000
FZ_OFF = 0x0030000
EPOCH_OFF = 0x0040000
WS_BYTES = 0x1800000 if DIAG else 0x1200000
OOB = 0x7f000000
TAGC = 0x9E3779B9
X_BYTES = 2048 * 512 * 2
W_BYTES = 2048 * 257 * 2
W1_BYTES = 512 * 1792 * 2

SX, SWR, SWI, SW1, SW2, SOUT, SWS = 12, 16, 20, 24, 28, 32, 36
sRW, sPB, sCBK, sF0, sHF, sR, sTAG, sA, sWP, sDB = 3, 4, 5, 6, 7, 8, 9, 10, 11, 40
sXO, sRS = 41, 42
sT0, sT1, sT2, sT3, sT4 = 43, 44, 45, 46, 47
sCNT = 49
sXT, sDT = 0, 1

LA, LB, LS = 0, 65536, 131072
L_C1 = LS
L_WT = LS + 16384
L_SCR = LS + 24576
L_CS, L_ST, L_CNT, L_W256, L_DUM = L_SCR, L_SCR + 1024, L_SCR + 3072, L_SCR + 4096, L_SCR + 6144
XSLOT = [LB, LB + 16384, LB + 32768, LB + 49152, LA, LA + 16384, LA + 32768, LA + 49152]

vLANE, vL16, vC, vQ, vTAG, vCNT = 1, 2, 3, 4, 5, 25
vGO, vR0, vR1, vYW, vZB = 0, 22, 23, 21, 124
C_WA2, C_CSA, C_WB1, C_WB2, C_CSB, C_ST, C_WT, C_F = 0, 4, 8, 12, 16, 20, 24, 28


def srd(n):
    return "s[%d:%d]" % (n, n + 3)


def gen():
    k = K(NAME)
    e = k.e
    tail = []
    FS, ENC = P("FS", 0), P("ENC", 0)
    _stamp = k.stamp

    def stamp_n(i, real=False):
        if ENC:
            if i == 1 or i == ENC:
                _stamp(i, True)
            return
        if FS and 2 <= i <= 13:
            return
        _stamp(i, real)
    k.stamp = stamp_n

    def fs(mode, i):
        if FS == mode:
            _stamp(i)

    side = deque()
    sch = {"gap": 3, "n": 0, "lds": deque()}

    def mfma(d, a, b, c=None):
        e("v_mfma_f32_16x16x32_bf16 %s, %s, %s, %s" % (d, a, b, c if c is not None else d))

    def mf(d, a, b, c=None):
        mfma(d, a, b, c)
        sch["n"] += 1
        if sch["lds"]:
            sch["lds"].popleft()()
        if side and sch["n"] % sch["gap"] == 0:
            side.popleft()()

    def flush_lds():
        while sch["lds"]:
            sch["lds"].popleft()()

    def flush_side():
        flush_lds()
        while side:
            side.popleft()()

    def run(items):
        for f in items:
            f()

    def bf16_round(v):
        e("v_cvt_pk_bf16_f32 v%d, v%d, v%d" % (v, v, v))
        e("v_lshlrev_b32 v%d, 16, v%d" % (v, v))

    def publish_lines(soff):
        return ["    s_mov_b64 exec, 1",
                "    buffer_store_dword v%d, off, %s, %s sc1" % (vTAG, srd(SWS), soff),
                "    s_mov_b64 exec, -1"]

    def publish(soff):
        k.lines.extend(publish_lines(soff))
        k.vm.issue("flag")

    pollno = [0]

    def poll_ld(vaddr, soff, vt):
        return "buffer_load_dword v%d, v%d, %s, %s offen sc1" % (vt, vaddr, srd(SWS), soff)

    def poll_issue(tag, vaddr, soff, vt):
        e(poll_ld(vaddr, soff, vt))
        k.vm.issue(tag)

    def poll_check(tag, vaddr, soff, vt, pre=(), slp=None):
        n = pollno[0]
        pollno[0] += 1
        k.wait_vm(tag)
        e("v_cmp_ne_u32 vcc, v%d, v%d" % (vt, vTAG))
        e("s_cmp_lg_u64 vcc, 0")
        e("s_cbranch_scc1 L_slow%d" % n)
        k.lab("L_back%d" % n)
        tail.append("L_slow%d:" % n)
        tail.extend(pre)
        tail.extend(["    s_mov_b32 s%d, 0" % sCNT,
                     "L_spin%d:" % n,
                     "    s_sleep %d" % (P("SLP", 8) if slp is None else slp),
                     "    s_mov_b64 exec, vcc",
                     "    " + poll_ld(vaddr, soff, vt),
                     "    s_mov_b64 exec, -1",
                     "    s_waitcnt vmcnt(0)",
                     "    v_cmp_ne_u32 vcc, v%d, v%d" % (vt, vTAG),
                     "    s_cmp_lg_u64 vcc, 0",
                     "    s_cbranch_scc0 L_back%d" % n,
                     "    s_add_u32 s%d, s%d, 1" % (sCNT, sCNT),
                     "    s_cmp_lt_u32 s%d, 0x40000" % sCNT,
                     "    s_cbranch_scc1 L_spin%d" % n,
                     "    s_branch L_back%d" % n])

    gbn = [0]

    def gwait_lines(off, target):
        n = gbn[0]
        gbn[0] += 1
        chk = ["    ds_read_b32 v19, v%d offset:%d" % (vCNT, off),
               "    s_waitcnt lgkmcnt(0)",
               "    v_readfirstlane_b32 s%d, v19" % sT0,
               "    s_cmp_lt_u32 s%d, %s" % (sT0, target)]
        tail.append("L_gs%d:" % n)
        tail.append("    s_mov_b32 s%d, 0x400000" % sCNT)
        tail.append("L_gb%d:" % n)
        tail.append("    s_sub_u32 s%d, s%d, 1" % (sCNT, sCNT))
        tail.append("    s_cbranch_scc1 L_gx%d" % n)
        tail.append("    s_sleep 1")
        tail.extend(chk)
        tail.append("    s_cbranch_scc1 L_gb%d" % n)
        tail.append("    s_branch L_gx%d" % n)
        return chk + ["    s_cbranch_scc1 L_gs%d" % n, "L_gx%d:" % n]

    def garrive_lines(off):
        return ["    v_mov_b32 v19, 1",
                "    s_mov_b64 exec, 1",
                "    ds_add_u32 v%d, v19 offset:%d" % (vCNT, off),
                "    s_mov_b64 exec, -1"]

    def garrive(off):
        k.lines.extend(garrive_lines(off))
        k.lg.issue("arr")

    def gwait(off, target="4"):
        k.lines.extend(gwait_lines(off, target))
        k.lg.clear()

    def flag_voff(vv, n):
        e("v_min_u32 v19, %d, v%d" % (n, vLANE))
        e("v_lshrrev_b32 v%d, 2, v19" % vv)
        e("v_lshlrev_b32 v%d, 7, v%d" % (vv, vv))
        e("v_and_b32 v19, 3, v19")
        e("v_lshl_add_u32 v%d, v19, 2, v%d" % (vv, vv))

    def xread_addr(v0_):
        e("v_lshrrev_b32 v19, 1, v%d" % vC)
        e("v_xor_b32 v19, v19, v%d" % vQ)
        e("v_lshlrev_b32 v19, 4, v19")
        e("v_lshl_add_u32 v19, v%d, 7, v19" % vC)
        e("s_lshl_b32 s%d, s%d, 12" % (sT0, sRW))
        e("v_add_u32 v%d, s%d, v19" % (v0_, sT0))
        e("v_xor_b32 v%d, 64, v%d" % (v0_ + 1, v0_))
        e("v_add_u32 v%d, 0x%x, v%d" % (v0_ + 2, LB, v0_))
        e("v_add_u32 v%d, 0x%x, v%d" % (v0_ + 3, LB, v0_ + 1))

    def xread(dst, v0_, kk, u, ks, tag):
        hi = XSLOT[kk] >= LB
        e("ds_read_b128 %s, v%d offset:%d" % (dst, v0_ + ks + (2 if hi else 0), XSLOT[kk] % 65536 + u * 2048))
        k.lg.issue(tag)

    def tag_setup():
        e("s_waitcnt lgkmcnt(0)")
        k.lg.clear()
        e("s_add_u32 s%d, s%d, 0x%x" % (sTAG, sTAG, TAGC))
        e("v_mov_b32 v%d, s%d" % (vTAG, sTAG))

    def late_setup(hf):
        e("v_lshrrev_b32 v19, 2, v%d" % vC)
        e("v_lshl_add_u32 v19, v%d, 2, v19" % vQ)
        e("v_bfe_u32 v30, v19, 1, 2")
        e("v_lshlrev_b32 v19, 7, v19")
        e("v_and_b32 v31, 1, v%d" % vC)
        e("v_lshl_add_u32 v19, v31, 3, v19")
        e("v_lshlrev_b32 v30, 1, v30")
        e("v_bfe_u32 v31, v%d, 1, 1" % vC)
        e("v_or_b32 v30, v30, v31")
        e("v_lshl_add_u32 v%d, v30, 4, v19" % vZB)
        e("v_lshrrev_b32 v19, 3, v%d" % vLANE)
        if hf:
            e("v_add_u32 v19, 8, v19")
        e("v_and_b32 v30, 7, v%d" % vLANE)
        e("v_lshlrev_b32 v%d, 15, v19" % vGO)
        e("v_lshl_add_u32 v%d, v30, 4, v%d" % (vGO, vGO))
        e("v_lshlrev_b32 v30, 1, v30")
        e("v_xor_b32 v30, v30, v19")
        e("v_lshlrev_b32 v30, 4, v30")
        e("v_lshl_add_u32 v30, v19, 8, v30")
        e("s_lshl_b32 s%d, s%d, 12" % (sT0, sRW))
        e("s_add_u32 s%d, s%d, 0x%x" % (sT0, sT0, LB))
        e("v_add_u32 v%d, s%d, v30" % (vR0, sT0))
        e("v_xor_b32 v%d, 16, v%d" % (vR1, vR0))
        e("v_xor_b32 v%d, v%d, v%d" % (vYW, vQ, vC))
        e("v_lshlrev_b32 v%d, 4, v%d" % (vYW, vYW))
        e("v_lshl_add_u32 v%d, v%d, 8, v%d" % (vYW, vC, vYW))
        e("s_lshl_b32 s%d, s%d, 19" % (sXO, sWP))
        e("s_lshl2_add_u32 s%d, s%d, s%d" % (sT0, sA, sRW))
        e("s_lshl_b32 s%d, s%d, 10" % (sT0, sT0))
        e("s_add_u32 s%d, s%d, s%d" % (sXO, sXO, sT0))
        e("s_lshl_b32 s%d, s%d, 7" % (sT0, sDB))
        e("s_add_u32 s%d, s%d, s%d" % (sXO, sXO, sT0))
    XV = 248

    def xe_load():
        e("buffer_load_dwordx4 %s, v%d, %s, s%d offen" % (vr(XV, 4), vGO, srd(SX), sXO))
        k.vm.issue("xe")

    e("s_cmp_ge_u32 s2, 256")
    e("s_cbranch_scc1 L_done")
    k.stamp(0)
    k.stamp(1, real=True)
    e("s_load_dwordx2 s[%d:%d], s[0:1], 0" % (SX, SX + 1))
    e("s_load_dwordx2 s[%d:%d], s[0:1], 32" % (SW1, SW1 + 1))
    e("s_load_dwordx2 s[%d:%d], s[0:1], 64" % (SWS, SWS + 1))
    e("s_load_dwordx2 s[%d:%d], s[0:1], 8" % (SWR, SWR + 1))
    e("s_load_dwordx2 s[%d:%d], s[0:1], 16" % (SWI, SWI + 1))
    e("s_load_dwordx2 s[%d:%d], s[0:1], 40" % (SW2, SW2 + 1))
    e("s_load_dwordx2 s[%d:%d], s[0:1], 48" % (SOUT, SOUT + 1))
    e("v_lshrrev_b32 v19, 6, v0")
    e("s_getpc_b64 s[%d:%d]" % (sT1, sT2))
    k.lab("L_pc")
    e("s_andn2_b32 s%d, s2, 7" % sT0)
    e("v_add_lshl_u32 v20, v19, s%d, 7" % sT0)
    e("v_min_u32 v20, L_end-L_pc-4, v20")
    e("v_mov_b32 v21, s%d" % sT2)
    e("v_add_co_u32 v20, vcc, s%d, v20" % sT1)
    e("v_readfirstlane_b32 s%d, v19" % sHF)
    e("v_and_b32 v%d, 63, v0" % vLANE)
    e("v_addc_co_u32 v21, vcc, 0, v21, vcc")
    e("global_load_dword v255, v[20:21], off")
    k.vm.issue("touch")
    for s_, nb in ((SX, X_BYTES), (SWR, W_BYTES), (SWI, W_BYTES), (SW1, W1_BYTES), (SW2, W1_BYTES), (SOUT, X_BYTES), (SWS, WS_BYTES)):
        e("s_mov_b32 s%d, 0x%x" % (s_ + 2, nb))
        e("s_mov_b32 s%d, 0x00020000" % (s_ + 3))
    e("v_and_b32 v%d, 15, v0" % vC)
    e("v_bfe_u32 v%d, v0, 4, 2" % vQ)
    e("v_lshlrev_b32 v%d, 4, v%d" % (vL16, vLANE))
    e("v_mov_b32 v%d, 0x%x" % (vCNT, L_CNT))
    e("s_and_b32 s%d, s2, 7" % sA)
    e("s_lshr_b32 s%d, s2, 6" % sWP)
    e("s_bfe_u32 s%d, s2, 0x30003" % sDB)
    e("s_and_b32 s%d, s%d, 3" % (sRW, sHF))
    e("s_lshr_b32 s%d, s%d, 1" % (sPB, sA))
    e("s_lshl2_add_u32 s%d, s%d, s%d" % (sPB, sPB, sWP))
    e("s_and_b32 s%d, s%d, 1" % (sT0, sA))
    e("s_lshl3_add_u32 s%d, s%d, s%d" % (sCBK, sT0, sDB))
    e("s_lshl1_add_u32 s%d, s%d, s%d" % (sR, sWP, sDB))
    e("s_and_b32 s%d, s%d, 7" % (sR, sR))
    e("s_lshl2_add_u32 s%d, s%d, s%d" % (sRS, sPB, sRW))
    e("s_lshr_b32 s%d, s%d, 2" % (sHF, sHF))
    e("s_cbranch_scc1 L_fft")
    q_vm = list(k.vm.q)

    sXB, sM4, sM2, sHS, sFH, sHB, sFHC, sW2B = 48, 57, 58, 59, 60, 61, 62, 63
    TV = [50, 51, 52, 53, 54, 55, 56]
    sRSW, sCG, sRB = sPB, sHF, sCBK
    e("s_and_b32 s%d, s%d, 1" % (sXB, sRW))
    e("s_lshl_b32 s%d, s%d, 20" % (sXB, sXB))
    e("s_lshr_b32 s%d, s%d, 1" % (sT2, sRW))
    e("s_lshl1_add_u32 s%d, s%d, s%d" % (sT1, sPB, sT2))
    e("s_lshl_b32 s%d, s%d, 10" % (sT1, sT1))
    e("s_add_u32 s%d, s%d, s%d" % (sXB, sXB, sT1))
    e("v_lshrrev_b32 v10, 3, v%d" % vLANE)
    e("v_and_b32 v12, 7, v%d" % vLANE)
    e("v_xor_b32 v6, v12, v%d" % vQ)
    e("v_lshlrev_b32 v6, 4, v6")
    e("v_lshl_add_u32 v6, v10, 15, v6")
    e("v_xor_b32 v7, 64, v6")
    e("v_add_u32 v7, 0x40000, v7")
    e("s_lshl_b32 s%d, s%d, 12" % (sM4, sRW))
    e("s_lshl_b32 s%d, s%d, 11" % (sM2, sRW))
    e("s_sub_u32 s%d, s%d, s%d" % (sF0, sCBK, sT0))
    e("s_lshl_b32 s%d, s%d, 8" % (sF0, sF0))
    e("s_cmp_eq_u32 s%d, 7" % sDB)
    e("s_cselect_b32 s%d, 0x%x, s%d" % (sF0, 0x08000000, sF0))
    e("s_waitcnt lgkmcnt(0)")
    e("s_load_dword s%d, s[%d:%d], 0x%x" % (sTAG, SWS, SWS + 1, EPOCH_OFF))

    def xdma(kk):
        def item(ee):
            def f():
                e("s_add_u32 m0, s%d, %d" % (sM4, XSLOT[kk] + ee * 1024))
                if ee == 0:
                    e("s_add_u32 s%d, s%d, %d" % (sXT, sR, kk))
                    e("s_and_b32 s%d, s%d, 7" % (sXT, sXT))
                    e("s_lshl_b32 s%d, s%d, 7" % (sXT, sXT))
                    e("s_add_u32 s%d, s%d, s%d" % (sXT, sXT, sXB))
                elif ee == 2:
                    e("s_add_u32 s%d, s%d, 0x80000" % (sXT, sXT))
                else:
                    k.nop(1)
                e("buffer_load_dwordx4 v%d, %s, s%d offen lds" % (6 + (ee & 1), srd(SX), sXT))
                k.vm.issue(("X", kk))
            return f
        return [item(ee) for ee in range(4)]

    def w1dma(reg, kk):
        off = " offset:128" if reg else ""
        lb = (LA - 128 if reg else LB) + kk * 8192

        def f0():
            e("s_add_u32 s%d, s%d, %d" % (sDT, sR, kk))
            e("s_and_b32 s%d, s%d, 7" % (sDT, sDT))
            e("s_mul_i32 s%d, s%d, %d" % (sDT, sDT, 64 * 3584))
            e("s_add_u32 m0, s%d, %d" % (sM2, lb + 128))
            e("s_add_u32 s%d, s%d, s%d" % (sDT, sDT, sF0))
            if reg:
                e("s_add_u32 s%d, s%d, 128" % (sDT, sDT))
            else:
                e("s_add_u32 m0, s%d, %d" % (sM2, lb))
                k.nop(1)
            e("buffer_load_dwordx4 v8, %s, s%d offen lds" % (srd(SW1), sDT))
            k.vm.issue(("W1", reg, kk))

        def f1():
            e("s_add_u32 m0, s%d, %d" % (sM2, (LA if reg else LB) + kk * 8192 + 1024))
            k.nop(1)
            e("buffer_load_dwordx4 v9, %s, s%d offen lds" % (srd(SW1), sDT))
            k.vm.issue(("W1", reg, kk))
        return [f0, f1]

    def mtouch(sr_):
        e("s_lshl2_add_u32 s%d, s2, s%d" % (sT0, sRW))
        e("s_mul_i32 s%d, s%d, %d" % (sT0, sT0, 14 * 128))
        e("v_lshlrev_b32 v19, 7, v%d" % vLANE)
        e("s_mov_b32 m0, 0x%x" % L_DUM)
        e("s_mov_b64 exec, 0x3fff")
        e("buffer_load_dword v19, %s, s%d offen lds" % (srd(sr_), sT0))
        k.vm.issue("touch")
        e("s_mov_b64 exec, -1")
    T1P, T2P = P("T1P", 99), P("T2P", 99)

    def touches(pos):
        if T1P == pos:
            mtouch(SW1)
        if T2P == pos:
            mtouch(SW2)
    run(xdma(0))
    touches(0)
    run(xdma(1))
    touches(1)
    k.stamp(2)
    e("s_lshl_b32 s%d, s%d, 4" % (sT0, sRW))
    e("v_add_u32 v11, s%d, v10" % sT0)
    e("v_mul_u32_u24 v11, 3584, v11")
    e("v_and_b32 v13, 1, v%d" % vQ)
    e("v_lshlrev_b32 v13, 1, v13")
    e("v_xor_b32 v13, v13, v12")
    e("v_lshl_add_u32 v8, v13, 4, v11")
    e("v_xor_b32 v13, 4, v13")
    e("v_lshl_add_u32 v9, v13, 4, v11")
    e("v_add_u32 v9, %d, v9" % (8 * 3584))
    vWS, vWW, vWR, vD2 = 15, 14, 13, 24
    e("v_lshlrev_b32 v15, 13, v10")
    e("v_lshl_add_u32 v15, v12, 4, v15")
    e("s_lshl_b32 s%d, s%d, 1" % (sT0, sRW))
    e("v_xor_b32 v14, s%d, v12" % sT0)
    e("v_lshlrev_b32 v14, 4, v14")
    e("v_lshl_add_u32 v14, v%d, 7, v14" % vLANE)
    e("v_add_u32 v14, 0x%x, v14" % L_WT)
    e("v_xor_b32 v13, v10, v12")
    e("v_lshlrev_b32 v13, 4, v13")
    e("v_lshl_add_u32 v13, v10, 7, v13")
    e("s_add_u32 s%d, s%d, 0x%x" % (sT0, sM2, L_WT))
    e("v_add_u32 v13, s%d, v13" % sT0)
    e("v_lshlrev_b32 v19, 1, v%d" % vQ)
    e("v_xor_b32 v19, v19, v12")
    e("v_lshlrev_b32 v19, 4, v19")
    e("v_lshl_add_u32 v%d, v10, 10, v19" % vD2)
    xread_addr(26)
    e("v_mov_b32 v19, 0")
    e("v_lshl_add_u32 v30, v%d, 2, v%d" % (vC, vCNT))
    e("ds_write_b32 v30, v19")
    XF, AF, ACC, HO, CS, ONES = 128, 32, 64, 32, 112, 116
    for d in range(4):
        e("v_mov_b32 v%d, 0x3f803f80" % (ONES + d))
    TRB = [16, 17, 18, 20]
    e("v_lshrrev_b32 v19, 2, v%d" % vC)
    e("v_lshl_add_u32 v30, v%d, 3, v19" % vQ)
    e("v_lshlrev_b32 v30, 7, v30")
    e("v_and_b32 v31, 1, v%d" % vC)
    e("v_lshl_add_u32 v30, v31, 3, v30")
    e("v_bfe_u32 v19, v%d, 3, 1" % vC)
    e("v_and_b32 v31, 1, v%d" % vQ)
    e("v_lshl_or_b32 v19, v31, 1, v19")
    e("v_xor_b32 v19, s%d, v19" % sRW)
    e("v_lshlrev_b32 v19, 1, v19")
    e("v_bfe_u32 v31, v%d, 1, 1" % vC)
    e("v_or_b32 v19, v19, v31")
    e("v_lshl_add_u32 v30, v19, 4, v30")
    e("v_add_u32 v30, 0x%x, v30" % LB)
    for l in range(4):
        e("v_xor_b32 v%d, %d, v30" % (TRB[l], 32 * l))
    vCSA, RN, C1 = 99, 120, AF + 16
    TR2 = [100, 101, 102, 103]
    HV = [104, 105, 106, 107]
    vFH = 108
    def setup_a():
        e("s_lshl_b32 s%d, s%d, 6" % (sT0, sRW))
        e("s_add_u32 s%d, s%d, 0x%x" % (sT0, sT0, L_CS))
        e("v_lshl_add_u32 v%d, v%d, 4, s%d" % (vCSA, vQ, sT0))
        e("s_lshl_b32 s%d, s%d, 9" % (sT0, sRW))
        e("s_add_u32 s%d, s%d, 0x%x" % (sT0, sT0, L_ST))
        e("v_lshl_add_u32 v96, v%d, 2, s%d" % (vC, sT0))
        e("s_lshr_b32 s%d, s%d, 1" % (sT1, sRW))
        e("s_lshl_b32 s%d, s%d, 10" % (sT1, sT1))
        e("v_add_u32 v97, s%d, v%d" % (sT1, vL16))
        e("v_xor_b32 v98, 1024, v97")
        e("s_mul_i32 s%d, s%d, %d" % (sHS, sRS, 2 * 56 * 1024))
        e("s_lshl4_add_u32 s%d, s%d, s%d" % (sHS, sF0, sHS))
        e("s_add_u32 s%d, s%d, 0x%x" % (sHS, sHS, H_OFF))
        e("s_lshr_b32 s%d, s%d, 3" % (sFH, sRS))
        e("s_and_b32 s%d, s%d, 1" % (sT0, sRS))
        e("s_lshl1_add_u32 s%d, s%d, s%d" % (sFH, sFH, sT0))
        e("s_lshl4_add_u32 s%d, s%d, s%d" % (sFH, sFH, sCBK))
        e("s_lshl_b32 s%d, s%d, 7" % (sFH, sFH))
        e("s_bfe_u32 s%d, s%d, 0x20001" % (sT0, sRS))
        e("s_lshl2_add_u32 s%d, s%d, s%d" % (sFH, sT0, sFH))
        e("s_add_u32 s%d, s%d, 0x%x" % (sFH, sFH, FH_OFF))

    def setup_b():
        e("s_lshr_b32 s%d, s%d, 1" % (sT0, sRW))
        e("s_mul_i32 s%d, s%d, 28" % (sT0, sT0))
        e("s_and_b32 s%d, s%d, 1" % (sT1, sRW))
        e("s_add_u32 s%d, s%d, s%d" % (sT0, sT1, sT0))
        e("s_cmp_eq_u32 s%d, 7" % sR)
        e("s_cselect_b32 s%d, 0, s%d" % (sT1, sR))
        for i in range(7):
            e("s_lshl2_add_u32 s%d, s%d, s%d" % (TV[i], sT1, sT0))
            if i < 6:
                e("s_add_u32 s%d, s%d, 1" % (sT1, sT1))
                e("s_cmp_eq_u32 s%d, 7" % sT1)
                e("s_cselect_b32 s%d, 0, s%d" % (sT1, sT1))
        e("s_lshl_b32 s%d, s%d, 7" % (sW2B, sDB))
        e("s_lshl_b32 s%d, s%d, 14" % (sRB, sRW))
        e("s_add_u32 s%d, s%d, 0x%x" % (sRB, sRB, LB))

    def setup_c():
        late_setup(0)
        e("v_add_u32 v30, s%d, v%d" % (sRB, vZB))
        for l in range(4):
            e("v_xor_b32 v%d, %d, v30" % (TR2[l], 32 * l))
        for pt in range(4):
            e("v_add_u32 v%d, 0x%x, v%d" % (HV[pt], pt * 4 * 56 * 1024, vL16))
        e("s_lshl4_add_u32 s%d, s%d, s%d" % (sHB, sA, sWP))
        e("s_mul_i32 s%d, s%d, %d" % (sHB, sHB, 56 * 1024))
        e("s_add_u32 s%d, s%d, 0x%x" % (sHB, sHB, H_OFF))
        flag_voff(vFH, 27)
        e("s_lshr_b32 s%d, s%d, 1" % (sT0, sWP))
        e("s_lshl1_add_u32 s%d, s%d, s%d" % (sFHC, sA, sT0))
        e("s_lshr_b32 s%d, s%d, 1" % (sT0, sRW))
        e("s_lshl1_add_u32 s%d, s%d, s%d" % (sFHC, sFHC, sT0))
        e("s_lshl_b32 s%d, s%d, 10" % (sFHC, sFHC))
        e("s_add_u32 s%d, s%d, 0x%x" % (sFHC, sFHC, FH_OFF))

    setup_a()
    setup_b()
    setup_c()
    e("s_lshr_b32 s%d, s2, 3" % sT0)
    e("s_lshl2_add_u32 s%d, s%d, s%d" % (sT0, sT0, sRW))
    e("s_mul_i32 s%d, s%d, 7" % (sT0, sT0))
    e("v_add_u32 v19, s%d, v10" % sT0)
    e("v_and_b32 v30, 0xffc0, v19")
    e("v_add_u32 v19, v19, v30")
    e("v_lshlrev_b32 v30, 7, v12")
    e("v_lshl_add_u32 v109, v19, 10, v30")
    run(xdma(2))
    run(xdma(3))
    touches(2)
    tag_setup()
    k.stamp(3)

    def X(u, T):
        return vr(XF + (u * 16 + T) * 4, 4)

    WR16 = 64

    def wloads():
        items = []

        def head():
            e("s_lshr_b32 s%d, s2, 5" % sRSW)
            e("s_lshl3_add_u32 s%d, s%d, s%d" % (sRSW, sA, sRSW))
            e("s_and_b32 s%d, s%d, 3" % (sCG, sDB))
            e("s_lshr_b32 s%d, s%d, 4" % (sT1, sRSW))
            e("s_lshl_b32 s%d, s%d, 4" % (sT1, sT1))
            e("s_lshl1_add_u32 s%d, s%d, s%d" % (sT1, sRW, sT1))
            e("s_and_b32 s%d, s%d, 1" % (sT2, sRSW))
            e("s_lshl3_add_u32 s%d, s%d, s%d" % (sT1, sT2, sT1))
            e("s_bfe_u32 s%d, s%d, 0x30001" % (sT2, sRSW))
            e("s_lshl_b32 s%d, s%d, 8" % (sT2, sT2))
            e("s_add_u32 s%d, s%d, s%d" % (sT1, sT1, sT2))
            e("s_mul_i32 s%d, s%d, 514" % (sT1, sT1))
            e("s_lshl_b32 s%d, s%d, 7" % (sT4, sCG))
            e("s_add_u32 s%d, s%d, s%d" % (sT4, sT4, sT1))
            e("v_lshlrev_b32 v11, 1, v%d" % vLANE)
            e("v_and_b32 v19, 3, v%d" % vLANE)
            e("v_mul_u32_u24 v19, 32896, v19")
            e("v_bfe_u32 v30, v%d, 2, 1" % vLANE)
            e("v_mul_u32_u24 v30, 514, v30")
            e("v_add_u32 v19, v19, v30")
            e("s_cmp_eq_u32 s%d, 3" % sCG)
            e("s_cselect_b32 s%d, s%d, 0x%x" % (sT1, sT1, OOB))
            e("buffer_load_ushort v120, v19, %s, s%d offen offset:512" % (srd(SWR), sT1))
            k.vm.issue("wg")
            e("buffer_load_ushort v121, v19, %s, s%d offen offset:512" % (srd(SWI), sT1))
            k.vm.issue("wg")
        items.append(head)
        nt = " nt" if P("NTW", 1) else ""
        for r in range(4):
            def f(r=r):
                if r:
                    e("s_add_u32 s%d, s%d, 32896" % (sT4, sT4))
                for cb in range(2):
                    for arr, sr_ in ((0, SWR), (1, SWI)):
                        e("buffer_load_ushort v%d, v11, %s, s%d offen offset:%d%s" % (WR16 + 8 * cb + 4 * arr + r, srd(sr_), sT4, 514 * cb, nt))
                        k.vm.issue("wg")
            items.append(f)
        return items

    def wt_a():
        k.wait_vm("wg")
        for cb in range(2):
            for r in range(4):
                e("v_lshl_or_b32 v%d, v%d, 16, v%d" % (WR16 + 8 * cb + r, WR16 + 8 * cb + 4 + r, WR16 + 8 * cb + r))
        e("v_lshl_or_b32 v120, v121, 16, v120")
        e("ds_write_b128 v%d, %s" % (vWW, vr(WR16, 4)))
        k.lg.issue("wtw")
        e("v_xor_b32 v19, 16, v%d" % vWW)
        e("ds_write_b128 v19, %s" % vr(WR16 + 8, 4))
        k.lg.issue("wtw")
        e("s_lshl_b32 s%d, s%d, 5" % (sT0, sRW))
        e("s_add_u32 s%d, s%d, 0x%x" % (sT0, sT0, L_W256))
        e("v_lshl_add_u32 v19, v%d, 2, s%d" % (vLANE, sT0))
        e("s_mov_b64 exec, 0xff")
        e("ds_write_b32 v19, v120")
        k.lg.issue("wtw")
        e("s_mov_b64 exec, -1")

    def wt_b():
        for h in range(2):
            e("ds_read_b128 %s, v%d offset:%d" % (vr(WR16 + 4 * h, 4), vWR, 1024 * h))
            k.lg.issue("wtr")
        e("v_add_u32 v19, 0x%x, v%d" % (L_W256, vL16))
        e("ds_read_b128 %s, v19" % vr(WR16 + 8, 4))
        k.lg.issue("wtr")

    def wt_c():
        k.wait_lg("wtr")
        e("s_lshl2_add_u32 s%d, s%d, s%d" % (sT2, sCG, sRW))
        e("s_lshl_b32 s%d, s%d, 17" % (sT0, sT2))
        e("s_lshl_b32 s%d, s%d, 7" % (sT1, sRSW))
        e("s_add_u32 s%d, s%d, s%d" % (sT0, sT0, sT1))
        e("s_add_u32 s%d, s%d, 0x%x" % (sT0, sT0, WT_OFF))
        e("buffer_store_dwordx4 %s, v%d, %s, s%d offen sc1" % (vr(WR16, 4), vWS, srd(SWS), sT0))
        k.vm.issue("wtst")
        e("s_add_u32 s%d, s%d, 0x10000" % (sT0, sT0))
        e("buffer_store_dwordx4 %s, v%d, %s, s%d offen sc1" % (vr(WR16 + 4, 4), vWS, srd(SWS), sT0))
        k.vm.issue("wtst")
        e("s_add_u32 s%d, s%d, 0x%x" % (sT1, sT1, WT_OFF + 256 * 8192))
        e("s_cmp_eq_u32 s%d, 12" % sT2)
        e("s_cselect_b32 s%d, s%d, 0x%x" % (sT1, sT1, OOB))
        e("s_mov_b64 exec, 0xff")
        e("buffer_store_dwordx4 %s, v%d, %s, s%d offen sc1" % (vr(WR16 + 8, 4), vL16, srd(SWS), sT1))
        k.vm.issue("wtst")
        e("s_mov_b64 exec, -1")

    def wt_d():
        e("s_lshl2_add_u32 s%d, s%d, s%d" % (sT2, sCG, sRW))
        e("s_lshr_b32 s%d, s%d, 2" % (sT1, sRSW))
        e("s_lshl4_add_u32 s%d, s%d, s%d" % (sT0, sT2, sT1))
        e("s_lshl_b32 s%d, s%d, 7" % (sT0, sT0))
        e("s_and_b32 s%d, s%d, 3" % (sT1, sRSW))
        e("s_lshl2_add_u32 s%d, s%d, s%d" % (sT0, sT1, sT0))
        e("s_add_u32 s%d, s%d, 0x%x" % (sT0, sT0, FW_OFF))
        e("s_add_u32 s%d, s%d, 0x%x" % (sT1, sT0, 4 * 2048))
        e("s_cmp_eq_u32 s%d, 12" % sT2)
        e("s_cselect_b32 s%d, s%d, 0x%x" % (sT1, sT1, OOB))
        k.wait_vm("wtst")
        publish("s%d" % sT0)
        publish("s%d" % sT1)
        e("s_mov_b32 s%d, 0" % sHF)

    def xstage(s_):
        for kk in (2 * s_, 2 * s_ + 1):
            for u in range(2):
                for ks in range(2):
                    xread(X(u, 2 * kk + ks), 26, kk, u, ks, ("XR", s_))
    WPOS = P("WPOS", -1)
    if WPOS < 0:
        run(wloads())
    for s_ in range(4):
        k.wait_vm(("X", 2 * s_ + 1))
        if s_:
            k.wait_lg([("XR", s_ - 1)] + (["wtw"] if s_ == WPOS + 3 else []))
        e("s_barrier")
        fs(6, 2 + s_)
        xstage(s_)
        if s_ == WPOS + 3:
            wt_b()
        if s_ < 2:
            run(xdma(4 + 2 * s_) + xdma(5 + 2 * s_))
        else:
            for kk in range(4 * (s_ - 2), 4 * (s_ - 1)):
                run(w1dma(0, kk))
        if s_ == WPOS:
            run(wloads())
        touches(3 + s_)
        if s_ == WPOS + 2:
            wt_a()
        if s_ == WPOS + 3:
            wt_c()
    k.wait_vm([("W1", 0, kk) for kk in range(4)])
    k.wait_lg(("XR", 3))
    e("s_barrier")
    k.stamp(4)
    fs(6, 6)


    def rdA(reg, T):
        items = []
        for l in range(4):
            for hh in range(2):
                def f(l=l, hh=hh):
                    e("ds_read_b64_tr_b16 %s, v%d offset:%d" % (vr(AF + (T & 1) * 16 + 4 * l + 2 * hh, 2), TRB[l], T * 4096 + hh * 512))
                    k.lg.issue(("A", reg, T))
                items.append(f)
        return items

    def gpass(reg, hooks, mid):
        fs(8 + reg, 2)
        run(rdA(reg, 0))
        for T in range(16):
            k.wait_lg(("A", reg, T))
            if T == 7:
                gwait(mid)
            if T + 1 < 16:
                sch["lds"].extend(rdA(reg, T + 1))
            for l in range(4):
                a = vr(AF + (T & 1) * 16 + 4 * l, 4)
                for u in range(2):
                    c = vr(ACC + (l * 2 + u) * 4, 4)
                    mf(c, a, X(u, T), c if T else "0")
                if l == 0:
                    mf(vr(CS, 4), a, vr(ONES, 4), vr(CS, 4) if T else "0")
            flush_lds()
            run(hooks.get(T, []))
            if T < 11:
                fs(8 + reg, 3 + T)
        flush_side()

    def h_out(reg, cw, tag):
        k.nop(2)
        e("s_mov_b32 exec_lo, 0x00010001")
        e("s_mov_b32 exec_hi, 0x00010001")
        e("ds_write_b128 v%d, %s offset:%d" % (vCSA, vr(CS, 4), 256 * reg))
        e("s_mov_b64 exec, -1")
        e("s_waitcnt lgkmcnt(0)")
        garrive(cw)
        e("s_add_u32 s%d, s%d, %d" % (sT2, sHS, 2048 * reg))
        e("s_add_u32 s%d, s%d, %d" % (sT3, sHS, 2048 * reg + 56 * 1024))
        if reg == 0:
            gwait(C_ST)
            for u in range(2):
                e("ds_read2_b32 %s, v96 offset0:%d offset1:%d" % (vr(RN + 2 * u, 2), 16 * u, 32 + 16 * u))
        gwait(cw)
        for l in range(1, 4):
            e("v_xor_b32 v19, %d, v%d" % (l * 64, vCSA))
            e("ds_read_b128 %s, v19 offset:%d" % (vr(C1 + 4 * l, 4), 256 * reg))
            k.lg.issue(("C1", reg, l))
        for l in range(4):
            if l:
                k.wait_lg(("C1", reg, l))
            c1 = C1 + 4 * l if l else CS
            for u in range(2):
                a = ACC + (l * 2 + u) * 4
                for r in range(4):
                    e("v_fmac_f32 v%d, v%d, v%d" % (a + r, RN + 2 * u + 1, c1 + r))
                for r in range(4):
                    e("v_mul_f32 v%d, v%d, v%d" % (a + r, a + r, RN + 2 * u))
                o = HO + ((l >> 1) * 2 + u) * 4 + (l & 1) * 2
                e("v_cvt_pk_bf16_f32 v%d, v%d, v%d" % (o, a, a + 1))
                e("v_cvt_pk_bf16_f32 v%d, v%d, v%d" % (o + 1, a + 2, a + 3))
        for i in range(16):
            e("v_pk_max_i16 v%d, v%d, 0" % (HO + i, HO + i))
        e("s_bitcmp0_b32 s%d, 0" % sRW)
        e("s_cbranch_scc1 L_nosw%d" % reg)
        for i in range(4):
            e("v_swap_b32 v%d, v%d" % (HO + 4 * i, HO + 4 * i + 2))
            e("v_swap_b32 v%d, v%d" % (HO + 4 * i + 1, HO + 4 * i + 3))
        k.lab("L_nosw%d" % reg)
        for pr in range(2):
            for u in range(2):
                e("buffer_store_dwordx4 %s, v%d, %s, s%d offen sc1" % (vr(HO + (pr * 2 + u) * 4, 4), 97 + pr, srd(SWS), sT2 + u))
                k.vm.issue(tag)

    def land(reg, lo, hi, cw):
        def f():
            k.wait_vm([("W1", reg, kk) for kk in range(lo, hi)])
            garrive(cw)
        return f

    def w2piece(half, lo, hi):
        def f():
            m = ((1 << (8 * hi)) - 1) & ~((1 << (8 * lo)) - 1)
            e("s_mov_b32 m0, 0x%x" % L_DUM)
            e("s_mov_b32 exec_lo, 0x%x" % (m & 0xffffffff))
            e("s_mov_b32 exec_hi, 0x%x" % (m >> 32))
            if half:
                e("s_mov_b32 s%d, 0x10000" % sT0)
            e("buffer_load_dword v109, %s, %s offen lds" % (srd(SW2), "s%d" % sT0 if half else "0"))
            k.vm.issue("touch")
            e("s_mov_b64 exec, -1")
        return f
    FSCH = [int(x_) for x_ in os.environ.get("FSCH", "8,10,12,15,18,21,24,27").split(",")]
    pieces = [w2piece(h_, lo, hi) for h_ in range(2) for lo, hi in ((0, 2), (2, 4), (4, 6), (6, 7))]
    sch["gap"] = P("GAPA", 4)
    for kk in range(8):
        side.extend(w1dma(1, kk))
    ha = {3: [land(0, 4, 8, C_WA2)], 11: [land(1, 0, 4, C_WB1)], P("WTD", 2): [wt_d], 14: [land(1, 4, 8, C_WB2)]}
    for st_, pc_ in zip(FSCH, pieces):
        if st_ < 16:
            ha.setdefault(st_, []).append(pc_)
    gpass(0, ha, C_WA2)
    k.stamp(5)
    h_out(0, C_CSA, "ha")
    k.stamp(6)

    for l in range(4):
        e("v_subrev_u32 v%d, 0x%x, v%d" % (TRB[l], LB, TRB[l]))
    gwait(C_WB1)
    AY, HR, NHS, AF2 = 32, 128, 5, 208

    def w2_dma(i):
        def item(ee):
            def f():
                e("s_add_u32 m0, s%d, %d" % (sRB, (i % 4) * 4096 + ee * 1024))
                if ee == 0:
                    e("s_lshl_b32 s%d, s%d, 15" % (sDT, TV[i % 7]))
                    e("s_add_u32 s%d, s%d, s%d" % (sDT, sDT, sW2B))
                    if i >= 7:
                        e("s_add_u32 s%d, s%d, 0x10000" % (sDT, sDT))
                else:
                    e("s_add_u32 s%d, s%d, 8192" % (sDT, sDT))
                e("buffer_load_dwordx4 v%d, %s, s%d offen lds" % (vD2, srd(SW2), sDT))
                k.vm.issue(("W2", i))
            return f
        return [item(ee) for ee in range(4)]

    def w2_read_items(i):
        items = []
        for l in range(4):
            for hh in range(2):
                def f(l=l, hh=hh):
                    r = AF2 + (i & 1) * 16 + 4 * l + 2 * hh
                    e("ds_read_b64_tr_b16 %s, v%d offset:%d" % (vr(r, 2), TR2[l], (i % 4) * 4096 + hh * 2048))
                    k.lg.issue(("W2R", i))
                items.append(f)
        return items

    def pubHA():
        k.wait_vm("ha")
        publish("s%d" % sFH)
        e("s_add_u32 s%d, s%d, 0x%x" % (sFH, sFH, FHB_D))
    hb = {T: [] for T in range(16)}
    hb[P("W2T0", 3)].append(lambda: [side.extend(w2_dma(i)) for i in range(4)])
    hb[P("PHA", 3)].append(pubHA)
    for st_, pc_ in zip(FSCH, pieces):
        if 16 <= st_ < 32:
            hb[st_ - 16].append(pc_)
    hb[P("PPA", 14)].append(lambda: poll_issue("ph", vFH, "s%d" % sFHC, 31))
    sch["gap"] = P("GAPB", 4)
    gpass(1, hb, C_WB2)
    k.stamp(7)
    h_out(1, C_CSB, "hb")

    def hload(i):
        def item(pt):
            def f():
                if pt == 0:
                    e("s_lshl_b32 s%d, s%d, 10" % (sXT, TV[i % 7]))
                    e("s_add_u32 s%d, s%d, s%d" % (sXT, sXT, sHB))
                e("buffer_load_dwordx4 %s, v%d, %s, s%d offen offset:%d sc1" % (vr(HR + (i % NHS) * 16 + 4 * pt, 4), HV[pt], srd(SWS), sXT, 2048 if i >= 7 else 0))
                k.vm.issue(("H", i))
            return f
        return [item(pt) for pt in range(4)]
    poll_check("ph", vFH, "s%d" % sFHC, 31, pre=["    s_waitcnt vmcnt(0)"] + publish_lines("s%d" % sFH))
    k.stamp(8)
    HLA = P("HLA", 4)
    for i in range(HLA):
        run(hload(i))
        if i == min(P("PHB", 1), HLA - 1):
            k.wait_vm("hb")
            publish("s%d" % sFH)
    xe_load()
    k.wait_vm(("W2", 0))
    run(w2_read_items(0))
    sch["gap"] = P("GAP3", 2)
    fs(7, 2)
    for i in range(14):
        k.wait_lg(("W2R", i))
        if i + HLA == 7:
            poll_check("phb", vFH, "s%d" % sFHC, 31)
        if i + HLA < 14:
            side.extend(hload(i + HLA))
        if i + 4 < 14:
            side.extend(w2_dma(i + 4))
        k.wait_vm([("H", i)] + ([("W2", i + 1)] if i + 1 < 14 else []))
        if i == 6 - HLA:
            e("s_add_u32 s%d, s%d, 0x%x" % (sFHC, sFHC, FHB_D))
            poll_issue("phb", vFH, "s%d" % sFHC, 31)
        if i + 1 < 14:
            sch["lds"].extend(w2_read_items(i + 1))
        for l in range(4):
            for pt in range(4):
                c = vr(AY + (l * 4 + pt) * 4, 4)
                mf(c, vr(AF2 + (i & 1) * 16 + 4 * l, 4), vr(HR + (i % NHS) * 16 + 4 * pt, 4), c if i else "0")
        flush_side()
        if i < 11:
            fs(7, 3 + i)
        if i == 2:
            k.stamp(9)
        if i == 7:
            k.stamp(10)
    k.stamp(11)
    e("v_add_u32 v10, s%d, v%d" % (sRB, vYW))
    for dt in range(1, 4):
        e("v_xor_b32 v%d, %d, v10" % (10 + dt, 64 * dt))
    k.nop(4)
    for dt in range(4):
        for pt in range(4):
            e("ds_write_b128 v%d, %s offset:%d" % (10 + dt, vr(AY + (dt * 4 + pt) * 4, 4), pt * 4096))
    k.lab("L_final")
    main_lines = k.lines

    k.lines = []
    k.vm.q, k.lg.q = list(q_vm), []
    k.lab("L_fft")
    sCC, sPL, sZR, sZI, sSC, sFXC, sGB, sFX = 48, 50, 51, 52, 53, 54, 55, 56
    C64, S64, N64, C32, S32, N32, T1C, T1S, T2C, T2S = 128, 136, 144, 152, 160, 168, 176, 184, 192, 200
    XB, PA, FB, SUM, GR, ONES = 32, 64, 96, 208, 216, 224
    e("s_waitcnt lgkmcnt(0)")
    e("s_load_dword s%d, s[%d:%d], 0x%x" % (sTAG, SWS, SWS + 1, EPOCH_OFF))

    def fgen(tl):
        t = 32
        e("s_lshl_b32 s%d, s%d, 5" % (sT0, sCBK))
        e("v_add_u32 v%d, s%d, v%d" % (t, sT0, vC))
        if tl:
            e("v_add_u32 v%d, 16, v%d" % (t, t))
        e("v_lshrrev_b32 v%d, 1, v%d" % (t + 1, t))
        e("v_and_b32 v%d, 1, v%d" % (t + 2, t))
        e("v_cvt_f32_u32 v%d, v%d" % (t + 2, t + 2))
        e("v_mul_f32 v%d, %s, v%d" % (t + 2, hexf(0.25), t + 2))
        if tl == 0:
            e("v_cmp_eq_u32 vcc, 1, v%d" % t)
            e("v_mov_b32 v%d, 256" % (t + 3))
        e("s_lshl_b32 s%d, s%d, 6" % (sT0, sR))
        if tl == 0:
            e("v_cndmask_b32 v%d, v%d, v%d, vcc" % (t + 1, t + 1, t + 3))
            e("v_cndmask_b32 v%d, v%d, 0, vcc" % (t + 2, t + 2))
        e("v_cvt_f32_u32 v%d, v%d" % (t + 1, t + 1))
        e("v_mul_f32 v%d, %s, v%d" % (t + 1, hexf(1.0 / 512), t + 1))
        e("v_lshl_add_u32 v%d, v%d, 3, s%d" % (t + 3, vQ, sT0))
        e("v_cvt_f32_u32 v%d, v%d" % (t + 3, t + 3))
        e("v_fma_f32 v%d, v%d, v%d, v%d" % (t + 2, t + 3, t + 1, t + 2))
        e("v_fract_f32 v%d, v%d" % (t + 8, t + 2))
        e("v_mul_f32 v%d, %s, v%d" % (t + 3, hexf(32.0), t + 1))
        e("v_fract_f32 v%d, v%d" % (t + 3, t + 3))
        for jj in range(1, 8):
            e("v_add_f32 v%d, v%d, v%d" % (t + 8 + jj, t + 7 + jj, t + 1))
        for Tf in range(4):
            for jj in range(8):
                e("v_cos_f32 v%d, v%d" % (t + 16 + jj, t + 8 + jj))
            if Tf < 3:
                for jj in range(8):
                    e("v_add_f32 v%d, v%d, v%d" % (t + 8 + jj, t + 8 + jj, t + 3))
            else:
                k.nop(1)
            for d in range(4):
                e("v_cvt_pk_bf16_f32 v%d, v%d, v%d" % (FB + 16 * tl + 4 * Tf + d, t + 16 + 2 * d, t + 17 + 2 * d))
    fgen(0)
    fgen(1)
    vSM, vAL, vBE = 16, 17, 18
    e("v_bfe_u32 v19, v%d, 1, 2" % vC)
    e("v_cvt_f32_u32 v19, v19")
    e("v_mul_f32 v19, %s, v19" % hexf(0.25))
    e("v_cos_f32 v%d, v19" % vAL)
    e("v_sin_f32 v%d, v19" % vBE)
    e("v_bfe_u32 v%d, v%d, 1, 1" % (vSM, vC))
    e("v_mul_u32_u24 v%d, 0x8000, v%d" % (vSM, vSM))
    e("v_lshl_or_b32 v%d, v%d, 16, v%d" % (vSM, vSM, vSM))
    e("v_rndne_f32 v%d, v%d" % (vAL, vAL))
    e("v_rndne_f32 v%d, v%d" % (vBE, vBE))
    e("v_lshlrev_b32 v19, 31, v%d" % vC)
    e("v_xor_b32 v%d, v19, v%d" % (vBE, vBE))
    for d in range(4):
        e("v_mov_b32 v%d, 0x3f803f80" % (ONES + d))
    xread_addr(26)
    k.stamp(2)

    def cconst():
        t = 32
        slot = [16 * (jj >> 2) + (jj & 3) for jj in range(8)]
        yield "s_lshl_b32 s%d, s%d, 4" % (sT3, sRW)
        yield "v_add_u32 v%d, s%d, v%d" % (t + 24, sT3, vC)
        yield "v_cvt_f32_u32 v%d, v%d" % (t + 27, vQ)
        yield "v_cvt_f32_u32 v%d, v%d" % (t + 25, t + 24)
        yield "v_mul_f32 v%d, 4.0, v%d" % (t + 27, t + 27)
        yield "v_cvt_f32_u32 v%d, v%d" % (t + 28, vC)
        yield "v_and_b32 v%d, 1, v%d" % (t + 30, vC)
        for jj in range(8):
            yield "v_add_f32 v%d, %s, v%d" % (t + 32 + jj, hexf(float(slot[jj])), t + 27)
        yield "v_mul_u32_u24 v%d, 0x8000, v%d" % (t + 30, t + 30)
        yield "v_mul_f32 v%d, %s, v%d" % (t + 26, hexf(1.0 / 64), t + 25)
        yield "v_lshl_or_b32 v%d, v%d, 16, v%d" % (t + 30, t + 30, t + 30)
        for (scale, Cb, Sb, Nb, flip) in ((t + 26, C64, S64, N64, "v%d" % (t + 30)), (t + 29, C32, S32, N32, "0x80000000")):
            if Cb == C32:
                yield "v_mul_f32 v%d, %s, v%d" % (t + 29, hexf(1.0 / 32), t + 28)
                yield "v_mul_f32 v%d, %s, v%d" % (t + 26, hexf(1.0 / 2048), t + 25)
            for jj in range(8):
                yield "v_mul_f32 v%d, v%d, v%d" % (t + jj, t + 32 + jj, scale)
            for jj in range(8):
                yield "v_cos_f32 v%d, v%d" % (t + 8 + jj, t + jj)
            for jj in range(8):
                yield "v_sin_f32 v%d, v%d" % (t + 16 + jj, t + jj)
            for d in range(4):
                yield "v_cvt_pk_bf16_f32 v%d, v%d, v%d" % (Cb + d, t + 8 + 2 * d, t + 9 + 2 * d)
            for d in range(4):
                yield "v_cvt_pk_bf16_f32 v%d, v%d, v%d" % (Sb + d, t + 16 + 2 * d, t + 17 + 2 * d)
            for d in range(4):
                yield "v_xor_b32 v%d, %s, v%d" % (Cb + 4 + d, flip, Cb + d)
            for d in range(4):
                yield "v_xor_b32 v%d, %s, v%d" % (Sb + 4 + d, flip, Sb + d)
            for d in range(8):
                yield "v_xor_b32 v%d, 0x80008000, v%d" % (Nb + d, Sb + d)
        for i in range(8):
            yield "v_mul_f32 v%d, v%d, v%d" % (t + i, t + 32 + i, t + 26)
        yield "v_cvt_f32_u32 v%d, s%d" % (t + 29, sT3)
        for i in range(8):
            yield "v_cos_f32 v%d, v%d" % (T1C + i, t + i)
            yield "v_sin_f32 v%d, v%d" % (T1S + i, t + i)
        yield "v_mul_f32 v%d, %s, v%d" % (t + 26, hexf(1.0 / 2048), t + 28)
        for r in range(4):
            yield "v_add_f32 v%d, v%d, v%d" % (t + 8 + r, t + 29, t + 32 + r)
        yield "v_add_f32 v%d, %s, v%d" % (t + 25, hexf(16.0 / 2048), t + 26)
        for r in range(4):
            yield "v_mul_f32 v%d, v%d, v%d" % (t + r, t + 8 + r, t + 26)
        for r in range(4):
            yield "v_mul_f32 v%d, v%d, v%d" % (t + 4 + r, t + 8 + r, t + 25)
        for i in range(8):
            yield "v_cos_f32 v%d, v%d" % (T2C + i, t + i)
            yield "v_sin_f32 v%d, v%d" % (T2S + i, t + i)
    CCE = P("CCE", 0)
    if CCE:
        for s_ in cconst():
            e(s_)
    vX1 = 7
    e("v_lshrrev_b32 v7, 1, v%d" % vC)
    e("v_lshlrev_b32 v7, 13, v7")
    e("v_and_b32 v19, 1, v%d" % vC)
    e("v_lshl_add_u32 v7, v19, 6, v7")
    e("v_lshl_add_u32 v7, v%d, 4, v7" % vQ)
    e("s_lshl_b32 s%d, s%d, 9" % (sT0, sRW))
    e("s_add_u32 s%d, s%d, 0x%x" % (sT0, sT0, L_ST))
    e("v_lshl_add_u32 v8, v%d, 2, s%d" % (vC, sT0))
    e("v_lshl_add_u32 v9, v%d, 4, s%d" % (vQ, sT0))
    e("s_lshl4_add_u32 s%d, s%d, s%d" % (sFX, sCBK, sPB))
    e("s_lshl_b32 s%d, s%d, 7" % (sFX, sFX))
    e("s_lshl2_add_u32 s%d, s%d, s%d" % (sFX, sRW, sFX))
    tag_setup()
    k.stamp(3)
    e("s_setprio %d" % P("PRIO", 1))

    def XBf(kk, u, ks):
        return vr(XB + (((kk & 1) * 2 + ks) * 2 + u) * 4, 4)
    for s_ in range(4):
        e("s_barrier")
        fs(6, 2 + s_)
        for kk in (2 * s_, 2 * s_ + 1):
            for ks in range(2):
                for u in range(2):
                    xread(XBf(kk, u, ks), 26, kk, u, ks, ("XR", kk, ks))
        if s_ == 2:
            for i in range(32):
                e("v_xor_b32 v%d, v%d, v%d" % (FB + i, vSM, FB + i))
        for kk in (2 * s_, 2 * s_ + 1):
            for ks in range(2):
                T = 2 * kk + ks
                k.wait_lg(("XR", kk, ks))
                for u in range(2):
                    x = XBf(kk, u, ks)
                    mfma(vr(SUM + 4 * u, 4), vr(ONES, 4), x, vr(SUM + 4 * u, 4) if T else "0")
                    mfma(vr(GR + 4 * u, 4), x, x, vr(GR + 4 * u, 4) if T else "0")
                for u in range(2):
                    x = XBf(kk, u, ks)
                    for tl in range(2):
                        p = vr(PA + ((tl * 2 + ((T >> 2) & 1)) * 2 + u) * 4, 4)
                        mfma(p, x, vr(FB + 16 * tl + 4 * (T & 3), 4), "0" if T in (0, 4) else p)
    e("s_barrier")
    k.stamp(4)
    fs(6, 6)
    e("v_and_b32 v19, 3, v%d" % vC)
    k.nop(2)
    for r in range(1, 4):
        e("v_cmp_eq_u32 vcc, %d, v19" % r)
        k.nop(2)
        for u in range(2):
            e("v_cndmask_b32 v%d, v%d, v%d, vcc" % (GR + 4 * u, GR + 4 * u, GR + 4 * u + r))

    def stat_ops(u):
        m, q2, rs_, nm, d0 = SUM + 4 * u, GR + 4 * u, SUM + 4 * u + 1, SUM + 4 * u + 2, SUM + 4 * u + 3
        rnd = lambda v: ["v_cvt_pk_bf16_f32 v%d, v%d, v%d" % (v, v, v), "v_lshlrev_b32 v%d, 16, v%d" % (v, v)]
        return (["v_mul_f32 v%d, %s, v%d" % (m, hexf(1.0 / 512), m),
                 "v_mul_f32 v%d, %s, v%d" % (q2, hexf(1.0 / 512), q2),
                 "v_fma_f32 v%d, -v%d, v%d, v%d" % (q2, m, m, q2),
                 "v_max_f32 v%d, 0, v%d" % (q2, q2)] + rnd(q2) +
                ["v_add_f32 v%d, %s, v%d" % (q2, hexf(1e-5), q2)] + rnd(q2) +
                ["v_sqrt_f32 v%d, v%d" % (q2, q2), "v_sub_f32 v%d, 0, v%d" % (nm, m)] + rnd(q2) +
                ["v_rcp_f32 v%d, v%d" % (rs_, q2)] + rnd(nm) +
                ["v_add_f32 v%d, v%d, v%d" % (d0, m, nm), "v_mul_f32 v%d, %s, v%d" % (d0, hexf(512.0), d0)])
    for a_, b_ in zip(stat_ops(0), stat_ops(1)):
        e(a_)
        e(b_)
    e("s_mov_b32 exec_lo, 0x00f0000f")
    e("s_mov_b32 exec_hi, 0xf0000f00")
    for u in range(2):
        e("ds_write2_b32 v8, v%d, v%d offset0:%d offset1:%d" % (SUM + 4 * u + 1, SUM + 4 * u + 2, 16 * u, 32 + 16 * u))
        e("ds_write_b32 v8, v%d offset:%d" % (SUM + 4 * u + 3, 256 + 64 * u))
    e("s_mov_b64 exec, -1")
    RT, D0T = XB, XB + 8
    for u in range(2):
        e("ds_read_b128 %s, v9 offset:%d" % (vr(RT + 4 * u, 4), 64 * u))
        e("ds_read_b128 %s, v9 offset:%d" % (vr(D0T + 4 * u, 4), 256 + 64 * u))
    garrive(C_ST)
    for tl in range(2):
        for i in range(8):
            e("v_fmac_f32 v%d, v%d, v%d" % (PA + 16 * tl + i, vAL, PA + 16 * tl + 8 + i))
        for i in range(8):
            e("v_fmac_f32_dpp v%d, v%d, v%d quad_perm:[1,0,3,2] row_mask:0xf bank_mask:0xf" % (PA + 16 * tl + i, PA + 16 * tl + 8 + i, vBE))
    e("v_or_b32 v19, s%d, v%d" % (sCBK, vC))
    e("v_cmp_eq_u32 vcc, 0, v19")
    e("s_lshl_b32 s%d, s%d, 17" % (sT0, sCBK))
    e("s_lshl_b32 s%d, s%d, 7" % (sT1, sRS))
    e("s_add_u32 s%d, s%d, s%d" % (sT0, sT0, sT1))
    e("s_add_u32 s%d, s%d, 0x%x" % (sT1, sT0, X1C_OFF))
    e("s_add_u32 s%d, s%d, 0x%x" % (sT2, sT0, X1C_OFF + 65536))
    e("s_waitcnt lgkmcnt(0)")
    k.lg.clear()
    for i in range(8):
        e("v_cndmask_b32 v%d, v%d, v%d, vcc" % (PA + i, PA + i, D0T + i))
    for tl in range(2):
        for i in range(8):
            e("v_mul_f32 v%d, v%d, v%d" % (PA + 16 * tl + i, PA + 16 * tl + i, RT + i))
        o = 232 + 4 * tl
        for d in range(4):
            e("v_cvt_pk_bf16_f32 v%d, v%d, v%d" % (o + d, PA + 16 * tl + 2 * d, PA + 16 * tl + 2 * d + 1))
        e("buffer_store_dwordx4 %s, v%d, %s, s%d offen sc1" % (vr(o, 4), vX1, srd(SWS), sT1 + tl))
        k.vm.issue("x1st")
    k.stamp(5)
    e("s_setprio 0")
    GB = 64

    def ggen():
        t0 = 32
        yield "s_lshl_b32 s%d, s%d, 6" % (sT3, sDB)
        yield "s_lshl4_add_u32 s%d, s%d, s%d" % (sT3, sRW, sT3)
        yield "v_add_u32 v%d, s%d, v%d" % (t0, sT3, vC)
        yield "v_lshlrev_b32 v%d, 1, v%d" % (t0 + 2, vQ)
        yield "v_cvt_f32_u32 v%d, v%d" % (t0 + 1, t0)
        yield "v_cvt_f32_u32 v%d, v%d" % (t0 + 2, t0 + 2)
        yield "v_mul_f32 v%d, %s, v%d" % (t0 + 1, hexf(1.0 / 512), t0 + 1)
        yield "v_mul_f32 v%d, %s, v%d" % (t0 + 3, hexf(16.0), t0 + 1)
        for dw in range(4):
            yield "v_add_f32 v%d, %s, v%d" % (t0 + 4 + dw, hexf(float(8 * (dw >> 1) + (dw & 1))), t0 + 2)
        yield "v_fract_f32 v%d, v%d" % (t0 + 3, t0 + 3)
        for dw in range(4):
            yield "v_mul_f32 v%d, v%d, v%d" % (t0 + 4 + dw, t0 + 4 + dw, t0 + 1)
        yield "v_lshlrev_b32 v%d, 31, v%d" % (t0 + 16, vC)
        yield "v_min_u32 v%d, 1, v%d" % (t0 + 17, vQ)
        yield "v_or_b32 v%d, 0x3f800000, v%d" % (t0 + 16, t0 + 16)
        yield "v_sub_u32 v%d, v%d, 1" % (t0 + 17, t0 + 17)
        yield "v_and_b32 v%d, 0xffff0000, v%d" % (t0 + 17, t0 + 17)
        for T in range(16):
            for dw in range(4):
                yield "v_cos_f32 v%d, v%d" % (t0 + 8 + 2 * dw, t0 + 4 + dw)
                yield "v_sin_f32_e64 v%d, -v%d" % (t0 + 9 + 2 * dw, t0 + 4 + dw)
            for dw in range(4):
                yield "v_add_f32 v%d, v%d, v%d" % (t0 + 4 + dw, t0 + 4 + dw, t0 + 3)
            for dw in range(4):
                yield "v_cvt_pk_bf16_f32 v%d, v%d, v%d" % (GB + 4 * T + dw, t0 + 8 + 2 * dw, t0 + 9 + 2 * dw)
            if T == 0:
                yield "v_bfi_b32 v%d, v%d, v%d, v%d" % (GB, t0 + 17, t0 + 16, GB)
    late_setup(1)
    e("v_mov_b32 v6, v%d" % vZB)
    vFL, vFZ, vDZ = 14, 15, 9
    e("s_xor_b32 s%d, s2, 0x38" % sCC)
    flag_voff(vFZ, 63)
    e("v_and_b32 v%d, 0x1ff, v%d" % (vFL, vFZ))
    e("v_min_u32 v19, 1, v%d" % vQ)
    e("v_mul_u32_u24 v19, 0x%x, v19" % (FW_OFF - FX_OFF))
    e("v_add_u32 v%d, v19, v%d" % (vFL, vFL))
    e("s_cmp_eq_u32 s%d, 0" % sCC)
    e("s_cselect_b32 s%d, 0x%x, 0" % (sT0, 16 * 2048))
    e("v_lshrrev_b32 v19, 1, v%d" % vQ)
    e("v_mul_u32_u24 v19, s%d, v19" % sT0)
    e("v_add_u32 v%d, v19, v%d" % (vFL, vFL))
    e("s_lshr_b32 s%d, s%d, 4" % (sFXC, sCC))
    e("s_lshl2_add_u32 s%d, s%d, s%d" % (sFXC, sFXC, sRW))
    e("s_lshl_b32 s%d, s%d, 9" % (sFXC, sFXC))
    e("s_mov_b32 s%d, 0" % sGB)
    XI, TM, TW, DR, DI, PR, PI, CWL = 32, 32, 48, 208, 216, 224, 228, 232

    def xin(pl, v, tt):
        return XI + 4 * ((pl * 2 + v) * 2 + tt)
    e("v_add_u32 v26, 0x%x, v%d" % (L_C1, vYW))
    e("v_xor_b32 v27, 64, v26")
    e("v_xor_b32 v28, 128, v26")
    e("v_xor_b32 v29, 192, v26")
    e("s_lshr_b32 s%d, s%d, 1" % (sT0, sRW))
    e("s_lshl_b32 s%d, s%d, 7" % (sT0, sT0))
    e("s_and_b32 s%d, s%d, 1" % (sT1, sRW))
    e("s_lshl3_add_u32 s%d, s%d, s%d" % (sT0, sT1, sT0))
    e("v_xor_b32 v10, s%d, v26" % sT0)
    e("v_xor_b32 v11, 64, v10")
    e("v_lshlrev_b32 v12, 5, v%d" % vC)
    e("v_lshl_add_u32 v12, v%d, 3, v12" % vQ)
    e("s_lshl_b32 s%d, s%d, 10" % (sT0, sRW))
    e("v_add_u32 v12, s%d, v12" % sT0)
    e("s_lshl_b32 s%d, s%d, 13" % (sZR, sCC))
    e("s_add_u32 s%d, s%d, 0x%x" % (sZR, sZR, ZT_OFF))
    e("s_add_u32 s%d, s%d, 4096" % (sZI, sZR))
    e("s_mov_b32 s%d, %s" % (sSC, hexf(2.0 ** -19)))
    e("s_cmp_eq_u32 s%d, 0" % sCC)
    e("s_cselect_b32 s%d, 0x%x, s%d" % (sZI, OOB, sZI))
    e("s_cselect_b32 s%d, %s, s%d" % (sSC, hexf(2.0 ** -20), sSC))
    e("s_mov_b32 s%d, 0" % sPL)
    e("s_lshl_b32 s%d, s%d, 3" % (sT0, sT1))
    e("v_add_u32 v19, s%d, v%d" % (sT0, vQ))
    e("v_xor_b32 v30, v19, v%d" % vC)
    e("v_lshlrev_b32 v30, 4, v30")
    e("v_lshl_add_u32 v30, v%d, 8, v30" % vQ)
    e("v_xor_b32 v24, 64, v30")
    e("v_lshrrev_b32 v8, 3, v%d" % vLANE)
    e("v_and_b32 v9, 7, v%d" % vLANE)
    e("v_lshlrev_b32 v19, 1, v%d" % vQ)
    e("v_xor_b32 v19, v19, v9")
    e("v_lshlrev_b32 v19, 4, v19")
    e("v_lshl_add_u32 v%d, v8, 12, v19" % vDZ)
    k.wait_vm("x1st")
    publish("s%d" % sFX)
    xe_load()
    if P("NOFFT", 0):
        e("s_branch L_final")
    k.stamp(6)
    pre = ([] if CCE else list(cconst())) + ["v_mul_f32 v%d, s%d, v%d" % (T2C + i, sSC, T2C + i) for i in range(16)] + list(ggen())
    n2 = len(pre) - P("PFXL", 60)
    for s_ in pre[:n2]:
        e(s_)
    poll_issue("pfx", vFL, "s%d" % sFXC, 13)
    for s_ in pre[n2:]:
        e(s_)
    k.stamp(7)
    e("s_setprio %d" % P("PRIO", 1))
    poll_check("pfx", vFL, "s%d" % sFXC, 13)
    k.stamp(8)

    def gbar_lines():
        return ["    s_add_u32 s%d, s%d, 4" % (sGB, sGB)] + garrive_lines(C_F) + gwait_lines(C_F, "s%d" % sGB)

    def gbar():
        k.lines.extend(gbar_lines())
        k.lg.clear()
    e("s_lshl_b32 s%d, s%d, 13" % (sT0, sCC))
    e("s_lshl_b32 s%d, s%d, 11" % (sT1, sRW))
    e("s_add_u32 s%d, s%d, s%d" % (sT0, sT0, sT1))
    e("s_add_u32 s%d, s%d, 0x%x" % (sT2, sT0, X1C_OFF))
    e("s_add_u32 m0, s%d, 0x%x" % (sT1, L_C1))
    k.nop(1)
    e("buffer_load_dwordx4 v30, %s, s%d offen sc1 lds" % (srd(SWS), sT2))
    k.vm.issue("cin")
    e("buffer_load_dwordx4 v24, %s, s%d offen offset:1024 sc1 lds" % (srd(SWS), sT2))
    k.vm.issue("cin")
    e("s_add_u32 s%d, s%d, 0x%x" % (sT2, sT0, WT_OFF))
    for v in range(2):
        e("buffer_load_dwordx4 %s, v%d, %s, s%d offen offset:%d sc1" % (vr(CWL + 4 * v, 4), vL16, srd(SWS), sT2, v * 1024))
        k.vm.issue("cw")
    e("s_add_u32 s%d, s%d, 0x%x" % (sT2, sT2, 256 * 8192))
    e("s_cmp_eq_u32 s%d, 0" % sCC)
    e("s_cselect_b32 s%d, s%d, 0x%x" % (sT2, sT2, OOB))
    for v in range(2):
        e("buffer_load_dwordx4 %s, v%d, %s, s%d offen offset:%d sc1" % (vr(CWL + 8 + 4 * v, 4), vL16, srd(SWS), sT2, v * 1024))
        k.vm.issue("cw")
    k.wait_vm("cin")
    gbar()
    k.stamp(9)
    k.lab("L_ccol")
    for pl in range(2):
        for v in range(2):
            for tt in range(2):
                e("ds_read_b128 %s, v%d offset:%d" % (vr(xin(pl, v, tt), 4), 26 + 2 * tt + pl, v * 4096))
    e("s_waitcnt lgkmcnt(0)")
    e("s_cmp_eq_u32 s%d, 0" % sCC)
    e("s_cbranch_scc1 L_creal")
    k.lab("L_cplx")
    tail.append("L_creal:")
    tail.append("    s_cmp_eq_u32 s%d, 0" % sPL)
    tail.append("    s_cbranch_scc1 L_c0")
    for i in range(16):
        tail.append("    v_mov_b32 v%d, v%d" % (XI + i, XI + 16 + i))
    tail.append("L_c0:")
    for i in range(16):
        tail.append("    v_mov_b32 v%d, 0" % (XI + 16 + i))
    tail.append("    s_nop 1")
    tail.append("    s_branch L_cplx")
    for v in range(2):
        dr, di = vr(DR + 4 * v, 4), vr(DI + 4 * v, 4)
        for tt in range(2):
            mfma(dr, vr(xin(0, v, tt), 4), vr(C64 + 4 * tt, 4), dr if tt else "0")
            mfma(di, vr(xin(1, v, tt), 4), vr(C64 + 4 * tt, 4), di if tt else "0")
            mfma(dr, vr(xin(1, v, tt), 4), vr(S64 + 4 * tt, 4))
            mfma(di, vr(xin(0, v, tt), 4), vr(N64 + 4 * tt, 4))

    def cmul(cr, ci, conj):
        for h in range(2):
            for i in range(4 * h, 4 * h + 4):
                e("v_mul_f32 v%d, v%d, v%d" % (TM + i, DR + i, cr + i))
                e("v_mul_f32 v%d, v%d, v%d" % (TM + 8 + i, DI + i, cr + i))
            for i in range(4 * h, 4 * h + 4):
                if conj:
                    e("v_fma_f32 v%d, v%d, v%d, v%d" % (TM + i, DI + i, ci + i, TM + i))
                    e("v_fma_f32 v%d, -v%d, v%d, v%d" % (TM + 8 + i, DR + i, ci + i, TM + 8 + i))
                else:
                    e("v_fma_f32 v%d, -v%d, v%d, v%d" % (TM + i, DI + i, ci + i, TM + i))
                    e("v_fma_f32 v%d, v%d, v%d, v%d" % (TM + 8 + i, DR + i, ci + i, TM + 8 + i))
        for d in range(4):
            e("v_cvt_pk_bf16_f32 v%d, v%d, v%d" % (PR + d, TM + 2 * d, TM + 2 * d + 1))
            e("v_cvt_pk_bf16_f32 v%d, v%d, v%d" % (PI + d, TM + 8 + 2 * d, TM + 9 + 2 * d))
        k.nop(2)
    cmul(T1C, T1S, True)
    pr, pi = vr(PR, 4), vr(PI, 4)
    for v in range(2):
        dr, di = vr(DR + 4 * v, 4), vr(DI + 4 * v, 4)
        mfma(dr, vr(C32 + 4 * v, 4), pr, "0")
        mfma(di, vr(C32 + 4 * v, 4), pi, "0")
        mfma(dr, vr(S32 + 4 * v, 4), pi)
        mfma(di, vr(N32 + 4 * v, 4), pr)
    k.wait_vm("cw")
    for i in range(8):
        e("v_lshlrev_b32 v%d, 16, v%d" % (TW + i, CWL + i))
        e("v_and_b32 v%d, 0xffff0000, v%d" % (TW + 8 + i, CWL + i))
    cmul(TW, TW + 8, False)
    for v in range(2):
        dr, di = vr(DR + 4 * v, 4), vr(DI + 4 * v, 4)
        mfma(dr, pr, vr(C32 + 4 * v, 4), "0")
        mfma(di, pi, vr(C32 + 4 * v, 4), "0")
        mfma(dr, pi, vr(N32 + 4 * v, 4))
        mfma(di, pr, vr(S32 + 4 * v, 4))
    k.nop(4)
    cmul(T2C, T2S, False)
    for v in range(2):
        e("ds_write_b64 v10, %s offset:%d" % (vr(PR + 2 * v, 2), 8192 + v * 4096))
        e("ds_write_b64 v11, %s offset:%d" % (vr(PI + 2 * v, 2), 8192 + v * 4096))
    e("s_waitcnt lgkmcnt(0)")
    gbar()
    for v in range(2):
        for tt in range(2):
            for pl in range(2):
                e("ds_read_b128 %s, v%d offset:%d" % (vr(xin(pl, v, tt), 4), 26 + 2 * tt + pl, 8192 + v * 4096))
                k.lg.issue(("cy", v, tt))
    for v in range(2):
        dr, di = vr(DR + 4 * v, 4), vr(DI + 4 * v, 4)
        for tt in range(2):
            k.wait_lg(("cy", v, tt))
            mfma(dr, vr(C64 + 4 * tt, 4), vr(xin(0, v, tt), 4), dr if tt else "0")
            mfma(di, vr(C64 + 4 * tt, 4), vr(xin(1, v, tt), 4), di if tt else "0")
            mfma(dr, vr(N64 + 4 * tt, 4), vr(xin(1, v, tt), 4))
            mfma(di, vr(S64 + 4 * tt, 4), vr(xin(0, v, tt), 4))
    for v in range(2):
        if v:
            k.nop(4)
        for d in range(2):
            e("v_cvt_pk_bf16_f32 v%d, v%d, v%d" % (PR + 2 * v + d, DR + 4 * v + 2 * d, DR + 4 * v + 2 * d + 1))
            e("v_cvt_pk_bf16_f32 v%d, v%d, v%d" % (PI + 2 * v + d, DI + 4 * v + 2 * d, DI + 4 * v + 2 * d + 1))
        e("buffer_store_dwordx2 %s, v12, %s, s%d offen offset:%d sc1" % (vr(PR + 2 * v, 2), srd(SWS), sZR, v * 512))
        k.vm.issue("zst")
        e("buffer_store_dwordx2 %s, v12, %s, s%d offen offset:%d sc1" % (vr(PI + 2 * v, 2), srd(SWS), sZI, v * 512))
        k.vm.issue("zst")
    e("s_or_b32 s%d, s%d, s%d" % (sT0, sCC, sPL))
    if not P("NO256", 0):
        e("s_cbranch_scc0 L_csecond")
    sec = ["L_csecond:", "    s_mov_b32 s%d, 1" % sPL, "    s_add_u32 s%d, s%d, 4096" % (sZR, sZR)]
    for i in range(8):
        sec.append("    v_mov_b32 v%d, v%d" % (CWL + i, CWL + 8 + i))
    sec.extend(gbar_lines())
    sec.append("    s_branch L_ccol")
    tail.extend(sec)
    k.stamp(10)
    fs(7, 2)
    e("s_lshr_b32 s%d, s%d, 2" % (sT4, sCC))
    e("s_lshl_b32 s%d, s%d, 6" % (sT1, sRW))
    e("s_add_u32 s%d, s%d, s%d" % (sT4, sT4, sT1))
    e("s_lshl_b32 s%d, s%d, 7" % (sT4, sT4))
    e("s_and_b32 s%d, s%d, 3" % (sT1, sCC))
    e("s_lshl2_add_u32 s%d, s%d, s%d" % (sT4, sT1, sT4))
    e("s_add_u32 s%d, s%d, 0x%x" % (sT4, sT4, FZ_OFF))
    sFZC = sFXC
    e("s_lshl2_add_u32 s%d, s%d, s%d" % (sFZC, sWP, sRW))
    e("s_lshl_b32 s%d, s%d, 11" % (sFZC, sFZC))
    e("s_add_u32 s%d, s%d, 0x%x" % (sFZC, sFZC, FZ_OFF))
    e("s_lshl_b32 s%d, s%d, 19" % (sDT, sRW))
    e("s_lshl_b32 s%d, s%d, 10" % (sT1, sWP))
    e("s_add_u32 s%d, s%d, s%d" % (sDT, sDT, sT1))
    e("s_lshl_b32 s%d, s%d, 7" % (sT1, sA))
    e("s_add_u32 s%d, s%d, s%d" % (sDT, sDT, sT1))
    e("s_add_u32 s%d, s%d, 0x%x" % (sDT, sDT, ZT_OFF - 32768))
    e("s_lshl_b32 s%d, s%d, 14" % (sT2, sRW))
    TRZ = [16, 17, 18, 7]
    for pt in range(4):
        e("v_xor_b32 v%d, %d, v6" % (TRZ[pt], 32 * pt))
    e("s_lshl_b32 s%d, s%d, 6" % (sT1, sRW))
    e("v_xor_b32 v20, s%d, v26" % sT1)
    k.wait_vm("zst")
    fs(7, 3)
    publish("s%d" % sT4)
    gwait(C_CSB)
    fs(7, 4)
    if P("ZSLP", 24):
        e("s_sleep %d" % P("ZSLP", 24))
    poll_issue("pz", vFZ, "s%d" % sFZC, 30)
    if FS == 7:
        k.wait_vm("pz")
    fs(7, 5)
    poll_check("pz", vFZ, "s%d" % sFZC, 30)
    fs(7, 6)
    k.stamp(11)
    for ee in range(16):
        e("s_add_u32 m0, s%d, %d" % (sT2, LA + ee * 1024))
        e("s_add_u32 s%d, s%d, 32768" % (sDT, sDT))
        e("buffer_load_dwordx4 v%d, %s, s%d offen sc1 lds" % (vDZ, srd(SWS), sDT))
        k.vm.issue("Z")
    fs(7, 7)
    k.wait_vm("Z")
    fs(7, 8)
    gbar()
    fs(7, 9)
    AS, ZF = 208, 128

    def zr(T, pt):
        for hh in range(2):
            r = ZF + ((T % 4) * 4 + pt) * 4 + 2 * hh
            e("ds_read_b64_tr_b16 %s, v%d offset:%d" % (vr(r, 2), TRZ[pt], T * 4096 + hh * 2048))
            k.lg.issue(("ZR", T, pt))
    seq = [(T, pt) for T in range(16) for pt in range(4)]
    LA_ = 6
    for n in range(LA_):
        zr(*seq[n])
    for n, (T, pt) in enumerate(seq):
        if n + LA_ < 64:
            zr(*seq[n + LA_])
        k.wait_lg(("ZR", T, pt))
        c = vr(AS + 4 * pt, 4)
        mfma(c, vr(GB + 4 * T, 4), vr(ZF + ((T % 4) * 4 + pt) * 4, 4), c if T else "0")
    k.nop(8)
    for pt in range(4):
        e("ds_write_b128 v20, %s offset:%d" % (vr(AS + 4 * pt, 4), pt * 4096))
    fs(7, 10)
    e("s_branch L_final")
    tail[0:0] = k.lines
    k.lines = main_lines

    e("s_waitcnt vmcnt(0) lgkmcnt(0)")
    k.vm.clear()
    k.lg.clear()
    e("s_barrier")
    k.stamp(12)
    YP, SV, U2 = 192, 224, 232
    e("v_add_u32 v10, 0x%x, v%d" % (L_C1 - LB, vR0))
    e("v_add_u32 v11, 0x%x, v%d" % (L_C1 - LB, vR1))
    for src in range(4):
        for h in range(2):
            e("ds_read_b128 %s, v%d offset:%d" % (vr(YP + 8 * src + 4 * h, 4), vR0 + h, src * 16384))
            k.lg.issue(("yp", src))
    for h in range(2):
        e("ds_read_b128 %s, v%d" % (vr(SV + 4 * h, 4), 10 + h))
        k.lg.issue("sv")
    for i in range(4):
        e("v_lshlrev_b32 v%d, 16, v%d" % (240 + 2 * i, XV + i))
        e("v_and_b32 v%d, 0xffff0000, v%d" % (241 + 2 * i, XV + i))
    k.wait_lg(("yp", 1))
    for i in range(8):
        e("v_add_f32 v%d, v%d, v%d" % (YP + i, YP + i, YP + 8 + i))
    k.wait_lg(("yp", 3))
    for i in range(8):
        e("v_add_f32 v%d, v%d, v%d" % (YP + 16 + i, YP + 16 + i, YP + 24 + i))
    for i in range(8):
        e("v_add_f32 v%d, v%d, v%d" % (YP + i, YP + i, YP + 16 + i))
    for i in range(8):
        e("v_mul_f32 v%d, %s, v%d" % (U2 + i, hexf(-1.4426950408889634), YP + i))
    for i in range(8):
        e("v_exp_f32 v%d, v%d" % (U2 + i, U2 + i))
    k.wait_lg("sv")
    for i in range(8):
        e("v_mul_f32 v%d, v%d, v%d" % (YP + i, YP + i, SV + i))
    for i in range(8):
        e("v_add_f32 v%d, 1.0, v%d" % (U2 + i, U2 + i))
    for i in range(8):
        e("v_rcp_f32 v%d, v%d" % (U2 + i, U2 + i))
    k.nop(1)
    for i in range(8):
        e("v_fmac_f32 v%d, v%d, v%d" % (240 + i, YP + i, U2 + i))
    for d in range(4):
        e("v_cvt_pk_bf16_f32 v%d, v%d, v%d" % (SV + d, 240 + 2 * d, 241 + 2 * d))
    e("buffer_store_dwordx4 %s, v%d, %s, s%d offen" % (vr(SV, 4), vGO, srd(SOUT), sXO))
    e("s_or_b32 s%d, s2, s%d" % (sT0, sRW))
    e("s_or_b32 s%d, s%d, s%d" % (sT0, sT0, sHF))
    e("s_cbranch_scc1 L_noep")
    e("s_mov_b32 s%d, 0x%x" % (sT0, EPOCH_OFF))
    publish("s%d" % sT0)
    k.lab("L_noep")
    k.stamp(13)
    if ENC:
        e("s_waitcnt lgkmcnt(0)")
        e("s_sub_u32 s97, s%d, s66" % (64 + 2 * ENC))
        e("s_add_u32 s97, s97, 6000")
        k.lab("L_espin")
        e("s_memrealtime s[94:95]")
        e("s_waitcnt lgkmcnt(0)")
        e("s_sub_u32 s96, s94, s66")
        e("s_cmp_lt_u32 s96, s97")
        e("s_cbranch_scc1 L_espin")
    elif DIAG:
        e("s_lshl2_add_u32 s%d, s%d, s%d" % (sT0, sHF, sRW))
        e("v_mov_b32 v2, s%d" % sT0)
        k.stamp_flush(SWS, 0, 2, 8)
    k.lab("L_done")
    e("s_endpgm")
    k.lines += tail
    k.lab("L_end")
    return k


HEADER = open(os.path.join(os.path.dirname(os.path.abspath(__file__)), "header.txt")).read()


def main(out):
    k = gen()
    s = HEADER
    s += "; @launch grid=(256,1,1) block=(512,1,1) lds=163840\n"
    s += '.amdgcn_target "amdgcn-amd-amdhsa--gfx950"\n.text\n'
    s += k.text()
    s += '.section .rodata,"a"\n'
    s += descriptor(k.name, 256, 102 if DIAG else 64)
    open(out, "w").write(s)


if __name__ == "__main__":
    main(sys.argv[1] if len(sys.argv) > 1 else "v9.s")
```

```python
import sys, os
from collections import deque
sys.path.insert(0, os.path.dirname(os.path.abspath(__file__)))
from asmlib import *

NAME = "recurrent_scan__spectral_gfnet__dense_activation_relu__prompt_kernel"


def P(name, default):
    return int(os.environ.get(name, default))


X1C_OFF = 0x0200000
WT_OFF = 0x0400000
H_OFF = 0x0800000
ZT_OFF = 0x1000000
FX_OFF = 0x0000000
FW_OFF = 0x0010000
FH_OFF = 0x0020000
FHB_D = 0x0008000
FZ_OFF = 0x0030000
EPOCH_OFF = 0x0040000
WS_BYTES = 0x1800000 if DIAG else 0x1200000
OOB = 0x7f000000
TAGC = 0x9E3779B9
X_BYTES = 2048 * 512 * 2
W_BYTES = 2048 * 257 * 2
W1_BYTES = 512 * 1792 * 2

SX, SWR, SWI, SW1, SW2, SOUT, SWS = 12, 16, 20, 24, 28, 32, 36
sRW, sPB, sCBK, sF0, sHF, sR, sTAG, sA, sWP, sDB = 3, 4, 5, 6, 7, 8, 9, 10, 11, 40
sXO, sRS = 41, 42
sT0, sT1, sT2, sT3, sT4 = 43, 44, 45, 46, 47
sCNT = 49
sXT, sDT = 0, 1

LA, LB, LS = 0, 65536, 131072
L_C1 = LS
L_WT = LS + 16384
L_SCR = LS + 24576
L_CS, L_ST, L_CNT, L_W256, L_DUM = L_SCR, L_SCR + 1024, L_SCR + 3072, L_SCR + 4096, L_SCR + 6144
XSLOT = [LB, LB + 16384, LB + 32768, LB + 49152, LA, LA + 16384, LA + 32768, LA + 49152]

vLANE, vL16, vC, vQ, vTAG, vCNT = 1, 2, 3, 4, 5, 25
vGO, vR0, vR1, vYW, vZB = 0, 22, 23, 21, 124
C_WA2, C_CSA, C_WB1, C_WB2, C_CSB, C_ST, C_WT, C_F = 0, 4, 8, 12, 16, 20, 24, 28


def srd(n):
    return "s[%d:%d]" % (n, n + 3)


def gen():
    k = K(NAME)
    e = k.e
    tail = []
    FS, ENC = P("FS", 0), P("ENC", 0)
    _stamp = k.stamp

    def stamp_n(i, real=False):
        if ENC:
            if i == 1 or i == ENC:
                _stamp(i, True)
            return
        if FS and 2 <= i <= 13:
            return
        _stamp(i, real)
    k.stamp = stamp_n

    def fs(mode, i):
        if FS == mode:
            _stamp(i)

    side = deque()
    sch = {"gap": 3, "n": 0, "lds": deque()}

    def mfma(d, a, b, c=None):
        e("v_mfma_f32_16x16x32_bf16 %s, %s, %s, %s" % (d, a, b, c if c is not None else d))

    def mf(d, a, b, c=None):
        mfma(d, a, b, c)
        sch["n"] += 1
        if sch["lds"]:
            sch["lds"].popleft()()
        if side and sch["n"] % sch["gap"] == 0:
            side.popleft()()

    def flush_lds():
        while sch["lds"]:
            sch["lds"].popleft()()

    def flush_side():
        flush_lds()
        while side:
            side.popleft()()

    def run(items):
        for f in items:
            f()

    def bf16_round(v):
        e("v_cvt_pk_bf16_f32 v%d, v%d, v%d" % (v, v, v))
        e("v_lshlrev_b32 v%d, 16, v%d" % (v, v))

    def publish_lines(soff):
        return ["    s_mov_b64 exec, 1",
                "    buffer_store_dword v%d, off, %s, %s sc1" % (vTAG, srd(SWS), soff),
                "    s_mov_b64 exec, -1"]

    def publish(soff):
        k.lines.extend(publish_lines(soff))
        k.vm.issue("flag")

    pollno = [0]

    def poll_ld(vaddr, soff, vt):
        return "buffer_load_dword v%d, v%d, %s, %s offen sc1" % (vt, vaddr, srd(SWS), soff)

    def poll_issue(tag, vaddr, soff, vt):
        e(poll_ld(vaddr, soff, vt))
        k.vm.issue(tag)

    def poll_check(tag, vaddr, soff, vt, pre=(), slp=None):
        n = pollno[0]
        pollno[0] += 1
        k.wait_vm(tag)
        e("v_cmp_ne_u32 vcc, v%d, v%d" % (vt, vTAG))
        e("s_cmp_lg_u64 vcc, 0")
        e("s_cbranch_scc1 L_slow%d" % n)
        k.lab("L_back%d" % n)
        tail.append("L_slow%d:" % n)
        tail.extend(pre)
        tail.extend(["    s_mov_b32 s%d, 0" % sCNT,
                     "L_spin%d:" % n,
                     "    s_sleep %d" % (P("SLP", 8) if slp is None else slp),
                     "    s_mov_b64 exec, vcc",
                     "    " + poll_ld(vaddr, soff, vt),
                     "    s_mov_b64 exec, -1",
                     "    s_waitcnt vmcnt(0)",
                     "    v_cmp_ne_u32 vcc, v%d, v%d" % (vt, vTAG),
                     "    s_cmp_lg_u64 vcc, 0",
                     "    s_cbranch_scc0 L_back%d" % n,
                     "    s_add_u32 s%d, s%d, 1" % (sCNT, sCNT),
                     "    s_cmp_lt_u32 s%d, 0x40000" % sCNT,
                     "    s_cbranch_scc1 L_spin%d" % n,
                     "    s_branch L_back%d" % n])

    gbn = [0]

    def gwait_lines(off, target):
        n = gbn[0]
        gbn[0] += 1
        chk = ["    ds_read_b32 v19, v%d offset:%d" % (vCNT, off),
               "    s_waitcnt lgkmcnt(0)",
               "    v_readfirstlane_b32 s%d, v19" % sT0,
               "    s_cmp_lt_u32 s%d, %s" % (sT0, target)]
        tail.append("L_gs%d:" % n)
        tail.append("    s_mov_b32 s%d, 0x400000" % sCNT)
        tail.append("L_gb%d:" % n)
        tail.append("    s_sub_u32 s%d, s%d, 1" % (sCNT, sCNT))
        tail.append("    s_cbranch_scc1 L_gx%d" % n)
        tail.append("    s_sleep %d" % (4 if off == C_WT else 1))
        tail.extend(chk)
        tail.append("    s_cbranch_scc1 L_gb%d" % n)
        tail.append("    s_branch L_gx%d" % n)
        return chk + ["    s_cbranch_scc1 L_gs%d" % n, "L_gx%d:" % n]

    def garrive_lines(off):
        return ["    v_mov_b32 v19, 1",
                "    s_mov_b64 exec, 1",
                "    ds_add_u32 v%d, v19 offset:%d" % (vCNT, off),
                "    s_mov_b64 exec, -1"]

    def garrive(off):
        k.lines.extend(garrive_lines(off))
        k.lg.issue("arr")

    def gwait(off, target="4"):
        k.lines.extend(gwait_lines(off, target))
        k.lg.clear()

    def flag_voff(vv, n):
        e("v_min_u32 v19, %d, v%d" % (n, vLANE))
        e("v_lshrrev_b32 v%d, 2, v19" % vv)
        e("v_lshlrev_b32 v%d, 7, v%d" % (vv, vv))
        e("v_and_b32 v19, 3, v19")
        e("v_lshl_add_u32 v%d, v19, 2, v%d" % (vv, vv))

    def xread_addr(v0_):
        e("v_lshrrev_b32 v19, 1, v%d" % vC)
        e("v_xor_b32 v19, v19, v%d" % vQ)
        e("v_lshlrev_b32 v19, 4, v19")
        e("v_lshl_add_u32 v19, v%d, 7, v19" % vC)
        e("s_lshl_b32 s%d, s%d, 12" % (sT0, sRW))
        e("v_add_u32 v%d, s%d, v19" % (v0_, sT0))
        e("v_xor_b32 v%d, 64, v%d" % (v0_ + 1, v0_))
        e("v_add_u32 v%d, 0x%x, v%d" % (v0_ + 2, LB, v0_))
        e("v_add_u32 v%d, 0x%x, v%d" % (v0_ + 3, LB, v0_ + 1))

    def xread(dst, v0_, kk, u, ks, tag):
        hi = XSLOT[kk] >= LB
        e("ds_read_b128 %s, v%d offset:%d" % (dst, v0_ + ks + (2 if hi else 0), XSLOT[kk] % 65536 + u * 2048))
        k.lg.issue(tag)

    def tag_setup():
        e("s_waitcnt lgkmcnt(0)")
        k.lg.clear()
        e("s_add_u32 s%d, s%d, 0x%x" % (sTAG, sTAG, TAGC))
        e("v_mov_b32 v%d, s%d" % (vTAG, sTAG))

    def late_setup(hf):
        e("v_lshrrev_b32 v19, 2, v%d" % vC)
        e("v_lshl_add_u32 v19, v%d, 2, v19" % vQ)
        e("v_bfe_u32 v30, v19, 1, 2")
        e("v_lshlrev_b32 v19, 7, v19")
        e("v_and_b32 v31, 1, v%d" % vC)
        e("v_lshl_add_u32 v19, v31, 3, v19")
        e("v_lshlrev_b32 v30, 1, v30")
        e("v_bfe_u32 v31, v%d, 1, 1" % vC)
        e("v_or_b32 v30, v30, v31")
        e("v_lshl_add_u32 v%d, v30, 4, v19" % vZB)
        e("v_lshrrev_b32 v19, 3, v%d" % vLANE)
        if hf:
            e("v_add_u32 v19, 8, v19")
        e("v_and_b32 v30, 7, v%d" % vLANE)
        e("v_lshlrev_b32 v%d, 15, v19" % vGO)
        e("v_lshl_add_u32 v%d, v30, 4, v%d" % (vGO, vGO))
        e("v_lshlrev_b32 v30, 1, v30")
        e("v_xor_b32 v30, v30, v19")
        e("v_lshlrev_b32 v30, 4, v30")
        e("v_lshl_add_u32 v30, v19, 8, v30")
        e("s_lshl_b32 s%d, s%d, 12" % (sT0, sRW))
        e("s_add_u32 s%d, s%d, 0x%x" % (sT0, sT0, LB))
        e("v_add_u32 v%d, s%d, v30" % (vR0, sT0))
        e("v_xor_b32 v%d, 16, v%d" % (vR1, vR0))
        e("v_xor_b32 v%d, v%d, v%d" % (vYW, vQ, vC))
        e("v_lshlrev_b32 v%d, 4, v%d" % (vYW, vYW))
        e("v_lshl_add_u32 v%d, v%d, 8, v%d" % (vYW, vC, vYW))
        e("s_lshl_b32 s%d, s%d, 19" % (sXO, sWP))
        e("s_lshl2_add_u32 s%d, s%d, s%d" % (sT0, sA, sRW))
        e("s_lshl_b32 s%d, s%d, 10" % (sT0, sT0))
        e("s_add_u32 s%d, s%d, s%d" % (sXO, sXO, sT0))
        e("s_lshl_b32 s%d, s%d, 7" % (sT0, sDB))
        e("s_add_u32 s%d, s%d, s%d" % (sXO, sXO, sT0))
    XV = 248

    def xe_load():
        e("buffer_load_dwordx4 %s, v%d, %s, s%d offen" % (vr(XV, 4), vGO, srd(SX), sXO))
        k.vm.issue("xe")

    e("s_cmp_ge_u32 s2, 256")
    e("s_cbranch_scc1 L_done")
    k.stamp(0)
    k.stamp(1, real=True)
    e("s_load_dwordx2 s[%d:%d], s[0:1], 0" % (SX, SX + 1))
    e("s_load_dwordx2 s[%d:%d], s[0:1], 32" % (SW1, SW1 + 1))
    e("s_load_dwordx2 s[%d:%d], s[0:1], 64" % (SWS, SWS + 1))
    e("s_load_dwordx2 s[%d:%d], s[0:1], 8" % (SWR, SWR + 1))
    e("s_load_dwordx2 s[%d:%d], s[0:1], 16" % (SWI, SWI + 1))
    e("s_load_dwordx2 s[%d:%d], s[0:1], 40" % (SW2, SW2 + 1))
    e("s_load_dwordx2 s[%d:%d], s[0:1], 48" % (SOUT, SOUT + 1))
    e("v_lshrrev_b32 v19, 6, v0")
    e("s_getpc_b64 s[%d:%d]" % (sT1, sT2))
    k.lab("L_pc")
    e("s_andn2_b32 s%d, s2, 7" % sT0)
    e("v_add_lshl_u32 v20, v19, s%d, 7" % sT0)
    e("v_min_u32 v20, L_end-L_pc-4, v20")
    e("v_mov_b32 v21, s%d" % sT2)
    e("v_add_co_u32 v20, vcc, s%d, v20" % sT1)
    e("v_readfirstlane_b32 s%d, v19" % sHF)
    e("v_and_b32 v%d, 63, v0" % vLANE)
    e("v_addc_co_u32 v21, vcc, 0, v21, vcc")
    e("global_load_dword v247, v[20:21], off")
    k.vm.issue("touch")
    for s_, nb in ((SX, X_BYTES), (SWR, W_BYTES), (SWI, W_BYTES), (SW1, W1_BYTES), (SW2, W1_BYTES), (SOUT, X_BYTES), (SWS, WS_BYTES)):
        e("s_mov_b32 s%d, 0x%x" % (s_ + 2, nb))
        e("s_mov_b32 s%d, 0x00020000" % (s_ + 3))
    e("v_and_b32 v%d, 15, v0" % vC)
    e("v_bfe_u32 v%d, v0, 4, 2" % vQ)
    e("v_lshlrev_b32 v%d, 4, v%d" % (vL16, vLANE))
    e("v_mov_b32 v%d, 0x%x" % (vCNT, L_CNT))
    e("s_and_b32 s%d, s2, 7" % sA)
    e("s_lshr_b32 s%d, s2, 6" % sWP)
    e("s_bfe_u32 s%d, s2, 0x30003" % sDB)
    e("s_and_b32 s%d, s%d, 3" % (sRW, sHF))
    e("s_lshr_b32 s%d, s%d, 1" % (sPB, sA))
    e("s_lshl2_add_u32 s%d, s%d, s%d" % (sPB, sPB, sWP))
    e("s_and_b32 s%d, s%d, 1" % (sT0, sA))
    e("s_lshl3_add_u32 s%d, s%d, s%d" % (sCBK, sT0, sDB))
    e("s_lshl1_add_u32 s%d, s%d, s%d" % (sR, sWP, sDB))
    e("s_and_b32 s%d, s%d, 7" % (sR, sR))
    e("s_lshl2_add_u32 s%d, s%d, s%d" % (sRS, sPB, sRW))
    e("s_lshr_b32 s%d, s%d, 2" % (sHF, sHF))
    e("s_cbranch_scc1 L_fft")
    q_vm = list(k.vm.q)

    sXB, sM4, sM2, sHS, sFH, sHB, sFHC, sW2B = 48, 57, 58, 59, 60, 61, 62, 63
    TV = [50, 51, 52, 53, 54, 55, 56]
    sRSW, sCG, sRB = sPB, sHF, sCBK
    e("s_and_b32 s%d, s%d, 1" % (sXB, sRW))
    e("s_lshl_b32 s%d, s%d, 20" % (sXB, sXB))
    e("s_lshr_b32 s%d, s%d, 1" % (sT2, sRW))
    e("s_lshl1_add_u32 s%d, s%d, s%d" % (sT1, sPB, sT2))
    e("s_lshl_b32 s%d, s%d, 10" % (sT1, sT1))
    e("s_add_u32 s%d, s%d, s%d" % (sXB, sXB, sT1))
    e("v_lshrrev_b32 v10, 3, v%d" % vLANE)
    e("v_and_b32 v12, 7, v%d" % vLANE)
    e("v_xor_b32 v6, v12, v%d" % vQ)
    e("v_lshlrev_b32 v6, 4, v6")
    e("v_lshl_add_u32 v6, v10, 15, v6")
    e("v_xor_b32 v7, 64, v6")
    e("v_add_u32 v7, 0x40000, v7")
    e("s_lshl_b32 s%d, s%d, 12" % (sM4, sRW))
    e("s_lshl_b32 s%d, s%d, 11" % (sM2, sRW))
    e("s_sub_u32 s%d, s%d, s%d" % (sF0, sCBK, sT0))
    e("s_lshl_b32 s%d, s%d, 8" % (sF0, sF0))
    e("s_cmp_eq_u32 s%d, 7" % sDB)
    e("s_cselect_b32 s%d, 0x%x, s%d" % (sF0, 0x08000000, sF0))
    e("s_waitcnt lgkmcnt(0)")
    e("s_load_dword s%d, s[%d:%d], 0x%x" % (sTAG, SWS, SWS + 1, EPOCH_OFF))

    def xdma(kk):
        def item(ee):
            def f():
                e("s_add_u32 m0, s%d, %d" % (sM4, XSLOT[kk] + ee * 1024))
                if ee == 0:
                    e("s_add_u32 s%d, s%d, %d" % (sXT, sR, kk))
                    e("s_and_b32 s%d, s%d, 7" % (sXT, sXT))
                    e("s_lshl_b32 s%d, s%d, 7" % (sXT, sXT))
                    e("s_add_u32 s%d, s%d, s%d" % (sXT, sXT, sXB))
                elif ee == 2:
                    e("s_add_u32 s%d, s%d, 0x80000" % (sXT, sXT))
                else:
                    k.nop(1)
                e("buffer_load_dwordx4 v%d, %s, s%d offen lds" % (6 + (ee & 1), srd(SX), sXT))
                k.vm.issue(("X", kk))
            return f
        return [item(ee) for ee in range(4)]

    def w1dma(reg, kk):
        off = " offset:128" if reg else ""
        lb = (LA - 128 if reg else LB) + kk * 8192

        def f0():
            e("s_add_u32 s%d, s%d, %d" % (sDT, sR, kk))
            e("s_and_b32 s%d, s%d, 7" % (sDT, sDT))
            e("s_mul_i32 s%d, s%d, %d" % (sDT, sDT, 64 * 3584))
            e("s_add_u32 m0, s%d, %d" % (sM2, lb + 128))
            e("s_add_u32 s%d, s%d, s%d" % (sDT, sDT, sF0))
            if reg:
                e("s_add_u32 s%d, s%d, 128" % (sDT, sDT))
            else:
                e("s_add_u32 m0, s%d, %d" % (sM2, lb))
                k.nop(1)
            e("buffer_load_dwordx4 v8, %s, s%d offen lds" % (srd(SW1), sDT))
            k.vm.issue(("W1", reg, kk))

        def f1():
            e("s_add_u32 m0, s%d, %d" % (sM2, (LA if reg else LB) + kk * 8192 + 1024))
            k.nop(1)
            e("buffer_load_dwordx4 v9, %s, s%d offen lds" % (srd(SW1), sDT))
            k.vm.issue(("W1", reg, kk))
        return [f0, f1]

    def mtouch(sr_):
        e("s_lshl2_add_u32 s%d, s2, s%d" % (sT0, sRW))
        e("s_mul_i32 s%d, s%d, %d" % (sT0, sT0, 14 * 128))
        e("v_lshlrev_b32 v19, 7, v%d" % vLANE)
        e("s_mov_b32 m0, 0x%x" % L_DUM)
        e("s_mov_b64 exec, 0x3fff")
        e("buffer_load_dword v19, %s, s%d offen lds" % (srd(sr_), sT0))
        k.vm.issue("touch")
        e("s_mov_b64 exec, -1")
    T1P, T2P = P("T1P", 1), P("T2P", 4)

    def touches(pos):
        if T1P == pos:
            mtouch(SW1)
        if T2P == pos:
            mtouch(SW2)
    run(xdma(0))
    touches(0)
    run(xdma(1))
    touches(1)
    k.stamp(2)
    e("s_lshl_b32 s%d, s%d, 4" % (sT0, sRW))
    e("v_add_u32 v11, s%d, v10" % sT0)
    e("v_mul_u32_u24 v11, 3584, v11")
    e("v_and_b32 v13, 1, v%d" % vQ)
    e("v_lshlrev_b32 v13, 1, v13")
    e("v_xor_b32 v13, v13, v12")
    e("v_lshl_add_u32 v8, v13, 4, v11")
    e("v_xor_b32 v13, 4, v13")
    e("v_lshl_add_u32 v9, v13, 4, v11")
    e("v_add_u32 v9, %d, v9" % (8 * 3584))
    vWS, vWW, vWR, vD2 = 15, 14, 13, 24
    e("v_lshlrev_b32 v15, 13, v10")
    e("v_lshl_add_u32 v15, v12, 4, v15")
    e("s_lshl_b32 s%d, s%d, 1" % (sT0, sRW))
    e("v_xor_b32 v14, s%d, v12" % sT0)
    e("v_lshlrev_b32 v14, 4, v14")
    e("v_lshl_add_u32 v14, v%d, 7, v14" % vLANE)
    e("v_add_u32 v14, 0x%x, v14" % L_WT)
    e("v_xor_b32 v13, v10, v12")
    e("v_lshlrev_b32 v13, 4, v13")
    e("v_lshl_add_u32 v13, v10, 7, v13")
    e("s_add_u32 s%d, s%d, 0x%x" % (sT0, sM2, L_WT))
    e("v_add_u32 v13, s%d, v13" % sT0)
    e("v_lshlrev_b32 v19, 1, v%d" % vQ)
    e("v_xor_b32 v19, v19, v12")
    e("v_lshlrev_b32 v19, 4, v19")
    e("v_lshl_add_u32 v%d, v10, 10, v19" % vD2)
    xread_addr(26)
    e("v_mov_b32 v19, 0")
    e("v_lshl_add_u32 v30, v%d, 2, v%d" % (vC, vCNT))
    e("ds_write_b32 v30, v19")
    XF, AF, ACC, HO, CS, ONES = 128, 32, 64, 32, 112, 116
    for d in range(4):
        e("v_mov_b32 v%d, 0x3f803f80" % (ONES + d))
    TRB = [16, 17, 18, 20]
    e("v_lshrrev_b32 v19, 2, v%d" % vC)
    e("v_lshl_add_u32 v30, v%d, 3, v19" % vQ)
    e("v_lshlrev_b32 v30, 7, v30")
    e("v_and_b32 v31, 1, v%d" % vC)
    e("v_lshl_add_u32 v30, v31, 3, v30")
    e("v_bfe_u32 v19, v%d, 3, 1" % vC)
    e("v_and_b32 v31, 1, v%d" % vQ)
    e("v_lshl_or_b32 v19, v31, 1, v19")
    e("v_xor_b32 v19, s%d, v19" % sRW)
    e("v_lshlrev_b32 v19, 1, v19")
    e("v_bfe_u32 v31, v%d, 1, 1" % vC)
    e("v_or_b32 v19, v19, v31")
    e("v_lshl_add_u32 v30, v19, 4, v30")
    e("v_add_u32 v30, 0x%x, v30" % LB)
    for l in range(4):
        e("v_xor_b32 v%d, %d, v30" % (TRB[l], 32 * l))
    vCSA, RN, C1 = 99, 120, AF + 16
    TR2 = [100, 101, 102, 103]
    HV = [104, 105, 106, 107]
    vFH = 108
    def setup_a():
        e("s_lshl_b32 s%d, s%d, 6" % (sT0, sRW))
        e("s_add_u32 s%d, s%d, 0x%x" % (sT0, sT0, L_CS))
        e("v_lshl_add_u32 v%d, v%d, 4, s%d" % (vCSA, vQ, sT0))
        e("s_lshl_b32 s%d, s%d, 9" % (sT0, sRW))
        e("s_add_u32 s%d, s%d, 0x%x" % (sT0, sT0, L_ST))
        e("v_lshl_add_u32 v96, v%d, 2, s%d" % (vC, sT0))
        e("s_lshr_b32 s%d, s%d, 1" % (sT1, sRW))
        e("s_lshl_b32 s%d, s%d, 10" % (sT1, sT1))
        e("v_add_u32 v97, s%d, v%d" % (sT1, vL16))
        e("v_xor_b32 v98, 1024, v97")
        e("s_mul_i32 s%d, s%d, %d" % (sHS, sRS, 2 * 56 * 1024))
        e("s_lshl4_add_u32 s%d, s%d, s%d" % (sHS, sF0, sHS))
        e("s_add_u32 s%d, s%d, 0x%x" % (sHS, sHS, H_OFF))
        e("s_lshr_b32 s%d, s%d, 3" % (sFH, sRS))
        e("s_and_b32 s%d, s%d, 1" % (sT0, sRS))
        e("s_lshl1_add_u32 s%d, s%d, s%d" % (sFH, sFH, sT0))
        e("s_lshl4_add_u32 s%d, s%d, s%d" % (sFH, sFH, sCBK))
        e("s_lshl_b32 s%d, s%d, 7" % (sFH, sFH))
        e("s_bfe_u32 s%d, s%d, 0x20001" % (sT0, sRS))
        e("s_lshl2_add_u32 s%d, s%d, s%d" % (sFH, sT0, sFH))
        e("s_add_u32 s%d, s%d, 0x%x" % (sFH, sFH, FH_OFF))

    def setup_b():
        e("s_lshr_b32 s%d, s%d, 1" % (sT0, sRW))
        e("s_mul_i32 s%d, s%d, 28" % (sT0, sT0))
        e("s_and_b32 s%d, s%d, 1" % (sT1, sRW))
        e("s_add_u32 s%d, s%d, s%d" % (sT0, sT1, sT0))
        e("s_cmp_eq_u32 s%d, 7" % sR)
        e("s_cselect_b32 s%d, 0, s%d" % (sT1, sR))
        for i in range(7):
            e("s_lshl2_add_u32 s%d, s%d, s%d" % (TV[i], sT1, sT0))
            if i < 6:
                e("s_add_u32 s%d, s%d, 1" % (sT1, sT1))
                e("s_cmp_eq_u32 s%d, 7" % sT1)
                e("s_cselect_b32 s%d, 0, s%d" % (sT1, sT1))
        e("s_lshl_b32 s%d, s%d, 7" % (sW2B, sDB))
        e("s_lshl_b32 s%d, s%d, 14" % (sRB, sRW))
        e("s_add_u32 s%d, s%d, 0x%x" % (sRB, sRB, LB))

    def setup_c():
        late_setup(0)
        e("v_add_u32 v30, s%d, v%d" % (sRB, vZB))
        for l in range(4):
            e("v_xor_b32 v%d, %d, v30" % (TR2[l], 32 * l))
        for pt in range(4):
            e("v_add_u32 v%d, 0x%x, v%d" % (HV[pt], pt * 4 * 56 * 1024, vL16))
        e("s_lshl4_add_u32 s%d, s%d, s%d" % (sHB, sA, sWP))
        e("s_mul_i32 s%d, s%d, %d" % (sHB, sHB, 56 * 1024))
        e("s_add_u32 s%d, s%d, 0x%x" % (sHB, sHB, H_OFF))
        flag_voff(vFH, 27)
        e("s_lshr_b32 s%d, s%d, 1" % (sT0, sWP))
        e("s_lshl1_add_u32 s%d, s%d, s%d" % (sFHC, sA, sT0))
        e("s_lshr_b32 s%d, s%d, 1" % (sT0, sRW))
        e("s_lshl1_add_u32 s%d, s%d, s%d" % (sFHC, sFHC, sT0))
        e("s_lshl_b32 s%d, s%d, 10" % (sFHC, sFHC))
        e("s_add_u32 s%d, s%d, 0x%x" % (sFHC, sFHC, FH_OFF))

    setup_a()
    setup_b()
    setup_c()
    e("s_lshr_b32 s%d, s2, 3" % sT0)
    e("s_lshl2_add_u32 s%d, s%d, s%d" % (sT0, sT0, sRW))
    e("s_mul_i32 s%d, s%d, 7" % (sT0, sT0))
    e("v_add_u32 v19, s%d, v10" % sT0)
    e("v_and_b32 v30, 0xffc0, v19")
    e("v_add_u32 v19, v19, v30")
    e("v_lshlrev_b32 v30, 7, v12")
    e("v_lshl_add_u32 v109, v19, 10, v30")
    run(xdma(2))
    run(xdma(3))
    touches(2)
    tag_setup()
    k.stamp(3)

    def X(u, T):
        return vr(XF + (u * 16 + T) * 4, 4)

    WR16 = 64

    def wloads():
        items = []

        def head():
            e("s_lshr_b32 s%d, s2, 5" % sRSW)
            e("s_lshl3_add_u32 s%d, s%d, s%d" % (sRSW, sA, sRSW))
            e("s_and_b32 s%d, s%d, 3" % (sCG, sDB))
            e("s_lshr_b32 s%d, s%d, 4" % (sT1, sRSW))
            e("s_lshl_b32 s%d, s%d, 4" % (sT1, sT1))
            e("s_lshl1_add_u32 s%d, s%d, s%d" % (sT1, sRW, sT1))
            e("s_and_b32 s%d, s%d, 1" % (sT2, sRSW))
            e("s_lshl3_add_u32 s%d, s%d, s%d" % (sT1, sT2, sT1))
            e("s_bfe_u32 s%d, s%d, 0x30001" % (sT2, sRSW))
            e("s_lshl_b32 s%d, s%d, 8" % (sT2, sT2))
            e("s_add_u32 s%d, s%d, s%d" % (sT1, sT1, sT2))
            e("s_mul_i32 s%d, s%d, 514" % (sT1, sT1))
            e("s_lshl_b32 s%d, s%d, 7" % (sT4, sCG))
            e("s_add_u32 s%d, s%d, s%d" % (sT4, sT4, sT1))
            e("v_lshlrev_b32 v11, 1, v%d" % vLANE)
            e("v_and_b32 v19, 3, v%d" % vLANE)
            e("v_mul_u32_u24 v19, 32896, v19")
            e("v_bfe_u32 v30, v%d, 2, 1" % vLANE)
            e("v_mul_u32_u24 v30, 514, v30")
            e("v_add_u32 v19, v19, v30")
            e("s_cmp_eq_u32 s%d, 3" % sCG)
            e("s_cselect_b32 s%d, s%d, 0x%x" % (sT1, sT1, OOB))
            e("buffer_load_ushort v120, v19, %s, s%d offen offset:512" % (srd(SWR), sT1))
            k.vm.issue("wg")
            e("buffer_load_ushort v121, v19, %s, s%d offen offset:512" % (srd(SWI), sT1))
            k.vm.issue("wg")
        items.append(head)
        nt = " nt" if P("NTW", 1) else ""
        for r in range(4):
            def f(r=r):
                if r:
                    e("s_add_u32 s%d, s%d, 32896" % (sT4, sT4))
                for cb in range(2):
                    for arr, sr_ in ((0, SWR), (1, SWI)):
                        e("buffer_load_ushort v%d, v11, %s, s%d offen offset:%d%s" % (WR16 + 8 * cb + 4 * arr + r, srd(sr_), sT4, 514 * cb, nt))
                        k.vm.issue("wg")
            items.append(f)
        return items

    def wt_a():
        k.wait_vm("wg")
        for cb in range(2):
            for r in range(4):
                e("v_lshl_or_b32 v%d, v%d, 16, v%d" % (WR16 + 8 * cb + r, WR16 + 8 * cb + 4 + r, WR16 + 8 * cb + r))
        e("v_lshl_or_b32 v120, v121, 16, v120")
        e("ds_write_b128 v%d, %s" % (vWW, vr(WR16, 4)))
        k.lg.issue("wtw")
        e("v_xor_b32 v19, 16, v%d" % vWW)
        e("ds_write_b128 v19, %s" % vr(WR16 + 8, 4))
        k.lg.issue("wtw")
        e("s_lshl_b32 s%d, s%d, 5" % (sT0, sRW))
        e("s_add_u32 s%d, s%d, 0x%x" % (sT0, sT0, L_W256))
        e("v_lshl_add_u32 v19, v%d, 2, s%d" % (vLANE, sT0))
        e("s_mov_b64 exec, 0xff")
        e("ds_write_b32 v19, v120")
        k.lg.issue("wtw")
        e("s_mov_b64 exec, -1")

    def wt_b():
        for h in range(2):
            e("ds_read_b128 %s, v%d offset:%d" % (vr(WR16 + 4 * h, 4), vWR, 1024 * h))
            k.lg.issue("wtr")
        e("v_add_u32 v19, 0x%x, v%d" % (L_W256, vL16))
        e("ds_read_b128 %s, v19" % vr(WR16 + 8, 4))
        k.lg.issue("wtr")

    def wt_c():
        k.wait_lg("wtr")
        e("s_lshl2_add_u32 s%d, s%d, s%d" % (sT2, sCG, sRW))
        e("s_lshl_b32 s%d, s%d, 17" % (sT0, sT2))
        e("s_lshl_b32 s%d, s%d, 7" % (sT1, sRSW))
        e("s_add_u32 s%d, s%d, s%d" % (sT0, sT0, sT1))
        e("s_add_u32 s%d, s%d, 0x%x" % (sT0, sT0, WT_OFF))
        e("buffer_store_dwordx4 %s, v%d, %s, s%d offen sc1" % (vr(WR16, 4), vWS, srd(SWS), sT0))
        k.vm.issue("wtst")
        e("s_add_u32 s%d, s%d, 0x10000" % (sT0, sT0))
        e("buffer_store_dwordx4 %s, v%d, %s, s%d offen sc1" % (vr(WR16 + 4, 4), vWS, srd(SWS), sT0))
        k.vm.issue("wtst")
        e("s_add_u32 s%d, s%d, 0x%x" % (sT1, sT1, WT_OFF + 256 * 8192))
        e("s_cmp_eq_u32 s%d, 12" % sT2)
        e("s_cselect_b32 s%d, s%d, 0x%x" % (sT1, sT1, OOB))
        e("s_mov_b64 exec, 0xff")
        e("buffer_store_dwordx4 %s, v%d, %s, s%d offen sc1" % (vr(WR16 + 8, 4), vL16, srd(SWS), sT1))
        k.vm.issue("wtst")
        e("s_mov_b64 exec, -1")

    def wt_d():
        e("s_lshl2_add_u32 s%d, s%d, s%d" % (sT2, sCG, sRW))
        e("s_lshr_b32 s%d, s%d, 2" % (sT1, sRSW))
        e("s_lshl4_add_u32 s%d, s%d, s%d" % (sT0, sT2, sT1))
        e("s_lshl_b32 s%d, s%d, 7" % (sT0, sT0))
        e("s_and_b32 s%d, s%d, 3" % (sT1, sRSW))
        e("s_lshl2_add_u32 s%d, s%d, s%d" % (sT0, sT1, sT0))
        e("s_add_u32 s%d, s%d, 0x%x" % (sT0, sT0, FW_OFF))
        e("s_add_u32 s%d, s%d, 0x%x" % (sT1, sT0, 4 * 2048))
        e("s_cmp_eq_u32 s%d, 12" % sT2)
        e("s_cselect_b32 s%d, s%d, 0x%x" % (sT1, sT1, OOB))
        k.wait_vm("wtst")
        publish("s%d" % sT0)
        publish("s%d" % sT1)
        e("s_mov_b32 s%d, 0" % sHF)

    def xstage(s_):
        for kk in (2 * s_, 2 * s_ + 1):
            for u in range(2):
                for ks in range(2):
                    xread(X(u, 2 * kk + ks), 26, kk, u, ks, ("XR", s_))
    WPOS = P("WPOS", -1)
    if WPOS < 0:
        run(wloads())
    for s_ in range(4):
        k.wait_vm(("X", 2 * s_ + 1))
        if s_:
            k.wait_lg([("XR", s_ - 1)] + (["wtw"] if s_ == WPOS + 3 else []))
        e("s_barrier")
        fs(6, 2 + s_)
        xstage(s_)
        if s_ == WPOS + 3:
            wt_b()
        if s_ < 2:
            run(xdma(4 + 2 * s_) + xdma(5 + 2 * s_))
        else:
            for kk in range(4 * (s_ - 2), 4 * (s_ - 1)):
                run(w1dma(0, kk))
        if s_ == WPOS:
            run(wloads())
        touches(3 + s_)
        if s_ == WPOS + 2:
            wt_a()
        if s_ == WPOS + 3:
            wt_c()
    k.wait_vm([("W1", 0, kk) for kk in range(4)])
    k.wait_lg(("XR", 3))
    e("s_barrier")
    k.stamp(4)
    fs(6, 6)


    def rdA(reg, T):
        items = []
        for l in range(4):
            for hh in range(2):
                def f(l=l, hh=hh):
                    e("ds_read_b64_tr_b16 %s, v%d offset:%d" % (vr(AF + (T & 1) * 16 + 4 * l + 2 * hh, 2), TRB[l], T * 4096 + hh * 512))
                    k.lg.issue(("A", reg, T))
                items.append(f)
        return items

    def gpass(reg, hooks, mid):
        fs(8 + reg, 2)
        run(rdA(reg, 0))
        for T in range(16):
            k.wait_lg(("A", reg, T))
            if T == 7:
                gwait(mid)
            if T + 1 < 16:
                sch["lds"].extend(rdA(reg, T + 1))
            for l in range(4):
                a = vr(AF + (T & 1) * 16 + 4 * l, 4)
                for u in range(2):
                    c = vr(ACC + (l * 2 + u) * 4, 4)
                    mf(c, a, X(u, T), c if T else "0")
                if l == 0:
                    mf(vr(CS, 4), a, vr(ONES, 4), vr(CS, 4) if T else "0")
            flush_lds()
            run(hooks.get(T, []))
            if T < 11:
                fs(8 + reg, 3 + T)
        flush_side()

    def h_out(reg, cw, tag):
        k.nop(2)
        e("s_mov_b32 exec_lo, 0x00010001")
        e("s_mov_b32 exec_hi, 0x00010001")
        e("ds_write_b128 v%d, %s offset:%d" % (vCSA, vr(CS, 4), 256 * reg))
        e("s_mov_b64 exec, -1")
        e("s_waitcnt lgkmcnt(0)")
        garrive(cw)
        e("s_add_u32 s%d, s%d, %d" % (sT2, sHS, 2048 * reg))
        e("s_add_u32 s%d, s%d, %d" % (sT3, sHS, 2048 * reg + 56 * 1024))
        if reg == 0:
            gwait(C_ST)
            for u in range(2):
                e("ds_read2_b32 %s, v96 offset0:%d offset1:%d" % (vr(RN + 2 * u, 2), 16 * u, 32 + 16 * u))
        gwait(cw)
        for l in range(1, 4):
            e("v_xor_b32 v19, %d, v%d" % (l * 64, vCSA))
            e("ds_read_b128 %s, v19 offset:%d" % (vr(C1 + 4 * l, 4), 256 * reg))
            k.lg.issue(("C1", reg, l))
        for l in range(4):
            if l:
                k.wait_lg(("C1", reg, l))
            c1 = C1 + 4 * l if l else CS
            for u in range(2):
                a = ACC + (l * 2 + u) * 4
                for r in range(4):
                    e("v_fmac_f32 v%d, v%d, v%d" % (a + r, RN + 2 * u + 1, c1 + r))
                for r in range(4):
                    e("v_mul_f32 v%d, v%d, v%d" % (a + r, a + r, RN + 2 * u))
                o = HO + ((l >> 1) * 2 + u) * 4 + (l & 1) * 2
                e("v_cvt_pk_bf16_f32 v%d, v%d, v%d" % (o, a, a + 1))
                e("v_cvt_pk_bf16_f32 v%d, v%d, v%d" % (o + 1, a + 2, a + 3))
        for i in range(16):
            e("v_pk_max_i16 v%d, v%d, 0" % (HO + i, HO + i))
        e("s_bitcmp0_b32 s%d, 0" % sRW)
        e("s_cbranch_scc1 L_nosw%d" % reg)
        for i in range(4):
            e("v_swap_b32 v%d, v%d" % (HO + 4 * i, HO + 4 * i + 2))
            e("v_swap_b32 v%d, v%d" % (HO + 4 * i + 1, HO + 4 * i + 3))
        k.lab("L_nosw%d" % reg)
        for pr in range(2):
            for u in range(2):
                e("buffer_store_dwordx4 %s, v%d, %s, s%d offen sc1" % (vr(HO + (pr * 2 + u) * 4, 4), 97 + pr, srd(SWS), sT2 + u))
                k.vm.issue(tag)

    def land(reg, lo, hi, cw):
        def f():
            k.wait_vm([("W1", reg, kk) for kk in range(lo, hi)])
            garrive(cw)
        return f

    def w2piece(half, lo, hi):
        def f():
            m = ((1 << (8 * hi)) - 1) & ~((1 << (8 * lo)) - 1)
            e("s_mov_b32 m0, 0x%x" % L_DUM)
            e("s_mov_b32 exec_lo, 0x%x" % (m & 0xffffffff))
            e("s_mov_b32 exec_hi, 0x%x" % (m >> 32))
            if half:
                e("s_mov_b32 s%d, 0x10000" % sT0)
            e("buffer_load_dword v109, %s, %s offen lds" % (srd(SW2), "s%d" % sT0 if half else "0"))
            k.vm.issue("touch")
            e("s_mov_b64 exec, -1")
        return f
    FSCH = [int(x_) for x_ in os.environ.get("FSCH", "99,99,99,99,24,25,26,27").split(",")]
    pieces = [w2piece(h_, lo, hi) for h_ in range(2) for lo, hi in ((0, 2), (2, 4), (4, 6), (6, 7))]
    sch["gap"] = P("GAPA", 4)
    for kk in range(8):
        side.extend(w1dma(1, kk))
    ha = {3: [land(0, 4, 8, C_WA2)], 11: [land(1, 0, 4, C_WB1)], P("WTD", 2): [wt_d], 14: [land(1, 4, 8, C_WB2)]}
    for st_, pc_ in zip(FSCH, pieces):
        if st_ < 16:
            ha.setdefault(st_, []).append(pc_)
    gpass(0, ha, C_WA2)
    k.stamp(5)
    h_out(0, C_CSA, "ha")
    k.stamp(6)

    for l in range(4):
        e("v_subrev_u32 v%d, 0x%x, v%d" % (TRB[l], LB, TRB[l]))
    gwait(C_WB1)
    AY, HR, NHS, AF2 = 32, 128, 5, 208

    def w2_dma(i):
        def item(ee):
            def f():
                e("s_add_u32 m0, s%d, %d" % (sRB, (i % 4) * 4096 + ee * 1024))
                if ee == 0:
                    e("s_lshl_b32 s%d, s%d, 15" % (sDT, TV[i % 7]))
                    e("s_add_u32 s%d, s%d, s%d" % (sDT, sDT, sW2B))
                    if i >= 7:
                        e("s_add_u32 s%d, s%d, 0x10000" % (sDT, sDT))
                else:
                    e("s_add_u32 s%d, s%d, 8192" % (sDT, sDT))
                e("buffer_load_dwordx4 v%d, %s, s%d offen lds" % (vD2, srd(SW2), sDT))
                k.vm.issue(("W2", i))
            return f
        return [item(ee) for ee in range(4)]

    def w2_read_items(i):
        items = []
        for l in range(4):
            for hh in range(2):
                def f(l=l, hh=hh):
                    r = AF2 + (i & 1) * 16 + 4 * l + 2 * hh
                    e("ds_read_b64_tr_b16 %s, v%d offset:%d" % (vr(r, 2), TR2[l], (i % 4) * 4096 + hh * 2048))
                    k.lg.issue(("W2R", i))
                items.append(f)
        return items

    def pubHA():
        k.wait_vm("ha")
        publish("s%d" % sFH)
        e("s_add_u32 s%d, s%d, 0x%x" % (sFH, sFH, FHB_D))
    hb = {T: [] for T in range(16)}
    hb[P("W2T0", 0)].append(lambda: [side.extend(w2_dma(i)) for i in range(4)])
    hb[P("PHA", 3)].append(pubHA)
    for st_, pc_ in zip(FSCH, pieces):
        if 16 <= st_ < 32:
            hb[st_ - 16].append(pc_)
    hb[P("PPA", 14)].append(lambda: poll_issue("ph", vFH, "s%d" % sFHC, 31))
    sch["gap"] = P("GAPB", 4)
    gpass(1, hb, C_WB2)
    k.stamp(7)
    h_out(1, C_CSB, "hb")

    def hload(i):
        def item(pt):
            def f():
                if pt == 0:
                    e("s_lshl_b32 s%d, s%d, 10" % (sXT, TV[i % 7]))
                    e("s_add_u32 s%d, s%d, s%d" % (sXT, sXT, sHB))
                e("buffer_load_dwordx4 %s, v%d, %s, s%d offen offset:%d sc1" % (vr(HR + (i % NHS) * 16 + 4 * pt, 4), HV[pt], srd(SWS), sXT, 2048 if i >= 7 else 0))
                k.vm.issue(("H", i))
            return f
        return [item(pt) for pt in range(4)]
    poll_check("ph", vFH, "s%d" % sFHC, 31, pre=["    s_waitcnt vmcnt(0)"] + publish_lines("s%d" % sFH))
    k.stamp(8)
    HLA = P("HLA", 4)
    for i in range(HLA):
        run(hload(i))
        if i == min(P("PHB", 1), HLA - 1):
            k.wait_vm("hb")
            publish("s%d" % sFH)
    xe_load()
    k.wait_vm(("W2", 0))
    run(w2_read_items(0))
    sch["gap"] = P("GAP3", 2)
    fs(7, 2)
    for i in range(14):
        k.wait_lg(("W2R", i))
        if i + HLA == 7:
            poll_check("phb", vFH, "s%d" % sFHC, 31)
        if i + HLA < 14:
            side.extend(hload(i + HLA))
        if i + 4 < 14:
            side.extend(w2_dma(i + 4))
        k.wait_vm([("H", i)] + ([("W2", i + 1)] if i + 1 < 14 else []))
        if i == 6 - HLA:
            e("s_add_u32 s%d, s%d, 0x%x" % (sFHC, sFHC, FHB_D))
            poll_issue("phb", vFH, "s%d" % sFHC, 31)
        if i + 1 < 14:
            sch["lds"].extend(w2_read_items(i + 1))
        for l in range(4):
            for pt in range(4):
                c = vr(AY + (l * 4 + pt) * 4, 4)
                mf(c, vr(AF2 + (i & 1) * 16 + 4 * l, 4), vr(HR + (i % NHS) * 16 + 4 * pt, 4), c if i else "0")
        flush_side()
        if i == P("DPS", 4):
            garrive(C_WT)
        if i < 11:
            fs(7, 3 + i)
        if i == 2:
            k.stamp(9)
        if i == 7:
            k.stamp(10)
    k.stamp(11)
    e("v_add_u32 v10, s%d, v%d" % (sRB, vYW))
    for dt in range(1, 4):
        e("v_xor_b32 v%d, %d, v10" % (10 + dt, 64 * dt))
    k.nop(4)
    for dt in range(4):
        for pt in range(4):
            e("ds_write_b128 v%d, %s offset:%d" % (10 + dt, vr(AY + (dt * 4 + pt) * 4, 4), pt * 4096))
    k.lab("L_final")
    main_lines = k.lines

    k.lines = []
    k.vm.q, k.lg.q = list(q_vm), []
    k.lab("L_fft")
    sCC, sPL, sZR, sZI, sSC, sFXC, sGB, sFX = 48, 50, 51, 52, 53, 54, 55, 56
    C64, S64, N64, C32, S32, N32, T1C, T1S, T2C, T2S = 128, 136, 144, 152, 160, 168, 176, 184, 192, 200
    XB, PA, FB, SUM, GR, ONES = 32, 64, 96, 208, 216, 224
    e("s_waitcnt lgkmcnt(0)")
    e("s_load_dword s%d, s[%d:%d], 0x%x" % (sTAG, SWS, SWS + 1, EPOCH_OFF))

    def fgen(tl):
        t = 32
        e("s_lshl_b32 s%d, s%d, 5" % (sT0, sCBK))
        e("v_add_u32 v%d, s%d, v%d" % (t, sT0, vC))
        if tl:
            e("v_add_u32 v%d, 16, v%d" % (t, t))
        e("v_lshrrev_b32 v%d, 1, v%d" % (t + 1, t))
        e("v_and_b32 v%d, 1, v%d" % (t + 2, t))
        e("v_cvt_f32_u32 v%d, v%d" % (t + 2, t + 2))
        e("v_mul_f32 v%d, %s, v%d" % (t + 2, hexf(0.25), t + 2))
        if tl == 0:
            e("v_cmp_eq_u32 vcc, 1, v%d" % t)
            e("v_mov_b32 v%d, 256" % (t + 3))
        e("s_lshl_b32 s%d, s%d, 6" % (sT0, sR))
        if tl == 0:
            e("v_cndmask_b32 v%d, v%d, v%d, vcc" % (t + 1, t + 1, t + 3))
            e("v_cndmask_b32 v%d, v%d, 0, vcc" % (t + 2, t + 2))
        e("v_cvt_f32_u32 v%d, v%d" % (t + 1, t + 1))
        e("v_mul_f32 v%d, %s, v%d" % (t + 1, hexf(1.0 / 512), t + 1))
        e("v_lshl_add_u32 v%d, v%d, 3, s%d" % (t + 3, vQ, sT0))
        e("v_cvt_f32_u32 v%d, v%d" % (t + 3, t + 3))
        e("v_fma_f32 v%d, v%d, v%d, v%d" % (t + 2, t + 3, t + 1, t + 2))
        e("v_fract_f32 v%d, v%d" % (t + 8, t + 2))
        e("v_mul_f32 v%d, %s, v%d" % (t + 3, hexf(32.0), t + 1))
        e("v_fract_f32 v%d, v%d" % (t + 3, t + 3))
        for jj in range(1, 8):
            e("v_add_f32 v%d, v%d, v%d" % (t + 8 + jj, t + 7 + jj, t + 1))
        for Tf in range(4):
            for jj in range(8):
                e("v_cos_f32 v%d, v%d" % (t + 16 + jj, t + 8 + jj))
            if Tf < 3:
                for jj in range(8):
                    e("v_add_f32 v%d, v%d, v%d" % (t + 8 + jj, t + 8 + jj, t + 3))
            else:
                k.nop(1)
            for d in range(4):
                e("v_cvt_pk_bf16_f32 v%d, v%d, v%d" % (FB + 16 * tl + 4 * Tf + d, t + 16 + 2 * d, t + 17 + 2 * d))
    fgen(0)
    fgen(1)
    vSM, vAL, vBE = 16, 17, 18
    e("v_bfe_u32 v19, v%d, 1, 2" % vC)
    e("v_cvt_f32_u32 v19, v19")
    e("v_mul_f32 v19, %s, v19" % hexf(0.25))
    e("v_cos_f32 v%d, v19" % vAL)
    e("v_sin_f32 v%d, v19" % vBE)
    e("v_bfe_u32 v%d, v%d, 1, 1" % (vSM, vC))
    e("v_mul_u32_u24 v%d, 0x8000, v%d" % (vSM, vSM))
    e("v_lshl_or_b32 v%d, v%d, 16, v%d" % (vSM, vSM, vSM))
    e("v_rndne_f32 v%d, v%d" % (vAL, vAL))
    e("v_rndne_f32 v%d, v%d" % (vBE, vBE))
    e("v_lshlrev_b32 v19, 31, v%d" % vC)
    e("v_xor_b32 v%d, v19, v%d" % (vBE, vBE))
    for d in range(4):
        e("v_mov_b32 v%d, 0x3f803f80" % (ONES + d))
    xread_addr(26)
    k.stamp(2)

    def cconst():
        t = 32
        slot = [16 * (jj >> 2) + (jj & 3) for jj in range(8)]
        yield "s_lshl_b32 s%d, s%d, 4" % (sT3, sRW)
        yield "v_add_u32 v%d, s%d, v%d" % (t + 24, sT3, vC)
        yield "v_cvt_f32_u32 v%d, v%d" % (t + 27, vQ)
        yield "v_cvt_f32_u32 v%d, v%d" % (t + 25, t + 24)
        yield "v_mul_f32 v%d, 4.0, v%d" % (t + 27, t + 27)
        yield "v_cvt_f32_u32 v%d, v%d" % (t + 28, vC)
        yield "v_and_b32 v%d, 1, v%d" % (t + 30, vC)
        for jj in range(8):
            yield "v_add_f32 v%d, %s, v%d" % (t + 32 + jj, hexf(float(slot[jj])), t + 27)
        yield "v_mul_u32_u24 v%d, 0x8000, v%d" % (t + 30, t + 30)
        yield "v_mul_f32 v%d, %s, v%d" % (t + 26, hexf(1.0 / 64), t + 25)
        yield "v_lshl_or_b32 v%d, v%d, 16, v%d" % (t + 30, t + 30, t + 30)
        for (scale, Cb, Sb, Nb, flip) in ((t + 26, C64, S64, N64, "v%d" % (t + 30)), (t + 29, C32, S32, N32, "0x80000000")):
            if Cb == C32:
                yield "v_mul_f32 v%d, %s, v%d" % (t + 29, hexf(1.0 / 32), t + 28)
                yield "v_mul_f32 v%d, %s, v%d" % (t + 26, hexf(1.0 / 2048), t + 25)
            for jj in range(8):
                yield "v_mul_f32 v%d, v%d, v%d" % (t + jj, t + 32 + jj, scale)
            for jj in range(8):
                yield "v_cos_f32 v%d, v%d" % (t + 8 + jj, t + jj)
            for jj in range(8):
                yield "v_sin_f32 v%d, v%d" % (t + 16 + jj, t + jj)
            for d in range(4):
                yield "v_cvt_pk_bf16_f32 v%d, v%d, v%d" % (Cb + d, t + 8 + 2 * d, t + 9 + 2 * d)
            for d in range(4):
                yield "v_cvt_pk_bf16_f32 v%d, v%d, v%d" % (Sb + d, t + 16 + 2 * d, t + 17 + 2 * d)
            for d in range(4):
                yield "v_xor_b32 v%d, %s, v%d" % (Cb + 4 + d, flip, Cb + d)
            for d in range(4):
                yield "v_xor_b32 v%d, %s, v%d" % (Sb + 4 + d, flip, Sb + d)
            for d in range(8):
                yield "v_xor_b32 v%d, 0x80008000, v%d" % (Nb + d, Sb + d)
        for i in range(8):
            yield "v_mul_f32 v%d, v%d, v%d" % (t + i, t + 32 + i, t + 26)
        yield "v_cvt_f32_u32 v%d, s%d" % (t + 29, sT3)
        for i in range(8):
            yield "v_cos_f32 v%d, v%d" % (T1C + i, t + i)
            yield "v_sin_f32 v%d, v%d" % (T1S + i, t + i)
        yield "v_mul_f32 v%d, %s, v%d" % (t + 26, hexf(1.0 / 2048), t + 28)
        for r in range(4):
            yield "v_add_f32 v%d, v%d, v%d" % (t + 8 + r, t + 29, t + 32 + r)
        yield "v_add_f32 v%d, %s, v%d" % (t + 25, hexf(16.0 / 2048), t + 26)
        for r in range(4):
            yield "v_mul_f32 v%d, v%d, v%d" % (t + r, t + 8 + r, t + 26)
        for r in range(4):
            yield "v_mul_f32 v%d, v%d, v%d" % (t + 4 + r, t + 8 + r, t + 25)
        for i in range(8):
            yield "v_cos_f32 v%d, v%d" % (T2C + i, t + i)
            yield "v_sin_f32 v%d, v%d" % (T2S + i, t + i)
    CCE = P("CCE", 1)
    if CCE:
        for s_ in cconst():
            e(s_)
    vX1 = 7
    e("v_lshrrev_b32 v7, 1, v%d" % vC)
    e("v_lshlrev_b32 v7, 13, v7")
    e("v_and_b32 v19, 1, v%d" % vC)
    e("v_lshl_add_u32 v7, v19, 6, v7")
    e("v_lshl_add_u32 v7, v%d, 4, v7" % vQ)
    e("s_lshl_b32 s%d, s%d, 9" % (sT0, sRW))
    e("s_add_u32 s%d, s%d, 0x%x" % (sT0, sT0, L_ST))
    e("v_lshl_add_u32 v8, v%d, 2, s%d" % (vC, sT0))
    e("v_lshl_add_u32 v9, v%d, 4, s%d" % (vQ, sT0))
    e("s_lshl4_add_u32 s%d, s%d, s%d" % (sFX, sCBK, sPB))
    e("s_lshl_b32 s%d, s%d, 7" % (sFX, sFX))
    e("s_lshl2_add_u32 s%d, s%d, s%d" % (sFX, sRW, sFX))
    tag_setup()
    k.stamp(3)
    e("s_setprio %d" % P("PRIO", 1))

    def XBf(kk, u, ks):
        return vr(XB + (((kk & 1) * 2 + ks) * 2 + u) * 4, 4)
    for s_ in range(4):
        e("s_barrier")
        fs(6, 2 + s_)
        for kk in (2 * s_, 2 * s_ + 1):
            for ks in range(2):
                for u in range(2):
                    xread(XBf(kk, u, ks), 26, kk, u, ks, ("XR", kk, ks))
        if s_ == 2:
            for i in range(32):
                e("v_xor_b32 v%d, v%d, v%d" % (FB + i, vSM, FB + i))
        for kk in (2 * s_, 2 * s_ + 1):
            for ks in range(2):
                T = 2 * kk + ks
                k.wait_lg(("XR", kk, ks))
                for u in range(2):
                    x = XBf(kk, u, ks)
                    mfma(vr(SUM + 4 * u, 4), vr(ONES, 4), x, vr(SUM + 4 * u, 4) if T else "0")
                    mfma(vr(GR + 4 * u, 4), x, x, vr(GR + 4 * u, 4) if T else "0")
                for u in range(2):
                    x = XBf(kk, u, ks)
                    for tl in range(2):
                        p = vr(PA + ((tl * 2 + ((T >> 2) & 1)) * 2 + u) * 4, 4)
                        mfma(p, x, vr(FB + 16 * tl + 4 * (T & 3), 4), "0" if T in (0, 4) else p)
    e("s_barrier")
    k.stamp(4)
    fs(6, 6)
    e("v_and_b32 v19, 3, v%d" % vC)
    k.nop(2)
    for r in range(1, 4):
        e("v_cmp_eq_u32 vcc, %d, v19" % r)
        k.nop(2)
        for u in range(2):
            e("v_cndmask_b32 v%d, v%d, v%d, vcc" % (GR + 4 * u, GR + 4 * u, GR + 4 * u + r))

    def stat_ops(u):
        m, q2, rs_, nm, d0 = SUM + 4 * u, GR + 4 * u, SUM + 4 * u + 1, SUM + 4 * u + 2, SUM + 4 * u + 3
        rnd = lambda v: ["v_cvt_pk_bf16_f32 v%d, v%d, v%d" % (v, v, v), "v_lshlrev_b32 v%d, 16, v%d" % (v, v)]
        return (["v_mul_f32 v%d, %s, v%d" % (m, hexf(1.0 / 512), m),
                 "v_mul_f32 v%d, %s, v%d" % (q2, hexf(1.0 / 512), q2),
                 "v_fma_f32 v%d, -v%d, v%d, v%d" % (q2, m, m, q2),
                 "v_max_f32 v%d, 0, v%d" % (q2, q2)] + rnd(q2) +
                ["v_add_f32 v%d, %s, v%d" % (q2, hexf(1e-5), q2)] + rnd(q2) +
                ["v_sqrt_f32 v%d, v%d" % (q2, q2), "v_sub_f32 v%d, 0, v%d" % (nm, m)] + rnd(q2) +
                ["v_rcp_f32 v%d, v%d" % (rs_, q2)] + rnd(nm) +
                ["v_add_f32 v%d, v%d, v%d" % (d0, m, nm), "v_mul_f32 v%d, %s, v%d" % (d0, hexf(512.0), d0)])
    for a_, b_ in zip(stat_ops(0), stat_ops(1)):
        e(a_)
        e(b_)
    e("s_mov_b32 exec_lo, 0x00f0000f")
    e("s_mov_b32 exec_hi, 0xf0000f00")
    for u in range(2):
        e("ds_write2_b32 v8, v%d, v%d offset0:%d offset1:%d" % (SUM + 4 * u + 1, SUM + 4 * u + 2, 16 * u, 32 + 16 * u))
        e("ds_write_b32 v8, v%d offset:%d" % (SUM + 4 * u + 3, 256 + 64 * u))
    e("s_mov_b64 exec, -1")
    RT, D0T = XB, XB + 8
    for u in range(2):
        e("ds_read_b128 %s, v9 offset:%d" % (vr(RT + 4 * u, 4), 64 * u))
        e("ds_read_b128 %s, v9 offset:%d" % (vr(D0T + 4 * u, 4), 256 + 64 * u))
    garrive(C_ST)
    for tl in range(2):
        for i in range(8):
            e("v_fmac_f32 v%d, v%d, v%d" % (PA + 16 * tl + i, vAL, PA + 16 * tl + 8 + i))
        for i in range(8):
            e("v_fmac_f32_dpp v%d, v%d, v%d quad_perm:[1,0,3,2] row_mask:0xf bank_mask:0xf" % (PA + 16 * tl + i, PA + 16 * tl + 8 + i, vBE))
    e("v_or_b32 v19, s%d, v%d" % (sCBK, vC))
    e("v_cmp_eq_u32 vcc, 0, v19")
    e("s_lshl_b32 s%d, s%d, 17" % (sT0, sCBK))
    e("s_lshl_b32 s%d, s%d, 7" % (sT1, sRS))
    e("s_add_u32 s%d, s%d, s%d" % (sT0, sT0, sT1))
    e("s_add_u32 s%d, s%d, 0x%x" % (sT1, sT0, X1C_OFF))
    e("s_add_u32 s%d, s%d, 0x%x" % (sT2, sT0, X1C_OFF + 65536))
    e("s_waitcnt lgkmcnt(0)")
    k.lg.clear()
    for i in range(8):
        e("v_cndmask_b32 v%d, v%d, v%d, vcc" % (PA + i, PA + i, D0T + i))
    for tl in range(2):
        for i in range(8):
            e("v_mul_f32 v%d, v%d, v%d" % (PA + 16 * tl + i, PA + 16 * tl + i, RT + i))
        o = 232 + 4 * tl
        for d in range(4):
            e("v_cvt_pk_bf16_f32 v%d, v%d, v%d" % (o + d, PA + 16 * tl + 2 * d, PA + 16 * tl + 2 * d + 1))
        e("buffer_store_dwordx4 %s, v%d, %s, s%d offen sc1" % (vr(o, 4), vX1, srd(SWS), sT1 + tl))
        k.vm.issue("x1st")
    k.stamp(5)
    e("s_setprio 0")
    GB = 64

    def ggen():
        t0 = 32
        an, stp = 252, 31
        yield "s_lshl_b32 s%d, s%d, 6" % (sT3, sDB)
        yield "s_lshl4_add_u32 s%d, s%d, s%d" % (sT3, sRW, sT3)
        yield "v_add_u32 v%d, s%d, v%d" % (t0, sT3, vC)
        yield "v_lshlrev_b32 v%d, 1, v%d" % (t0 + 2, vQ)
        yield "v_cvt_f32_u32 v%d, v%d" % (t0 + 1, t0)
        yield "v_cvt_f32_u32 v%d, v%d" % (t0 + 2, t0 + 2)
        yield "v_mul_f32 v%d, %s, v%d" % (t0 + 1, hexf(1.0 / 512), t0 + 1)
        yield "v_mul_f32 v%d, %s, v%d" % (stp, hexf(16.0), t0 + 1)
        for dw in range(4):
            yield "v_add_f32 v%d, %s, v%d" % (an + dw, hexf(float(8 * (dw >> 1) + (dw & 1))), t0 + 2)
        yield "v_fract_f32 v%d, v%d" % (stp, stp)
        for dw in range(4):
            yield "v_mul_f32 v%d, v%d, v%d" % (an + dw, an + dw, t0 + 1)
        yield "v_lshlrev_b32 v%d, 31, v%d" % (t0 + 16, vC)
        yield "v_min_u32 v%d, 1, v%d" % (t0 + 17, vQ)
        yield "v_or_b32 v%d, 0x3f800000, v%d" % (t0 + 16, t0 + 16)
        yield "v_sub_u32 v%d, v%d, 1" % (t0 + 17, t0 + 17)
        yield "v_and_b32 v%d, 0xffff0000, v%d" % (t0 + 17, t0 + 17)
        for T in range(16):
            for dw in range(4):
                yield "v_cos_f32 v%d, v%d" % (t0 + 8 + 2 * dw, an + dw)
                yield "v_sin_f32_e64 v%d, -v%d" % (t0 + 9 + 2 * dw, an + dw)
            for dw in range(4):
                yield "v_add_f32 v%d, v%d, v%d" % (an + dw, an + dw, stp)
            for dw in range(4):
                yield "v_cvt_pk_bf16_f32 v%d, v%d, v%d" % (GB + 4 * T + dw, t0 + 8 + 2 * dw, t0 + 9 + 2 * dw)
            if T == 0:
                yield "v_bfi_b32 v%d, v%d, v%d, v%d" % (GB, t0 + 17, t0 + 16, GB)
    late_setup(1)
    e("v_mov_b32 v6, v%d" % vZB)
    vFL, vFZ, vDZ = 14, 15, 9
    e("s_xor_b32 s%d, s2, 0x38" % sCC)
    flag_voff(vFZ, 63)
    e("v_and_b32 v%d, 0x1ff, v%d" % (vFL, vFZ))
    e("v_min_u32 v19, 1, v%d" % vQ)
    e("v_mul_u32_u24 v19, 0x%x, v19" % (FW_OFF - FX_OFF))
    e("v_add_u32 v%d, v19, v%d" % (vFL, vFL))
    e("s_cmp_eq_u32 s%d, 0" % sCC)
    e("s_cselect_b32 s%d, 0x%x, 0" % (sT0, 16 * 2048))
    e("v_lshrrev_b32 v19, 1, v%d" % vQ)
    e("v_mul_u32_u24 v19, s%d, v19" % sT0)
    e("v_add_u32 v%d, v19, v%d" % (vFL, vFL))
    e("s_lshr_b32 s%d, s%d, 4" % (sFXC, sCC))
    e("s_lshl2_add_u32 s%d, s%d, s%d" % (sFXC, sFXC, sRW))
    e("s_lshl_b32 s%d, s%d, 9" % (sFXC, sFXC))
    e("s_mov_b32 s%d, 0" % sGB)
    XI, TM, TW, DR, DI, PR, PI, CWL = 32, 32, 48, 208, 216, 224, 228, 232

    def xin(pl, v, tt):
        return XI + 4 * ((pl * 2 + v) * 2 + tt)
    e("v_add_u32 v26, 0x%x, v%d" % (L_C1, vYW))
    e("v_xor_b32 v27, 64, v26")
    e("v_xor_b32 v28, 128, v26")
    e("v_xor_b32 v29, 192, v26")
    e("s_lshr_b32 s%d, s%d, 1" % (sT0, sRW))
    e("s_lshl_b32 s%d, s%d, 7" % (sT0, sT0))
    e("s_and_b32 s%d, s%d, 1" % (sT1, sRW))
    e("s_lshl3_add_u32 s%d, s%d, s%d" % (sT0, sT1, sT0))
    e("v_xor_b32 v10, s%d, v26" % sT0)
    e("v_xor_b32 v11, 64, v10")
    e("v_lshlrev_b32 v12, 5, v%d" % vC)
    e("v_lshl_add_u32 v12, v%d, 3, v12" % vQ)
    e("s_lshl_b32 s%d, s%d, 10" % (sT0, sRW))
    e("v_add_u32 v12, s%d, v12" % sT0)
    e("s_lshl_b32 s%d, s%d, 13" % (sZR, sCC))
    e("s_add_u32 s%d, s%d, 0x%x" % (sZR, sZR, ZT_OFF))
    e("s_add_u32 s%d, s%d, 4096" % (sZI, sZR))
    e("s_mov_b32 s%d, %s" % (sSC, hexf(2.0 ** -19)))
    e("s_cmp_eq_u32 s%d, 0" % sCC)
    e("s_cselect_b32 s%d, 0x%x, s%d" % (sZI, OOB, sZI))
    e("s_cselect_b32 s%d, %s, s%d" % (sSC, hexf(2.0 ** -20), sSC))
    e("s_mov_b32 s%d, 0" % sPL)
    e("s_lshl_b32 s%d, s%d, 3" % (sT0, sT1))
    e("v_add_u32 v19, s%d, v%d" % (sT0, vQ))
    e("v_xor_b32 v30, v19, v%d" % vC)
    e("v_lshlrev_b32 v30, 4, v30")
    e("v_lshl_add_u32 v30, v%d, 8, v30" % vQ)
    e("v_xor_b32 v24, 64, v30")
    e("v_lshrrev_b32 v8, 3, v%d" % vLANE)
    e("v_and_b32 v9, 7, v%d" % vLANE)
    e("v_lshlrev_b32 v19, 1, v%d" % vQ)
    e("v_xor_b32 v19, v19, v9")
    e("v_lshlrev_b32 v19, 4, v19")
    e("v_lshl_add_u32 v%d, v8, 12, v19" % vDZ)
    k.wait_vm("x1st")
    publish("s%d" % sFX)
    xe_load()
    if P("NOFFT", 0):
        e("s_branch L_final")
    k.stamp(6)
    pre = ([] if CCE else list(cconst())) + ["v_mul_f32 v%d, s%d, v%d" % (T2C + i, sSC, T2C + i) for i in range(16)]
    gl = list(ggen())
    GE = P("GE", 167)
    pre += gl[:GE]
    gl = gl[GE:]
    n2 = max(0, len(pre) - P("PFXL", 0))
    for s_ in pre[:n2]:
        e(s_)
    poll_issue("pfx", vFL, "s%d" % sFXC, 13)
    for s_ in pre[n2:]:
        e(s_)
    k.stamp(7)
    e("s_setprio %d" % P("CPRIO", 1))
    poll_check("pfx", vFL, "s%d" % sFXC, 13)
    k.stamp(8)

    def gbar_lines():
        return ["    s_add_u32 s%d, s%d, 4" % (sGB, sGB)] + garrive_lines(C_F) + gwait_lines(C_F, "s%d" % sGB)

    def gbar():
        k.lines.extend(gbar_lines())
        k.lg.clear()
    e("s_lshl_b32 s%d, s%d, 13" % (sT0, sCC))
    e("s_lshl_b32 s%d, s%d, 11" % (sT1, sRW))
    e("s_add_u32 s%d, s%d, s%d" % (sT0, sT0, sT1))
    e("s_add_u32 s%d, s%d, 0x%x" % (sT2, sT0, X1C_OFF))
    e("s_add_u32 m0, s%d, 0x%x" % (sT1, L_C1))
    k.nop(1)
    e("buffer_load_dwordx4 v30, %s, s%d offen sc1 lds" % (srd(SWS), sT2))
    k.vm.issue("cin")
    e("buffer_load_dwordx4 v24, %s, s%d offen offset:1024 sc1 lds" % (srd(SWS), sT2))
    k.vm.issue("cin")
    e("s_add_u32 s%d, s%d, 0x%x" % (sT2, sT0, WT_OFF))
    for v in range(2):
        e("buffer_load_dwordx4 %s, v%d, %s, s%d offen offset:%d sc1" % (vr(CWL + 4 * v, 4), vL16, srd(SWS), sT2, v * 1024))
        k.vm.issue("cw")
    e("s_add_u32 s%d, s%d, 0x%x" % (sT2, sT2, 256 * 8192))
    e("s_cmp_eq_u32 s%d, 0" % sCC)
    e("s_cselect_b32 s%d, s%d, 0x%x" % (sT2, sT2, OOB))
    for v in range(2):
        e("buffer_load_dwordx4 %s, v%d, %s, s%d offen offset:%d sc1" % (vr(CWL + 8 + 4 * v, 4), vL16, srd(SWS), sT2, v * 1024))
        k.vm.issue("cw")
    k.wait_vm("cin")
    gbar()
    k.stamp(9)
    k.lab("L_ccol")
    for pl in range(2):
        for v in range(2):
            for tt in range(2):
                e("ds_read_b128 %s, v%d offset:%d" % (vr(xin(pl, v, tt), 4), 26 + 2 * tt + pl, v * 4096))
    e("s_waitcnt lgkmcnt(0)")
    e("s_cmp_eq_u32 s%d, 0" % sCC)
    e("s_cbranch_scc1 L_creal")
    k.lab("L_cplx")
    tail.append("L_creal:")
    tail.append("    s_cmp_eq_u32 s%d, 0" % sPL)
    tail.append("    s_cbranch_scc1 L_c0")
    for i in range(16):
        tail.append("    v_mov_b32 v%d, v%d" % (XI + i, XI + 16 + i))
    tail.append("L_c0:")
    for i in range(16):
        tail.append("    v_mov_b32 v%d, 0" % (XI + 16 + i))
    tail.append("    s_nop 1")
    tail.append("    s_branch L_cplx")
    for v in range(2):
        dr, di = vr(DR + 4 * v, 4), vr(DI + 4 * v, 4)
        for tt in range(2):
            mfma(dr, vr(xin(0, v, tt), 4), vr(C64 + 4 * tt, 4), dr if tt else "0")
            mfma(di, vr(xin(1, v, tt), 4), vr(C64 + 4 * tt, 4), di if tt else "0")
            mfma(dr, vr(xin(1, v, tt), 4), vr(S64 + 4 * tt, 4))
            mfma(di, vr(xin(0, v, tt), 4), vr(N64 + 4 * tt, 4))

    def cmul(cr, ci, conj):
        for h in range(2):
            for i in range(4 * h, 4 * h + 4):
                e("v_mul_f32 v%d, v%d, v%d" % (TM + i, DR + i, cr + i))
                e("v_mul_f32 v%d, v%d, v%d" % (TM + 8 + i, DI + i, cr + i))
            for i in range(4 * h, 4 * h + 4):
                if conj:
                    e("v_fma_f32 v%d, v%d, v%d, v%d" % (TM + i, DI + i, ci + i, TM + i))
                    e("v_fma_f32 v%d, -v%d, v%d, v%d" % (TM + 8 + i, DR + i, ci + i, TM + 8 + i))
                else:
                    e("v_fma_f32 v%d, -v%d, v%d, v%d" % (TM + i, DI + i, ci + i, TM + i))
                    e("v_fma_f32 v%d, v%d, v%d, v%d" % (TM + 8 + i, DR + i, ci + i, TM + 8 + i))
        for d in range(4):
            e("v_cvt_pk_bf16_f32 v%d, v%d, v%d" % (PR + d, TM + 2 * d, TM + 2 * d + 1))
            e("v_cvt_pk_bf16_f32 v%d, v%d, v%d" % (PI + d, TM + 8 + 2 * d, TM + 9 + 2 * d))
        k.nop(2)
    cmul(T1C, T1S, True)
    pr, pi = vr(PR, 4), vr(PI, 4)
    for v in range(2):
        dr, di = vr(DR + 4 * v, 4), vr(DI + 4 * v, 4)
        mfma(dr, vr(C32 + 4 * v, 4), pr, "0")
        mfma(di, vr(C32 + 4 * v, 4), pi, "0")
        mfma(dr, vr(S32 + 4 * v, 4), pi)
        mfma(di, vr(N32 + 4 * v, 4), pr)
    k.wait_vm("cw")
    for i in range(8):
        e("v_lshlrev_b32 v%d, 16, v%d" % (TW + i, CWL + i))
        e("v_and_b32 v%d, 0xffff0000, v%d" % (TW + 8 + i, CWL + i))
    cmul(TW, TW + 8, False)
    for v in range(2):
        dr, di = vr(DR + 4 * v, 4), vr(DI + 4 * v, 4)
        mfma(dr, pr, vr(C32 + 4 * v, 4), "0")
        mfma(di, pi, vr(C32 + 4 * v, 4), "0")
        mfma(dr, pi, vr(N32 + 4 * v, 4))
        mfma(di, pr, vr(S32 + 4 * v, 4))
    k.nop(4)
    cmul(T2C, T2S, False)
    for v in range(2):
        e("ds_write_b64 v10, %s offset:%d" % (vr(PR + 2 * v, 2), 8192 + v * 4096))
        e("ds_write_b64 v11, %s offset:%d" % (vr(PI + 2 * v, 2), 8192 + v * 4096))
    e("s_waitcnt lgkmcnt(0)")
    gbar()
    for v in range(2):
        for tt in range(2):
            for pl in range(2):
                e("ds_read_b128 %s, v%d offset:%d" % (vr(xin(pl, v, tt), 4), 26 + 2 * tt + pl, 8192 + v * 4096))
                k.lg.issue(("cy", v, tt))
    for v in range(2):
        dr, di = vr(DR + 4 * v, 4), vr(DI + 4 * v, 4)
        for tt in range(2):
            k.wait_lg(("cy", v, tt))
            mfma(dr, vr(C64 + 4 * tt, 4), vr(xin(0, v, tt), 4), dr if tt else "0")
            mfma(di, vr(C64 + 4 * tt, 4), vr(xin(1, v, tt), 4), di if tt else "0")
            mfma(dr, vr(N64 + 4 * tt, 4), vr(xin(1, v, tt), 4))
            mfma(di, vr(S64 + 4 * tt, 4), vr(xin(0, v, tt), 4))
    for v in range(2):
        if v:
            k.nop(4)
        for d in range(2):
            e("v_cvt_pk_bf16_f32 v%d, v%d, v%d" % (PR + 2 * v + d, DR + 4 * v + 2 * d, DR + 4 * v + 2 * d + 1))
            e("v_cvt_pk_bf16_f32 v%d, v%d, v%d" % (PI + 2 * v + d, DI + 4 * v + 2 * d, DI + 4 * v + 2 * d + 1))
        e("buffer_store_dwordx2 %s, v12, %s, s%d offen offset:%d sc1" % (vr(PR + 2 * v, 2), srd(SWS), sZR, v * 512))
        k.vm.issue("zst")
        e("buffer_store_dwordx2 %s, v12, %s, s%d offen offset:%d sc1" % (vr(PI + 2 * v, 2), srd(SWS), sZI, v * 512))
        k.vm.issue("zst")
    e("s_or_b32 s%d, s%d, s%d" % (sT0, sCC, sPL))
    if not P("NO256", 0):
        e("s_cbranch_scc0 L_csecond")
    sec = ["L_csecond:", "    s_mov_b32 s%d, 1" % sPL, "    s_add_u32 s%d, s%d, 4096" % (sZR, sZR)]
    for i in range(8):
        sec.append("    v_mov_b32 v%d, v%d" % (CWL + i, CWL + 8 + i))
    sec.extend(gbar_lines())
    sec.append("    s_branch L_ccol")
    tail.extend(sec)
    k.stamp(10)
    fs(7, 2)
    e("s_lshr_b32 s%d, s%d, 2" % (sT4, sCC))
    e("s_lshl_b32 s%d, s%d, 6" % (sT1, sRW))
    e("s_add_u32 s%d, s%d, s%d" % (sT4, sT4, sT1))
    e("s_lshl_b32 s%d, s%d, 7" % (sT4, sT4))
    e("s_and_b32 s%d, s%d, 3" % (sT1, sCC))
    e("s_lshl2_add_u32 s%d, s%d, s%d" % (sT4, sT1, sT4))
    e("s_add_u32 s%d, s%d, 0x%x" % (sT4, sT4, FZ_OFF))
    sFZC = sFXC
    e("s_lshl2_add_u32 s%d, s%d, s%d" % (sFZC, sWP, sRW))
    e("s_lshl_b32 s%d, s%d, 11" % (sFZC, sFZC))
    e("s_add_u32 s%d, s%d, 0x%x" % (sFZC, sFZC, FZ_OFF))
    e("s_lshl_b32 s%d, s%d, 19" % (sDT, sRW))
    e("s_lshl_b32 s%d, s%d, 10" % (sT1, sWP))
    e("s_add_u32 s%d, s%d, s%d" % (sDT, sDT, sT1))
    e("s_lshl_b32 s%d, s%d, 7" % (sT1, sA))
    e("s_add_u32 s%d, s%d, s%d" % (sDT, sDT, sT1))
    e("s_add_u32 s%d, s%d, 0x%x" % (sDT, sDT, ZT_OFF - 32768))
    e("s_lshl_b32 s%d, s%d, 14" % (sT2, sRW))
    TRZ = [16, 17, 18, 7]
    for pt in range(4):
        e("v_xor_b32 v%d, %d, v6" % (TRZ[pt], 32 * pt))
    e("s_lshl_b32 s%d, s%d, 6" % (sT1, sRW))
    e("v_xor_b32 v20, s%d, v26" % sT1)
    k.wait_vm("zst")
    fs(7, 3)
    publish("s%d" % sT4)
    e("s_setprio 0")
    for s_ in gl:
        e(s_)
    e("s_setprio 1")
    gwait(C_WT)
    fs(7, 4)
    if P("ZSLP", 0):
        e("s_sleep %d" % P("ZSLP", 0))
    poll_issue("pz", vFZ, "s%d" % sFZC, 30)
    if FS == 7:
        k.wait_vm("pz")
    fs(7, 5)
    poll_check("pz", vFZ, "s%d" % sFZC, 30)
    fs(7, 6)
    k.stamp(11)
    for ee in range(16):
        e("s_add_u32 m0, s%d, %d" % (sT2, LA + ee * 1024))
        e("s_add_u32 s%d, s%d, 32768" % (sDT, sDT))
        e("buffer_load_dwordx4 v%d, %s, s%d offen sc1 lds" % (vDZ, srd(SWS), sDT))
        k.vm.issue("Z")
    fs(7, 7)
    e("s_setprio %d" % P("EPRIO", 0))
    k.wait_vm("Z")
    fs(7, 8)
    gbar()
    fs(7, 9)
    AS, ZF = 208, 128

    def zr(T, pt):
        for hh in range(2):
            r = ZF + ((T % 4) * 4 + pt) * 4 + 2 * hh
            e("ds_read_b64_tr_b16 %s, v%d offset:%d" % (vr(r, 2), TRZ[pt], T * 4096 + hh * 2048))
            k.lg.issue(("ZR", T, pt))
    seq = [(T, pt) for T in range(16) for pt in range(4)]
    LA_ = 6
    for n in range(LA_):
        zr(*seq[n])
    for n, (T, pt) in enumerate(seq):
        if n + LA_ < 64:
            zr(*seq[n + LA_])
        k.wait_lg(("ZR", T, pt))
        c = vr(AS + 4 * pt, 4)
        mfma(c, vr(GB + 4 * T, 4), vr(ZF + ((T % 4) * 4 + pt) * 4, 4), c if T else "0")
    k.nop(8)
    for pt in range(4):
        e("ds_write_b128 v20, %s offset:%d" % (vr(AS + 4 * pt, 4), pt * 4096))
    fs(7, 10)
    e("s_branch L_final")
    tail[0:0] = k.lines
    k.lines = main_lines

    e("s_waitcnt vmcnt(0) lgkmcnt(0)")
    k.vm.clear()
    k.lg.clear()
    e("s_barrier")
    k.stamp(12)
    YP, SV, U2 = 192, 224, 232
    e("v_add_u32 v10, 0x%x, v%d" % (L_C1 - LB, vR0))
    e("v_add_u32 v11, 0x%x, v%d" % (L_C1 - LB, vR1))
    for src in range(4):
        for h in range(2):
            e("ds_read_b128 %s, v%d offset:%d" % (vr(YP + 8 * src + 4 * h, 4), vR0 + h, src * 16384))
            k.lg.issue(("yp", src))
    for h in range(2):
        e("ds_read_b128 %s, v%d" % (vr(SV + 4 * h, 4), 10 + h))
        k.lg.issue("sv")
    for i in range(4):
        e("v_lshlrev_b32 v%d, 16, v%d" % (240 + 2 * i, XV + i))
        e("v_and_b32 v%d, 0xffff0000, v%d" % (241 + 2 * i, XV + i))
    k.wait_lg(("yp", 1))
    for i in range(8):
        e("v_add_f32 v%d, v%d, v%d" % (YP + i, YP + i, YP + 8 + i))
    k.wait_lg(("yp", 3))
    for i in range(8):
        e("v_add_f32 v%d, v%d, v%d" % (YP + 16 + i, YP + 16 + i, YP + 24 + i))
    for i in range(8):
        e("v_add_f32 v%d, v%d, v%d" % (YP + i, YP + i, YP + 16 + i))
    for i in range(8):
        e("v_mul_f32 v%d, %s, v%d" % (U2 + i, hexf(-1.4426950408889634), YP + i))
    for i in range(8):
        e("v_exp_f32 v%d, v%d" % (U2 + i, U2 + i))
    k.wait_lg("sv")
    for i in range(8):
        e("v_mul_f32 v%d, v%d, v%d" % (YP + i, YP + i, SV + i))
    for i in range(8):
        e("v_add_f32 v%d, 1.0, v%d" % (U2 + i, U2 + i))
    for i in range(8):
        e("v_rcp_f32 v%d, v%d" % (U2 + i, U2 + i))
    k.nop(1)
    for i in range(8):
        e("v_fmac_f32 v%d, v%d, v%d" % (240 + i, YP + i, U2 + i))
    for d in range(4):
        e("v_cvt_pk_bf16_f32 v%d, v%d, v%d" % (SV + d, 240 + 2 * d, 241 + 2 * d))
    e("buffer_store_dwordx4 %s, v%d, %s, s%d offen%s" % (vr(SV, 4), vGO, srd(SOUT), sXO, os.environ.get("OFL", "")))
    e("s_or_b32 s%d, s2, s%d" % (sT0, sRW))
    e("s_or_b32 s%d, s%d, s%d" % (sT0, sT0, sHF))
    e("s_cbranch_scc1 L_noep")
    e("s_mov_b32 s%d, 0x%x" % (sT0, EPOCH_OFF))
    publish("s%d" % sT0)
    k.lab("L_noep")
    k.stamp(13)
    if ENC:
        if "ENCB" in os.environ:
            e("s_cmp_lg_u32 s2, %d" % P("ENCB", 0))
            e("s_cbranch_scc1 L_done")
        e("s_waitcnt lgkmcnt(0)")
        e("s_sub_u32 s97, s%d, s66" % (64 + 2 * ENC))
        e("s_add_u32 s97, s97, 6000")
        k.lab("L_espin")
        e("s_memrealtime s[94:95]")
        e("s_waitcnt lgkmcnt(0)")
        e("s_sub_u32 s96, s94, s66")
        e("s_cmp_lt_u32 s96, s97")
        e("s_cbranch_scc1 L_espin")
    elif DIAG:
        e("s_lshl2_add_u32 s%d, s%d, s%d" % (sT0, sHF, sRW))
        e("v_mov_b32 v2, s%d" % sT0)
        k.stamp_flush(SWS, 0, 2, 8)
    k.lab("L_done")
    e("s_endpgm")
    k.lines += tail
    k.lab("L_end")
    return k


HEADER = open(os.path.join(os.path.dirname(os.path.abspath(__file__)), "header.txt")).read()


def main(out):
    k = gen()
    s = HEADER
    s += "; @launch grid=(256,1,1) block=(512,1,1) lds=163840\n"
    s += '.amdgcn_target "amdgcn-amd-amdhsa--gfx950"\n.text\n'
    s += k.text()
    s += '.section .rodata,"a"\n'
    s += descriptor(k.name, 256, 102 if DIAG else 64)
    open(out, "w").write(s)


if __name__ == "__main__":
    main(sys.argv[1] if len(sys.argv) > 1 else "v9.s")
```

```python
import sys, os
from collections import deque
sys.path.insert(0, os.path.dirname(os.path.abspath(__file__)))
from asmlib import *

NAME = "recurrent_scan__spectral_gfnet__dense_activation_relu__prompt_kernel"


def P(name, default):
    return int(os.environ.get(name, default))


X1C_OFF = 0x0200000
WT_OFF = 0x0400000
H_OFF = 0x0800000
ZT_OFF = 0x1000000
FX_OFF = 0x0000000
FW_OFF = 0x0010000
FH_OFF = 0x0020000
FY_OFF = 0x0048000
YX_OFF = 0x1800000
FHB_D = 0x0008000
FZ_OFF = 0x0030000
EPOCH_OFF = 0x0040000
WS_BYTES = 0x2000000
OOB = 0x7f000000
TAGC = 0x9E3779B9
X_BYTES = 2048 * 512 * 2
W_BYTES = 2048 * 257 * 2
W1_BYTES = 512 * 1792 * 2

SX, SWR, SWI, SW1, SW2, SOUT, SWS = 12, 16, 20, 24, 28, 32, 36
sRW, sPB, sCBK, sF0, sHF, sR, sTAG, sA, sWP, sDB = 3, 4, 5, 6, 7, 8, 9, 10, 11, 40
sXO, sRS = 41, 42
sT0, sT1, sT2, sT3, sT4 = 43, 44, 45, 46, 47
sCNT = 49
sXT, sDT = 0, 1

LA, LB, LS = 0, 65536, 131072
L_C1 = LS
L_WT = LS + 16384
L_SCR = LS + 24576
L_CS, L_ST, L_CNT, L_W256, L_DUM = L_SCR, L_SCR + 1024, L_SCR + 3072, L_SCR + 4096, L_SCR + 6144
XSLOT = [LB, LB + 16384, LB + 32768, LB + 49152, LA, LA + 16384, LA + 32768, LA + 49152]

vLANE, vL16, vC, vQ, vTAG, vCNT = 1, 2, 3, 4, 5, 25
vGO, vR0, vR1, vYW, vZB = 0, 22, 23, 21, 124
C_WA2, C_CSA, C_WB1, C_WB2, C_CSB, C_ST, C_WT, C_F, C_E1, C_L1, C_GY, C_FA, C_FB = 0, 4, 8, 12, 16, 20, 24, 28, 32, 36, 40, 44, 48


def srd(n):
    return "s[%d:%d]" % (n, n + 3)


def gen():
    k = K(NAME)
    e = k.e
    tail = []
    FS, ENC = P("FS", 0), P("ENC", 0)
    _stamp = k.stamp

    def stamp_n(i, real=False):
        if ENC:
            if i == 1 or i == ENC:
                _stamp(i, True)
            return
        if FS and 2 <= i <= 13:
            return
        _stamp(i, real)
    k.stamp = stamp_n

    def fs(mode, i):
        if FS == mode:
            _stamp(i)

    side = deque()
    sch = {"gap": 3, "n": 0, "lds": deque()}

    def mfma(d, a, b, c=None):
        e("v_mfma_f32_16x16x32_bf16 %s, %s, %s, %s" % (d, a, b, c if c is not None else d))

    def mf(d, a, b, c=None):
        mfma(d, a, b, c)
        sch["n"] += 1
        if sch["lds"]:
            sch["lds"].popleft()()
        if side and sch["n"] % sch["gap"] == 0:
            side.popleft()()

    def flush_lds():
        while sch["lds"]:
            sch["lds"].popleft()()

    def flush_side():
        flush_lds()
        while side:
            side.popleft()()

    def run(items):
        for f in items:
            f()

    def bf16_round(v):
        e("v_cvt_pk_bf16_f32 v%d, v%d, v%d" % (v, v, v))
        e("v_lshlrev_b32 v%d, 16, v%d" % (v, v))

    def publish_lines(soff):
        return ["    s_mov_b64 exec, 1",
                "    buffer_store_dword v%d, off, %s, %s sc1" % (vTAG, srd(SWS), soff),
                "    s_mov_b64 exec, -1"]

    def publish(soff):
        k.lines.extend(publish_lines(soff))
        k.vm.issue("flag")

    pollno = [0]

    def poll_ld(vaddr, soff, vt):
        return "buffer_load_dword v%d, v%d, %s, %s offen sc1" % (vt, vaddr, srd(SWS), soff)

    def poll_issue(tag, vaddr, soff, vt):
        e(poll_ld(vaddr, soff, vt))
        k.vm.issue(tag)

    def poll_check(tag, vaddr, soff, vt, pre=(), slp=None):
        n = pollno[0]
        pollno[0] += 1
        k.wait_vm(tag)
        e("v_cmp_ne_u32 vcc, v%d, v%d" % (vt, vTAG))
        e("s_cmp_lg_u64 vcc, 0")
        e("s_cbranch_scc1 L_slow%d" % n)
        k.lab("L_back%d" % n)
        tail.append("L_slow%d:" % n)
        tail.extend(pre)
        tail.extend(["    s_mov_b32 s%d, 0" % sCNT,
                     "L_spin%d:" % n,
                     "    s_sleep %d" % (P("SLP", 8) if slp is None else slp),
                     "    s_mov_b64 exec, vcc",
                     "    " + poll_ld(vaddr, soff, vt),
                     "    s_mov_b64 exec, -1",
                     "    s_waitcnt vmcnt(0)",
                     "    v_cmp_ne_u32 vcc, v%d, v%d" % (vt, vTAG),
                     "    s_cmp_lg_u64 vcc, 0",
                     "    s_cbranch_scc0 L_back%d" % n,
                     "    s_add_u32 s%d, s%d, 1" % (sCNT, sCNT),
                     "    s_cmp_lt_u32 s%d, 0x40000" % sCNT,
                     "    s_cbranch_scc1 L_spin%d" % n,
                     "    s_branch L_back%d" % n])

    gbn = [0]

    def gwait_lines(off, target):
        n = gbn[0]
        gbn[0] += 1
        chk = ["    ds_read_b32 v19, v%d offset:%d" % (vCNT, off),
               "    s_waitcnt lgkmcnt(0)",
               "    v_readfirstlane_b32 s%d, v19" % sT0,
               "    s_cmp_lt_u32 s%d, %s" % (sT0, target)]
        tail.append("L_gs%d:" % n)
        tail.append("    s_mov_b32 s%d, 0x400000" % sCNT)
        tail.append("L_gb%d:" % n)
        tail.append("    s_sub_u32 s%d, s%d, 1" % (sCNT, sCNT))
        tail.append("    s_cbranch_scc1 L_gx%d" % n)
        tail.append("    s_sleep %d" % (4 if off == C_WT else 1))
        tail.extend(chk)
        tail.append("    s_cbranch_scc1 L_gb%d" % n)
        tail.append("    s_branch L_gx%d" % n)
        return chk + ["    s_cbranch_scc1 L_gs%d" % n, "L_gx%d:" % n]

    def garrive_lines(off):
        return ["    v_mov_b32 v19, 1",
                "    s_mov_b64 exec, 1",
                "    ds_add_u32 v%d, v19 offset:%d" % (vCNT, off),
                "    s_mov_b64 exec, -1"]

    def garrive(off):
        k.lines.extend(garrive_lines(off))
        k.lg.issue("arr")

    def gwait(off, target="4"):
        k.lines.extend(gwait_lines(off, target))
        k.lg.clear()

    def flag_voff(vv, n):
        e("v_min_u32 v19, %d, v%d" % (n, vLANE))
        e("v_lshrrev_b32 v%d, 2, v19" % vv)
        e("v_lshlrev_b32 v%d, 7, v%d" % (vv, vv))
        e("v_and_b32 v19, 3, v19")
        e("v_lshl_add_u32 v%d, v19, 2, v%d" % (vv, vv))

    def xread_addr(v0_):
        e("v_lshrrev_b32 v19, 1, v%d" % vC)
        e("v_xor_b32 v19, v19, v%d" % vQ)
        e("v_lshlrev_b32 v19, 4, v19")
        e("v_lshl_add_u32 v19, v%d, 7, v19" % vC)
        e("s_lshl_b32 s%d, s%d, 12" % (sT0, sRW))
        e("v_add_u32 v%d, s%d, v19" % (v0_, sT0))
        e("v_xor_b32 v%d, 64, v%d" % (v0_ + 1, v0_))
        e("v_add_u32 v%d, 0x%x, v%d" % (v0_ + 2, LB, v0_))
        e("v_add_u32 v%d, 0x%x, v%d" % (v0_ + 3, LB, v0_ + 1))

    def xread(dst, v0_, kk, u, ks, tag):
        hi = XSLOT[kk] >= LB
        e("ds_read_b128 %s, v%d offset:%d" % (dst, v0_ + ks + (2 if hi else 0), XSLOT[kk] % 65536 + u * 2048))
        k.lg.issue(tag)

    def tag_setup():
        e("s_waitcnt lgkmcnt(0)")
        k.lg.clear()
        e("s_add_u32 s%d, s%d, 0x%x" % (sTAG, sTAG, TAGC))
        e("v_mov_b32 v%d, s%d" % (vTAG, sTAG))

    def late_setup(hf):
        e("v_lshrrev_b32 v19, 2, v%d" % vC)
        e("v_lshl_add_u32 v19, v%d, 2, v19" % vQ)
        e("v_bfe_u32 v30, v19, 1, 2")
        e("v_lshlrev_b32 v19, 7, v19")
        e("v_and_b32 v31, 1, v%d" % vC)
        e("v_lshl_add_u32 v19, v31, 3, v19")
        e("v_lshlrev_b32 v30, 1, v30")
        e("v_bfe_u32 v31, v%d, 1, 1" % vC)
        e("v_or_b32 v30, v30, v31")
        e("v_lshl_add_u32 v%d, v30, 4, v19" % vZB)
        e("v_lshrrev_b32 v19, 3, v%d" % vLANE)
        if hf:
            e("v_add_u32 v19, 8, v19")
        e("v_and_b32 v30, 7, v%d" % vLANE)
        e("v_lshlrev_b32 v%d, 15, v19" % vGO)
        e("v_lshl_add_u32 v%d, v30, 4, v%d" % (vGO, vGO))
        e("v_lshlrev_b32 v30, 1, v30")
        e("v_xor_b32 v30, v30, v19")
        e("v_lshlrev_b32 v30, 4, v30")
        e("v_lshl_add_u32 v30, v19, 8, v30")
        e("s_lshl_b32 s%d, s%d, 12" % (sT0, sRW))
        e("v_add_u32 v%d, s%d, v30" % (vR0, sT0))
        e("v_xor_b32 v%d, 16, v%d" % (vR1, vR0))
        e("v_xor_b32 v%d, v%d, v%d" % (vYW, vQ, vC))
        e("v_lshlrev_b32 v%d, 4, v%d" % (vYW, vYW))
        e("v_lshl_add_u32 v%d, v%d, 8, v%d" % (vYW, vC, vYW))
        e("s_lshl_b32 s%d, s%d, 19" % (sXO, sWP))
        e("s_lshl2_add_u32 s%d, s%d, s%d" % (sT0, sA, sRW))
        e("s_lshl_b32 s%d, s%d, 10" % (sT0, sT0))
        e("s_add_u32 s%d, s%d, s%d" % (sXO, sXO, sT0))
        e("s_lshl_b32 s%d, s%d, 7" % (sT0, sDB))
        e("s_add_u32 s%d, s%d, s%d" % (sXO, sXO, sT0))
    XV = 248

    def xe_load():
        e("buffer_load_dwordx4 %s, v%d, %s, s%d offen" % (vr(XV, 4), vGO, srd(SX), sXO))
        k.vm.issue("xe")

    e("s_cmp_ge_u32 s2, 256")
    e("s_cbranch_scc1 L_done")
    k.stamp(0)
    k.stamp(1, real=True)
    e("s_load_dwordx2 s[%d:%d], s[0:1], 0" % (SX, SX + 1))
    e("s_load_dwordx2 s[%d:%d], s[0:1], 32" % (SW1, SW1 + 1))
    e("s_load_dwordx2 s[%d:%d], s[0:1], 64" % (SWS, SWS + 1))
    e("s_load_dwordx2 s[%d:%d], s[0:1], 8" % (SWR, SWR + 1))
    e("s_load_dwordx2 s[%d:%d], s[0:1], 16" % (SWI, SWI + 1))
    e("s_load_dwordx2 s[%d:%d], s[0:1], 40" % (SW2, SW2 + 1))
    e("s_load_dwordx2 s[%d:%d], s[0:1], 48" % (SOUT, SOUT + 1))
    e("v_lshrrev_b32 v19, 6, v0")
    e("s_getpc_b64 s[%d:%d]" % (sT1, sT2))
    k.lab("L_pc")
    e("s_andn2_b32 s%d, s2, 7" % sT0)
    e("v_add_lshl_u32 v20, v19, s%d, 7" % sT0)
    e("v_min_u32 v20, L_end-L_pc-4, v20")
    e("v_mov_b32 v21, s%d" % sT2)
    e("v_add_co_u32 v20, vcc, s%d, v20" % sT1)
    e("v_readfirstlane_b32 s%d, v19" % sHF)
    e("v_and_b32 v%d, 63, v0" % vLANE)
    e("v_addc_co_u32 v21, vcc, 0, v21, vcc")
    e("global_load_dword v247, v[20:21], off")
    k.vm.issue("touch")
    for s_, nb in ((SX, X_BYTES), (SWR, W_BYTES), (SWI, W_BYTES), (SW1, W1_BYTES), (SW2, W1_BYTES), (SOUT, X_BYTES), (SWS, WS_BYTES)):
        e("s_mov_b32 s%d, 0x%x" % (s_ + 2, nb))
        e("s_mov_b32 s%d, 0x00020000" % (s_ + 3))
    e("v_and_b32 v%d, 15, v0" % vC)
    e("v_bfe_u32 v%d, v0, 4, 2" % vQ)
    e("v_lshlrev_b32 v%d, 4, v%d" % (vL16, vLANE))
    e("v_mov_b32 v%d, 0x%x" % (vCNT, L_CNT))
    e("s_and_b32 s%d, s2, 7" % sA)
    e("s_lshr_b32 s%d, s2, 6" % sWP)
    e("s_bfe_u32 s%d, s2, 0x30003" % sDB)
    e("s_and_b32 s%d, s%d, 3" % (sRW, sHF))
    e("s_lshr_b32 s%d, s%d, 1" % (sPB, sA))
    e("s_lshl2_add_u32 s%d, s%d, s%d" % (sPB, sPB, sWP))
    e("s_and_b32 s%d, s%d, 1" % (sT0, sA))
    e("s_lshl3_add_u32 s%d, s%d, s%d" % (sCBK, sT0, sDB))
    e("s_lshl1_add_u32 s%d, s%d, s%d" % (sR, sWP, sDB))
    e("s_and_b32 s%d, s%d, 7" % (sR, sR))
    e("s_lshl2_add_u32 s%d, s%d, s%d" % (sRS, sPB, sRW))
    e("s_lshr_b32 s%d, s%d, 1" % (sA, sPB))
    e("s_and_b32 s%d, s%d, 1" % (sT3, sPB))
    e("s_lshl1_add_u32 s%d, s%d, s%d" % (sWP, sT3, sT0))
    e("s_lshr_b32 s%d, s%d, 2" % (sHF, sHF))
    e("s_cbranch_scc1 L_fft")
    q_vm = list(k.vm.q)

    sXB, sM4, sM2, sHS, sFH, sHB, sFHC, sW2B = 48, 57, 58, 59, 60, 61, 62, 63
    TV = [50, 51, 52, 53, 54, 55, 56]
    sRSW, sCG, sRB = sPB, sHF, sCBK
    e("s_lshl_b32 s%d, s%d, 20" % (sXB, sT3))
    e("s_lshl2_add_u32 s%d, s%d, s%d" % (sT1, sA, sRW))
    e("s_lshl_b32 s%d, s%d, 10" % (sT1, sT1))
    e("s_add_u32 s%d, s%d, s%d" % (sXB, sXB, sT1))
    e("v_lshrrev_b32 v10, 3, v%d" % vLANE)
    e("v_and_b32 v12, 7, v%d" % vLANE)
    e("v_xor_b32 v6, v12, v%d" % vQ)
    e("v_lshlrev_b32 v6, 4, v6")
    e("v_lshl_add_u32 v6, v10, 15, v6")
    e("v_xor_b32 v7, 64, v6")
    e("v_add_u32 v7, 0x40000, v7")
    e("s_lshl_b32 s%d, s%d, 12" % (sM4, sRW))
    e("s_lshl_b32 s%d, s%d, 11" % (sM2, sRW))
    e("s_sub_u32 s%d, s%d, s%d" % (sF0, sCBK, sT0))
    e("s_lshl_b32 s%d, s%d, 8" % (sF0, sF0))
    e("s_cmp_eq_u32 s%d, 7" % sDB)
    e("s_cselect_b32 s%d, 0x%x, s%d" % (sF0, 0x08000000, sF0))
    e("s_waitcnt lgkmcnt(0)")
    e("s_load_dword s%d, s[%d:%d], 0x%x" % (sTAG, SWS, SWS + 1, EPOCH_OFF))

    def xdma(kk):
        def item(ee):
            def f():
                e("s_add_u32 m0, s%d, %d" % (sM4, XSLOT[kk] + ee * 1024))
                if ee == 0:
                    e("s_add_u32 s%d, s%d, %d" % (sXT, sR, kk))
                    e("s_and_b32 s%d, s%d, 7" % (sXT, sXT))
                    e("s_lshl_b32 s%d, s%d, 7" % (sXT, sXT))
                    e("s_add_u32 s%d, s%d, s%d" % (sXT, sXT, sXB))
                elif ee == 2:
                    e("s_add_u32 s%d, s%d, 0x80000" % (sXT, sXT))
                else:
                    k.nop(1)
                e("buffer_load_dwordx4 v%d, %s, s%d offen lds" % (6 + (ee & 1), srd(SX), sXT))
                k.vm.issue(("X", kk))
            return f
        return [item(ee) for ee in range(4)]

    def w1dma(reg, kk):
        off = " offset:128" if reg else ""
        lb = (LA - 128 if reg else LB) + kk * 8192

        def f0():
            e("s_add_u32 s%d, s%d, %d" % (sDT, sR, kk))
            e("s_and_b32 s%d, s%d, 7" % (sDT, sDT))
            e("s_mul_i32 s%d, s%d, %d" % (sDT, sDT, 64 * 3584))
            e("s_add_u32 m0, s%d, %d" % (sM2, lb + 128))
            e("s_add_u32 s%d, s%d, s%d" % (sDT, sDT, sF0))
            if reg:
                e("s_add_u32 s%d, s%d, 128" % (sDT, sDT))
            else:
                e("s_add_u32 m0, s%d, %d" % (sM2, lb))
                k.nop(1)
            e("buffer_load_dwordx4 v8, %s, s%d offen lds" % (srd(SW1), sDT))
            k.vm.issue(("W1", reg, kk))

        def f1():
            e("s_add_u32 m0, s%d, %d" % (sM2, (LA if reg else LB) + kk * 8192 + 1024))
            k.nop(1)
            e("buffer_load_dwordx4 v9, %s, s%d offen lds" % (srd(SW1), sDT))
            k.vm.issue(("W1", reg, kk))
        return [f0, f1]

    def mtouch(sr_):
        e("s_lshl2_add_u32 s%d, s2, s%d" % (sT0, sRW))
        e("s_mul_i32 s%d, s%d, %d" % (sT0, sT0, 14 * 128))
        e("v_lshlrev_b32 v19, 7, v%d" % vLANE)
        e("s_mov_b32 m0, 0x%x" % L_DUM)
        e("s_mov_b64 exec, 0x3fff")
        e("buffer_load_dword v19, %s, s%d offen lds" % (srd(sr_), sT0))
        k.vm.issue("touch")
        e("s_mov_b64 exec, -1")
    T1P, T2P = P("T1P", 1), P("T2P", 4)

    def touches(pos):
        if T1P == pos:
            mtouch(SW1)
        if T2P == pos:
            mtouch(SW2)
    run(xdma(0))
    touches(0)
    run(xdma(1))
    touches(1)
    k.stamp(2)
    e("s_lshl_b32 s%d, s%d, 4" % (sT0, sRW))
    e("v_add_u32 v11, s%d, v10" % sT0)
    e("v_mul_u32_u24 v11, 3584, v11")
    e("v_and_b32 v13, 1, v%d" % vQ)
    e("v_lshlrev_b32 v13, 1, v13")
    e("v_xor_b32 v13, v13, v12")
    e("v_lshl_add_u32 v8, v13, 4, v11")
    e("v_xor_b32 v13, 4, v13")
    e("v_lshl_add_u32 v9, v13, 4, v11")
    e("v_add_u32 v9, %d, v9" % (8 * 3584))
    vWS, vWW, vWR, vD2 = 15, 14, 13, 24
    e("v_lshlrev_b32 v15, 13, v10")
    e("v_lshl_add_u32 v15, v12, 4, v15")
    e("s_lshl_b32 s%d, s%d, 1" % (sT0, sRW))
    e("v_xor_b32 v14, s%d, v12" % sT0)
    e("v_lshlrev_b32 v14, 4, v14")
    e("v_lshl_add_u32 v14, v%d, 7, v14" % vLANE)
    e("v_add_u32 v14, 0x%x, v14" % L_WT)
    e("v_xor_b32 v13, v10, v12")
    e("v_lshlrev_b32 v13, 4, v13")
    e("v_lshl_add_u32 v13, v10, 7, v13")
    e("s_add_u32 s%d, s%d, 0x%x" % (sT0, sM2, L_WT))
    e("v_add_u32 v13, s%d, v13" % sT0)
    e("v_lshlrev_b32 v19, 1, v%d" % vQ)
    e("v_xor_b32 v19, v19, v12")
    e("v_lshlrev_b32 v19, 4, v19")
    e("v_lshl_add_u32 v%d, v10, 10, v19" % vD2)
    xread_addr(26)
    e("v_mov_b32 v19, 0")
    e("v_lshl_add_u32 v30, v%d, 2, v%d" % (vC, vCNT))
    e("ds_write_b32 v30, v19")
    XF, AF, ACC, HO, CS, ONES = 128, 32, 64, 32, 112, 116
    TRB = [16, 17, 18, 20]
    e("v_lshrrev_b32 v19, 2, v%d" % vC)
    e("v_lshl_add_u32 v30, v%d, 3, v19" % vQ)
    e("v_lshlrev_b32 v30, 7, v30")
    e("v_and_b32 v31, 1, v%d" % vC)
    e("v_lshl_add_u32 v30, v31, 3, v30")
    e("v_bfe_u32 v19, v%d, 3, 1" % vC)
    e("v_and_b32 v31, 1, v%d" % vQ)
    e("v_lshl_or_b32 v19, v31, 1, v19")
    e("v_lshlrev_b32 v19, 1, v19")
    e("v_bfe_u32 v31, v%d, 1, 1" % vC)
    e("v_or_b32 v19, v19, v31")
    e("v_lshl_add_u32 v30, v19, 4, v30")
    e("v_add_u32 v30, 0x%x, v30" % LB)
    for l in range(4):
        e("v_xor_b32 v%d, %d, v30" % (TRB[l], 32 * l))
    vCSA, RN, C1 = 99, 120, [108, 112, 116, 124]
    TR2 = [100, 101, 102, 103]
    HV = [104, 105, 106, 107]
    vFH = 106
    def setup_a():
        e("v_lshlrev_b32 v%d, 4, v%d" % (vCSA, vQ))
        e("v_add_u32 v%d, 0x%x, v%d" % (vCSA, L_CS, vCSA))
        e("s_lshl_b32 s%d, s%d, 9" % (sT0, sRW))
        e("s_add_u32 s%d, s%d, 0x%x" % (sT0, sT0, L_ST))
        e("v_lshl_add_u32 v96, v%d, 2, s%d" % (vC, sT0))
        e("s_mul_i32 s%d, s%d, %d" % (sHB, sRS, 2 * 56 * 1024))
        e("s_add_u32 s%d, s%d, 0x%x" % (sHB, sHB, H_OFF))
        e("s_lshl4_add_u32 s%d, s%d, s%d" % (sHS, sF0, sHB))
        e("s_and_b32 s%d, s2, 1" % sT2)
        e("s_lshl1_add_u32 s%d, s%d, s%d" % (sFHC, sPB, sT2))
        e("s_lshl2_add_u32 s%d, s%d, s%d" % (sFHC, sFHC, sRW))
        e("s_lshl_b32 s%d, s%d, 7" % (sFHC, sFHC))
        e("s_add_u32 s%d, s%d, 0x%x" % (sFHC, sFHC, FH_OFF))
        e("s_lshl2_add_u32 s%d, s%d, s%d" % (sFH, sDB, sFHC))
        e("s_mul_i32 s%d, s%d, 7" % (sT0, sT2))
        e("s_cmp_eq_u32 s%d, 7" % sR)
        e("s_cselect_b32 s%d, 0, s%d" % (sT1, sR))
        for i in range(7):
            e("s_add_u32 s%d, s%d, s%d" % (TV[i], sT1, sT0))
            if i < 6:
                e("s_add_u32 s%d, s%d, 1" % (sT1, sT1))
                e("s_cmp_eq_u32 s%d, 7" % sT1)
                e("s_cselect_b32 s%d, 0, s%d" % (sT1, sT1))
        e("s_lshl_b32 s%d, s%d, 7" % (sW2B, sDB))
        e("s_lshl_b32 s%d, s%d, 14" % (sT0, sRW))
        e("s_add_u32 s%d, s%d, s%d" % (sW2B, sW2B, sT0))
        e("s_mul_i32 s%d, s%d, %d" % (sT0, sT2, 56 * 1024))
        e("v_add_u32 v%d, s%d, v%d" % (HV[0], sT0, vL16))
        e("s_sub_u32 s%d, %d, s%d" % (sT0, 56 * 1024, sT0))
        e("v_add_u32 v%d, s%d, v%d" % (HV[1], sT0, vL16))
        e("v_min_u32 v19, 6, v%d" % vLANE)
        e("v_lshlrev_b32 v%d, 2, v19" % vFH)
        late_setup(0)
        e("v_add_u32 v30, 0x%x, v%d" % (LB, vZB))
        for l in range(4):
            e("v_xor_b32 v%d, %d, v30" % (TR2[l], 32 * l))

    setup_a()
    run(xdma(2))
    run(xdma(3))
    touches(2)
    tag_setup()
    k.stamp(3)

    def X(u, T):
        return vr(XF + (T * 2 + u) * 4, 4)

    WR16 = 64

    def wloads():
        items = []

        def head():
            e("s_lshr_b32 s%d, s2, 5" % sRSW)
            e("s_and_b32 s%d, s2, 7" % sT1)
            e("s_lshl3_add_u32 s%d, s%d, s%d" % (sRSW, sT1, sRSW))
            e("s_and_b32 s%d, s%d, 3" % (sCG, sDB))
            e("s_lshr_b32 s%d, s%d, 4" % (sT1, sRSW))
            e("s_lshl_b32 s%d, s%d, 4" % (sT1, sT1))
            e("s_lshl1_add_u32 s%d, s%d, s%d" % (sT1, sRW, sT1))
            e("s_and_b32 s%d, s%d, 1" % (sT2, sRSW))
            e("s_lshl3_add_u32 s%d, s%d, s%d" % (sT1, sT2, sT1))
            e("s_bfe_u32 s%d, s%d, 0x30001" % (sT2, sRSW))
            e("s_lshl_b32 s%d, s%d, 8" % (sT2, sT2))
            e("s_add_u32 s%d, s%d, s%d" % (sT1, sT1, sT2))
            e("s_mul_i32 s%d, s%d, 514" % (sT1, sT1))
            e("s_lshl_b32 s%d, s%d, 7" % (sT4, sCG))
            e("s_add_u32 s%d, s%d, s%d" % (sT4, sT4, sT1))
            e("v_lshlrev_b32 v11, 1, v%d" % vLANE)
            e("v_and_b32 v19, 3, v%d" % vLANE)
            e("v_mul_u32_u24 v19, 32896, v19")
            e("v_bfe_u32 v30, v%d, 2, 1" % vLANE)
            e("v_mul_u32_u24 v30, 514, v30")
            e("v_add_u32 v19, v19, v30")
            e("s_cmp_eq_u32 s%d, 3" % sCG)
            e("s_cselect_b32 s%d, s%d, 0x%x" % (sT1, sT1, OOB))
            e("buffer_load_ushort v120, v19, %s, s%d offen offset:512" % (srd(SWR), sT1))
            k.vm.issue("wg")
            e("buffer_load_ushort v121, v19, %s, s%d offen offset:512" % (srd(SWI), sT1))
            k.vm.issue("wg")
        items.append(head)
        nt = " nt" if P("NTW", 1) else ""
        for r in range(4):
            def f(r=r):
                if r:
                    e("s_add_u32 s%d, s%d, 32896" % (sT4, sT4))
                for cb in range(2):
                    for arr, sr_ in ((0, SWR), (1, SWI)):
                        e("buffer_load_ushort v%d, v11, %s, s%d offen offset:%d%s" % (WR16 + 8 * cb + 4 * arr + r, srd(sr_), sT4, 514 * cb, nt))
                        k.vm.issue("wg")
            items.append(f)
        return items

    def wt_a():
        k.wait_vm("wg")
        for cb in range(2):
            for r in range(4):
                e("v_lshl_or_b32 v%d, v%d, 16, v%d" % (WR16 + 8 * cb + r, WR16 + 8 * cb + 4 + r, WR16 + 8 * cb + r))
        e("v_lshl_or_b32 v120, v121, 16, v120")
        e("ds_write_b128 v%d, %s" % (vWW, vr(WR16, 4)))
        k.lg.issue("wtw")
        e("v_xor_b32 v19, 16, v%d" % vWW)
        e("ds_write_b128 v19, %s" % vr(WR16 + 8, 4))
        k.lg.issue("wtw")
        e("s_lshl_b32 s%d, s%d, 5" % (sT0, sRW))
        e("s_add_u32 s%d, s%d, 0x%x" % (sT0, sT0, L_W256))
        e("v_lshl_add_u32 v19, v%d, 2, s%d" % (vLANE, sT0))
        e("s_mov_b64 exec, 0xff")
        e("ds_write_b32 v19, v120")
        k.lg.issue("wtw")
        e("s_mov_b64 exec, -1")

    def wt_b():
        for h in range(2):
            e("ds_read_b128 %s, v%d offset:%d" % (vr(WR16 + 4 * h, 4), vWR, 1024 * h))
            k.lg.issue("wtr")
        e("v_add_u32 v19, 0x%x, v%d" % (L_W256, vL16))
        e("ds_read_b128 %s, v19" % vr(WR16 + 8, 4))
        k.lg.issue("wtr")

    def wt_c():
        k.wait_lg("wtr")
        e("s_lshl2_add_u32 s%d, s%d, s%d" % (sT2, sCG, sRW))
        e("s_lshl_b32 s%d, s%d, 17" % (sT0, sT2))
        e("s_lshl_b32 s%d, s%d, 7" % (sT1, sRSW))
        e("s_add_u32 s%d, s%d, s%d" % (sT0, sT0, sT1))
        e("s_add_u32 s%d, s%d, 0x%x" % (sT0, sT0, WT_OFF))
        e("buffer_store_dwordx4 %s, v%d, %s, s%d offen sc1" % (vr(WR16, 4), vWS, srd(SWS), sT0))
        k.vm.issue("wtst")
        e("s_add_u32 s%d, s%d, 0x10000" % (sT0, sT0))
        e("buffer_store_dwordx4 %s, v%d, %s, s%d offen sc1" % (vr(WR16 + 4, 4), vWS, srd(SWS), sT0))
        k.vm.issue("wtst")
        e("s_add_u32 s%d, s%d, 0x%x" % (sT1, sT1, WT_OFF + 256 * 8192))
        e("s_cmp_eq_u32 s%d, 12" % sT2)
        e("s_cselect_b32 s%d, s%d, 0x%x" % (sT1, sT1, OOB))
        e("s_mov_b64 exec, 0xff")
        e("buffer_store_dwordx4 %s, v%d, %s, s%d offen sc1" % (vr(WR16 + 8, 4), vL16, srd(SWS), sT1))
        k.vm.issue("wtst")
        e("s_mov_b64 exec, -1")

    def wt_d():
        e("s_lshl2_add_u32 s%d, s%d, s%d" % (sT2, sCG, sRW))
        e("s_lshr_b32 s%d, s%d, 2" % (sT1, sRSW))
        e("s_lshl4_add_u32 s%d, s%d, s%d" % (sT0, sT2, sT1))
        e("s_lshl_b32 s%d, s%d, 7" % (sT0, sT0))
        e("s_and_b32 s%d, s%d, 3" % (sT1, sRSW))
        e("s_lshl2_add_u32 s%d, s%d, s%d" % (sT0, sT1, sT0))
        e("s_add_u32 s%d, s%d, 0x%x" % (sT0, sT0, FW_OFF))
        e("s_add_u32 s%d, s%d, 0x%x" % (sT1, sT0, 4 * 2048))
        e("s_cmp_eq_u32 s%d, 12" % sT2)
        e("s_cselect_b32 s%d, s%d, 0x%x" % (sT1, sT1, OOB))
        k.wait_vm("wtst")
        publish("s%d" % sT0)
        publish("s%d" % sT1)
        e("s_mov_b32 s%d, 0" % sHF)

    def xstage(s_):
        for kk in (2 * s_, 2 * s_ + 1):
            for u in range(2):
                for ks in range(2):
                    xread(X(u, 2 * kk + ks), 26, kk, u, ks, ("XR", s_))
    WPOS = P("WPOS", -1)
    if WPOS < 0:
        run(wloads())
    for s_ in range(4):
        k.wait_vm(("X", 2 * s_ + 1))
        if s_:
            k.wait_lg([("XR", s_ - 1)] + (["wtw"] if s_ == WPOS + 3 else []))
        e("s_barrier")
        fs(6, 2 + s_)
        xstage(s_)
        if s_ == WPOS + 3:
            wt_b()
        if s_ < 2:
            run(xdma(4 + 2 * s_) + xdma(5 + 2 * s_))
        else:
            for kk in range(4 * (s_ - 2), 4 * (s_ - 1)):
                run(w1dma(0, kk))
        if s_ == WPOS:
            run(wloads())
        touches(3 + s_)
        if s_ == WPOS + 2:
            wt_a()
        if s_ == WPOS + 3:
            wt_c()
    k.wait_vm([("W1", 0, kk) for kk in range(4)])
    k.wait_lg(("XR", 3))
    e("s_barrier")
    k.stamp(4)
    fs(6, 6)


    def rdA(reg, T):
        items = []
        for l in range(4):
            for hh in range(2):
                def f(l=l, hh=hh):
                    e("ds_read_b64_tr_b16 %s, v%d offset:%d" % (vr(AF + (T & 1) * 16 + 4 * l + 2 * hh, 2), TRB[l], T * 4096 + hh * 512))
                    k.lg.issue(("A", reg, T))
                items.append(f)
        return items

    def gpass(reg, hooks, mid):
        fs(8 + reg, 2)
        run(rdA(reg, 0))
        for T in range(16):
            k.wait_lg(("A", reg, T))
            if T == 7:
                gwait(mid)
            if T + 1 < 16:
                sch["lds"].extend(rdA(reg, T + 1))
            for l in range(4):
                a = vr(AF + (T & 1) * 16 + 4 * l, 4)
                for u in range(2):
                    c = vr(ACC + (l * 2 + u) * 4, 4)
                    mf(c, a, X(u, T), c if T else "0")
            flush_lds()
            run(hooks.get(T, []))
            if T < 11:
                fs(8 + reg, 3 + T)
        flush_side()

    def c1_fetch(reg):
        def f():
            gwait(C_FB if reg else C_FA)
            if reg == 0:
                for u in range(2):
                    e("ds_read2_b32 %s, v96 offset0:%d offset1:%d" % (vr(RN + 2 * u, 2), 32 + 16 * u, 16 * u))
                    k.lg.issue(("C1", reg))
            for l in range(4):
                e("ds_read_b128 %s, v%d offset:%d" % (vr(C1[l], 4), vCSA, 256 * reg + 64 * l))
                k.lg.issue(("C1", reg))
        return f

    def h_out(reg, cw, tag):
        garrive(cw)
        e("s_add_u32 s%d, s%d, %d" % (sT2, sHS, 2048 * reg))
        e("s_add_u32 s%d, s%d, %d" % (sT3, sHS, 2048 * reg + 56 * 1024))
        k.wait_lg(("C1", reg))
        for pr in range(2):
            for u in range(2):
                o = HO + (pr * 2 + u) * 4
                for l in (2 * pr, 2 * pr + 1):
                    a = ACC + (l * 2 + u) * 4
                    for r in (0, 2):
                        e("v_pk_fma_f32 %s, %s, %s, %s op_sel_hi:[1,0,1]" % (vr(a + r, 2), vr(C1[l] + r, 2), vr(RN + 2 * u, 2), vr(a + r, 2)))
                for l in (2 * pr, 2 * pr + 1):
                    a = ACC + (l * 2 + u) * 4
                    e("v_cvt_pk_bf16_f32 v%d, v%d, v%d" % (o + (l & 1) * 2, a, a + 1))
                    e("v_cvt_pk_bf16_f32 v%d, v%d, v%d" % (o + (l & 1) * 2 + 1, a + 2, a + 3))
                for i in range(4):
                    e("v_pk_max_i16 v%d, v%d, 0" % (o + i, o + i))
                e("buffer_store_dwordx4 %s, v%d, %s, s%d offen offset:%d sc1" % (vr(o, 4), vL16, srd(SWS), sT2 + u, 1024 * pr))
                k.vm.issue(tag)

    def land(reg, lo, hi, cw):
        def f():
            k.wait_vm([("W1", reg, kk) for kk in range(lo, hi)])
            garrive(cw)
        return f

    sch["gap"] = P("GAPA", 4)
    for kk in range(8):
        side.extend(w1dma(1, kk))
    ha = {3: [land(0, 4, 8, C_WA2)], 11: [land(1, 0, 4, C_WB1)], P("WTD", 2): [wt_d], 13: [land(1, 4, 8, C_WB2)], 14: [c1_fetch(0)]}
    gpass(0, ha, C_WA2)
    k.stamp(5)
    h_out(0, C_CSA, "ha")
    k.stamp(6)

    for l in range(4):
        e("v_subrev_u32 v%d, 0x%x, v%d" % (TRB[l], LB, TRB[l]))
    gwait(C_WB1)

    def w2_dma(late, j):
        lb = (LA if late else LB) + j * 8192

        def f0():
            e("s_add_u32 m0, s%d, %d" % (sM2, lb))
            e("s_lshl_b32 s%d, s%d, 17" % (sDT, TV[j]))
            e("s_add_u32 s%d, s%d, s%d" % (sDT, sDT, sW2B))
            if late:
                e("s_add_u32 s%d, s%d, 0x10000" % (sDT, sDT))
            e("buffer_load_dwordx4 v%d, %s, s%d offen lds" % (vD2, srd(SW2), sDT))
            k.vm.issue(("W2", late))

        def f1():
            e("s_add_u32 m0, s%d, %d" % (sM2, lb + 1024))
            e("s_add_u32 s%d, s%d, 8192" % (sDT, sDT))
            e("buffer_load_dwordx4 v%d, %s, s%d offen lds" % (vD2, srd(SW2), sDT))
            k.vm.issue(("W2", late))
        return [f0, f1]

    def rdW(n):
        items = []
        for l in range(4):
            for hh in range(2):
                def f(l=l, hh=hh):
                    e("ds_read_b64_tr_b16 %s, v%d offset:%d" % (vr(AF + (n & 1) * 16 + 4 * l + 2 * hh, 2), TR2[l], (n % 14) * 4096 + hh * 2048))
                    k.lg.issue(("W2R", n))
                items.append(f)
        return items

    def hload(n):
        late, m = n // 14, n % 14

        def item(u):
            def f():
                if u == 0 and m % 2 == 0:
                    e("s_lshl_b32 s%d, s%d, 12" % (sXT, TV[m // 2]))
                    e("s_add_u32 s%d, s%d, s%d" % (sXT, sXT, sHB))
                e("buffer_load_dwordx4 %s, v%d, %s, s%d offen offset:%d sc1" % (X(u, m), HV[u], srd(SWS), sXT, 2048 * late + 1024 * (m & 1)))
                k.vm.issue(("H", n))
            return f
        return [item(0), item(1)]

    def pubHA():
        k.wait_vm("ha")
        publish("s%d" % sFH)
        e("s_add_u32 s%d, s%d, 0x%x" % (sFH, sFH, FHB_D))

    def landW(late, cw):
        def f():
            k.wait_vm(("W2", late))
            garrive(cw)
        return f
    hb = {T: [] for T in range(16)}
    hb[P("W2T0", 0)].append(lambda: gwait(C_CSA))
    hb[P("W2T0", 0)].append(lambda: [side.extend(w2_dma(0, j)) for j in range(7)])
    hb[14].append(c1_fetch(1))
    hb[P("PHA", 3)].append(pubHA)
    HLA = P("HLA", 6)
    HE = P("HE", 16)
    hb[min(HE - 2, 13)].append(lambda: poll_issue("ph", vFH, "s%d" % sFHC, 31))
    if HE < 16:
        def hearly():
            poll_check("ph", vFH, "s%d" % sFHC, 31)
            for n in range(HLA):
                side.extend(hload(n))
            sch["gap"] = 2
        hb[HE].append(hearly)

    def w2touch():
        e("s_lshr_b32 s%d, s2, 6" % sT0)
        e("s_lshl2_add_u32 s%d, s%d, s%d" % (sT0, sT0, sRW))
        e("s_mul_i32 s%d, s%d, 28" % (sT0, sT0))
        e("v_add_u32 v19, s%d, v%d" % (sT0, vLANE))
        e("v_and_b32 v30, 0xffc0, v19")
        e("v_add3_u32 v19, v19, v30, 64")
        e("v_lshlrev_b32 v19, 10, v19")
        e("s_and_b32 s%d, s2, 1" % sT0)
        e("s_mul_i32 s%d, s%d, %d" % (sT0, sT0, 896 * 1024))
        e("s_lshl_b32 s%d, s%d, 7" % (sT1, sDB))
        e("s_add_u32 s%d, s%d, s%d" % (sT0, sT0, sT1))
        e("s_mov_b32 m0, 0x%x" % L_DUM)
        e("s_mov_b64 exec, 0xfffffff")
        e("buffer_load_dword v19, %s, s%d offen lds" % (srd(SW2), sT0))
        k.vm.issue("touch")
        e("s_mov_b64 exec, -1")
    if P("W2L", 8) < 16:
        hb[P("W2L", 8)].append(w2touch)
    hb[15].append(landW(0, C_E1))
    sch["gap"] = P("GAPB", 4)
    gpass(1, hb, C_WB2)
    k.stamp(7)
    if HE == 16:
        poll_check("ph", vFH, "s%d" % sFHC, 31)
        for n in range(HLA):
            run(hload(n))
    h_out(1, C_CSB, "hb")
    if HE == 17:
        poll_check("ph", vFH, "s%d" % sFHC, 31, pre=["    s_waitcnt vmcnt(0)"] + publish_lines("s%d" % sFH))
        for n in range(HLA):
            run(hload(n))
    k.stamp(8)
    gwait(C_CSB)
    gwait(C_E1)
    run(rdW(0))
    sch["gap"] = P("GAP3", 2)
    fs(7, 2)
    LCH = 14 - P("LLA", 2)
    nxt = HLA
    wl = [it for j in range(7) for it in w2_dma(1, j)]
    for n in range(28):
        k.wait_lg(("W2R", n))
        if n == LCH:
            poll_check("phb", vFH, "s%d" % sFHC, 31)
        lim = 14 if n < LCH else 28
        cnt = 0
        while nxt < min(lim, n + 1 + HLA) and nxt - 14 < n and cnt < 2:
            side.extend(hload(nxt))
            nxt += 1
            cnt += 1
        if wl:
            side.extend(wl[:2])
            wl = wl[2:]
        k.wait_vm(("H", n))
        if n == P("PHB", 3):
            k.wait_vm("hb")
            publish("s%d" % sFH)
        if n == LCH - P("PPB", 2):
            e("s_add_u32 s%d, s%d, 0x%x" % (sFHC, sFHC, FHB_D))
            poll_issue("phb", vFH, "s%d" % sFHC, 31)
        if n == 11:
            landW(1, C_L1)()
        if n == P("ZGO", 18):
            garrive(C_WT)
        if n == 13:
            for l in range(4):
                e("v_subrev_u32 v%d, 0x%x, v%d" % (TR2[l], LB, TR2[l]))
            gwait(C_L1)
        if n in (20, 21):
            for i in range(4):
                e("v_mov_b32 v%d, v%d" % (128 + 8 * (n - 20) + 2 * i + 1, vTAG))
        if n + 1 < 28:
            sch["lds"].extend(rdW(n + 1))
        for l in range(4):
            a = vr(AF + (n & 1) * 16 + 4 * l, 4)
            for u in range(2):
                c = vr(ACC + (u * 4 + l) * 4, 4)
                mf(c, a, X(u, n % 14), c if n else "0")
        flush_side()
        if n % 3 == 2:
            fs(7, 3 + n // 3)
        if n == 13:
            k.stamp(9)
    k.stamp(10)
    e("s_lshl2_add_u32 s%d, s2, s%d" % (sT1, sRW))
    e("s_lshl_b32 s%d, s%d, 12" % (sT1, sT1))
    e("s_add_u32 s%d, s%d, 0x%x" % (sT1, sT1, YX_OFF))
    k.nop(1)
    garrive(C_GY)
    for i in range(4):
        e("v_cvt_pk_bf16_f32 v%d, v%d, v%d" % (128 + 4 * i, ACC + 16 + 4 * i, ACC + 17 + 4 * i))
        e("v_cvt_pk_bf16_f32 v%d, v%d, v%d" % (128 + 4 * i + 2, ACC + 18 + 4 * i, ACC + 19 + 4 * i))
        e("buffer_store_dwordx4 %s, v%d, %s, s%d offen offset:%d sc1" % (vr(128 + 4 * i, 4), vL16, srd(SWS), sT1 + (i >> 2), 1024 * (i & 3)))
        k.vm.issue("yst")
    xe_load()
    e("s_xor_b32 s%d, s%d, 0x4000" % (sT1, sT1))
    e("s_lshl_b32 s%d, s%d, 12" % (sT4, sRW))
    e("v_add_u32 v10, s%d, v%d" % (sT4, vYW))
    for dt in range(1, 4):
        e("v_xor_b32 v%d, %d, v10" % (10 + dt, 64 * dt))
    gwait(C_GY)
    if P("YW", 1):
        k.wait_vm("yst")
    YR = 160
    e("s_mov_b32 s%d, 0" % sCNT)
    k.lab("L_yx")
    for i in range(4):
        e("buffer_load_dwordx4 %s, v%d, %s, s%d offen offset:%d sc1" % (vr(YR + 4 * i, 4), vL16, srd(SWS), sT1 + (i >> 2), 1024 * (i & 3)))
    e("s_waitcnt vmcnt(0)")
    k.vm.clear()
    e("v_min3_u32 v30, v%d, v%d, v%d" % (YR + 1, YR + 3, vTAG))
    e("v_max3_u32 v31, v%d, v%d, v%d" % (YR + 1, YR + 3, vTAG))
    for i in range(1, 4):
        e("v_min3_u32 v30, v%d, v%d, v30" % (YR + 4 * i + 1, YR + 4 * i + 3))
        e("v_max3_u32 v31, v%d, v%d, v31" % (YR + 4 * i + 1, YR + 4 * i + 3))
    e("v_cmp_ne_u32 vcc, v30, v31")
    e("s_cmp_lg_u64 vcc, 0")
    e("s_cbranch_scc1 L_yxs")
    k.lab("L_yxb")
    tail.extend(["L_yxs:", "    s_add_u32 s%d, s%d, 1" % (sCNT, sCNT), "    s_cmp_lt_u32 s%d, 0x40000" % sCNT,
                 "    s_cbranch_scc0 L_yxb", "    s_sleep 6", "    s_branch L_yx"])
    k.stamp(11)
    e("s_bitcmp1_b32 s2, 0")
    e("s_cselect_b64 vcc, -1, 0")
    e("v_cndmask_b32 v%d, v%d, v%d, vcc" % (RN, RN + 1, RN + 3))
    for i in range(8):
        e("v_and_b32 v%d, 0xffff0000, v%d" % (YR + 2 * i + 1, YR + 2 * i))
        e("v_lshlrev_b32 v%d, 16, v%d" % (YR + 2 * i, YR + 2 * i))
    for i in range(8):
        e("v_pk_add_f32 %s, %s, %s" % (vr(ACC + 2 * i, 2), vr(ACC + 2 * i, 2), vr(YR + 2 * i, 2)))
    for i in range(8):
        e("v_pk_mul_f32 %s, %s, %s op_sel_hi:[1,0]" % (vr(ACC + 2 * i, 2), vr(ACC + 2 * i, 2), vr(RN, 2)))
    for dt in range(4):
        e("ds_write_b128 v%d, %s" % (10 + dt, vr(ACC + 4 * dt, 4)))
    k.lab("L_final")
    main_lines = k.lines

    k.lines = []
    k.vm.q, k.lg.q = list(q_vm), []
    k.lab("L_fft")
    sCC, sPL, sZR, sZI, sSC, sFXC, sGB, sFX = 48, 50, 51, 52, 53, 54, 55, 56
    C64, S64, N64, C32, S32, N32, T1C, T1S, T2C, T2S = 128, 136, 144, 152, 160, 168, 176, 184, 192, 200
    XB, PA, FB, SUM, GR, ONES = 32, 64, 96, 208, 216, 224
    e("s_waitcnt lgkmcnt(0)")
    e("s_load_dword s%d, s[%d:%d], 0x%x" % (sTAG, SWS, SWS + 1, EPOCH_OFF))

    def fgen(tl):
        t = 32
        e("s_lshl_b32 s%d, s%d, 5" % (sT0, sCBK))
        e("v_add_u32 v%d, s%d, v%d" % (t, sT0, vC))
        if tl:
            e("v_add_u32 v%d, 16, v%d" % (t, t))
        e("v_lshrrev_b32 v%d, 1, v%d" % (t + 1, t))
        e("v_and_b32 v%d, 1, v%d" % (t + 2, t))
        e("v_cvt_f32_u32 v%d, v%d" % (t + 2, t + 2))
        e("v_mul_f32 v%d, %s, v%d" % (t + 2, hexf(0.25), t + 2))
        if tl == 0:
            e("v_cmp_eq_u32 vcc, 1, v%d" % t)
            e("v_mov_b32 v%d, 256" % (t + 3))
        e("s_lshl_b32 s%d, s%d, 6" % (sT0, sR))
        if tl == 0:
            e("v_cndmask_b32 v%d, v%d, v%d, vcc" % (t + 1, t + 1, t + 3))
            e("v_cndmask_b32 v%d, v%d, 0, vcc" % (t + 2, t + 2))
        e("v_cvt_f32_u32 v%d, v%d" % (t + 1, t + 1))
        e("v_mul_f32 v%d, %s, v%d" % (t + 1, hexf(1.0 / 512), t + 1))
        e("v_lshl_add_u32 v%d, v%d, 3, s%d" % (t + 3, vQ, sT0))
        e("v_cvt_f32_u32 v%d, v%d" % (t + 3, t + 3))
        e("v_fma_f32 v%d, v%d, v%d, v%d" % (t + 2, t + 3, t + 1, t + 2))
        e("v_fract_f32 v%d, v%d" % (t + 8, t + 2))
        e("v_mul_f32 v%d, %s, v%d" % (t + 3, hexf(32.0), t + 1))
        e("v_fract_f32 v%d, v%d" % (t + 3, t + 3))
        for jj in range(1, 8):
            e("v_add_f32 v%d, v%d, v%d" % (t + 8 + jj, t + 7 + jj, t + 1))
        for Tf in range(4):
            for jj in range(8):
                e("v_cos_f32 v%d, v%d" % (t + 16 + jj, t + 8 + jj))
            if Tf < 3:
                for jj in range(8):
                    e("v_add_f32 v%d, v%d, v%d" % (t + 8 + jj, t + 8 + jj, t + 3))
            else:
                k.nop(1)
            for d in range(4):
                e("v_cvt_pk_bf16_f32 v%d, v%d, v%d" % (FB + 16 * tl + 4 * Tf + d, t + 16 + 2 * d, t + 17 + 2 * d))
    fgen(0)
    fgen(1)
    vSM, vAL, vBE = 16, 17, 18
    e("v_bfe_u32 v19, v%d, 1, 2" % vC)
    e("v_cvt_f32_u32 v19, v19")
    e("v_mul_f32 v19, %s, v19" % hexf(0.25))
    e("v_cos_f32 v%d, v19" % vAL)
    e("v_sin_f32 v%d, v19" % vBE)
    e("v_bfe_u32 v%d, v%d, 1, 1" % (vSM, vC))
    e("v_mul_u32_u24 v%d, 0x8000, v%d" % (vSM, vSM))
    e("v_lshl_or_b32 v%d, v%d, 16, v%d" % (vSM, vSM, vSM))
    e("v_rndne_f32 v%d, v%d" % (vAL, vAL))
    e("v_rndne_f32 v%d, v%d" % (vBE, vBE))
    e("v_lshlrev_b32 v19, 31, v%d" % vC)
    e("v_xor_b32 v%d, v19, v%d" % (vBE, vBE))
    for d in range(4):
        e("v_mov_b32 v%d, 0x3f803f80" % (ONES + d))
    xread_addr(26)
    k.stamp(2)

    def cconst():
        t = 32
        slot = [16 * (jj >> 2) + (jj & 3) for jj in range(8)]
        yield "s_lshl_b32 s%d, s%d, 4" % (sT3, sRW)
        yield "v_add_u32 v%d, s%d, v%d" % (t + 24, sT3, vC)
        yield "v_cvt_f32_u32 v%d, v%d" % (t + 27, vQ)
        yield "v_cvt_f32_u32 v%d, v%d" % (t + 25, t + 24)
        yield "v_mul_f32 v%d, 4.0, v%d" % (t + 27, t + 27)
        yield "v_cvt_f32_u32 v%d, v%d" % (t + 28, vC)
        yield "v_and_b32 v%d, 1, v%d" % (t + 30, vC)
        for jj in range(8):
            yield "v_add_f32 v%d, %s, v%d" % (t + 32 + jj, hexf(float(slot[jj])), t + 27)
        yield "v_mul_u32_u24 v%d, 0x8000, v%d" % (t + 30, t + 30)
        yield "v_mul_f32 v%d, %s, v%d" % (t + 26, hexf(1.0 / 64), t + 25)
        yield "v_lshl_or_b32 v%d, v%d, 16, v%d" % (t + 30, t + 30, t + 30)
        for (scale, Cb, Sb, Nb, flip) in ((t + 26, C64, S64, N64, "v%d" % (t + 30)), (t + 29, C32, S32, N32, "0x80000000")):
            if Cb == C32:
                yield "v_mul_f32 v%d, %s, v%d" % (t + 29, hexf(1.0 / 32), t + 28)
                yield "v_mul_f32 v%d, %s, v%d" % (t + 26, hexf(1.0 / 2048), t + 25)
            for jj in range(8):
                yield "v_mul_f32 v%d, v%d, v%d" % (t + jj, t + 32 + jj, scale)
            for jj in range(8):
                yield "v_cos_f32 v%d, v%d" % (t + 8 + jj, t + jj)
            for jj in range(8):
                yield "v_sin_f32 v%d, v%d" % (t + 16 + jj, t + jj)
            for d in range(4):
                yield "v_cvt_pk_bf16_f32 v%d, v%d, v%d" % (Cb + d, t + 8 + 2 * d, t + 9 + 2 * d)
            for d in range(4):
                yield "v_cvt_pk_bf16_f32 v%d, v%d, v%d" % (Sb + d, t + 16 + 2 * d, t + 17 + 2 * d)
            for d in range(4):
                yield "v_xor_b32 v%d, %s, v%d" % (Cb + 4 + d, flip, Cb + d)
            for d in range(4):
                yield "v_xor_b32 v%d, %s, v%d" % (Sb + 4 + d, flip, Sb + d)
            for d in range(8):
                yield "v_xor_b32 v%d, 0x80008000, v%d" % (Nb + d, Sb + d)
        for i in range(8):
            yield "v_mul_f32 v%d, v%d, v%d" % (t + i, t + 32 + i, t + 26)
        yield "v_cvt_f32_u32 v%d, s%d" % (t + 29, sT3)
        for i in range(8):
            yield "v_cos_f32 v%d, v%d" % (T1C + i, t + i)
            yield "v_sin_f32 v%d, v%d" % (T1S + i, t + i)
        yield "v_mul_f32 v%d, %s, v%d" % (t + 26, hexf(1.0 / 2048), t + 28)
        for r in range(4):
            yield "v_add_f32 v%d, v%d, v%d" % (t + 8 + r, t + 29, t + 32 + r)
        yield "v_add_f32 v%d, %s, v%d" % (t + 25, hexf(16.0 / 2048), t + 26)
        for r in range(4):
            yield "v_mul_f32 v%d, v%d, v%d" % (t + r, t + 8 + r, t + 26)
        for r in range(4):
            yield "v_mul_f32 v%d, v%d, v%d" % (t + 4 + r, t + 8 + r, t + 25)
        for i in range(8):
            yield "v_cos_f32 v%d, v%d" % (T2C + i, t + i)
            yield "v_sin_f32 v%d, v%d" % (T2S + i, t + i)
    CCE = P("CCE", 1)
    if CCE:
        for s_ in cconst():
            e(s_)
    vX1 = 7
    e("v_lshrrev_b32 v7, 1, v%d" % vC)
    e("v_lshlrev_b32 v7, 13, v7")
    e("v_and_b32 v19, 1, v%d" % vC)
    e("v_lshl_add_u32 v7, v19, 6, v7")
    e("v_lshl_add_u32 v7, v%d, 4, v7" % vQ)
    e("s_lshl_b32 s%d, s%d, 9" % (sT0, sRW))
    e("s_add_u32 s%d, s%d, 0x%x" % (sT0, sT0, L_ST))
    e("v_lshl_add_u32 v8, v%d, 2, s%d" % (vC, sT0))
    e("v_lshl_add_u32 v9, v%d, 4, s%d" % (vQ, sT0))
    e("s_lshl4_add_u32 s%d, s%d, s%d" % (sFX, sCBK, sPB))
    e("s_lshl_b32 s%d, s%d, 7" % (sFX, sFX))
    e("s_lshl2_add_u32 s%d, s%d, s%d" % (sFX, sRW, sFX))
    tag_setup()
    k.stamp(3)
    e("s_setprio %d" % P("PRIO", 1))

    def XBf(kk, u, ks):
        return vr(XB + (((kk & 1) * 2 + ks) * 2 + u) * 4, 4)
    for s_ in range(4):
        e("s_barrier")
        fs(6, 2 + s_)
        for kk in (2 * s_, 2 * s_ + 1):
            for ks in range(2):
                for u in range(2):
                    xread(XBf(kk, u, ks), 26, kk, u, ks, ("XR", kk, ks))
        if s_ == 2:
            for i in range(32):
                e("v_xor_b32 v%d, v%d, v%d" % (FB + i, vSM, FB + i))
        for kk in (2 * s_, 2 * s_ + 1):
            for ks in range(2):
                T = 2 * kk + ks
                k.wait_lg(("XR", kk, ks))
                for u in range(2):
                    x = XBf(kk, u, ks)
                    mfma(vr(SUM + 4 * u, 4), vr(ONES, 4), x, vr(SUM + 4 * u, 4) if T else "0")
                    mfma(vr(GR + 4 * u, 4), x, x, vr(GR + 4 * u, 4) if T else "0")
                for u in range(2):
                    x = XBf(kk, u, ks)
                    for tl in range(2):
                        p = vr(PA + ((tl * 2 + ((T >> 2) & 1)) * 2 + u) * 4, 4)
                        mfma(p, x, vr(FB + 16 * tl + 4 * (T & 3), 4), "0" if T in (0, 4) else p)
    e("s_barrier")
    k.stamp(4)
    fs(6, 6)
    e("s_setprio %d" % P("XPRIO", 0))
    e("v_and_b32 v19, 3, v%d" % vC)
    k.nop(2)
    for r in range(1, 4):
        e("v_cmp_eq_u32 vcc, %d, v19" % r)
        k.nop(2)
        for u in range(2):
            e("v_cndmask_b32 v%d, v%d, v%d, vcc" % (GR + 4 * u, GR + 4 * u, GR + 4 * u + r))

    def stat_ops(u):
        m, q2, rs_, nm, d0 = SUM + 4 * u, GR + 4 * u, SUM + 4 * u + 1, SUM + 4 * u + 2, SUM + 4 * u + 3
        rnd = lambda v: ["v_cvt_pk_bf16_f32 v%d, v%d, v%d" % (v, v, v), "v_lshlrev_b32 v%d, 16, v%d" % (v, v)]
        return (["v_mul_f32 v%d, %s, v%d" % (m, hexf(1.0 / 512), m),
                 "v_mul_f32 v%d, %s, v%d" % (q2, hexf(1.0 / 512), q2),
                 "v_fma_f32 v%d, -v%d, v%d, v%d" % (q2, m, m, q2),
                 "v_max_f32 v%d, 0, v%d" % (q2, q2)] + rnd(q2) +
                ["v_add_f32 v%d, %s, v%d" % (q2, hexf(1e-5), q2)] + rnd(q2) +
                ["v_sqrt_f32 v%d, v%d" % (q2, q2), "v_sub_f32 v%d, 0, v%d" % (nm, m)] + rnd(q2) +
                ["v_rcp_f32 v%d, v%d" % (rs_, q2)] + rnd(nm) +
                ["v_add_f32 v%d, v%d, v%d" % (d0, m, nm), "v_mul_f32 v%d, %s, v%d" % (d0, hexf(512.0), d0)])
    for a_, b_ in zip(stat_ops(0), stat_ops(1)):
        e(a_)
        e(b_)
    e("s_mov_b32 exec_lo, 0x00f0000f")
    e("s_mov_b32 exec_hi, 0xf0000f00")
    for u in range(2):
        e("ds_write2_b32 v8, v%d, v%d offset0:%d offset1:%d" % (SUM + 4 * u + 1, SUM + 4 * u + 2, 16 * u, 32 + 16 * u))
        e("ds_write_b32 v8, v%d offset:%d" % (SUM + 4 * u + 3, 256 + 64 * u))
    e("s_mov_b64 exec, -1")
    RT, D0T = XB, XB + 8
    for u in range(2):
        e("ds_read_b128 %s, v9 offset:%d" % (vr(RT + 4 * u, 4), 64 * u))
        e("ds_read_b128 %s, v9 offset:%d" % (vr(D0T + 4 * u, 4), 256 + 64 * u))
    for tl in range(2):
        for i in range(8):
            e("v_fmac_f32 v%d, v%d, v%d" % (PA + 16 * tl + i, vAL, PA + 16 * tl + 8 + i))
        for i in range(8):
            e("v_fmac_f32_dpp v%d, v%d, v%d quad_perm:[1,0,3,2] row_mask:0xf bank_mask:0xf" % (PA + 16 * tl + i, PA + 16 * tl + 8 + i, vBE))
    e("v_or_b32 v19, s%d, v%d" % (sCBK, vC))
    e("v_cmp_eq_u32 vcc, 0, v19")
    e("s_lshl_b32 s%d, s%d, 17" % (sT0, sCBK))
    e("s_lshl2_add_u32 s%d, s%d, s%d" % (sT1, sA, sRW))
    e("s_lshr_b32 s%d, s%d, 1" % (sT2, sWP))
    e("s_lshl1_add_u32 s%d, s%d, s%d" % (sT1, sT1, sT2))
    e("s_lshl_b32 s%d, s%d, 7" % (sT1, sT1))
    e("s_add_u32 s%d, s%d, s%d" % (sT0, sT0, sT1))
    e("s_add_u32 s%d, s%d, 0x%x" % (sT1, sT0, X1C_OFF))
    e("s_add_u32 s%d, s%d, 0x%x" % (sT2, sT0, X1C_OFF + 65536))
    e("s_waitcnt lgkmcnt(0)")
    k.lg.clear()
    for i in range(8):
        e("v_cndmask_b32 v%d, v%d, v%d, vcc" % (PA + i, PA + i, D0T + i))
    for tl in range(2):
        for i in range(8):
            e("v_mul_f32 v%d, v%d, v%d" % (PA + 16 * tl + i, PA + 16 * tl + i, RT + i))
        o = 232 + 4 * tl
        for d in range(4):
            e("v_cvt_pk_bf16_f32 v%d, v%d, v%d" % (o + d, PA + 16 * tl + 2 * d, PA + 16 * tl + 2 * d + 1))
        e("buffer_store_dwordx4 %s, v%d, %s, s%d offen sc1" % (vr(o, 4), vX1, srd(SWS), sT1 + tl))
        k.vm.issue("x1st")
    k.stamp(5)

    def colsum(reg):
        if reg == 0:
            e("v_lshrrev_b32 v19, 2, v%d" % vC)
            e("v_lshl_add_u32 v20, v%d, 3, v19" % vQ)
            e("v_lshlrev_b32 v20, 7, v20")
            e("v_and_b32 v13, 1, v%d" % vC)
            e("v_lshl_add_u32 v20, v13, 3, v20")
            e("v_bfe_u32 v19, v%d, 3, 1" % vC)
            e("v_and_b32 v13, 1, v%d" % vQ)
            e("v_lshl_or_b32 v19, v13, 1, v19")
            e("v_xor_b32 v19, s%d, v19" % sRW)
            e("v_lshlrev_b32 v19, 1, v19")
            e("v_bfe_u32 v13, v%d, 1, 1" % vC)
            e("v_or_b32 v19, v19, v13")
            e("v_lshl_add_u32 v20, v19, 4, v20")
            e("v_add_u32 v13, 0x%x, v20" % LB)
            e("s_lshl_b32 s%d, s%d, 6" % (sT1, sRW))
            e("s_add_u32 s%d, s%d, 0x%x" % (sT1, sT1, L_CS))
            e("v_lshl_add_u32 v16, v%d, 4, s%d" % (vQ, sT1))
            gwait(C_WA2)
        else:
            gwait(C_WB1)
            gwait(C_WB2)
        base = 20 if reg else 13

        def rd(T):
            for hh in range(2):
                e("ds_read_b64_tr_b16 %s, v%d offset:%d" % (vr(48 + 4 * (T % 4) + 2 * hh, 2), base, T * 4096 + hh * 512))
                k.lg.issue(("CS", reg, T))
        for T in range(3):
            rd(T)
        for T in range(16):
            if T + 3 < 16:
                rd(T + 3)
            k.wait_lg(("CS", reg, T))
            mfma(vr(240, 4), vr(48 + 4 * (T % 4), 4), vr(ONES, 4), vr(240, 4) if T else "0")
        k.nop(6)
        e("s_mov_b32 exec_lo, 0x00010001")
        e("s_mov_b32 exec_hi, 0x00010001")
        e("ds_write_b128 v16, v[240:243] offset:%d" % (256 * reg))
        e("s_mov_b64 exec, -1")
        garrive(C_FB if reg else C_FA)
    colsum(0)
    e("s_setprio 0")
    GB = 64

    def ggen():
        t0 = 32
        an, stp = 252, 31
        yield "s_lshl_b32 s%d, s%d, 6" % (sT3, sDB)
        yield "s_lshl4_add_u32 s%d, s%d, s%d" % (sT3, sRW, sT3)
        yield "v_add_u32 v%d, s%d, v%d" % (t0, sT3, vC)
        yield "v_lshlrev_b32 v%d, 1, v%d" % (t0 + 2, vQ)
        yield "v_cvt_f32_u32 v%d, v%d" % (t0 + 1, t0)
        yield "v_cvt_f32_u32 v%d, v%d" % (t0 + 2, t0 + 2)
        yield "v_mul_f32 v%d, %s, v%d" % (t0 + 1, hexf(1.0 / 512), t0 + 1)
        yield "v_mul_f32 v%d, %s, v%d" % (stp, hexf(16.0), t0 + 1)
        for dw in range(4):
            yield "v_add_f32 v%d, %s, v%d" % (an + dw, hexf(float(8 * (dw >> 1) + (dw & 1))), t0 + 2)
        yield "v_fract_f32 v%d, v%d" % (stp, stp)
        for dw in range(4):
            yield "v_mul_f32 v%d, v%d, v%d" % (an + dw, an + dw, t0 + 1)
        yield "v_lshlrev_b32 v%d, 31, v%d" % (t0 + 16, vC)
        yield "v_min_u32 v%d, 1, v%d" % (t0 + 17, vQ)
        yield "v_or_b32 v%d, 0x3f800000, v%d" % (t0 + 16, t0 + 16)
        yield "v_sub_u32 v%d, v%d, 1" % (t0 + 17, t0 + 17)
        yield "v_and_b32 v%d, 0xffff0000, v%d" % (t0 + 17, t0 + 17)
        for T in range(16):
            for dw in range(4):
                yield "v_cos_f32 v%d, v%d" % (t0 + 8 + 2 * dw, an + dw)
                yield "v_sin_f32_e64 v%d, -v%d" % (t0 + 9 + 2 * dw, an + dw)
            for dw in range(4):
                yield "v_add_f32 v%d, v%d, v%d" % (an + dw, an + dw, stp)
            for dw in range(4):
                yield "v_cvt_pk_bf16_f32 v%d, v%d, v%d" % (GB + 4 * T + dw, t0 + 8 + 2 * dw, t0 + 9 + 2 * dw)
            if T == 0:
                yield "v_bfi_b32 v%d, v%d, v%d, v%d" % (GB, t0 + 17, t0 + 16, GB)
    late_setup(1)
    e("v_add_u32 v6, 0x%x, v%d" % (LB, vZB))
    vFL, vFZ, vDZ = 14, 15, 9
    e("s_xor_b32 s%d, s2, 0x38" % sCC)
    flag_voff(vFZ, 63)
    e("v_and_b32 v%d, 0x1ff, v%d" % (vFL, vFZ))
    e("v_min_u32 v19, 1, v%d" % vQ)
    e("v_mul_u32_u24 v19, 0x%x, v19" % (FW_OFF - FX_OFF))
    e("v_add_u32 v%d, v19, v%d" % (vFL, vFL))
    e("s_cmp_eq_u32 s%d, 0" % sCC)
    e("s_cselect_b32 s%d, 0x%x, 0" % (sT0, 16 * 2048))
    e("v_lshrrev_b32 v19, 1, v%d" % vQ)
    e("v_mul_u32_u24 v19, s%d, v19" % sT0)
    e("v_add_u32 v%d, v19, v%d" % (vFL, vFL))
    e("s_lshr_b32 s%d, s%d, 4" % (sFXC, sCC))
    e("s_lshl2_add_u32 s%d, s%d, s%d" % (sFXC, sFXC, sRW))
    e("s_lshl_b32 s%d, s%d, 9" % (sFXC, sFXC))
    e("s_mov_b32 s%d, 0" % sGB)
    XI, TM, TW, DR, DI, PR, PI, CWL = 32, 32, 48, 208, 216, 224, 228, 232

    def xin(pl, v, tt):
        return XI + 4 * ((pl * 2 + v) * 2 + tt)
    e("v_add_u32 v26, 0x%x, v%d" % (L_C1, vYW))
    e("v_xor_b32 v27, 64, v26")
    e("v_xor_b32 v28, 128, v26")
    e("v_xor_b32 v29, 192, v26")
    e("s_lshr_b32 s%d, s%d, 1" % (sT0, sRW))
    e("s_lshl_b32 s%d, s%d, 7" % (sT0, sT0))
    e("s_and_b32 s%d, s%d, 1" % (sT1, sRW))
    e("s_lshl3_add_u32 s%d, s%d, s%d" % (sT0, sT1, sT0))
    e("v_xor_b32 v10, s%d, v26" % sT0)
    e("v_xor_b32 v11, 64, v10")
    e("v_lshlrev_b32 v12, 5, v%d" % vC)
    e("v_lshl_add_u32 v12, v%d, 3, v12" % vQ)
    e("s_lshl_b32 s%d, s%d, 10" % (sT0, sRW))
    e("v_add_u32 v12, s%d, v12" % sT0)
    e("s_lshl_b32 s%d, s%d, 13" % (sZR, sCC))
    e("s_add_u32 s%d, s%d, 0x%x" % (sZR, sZR, ZT_OFF))
    e("s_add_u32 s%d, s%d, 4096" % (sZI, sZR))
    e("s_mov_b32 s%d, %s" % (sSC, hexf(2.0 ** -19)))
    e("s_cmp_eq_u32 s%d, 0" % sCC)
    e("s_cselect_b32 s%d, 0x%x, s%d" % (sZI, OOB, sZI))
    e("s_cselect_b32 s%d, %s, s%d" % (sSC, hexf(2.0 ** -20), sSC))
    e("s_mov_b32 s%d, 0" % sPL)
    e("s_lshl_b32 s%d, s%d, 3" % (sT0, sT1))
    e("v_add_u32 v19, s%d, v%d" % (sT0, vQ))
    e("v_xor_b32 v30, v19, v%d" % vC)
    e("v_lshlrev_b32 v30, 4, v30")
    e("v_lshl_add_u32 v30, v%d, 8, v30" % vQ)
    e("v_xor_b32 v24, 64, v30")
    e("v_lshrrev_b32 v8, 3, v%d" % vLANE)
    e("v_and_b32 v9, 7, v%d" % vLANE)
    e("v_lshlrev_b32 v19, 1, v%d" % vQ)
    e("v_xor_b32 v19, v19, v9")
    e("v_lshlrev_b32 v19, 4, v19")
    e("v_lshl_add_u32 v%d, v8, 12, v19" % vDZ)
    k.wait_vm("x1st")
    publish("s%d" % sFX)
    xe_load()
    if P("NOFFT", 0):
        e("s_branch L_final")
    k.stamp(6)
    pre = ([] if CCE else list(cconst())) + ["v_mul_f32 v%d, s%d, v%d" % (T2C + i, sSC, T2C + i) for i in range(16)]
    gl = list(ggen())
    GE = P("GE", 167)
    pre += gl[:GE]
    gl = gl[GE:]
    n2 = max(0, len(pre) - P("PFXL", 0))
    for s_ in pre[:n2]:
        e(s_)
    colsum(1)
    poll_issue("pfx", vFL, "s%d" % sFXC, 13)
    for s_ in pre[n2:]:
        e(s_)
    k.stamp(7)
    e("s_setprio %d" % P("CPRIO", 1))
    poll_check("pfx", vFL, "s%d" % sFXC, 13)
    k.stamp(8)

    def gbar_lines():
        return ["    s_add_u32 s%d, s%d, 4" % (sGB, sGB)] + garrive_lines(C_F) + gwait_lines(C_F, "s%d" % sGB)

    def gbar():
        k.lines.extend(gbar_lines())
        k.lg.clear()
    e("s_lshl_b32 s%d, s%d, 13" % (sT0, sCC))
    e("s_lshl_b32 s%d, s%d, 11" % (sT1, sRW))
    e("s_add_u32 s%d, s%d, s%d" % (sT0, sT0, sT1))
    e("s_add_u32 s%d, s%d, 0x%x" % (sT2, sT0, X1C_OFF))
    e("s_add_u32 m0, s%d, 0x%x" % (sT1, L_C1))
    k.nop(1)
    e("buffer_load_dwordx4 v30, %s, s%d offen sc1 lds" % (srd(SWS), sT2))
    k.vm.issue("cin")
    e("buffer_load_dwordx4 v24, %s, s%d offen offset:1024 sc1 lds" % (srd(SWS), sT2))
    k.vm.issue("cin")
    e("s_add_u32 s%d, s%d, 0x%x" % (sT2, sT0, WT_OFF))
    for v in range(2):
        e("buffer_load_dwordx4 %s, v%d, %s, s%d offen offset:%d sc1" % (vr(CWL + 4 * v, 4), vL16, srd(SWS), sT2, v * 1024))
        k.vm.issue("cw")
    e("s_add_u32 s%d, s%d, 0x%x" % (sT2, sT2, 256 * 8192))
    e("s_cmp_eq_u32 s%d, 0" % sCC)
    e("s_cselect_b32 s%d, s%d, 0x%x" % (sT2, sT2, OOB))
    for v in range(2):
        e("buffer_load_dwordx4 %s, v%d, %s, s%d offen offset:%d sc1" % (vr(CWL + 8 + 4 * v, 4), vL16, srd(SWS), sT2, v * 1024))
        k.vm.issue("cw")
    k.wait_vm("cin")
    gbar()
    k.stamp(9)
    k.lab("L_ccol")
    for pl in range(2):
        for v in range(2):
            for tt in range(2):
                e("ds_read_b128 %s, v%d offset:%d" % (vr(xin(pl, v, tt), 4), 26 + 2 * tt + pl, v * 4096))
    e("s_waitcnt lgkmcnt(0)")
    e("s_cmp_eq_u32 s%d, 0" % sCC)
    e("s_cbranch_scc1 L_creal")
    k.lab("L_cplx")
    tail.append("L_creal:")
    tail.append("    s_cmp_eq_u32 s%d, 0" % sPL)
    tail.append("    s_cbranch_scc1 L_c0")
    for i in range(16):
        tail.append("    v_mov_b32 v%d, v%d" % (XI + i, XI + 16 + i))
    tail.append("L_c0:")
    for i in range(16):
        tail.append("    v_mov_b32 v%d, 0" % (XI + 16 + i))
    tail.append("    s_nop 1")
    tail.append("    s_branch L_cplx")
    for v in range(2):
        dr, di = vr(DR + 4 * v, 4), vr(DI + 4 * v, 4)
        for tt in range(2):
            mfma(dr, vr(xin(0, v, tt), 4), vr(C64 + 4 * tt, 4), dr if tt else "0")
            mfma(di, vr(xin(1, v, tt), 4), vr(C64 + 4 * tt, 4), di if tt else "0")
            mfma(dr, vr(xin(1, v, tt), 4), vr(S64 + 4 * tt, 4))
            mfma(di, vr(xin(0, v, tt), 4), vr(N64 + 4 * tt, 4))

    def cmul(cr, ci, conj):
        for h in range(2):
            for i in range(4 * h, 4 * h + 4):
                e("v_mul_f32 v%d, v%d, v%d" % (TM + i, DR + i, cr + i))
                e("v_mul_f32 v%d, v%d, v%d" % (TM + 8 + i, DI + i, cr + i))
            for i in range(4 * h, 4 * h + 4):
                if conj:
                    e("v_fma_f32 v%d, v%d, v%d, v%d" % (TM + i, DI + i, ci + i, TM + i))
                    e("v_fma_f32 v%d, -v%d, v%d, v%d" % (TM + 8 + i, DR + i, ci + i, TM + 8 + i))
                else:
                    e("v_fma_f32 v%d, -v%d, v%d, v%d" % (TM + i, DI + i, ci + i, TM + i))
                    e("v_fma_f32 v%d, v%d, v%d, v%d" % (TM + 8 + i, DR + i, ci + i, TM + 8 + i))
        for d in range(4):
            e("v_cvt_pk_bf16_f32 v%d, v%d, v%d" % (PR + d, TM + 2 * d, TM + 2 * d + 1))
            e("v_cvt_pk_bf16_f32 v%d, v%d, v%d" % (PI + d, TM + 8 + 2 * d, TM + 9 + 2 * d))
        k.nop(2)
    cmul(T1C, T1S, True)
    pr, pi = vr(PR, 4), vr(PI, 4)
    for v in range(2):
        dr, di = vr(DR + 4 * v, 4), vr(DI + 4 * v, 4)
        mfma(dr, vr(C32 + 4 * v, 4), pr, "0")
        mfma(di, vr(C32 + 4 * v, 4), pi, "0")
        mfma(dr, vr(S32 + 4 * v, 4), pi)
        mfma(di, vr(N32 + 4 * v, 4), pr)
    k.wait_vm("cw")
    for i in range(8):
        e("v_lshlrev_b32 v%d, 16, v%d" % (TW + i, CWL + i))
        e("v_and_b32 v%d, 0xffff0000, v%d" % (TW + 8 + i, CWL + i))
    cmul(TW, TW + 8, False)
    for v in range(2):
        dr, di = vr(DR + 4 * v, 4), vr(DI + 4 * v, 4)
        mfma(dr, pr, vr(C32 + 4 * v, 4), "0")
        mfma(di, pi, vr(C32 + 4 * v, 4), "0")
        mfma(dr, pi, vr(N32 + 4 * v, 4))
        mfma(di, pr, vr(S32 + 4 * v, 4))
    k.nop(4)
    cmul(T2C, T2S, False)
    for v in range(2):
        e("ds_write_b64 v10, %s offset:%d" % (vr(PR + 2 * v, 2), 8192 + v * 4096))
        e("ds_write_b64 v11, %s offset:%d" % (vr(PI + 2 * v, 2), 8192 + v * 4096))
    e("s_waitcnt lgkmcnt(0)")
    gbar()
    for v in range(2):
        for tt in range(2):
            for pl in range(2):
                e("ds_read_b128 %s, v%d offset:%d" % (vr(xin(pl, v, tt), 4), 26 + 2 * tt + pl, 8192 + v * 4096))
                k.lg.issue(("cy", v, tt))
    for v in range(2):
        dr, di = vr(DR + 4 * v, 4), vr(DI + 4 * v, 4)
        for tt in range(2):
            k.wait_lg(("cy", v, tt))
            mfma(dr, vr(C64 + 4 * tt, 4), vr(xin(0, v, tt), 4), dr if tt else "0")
            mfma(di, vr(C64 + 4 * tt, 4), vr(xin(1, v, tt), 4), di if tt else "0")
            mfma(dr, vr(N64 + 4 * tt, 4), vr(xin(1, v, tt), 4))
            mfma(di, vr(S64 + 4 * tt, 4), vr(xin(0, v, tt), 4))
    for v in range(2):
        if v:
            k.nop(4)
        for d in range(2):
            e("v_cvt_pk_bf16_f32 v%d, v%d, v%d" % (PR + 2 * v + d, DR + 4 * v + 2 * d, DR + 4 * v + 2 * d + 1))
            e("v_cvt_pk_bf16_f32 v%d, v%d, v%d" % (PI + 2 * v + d, DI + 4 * v + 2 * d, DI + 4 * v + 2 * d + 1))
        e("buffer_store_dwordx2 %s, v12, %s, s%d offen offset:%d sc1" % (vr(PR + 2 * v, 2), srd(SWS), sZR, v * 512))
        k.vm.issue("zst")
        e("buffer_store_dwordx2 %s, v12, %s, s%d offen offset:%d sc1" % (vr(PI + 2 * v, 2), srd(SWS), sZI, v * 512))
        k.vm.issue("zst")
    e("s_or_b32 s%d, s%d, s%d" % (sT0, sCC, sPL))
    if not P("NO256", 0):
        e("s_cbranch_scc0 L_csecond")
    sec = ["L_csecond:", "    s_mov_b32 s%d, 1" % sPL, "    s_add_u32 s%d, s%d, 4096" % (sZR, sZR)]
    for i in range(8):
        sec.append("    v_mov_b32 v%d, v%d" % (CWL + i, CWL + 8 + i))
    sec.extend(gbar_lines())
    sec.append("    s_branch L_ccol")
    tail.extend(sec)
    k.stamp(10)
    fs(7, 2)
    e("s_lshr_b32 s%d, s%d, 2" % (sT4, sCC))
    e("s_lshl_b32 s%d, s%d, 6" % (sT1, sRW))
    e("s_add_u32 s%d, s%d, s%d" % (sT4, sT4, sT1))
    e("s_lshl_b32 s%d, s%d, 7" % (sT4, sT4))
    e("s_and_b32 s%d, s%d, 3" % (sT1, sCC))
    e("s_lshl2_add_u32 s%d, s%d, s%d" % (sT4, sT1, sT4))
    e("s_add_u32 s%d, s%d, 0x%x" % (sT4, sT4, FZ_OFF))
    sFZC = sFXC
    e("s_lshl2_add_u32 s%d, s%d, s%d" % (sFZC, sWP, sRW))
    e("s_lshl_b32 s%d, s%d, 11" % (sFZC, sFZC))
    e("s_add_u32 s%d, s%d, 0x%x" % (sFZC, sFZC, FZ_OFF))
    e("s_lshl_b32 s%d, s%d, 19" % (sDT, sRW))
    e("s_lshl_b32 s%d, s%d, 10" % (sT1, sWP))
    e("s_add_u32 s%d, s%d, s%d" % (sDT, sDT, sT1))
    e("s_lshl_b32 s%d, s%d, 7" % (sT1, sA))
    e("s_add_u32 s%d, s%d, s%d" % (sDT, sDT, sT1))
    e("s_add_u32 s%d, s%d, 0x%x" % (sDT, sDT, ZT_OFF - 32768))
    e("s_lshl_b32 s%d, s%d, 14" % (sT2, sRW))
    TRZ = [16, 17, 18, 7]
    for pt in range(4):
        e("v_xor_b32 v%d, %d, v6" % (TRZ[pt], 32 * pt))
    e("s_lshl_b32 s%d, s%d, 6" % (sT1, sRW))
    e("v_xor_b32 v20, s%d, v26" % sT1)
    k.wait_vm("zst")
    fs(7, 3)
    publish("s%d" % sT4)
    e("s_setprio 0")
    for s_ in gl:
        e(s_)
    e("s_setprio 1")
    gwait(C_WT)
    fs(7, 4)
    if P("ZSLP", 0):
        e("s_sleep %d" % P("ZSLP", 0))
    poll_issue("pz", vFZ, "s%d" % sFZC, 30)
    if FS == 7:
        k.wait_vm("pz")
    fs(7, 5)
    poll_check("pz", vFZ, "s%d" % sFZC, 30)
    fs(7, 6)
    k.stamp(11)
    for ee in range(16):
        e("s_add_u32 m0, s%d, %d" % (sT2, LB + ee * 1024))
        e("s_add_u32 s%d, s%d, 32768" % (sDT, sDT))
        e("buffer_load_dwordx4 v%d, %s, s%d offen sc1 lds" % (vDZ, srd(SWS), sDT))
        k.vm.issue("Z")
    fs(7, 7)
    e("s_setprio %d" % P("EPRIO", 0))
    k.wait_vm("Z")
    fs(7, 8)
    gbar()
    fs(7, 9)
    AS, ZF = 208, 128

    def zr(T, pt):
        for hh in range(2):
            r = ZF + ((T % 4) * 4 + pt) * 4 + 2 * hh
            e("ds_read_b64_tr_b16 %s, v%d offset:%d" % (vr(r, 2), TRZ[pt], T * 4096 + hh * 2048))
            k.lg.issue(("ZR", T, pt))
    seq = [(T, pt) for T in range(16) for pt in range(4)]
    LA_ = 6
    for n in range(LA_):
        zr(*seq[n])
    for n, (T, pt) in enumerate(seq):
        if n + LA_ < 64:
            zr(*seq[n + LA_])
        k.wait_lg(("ZR", T, pt))
        c = vr(AS + 4 * pt, 4)
        mfma(c, vr(GB + 4 * T, 4), vr(ZF + ((T % 4) * 4 + pt) * 4, 4), c if T else "0")
    k.nop(8)
    for pt in range(4):
        e("ds_write_b128 v20, %s offset:%d" % (vr(AS + 4 * pt, 4), pt * 4096))
    fs(7, 10)
    e("s_branch L_final")
    tail[0:0] = k.lines
    k.lines = main_lines

    e("s_waitcnt vmcnt(0) lgkmcnt(0)")
    k.vm.clear()
    k.lg.clear()
    e("s_barrier")
    k.stamp(12)
    YP, SV, U2 = 192, 224, 232
    e("v_add_u32 v10, 0x%x, v%d" % (L_C1, vR0))
    e("v_add_u32 v11, 0x%x, v%d" % (L_C1, vR1))
    for h in range(2):
        e("ds_read_b128 %s, v%d" % (vr(YP + 4 * h, 4), vR0 + h))
        k.lg.issue("yp")
    for h in range(2):
        e("ds_read_b128 %s, v%d" % (vr(SV + 4 * h, 4), 10 + h))
        k.lg.issue("sv")
    for i in range(4):
        e("v_lshlrev_b32 v%d, 16, v%d" % (240 + 2 * i, XV + i))
        e("v_and_b32 v%d, 0xffff0000, v%d" % (241 + 2 * i, XV + i))
    k.wait_lg("yp")
    for i in range(8):
        e("v_mul_f32 v%d, %s, v%d" % (U2 + i, hexf(-1.4426950408889634), YP + i))
    for i in range(8):
        e("v_exp_f32 v%d, v%d" % (U2 + i, U2 + i))
    k.wait_lg("sv")
    for i in range(8):
        e("v_mul_f32 v%d, v%d, v%d" % (YP + i, YP + i, SV + i))
    for i in range(8):
        e("v_add_f32 v%d, 1.0, v%d" % (U2 + i, U2 + i))
    for i in range(8):
        e("v_rcp_f32 v%d, v%d" % (U2 + i, U2 + i))
    k.nop(1)
    for i in range(8):
        e("v_fmac_f32 v%d, v%d, v%d" % (240 + i, YP + i, U2 + i))
    for d in range(4):
        e("v_cvt_pk_bf16_f32 v%d, v%d, v%d" % (SV + d, 240 + 2 * d, 241 + 2 * d))
    e("buffer_store_dwordx4 %s, v%d, %s, s%d offen%s" % (vr(SV, 4), vGO, srd(SOUT), sXO, os.environ.get("OFL", " sc1")))
    e("s_or_b32 s%d, s2, s%d" % (sT0, sRW))
    e("s_or_b32 s%d, s%d, s%d" % (sT0, sT0, sHF))
    e("s_cbranch_scc1 L_noep")
    e("s_mov_b32 s%d, 0x%x" % (sT0, EPOCH_OFF))
    publish("s%d" % sT0)
    k.lab("L_noep")
    k.stamp(13)
    if ENC:
        if "ENCB" in os.environ:
            e("s_cmp_lg_u32 s2, %d" % P("ENCB", 0))
            e("s_cbranch_scc1 L_done")
        e("s_waitcnt lgkmcnt(0)")
        e("s_sub_u32 s97, s%d, s66" % (64 + 2 * ENC))
        e("s_add_u32 s97, s97, 6000")
        k.lab("L_espin")
        e("s_memrealtime s[94:95]")
        e("s_waitcnt lgkmcnt(0)")
        e("s_sub_u32 s96, s94, s66")
        e("s_cmp_lt_u32 s96, s97")
        e("s_cbranch_scc1 L_espin")
    elif DIAG:
        e("s_lshl2_add_u32 s%d, s%d, s%d" % (sT0, sHF, sRW))
        e("v_mov_b32 v2, s%d" % sT0)
        k.stamp_flush(SWS, 0, 2, 8)
    k.lab("L_done")
    e("s_endpgm")
    k.lines += tail
    k.lab("L_end")
    return k


HEADER = open(os.path.join(os.path.dirname(os.path.abspath(__file__)), "header.txt")).read()


def main(out):
    k = gen()
    s = HEADER
    s += "; @launch grid=(256,1,1) block=(512,1,1) lds=163840\n"
    s += '.amdgcn_target "amdgcn-amd-amdhsa--gfx950"\n.text\n'
    s += k.text()
    s += '.section .rodata,"a"\n'
    s += descriptor(k.name, 256, 102 if DIAG else 64)
    open(out, "w").write(s)


if __name__ == "__main__":
    main(sys.argv[1] if len(sys.argv) > 1 else "v13.s")
```

```python
import sys, os
from collections import deque
sys.path.insert(0, os.path.dirname(os.path.abspath(__file__)))
from asmlib import *

NAME = "recurrent_scan__spectral_gfnet__dense_activation_relu__prompt_kernel"


def P(name, default):
    return int(os.environ.get(name, default))


X1C_OFF = 0x0200000
WT_OFF = 0x0400000
H_OFF = 0x0800000
ZT_OFF = 0x1000000
FX_OFF = 0x0000000
FW_OFF = 0x0010000
FH_OFF = 0x0020000
FY_OFF = 0x0048000
YX_OFF = 0x1800000
FHB_D = 0x0008000
FZ_OFF = 0x0030000
EPOCH_OFF = 0x0040000
WS_BYTES = 0x2000000
OOB = 0x7f000000
TAGC = 0x9E3779B9
X_BYTES = 2048 * 512 * 2
W_BYTES = 2048 * 257 * 2
W1_BYTES = 512 * 1792 * 2

SX, SWR, SWI, SW1, SW2, SOUT, SWS = 12, 16, 20, 24, 28, 32, 36
sRW, sPB, sCBK, sF0, sHF, sR, sTAG, sA, sWP, sDB = 3, 4, 5, 6, 7, 8, 9, 10, 11, 40
sXO, sRS = 41, 42
sT0, sT1, sT2, sT3, sT4 = 43, 44, 45, 46, 47
sCNT = 49
sXT, sDT = 0, 1

LA, LB, LS = 0, 65536, 131072
L_C1 = LS
L_WT = LS + 16384
L_SCR = LS + 24576
L_CS, L_ST, L_CNT, L_W256, L_DUM = L_SCR, L_SCR + 1024, L_SCR + 3072, L_SCR + 4096, L_SCR + 6144
XSLOT = [LB, LB + 16384, LB + 32768, LB + 49152, LA, LA + 16384, LA + 32768, LA + 49152]

vLANE, vL16, vC, vQ, vTAG, vCNT = 1, 2, 3, 4, 5, 25
vGO, vR0, vR1, vYW, vZB = 0, 22, 23, 21, 124
C_WA2, C_CSA, C_WB1, C_WB2, C_CSB, C_ST, C_WT, C_F, C_E1, C_L1, C_GY, C_FA, C_FB = 0, 4, 8, 12, 16, 20, 24, 28, 32, 36, 40, 44, 48


def srd(n):
    return "s[%d:%d]" % (n, n + 3)


def gen():
    k = K(NAME)
    e = k.e
    tail = []
    FS, ENC = P("FS", 0), P("ENC", 0)
    _stamp = k.stamp

    def stamp_n(i, real=False):
        if ENC:
            if i == 1 or i == ENC:
                _stamp(i, True)
            return
        if FS and 2 <= i <= 13:
            return
        _stamp(i, real)
    k.stamp = stamp_n

    def fs(mode, i):
        if FS == mode:
            _stamp(i)

    side = deque()
    sch = {"gap": 3, "n": 0, "lds": deque()}

    def mfma(d, a, b, c=None):
        e("v_mfma_f32_16x16x32_bf16 %s, %s, %s, %s" % (d, a, b, c if c is not None else d))

    def mf(d, a, b, c=None):
        mfma(d, a, b, c)
        sch["n"] += 1
        for _ in range(P("NL", 1)):
            if sch["lds"]:
                sch["lds"].popleft()()
        if side and sch["n"] % sch["gap"] == 0:
            side.popleft()()

    def flush_lds():
        while sch["lds"]:
            sch["lds"].popleft()()

    def flush_side():
        flush_lds()
        while side:
            side.popleft()()

    def run(items):
        for f in items:
            f()

    def bf16_round(v):
        e("v_cvt_pk_bf16_f32 v%d, v%d, v%d" % (v, v, v))
        e("v_lshlrev_b32 v%d, 16, v%d" % (v, v))

    def publish_lines(soff):
        return ["    s_mov_b64 exec, 1",
                "    buffer_store_dword v%d, off, %s, %s sc1" % (vTAG, srd(SWS), soff),
                "    s_mov_b64 exec, -1"]

    def publish(soff):
        k.lines.extend(publish_lines(soff))
        k.vm.issue("flag")

    pollno = [0]

    def poll_ld(vaddr, soff, vt):
        return "buffer_load_dword v%d, v%d, %s, %s offen sc1" % (vt, vaddr, srd(SWS), soff)

    def poll_issue(tag, vaddr, soff, vt):
        e(poll_ld(vaddr, soff, vt))
        k.vm.issue(tag)

    def poll_check(tag, vaddr, soff, vt, pre=(), slp=None):
        n = pollno[0]
        pollno[0] += 1
        k.wait_vm(tag)
        e("v_cmp_ne_u32 vcc, v%d, v%d" % (vt, vTAG))
        e("s_cmp_lg_u64 vcc, 0")
        e("s_cbranch_scc1 L_slow%d" % n)
        k.lab("L_back%d" % n)
        tail.append("L_slow%d:" % n)
        tail.extend(pre)
        tail.extend(["    s_mov_b32 s%d, 0" % sCNT,
                     "L_spin%d:" % n,
                     "    s_sleep %d" % (P("SLP", 8) if slp is None else slp),
                     "    s_mov_b64 exec, vcc",
                     "    " + poll_ld(vaddr, soff, vt),
                     "    s_mov_b64 exec, -1",
                     "    s_waitcnt vmcnt(0)",
                     "    v_cmp_ne_u32 vcc, v%d, v%d" % (vt, vTAG),
                     "    s_cmp_lg_u64 vcc, 0",
                     "    s_cbranch_scc0 L_back%d" % n,
                     "    s_add_u32 s%d, s%d, 1" % (sCNT, sCNT),
                     "    s_cmp_lt_u32 s%d, 0x40000" % sCNT,
                     "    s_cbranch_scc1 L_spin%d" % n,
                     "    s_branch L_back%d" % n])

    gbn = [0]

    def gwait_lines(off, target):
        n = gbn[0]
        gbn[0] += 1
        chk = ["    ds_read_b32 v19, v%d offset:%d" % (vCNT, off),
               "    s_waitcnt lgkmcnt(0)",
               "    v_readfirstlane_b32 s%d, v19" % sT0,
               "    s_cmp_lt_u32 s%d, %s" % (sT0, target)]
        tail.append("L_gs%d:" % n)
        tail.append("    s_mov_b32 s%d, 0x400000" % sCNT)
        tail.append("L_gb%d:" % n)
        tail.append("    s_sub_u32 s%d, s%d, 1" % (sCNT, sCNT))
        tail.append("    s_cbranch_scc1 L_gx%d" % n)
        tail.append("    s_sleep %d" % (4 if off == C_WT else 1))
        tail.extend(chk)
        tail.append("    s_cbranch_scc1 L_gb%d" % n)
        tail.append("    s_branch L_gx%d" % n)
        return chk + ["    s_cbranch_scc1 L_gs%d" % n, "L_gx%d:" % n]

    def garrive_lines(off):
        return ["    v_mov_b32 v19, 1",
                "    s_mov_b64 exec, 1",
                "    ds_add_u32 v%d, v19 offset:%d" % (vCNT, off),
                "    s_mov_b64 exec, -1"]

    def garrive(off):
        k.lines.extend(garrive_lines(off))
        k.lg.issue("arr")

    def gwait(off, target="4"):
        k.lines.extend(gwait_lines(off, target))
        k.lg.clear()

    def gpeek(off, vt):
        e("ds_read_b32 v%d, v%d offset:%d" % (vt, vCNT, off))
        k.lg.issue(("pk", off))

    def gcheck(off, vt):
        n = gbn[0]
        slow = gwait_lines(off, "4")
        k.wait_lg(("pk", off))
        e("v_readfirstlane_b32 s%d, v%d" % (sT0, vt))
        e("s_cmp_lt_u32 s%d, 4" % sT0)
        e("s_cbranch_scc1 L_gs%d" % n)
        k.lab("L_gx%d" % n)

    def flag_voff(vv, n):
        e("v_min_u32 v19, %d, v%d" % (n, vLANE))
        e("v_lshrrev_b32 v%d, 2, v19" % vv)
        e("v_lshlrev_b32 v%d, 7, v%d" % (vv, vv))
        e("v_and_b32 v19, 3, v19")
        e("v_lshl_add_u32 v%d, v19, 2, v%d" % (vv, vv))

    def xread_addr(v0_):
        e("v_lshrrev_b32 v19, 1, v%d" % vC)
        e("v_xor_b32 v19, v19, v%d" % vQ)
        e("v_lshlrev_b32 v19, 4, v19")
        e("v_lshl_add_u32 v19, v%d, 7, v19" % vC)
        e("s_lshl_b32 s%d, s%d, 12" % (sT0, sRW))
        e("v_add_u32 v%d, s%d, v19" % (v0_, sT0))
        e("v_xor_b32 v%d, 64, v%d" % (v0_ + 1, v0_))
        e("v_add_u32 v%d, 0x%x, v%d" % (v0_ + 2, LB, v0_))
        e("v_add_u32 v%d, 0x%x, v%d" % (v0_ + 3, LB, v0_ + 1))

    def xread(dst, v0_, kk, u, ks, tag):
        hi = XSLOT[kk] >= LB
        e("ds_read_b128 %s, v%d offset:%d" % (dst, v0_ + ks + (2 if hi else 0), XSLOT[kk] % 65536 + u * 2048))
        k.lg.issue(tag)

    def tag_setup():
        e("s_waitcnt lgkmcnt(0)")
        k.lg.clear()
        e("s_add_u32 s%d, s%d, 0x%x" % (sTAG, sTAG, TAGC))
        e("v_mov_b32 v%d, s%d" % (vTAG, sTAG))

    def late_setup(hf):
        e("v_lshrrev_b32 v19, 2, v%d" % vC)
        e("v_lshl_add_u32 v19, v%d, 2, v19" % vQ)
        e("v_bfe_u32 v30, v19, 1, 2")
        e("v_lshlrev_b32 v19, 7, v19")
        e("v_and_b32 v31, 1, v%d" % vC)
        e("v_lshl_add_u32 v19, v31, 3, v19")
        e("v_lshlrev_b32 v30, 1, v30")
        e("v_bfe_u32 v31, v%d, 1, 1" % vC)
        e("v_or_b32 v30, v30, v31")
        e("v_lshl_add_u32 v%d, v30, 4, v19" % vZB)
        e("v_lshrrev_b32 v19, 3, v%d" % vLANE)
        if hf:
            e("v_add_u32 v19, 8, v19")
        e("v_and_b32 v30, 7, v%d" % vLANE)
        e("v_lshlrev_b32 v%d, 15, v19" % vGO)
        e("v_lshl_add_u32 v%d, v30, 4, v%d" % (vGO, vGO))
        e("v_lshlrev_b32 v30, 1, v30")
        e("v_xor_b32 v30, v30, v19")
        e("v_lshlrev_b32 v30, 4, v30")
        e("v_lshl_add_u32 v30, v19, 8, v30")
        e("s_lshl_b32 s%d, s%d, 12" % (sT0, sRW))
        e("v_add_u32 v%d, s%d, v30" % (vR0, sT0))
        e("v_xor_b32 v%d, 16, v%d" % (vR1, vR0))
        e("v_xor_b32 v%d, v%d, v%d" % (vYW, vQ, vC))
        e("v_lshlrev_b32 v%d, 4, v%d" % (vYW, vYW))
        e("v_lshl_add_u32 v%d, v%d, 8, v%d" % (vYW, vC, vYW))
        e("s_lshl_b32 s%d, s%d, 19" % (sXO, sWP))
        e("s_lshl2_add_u32 s%d, s%d, s%d" % (sT0, sA, sRW))
        e("s_lshl_b32 s%d, s%d, 10" % (sT0, sT0))
        e("s_add_u32 s%d, s%d, s%d" % (sXO, sXO, sT0))
        e("s_lshl_b32 s%d, s%d, 7" % (sT0, sDB))
        e("s_add_u32 s%d, s%d, s%d" % (sXO, sXO, sT0))
    XV = 248

    def xe_load():
        e("buffer_load_dwordx4 %s, v%d, %s, s%d offen" % (vr(XV, 4), vGO, srd(SX), sXO))
        k.vm.issue("xe")

    e("s_cmp_ge_u32 s2, 256")
    e("s_cbranch_scc1 L_done")
    k.stamp(0)
    k.stamp(1, real=True)
    e("s_load_dwordx2 s[%d:%d], s[0:1], 0" % (SX, SX + 1))
    e("s_load_dwordx2 s[%d:%d], s[0:1], 32" % (SW1, SW1 + 1))
    e("s_load_dwordx2 s[%d:%d], s[0:1], 64" % (SWS, SWS + 1))
    e("s_load_dwordx2 s[%d:%d], s[0:1], 8" % (SWR, SWR + 1))
    e("s_load_dwordx2 s[%d:%d], s[0:1], 16" % (SWI, SWI + 1))
    e("s_load_dwordx2 s[%d:%d], s[0:1], 40" % (SW2, SW2 + 1))
    e("s_load_dwordx2 s[%d:%d], s[0:1], 48" % (SOUT, SOUT + 1))
    e("v_lshrrev_b32 v19, 6, v0")
    e("s_getpc_b64 s[%d:%d]" % (sT1, sT2))
    k.lab("L_pc")
    e("s_andn2_b32 s%d, s2, 7" % sT0)
    e("v_add_lshl_u32 v20, v19, s%d, 7" % sT0)
    e("v_min_u32 v20, L_end-L_pc-4, v20")
    e("v_mov_b32 v21, s%d" % sT2)
    e("v_add_co_u32 v20, vcc, s%d, v20" % sT1)
    e("v_readfirstlane_b32 s%d, v19" % sHF)
    e("v_and_b32 v%d, 63, v0" % vLANE)
    e("v_addc_co_u32 v21, vcc, 0, v21, vcc")
    e("global_load_dword v247, v[20:21], off")
    k.vm.issue("touch")
    for s_, nb in ((SX, X_BYTES), (SWR, W_BYTES), (SWI, W_BYTES), (SW1, W1_BYTES), (SW2, W1_BYTES), (SOUT, X_BYTES), (SWS, WS_BYTES)):
        e("s_mov_b32 s%d, 0x%x" % (s_ + 2, nb))
        e("s_mov_b32 s%d, 0x00020000" % (s_ + 3))
    e("v_and_b32 v%d, 15, v0" % vC)
    e("v_bfe_u32 v%d, v0, 4, 2" % vQ)
    e("v_lshlrev_b32 v%d, 4, v%d" % (vL16, vLANE))
    e("v_mov_b32 v%d, 0x%x" % (vCNT, L_CNT))
    e("s_and_b32 s%d, s2, 7" % sA)
    e("s_lshr_b32 s%d, s2, 6" % sWP)
    e("s_bfe_u32 s%d, s2, 0x30003" % sDB)
    e("s_and_b32 s%d, s%d, 3" % (sRW, sHF))
    e("s_lshr_b32 s%d, s%d, 1" % (sPB, sA))
    e("s_lshl2_add_u32 s%d, s%d, s%d" % (sPB, sPB, sWP))
    e("s_and_b32 s%d, s%d, 1" % (sT0, sA))
    e("s_lshl3_add_u32 s%d, s%d, s%d" % (sCBK, sT0, sDB))
    e("s_lshl1_add_u32 s%d, s%d, s%d" % (sR, sWP, sDB))
    if P("ROT", 7) == 44:
        e("s_add_u32 s%d, s%d, s%d" % (sR, sWP, sDB))
        e("s_and_b32 s%d, s%d, 1" % (sR, sR))
        e("s_lshl_b32 s%d, s%d, 2" % (sR, sR))
    elif P("ROT", 7) == 66:
        e("s_add_u32 s%d, s%d, s%d" % (sR, sWP, sDB))
        e("s_and_b32 s%d, s%d, 3" % (sR, sR))
        e("s_lshl_b32 s%d, s%d, 1" % (sR, sR))
    else:
        e("s_and_b32 s%d, s%d, %d" % (sR, sR, P("ROT", 7)))
    e("s_lshl2_add_u32 s%d, s%d, s%d" % (sRS, sPB, sRW))
    e("s_lshr_b32 s%d, s%d, 1" % (sA, sPB))
    e("s_and_b32 s%d, s%d, 1" % (sT3, sPB))
    e("s_lshl1_add_u32 s%d, s%d, s%d" % (sWP, sT3, sT0))
    e("s_lshr_b32 s%d, s%d, 2" % (sHF, sHF))
    e("s_cbranch_scc1 L_fft")
    q_vm = list(k.vm.q)

    sXB, sM4, sM2, sHS, sFH, sHB, sFHC, sW2B = 48, 57, 58, 59, 60, 61, 62, 63
    TV = [50, 51, 52, 53, 54, 55, 56]
    sRSW, sCG, sRB = sPB, sHF, sCBK
    e("s_lshl_b32 s%d, s%d, 20" % (sXB, sT3))
    e("s_lshl2_add_u32 s%d, s%d, s%d" % (sT1, sA, sRW))
    e("s_lshl_b32 s%d, s%d, 10" % (sT1, sT1))
    e("s_add_u32 s%d, s%d, s%d" % (sXB, sXB, sT1))
    e("v_lshrrev_b32 v10, 3, v%d" % vLANE)
    e("v_and_b32 v12, 7, v%d" % vLANE)
    e("v_xor_b32 v6, v12, v%d" % vQ)
    e("v_lshlrev_b32 v6, 4, v6")
    e("v_lshl_add_u32 v6, v10, 15, v6")
    e("v_xor_b32 v7, 64, v6")
    e("v_add_u32 v7, 0x40000, v7")
    e("s_lshl_b32 s%d, s%d, 12" % (sM4, sRW))
    e("s_lshl_b32 s%d, s%d, 11" % (sM2, sRW))
    e("s_sub_u32 s%d, s%d, s%d" % (sF0, sCBK, sT0))
    e("s_lshl_b32 s%d, s%d, 8" % (sF0, sF0))
    e("s_cmp_eq_u32 s%d, 7" % sDB)
    e("s_cselect_b32 s%d, 0x%x, s%d" % (sF0, 0x08000000, sF0))
    e("s_waitcnt lgkmcnt(0)")
    e("s_load_dword s%d, s[%d:%d], 0x%x" % (sTAG, SWS, SWS + 1, EPOCH_OFF))

    def xdma(kk):
        def item(ee):
            def f():
                e("s_add_u32 m0, s%d, %d" % (sM4, XSLOT[kk] + ee * 1024))
                if ee == 0:
                    e("s_add_u32 s%d, s%d, %d" % (sXT, sR, kk))
                    e("s_and_b32 s%d, s%d, 7" % (sXT, sXT))
                    e("s_lshl_b32 s%d, s%d, 7" % (sXT, sXT))
                    e("s_add_u32 s%d, s%d, s%d" % (sXT, sXT, sXB))
                elif ee == 2:
                    e("s_add_u32 s%d, s%d, 0x80000" % (sXT, sXT))
                else:
                    k.nop(1)
                e("buffer_load_dwordx4 v%d, %s, s%d offen lds" % (6 + (ee & 1), srd(SX), sXT))
                k.vm.issue(("X", kk))
            return f
        return [item(ee) for ee in range(4)]

    def w1dma(reg, kk):
        off = " offset:128" if reg else ""
        lb = (LA - 128 if reg else LB) + kk * 8192

        def f0():
            e("s_add_u32 s%d, s%d, %d" % (sDT, sR, kk))
            e("s_and_b32 s%d, s%d, 7" % (sDT, sDT))
            e("s_mul_i32 s%d, s%d, %d" % (sDT, sDT, 64 * 3584))
            e("s_add_u32 m0, s%d, %d" % (sM2, lb + 128))
            e("s_add_u32 s%d, s%d, s%d" % (sDT, sDT, sF0))
            if reg:
                e("s_add_u32 s%d, s%d, 128" % (sDT, sDT))
            else:
                e("s_add_u32 m0, s%d, %d" % (sM2, lb))
                k.nop(1)
            e("buffer_load_dwordx4 v8, %s, s%d offen lds" % (srd(SW1), sDT))
            k.vm.issue(("W1", reg, kk))

        def f1():
            e("s_add_u32 m0, s%d, %d" % (sM2, (LA if reg else LB) + kk * 8192 + 1024))
            k.nop(1)
            e("buffer_load_dwordx4 v9, %s, s%d offen lds" % (srd(SW1), sDT))
            k.vm.issue(("W1", reg, kk))
        return [f0, f1]

    def mtouch(sr_):
        e("s_lshl2_add_u32 s%d, s2, s%d" % (sT0, sRW))
        e("s_mul_i32 s%d, s%d, %d" % (sT0, sT0, 14 * 128))
        e("v_lshlrev_b32 v19, 7, v%d" % vLANE)
        e("s_mov_b32 m0, 0x%x" % L_DUM)
        e("s_mov_b64 exec, 0x3fff")
        e("buffer_load_dword v19, %s, s%d offen lds" % (srd(sr_), sT0))
        k.vm.issue("touch")
        e("s_mov_b64 exec, -1")
    T1P, T2P = P("T1P", 1), P("T2P", 4)

    def touches(pos):
        if T1P == pos:
            mtouch(SW1)
        if T2P == pos:
            mtouch(SW2)
    run(xdma(0))
    touches(0)
    run(xdma(1))
    touches(1)
    k.stamp(2)
    e("s_lshl_b32 s%d, s%d, 4" % (sT0, sRW))
    e("v_add_u32 v11, s%d, v10" % sT0)
    e("v_mul_u32_u24 v11, 3584, v11")
    e("v_and_b32 v13, 1, v%d" % vQ)
    e("v_lshlrev_b32 v13, 1, v13")
    e("v_xor_b32 v13, v13, v12")
    e("v_lshl_add_u32 v8, v13, 4, v11")
    e("v_xor_b32 v13, 4, v13")
    e("v_lshl_add_u32 v9, v13, 4, v11")
    e("v_add_u32 v9, %d, v9" % (8 * 3584))
    vWS, vWW, vWR, vD2 = 15, 14, 13, 24
    e("v_lshlrev_b32 v15, 13, v10")
    e("v_lshl_add_u32 v15, v12, 4, v15")
    e("s_lshl_b32 s%d, s%d, 1" % (sT0, sRW))
    e("v_xor_b32 v14, s%d, v12" % sT0)
    e("v_lshlrev_b32 v14, 4, v14")
    e("v_lshl_add_u32 v14, v%d, 7, v14" % vLANE)
    e("v_add_u32 v14, 0x%x, v14" % L_WT)
    e("v_xor_b32 v13, v10, v12")
    e("v_lshlrev_b32 v13, 4, v13")
    e("v_lshl_add_u32 v13, v10, 7, v13")
    e("s_add_u32 s%d, s%d, 0x%x" % (sT0, sM2, L_WT))
    e("v_add_u32 v13, s%d, v13" % sT0)
    e("v_lshlrev_b32 v19, 1, v%d" % vQ)
    e("v_xor_b32 v19, v19, v12")
    e("v_lshlrev_b32 v19, 4, v19")
    e("v_lshl_add_u32 v%d, v10, 10, v19" % vD2)
    xread_addr(26)
    e("v_mov_b32 v19, 0")
    e("v_lshl_add_u32 v30, v%d, 2, v%d" % (vC, vCNT))
    e("ds_write_b32 v30, v19")
    XF, AF, ACC, HO, CS, ONES = 128, 32, 64, 32, 112, 116
    TRB = [16, 17, 18, 20]
    e("v_lshrrev_b32 v19, 2, v%d" % vC)
    e("v_lshl_add_u32 v30, v%d, 3, v19" % vQ)
    e("v_lshlrev_b32 v30, 7, v30")
    e("v_and_b32 v31, 1, v%d" % vC)
    e("v_lshl_add_u32 v30, v31, 3, v30")
    e("v_bfe_u32 v19, v%d, 3, 1" % vC)
    e("v_and_b32 v31, 1, v%d" % vQ)
    e("v_lshl_or_b32 v19, v31, 1, v19")
    e("v_lshlrev_b32 v19, 1, v19")
    e("v_bfe_u32 v31, v%d, 1, 1" % vC)
    e("v_or_b32 v19, v19, v31")
    e("v_lshl_add_u32 v30, v19, 4, v30")
    e("v_add_u32 v30, 0x%x, v30" % LB)
    for l in range(4):
        e("v_xor_b32 v%d, %d, v30" % (TRB[l], 32 * l))
    vCSA, RN, C1 = 99, 120, [108, 112, 116, 124]
    TR2 = [100, 101, 102, 103]
    HV = [104, 105, 106, 107]
    vFH = 106
    def setup_a():
        e("v_lshlrev_b32 v%d, 4, v%d" % (vCSA, vQ))
        e("v_add_u32 v%d, 0x%x, v%d" % (vCSA, L_CS, vCSA))
        e("s_lshl_b32 s%d, s%d, 9" % (sT0, sRW))
        e("s_add_u32 s%d, s%d, 0x%x" % (sT0, sT0, L_ST))
        e("v_lshl_add_u32 v96, v%d, 2, s%d" % (vC, sT0))
        e("s_mul_i32 s%d, s%d, %d" % (sHB, sRS, 2 * 56 * 1024))
        e("s_add_u32 s%d, s%d, 0x%x" % (sHB, sHB, H_OFF))
        e("s_lshl4_add_u32 s%d, s%d, s%d" % (sHS, sF0, sHB))
        e("s_and_b32 s%d, s2, 1" % sT2)
        e("s_lshl1_add_u32 s%d, s%d, s%d" % (sFHC, sPB, sT2))
        e("s_lshl2_add_u32 s%d, s%d, s%d" % (sFHC, sFHC, sRW))
        e("s_lshl_b32 s%d, s%d, 7" % (sFHC, sFHC))
        e("s_add_u32 s%d, s%d, 0x%x" % (sFHC, sFHC, FH_OFF))
        e("s_lshl2_add_u32 s%d, s%d, s%d" % (sFH, sDB, sFHC))
        e("s_mul_i32 s%d, s%d, 7" % (sT0, sT2))
        e("s_lshr_b32 s%d, s2, 6" % sT1)
        e("s_lshl1_add_u32 s%d, s%d, s%d" % (sT1, sT1, sDB))
        e("s_and_b32 s%d, s%d, 7" % (sT1, sT1))
        e("s_cmp_eq_u32 s%d, 7" % sT1)
        e("s_cselect_b32 s%d, 0, s%d" % (sT1, sT1))
        for i in range(7):
            e("s_add_u32 s%d, s%d, s%d" % (TV[i], sT1, sT0))
            if i < 6:
                e("s_add_u32 s%d, s%d, 1" % (sT1, sT1))
                e("s_cmp_eq_u32 s%d, 7" % sT1)
                e("s_cselect_b32 s%d, 0, s%d" % (sT1, sT1))
        e("s_lshl_b32 s%d, s%d, 7" % (sW2B, sDB))
        e("s_lshl_b32 s%d, s%d, 14" % (sT0, sRW))
        e("s_add_u32 s%d, s%d, s%d" % (sW2B, sW2B, sT0))
        e("s_mul_i32 s%d, s%d, %d" % (sT0, sT2, 56 * 1024))
        e("v_add_u32 v%d, s%d, v%d" % (HV[0], sT0, vL16))
        e("s_sub_u32 s%d, %d, s%d" % (sT0, 56 * 1024, sT0))
        e("v_add_u32 v%d, s%d, v%d" % (HV[1], sT0, vL16))
        e("v_min_u32 v19, 6, v%d" % vLANE)
        e("v_lshlrev_b32 v%d, 2, v19" % vFH)
        late_setup(0)
        e("v_add_u32 v30, 0x%x, v%d" % (LB, vZB))
        for l in range(4):
            e("v_xor_b32 v%d, %d, v30" % (TR2[l], 32 * l))

    setup_a()
    run(xdma(2))
    run(xdma(3))
    touches(2)
    tag_setup()
    k.stamp(3)

    def X(u, T):
        return vr(XF + (T * 2 + u) * 4, 4)

    WR16 = 64

    def wloads():
        items = []

        def head():
            e("s_lshr_b32 s%d, s2, 5" % sRSW)
            e("s_and_b32 s%d, s2, 7" % sT1)
            e("s_lshl3_add_u32 s%d, s%d, s%d" % (sRSW, sT1, sRSW))
            e("s_and_b32 s%d, s%d, 3" % (sCG, sDB))
            e("s_lshr_b32 s%d, s%d, 4" % (sT1, sRSW))
            e("s_lshl_b32 s%d, s%d, 4" % (sT1, sT1))
            e("s_lshl1_add_u32 s%d, s%d, s%d" % (sT1, sRW, sT1))
            e("s_and_b32 s%d, s%d, 1" % (sT2, sRSW))
            e("s_lshl3_add_u32 s%d, s%d, s%d" % (sT1, sT2, sT1))
            e("s_bfe_u32 s%d, s%d, 0x30001" % (sT2, sRSW))
            e("s_lshl_b32 s%d, s%d, 8" % (sT2, sT2))
            e("s_add_u32 s%d, s%d, s%d" % (sT1, sT1, sT2))
            e("s_mul_i32 s%d, s%d, 514" % (sT1, sT1))
            e("s_lshl_b32 s%d, s%d, 7" % (sT4, sCG))
            e("s_add_u32 s%d, s%d, s%d" % (sT4, sT4, sT1))
            e("v_lshlrev_b32 v11, 1, v%d" % vLANE)
            e("v_and_b32 v19, 3, v%d" % vLANE)
            e("v_mul_u32_u24 v19, 32896, v19")
            e("v_bfe_u32 v30, v%d, 2, 1" % vLANE)
            e("v_mul_u32_u24 v30, 514, v30")
            e("v_add_u32 v19, v19, v30")
            e("s_cmp_eq_u32 s%d, 3" % sCG)
            e("s_cselect_b32 s%d, s%d, 0x%x" % (sT1, sT1, OOB))
            e("buffer_load_ushort v120, v19, %s, s%d offen offset:512" % (srd(SWR), sT1))
            k.vm.issue("wg")
            e("buffer_load_ushort v121, v19, %s, s%d offen offset:512" % (srd(SWI), sT1))
            k.vm.issue("wg")
        items.append(head)
        nt = " nt" if P("NTW", 1) else ""
        for r in range(4):
            def f(r=r):
                if r:
                    e("s_add_u32 s%d, s%d, 32896" % (sT4, sT4))
                for cb in range(2):
                    for arr, sr_ in ((0, SWR), (1, SWI)):
                        e("buffer_load_ushort v%d, v11, %s, s%d offen offset:%d%s" % (WR16 + 8 * cb + 4 * arr + r, srd(sr_), sT4, 514 * cb, nt))
                        k.vm.issue("wg")
            items.append(f)
        return items

    def wt_a():
        k.wait_vm("wg")
        for cb in range(2):
            for r in range(4):
                e("v_lshl_or_b32 v%d, v%d, 16, v%d" % (WR16 + 8 * cb + r, WR16 + 8 * cb + 4 + r, WR16 + 8 * cb + r))
        e("v_lshl_or_b32 v120, v121, 16, v120")
        e("ds_write_b128 v%d, %s" % (vWW, vr(WR16, 4)))
        k.lg.issue("wtw")
        e("v_xor_b32 v19, 16, v%d" % vWW)
        e("ds_write_b128 v19, %s" % vr(WR16 + 8, 4))
        k.lg.issue("wtw")
        e("s_lshl_b32 s%d, s%d, 5" % (sT0, sRW))
        e("s_add_u32 s%d, s%d, 0x%x" % (sT0, sT0, L_W256))
        e("v_lshl_add_u32 v19, v%d, 2, s%d" % (vLANE, sT0))
        e("s_mov_b64 exec, 0xff")
        e("ds_write_b32 v19, v120")
        k.lg.issue("wtw")
        e("s_mov_b64 exec, -1")

    def wt_b():
        for h in range(2):
            e("ds_read_b128 %s, v%d offset:%d" % (vr(WR16 + 4 * h, 4), vWR, 1024 * h))
            k.lg.issue("wtr")
        e("v_add_u32 v19, 0x%x, v%d" % (L_W256, vL16))
        e("ds_read_b128 %s, v19" % vr(WR16 + 8, 4))
        k.lg.issue("wtr")

    def wt_c():
        k.wait_lg("wtr")
        e("s_lshl2_add_u32 s%d, s%d, s%d" % (sT2, sCG, sRW))
        e("s_lshl_b32 s%d, s%d, 17" % (sT0, sT2))
        e("s_lshl_b32 s%d, s%d, 7" % (sT1, sRSW))
        e("s_add_u32 s%d, s%d, s%d" % (sT0, sT0, sT1))
        e("s_add_u32 s%d, s%d, 0x%x" % (sT0, sT0, WT_OFF))
        e("buffer_store_dwordx4 %s, v%d, %s, s%d offen sc1" % (vr(WR16, 4), vWS, srd(SWS), sT0))
        k.vm.issue("wtst")
        e("s_add_u32 s%d, s%d, 0x10000" % (sT0, sT0))
        e("buffer_store_dwordx4 %s, v%d, %s, s%d offen sc1" % (vr(WR16 + 4, 4), vWS, srd(SWS), sT0))
        k.vm.issue("wtst")
        e("s_add_u32 s%d, s%d, 0x%x" % (sT1, sT1, WT_OFF + 256 * 8192))
        e("s_cmp_eq_u32 s%d, 12" % sT2)
        e("s_cselect_b32 s%d, s%d, 0x%x" % (sT1, sT1, OOB))
        e("s_mov_b64 exec, 0xff")
        e("buffer_store_dwordx4 %s, v%d, %s, s%d offen sc1" % (vr(WR16 + 8, 4), vL16, srd(SWS), sT1))
        k.vm.issue("wtst")
        e("s_mov_b64 exec, -1")

    def wt_d():
        e("s_lshl2_add_u32 s%d, s%d, s%d" % (sT2, sCG, sRW))
        e("s_lshr_b32 s%d, s%d, 2" % (sT1, sRSW))
        e("s_lshl4_add_u32 s%d, s%d, s%d" % (sT0, sT2, sT1))
        e("s_lshl_b32 s%d, s%d, 7" % (sT0, sT0))
        e("s_and_b32 s%d, s%d, 3" % (sT1, sRSW))
        e("s_lshl2_add_u32 s%d, s%d, s%d" % (sT0, sT1, sT0))
        e("s_add_u32 s%d, s%d, 0x%x" % (sT0, sT0, FW_OFF))
        e("s_add_u32 s%d, s%d, 0x%x" % (sT1, sT0, 4 * 2048))
        e("s_cmp_eq_u32 s%d, 12" % sT2)
        e("s_cselect_b32 s%d, s%d, 0x%x" % (sT1, sT1, OOB))
        k.wait_vm("wtst")
        publish("s%d" % sT0)
        publish("s%d" % sT1)
        e("s_mov_b32 s%d, 0" % sHF)

    def xstage(s_):
        for kk in (2 * s_, 2 * s_ + 1):
            for u in range(2):
                for ks in range(2):
                    xread(X(u, 2 * kk + ks), 26, kk, u, ks, ("XR", s_))
    WPOS = P("WPOS", -1)
    if WPOS < 0:
        run(wloads())
    for s_ in range(4):
        k.wait_vm(("X", 2 * s_ + 1))
        if s_:
            k.wait_lg([("XR", s_ - 1)] + (["wtw"] if s_ == WPOS + 3 else []))
        e("s_barrier")
        fs(6, 2 + s_)
        xstage(s_)
        if s_ == WPOS + 3:
            wt_b()
        if s_ < 2:
            run(xdma(4 + 2 * s_) + xdma(5 + 2 * s_))
        WAS = [int(x_) for x_ in os.environ.get("WAS", "0,0,4,8").split(",")]
        for kk in range(WAS[s_ - 1] if s_ else 0, WAS[s_]):
            run(w1dma(0, kk))
        if s_ == WPOS:
            run(wloads())
        touches(3 + s_)
        if s_ == WPOS + 2:
            wt_a()
        if s_ == WPOS + 3:
            wt_c()
    k.wait_vm([("W1", 0, kk) for kk in range(4)])
    k.wait_lg(("XR", 3))
    e("s_barrier")
    k.stamp(4)
    fs(6, 6)


    def rdA(reg, T):
        items = []
        for l in range(4):
            for hh in range(2):
                def f(l=l, hh=hh):
                    e("ds_read_b64_tr_b16 %s, v%d offset:%d" % (vr(AF + (T & 1) * 16 + 4 * l + 2 * hh, 2), TRB[l], T * 4096 + hh * 512))
                    k.lg.issue(("A", reg, T))
                items.append(f)
        return items

    def gpass(reg, hooks, mid):
        fs(8 + reg, 2)
        run(rdA(reg, 0))
        for T in range(16):
            k.wait_lg(("A", reg, T))
            if T == 7:
                gcheck(mid, 107)
            if T == 6:
                gpeek(mid, 107)
            if T == 14:
                gpeek(C_FB if reg else C_FA, 107)
            if T == 15 and reg == 0:
                gpeek(C_WB1, 97)
            if T == 0 and reg == 1:
                gpeek(C_CSA, 98)
            if T + 1 < 16:
                sch["lds"].extend(rdA(reg, T + 1))
            for l in range(4):
                a = vr(AF + (T & 1) * 16 + 4 * l, 4)
                for u in range(2):
                    c = vr(ACC + (l * 2 + u) * 4, 4)
                    mf(c, a, X(u, T), c if T else "0")
            flush_lds()
            run(hooks.get(T, []))
            if T < 11:
                fs(8 + reg, 3 + T)
        flush_side()

    def c1_fetch(reg):
        def f():
            gcheck(C_FB if reg else C_FA, 107)
            if reg == 0:
                for u in range(2):
                    e("ds_read2_b32 %s, v96 offset0:%d offset1:%d" % (vr(RN + 2 * u, 2), 32 + 16 * u, 16 * u))
                    k.lg.issue(("C1", reg))
            for l in range(4):
                e("ds_read_b128 %s, v%d offset:%d" % (vr(C1[l], 4), vCSA, 256 * reg + 64 * l))
                k.lg.issue(("C1", reg))
        return f

    def h_out(reg, cw, tag):
        garrive(cw)
        e("s_add_u32 s%d, s%d, %d" % (sT2, sHS, 2048 * reg))
        e("s_add_u32 s%d, s%d, %d" % (sT3, sHS, 2048 * reg + 56 * 1024))
        k.wait_lg(("C1", reg))
        for pr in range(2):
            for u in range(2):
                o = HO + (pr * 2 + u) * 4
                for l in (2 * pr, 2 * pr + 1):
                    a = ACC + (l * 2 + u) * 4
                    for r in (0, 2):
                        e("v_pk_fma_f32 %s, %s, %s, %s op_sel_hi:[1,0,1]" % (vr(a + r, 2), vr(C1[l] + r, 2), vr(RN + 2 * u, 2), vr(a + r, 2)))
                for l in (2 * pr, 2 * pr + 1):
                    a = ACC + (l * 2 + u) * 4
                    e("v_cvt_pk_bf16_f32 v%d, v%d, v%d" % (o + (l & 1) * 2, a, a + 1))
                    e("v_cvt_pk_bf16_f32 v%d, v%d, v%d" % (o + (l & 1) * 2 + 1, a + 2, a + 3))
                for i in range(4):
                    e("v_pk_max_i16 v%d, v%d, 0" % (o + i, o + i))
                e("buffer_store_dwordx4 %s, v%d, %s, s%d offen offset:%d sc1" % (vr(o, 4), vL16, srd(SWS), sT2 + u, 1024 * pr))
                k.vm.issue(tag)

    def land(reg, lo, hi, cw):
        def f():
            k.wait_vm([("W1", reg, kk) for kk in range(lo, hi)])
            garrive(cw)
        return f

    sch["gap"] = P("GAPA", 4)
    for kk in range(8):
        side.extend(w1dma(1, kk))
    ha = {3: [land(0, 4, 8, C_WA2)], 11: [land(1, 0, 4, C_WB1)], P("WTD", 2): [wt_d], 13: [land(1, 4, 8, C_WB2)], 14: [c1_fetch(0)]}
    gpass(0, ha, C_WA2)
    k.stamp(5)
    h_out(0, C_CSA, "ha")
    k.stamp(6)

    for l in range(4):
        e("v_subrev_u32 v%d, 0x%x, v%d" % (TRB[l], LB, TRB[l]))
    gcheck(C_WB1, 97)

    def w2_dma(late, j):
        lb = (LA if late else LB) + j * 8192

        def f0():
            e("s_add_u32 m0, s%d, %d" % (sM2, lb))
            e("s_lshl_b32 s%d, s%d, 17" % (sDT, TV[j]))
            e("s_add_u32 s%d, s%d, s%d" % (sDT, sDT, sW2B))
            if late:
                e("s_add_u32 s%d, s%d, 0x10000" % (sDT, sDT))
            e("buffer_load_dwordx4 v%d, %s, s%d offen lds" % (vD2, srd(SW2), sDT))
            k.vm.issue(("W2", late))

        def f1():
            e("s_add_u32 m0, s%d, %d" % (sM2, lb + 1024))
            e("s_add_u32 s%d, s%d, 8192" % (sDT, sDT))
            e("buffer_load_dwordx4 v%d, %s, s%d offen lds" % (vD2, srd(SW2), sDT))
            k.vm.issue(("W2", late))
        return [f0, f1]

    def rdW(n):
        items = []
        for l in range(4):
            for hh in range(2):
                def f(l=l, hh=hh):
                    e("ds_read_b64_tr_b16 %s, v%d offset:%d" % (vr(AF + (n & 1) * 16 + 4 * l + 2 * hh, 2), TR2[l], (n % 14) * 4096 + hh * 2048))
                    k.lg.issue(("W2R", n))
                items.append(f)
        return items

    def hload(n):
        late, m = n // 14, n % 14

        def item(u):
            def f():
                if u == 0 and m % 2 == 0:
                    e("s_lshl_b32 s%d, s%d, 12" % (sXT, TV[m // 2]))
                    e("s_add_u32 s%d, s%d, s%d" % (sXT, sXT, sHB))
                e("buffer_load_dwordx4 %s, v%d, %s, s%d offen offset:%d sc1" % (X(u, m), HV[u], srd(SWS), sXT, 2048 * late + 1024 * (m & 1)))
                k.vm.issue(("H", n))
            return f
        return [item(0), item(1)]

    def pubHA():
        k.wait_vm("ha")
        publish("s%d" % sFH)
        e("s_add_u32 s%d, s%d, 0x%x" % (sFH, sFH, FHB_D))

    def landW(late, cw):
        def f():
            k.wait_vm(("W2", late))
            garrive(cw)
        return f
    hb = {T: [] for T in range(16)}
    hb[P("W2T0", 0)].append(lambda: gcheck(C_CSA, 98))
    hb[P("W2T0", 0)].append(lambda: [side.extend(w2_dma(0, j)) for j in range(7)])
    hb[14].append(c1_fetch(1))
    hb[P("PHA", 3)].append(pubHA)
    HLA = P("HLA", 6)
    HE = P("HE", 16)
    hb[min(HE - 2, P("PPA", 12))].append(lambda: poll_issue("ph", vFH, "s%d" % sFHC, 31))
    if HE < 16:
        def hearly():
            poll_check("ph", vFH, "s%d" % sFHC, 31)
            for n in range(HLA):
                side.extend(hload(n))
            sch["gap"] = 2
        hb[HE].append(hearly)

    def w2touch():
        e("s_lshr_b32 s%d, s2, 6" % sT0)
        e("s_lshl2_add_u32 s%d, s%d, s%d" % (sT0, sT0, sRW))
        e("s_mul_i32 s%d, s%d, 28" % (sT0, sT0))
        e("v_add_u32 v19, s%d, v%d" % (sT0, vLANE))
        e("v_and_b32 v30, 0xffc0, v19")
        e("v_add3_u32 v19, v19, v30, 64")
        e("v_lshlrev_b32 v19, 10, v19")
        e("s_and_b32 s%d, s2, 1" % sT0)
        e("s_mul_i32 s%d, s%d, %d" % (sT0, sT0, 896 * 1024))
        e("s_lshl_b32 s%d, s%d, 7" % (sT1, sDB))
        e("s_add_u32 s%d, s%d, s%d" % (sT0, sT0, sT1))
        e("s_mov_b32 m0, 0x%x" % L_DUM)
        e("s_mov_b64 exec, 0xfffffff")
        e("buffer_load_dword v19, %s, s%d offen lds" % (srd(SW2), sT0))
        k.vm.issue("touch")
        e("s_mov_b64 exec, -1")
    if P("W2L", 8) < 16:
        hb[P("W2L", 8)].append(w2touch)
    hb[P("LE1", 13)].append(landW(0, C_E1))
    sch["gap"] = P("GAPB", 4)
    gpass(1, hb, C_WB2)
    k.stamp(7)
    fs(10, 2)
    if HE == 16:
        poll_check("ph", vFH, "s%d" % sFHC, 31)
        fs(10, 3)
        for n in range(HLA):
            run(hload(n))
    fs(10, 4)
    gpeek(C_E1, 97)
    h_out(1, C_CSB, "hb")
    fs(10, 5)
    if HE == 17:
        poll_check("ph", vFH, "s%d" % sFHC, 31, pre=["    s_waitcnt vmcnt(0)"] + publish_lines("s%d" % sFH))
        for n in range(HLA):
            run(hload(n))
    k.stamp(8)
    gcheck(C_E1, 97)
    run(rdW(0))
    gpeek(C_CSB, 98)
    sch["gap"] = P("GAP3", 2)
    fs(7, 2)
    fs(10, 6)
    LCH = 14 - P("LLA", 2)
    nxt = HLA
    wl = [it for j in range(7) for it in w2_dma(1, j)]
    for n in range(28):
        k.wait_lg(("W2R", n))
        if n == LCH:
            poll_check("phb", vFH, "s%d" % sFHC, 31)
        lim = 14 if n < LCH else 28
        cnt = 0
        while nxt < min(lim, n + 1 + HLA) and nxt - 14 < n and cnt < 2:
            side.extend(hload(nxt))
            nxt += 1
            cnt += 1
        if n == 0:
            gcheck(C_CSB, 98)
        if wl:
            side.extend(wl[:2])
            wl = wl[2:]
        k.wait_vm(("H", n))
        if n == P("PHB", 3):
            k.wait_vm("hb")
            publish("s%d" % sFH)
        if n == LCH - P("PPB", 2):
            e("s_add_u32 s%d, s%d, 0x%x" % (sFHC, sFHC, FHB_D))
            poll_issue("phb", vFH, "s%d" % sFHC, 31)
        if n == 10:
            landW(1, C_L1)()
        if n == 12:
            gpeek(C_L1, 107)
        if n == P("ZGO", 18):
            garrive(C_WT)
        if n == 13:
            for l in range(4):
                e("v_subrev_u32 v%d, 0x%x, v%d" % (TR2[l], LB, TR2[l]))
            gcheck(C_L1, 107)
        if n in (20, 21):
            for i in range(4):
                e("v_mov_b32 v%d, v%d" % (128 + 8 * (n - 20) + 2 * i + 1, vTAG))
        if n + 1 < 28:
            sch["lds"].extend(rdW(n + 1))
        for l in range(4):
            a = vr(AF + (n & 1) * 16 + 4 * l, 4)
            for u in range(2):
                c = vr(ACC + (u * 4 + l) * 4, 4)
                mf(c, a, X(u, n % 14), c if n else "0")
        flush_side()
        if n % 3 == 2:
            fs(7, 3 + n // 3)
        if n < 7:
            fs(10, 7 + n)
        if 5 <= n < 17:
            fs(11, n - 3)
        if n == 13:
            k.stamp(9)
    k.stamp(10)
    e("s_lshl2_add_u32 s%d, s2, s%d" % (sT1, sRW))
    e("s_lshl_b32 s%d, s%d, 12" % (sT1, sT1))
    e("s_add_u32 s%d, s%d, 0x%x" % (sT1, sT1, YX_OFF))
    k.nop(1)
    fs(12, 2)
    garrive(C_GY)
    for i in range(4):
        e("v_cvt_pk_bf16_f32 v%d, v%d, v%d" % (128 + 4 * i, ACC + 16 + 4 * i, ACC + 17 + 4 * i))
        e("v_cvt_pk_bf16_f32 v%d, v%d, v%d" % (128 + 4 * i + 2, ACC + 18 + 4 * i, ACC + 19 + 4 * i))
        e("buffer_store_dwordx4 %s, v%d, %s, s%d offen offset:%d sc1" % (vr(128 + 4 * i, 4), vL16, srd(SWS), sT1 + (i >> 2), 1024 * (i & 3)))
        k.vm.issue("yst")
    xe_load()
    e("s_xor_b32 s%d, s%d, 0x4000" % (sT1, sT1))
    e("s_lshl_b32 s%d, s%d, 12" % (sT4, sRW))
    e("v_add_u32 v10, s%d, v%d" % (sT4, vYW))
    for dt in range(1, 4):
        e("v_xor_b32 v%d, %d, v10" % (10 + dt, 64 * dt))
    fs(12, 3)
    gwait(C_GY)
    fs(12, 4)
    if P("YW", 1):
        k.wait_vm("yst")
    fs(12, 5)
    YR = 160
    e("s_mov_b32 s%d, 0" % sCNT)
    k.lab("L_yx")
    for i in range(4):
        e("buffer_load_dwordx4 %s, v%d, %s, s%d offen offset:%d sc1" % (vr(YR + 4 * i, 4), vL16, srd(SWS), sT1 + (i >> 2), 1024 * (i & 3)))
    e("s_waitcnt vmcnt(0)")
    k.vm.clear()
    e("v_min3_u32 v30, v%d, v%d, v%d" % (YR + 1, YR + 3, vTAG))
    e("v_max3_u32 v31, v%d, v%d, v%d" % (YR + 1, YR + 3, vTAG))
    for i in range(1, 4):
        e("v_min3_u32 v30, v%d, v%d, v30" % (YR + 4 * i + 1, YR + 4 * i + 3))
        e("v_max3_u32 v31, v%d, v%d, v31" % (YR + 4 * i + 1, YR + 4 * i + 3))
    e("v_cmp_ne_u32 vcc, v30, v31")
    e("s_cmp_lg_u64 vcc, 0")
    e("s_cbranch_scc1 L_yxs")
    k.lab("L_yxb")
    fs(12, 6)
    tail.extend(["L_yxs:", "    s_add_u32 s%d, s%d, 1" % (sCNT, sCNT), "    s_cmp_lt_u32 s%d, 0x40000" % sCNT,
                 "    s_cbranch_scc0 L_yxb", "    s_sleep 6", "    s_branch L_yx"])
    k.stamp(11)
    e("s_bitcmp1_b32 s2, 0")
    e("s_cselect_b64 vcc, -1, 0")
    e("v_cndmask_b32 v%d, v%d, v%d, vcc" % (RN, RN + 1, RN + 3))
    for i in range(8):
        e("v_and_b32 v%d, 0xffff0000, v%d" % (YR + 2 * i + 1, YR + 2 * i))
        e("v_lshlrev_b32 v%d, 16, v%d" % (YR + 2 * i, YR + 2 * i))
    for i in range(8):
        e("v_pk_add_f32 %s, %s, %s" % (vr(ACC + 2 * i, 2), vr(ACC + 2 * i, 2), vr(YR + 2 * i, 2)))
    for i in range(8):
        e("v_pk_mul_f32 %s, %s, %s op_sel_hi:[1,0]" % (vr(ACC + 2 * i, 2), vr(ACC + 2 * i, 2), vr(RN, 2)))
    for dt in range(4):
        e("ds_write_b128 v%d, %s" % (10 + dt, vr(ACC + 4 * dt, 4)))
    k.lab("L_final")
    main_lines = k.lines

    k.lines = []
    k.vm.q, k.lg.q = list(q_vm), []
    k.lab("L_fft")
    sCC, sPL, sZR, sZI, sSC, sFXC, sGB, sFX = 48, 50, 51, 52, 53, 54, 55, 56
    C64, S64, N64, C32, S32, N32, T1C, T1S, T2C, T2S = 128, 136, 144, 152, 160, 168, 176, 184, 192, 200
    XB, PA, FB, SUM, GR, ONES = 32, 64, 96, 208, 216, 224
    e("s_waitcnt lgkmcnt(0)")
    e("s_load_dword s%d, s[%d:%d], 0x%x" % (sTAG, SWS, SWS + 1, EPOCH_OFF))

    def fgen(tl):
        t = 32
        e("s_lshl_b32 s%d, s%d, 5" % (sT0, sCBK))
        e("v_add_u32 v%d, s%d, v%d" % (t, sT0, vC))
        if tl:
            e("v_add_u32 v%d, 16, v%d" % (t, t))
        e("v_lshrrev_b32 v%d, 1, v%d" % (t + 1, t))
        e("v_and_b32 v%d, 1, v%d" % (t + 2, t))
        e("v_cvt_f32_u32 v%d, v%d" % (t + 2, t + 2))
        e("v_mul_f32 v%d, %s, v%d" % (t + 2, hexf(0.25), t + 2))
        if tl == 0:
            e("v_cmp_eq_u32 vcc, 1, v%d" % t)
            e("v_mov_b32 v%d, 256" % (t + 3))
        e("s_lshl_b32 s%d, s%d, 6" % (sT0, sR))
        if tl == 0:
            e("v_cndmask_b32 v%d, v%d, v%d, vcc" % (t + 1, t + 1, t + 3))
            e("v_cndmask_b32 v%d, v%d, 0, vcc" % (t + 2, t + 2))
        e("v_cvt_f32_u32 v%d, v%d" % (t + 1, t + 1))
        e("v_mul_f32 v%d, %s, v%d" % (t + 1, hexf(1.0 / 512), t + 1))
        e("v_lshl_add_u32 v%d, v%d, 3, s%d" % (t + 3, vQ, sT0))
        e("v_cvt_f32_u32 v%d, v%d" % (t + 3, t + 3))
        e("v_fma_f32 v%d, v%d, v%d, v%d" % (t + 2, t + 3, t + 1, t + 2))
        e("v_fract_f32 v%d, v%d" % (t + 8, t + 2))
        e("v_mul_f32 v%d, %s, v%d" % (t + 3, hexf(32.0), t + 1))
        e("v_fract_f32 v%d, v%d" % (t + 3, t + 3))
        for jj in range(1, 8):
            e("v_add_f32 v%d, v%d, v%d" % (t + 8 + jj, t + 7 + jj, t + 1))
        for Tf in range(4):
            for jj in range(8):
                e("v_cos_f32 v%d, v%d" % (t + 16 + jj, t + 8 + jj))
            if Tf < 3:
                for jj in range(8):
                    e("v_add_f32 v%d, v%d, v%d" % (t + 8 + jj, t + 8 + jj, t + 3))
            else:
                k.nop(1)
            for d in range(4):
                e("v_cvt_pk_bf16_f32 v%d, v%d, v%d" % (FB + 16 * tl + 4 * Tf + d, t + 16 + 2 * d, t + 17 + 2 * d))
    fgen(0)
    fgen(1)
    vSM, vAL, vBE = 16, 17, 18
    e("v_bfe_u32 v19, v%d, 1, 2" % vC)
    e("v_cvt_f32_u32 v19, v19")
    e("v_mul_f32 v19, %s, v19" % hexf(0.25))
    e("v_cos_f32 v%d, v19" % vAL)
    e("v_sin_f32 v%d, v19" % vBE)
    e("v_bfe_u32 v%d, v%d, 1, 1" % (vSM, vC))
    e("v_mul_u32_u24 v%d, 0x8000, v%d" % (vSM, vSM))
    e("v_lshl_or_b32 v%d, v%d, 16, v%d" % (vSM, vSM, vSM))
    e("v_rndne_f32 v%d, v%d" % (vAL, vAL))
    e("v_rndne_f32 v%d, v%d" % (vBE, vBE))
    e("v_lshlrev_b32 v19, 31, v%d" % vC)
    e("v_xor_b32 v%d, v19, v%d" % (vBE, vBE))
    for d in range(4):
        e("v_mov_b32 v%d, 0x3f803f80" % (ONES + d))
    xread_addr(26)
    k.stamp(2)

    def cconst():
        t = 32
        slot = [16 * (jj >> 2) + (jj & 3) for jj in range(8)]
        yield "s_lshl_b32 s%d, s%d, 4" % (sT3, sRW)
        yield "v_add_u32 v%d, s%d, v%d" % (t + 24, sT3, vC)
        yield "v_cvt_f32_u32 v%d, v%d" % (t + 27, vQ)
        yield "v_cvt_f32_u32 v%d, v%d" % (t + 25, t + 24)
        yield "v_mul_f32 v%d, 4.0, v%d" % (t + 27, t + 27)
        yield "v_cvt_f32_u32 v%d, v%d" % (t + 28, vC)
        yield "v_and_b32 v%d, 1, v%d" % (t + 30, vC)
        for jj in range(8):
            yield "v_add_f32 v%d, %s, v%d" % (t + 32 + jj, hexf(float(slot[jj])), t + 27)
        yield "v_mul_u32_u24 v%d, 0x8000, v%d" % (t + 30, t + 30)
        yield "v_mul_f32 v%d, %s, v%d" % (t + 26, hexf(1.0 / 64), t + 25)
        yield "v_lshl_or_b32 v%d, v%d, 16, v%d" % (t + 30, t + 30, t + 30)
        for (scale, Cb, Sb, Nb, flip) in ((t + 26, C64, S64, N64, "v%d" % (t + 30)), (t + 29, C32, S32, N32, "0x80000000")):
            if Cb == C32:
                yield "v_mul_f32 v%d, %s, v%d" % (t + 29, hexf(1.0 / 32), t + 28)
                yield "v_mul_f32 v%d, %s, v%d" % (t + 26, hexf(1.0 / 2048), t + 25)
            for jj in range(8):
                yield "v_mul_f32 v%d, v%d, v%d" % (t + jj, t + 32 + jj, scale)
            for jj in range(8):
                yield "v_cos_f32 v%d, v%d" % (t + 8 + jj, t + jj)
            for jj in range(8):
                yield "v_sin_f32 v%d, v%d" % (t + 16 + jj, t + jj)
            for d in range(4):
                yield "v_cvt_pk_bf16_f32 v%d, v%d, v%d" % (Cb + d, t + 8 + 2 * d, t + 9 + 2 * d)
            for d in range(4):
                yield "v_cvt_pk_bf16_f32 v%d, v%d, v%d" % (Sb + d, t + 16 + 2 * d, t + 17 + 2 * d)
            for d in range(4):
                yield "v_xor_b32 v%d, %s, v%d" % (Cb + 4 + d, flip, Cb + d)
            for d in range(4):
                yield "v_xor_b32 v%d, %s, v%d" % (Sb + 4 + d, flip, Sb + d)
            for d in range(8):
                yield "v_xor_b32 v%d, 0x80008000, v%d" % (Nb + d, Sb + d)
        for i in range(8):
            yield "v_mul_f32 v%d, v%d, v%d" % (t + i, t + 32 + i, t + 26)
        yield "v_cvt_f32_u32 v%d, s%d" % (t + 29, sT3)
        for i in range(8):
            yield "v_cos_f32 v%d, v%d" % (T1C + i, t + i)
            yield "v_sin_f32 v%d, v%d" % (T1S + i, t + i)
        yield "v_mul_f32 v%d, %s, v%d" % (t + 26, hexf(1.0 / 2048), t + 28)
        for r in range(4):
            yield "v_add_f32 v%d, v%d, v%d" % (t + 8 + r, t + 29, t + 32 + r)
        yield "v_add_f32 v%d, %s, v%d" % (t + 25, hexf(16.0 / 2048), t + 26)
        for r in range(4):
            yield "v_mul_f32 v%d, v%d, v%d" % (t + r, t + 8 + r, t + 26)
        for r in range(4):
            yield "v_mul_f32 v%d, v%d, v%d" % (t + 4 + r, t + 8 + r, t + 25)
        for i in range(8):
            yield "v_cos_f32 v%d, v%d" % (T2C + i, t + i)
            yield "v_sin_f32 v%d, v%d" % (T2S + i, t + i)
    CCE = P("CCE", 1)
    if CCE:
        for s_ in cconst():
            e(s_)
    vX1 = 7
    e("v_lshrrev_b32 v7, 1, v%d" % vC)
    e("v_lshlrev_b32 v7, 13, v7")
    e("v_and_b32 v19, 1, v%d" % vC)
    e("v_lshl_add_u32 v7, v19, 6, v7")
    e("v_lshl_add_u32 v7, v%d, 4, v7" % vQ)
    e("s_lshl_b32 s%d, s%d, 9" % (sT0, sRW))
    e("s_add_u32 s%d, s%d, 0x%x" % (sT0, sT0, L_ST))
    e("v_lshl_add_u32 v8, v%d, 2, s%d" % (vC, sT0))
    e("v_lshl_add_u32 v9, v%d, 4, s%d" % (vQ, sT0))
    e("s_lshl4_add_u32 s%d, s%d, s%d" % (sFX, sCBK, sPB))
    e("s_lshl_b32 s%d, s%d, 7" % (sFX, sFX))
    e("s_lshl2_add_u32 s%d, s%d, s%d" % (sFX, sRW, sFX))
    tag_setup()
    k.stamp(3)
    e("s_setprio %d" % P("PRIO", 1))

    def XBf(kk, u, ks):
        return vr(XB + (((kk & 1) * 2 + ks) * 2 + u) * 4, 4)
    for s_ in range(4):
        e("s_barrier")
        fs(6, 2 + s_)
        for kk in (2 * s_, 2 * s_ + 1):
            for ks in range(2):
                for u in range(2):
                    xread(XBf(kk, u, ks), 26, kk, u, ks, ("XR", kk, ks))
        if s_ == 2:
            for i in range(32):
                e("v_xor_b32 v%d, v%d, v%d" % (FB + i, vSM, FB + i))
        for kk in (2 * s_, 2 * s_ + 1):
            for ks in range(2):
                T = 2 * kk + ks
                k.wait_lg(("XR", kk, ks))
                for u in range(2):
                    x = XBf(kk, u, ks)
                    mfma(vr(SUM + 4 * u, 4), vr(ONES, 4), x, vr(SUM + 4 * u, 4) if T else "0")
                    mfma(vr(GR + 4 * u, 4), x, x, vr(GR + 4 * u, 4) if T else "0")
                for u in range(2):
                    x = XBf(kk, u, ks)
                    for tl in range(2):
                        p = vr(PA + ((tl * 2 + ((T >> 2) & 1)) * 2 + u) * 4, 4)
                        mfma(p, x, vr(FB + 16 * tl + 4 * (T & 3), 4), "0" if T in (0, 4) else p)
    e("s_barrier")
    k.stamp(4)
    fs(6, 6)
    e("s_setprio %d" % P("XPRIO", 0))
    e("v_and_b32 v19, 3, v%d" % vC)
    k.nop(2)
    for r in range(1, 4):
        e("v_cmp_eq_u32 vcc, %d, v19" % r)
        k.nop(2)
        for u in range(2):
            e("v_cndmask_b32 v%d, v%d, v%d, vcc" % (GR + 4 * u, GR + 4 * u, GR + 4 * u + r))

    def stat_ops(u):
        m, q2, rs_, nm, d0 = SUM + 4 * u, GR + 4 * u, SUM + 4 * u + 1, SUM + 4 * u + 2, SUM + 4 * u + 3
        rnd = lambda v: ["v_cvt_pk_bf16_f32 v%d, v%d, v%d" % (v, v, v), "v_lshlrev_b32 v%d, 16, v%d" % (v, v)]
        return (["v_mul_f32 v%d, %s, v%d" % (m, hexf(1.0 / 512), m),
                 "v_mul_f32 v%d, %s, v%d" % (q2, hexf(1.0 / 512), q2),
                 "v_fma_f32 v%d, -v%d, v%d, v%d" % (q2, m, m, q2),
                 "v_max_f32 v%d, 0, v%d" % (q2, q2)] + rnd(q2) +
                ["v_add_f32 v%d, %s, v%d" % (q2, hexf(1e-5), q2)] + rnd(q2) +
                ["v_sqrt_f32 v%d, v%d" % (q2, q2), "v_sub_f32 v%d, 0, v%d" % (nm, m)] + rnd(q2) +
                ["v_rcp_f32 v%d, v%d" % (rs_, q2)] + rnd(nm) +
                ["v_add_f32 v%d, v%d, v%d" % (d0, m, nm), "v_mul_f32 v%d, %s, v%d" % (d0, hexf(512.0), d0)])
    for a_, b_ in zip(stat_ops(0), stat_ops(1)):
        e(a_)
        e(b_)
    e("s_mov_b32 exec_lo, 0x00f0000f")
    e("s_mov_b32 exec_hi, 0xf0000f00")
    for u in range(2):
        e("ds_write2_b32 v8, v%d, v%d offset0:%d offset1:%d" % (SUM + 4 * u + 1, SUM + 4 * u + 2, 16 * u, 32 + 16 * u))
        e("ds_write_b32 v8, v%d offset:%d" % (SUM + 4 * u + 3, 256 + 64 * u))
    e("s_mov_b64 exec, -1")
    RT, D0T = XB, XB + 8
    for u in range(2):
        e("ds_read_b128 %s, v9 offset:%d" % (vr(RT + 4 * u, 4), 64 * u))
        e("ds_read_b128 %s, v9 offset:%d" % (vr(D0T + 4 * u, 4), 256 + 64 * u))
    for tl in range(2):
        for i in range(8):
            e("v_fmac_f32 v%d, v%d, v%d" % (PA + 16 * tl + i, vAL, PA + 16 * tl + 8 + i))
        for i in range(8):
            e("v_fmac_f32_dpp v%d, v%d, v%d quad_perm:[1,0,3,2] row_mask:0xf bank_mask:0xf" % (PA + 16 * tl + i, PA + 16 * tl + 8 + i, vBE))
    e("v_or_b32 v19, s%d, v%d" % (sCBK, vC))
    e("v_cmp_eq_u32 vcc, 0, v19")
    e("s_lshl_b32 s%d, s%d, 17" % (sT0, sCBK))
    e("s_lshl2_add_u32 s%d, s%d, s%d" % (sT1, sA, sRW))
    e("s_lshr_b32 s%d, s%d, 1" % (sT2, sWP))
    e("s_lshl1_add_u32 s%d, s%d, s%d" % (sT1, sT1, sT2))
    e("s_lshl_b32 s%d, s%d, 7" % (sT1, sT1))
    e("s_add_u32 s%d, s%d, s%d" % (sT0, sT0, sT1))
    e("s_add_u32 s%d, s%d, 0x%x" % (sT1, sT0, X1C_OFF))
    e("s_add_u32 s%d, s%d, 0x%x" % (sT2, sT0, X1C_OFF + 65536))
    e("s_waitcnt lgkmcnt(0)")
    k.lg.clear()
    for i in range(8):
        e("v_cndmask_b32 v%d, v%d, v%d, vcc" % (PA + i, PA + i, D0T + i))
    for tl in range(2):
        for i in range(8):
            e("v_mul_f32 v%d, v%d, v%d" % (PA + 16 * tl + i, PA + 16 * tl + i, RT + i))
        o = 232 + 4 * tl
        for d in range(4):
            e("v_cvt_pk_bf16_f32 v%d, v%d, v%d" % (o + d, PA + 16 * tl + 2 * d, PA + 16 * tl + 2 * d + 1))
        e("buffer_store_dwordx4 %s, v%d, %s, s%d offen sc1" % (vr(o, 4), vX1, srd(SWS), sT1 + tl))
        k.vm.issue("x1st")
    k.stamp(5)

    def colsum(reg):
        if reg == 0:
            e("v_lshrrev_b32 v19, 2, v%d" % vC)
            e("v_lshl_add_u32 v20, v%d, 3, v19" % vQ)
            e("v_lshlrev_b32 v20, 7, v20")
            e("v_and_b32 v13, 1, v%d" % vC)
            e("v_lshl_add_u32 v20, v13, 3, v20")
            e("v_bfe_u32 v19, v%d, 3, 1" % vC)
            e("v_and_b32 v13, 1, v%d" % vQ)
            e("v_lshl_or_b32 v19, v13, 1, v19")
            e("v_xor_b32 v19, s%d, v19" % sRW)
            e("v_lshlrev_b32 v19, 1, v19")
            e("v_bfe_u32 v13, v%d, 1, 1" % vC)
            e("v_or_b32 v19, v19, v13")
            e("v_lshl_add_u32 v20, v19, 4, v20")
            e("v_add_u32 v13, 0x%x, v20" % LB)
            e("s_lshl_b32 s%d, s%d, 6" % (sT1, sRW))
            e("s_add_u32 s%d, s%d, 0x%x" % (sT1, sT1, L_CS))
            e("v_lshl_add_u32 v16, v%d, 4, s%d" % (vQ, sT1))
            gwait(C_WA2)
        else:
            gwait(C_WB1)
            gwait(C_WB2)
        base = 20 if reg else 13

        def rd(T):
            for hh in range(2):
                e("ds_read_b64_tr_b16 %s, v%d offset:%d" % (vr(48 + 4 * (T % 4) + 2 * hh, 2), base, T * 4096 + hh * 512))
                k.lg.issue(("CS", reg, T))
        for T in range(3):
            rd(T)
        for T in range(16):
            if T + 3 < 16:
                rd(T + 3)
            k.wait_lg(("CS", reg, T))
            mfma(vr(240, 4), vr(48 + 4 * (T % 4), 4), vr(ONES, 4), vr(240, 4) if T else "0")
        k.nop(6)
        e("s_mov_b32 exec_lo, 0x00010001")
        e("s_mov_b32 exec_hi, 0x00010001")
        e("ds_write_b128 v16, v[240:243] offset:%d" % (256 * reg))
        e("s_mov_b64 exec, -1")
        garrive(C_FB if reg else C_FA)
    colsum(0)
    e("s_setprio 0")
    GB = 64

    def ggen():
        t0 = 32
        an, stp = 252, 31
        yield "s_lshl_b32 s%d, s%d, 6" % (sT3, sDB)
        yield "s_lshl4_add_u32 s%d, s%d, s%d" % (sT3, sRW, sT3)
        yield "v_add_u32 v%d, s%d, v%d" % (t0, sT3, vC)
        yield "v_lshlrev_b32 v%d, 1, v%d" % (t0 + 2, vQ)
        yield "v_cvt_f32_u32 v%d, v%d" % (t0 + 1, t0)
        yield "v_cvt_f32_u32 v%d, v%d" % (t0 + 2, t0 + 2)
        yield "v_mul_f32 v%d, %s, v%d" % (t0 + 1, hexf(1.0 / 512), t0 + 1)
        yield "v_mul_f32 v%d, %s, v%d" % (stp, hexf(16.0), t0 + 1)
        for dw in range(4):
            yield "v_add_f32 v%d, %s, v%d" % (an + dw, hexf(float(8 * (dw >> 1) + (dw & 1))), t0 + 2)
        yield "v_fract_f32 v%d, v%d" % (stp, stp)
        for dw in range(4):
            yield "v_mul_f32 v%d, v%d, v%d" % (an + dw, an + dw, t0 + 1)
        yield "v_lshlrev_b32 v%d, 31, v%d" % (t0 + 16, vC)
        yield "v_min_u32 v%d, 1, v%d" % (t0 + 17, vQ)
        yield "v_or_b32 v%d, 0x3f800000, v%d" % (t0 + 16, t0 + 16)
        yield "v_sub_u32 v%d, v%d, 1" % (t0 + 17, t0 + 17)
        yield "v_and_b32 v%d, 0xffff0000, v%d" % (t0 + 17, t0 + 17)
        yield "v_and_b32 v17, 1, v%d" % vC
        yield "v_mul_u32_u24 v17, 0x020202, v17"
        yield "v_lshl_or_b32 v17, v17, 8, v17"
        yield "v_xor_b32 v17, 0x03020100, v17"
        yield "v_bfe_u32 v18, v%d, 1, 1" % vC
        yield "v_add_u32 v%d, 1, v%d" % (t0 + 18, vC)
        yield "v_bfe_u32 v%d, v%d, 1, 1" % (t0 + 18, t0 + 18)
        yield "v_lshlrev_b32 v18, 15, v18"
        yield "v_lshl_or_b32 v18, v%d, 31, v18" % (t0 + 18)
        for T in range(8):
            for dw in range(4):
                yield "v_cos_f32 v%d, v%d" % (t0 + 8 + 2 * dw, an + dw)
                yield "v_sin_f32_e64 v%d, -v%d" % (t0 + 9 + 2 * dw, an + dw)
            for dw in range(4):
                yield "v_add_f32 v%d, v%d, v%d" % (an + dw, an + dw, stp)
            for dw in range(4):
                yield "v_cvt_pk_bf16_f32 v%d, v%d, v%d" % (GB + 4 * T + dw, t0 + 8 + 2 * dw, t0 + 9 + 2 * dw)
            for dw in range(4):
                yield "v_perm_b32 v%d, v%d, v%d, v17" % (GB + 32 + 4 * T + dw, GB + 4 * T + dw, GB + 4 * T + dw)
            for dw in range(4):
                yield "v_xor_b32 v%d, v18, v%d" % (GB + 32 + 4 * T + dw, GB + 32 + 4 * T + dw)
            if T == 0:
                yield "v_bfi_b32 v%d, v%d, v%d, v%d" % (GB, t0 + 17, t0 + 16, GB)
    late_setup(1)
    e("v_add_u32 v6, 0x%x, v%d" % (LB, vZB))
    vFL, vFZ, vDZ = 14, 15, 9
    e("s_xor_b32 s%d, s2, 0x38" % sCC)
    flag_voff(vFZ, 63)
    e("v_and_b32 v%d, 0x1ff, v%d" % (vFL, vFZ))
    e("v_min_u32 v19, 1, v%d" % vQ)
    e("v_mul_u32_u24 v19, 0x%x, v19" % (FW_OFF - FX_OFF))
    e("v_add_u32 v%d, v19, v%d" % (vFL, vFL))
    e("s_cmp_eq_u32 s%d, 0" % sCC)
    e("s_cselect_b32 s%d, 0x%x, 0" % (sT0, 16 * 2048))
    e("v_lshrrev_b32 v19, 1, v%d" % vQ)
    e("v_mul_u32_u24 v19, s%d, v19" % sT0)
    e("v_add_u32 v%d, v19, v%d" % (vFL, vFL))
    e("s_lshr_b32 s%d, s%d, 4" % (sFXC, sCC))
    e("s_lshl2_add_u32 s%d, s%d, s%d" % (sFXC, sFXC, sRW))
    e("s_lshl_b32 s%d, s%d, 9" % (sFXC, sFXC))
    e("s_mov_b32 s%d, 0" % sGB)
    XI, TM, TW, DR, DI, PR, PI, CWL = 32, 32, 48, 208, 216, 224, 228, 232

    def xin(pl, v, tt):
        return XI + 4 * ((pl * 2 + v) * 2 + tt)
    e("v_add_u32 v26, 0x%x, v%d" % (L_C1, vYW))
    e("v_xor_b32 v27, 64, v26")
    e("v_xor_b32 v28, 128, v26")
    e("v_xor_b32 v29, 192, v26")
    e("s_lshr_b32 s%d, s%d, 1" % (sT0, sRW))
    e("s_lshl_b32 s%d, s%d, 7" % (sT0, sT0))
    e("s_and_b32 s%d, s%d, 1" % (sT1, sRW))
    e("s_lshl3_add_u32 s%d, s%d, s%d" % (sT0, sT1, sT0))
    e("v_xor_b32 v10, s%d, v26" % sT0)
    e("v_xor_b32 v11, 64, v10")
    e("v_lshlrev_b32 v12, 5, v%d" % vC)
    e("v_lshl_add_u32 v12, v%d, 3, v12" % vQ)
    e("s_lshl_b32 s%d, s%d, 10" % (sT0, sRW))
    e("v_add_u32 v12, s%d, v12" % sT0)
    e("s_lshl_b32 s%d, s%d, 13" % (sZR, sCC))
    e("s_add_u32 s%d, s%d, 0x%x" % (sZR, sZR, ZT_OFF))
    e("s_add_u32 s%d, s%d, 4096" % (sZI, sZR))
    e("s_mov_b32 s%d, %s" % (sSC, hexf(2.0 ** -19)))
    e("s_cmp_eq_u32 s%d, 0" % sCC)
    e("s_cselect_b32 s%d, 0x%x, s%d" % (sZI, OOB, sZI))
    e("s_cselect_b32 s%d, %s, s%d" % (sSC, hexf(2.0 ** -20), sSC))
    e("s_mov_b32 s%d, 0" % sPL)
    e("s_lshl_b32 s%d, s%d, 3" % (sT0, sT1))
    e("v_add_u32 v19, s%d, v%d" % (sT0, vQ))
    e("v_xor_b32 v30, v19, v%d" % vC)
    e("v_lshlrev_b32 v30, 4, v30")
    e("v_lshl_add_u32 v30, v%d, 8, v30" % vQ)
    e("v_xor_b32 v24, 64, v30")
    e("v_lshrrev_b32 v8, 3, v%d" % vLANE)
    e("v_and_b32 v9, 7, v%d" % vLANE)
    e("v_lshlrev_b32 v19, 1, v%d" % vQ)
    e("v_xor_b32 v19, v19, v9")
    e("v_lshlrev_b32 v19, 4, v19")
    e("v_lshl_add_u32 v%d, v8, 12, v19" % vDZ)
    k.wait_vm("x1st")
    publish("s%d" % sFX)
    xe_load()
    if P("NOFFT", 0):
        e("s_branch L_final")
    k.stamp(6)
    pre = ([] if CCE else list(cconst())) + ["v_mul_f32 v%d, s%d, v%d" % (T2C + i, sSC, T2C + i) for i in range(16)]
    gl = list(ggen())
    GE = P("GE", 999)
    pre += gl[:GE]
    gl = gl[GE:]
    n2 = max(0, len(pre) - P("PFXL", 0))
    for s_ in pre[:n2]:
        e(s_)
    colsum(1)
    poll_issue("pfx", vFL, "s%d" % sFXC, 13)
    for s_ in pre[n2:]:
        e(s_)
    k.stamp(7)
    e("s_setprio %d" % P("CPRIO", 1))
    poll_check("pfx", vFL, "s%d" % sFXC, 13)
    k.stamp(8)

    def gbar_lines():
        return ["    s_add_u32 s%d, s%d, 4" % (sGB, sGB)] + garrive_lines(C_F) + gwait_lines(C_F, "s%d" % sGB)

    def gbar():
        k.lines.extend(gbar_lines())
        k.lg.clear()
    e("s_lshl_b32 s%d, s%d, 13" % (sT0, sCC))
    e("s_lshl_b32 s%d, s%d, 11" % (sT1, sRW))
    e("s_add_u32 s%d, s%d, s%d" % (sT0, sT0, sT1))
    e("s_add_u32 s%d, s%d, 0x%x" % (sT2, sT0, X1C_OFF))
    e("s_add_u32 m0, s%d, 0x%x" % (sT1, L_C1))
    k.nop(1)
    e("buffer_load_dwordx4 v30, %s, s%d offen sc1 lds" % (srd(SWS), sT2))
    k.vm.issue("cin")
    e("buffer_load_dwordx4 v24, %s, s%d offen offset:1024 sc1 lds" % (srd(SWS), sT2))
    k.vm.issue("cin")
    e("s_add_u32 s%d, s%d, 0x%x" % (sT2, sT0, WT_OFF))
    for v in range(2):
        e("buffer_load_dwordx4 %s, v%d, %s, s%d offen offset:%d sc1" % (vr(CWL + 4 * v, 4), vL16, srd(SWS), sT2, v * 1024))
        k.vm.issue("cw")
    e("s_add_u32 s%d, s%d, 0x%x" % (sT2, sT2, 256 * 8192))
    e("s_cmp_eq_u32 s%d, 0" % sCC)
    e("s_cselect_b32 s%d, s%d, 0x%x" % (sT2, sT2, OOB))
    for v in range(2):
        e("buffer_load_dwordx4 %s, v%d, %s, s%d offen offset:%d sc1" % (vr(CWL + 8 + 4 * v, 4), vL16, srd(SWS), sT2, v * 1024))
        k.vm.issue("cw")
    k.wait_vm("cin")
    gbar()
    k.stamp(9)
    k.lab("L_ccol")
    for pl in range(2):
        for v in range(2):
            for tt in range(2):
                e("ds_read_b128 %s, v%d offset:%d" % (vr(xin(pl, v, tt), 4), 26 + 2 * tt + pl, v * 4096))
    e("s_waitcnt lgkmcnt(0)")
    e("s_cmp_eq_u32 s%d, 0" % sCC)
    e("s_cbranch_scc1 L_creal")
    k.lab("L_cplx")
    tail.append("L_creal:")
    tail.append("    s_cmp_eq_u32 s%d, 0" % sPL)
    tail.append("    s_cbranch_scc1 L_c0")
    for i in range(16):
        tail.append("    v_mov_b32 v%d, v%d" % (XI + i, XI + 16 + i))
    tail.append("L_c0:")
    for i in range(16):
        tail.append("    v_mov_b32 v%d, 0" % (XI + 16 + i))
    tail.append("    s_nop 1")
    tail.append("    s_branch L_cplx")
    for v in range(2):
        dr, di = vr(DR + 4 * v, 4), vr(DI + 4 * v, 4)
        for tt in range(2):
            mfma(dr, vr(xin(0, v, tt), 4), vr(C64 + 4 * tt, 4), dr if tt else "0")
            mfma(di, vr(xin(1, v, tt), 4), vr(C64 + 4 * tt, 4), di if tt else "0")
            mfma(dr, vr(xin(1, v, tt), 4), vr(S64 + 4 * tt, 4))
            mfma(di, vr(xin(0, v, tt), 4), vr(N64 + 4 * tt, 4))

    def cmul(cr, ci, conj):
        for h in range(2):
            for i in (4 * h, 4 * h + 2):
                e("v_pk_mul_f32 %s, %s, %s" % (vr(TM + i, 2), vr(DR + i, 2), vr(cr + i, 2)))
                e("v_pk_mul_f32 %s, %s, %s" % (vr(TM + 8 + i, 2), vr(DI + i, 2), vr(cr + i, 2)))
            neg = " neg_lo:[1,0,0] neg_hi:[1,0,0]"
            for i in (4 * h, 4 * h + 2):
                e("v_pk_fma_f32 %s, %s, %s, %s%s" % (vr(TM + i, 2), vr(DI + i, 2), vr(ci + i, 2), vr(TM + i, 2), "" if conj else neg))
                e("v_pk_fma_f32 %s, %s, %s, %s%s" % (vr(TM + 8 + i, 2), vr(DR + i, 2), vr(ci + i, 2), vr(TM + 8 + i, 2), neg if conj else ""))
        for d in range(4):
            e("v_cvt_pk_bf16_f32 v%d, v%d, v%d" % (PR + d, TM + 2 * d, TM + 2 * d + 1))
            e("v_cvt_pk_bf16_f32 v%d, v%d, v%d" % (PI + d, TM + 8 + 2 * d, TM + 9 + 2 * d))
        k.nop(2)
    cmul(T1C, T1S, True)
    pr, pi = vr(PR, 4), vr(PI, 4)
    for v in range(2):
        dr, di = vr(DR + 4 * v, 4), vr(DI + 4 * v, 4)
        mfma(dr, vr(C32 + 4 * v, 4), pr, "0")
        mfma(di, vr(C32 + 4 * v, 4), pi, "0")
        mfma(dr, vr(S32 + 4 * v, 4), pi)
        mfma(di, vr(N32 + 4 * v, 4), pr)
    k.wait_vm("cw")
    for i in range(8):
        e("v_lshlrev_b32 v%d, 16, v%d" % (TW + i, CWL + i))
        e("v_and_b32 v%d, 0xffff0000, v%d" % (TW + 8 + i, CWL + i))
    cmul(TW, TW + 8, False)
    for v in range(2):
        dr, di = vr(DR + 4 * v, 4), vr(DI + 4 * v, 4)
        mfma(dr, pr, vr(C32 + 4 * v, 4), "0")
        mfma(di, pi, vr(C32 + 4 * v, 4), "0")
        mfma(dr, pi, vr(N32 + 4 * v, 4))
        mfma(di, pr, vr(S32 + 4 * v, 4))
    k.nop(4)
    cmul(T2C, T2S, False)
    for v in range(2):
        e("ds_write_b64 v10, %s offset:%d" % (vr(PR + 2 * v, 2), 8192 + v * 4096))
        e("ds_write_b64 v11, %s offset:%d" % (vr(PI + 2 * v, 2), 8192 + v * 4096))
    e("s_waitcnt lgkmcnt(0)")
    gbar()
    for v in range(2):
        for tt in range(2):
            for pl in range(2):
                e("ds_read_b128 %s, v%d offset:%d" % (vr(xin(pl, v, tt), 4), 26 + 2 * tt + pl, 8192 + v * 4096))
                k.lg.issue(("cy", v, tt))
    for v in range(2):
        dr, di = vr(DR + 4 * v, 4), vr(DI + 4 * v, 4)
        for tt in range(2):
            k.wait_lg(("cy", v, tt))
            mfma(dr, vr(C64 + 4 * tt, 4), vr(xin(0, v, tt), 4), dr if tt else "0")
            mfma(di, vr(C64 + 4 * tt, 4), vr(xin(1, v, tt), 4), di if tt else "0")
            mfma(dr, vr(N64 + 4 * tt, 4), vr(xin(1, v, tt), 4))
            mfma(di, vr(S64 + 4 * tt, 4), vr(xin(0, v, tt), 4))
    for v in range(2):
        if v:
            k.nop(4)
        for d in range(2):
            e("v_cvt_pk_bf16_f32 v%d, v%d, v%d" % (PR + 2 * v + d, DR + 4 * v + 2 * d, DR + 4 * v + 2 * d + 1))
            e("v_cvt_pk_bf16_f32 v%d, v%d, v%d" % (PI + 2 * v + d, DI + 4 * v + 2 * d, DI + 4 * v + 2 * d + 1))
        e("buffer_store_dwordx2 %s, v12, %s, s%d offen offset:%d sc1" % (vr(PR + 2 * v, 2), srd(SWS), sZR, v * 512))
        k.vm.issue("zst")
        e("buffer_store_dwordx2 %s, v12, %s, s%d offen offset:%d sc1" % (vr(PI + 2 * v, 2), srd(SWS), sZI, v * 512))
        k.vm.issue("zst")
    e("s_or_b32 s%d, s%d, s%d" % (sT0, sCC, sPL))
    if not P("NO256", 0):
        e("s_cbranch_scc0 L_csecond")
    sec = ["L_csecond:", "    s_mov_b32 s%d, 1" % sPL, "    s_add_u32 s%d, s%d, 4096" % (sZR, sZR)]
    for i in range(8):
        sec.append("    v_mov_b32 v%d, v%d" % (CWL + i, CWL + 8 + i))
    sec.extend(gbar_lines())
    sec.append("    s_branch L_ccol")
    tail.extend(sec)
    k.stamp(10)
    fs(7, 2)
    e("s_lshr_b32 s%d, s%d, 2" % (sT4, sCC))
    e("s_lshl_b32 s%d, s%d, 6" % (sT1, sRW))
    e("s_add_u32 s%d, s%d, s%d" % (sT4, sT4, sT1))
    e("s_lshl_b32 s%d, s%d, 7" % (sT4, sT4))
    e("s_and_b32 s%d, s%d, 3" % (sT1, sCC))
    e("s_lshl2_add_u32 s%d, s%d, s%d" % (sT4, sT1, sT4))
    e("s_add_u32 s%d, s%d, 0x%x" % (sT4, sT4, FZ_OFF))
    sFZC = sFXC
    e("s_lshl2_add_u32 s%d, s%d, s%d" % (sFZC, sWP, sRW))
    e("s_lshl_b32 s%d, s%d, 11" % (sFZC, sFZC))
    e("s_add_u32 s%d, s%d, 0x%x" % (sFZC, sFZC, FZ_OFF))
    e("s_lshl_b32 s%d, s%d, 19" % (sDT, sRW))
    e("s_lshl_b32 s%d, s%d, 10" % (sT1, sWP))
    e("s_add_u32 s%d, s%d, s%d" % (sDT, sDT, sT1))
    e("s_lshl_b32 s%d, s%d, 7" % (sT1, sA))
    e("s_add_u32 s%d, s%d, s%d" % (sDT, sDT, sT1))
    e("s_add_u32 s%d, s%d, 0x%x" % (sDT, sDT, ZT_OFF - 32768))
    e("s_lshl_b32 s%d, s%d, 14" % (sT2, sRW))
    e("s_lshl_b32 s%d, s%d, 6" % (sT1, sRW))
    e("v_xor_b32 v20, s%d, v26" % sT1)
    k.wait_vm("zst")
    fs(7, 3)
    publish("s%d" % sT4)
    e("s_setprio 0")
    for s_ in gl:
        e(s_)
    TRZ = [16, 17, 18, 7]
    for pt in range(4):
        e("v_xor_b32 v%d, %d, v6" % (TRZ[pt], 32 * pt))
    e("s_setprio 1")
    gwait(C_WT)
    fs(7, 4)
    if P("ZSLP", 0):
        e("s_sleep %d" % P("ZSLP", 0))
    poll_issue("pz", vFZ, "s%d" % sFZC, 30)
    if FS == 7:
        k.wait_vm("pz")
    fs(7, 5)
    poll_check("pz", vFZ, "s%d" % sFZC, 30)
    fs(7, 6)
    k.stamp(11)
    for ee in range(16):
        e("s_add_u32 m0, s%d, %d" % (sT2, LB + ee * 1024))
        e("s_add_u32 s%d, s%d, 32768" % (sDT, sDT))
        e("buffer_load_dwordx4 v%d, %s, s%d offen sc1 lds" % (vDZ, srd(SWS), sDT))
        k.vm.issue("Z")
    fs(7, 7)
    e("s_setprio %d" % P("EPRIO", 0))
    k.wait_vm("Z")
    fs(7, 8)
    gbar()
    fs(7, 9)
    AS, ZF = 208, 128

    def zr(T, pt):
        for hh in range(2):
            r = ZF + ((T % 4) * 4 + pt) * 4 + 2 * hh
            e("ds_read_b64_tr_b16 %s, v%d offset:%d" % (vr(r, 2), TRZ[pt], T * 4096 + hh * 2048))
            k.lg.issue(("ZR", T, pt))
    seq = [(T, pt) for T in range(16) for pt in range(4)]
    LA_ = 6
    for n in range(LA_):
        zr(*seq[n])
    for n, (T, pt) in enumerate(seq):
        if n + LA_ < 64:
            zr(*seq[n + LA_])
        k.wait_lg(("ZR", T, pt))
        c = vr(AS + 4 * pt, 4)
        mfma(c, vr(GB + 4 * T, 4), vr(ZF + ((T % 4) * 4 + pt) * 4, 4), c if T else "0")
    k.nop(8)
    for pt in range(4):
        e("ds_write_b128 v20, %s offset:%d" % (vr(AS + 4 * pt, 4), pt * 4096))
    fs(7, 10)
    e("s_branch L_final")
    tail[0:0] = k.lines
    k.lines = main_lines

    e("s_waitcnt vmcnt(0) lgkmcnt(0)")
    k.vm.clear()
    k.lg.clear()
    fs(12, 7)
    e("s_barrier")
    fs(12, 8)
    k.stamp(12)
    YP, SV, U2 = 192, 224, 232
    e("v_add_u32 v10, 0x%x, v%d" % (L_C1, vR0))
    e("v_add_u32 v11, 0x%x, v%d" % (L_C1, vR1))
    for h in range(2):
        e("ds_read_b128 %s, v%d" % (vr(YP + 4 * h, 4), vR0 + h))
        k.lg.issue("yp")
    for h in range(2):
        e("ds_read_b128 %s, v%d" % (vr(SV + 4 * h, 4), 10 + h))
        k.lg.issue("sv")
    for i in range(4):
        e("v_lshlrev_b32 v%d, 16, v%d" % (240 + 2 * i, XV + i))
        e("v_and_b32 v%d, 0xffff0000, v%d" % (241 + 2 * i, XV + i))
    k.wait_lg("yp")
    for i in range(8):
        e("v_mul_f32 v%d, %s, v%d" % (U2 + i, hexf(-1.4426950408889634), YP + i))
    for i in range(8):
        e("v_exp_f32 v%d, v%d" % (U2 + i, U2 + i))
    k.wait_lg("sv")
    for i in range(8):
        e("v_mul_f32 v%d, v%d, v%d" % (YP + i, YP + i, SV + i))
    for i in range(8):
        e("v_add_f32 v%d, 1.0, v%d" % (U2 + i, U2 + i))
    for i in range(8):
        e("v_rcp_f32 v%d, v%d" % (U2 + i, U2 + i))
    k.nop(1)
    for i in range(8):
        e("v_fmac_f32 v%d, v%d, v%d" % (240 + i, YP + i, U2 + i))
    for d in range(4):
        e("v_cvt_pk_bf16_f32 v%d, v%d, v%d" % (SV + d, 240 + 2 * d, 241 + 2 * d))
    e("buffer_store_dwordx4 %s, v%d, %s, s%d offen%s" % (vr(SV, 4), vGO, srd(SOUT), sXO, os.environ.get("OFL", " sc1")))
    e("s_or_b32 s%d, s2, s%d" % (sT0, sRW))
    e("s_or_b32 s%d, s%d, s%d" % (sT0, sT0, sHF))
    e("s_cbranch_scc1 L_noep")
    e("s_mov_b32 s%d, 0x%x" % (sT0, EPOCH_OFF))
    publish("s%d" % sT0)
    k.lab("L_noep")
    k.stamp(13)
    if ENC:
        if "ENCB" in os.environ:
            e("s_cmp_lg_u32 s2, %d" % P("ENCB", 0))
            e("s_cbranch_scc1 L_done")
        e("s_waitcnt lgkmcnt(0)")
        e("s_sub_u32 s97, s%d, s66" % (64 + 2 * ENC))
        e("s_add_u32 s97, s97, 6000")
        k.lab("L_espin")
        e("s_memrealtime s[94:95]")
        e("s_waitcnt lgkmcnt(0)")
        e("s_sub_u32 s96, s94, s66")
        e("s_cmp_lt_u32 s96, s97")
        e("s_cbranch_scc1 L_espin")
    elif DIAG:
        e("s_lshl2_add_u32 s%d, s%d, s%d" % (sT0, sHF, sRW))
        e("v_mov_b32 v2, s%d" % sT0)
        k.stamp_flush(SWS, 0, 2, 8)
    k.lab("L_done")
    e("s_endpgm")
    k.lines += tail
    k.lab("L_end")
    return k


HEADER = open(os.path.join(os.path.dirname(os.path.abspath(__file__)), "header.txt")).read()


def main(out):
    k = gen()
    s = HEADER
    s += "; @launch grid=(256,1,1) block=(512,1,1) lds=163840\n"
    s += '.amdgcn_target "amdgcn-amd-amdhsa--gfx950"\n.text\n'
    s += k.text()
    s += '.section .rodata,"a"\n'
    s += descriptor(k.name, 256, 102 if DIAG else 64)
    open(out, "w").write(s)


if __name__ == "__main__":
    main(sys.argv[1] if len(sys.argv) > 1 else "v13.s")
```

```python
import sys, os
from collections import deque
sys.path.insert(0, os.path.dirname(os.path.abspath(__file__)))
from asmlib import *

NAME = "recurrent_scan__spectral_gfnet__dense_activation_relu__prompt_kernel"


def P(name, default):
    return int(os.environ.get(name, default))


X1C_OFF = 0x0200000
WT_OFF = 0x0400000
H_OFF = 0x0800000
ZT_OFF = 0x1000000
FX_OFF = 0x0000000
FW_OFF = 0x0010000
FH_OFF = 0x0020000
FY_OFF = 0x0048000
YX_OFF = 0x1800000
FHB_D = 0x0008000
FZ_OFF = 0x0030000
EPOCH_OFF = 0x0040000
WS_BYTES = 0x2000000
OOB = 0x7f000000
TAGC = 0x9E3779B9
X_BYTES = 2048 * 512 * 2
W_BYTES = 2048 * 257 * 2
W1_BYTES = 512 * 1792 * 2

SX, SWR, SWI, SW1, SW2, SOUT, SWS = 12, 16, 20, 24, 28, 32, 36
sRW, sPB, sCBK, sF0, sHF, sR, sTAG, sA, sWP, sDB = 3, 4, 5, 6, 7, 8, 9, 10, 11, 40
sXO, sRS = 41, 42
sT0, sT1, sT2, sT3, sT4 = 43, 44, 45, 46, 47
sCNT = 49
sXT, sDT = 0, 1

LA, LB, LS = 0, 65536, 131072
L_C1 = LS
L_WT = LS + 16384
L_SCR = LS + 24576
L_CS, L_ST, L_CNT, L_W256, L_DUM = L_SCR, L_SCR + 1024, L_SCR + 3072, L_SCR + 4096, L_SCR + 6144
XSLOT = [LB, LB + 16384, LB + 32768, LB + 49152, LA, LA + 16384, LA + 32768, LA + 49152]

vLANE, vL16, vC, vQ, vTAG, vCNT = 1, 2, 3, 4, 5, 25
vGO, vR0, vR1, vYW, vZB = 0, 22, 23, 21, 124
C_WA2, C_CSA, C_WB1, C_WB2, C_CSB, C_ST, C_WT, C_F, C_E1, C_L1, C_GY, C_FA, C_FB = 0, 4, 8, 12, 16, 20, 24, 28, 32, 36, 40, 44, 48


def srd(n):
    return "s[%d:%d]" % (n, n + 3)


def gen():
    k = K(NAME)
    e = k.e
    tail = []
    FS, ENC = P("FS", 0), P("ENC", 0)
    _stamp = k.stamp

    def stamp_n(i, real=False):
        if ENC:
            if i == 1 or i == ENC:
                _stamp(i, True)
            return
        if FS and 2 <= i <= 13:
            return
        _stamp(i, real)
    k.stamp = stamp_n

    def fs(mode, i):
        if FS == mode:
            _stamp(i)

    side = deque()
    sch = {"gap": 3, "n": 0, "lds": deque()}

    def mfma(d, a, b, c=None):
        e("v_mfma_f32_16x16x32_bf16 %s, %s, %s, %s" % (d, a, b, c if c is not None else d))

    def mf(d, a, b, c=None):
        mfma(d, a, b, c)
        sch["n"] += 1
        for _ in range(P("NL", 1)):
            if sch["lds"]:
                sch["lds"].popleft()()
        if side and sch["n"] % sch["gap"] == 0:
            side.popleft()()

    def flush_lds():
        while sch["lds"]:
            sch["lds"].popleft()()

    def flush_side():
        flush_lds()
        while side:
            side.popleft()()

    def run(items):
        for f in items:
            f()

    def bf16_round(v):
        e("v_cvt_pk_bf16_f32 v%d, v%d, v%d" % (v, v, v))
        e("v_lshlrev_b32 v%d, 16, v%d" % (v, v))

    def publish_lines(soff):
        return ["    s_mov_b64 exec, 1",
                "    buffer_store_dword v%d, off, %s, %s sc1" % (vTAG, srd(SWS), soff),
                "    s_mov_b64 exec, -1"]

    def publish(soff):
        k.lines.extend(publish_lines(soff))
        k.vm.issue("flag")

    pollno = [0]

    def poll_ld(vaddr, soff, vt):
        return "buffer_load_dword v%d, v%d, %s, %s offen sc1" % (vt, vaddr, srd(SWS), soff)

    def poll_issue(tag, vaddr, soff, vt):
        e(poll_ld(vaddr, soff, vt))
        k.vm.issue(tag)

    def poll_check(tag, vaddr, soff, vt, pre=(), slp=None):
        n = pollno[0]
        pollno[0] += 1
        k.wait_vm(tag)
        e("v_cmp_ne_u32 vcc, v%d, v%d" % (vt, vTAG))
        e("s_cmp_lg_u64 vcc, 0")
        e("s_cbranch_scc1 L_slow%d" % n)
        k.lab("L_back%d" % n)
        tail.append("L_slow%d:" % n)
        tail.extend(pre)
        tail.extend(["    s_mov_b32 s%d, 0" % sCNT,
                     "L_spin%d:" % n,
                     "    s_sleep %d" % (P("SLP", 8) if slp is None else slp),
                     "    s_mov_b64 exec, vcc",
                     "    " + poll_ld(vaddr, soff, vt),
                     "    s_mov_b64 exec, -1",
                     "    s_waitcnt vmcnt(0)",
                     "    v_cmp_ne_u32 vcc, v%d, v%d" % (vt, vTAG),
                     "    s_cmp_lg_u64 vcc, 0",
                     "    s_cbranch_scc0 L_back%d" % n,
                     "    s_add_u32 s%d, s%d, 1" % (sCNT, sCNT),
                     "    s_cmp_lt_u32 s%d, 0x40000" % sCNT,
                     "    s_cbranch_scc1 L_spin%d" % n,
                     "    s_branch L_back%d" % n])

    gbn = [0]

    def gwait_lines(off, target):
        n = gbn[0]
        gbn[0] += 1
        chk = ["    ds_read_b32 v19, v%d offset:%d" % (vCNT, off),
               "    s_waitcnt lgkmcnt(0)",
               "    v_readfirstlane_b32 s%d, v19" % sT0,
               "    s_cmp_lt_u32 s%d, %s" % (sT0, target)]
        tail.append("L_gs%d:" % n)
        tail.append("    s_mov_b32 s%d, 0x400000" % sCNT)
        tail.append("L_gb%d:" % n)
        tail.append("    s_sub_u32 s%d, s%d, 1" % (sCNT, sCNT))
        tail.append("    s_cbranch_scc1 L_gx%d" % n)
        tail.append("    s_sleep %d" % (4 if off == C_WT else 1))
        tail.extend(chk)
        tail.append("    s_cbranch_scc1 L_gb%d" % n)
        tail.append("    s_branch L_gx%d" % n)
        return chk + ["    s_cbranch_scc1 L_gs%d" % n, "L_gx%d:" % n]

    def garrive_lines(off):
        return ["    v_mov_b32 v19, 1",
                "    s_mov_b64 exec, 1",
                "    ds_add_u32 v%d, v19 offset:%d" % (vCNT, off),
                "    s_mov_b64 exec, -1"]

    def garrive(off):
        k.lines.extend(garrive_lines(off))
        k.lg.issue("arr")

    def gwait(off, target="4"):
        k.lines.extend(gwait_lines(off, target))
        k.lg.clear()

    def gpeek(off, vt):
        e("ds_read_b32 v%d, v%d offset:%d" % (vt, vCNT, off))
        k.lg.issue(("pk", off))

    def gcheck(off, vt):
        n = gbn[0]
        slow = gwait_lines(off, "4")
        k.wait_lg(("pk", off))
        e("v_readfirstlane_b32 s%d, v%d" % (sT0, vt))
        e("s_cmp_lt_u32 s%d, 4" % sT0)
        e("s_cbranch_scc1 L_gs%d" % n)
        k.lab("L_gx%d" % n)

    def flag_voff(vv, n):
        e("v_min_u32 v19, %d, v%d" % (n, vLANE))
        e("v_lshrrev_b32 v%d, 2, v19" % vv)
        e("v_lshlrev_b32 v%d, 7, v%d" % (vv, vv))
        e("v_and_b32 v19, 3, v19")
        e("v_lshl_add_u32 v%d, v19, 2, v%d" % (vv, vv))

    def xread_addr(v0_):
        e("v_lshrrev_b32 v19, 1, v%d" % vC)
        e("v_xor_b32 v19, v19, v%d" % vQ)
        e("v_lshlrev_b32 v19, 4, v19")
        e("v_lshl_add_u32 v19, v%d, 7, v19" % vC)
        e("s_lshl_b32 s%d, s%d, 12" % (sT0, sRW))
        e("v_add_u32 v%d, s%d, v19" % (v0_, sT0))
        e("v_xor_b32 v%d, 64, v%d" % (v0_ + 1, v0_))
        e("v_add_u32 v%d, 0x%x, v%d" % (v0_ + 2, LB, v0_))
        e("v_add_u32 v%d, 0x%x, v%d" % (v0_ + 3, LB, v0_ + 1))

    def xread(dst, v0_, kk, u, ks, tag):
        hi = XSLOT[kk] >= LB
        e("ds_read_b128 %s, v%d offset:%d" % (dst, v0_ + ks + (2 if hi else 0), XSLOT[kk] % 65536 + u * 2048))
        k.lg.issue(tag)

    def tag_setup():
        e("s_waitcnt lgkmcnt(0)")
        k.lg.clear()
        e("s_add_u32 s%d, s%d, 0x%x" % (sTAG, sTAG, TAGC))
        e("v_mov_b32 v%d, s%d" % (vTAG, sTAG))

    def late_setup(hf):
        e("v_lshrrev_b32 v19, 2, v%d" % vC)
        e("v_lshl_add_u32 v19, v%d, 2, v19" % vQ)
        e("v_bfe_u32 v30, v19, 1, 2")
        e("v_lshlrev_b32 v19, 7, v19")
        e("v_and_b32 v31, 1, v%d" % vC)
        e("v_lshl_add_u32 v19, v31, 3, v19")
        e("v_lshlrev_b32 v30, 1, v30")
        e("v_bfe_u32 v31, v%d, 1, 1" % vC)
        e("v_or_b32 v30, v30, v31")
        e("v_lshl_add_u32 v%d, v30, 4, v19" % vZB)
        e("v_lshrrev_b32 v19, 3, v%d" % vLANE)
        if hf:
            e("v_add_u32 v19, 8, v19")
        e("v_and_b32 v30, 7, v%d" % vLANE)
        e("v_lshlrev_b32 v%d, 15, v19" % vGO)
        e("v_lshl_add_u32 v%d, v30, 4, v%d" % (vGO, vGO))
        e("v_lshlrev_b32 v30, 1, v30")
        e("v_xor_b32 v30, v30, v19")
        e("v_lshlrev_b32 v30, 4, v30")
        e("v_lshl_add_u32 v30, v19, 8, v30")
        e("s_lshl_b32 s%d, s%d, 12" % (sT0, sRW))
        e("v_add_u32 v%d, s%d, v30" % (vR0, sT0))
        e("v_xor_b32 v%d, 16, v%d" % (vR1, vR0))
        e("v_xor_b32 v%d, v%d, v%d" % (vYW, vQ, vC))
        e("v_lshlrev_b32 v%d, 4, v%d" % (vYW, vYW))
        e("v_lshl_add_u32 v%d, v%d, 8, v%d" % (vYW, vC, vYW))
        e("s_lshl_b32 s%d, s%d, 19" % (sXO, sWP))
        e("s_lshl2_add_u32 s%d, s%d, s%d" % (sT0, sA, sRW))
        e("s_lshl_b32 s%d, s%d, 10" % (sT0, sT0))
        e("s_add_u32 s%d, s%d, s%d" % (sXO, sXO, sT0))
        e("s_lshl_b32 s%d, s%d, 7" % (sT0, sDB))
        e("s_add_u32 s%d, s%d, s%d" % (sXO, sXO, sT0))
    XV = 248

    def xe_load():
        e("buffer_load_dwordx4 %s, v%d, %s, s%d offen" % (vr(XV, 4), vGO, srd(SX), sXO))
        k.vm.issue("xe")

    e("s_cmp_ge_u32 s2, 256")
    e("s_cbranch_scc1 L_done")
    k.stamp(0)
    k.stamp(1, real=True)
    e("s_load_dwordx2 s[%d:%d], s[0:1], 0" % (SX, SX + 1))
    e("s_load_dwordx2 s[%d:%d], s[0:1], 32" % (SW1, SW1 + 1))
    e("s_load_dwordx2 s[%d:%d], s[0:1], 64" % (SWS, SWS + 1))
    e("s_load_dwordx2 s[%d:%d], s[0:1], 8" % (SWR, SWR + 1))
    e("s_load_dwordx2 s[%d:%d], s[0:1], 16" % (SWI, SWI + 1))
    e("s_load_dwordx2 s[%d:%d], s[0:1], 40" % (SW2, SW2 + 1))
    e("s_load_dwordx2 s[%d:%d], s[0:1], 48" % (SOUT, SOUT + 1))
    e("v_lshrrev_b32 v19, 6, v0")
    e("s_getpc_b64 s[%d:%d]" % (sT1, sT2))
    k.lab("L_pc")
    e("s_andn2_b32 s%d, s2, 7" % sT0)
    e("v_add_lshl_u32 v20, v19, s%d, 7" % sT0)
    e("v_min_u32 v20, L_end-L_pc-4, v20")
    e("v_mov_b32 v21, s%d" % sT2)
    e("v_add_co_u32 v20, vcc, s%d, v20" % sT1)
    e("v_readfirstlane_b32 s%d, v19" % sHF)
    e("v_and_b32 v%d, 63, v0" % vLANE)
    e("v_addc_co_u32 v21, vcc, 0, v21, vcc")
    e("global_load_dword v247, v[20:21], off")
    k.vm.issue("touch")
    for s_, nb in ((SX, X_BYTES), (SWR, W_BYTES), (SWI, W_BYTES), (SW1, W1_BYTES), (SW2, W1_BYTES), (SOUT, X_BYTES), (SWS, WS_BYTES)):
        e("s_mov_b32 s%d, 0x%x" % (s_ + 2, nb))
        e("s_mov_b32 s%d, 0x00020000" % (s_ + 3))
    e("v_and_b32 v%d, 15, v0" % vC)
    e("v_bfe_u32 v%d, v0, 4, 2" % vQ)
    e("v_lshlrev_b32 v%d, 4, v%d" % (vL16, vLANE))
    e("v_mov_b32 v%d, 0x%x" % (vCNT, L_CNT))
    e("s_and_b32 s%d, s2, 7" % sA)
    e("s_lshr_b32 s%d, s2, 6" % sWP)
    e("s_bfe_u32 s%d, s2, 0x30003" % sDB)
    e("s_and_b32 s%d, s%d, 3" % (sRW, sHF))
    e("s_lshr_b32 s%d, s%d, 1" % (sPB, sA))
    e("s_lshl2_add_u32 s%d, s%d, s%d" % (sPB, sPB, sWP))
    e("s_and_b32 s%d, s%d, 1" % (sT0, sA))
    e("s_lshl3_add_u32 s%d, s%d, s%d" % (sCBK, sT0, sDB))
    e("s_lshl1_add_u32 s%d, s%d, s%d" % (sR, sWP, sDB))
    if P("ROT", 44) == 44:
        e("s_add_u32 s%d, s%d, s%d" % (sR, sWP, sDB))
        e("s_and_b32 s%d, s%d, 1" % (sR, sR))
        e("s_lshl_b32 s%d, s%d, 2" % (sR, sR))
    elif P("ROT", 44) == 66:
        e("s_add_u32 s%d, s%d, s%d" % (sR, sWP, sDB))
        e("s_and_b32 s%d, s%d, 3" % (sR, sR))
        e("s_lshl_b32 s%d, s%d, 1" % (sR, sR))
    else:
        e("s_and_b32 s%d, s%d, %d" % (sR, sR, P("ROT", 44)))
    e("s_lshl2_add_u32 s%d, s%d, s%d" % (sRS, sPB, sRW))
    e("s_lshr_b32 s%d, s%d, 1" % (sA, sPB))
    e("s_and_b32 s%d, s%d, 1" % (sT3, sPB))
    e("s_lshl1_add_u32 s%d, s%d, s%d" % (sWP, sT3, sT0))
    e("s_lshr_b32 s%d, s%d, 2" % (sHF, sHF))
    e("s_cbranch_scc1 L_fft")
    q_vm = list(k.vm.q)

    sXB, sM4, sM2, sHS, sFH, sHB, sFHC, sW2B = 48, 57, 58, 59, 60, 61, 62, 63
    TV = [50, 51, 52, 53, 54, 55, 56]
    sRSW, sCG, sRB = sPB, sHF, sCBK
    e("s_lshl_b32 s%d, s%d, 20" % (sXB, sT3))
    e("s_lshl2_add_u32 s%d, s%d, s%d" % (sT1, sA, sRW))
    e("s_lshl_b32 s%d, s%d, 10" % (sT1, sT1))
    e("s_add_u32 s%d, s%d, s%d" % (sXB, sXB, sT1))
    e("v_lshrrev_b32 v10, 3, v%d" % vLANE)
    e("v_and_b32 v12, 7, v%d" % vLANE)
    e("v_xor_b32 v6, v12, v%d" % vQ)
    e("v_lshlrev_b32 v6, 4, v6")
    e("v_lshl_add_u32 v6, v10, 15, v6")
    e("v_xor_b32 v7, 64, v6")
    e("v_add_u32 v7, 0x40000, v7")
    e("s_lshl_b32 s%d, s%d, 12" % (sM4, sRW))
    e("s_lshl_b32 s%d, s%d, 11" % (sM2, sRW))
    e("s_sub_u32 s%d, s%d, s%d" % (sF0, sCBK, sT0))
    e("s_lshl_b32 s%d, s%d, 8" % (sF0, sF0))
    e("s_cmp_eq_u32 s%d, 7" % sDB)
    e("s_cselect_b32 s%d, 0x%x, s%d" % (sF0, 0x08000000, sF0))
    e("s_waitcnt lgkmcnt(0)")
    e("s_load_dword s%d, s[%d:%d], 0x%x" % (sTAG, SWS, SWS + 1, EPOCH_OFF))

    def xdma(kk):
        def item(ee):
            def f():
                e("s_add_u32 m0, s%d, %d" % (sM4, XSLOT[kk] + ee * 1024))
                if ee == 0:
                    e("s_add_u32 s%d, s%d, %d" % (sXT, sR, kk))
                    e("s_and_b32 s%d, s%d, 7" % (sXT, sXT))
                    e("s_lshl_b32 s%d, s%d, 7" % (sXT, sXT))
                    e("s_add_u32 s%d, s%d, s%d" % (sXT, sXT, sXB))
                elif ee == 2:
                    e("s_add_u32 s%d, s%d, 0x80000" % (sXT, sXT))
                else:
                    k.nop(1)
                e("buffer_load_dwordx4 v%d, %s, s%d offen lds" % (6 + (ee & 1), srd(SX), sXT))
                k.vm.issue(("X", kk))
            return f
        return [item(ee) for ee in range(4)]

    def w1dma(reg, kk):
        off = " offset:128" if reg else ""
        lb = (LA - 128 if reg else LB) + kk * 8192

        def f0():
            e("s_add_u32 s%d, s%d, %d" % (sDT, sR, kk))
            e("s_and_b32 s%d, s%d, 7" % (sDT, sDT))
            e("s_mul_i32 s%d, s%d, %d" % (sDT, sDT, 64 * 3584))
            e("s_add_u32 m0, s%d, %d" % (sM2, lb + 128))
            e("s_add_u32 s%d, s%d, s%d" % (sDT, sDT, sF0))
            if reg:
                e("s_add_u32 s%d, s%d, 128" % (sDT, sDT))
            else:
                e("s_add_u32 m0, s%d, %d" % (sM2, lb))
                k.nop(1)
            e("buffer_load_dwordx4 v8, %s, s%d offen lds" % (srd(SW1), sDT))
            k.vm.issue(("W1", reg, kk))

        def f1():
            e("s_add_u32 m0, s%d, %d" % (sM2, (LA if reg else LB) + kk * 8192 + 1024))
            k.nop(1)
            e("buffer_load_dwordx4 v9, %s, s%d offen lds" % (srd(SW1), sDT))
            k.vm.issue(("W1", reg, kk))
        return [f0, f1]

    def mtouch(sr_):
        e("s_lshl2_add_u32 s%d, s2, s%d" % (sT0, sRW))
        e("s_mul_i32 s%d, s%d, %d" % (sT0, sT0, 14 * 128))
        e("v_lshlrev_b32 v19, 7, v%d" % vLANE)
        e("s_mov_b32 m0, 0x%x" % L_DUM)
        e("s_mov_b64 exec, 0x3fff")
        e("buffer_load_dword v19, %s, s%d offen lds" % (srd(sr_), sT0))
        k.vm.issue("touch")
        e("s_mov_b64 exec, -1")
    T1P, T2P = P("T1P", 1), P("T2P", 4)

    def touches(pos):
        if T1P == pos:
            mtouch(SW1)
        if T2P == pos:
            mtouch(SW2)
    run(xdma(0))
    touches(0)
    run(xdma(1))
    touches(1)
    k.stamp(2)
    e("s_lshl_b32 s%d, s%d, 4" % (sT0, sRW))
    e("v_add_u32 v11, s%d, v10" % sT0)
    e("v_mul_u32_u24 v11, 3584, v11")
    e("v_and_b32 v13, 1, v%d" % vQ)
    e("v_lshlrev_b32 v13, 1, v13")
    e("v_xor_b32 v13, v13, v12")
    e("v_lshl_add_u32 v8, v13, 4, v11")
    e("v_xor_b32 v13, 4, v13")
    e("v_lshl_add_u32 v9, v13, 4, v11")
    e("v_add_u32 v9, %d, v9" % (8 * 3584))
    vWS, vWW, vWR, vD2 = 15, 14, 13, 24
    e("v_lshlrev_b32 v15, 13, v10")
    e("v_lshl_add_u32 v15, v12, 4, v15")
    e("s_lshl_b32 s%d, s%d, 1" % (sT0, sRW))
    e("v_xor_b32 v14, s%d, v12" % sT0)
    e("v_lshlrev_b32 v14, 4, v14")
    e("v_lshl_add_u32 v14, v%d, 7, v14" % vLANE)
    e("v_add_u32 v14, 0x%x, v14" % L_WT)
    e("v_xor_b32 v13, v10, v12")
    e("v_lshlrev_b32 v13, 4, v13")
    e("v_lshl_add_u32 v13, v10, 7, v13")
    e("s_add_u32 s%d, s%d, 0x%x" % (sT0, sM2, L_WT))
    e("v_add_u32 v13, s%d, v13" % sT0)
    e("v_lshlrev_b32 v19, 1, v%d" % vQ)
    e("v_xor_b32 v19, v19, v12")
    e("v_lshlrev_b32 v19, 4, v19")
    e("v_lshl_add_u32 v%d, v10, 10, v19" % vD2)
    xread_addr(26)
    e("v_mov_b32 v19, 0")
    e("v_lshl_add_u32 v30, v%d, 2, v%d" % (vC, vCNT))
    e("ds_write_b32 v30, v19")
    XF, AF, ACC, HO, CS, ONES = 128, 32, 64, 32, 112, 116
    TRB = [16, 17, 18, 20]
    e("v_lshrrev_b32 v19, 2, v%d" % vC)
    e("v_lshl_add_u32 v30, v%d, 3, v19" % vQ)
    e("v_lshlrev_b32 v30, 7, v30")
    e("v_and_b32 v31, 1, v%d" % vC)
    e("v_lshl_add_u32 v30, v31, 3, v30")
    e("v_bfe_u32 v19, v%d, 3, 1" % vC)
    e("v_and_b32 v31, 1, v%d" % vQ)
    e("v_lshl_or_b32 v19, v31, 1, v19")
    e("v_lshlrev_b32 v19, 1, v19")
    e("v_bfe_u32 v31, v%d, 1, 1" % vC)
    e("v_or_b32 v19, v19, v31")
    e("v_lshl_add_u32 v30, v19, 4, v30")
    e("v_add_u32 v30, 0x%x, v30" % LB)
    for l in range(4):
        e("v_xor_b32 v%d, %d, v30" % (TRB[l], 32 * l))
    vCSA, RN, C1 = 99, 120, [108, 112, 116, 124]
    TR2 = [100, 101, 102, 103]
    HV = [104, 105, 106, 107]
    vFH = 106
    def setup_a():
        e("v_lshlrev_b32 v%d, 4, v%d" % (vCSA, vQ))
        e("v_add_u32 v%d, 0x%x, v%d" % (vCSA, L_CS, vCSA))
        e("s_lshl_b32 s%d, s%d, 9" % (sT0, sRW))
        e("s_add_u32 s%d, s%d, 0x%x" % (sT0, sT0, L_ST))
        e("v_lshl_add_u32 v96, v%d, 2, s%d" % (vC, sT0))
        e("s_mul_i32 s%d, s%d, %d" % (sHB, sRS, 2 * 56 * 1024))
        e("s_add_u32 s%d, s%d, 0x%x" % (sHB, sHB, H_OFF))
        e("s_lshl4_add_u32 s%d, s%d, s%d" % (sHS, sF0, sHB))
        e("s_and_b32 s%d, s2, 1" % sT2)
        e("s_lshl1_add_u32 s%d, s%d, s%d" % (sFHC, sPB, sT2))
        e("s_lshl2_add_u32 s%d, s%d, s%d" % (sFHC, sFHC, sRW))
        e("s_lshl_b32 s%d, s%d, 7" % (sFHC, sFHC))
        e("s_add_u32 s%d, s%d, 0x%x" % (sFHC, sFHC, FH_OFF))
        e("s_lshl2_add_u32 s%d, s%d, s%d" % (sFH, sDB, sFHC))
        e("s_mul_i32 s%d, s%d, 7" % (sT0, sT2))
        e("s_lshr_b32 s%d, s2, 6" % sT1)
        e("s_lshl1_add_u32 s%d, s%d, s%d" % (sT1, sT1, sDB))
        e("s_and_b32 s%d, s%d, 7" % (sT1, sT1))
        e("s_cmp_eq_u32 s%d, 7" % sT1)
        e("s_cselect_b32 s%d, 0, s%d" % (sT1, sT1))
        for i in range(7):
            e("s_add_u32 s%d, s%d, s%d" % (TV[i], sT1, sT0))
            if i < 6:
                e("s_add_u32 s%d, s%d, 1" % (sT1, sT1))
                e("s_cmp_eq_u32 s%d, 7" % sT1)
                e("s_cselect_b32 s%d, 0, s%d" % (sT1, sT1))
        e("s_lshl_b32 s%d, s%d, 7" % (sW2B, sDB))
        e("s_lshl_b32 s%d, s%d, 14" % (sT0, sRW))
        e("s_add_u32 s%d, s%d, s%d" % (sW2B, sW2B, sT0))
        e("s_mul_i32 s%d, s%d, %d" % (sT0, sT2, 56 * 1024))
        e("v_add_u32 v%d, s%d, v%d" % (HV[0], sT0, vL16))
        e("s_sub_u32 s%d, %d, s%d" % (sT0, 56 * 1024, sT0))
        e("v_add_u32 v%d, s%d, v%d" % (HV[1], sT0, vL16))
        e("v_min_u32 v19, 6, v%d" % vLANE)
        e("v_lshlrev_b32 v%d, 2, v19" % vFH)
        late_setup(0)
        e("v_add_u32 v30, 0x%x, v%d" % (LB, vZB))
        for l in range(4):
            e("v_xor_b32 v%d, %d, v30" % (TR2[l], 32 * l))

    setup_a()
    run(xdma(2))
    run(xdma(3))
    touches(2)
    tag_setup()
    k.stamp(3)

    def X(u, T):
        return vr(XF + (T * 2 + u) * 4, 4)

    WR16 = 64

    def wloads():
        items = []

        def head():
            e("s_lshr_b32 s%d, s2, 5" % sRSW)
            e("s_and_b32 s%d, s2, 7" % sT1)
            e("s_lshl3_add_u32 s%d, s%d, s%d" % (sRSW, sT1, sRSW))
            e("s_and_b32 s%d, s%d, 3" % (sCG, sDB))
            e("s_lshr_b32 s%d, s%d, 4" % (sT1, sRSW))
            e("s_lshl_b32 s%d, s%d, 4" % (sT1, sT1))
            e("s_lshl1_add_u32 s%d, s%d, s%d" % (sT1, sRW, sT1))
            e("s_and_b32 s%d, s%d, 1" % (sT2, sRSW))
            e("s_lshl3_add_u32 s%d, s%d, s%d" % (sT1, sT2, sT1))
            e("s_bfe_u32 s%d, s%d, 0x30001" % (sT2, sRSW))
            e("s_lshl_b32 s%d, s%d, 8" % (sT2, sT2))
            e("s_add_u32 s%d, s%d, s%d" % (sT1, sT1, sT2))
            e("s_mul_i32 s%d, s%d, 514" % (sT1, sT1))
            e("s_lshl_b32 s%d, s%d, 7" % (sT4, sCG))
            e("s_add_u32 s%d, s%d, s%d" % (sT4, sT4, sT1))
            e("v_lshlrev_b32 v11, 1, v%d" % vLANE)
            e("v_and_b32 v19, 3, v%d" % vLANE)
            e("v_mul_u32_u24 v19, 32896, v19")
            e("v_bfe_u32 v30, v%d, 2, 1" % vLANE)
            e("v_mul_u32_u24 v30, 514, v30")
            e("v_add_u32 v19, v19, v30")
            e("s_cmp_eq_u32 s%d, 3" % sCG)
            e("s_cselect_b32 s%d, s%d, 0x%x" % (sT1, sT1, OOB))
            e("buffer_load_ushort v120, v19, %s, s%d offen offset:512" % (srd(SWR), sT1))
            k.vm.issue("wg")
            e("buffer_load_ushort v121, v19, %s, s%d offen offset:512" % (srd(SWI), sT1))
            k.vm.issue("wg")
        items.append(head)
        nt = " nt" if P("NTW", 1) else ""
        for r in range(4):
            def f(r=r):
                if r:
                    e("s_add_u32 s%d, s%d, 32896" % (sT4, sT4))
                for cb in range(2):
                    for arr, sr_ in ((0, SWR), (1, SWI)):
                        e("buffer_load_ushort v%d, v11, %s, s%d offen offset:%d%s" % (WR16 + 8 * cb + 4 * arr + r, srd(sr_), sT4, 514 * cb, nt))
                        k.vm.issue("wg")
            items.append(f)
        return items

    def wt_a():
        k.wait_vm("wg")
        for cb in range(2):
            for r in range(4):
                e("v_lshl_or_b32 v%d, v%d, 16, v%d" % (WR16 + 8 * cb + r, WR16 + 8 * cb + 4 + r, WR16 + 8 * cb + r))
        e("v_lshl_or_b32 v120, v121, 16, v120")
        e("ds_write_b128 v%d, %s" % (vWW, vr(WR16, 4)))
        k.lg.issue("wtw")
        e("v_xor_b32 v19, 16, v%d" % vWW)
        e("ds_write_b128 v19, %s" % vr(WR16 + 8, 4))
        k.lg.issue("wtw")
        e("s_lshl_b32 s%d, s%d, 5" % (sT0, sRW))
        e("s_add_u32 s%d, s%d, 0x%x" % (sT0, sT0, L_W256))
        e("v_lshl_add_u32 v19, v%d, 2, s%d" % (vLANE, sT0))
        e("s_mov_b64 exec, 0xff")
        e("ds_write_b32 v19, v120")
        k.lg.issue("wtw")
        e("s_mov_b64 exec, -1")

    def wt_b():
        for h in range(2):
            e("ds_read_b128 %s, v%d offset:%d" % (vr(WR16 + 4 * h, 4), vWR, 1024 * h))
            k.lg.issue("wtr")
        e("v_add_u32 v19, 0x%x, v%d" % (L_W256, vL16))
        e("ds_read_b128 %s, v19" % vr(WR16 + 8, 4))
        k.lg.issue("wtr")

    def wt_c():
        k.wait_lg("wtr")
        e("s_lshl2_add_u32 s%d, s%d, s%d" % (sT2, sCG, sRW))
        e("s_lshl_b32 s%d, s%d, 17" % (sT0, sT2))
        e("s_lshl_b32 s%d, s%d, 7" % (sT1, sRSW))
        e("s_add_u32 s%d, s%d, s%d" % (sT0, sT0, sT1))
        e("s_add_u32 s%d, s%d, 0x%x" % (sT0, sT0, WT_OFF))
        e("buffer_store_dwordx4 %s, v%d, %s, s%d offen sc1" % (vr(WR16, 4), vWS, srd(SWS), sT0))
        k.vm.issue("wtst")
        e("s_add_u32 s%d, s%d, 0x10000" % (sT0, sT0))
        e("buffer_store_dwordx4 %s, v%d, %s, s%d offen sc1" % (vr(WR16 + 4, 4), vWS, srd(SWS), sT0))
        k.vm.issue("wtst")
        e("s_add_u32 s%d, s%d, 0x%x" % (sT1, sT1, WT_OFF + 256 * 8192))
        e("s_cmp_eq_u32 s%d, 12" % sT2)
        e("s_cselect_b32 s%d, s%d, 0x%x" % (sT1, sT1, OOB))
        e("s_mov_b64 exec, 0xff")
        e("buffer_store_dwordx4 %s, v%d, %s, s%d offen sc1" % (vr(WR16 + 8, 4), vL16, srd(SWS), sT1))
        k.vm.issue("wtst")
        e("s_mov_b64 exec, -1")

    def wt_d():
        e("s_lshl2_add_u32 s%d, s%d, s%d" % (sT2, sCG, sRW))
        e("s_lshr_b32 s%d, s%d, 2" % (sT1, sRSW))
        e("s_lshl4_add_u32 s%d, s%d, s%d" % (sT0, sT2, sT1))
        e("s_lshl_b32 s%d, s%d, 7" % (sT0, sT0))
        e("s_and_b32 s%d, s%d, 3" % (sT1, sRSW))
        e("s_lshl2_add_u32 s%d, s%d, s%d" % (sT0, sT1, sT0))
        e("s_add_u32 s%d, s%d, 0x%x" % (sT0, sT0, FW_OFF))
        e("s_add_u32 s%d, s%d, 0x%x" % (sT1, sT0, 4 * 2048))
        e("s_cmp_eq_u32 s%d, 12" % sT2)
        e("s_cselect_b32 s%d, s%d, 0x%x" % (sT1, sT1, OOB))
        k.wait_vm("wtst")
        publish("s%d" % sT0)
        publish("s%d" % sT1)
        e("s_mov_b32 s%d, 0" % sHF)

    def xstage(s_):
        for kk in (2 * s_, 2 * s_ + 1):
            for u in range(2):
                for ks in range(2):
                    xread(X(u, 2 * kk + ks), 26, kk, u, ks, ("XR", s_))
    WPOS = P("WPOS", -1)
    if WPOS < 0:
        run(wloads())
    for s_ in range(4):
        k.wait_vm(("X", 2 * s_ + 1))
        if s_:
            k.wait_lg([("XR", s_ - 1)] + (["wtw"] if s_ == WPOS + 3 else []))
        e("s_barrier")
        fs(6, 2 + s_)
        xstage(s_)
        if s_ == WPOS + 3:
            wt_b()
        if s_ < 2:
            run(xdma(4 + 2 * s_) + xdma(5 + 2 * s_))
        WAS = [int(x_) for x_ in os.environ.get("WAS", "0,0,4,8").split(",")]
        for kk in range(WAS[s_ - 1] if s_ else 0, WAS[s_]):
            run(w1dma(0, kk))
        if s_ == WPOS:
            run(wloads())
        touches(3 + s_)
        if s_ == WPOS + 2:
            wt_a()
        if s_ == WPOS + 3:
            wt_c()
    k.wait_vm([("W1", 0, kk) for kk in range(4)])
    k.wait_lg(("XR", 3))
    e("s_barrier")
    k.stamp(4)
    fs(6, 6)


    def rdA(reg, T):
        items = []
        for l in range(4):
            for hh in range(2):
                def f(l=l, hh=hh):
                    e("ds_read_b64_tr_b16 %s, v%d offset:%d" % (vr(AF + (T & 1) * 16 + 4 * l + 2 * hh, 2), TRB[l], T * 4096 + hh * 512))
                    k.lg.issue(("A", reg, T))
                items.append(f)
        return items

    def gpass(reg, hooks, mid):
        fs(8 + reg, 2)
        run(rdA(reg, 0))
        for T in range(16):
            k.wait_lg(("A", reg, T))
            if T == 7:
                gcheck(mid, 107)
            if T == 6:
                gpeek(mid, 107)
            if T == 14:
                gpeek(C_FB if reg else C_FA, 107)
            if T == 15 and reg == 0:
                gpeek(C_WB1, 97)
            if T == 0 and reg == 1:
                gpeek(C_CSA, 98)
            if T + 1 < 16:
                sch["lds"].extend(rdA(reg, T + 1))
            for l in range(4):
                a = vr(AF + (T & 1) * 16 + 4 * l, 4)
                for u in range(2):
                    c = vr(ACC + (l * 2 + u) * 4, 4)
                    mf(c, a, X(u, T), c if T else "0")
            flush_lds()
            run(hooks.get(T, []))
            if T < 11:
                fs(8 + reg, 3 + T)
        flush_side()

    def c1_fetch(reg):
        def f():
            gcheck(C_FB if reg else C_FA, 107)
            if reg == 0:
                for u in range(2):
                    e("ds_read2_b32 %s, v96 offset0:%d offset1:%d" % (vr(RN + 2 * u, 2), 32 + 16 * u, 16 * u))
                    k.lg.issue(("C1", reg))
            for l in range(4):
                e("ds_read_b128 %s, v%d offset:%d" % (vr(C1[l], 4), vCSA, 256 * reg + 64 * l))
                k.lg.issue(("C1", reg))
        return f

    def h_out(reg, cw, tag):
        garrive(cw)
        e("s_add_u32 s%d, s%d, %d" % (sT2, sHS, 2048 * reg))
        e("s_add_u32 s%d, s%d, %d" % (sT3, sHS, 2048 * reg + 56 * 1024))
        k.wait_lg(("C1", reg))
        for pr in range(2):
            for u in range(2):
                o = HO + (pr * 2 + u) * 4
                for l in (2 * pr, 2 * pr + 1):
                    a = ACC + (l * 2 + u) * 4
                    for r in (0, 2):
                        e("v_pk_fma_f32 %s, %s, %s, %s op_sel_hi:[1,0,1]" % (vr(a + r, 2), vr(C1[l] + r, 2), vr(RN + 2 * u, 2), vr(a + r, 2)))
                for l in (2 * pr, 2 * pr + 1):
                    a = ACC + (l * 2 + u) * 4
                    e("v_cvt_pk_bf16_f32 v%d, v%d, v%d" % (o + (l & 1) * 2, a, a + 1))
                    e("v_cvt_pk_bf16_f32 v%d, v%d, v%d" % (o + (l & 1) * 2 + 1, a + 2, a + 3))
                for i in range(4):
                    e("v_pk_max_i16 v%d, v%d, 0" % (o + i, o + i))
                e("buffer_store_dwordx4 %s, v%d, %s, s%d offen offset:%d sc1" % (vr(o, 4), vL16, srd(SWS), sT2 + u, 1024 * pr))
                k.vm.issue(tag)

    def land(reg, lo, hi, cw):
        def f():
            k.wait_vm([("W1", reg, kk) for kk in range(lo, hi)])
            garrive(cw)
        return f

    sch["gap"] = P("GAPA", 4)
    for kk in range(8):
        side.extend(w1dma(1, kk))
    ha = {3: [land(0, 4, 8, C_WA2)], 11: [land(1, 0, 4, C_WB1)], P("WTD", 2): [wt_d], 13: [land(1, 4, 8, C_WB2)], 14: [c1_fetch(0)]}
    gpass(0, ha, C_WA2)
    k.stamp(5)
    h_out(0, C_CSA, "ha")
    k.stamp(6)

    for l in range(4):
        e("v_subrev_u32 v%d, 0x%x, v%d" % (TRB[l], LB, TRB[l]))
    gcheck(C_WB1, 97)

    def w2_dma(late, j):
        lb = (LA if late else LB) + j * 8192

        def f0():
            e("s_add_u32 m0, s%d, %d" % (sM2, lb))
            e("s_lshl_b32 s%d, s%d, 17" % (sDT, TV[j]))
            e("s_add_u32 s%d, s%d, s%d" % (sDT, sDT, sW2B))
            if late:
                e("s_add_u32 s%d, s%d, 0x10000" % (sDT, sDT))
            e("buffer_load_dwordx4 v%d, %s, s%d offen lds" % (vD2, srd(SW2), sDT))
            k.vm.issue(("W2", late))

        def f1():
            e("s_add_u32 m0, s%d, %d" % (sM2, lb + 1024))
            e("s_add_u32 s%d, s%d, 8192" % (sDT, sDT))
            e("buffer_load_dwordx4 v%d, %s, s%d offen lds" % (vD2, srd(SW2), sDT))
            k.vm.issue(("W2", late))
        return [f0, f1]

    def rdW(n):
        items = []
        for l in range(4):
            for hh in range(2):
                def f(l=l, hh=hh):
                    e("ds_read_b64_tr_b16 %s, v%d offset:%d" % (vr(AF + (n & 1) * 16 + 4 * l + 2 * hh, 2), TR2[l], (n % 14) * 4096 + hh * 2048))
                    k.lg.issue(("W2R", n))
                items.append(f)
        return items

    def hload(n):
        late, m = n // 14, n % 14

        def item(u):
            def f():
                if u == 0 and m % 2 == 0:
                    e("s_lshl_b32 s%d, s%d, 12" % (sXT, TV[m // 2]))
                    e("s_add_u32 s%d, s%d, s%d" % (sXT, sXT, sHB))
                e("buffer_load_dwordx4 %s, v%d, %s, s%d offen offset:%d sc1" % (X(u, m), HV[u], srd(SWS), sXT, 2048 * late + 1024 * (m & 1)))
                k.vm.issue(("H", n))
            return f
        return [item(0), item(1)]

    def pubHA():
        k.wait_vm("ha")
        publish("s%d" % sFH)
        e("s_add_u32 s%d, s%d, 0x%x" % (sFH, sFH, FHB_D))

    def landW(late, cw):
        def f():
            k.wait_vm(("W2", late))
            garrive(cw)
        return f
    hb = {T: [] for T in range(16)}
    hb[P("W2T0", 0)].append(lambda: gcheck(C_CSA, 98))
    hb[P("W2T0", 0)].append(lambda: [side.extend(w2_dma(0, j)) for j in range(7)])
    hb[14].append(c1_fetch(1))
    hb[P("PHA", 3)].append(pubHA)
    HLA = P("HLA", 6)
    HE = P("HE", 16)
    hb[min(HE - 2, P("PPA", 12))].append(lambda: poll_issue("ph", vFH, "s%d" % sFHC, 31))
    if HE < 16:
        def hearly():
            poll_check("ph", vFH, "s%d" % sFHC, 31)
            for n in range(HLA):
                side.extend(hload(n))
            sch["gap"] = 2
        hb[HE].append(hearly)

    def w2touch():
        e("s_lshr_b32 s%d, s2, 6" % sT0)
        e("s_lshl2_add_u32 s%d, s%d, s%d" % (sT0, sT0, sRW))
        e("s_mul_i32 s%d, s%d, 28" % (sT0, sT0))
        e("v_add_u32 v19, s%d, v%d" % (sT0, vLANE))
        e("v_and_b32 v30, 0xffc0, v19")
        e("v_add3_u32 v19, v19, v30, 64")
        e("v_lshlrev_b32 v19, 10, v19")
        e("s_and_b32 s%d, s2, 1" % sT0)
        e("s_mul_i32 s%d, s%d, %d" % (sT0, sT0, 896 * 1024))
        e("s_lshl_b32 s%d, s%d, 7" % (sT1, sDB))
        e("s_add_u32 s%d, s%d, s%d" % (sT0, sT0, sT1))
        e("s_mov_b32 m0, 0x%x" % L_DUM)
        e("s_mov_b64 exec, 0xfffffff")
        e("buffer_load_dword v19, %s, s%d offen lds" % (srd(SW2), sT0))
        k.vm.issue("touch")
        e("s_mov_b64 exec, -1")
    if P("W2L", 8) < 16:
        hb[P("W2L", 8)].append(w2touch)
    hb[P("LE1", 13)].append(landW(0, C_E1))
    sch["gap"] = P("GAPB", 4)
    gpass(1, hb, C_WB2)
    k.stamp(7)
    fs(10, 2)
    if HE == 16:
        poll_check("ph", vFH, "s%d" % sFHC, 31)
        fs(10, 3)
        for n in range(HLA):
            run(hload(n))
    fs(10, 4)
    gpeek(C_E1, 97)
    h_out(1, C_CSB, "hb")
    fs(10, 5)
    if HE == 17:
        poll_check("ph", vFH, "s%d" % sFHC, 31, pre=["    s_waitcnt vmcnt(0)"] + publish_lines("s%d" % sFH))
        for n in range(HLA):
            run(hload(n))
    k.stamp(8)
    gcheck(C_E1, 97)
    run(rdW(0))
    gpeek(C_CSB, 98)
    sch["gap"] = P("GAP3", 2)
    fs(7, 2)
    fs(10, 6)
    LCH = 14 - P("LLA", 2)
    nxt = HLA
    wl = [it for j in range(7) for it in w2_dma(1, j)]
    for n in range(28):
        k.wait_lg(("W2R", n))
        if n == LCH:
            poll_check("phb", vFH, "s%d" % sFHC, 31)
        lim = 14 if n < LCH else 28
        cnt = 0
        while nxt < min(lim, n + 1 + HLA) and nxt - 14 < n and cnt < 2:
            side.extend(hload(nxt))
            nxt += 1
            cnt += 1
        if n == 0:
            gcheck(C_CSB, 98)
        if wl:
            side.extend(wl[:2])
            wl = wl[2:]
        k.wait_vm(("H", n))
        if n == P("PHB", 3):
            k.wait_vm("hb")
            publish("s%d" % sFH)
        if n == LCH - P("PPB", 2):
            e("s_add_u32 s%d, s%d, 0x%x" % (sFHC, sFHC, FHB_D))
            poll_issue("phb", vFH, "s%d" % sFHC, 31)
        if n == 10:
            landW(1, C_L1)()
        if n == 12:
            gpeek(C_L1, 107)
        if n == P("ZGO", 18):
            garrive(C_WT)
        if n == 13:
            for l in range(4):
                e("v_subrev_u32 v%d, 0x%x, v%d" % (TR2[l], LB, TR2[l]))
            gcheck(C_L1, 107)
        if n in (20, 21):
            for i in range(4):
                e("v_mov_b32 v%d, v%d" % (128 + 8 * (n - 20) + 2 * i + 1, vTAG))
        if n + 1 < 28:
            sch["lds"].extend(rdW(n + 1))
        for l in range(4):
            a = vr(AF + (n & 1) * 16 + 4 * l, 4)
            for u in range(2):
                c = vr(ACC + (u * 4 + l) * 4, 4)
                mf(c, a, X(u, n % 14), c if n else "0")
        flush_side()
        if n % 3 == 2:
            fs(7, 3 + n // 3)
        if n < 7:
            fs(10, 7 + n)
        if 5 <= n < 17:
            fs(11, n - 3)
        if n == 13:
            k.stamp(9)
    k.stamp(10)
    e("s_lshl2_add_u32 s%d, s2, s%d" % (sT1, sRW))
    e("s_lshl_b32 s%d, s%d, 12" % (sT1, sT1))
    e("s_add_u32 s%d, s%d, 0x%x" % (sT1, sT1, YX_OFF))
    k.nop(1)
    fs(12, 2)
    garrive(C_GY)
    for i in range(4):
        e("v_cvt_pk_bf16_f32 v%d, v%d, v%d" % (128 + 4 * i, ACC + 16 + 4 * i, ACC + 17 + 4 * i))
        e("v_cvt_pk_bf16_f32 v%d, v%d, v%d" % (128 + 4 * i + 2, ACC + 18 + 4 * i, ACC + 19 + 4 * i))
        e("buffer_store_dwordx4 %s, v%d, %s, s%d offen offset:%d sc1" % (vr(128 + 4 * i, 4), vL16, srd(SWS), sT1 + (i >> 2), 1024 * (i & 3)))
        k.vm.issue("yst")
    xe_load()
    e("s_xor_b32 s%d, s%d, 0x4000" % (sT1, sT1))
    e("s_lshl_b32 s%d, s%d, 12" % (sT4, sRW))
    e("v_add_u32 v10, s%d, v%d" % (sT4, vYW))
    for dt in range(1, 4):
        e("v_xor_b32 v%d, %d, v10" % (10 + dt, 64 * dt))
    fs(12, 3)
    gwait(C_GY)
    fs(12, 4)
    if P("YW", 1):
        k.wait_vm("yst")
    fs(12, 5)
    YR = 160
    e("s_mov_b32 s%d, 0" % sCNT)
    k.lab("L_yx")
    for i in range(4):
        e("buffer_load_dwordx4 %s, v%d, %s, s%d offen offset:%d sc1" % (vr(YR + 4 * i, 4), vL16, srd(SWS), sT1 + (i >> 2), 1024 * (i & 3)))
    e("s_waitcnt vmcnt(0)")
    k.vm.clear()
    e("v_min3_u32 v30, v%d, v%d, v%d" % (YR + 1, YR + 3, vTAG))
    e("v_max3_u32 v31, v%d, v%d, v%d" % (YR + 1, YR + 3, vTAG))
    for i in range(1, 4):
        e("v_min3_u32 v30, v%d, v%d, v30" % (YR + 4 * i + 1, YR + 4 * i + 3))
        e("v_max3_u32 v31, v%d, v%d, v31" % (YR + 4 * i + 1, YR + 4 * i + 3))
    e("v_cmp_ne_u32 vcc, v30, v31")
    e("s_cmp_lg_u64 vcc, 0")
    e("s_cbranch_scc1 L_yxs")
    k.lab("L_yxb")
    fs(12, 6)
    tail.extend(["L_yxs:", "    s_add_u32 s%d, s%d, 1" % (sCNT, sCNT), "    s_cmp_lt_u32 s%d, 0x40000" % sCNT,
                 "    s_cbranch_scc0 L_yxb", "    s_sleep 6", "    s_branch L_yx"])
    k.stamp(11)
    e("s_bitcmp1_b32 s2, 0")
    e("s_cselect_b64 vcc, -1, 0")
    e("v_cndmask_b32 v%d, v%d, v%d, vcc" % (RN, RN + 1, RN + 3))
    for i in range(8):
        e("v_and_b32 v%d, 0xffff0000, v%d" % (YR + 2 * i + 1, YR + 2 * i))
        e("v_lshlrev_b32 v%d, 16, v%d" % (YR + 2 * i, YR + 2 * i))
    for i in range(8):
        e("v_pk_add_f32 %s, %s, %s" % (vr(ACC + 2 * i, 2), vr(ACC + 2 * i, 2), vr(YR + 2 * i, 2)))
    for i in range(8):
        e("v_pk_mul_f32 %s, %s, %s op_sel_hi:[1,0]" % (vr(ACC + 2 * i, 2), vr(ACC + 2 * i, 2), vr(RN, 2)))
    for dt in range(4):
        e("ds_write_b128 v%d, %s" % (10 + dt, vr(ACC + 4 * dt, 4)))
    k.lab("L_final")
    main_lines = k.lines

    k.lines = []
    k.vm.q, k.lg.q = list(q_vm), []
    k.lab("L_fft")
    sCC, sPL, sZR, sZI, sSC, sFXC, sGB, sFX = 48, 50, 51, 52, 53, 54, 55, 56
    C64, S64, N64, C32, S32, N32, T1C, T1S, T2C, T2S = 128, 136, 144, 152, 160, 168, 176, 184, 192, 200
    XB, PA, FB, SUM, GR, ONES = 32, 64, 96, 208, 216, 224
    e("s_waitcnt lgkmcnt(0)")
    e("s_load_dword s%d, s[%d:%d], 0x%x" % (sTAG, SWS, SWS + 1, EPOCH_OFF))

    def fgen(tl):
        t = 32
        e("s_lshl_b32 s%d, s%d, 5" % (sT0, sCBK))
        e("v_add_u32 v%d, s%d, v%d" % (t, sT0, vC))
        if tl:
            e("v_add_u32 v%d, 16, v%d" % (t, t))
        e("v_lshrrev_b32 v%d, 1, v%d" % (t + 1, t))
        e("v_and_b32 v%d, 1, v%d" % (t + 2, t))
        e("v_cvt_f32_u32 v%d, v%d" % (t + 2, t + 2))
        e("v_mul_f32 v%d, %s, v%d" % (t + 2, hexf(0.25), t + 2))
        if tl == 0:
            e("v_cmp_eq_u32 vcc, 1, v%d" % t)
            e("v_mov_b32 v%d, 256" % (t + 3))
        e("s_lshl_b32 s%d, s%d, 6" % (sT0, sR))
        if tl == 0:
            e("v_cndmask_b32 v%d, v%d, v%d, vcc" % (t + 1, t + 1, t + 3))
            e("v_cndmask_b32 v%d, v%d, 0, vcc" % (t + 2, t + 2))
        e("v_cvt_f32_u32 v%d, v%d" % (t + 1, t + 1))
        e("v_mul_f32 v%d, %s, v%d" % (t + 1, hexf(1.0 / 512), t + 1))
        e("v_lshl_add_u32 v%d, v%d, 3, s%d" % (t + 3, vQ, sT0))
        e("v_cvt_f32_u32 v%d, v%d" % (t + 3, t + 3))
        e("v_fma_f32 v%d, v%d, v%d, v%d" % (t + 2, t + 3, t + 1, t + 2))
        e("v_fract_f32 v%d, v%d" % (t + 8, t + 2))
        e("v_mul_f32 v%d, %s, v%d" % (t + 3, hexf(32.0), t + 1))
        e("v_fract_f32 v%d, v%d" % (t + 3, t + 3))
        for jj in range(1, 8):
            e("v_add_f32 v%d, v%d, v%d" % (t + 8 + jj, t + 7 + jj, t + 1))
        for Tf in range(4):
            for jj in range(8):
                e("v_cos_f32 v%d, v%d" % (t + 16 + jj, t + 8 + jj))
            if Tf < 3:
                for jj in range(8):
                    e("v_add_f32 v%d, v%d, v%d" % (t + 8 + jj, t + 8 + jj, t + 3))
            else:
                k.nop(1)
            for d in range(4):
                e("v_cvt_pk_bf16_f32 v%d, v%d, v%d" % (FB + 16 * tl + 4 * Tf + d, t + 16 + 2 * d, t + 17 + 2 * d))
    fgen(0)
    fgen(1)
    vSM, vAL, vBE = 16, 17, 18
    e("v_bfe_u32 v19, v%d, 1, 2" % vC)
    e("v_cvt_f32_u32 v19, v19")
    e("v_mul_f32 v19, %s, v19" % hexf(0.25))
    e("v_cos_f32 v%d, v19" % vAL)
    e("v_sin_f32 v%d, v19" % vBE)
    e("v_bfe_u32 v%d, v%d, 1, 1" % (vSM, vC))
    e("v_mul_u32_u24 v%d, 0x8000, v%d" % (vSM, vSM))
    e("v_lshl_or_b32 v%d, v%d, 16, v%d" % (vSM, vSM, vSM))
    e("v_rndne_f32 v%d, v%d" % (vAL, vAL))
    e("v_rndne_f32 v%d, v%d" % (vBE, vBE))
    e("v_lshlrev_b32 v19, 31, v%d" % vC)
    e("v_xor_b32 v%d, v19, v%d" % (vBE, vBE))
    for d in range(4):
        e("v_mov_b32 v%d, 0x3f803f80" % (ONES + d))
    xread_addr(26)
    k.stamp(2)

    def cconst():
        t = 32
        slot = [16 * (jj >> 2) + (jj & 3) for jj in range(8)]
        yield "s_lshl_b32 s%d, s%d, 4" % (sT3, sRW)
        yield "v_add_u32 v%d, s%d, v%d" % (t + 24, sT3, vC)
        yield "v_cvt_f32_u32 v%d, v%d" % (t + 27, vQ)
        yield "v_cvt_f32_u32 v%d, v%d" % (t + 25, t + 24)
        yield "v_mul_f32 v%d, 4.0, v%d" % (t + 27, t + 27)
        yield "v_cvt_f32_u32 v%d, v%d" % (t + 28, vC)
        yield "v_and_b32 v%d, 1, v%d" % (t + 30, vC)
        for jj in range(8):
            yield "v_add_f32 v%d, %s, v%d" % (t + 32 + jj, hexf(float(slot[jj])), t + 27)
        yield "v_mul_u32_u24 v%d, 0x8000, v%d" % (t + 30, t + 30)
        yield "v_mul_f32 v%d, %s, v%d" % (t + 26, hexf(1.0 / 64), t + 25)
        yield "v_lshl_or_b32 v%d, v%d, 16, v%d" % (t + 30, t + 30, t + 30)
        for (scale, Cb, Sb, Nb, flip) in ((t + 26, C64, S64, N64, "v%d" % (t + 30)), (t + 29, C32, S32, N32, "0x80000000")):
            if Cb == C32:
                yield "v_mul_f32 v%d, %s, v%d" % (t + 29, hexf(1.0 / 32), t + 28)
                yield "v_mul_f32 v%d, %s, v%d" % (t + 26, hexf(1.0 / 2048), t + 25)
            for jj in range(8):
                yield "v_mul_f32 v%d, v%d, v%d" % (t + jj, t + 32 + jj, scale)
            for jj in range(8):
                yield "v_cos_f32 v%d, v%d" % (t + 8 + jj, t + jj)
            for jj in range(8):
                yield "v_sin_f32 v%d, v%d" % (t + 16 + jj, t + jj)
            for d in range(4):
                yield "v_cvt_pk_bf16_f32 v%d, v%d, v%d" % (Cb + d, t + 8 + 2 * d, t + 9 + 2 * d)
            for d in range(4):
                yield "v_cvt_pk_bf16_f32 v%d, v%d, v%d" % (Sb + d, t + 16 + 2 * d, t + 17 + 2 * d)
            for d in range(4):
                yield "v_xor_b32 v%d, %s, v%d" % (Cb + 4 + d, flip, Cb + d)
            for d in range(4):
                yield "v_xor_b32 v%d, %s, v%d" % (Sb + 4 + d, flip, Sb + d)
            for d in range(8):
                yield "v_xor_b32 v%d, 0x80008000, v%d" % (Nb + d, Sb + d)
        for i in range(8):
            yield "v_mul_f32 v%d, v%d, v%d" % (t + i, t + 32 + i, t + 26)
        yield "v_cvt_f32_u32 v%d, s%d" % (t + 29, sT3)
        for i in range(8):
            yield "v_cos_f32 v%d, v%d" % (T1C + i, t + i)
            yield "v_sin_f32 v%d, v%d" % (T1S + i, t + i)
        yield "v_mul_f32 v%d, %s, v%d" % (t + 26, hexf(1.0 / 2048), t + 28)
        for r in range(4):
            yield "v_add_f32 v%d, v%d, v%d" % (t + 8 + r, t + 29, t + 32 + r)
        yield "v_add_f32 v%d, %s, v%d" % (t + 25, hexf(16.0 / 2048), t + 26)
        for r in range(4):
            yield "v_mul_f32 v%d, v%d, v%d" % (t + r, t + 8 + r, t + 26)
        for r in range(4):
            yield "v_mul_f32 v%d, v%d, v%d" % (t + 4 + r, t + 8 + r, t + 25)
        for i in range(8):
            yield "v_cos_f32 v%d, v%d" % (T2C + i, t + i)
            yield "v_sin_f32 v%d, v%d" % (T2S + i, t + i)
    CCE = P("CCE", 1)
    if CCE:
        for s_ in cconst():
            e(s_)
    vX1 = 7
    e("v_lshrrev_b32 v7, 1, v%d" % vC)
    e("v_lshlrev_b32 v7, 13, v7")
    e("v_and_b32 v19, 1, v%d" % vC)
    e("v_lshl_add_u32 v7, v19, 6, v7")
    e("v_lshl_add_u32 v7, v%d, 4, v7" % vQ)
    e("s_lshl_b32 s%d, s%d, 9" % (sT0, sRW))
    e("s_add_u32 s%d, s%d, 0x%x" % (sT0, sT0, L_ST))
    e("v_lshl_add_u32 v8, v%d, 2, s%d" % (vC, sT0))
    e("v_lshl_add_u32 v9, v%d, 4, s%d" % (vQ, sT0))
    e("s_lshl4_add_u32 s%d, s%d, s%d" % (sFX, sCBK, sPB))
    e("s_lshl_b32 s%d, s%d, 7" % (sFX, sFX))
    e("s_lshl2_add_u32 s%d, s%d, s%d" % (sFX, sRW, sFX))
    tag_setup()
    k.stamp(3)
    e("s_setprio %d" % P("PRIO", 1))

    def XBf(kk, u, ks):
        return vr(XB + (((kk & 1) * 2 + ks) * 2 + u) * 4, 4)
    for s_ in range(4):
        e("s_barrier")
        fs(6, 2 + s_)
        for kk in (2 * s_, 2 * s_ + 1):
            for ks in range(2):
                for u in range(2):
                    xread(XBf(kk, u, ks), 26, kk, u, ks, ("XR", kk, ks))
        if s_ == 2:
            for i in range(32):
                e("v_xor_b32 v%d, v%d, v%d" % (FB + i, vSM, FB + i))
        for kk in (2 * s_, 2 * s_ + 1):
            for ks in range(2):
                T = 2 * kk + ks
                k.wait_lg(("XR", kk, ks))
                for u in range(2):
                    x = XBf(kk, u, ks)
                    mfma(vr(SUM + 4 * u, 4), vr(ONES, 4), x, vr(SUM + 4 * u, 4) if T else "0")
                    mfma(vr(GR + 4 * u, 4), x, x, vr(GR + 4 * u, 4) if T else "0")
                for u in range(2):
                    x = XBf(kk, u, ks)
                    for tl in range(2):
                        p = vr(PA + ((tl * 2 + ((T >> 2) & 1)) * 2 + u) * 4, 4)
                        mfma(p, x, vr(FB + 16 * tl + 4 * (T & 3), 4), "0" if T in (0, 4) else p)
    e("s_barrier")
    k.stamp(4)
    fs(6, 6)
    e("s_setprio %d" % P("XPRIO", 0))
    e("v_and_b32 v19, 3, v%d" % vC)
    k.nop(2)
    for r in range(1, 4):
        e("v_cmp_eq_u32 vcc, %d, v19" % r)
        k.nop(2)
        for u in range(2):
            e("v_cndmask_b32 v%d, v%d, v%d, vcc" % (GR + 4 * u, GR + 4 * u, GR + 4 * u + r))

    def stat_ops(u):
        m, q2, rs_, nm, d0 = SUM + 4 * u, GR + 4 * u, SUM + 4 * u + 1, SUM + 4 * u + 2, SUM + 4 * u + 3
        rnd = lambda v: ["v_cvt_pk_bf16_f32 v%d, v%d, v%d" % (v, v, v), "v_lshlrev_b32 v%d, 16, v%d" % (v, v)]
        return (["v_mul_f32 v%d, %s, v%d" % (m, hexf(1.0 / 512), m),
                 "v_mul_f32 v%d, %s, v%d" % (q2, hexf(1.0 / 512), q2),
                 "v_fma_f32 v%d, -v%d, v%d, v%d" % (q2, m, m, q2),
                 "v_max_f32 v%d, 0, v%d" % (q2, q2)] + rnd(q2) +
                ["v_add_f32 v%d, %s, v%d" % (q2, hexf(1e-5), q2)] + rnd(q2) +
                ["v_sqrt_f32 v%d, v%d" % (q2, q2), "v_sub_f32 v%d, 0, v%d" % (nm, m)] + rnd(q2) +
                ["v_rcp_f32 v%d, v%d" % (rs_, q2)] + rnd(nm) +
                ["v_add_f32 v%d, v%d, v%d" % (d0, m, nm), "v_mul_f32 v%d, %s, v%d" % (d0, hexf(512.0), d0)])
    for a_, b_ in zip(stat_ops(0), stat_ops(1)):
        e(a_)
        e(b_)
    e("s_mov_b32 exec_lo, 0x00f0000f")
    e("s_mov_b32 exec_hi, 0xf0000f00")
    for u in range(2):
        e("ds_write2_b32 v8, v%d, v%d offset0:%d offset1:%d" % (SUM + 4 * u + 1, SUM + 4 * u + 2, 16 * u, 32 + 16 * u))
        e("ds_write_b32 v8, v%d offset:%d" % (SUM + 4 * u + 3, 256 + 64 * u))
    e("s_mov_b64 exec, -1")
    RT, D0T = XB, XB + 8
    for u in range(2):
        e("ds_read_b128 %s, v9 offset:%d" % (vr(RT + 4 * u, 4), 64 * u))
        e("ds_read_b128 %s, v9 offset:%d" % (vr(D0T + 4 * u, 4), 256 + 64 * u))
    for tl in range(2):
        for i in range(8):
            e("v_fmac_f32 v%d, v%d, v%d" % (PA + 16 * tl + i, vAL, PA + 16 * tl + 8 + i))
        for i in range(8):
            e("v_fmac_f32_dpp v%d, v%d, v%d quad_perm:[1,0,3,2] row_mask:0xf bank_mask:0xf" % (PA + 16 * tl + i, PA + 16 * tl + 8 + i, vBE))
    e("v_or_b32 v19, s%d, v%d" % (sCBK, vC))
    e("v_cmp_eq_u32 vcc, 0, v19")
    e("s_lshl_b32 s%d, s%d, 17" % (sT0, sCBK))
    e("s_lshl2_add_u32 s%d, s%d, s%d" % (sT1, sA, sRW))
    e("s_lshr_b32 s%d, s%d, 1" % (sT2, sWP))
    e("s_lshl1_add_u32 s%d, s%d, s%d" % (sT1, sT1, sT2))
    e("s_lshl_b32 s%d, s%d, 7" % (sT1, sT1))
    e("s_add_u32 s%d, s%d, s%d" % (sT0, sT0, sT1))
    e("s_add_u32 s%d, s%d, 0x%x" % (sT1, sT0, X1C_OFF))
    e("s_add_u32 s%d, s%d, 0x%x" % (sT2, sT0, X1C_OFF + 65536))
    e("s_waitcnt lgkmcnt(0)")
    k.lg.clear()
    for i in range(8):
        e("v_cndmask_b32 v%d, v%d, v%d, vcc" % (PA + i, PA + i, D0T + i))
    for tl in range(2):
        for i in range(8):
            e("v_mul_f32 v%d, v%d, v%d" % (PA + 16 * tl + i, PA + 16 * tl + i, RT + i))
        o = 232 + 4 * tl
        for d in range(4):
            e("v_cvt_pk_bf16_f32 v%d, v%d, v%d" % (o + d, PA + 16 * tl + 2 * d, PA + 16 * tl + 2 * d + 1))
        e("buffer_store_dwordx4 %s, v%d, %s, s%d offen sc1" % (vr(o, 4), vX1, srd(SWS), sT1 + tl))
        k.vm.issue("x1st")
    k.stamp(5)

    def colsum(reg):
        if reg == 0:
            e("v_lshrrev_b32 v19, 2, v%d" % vC)
            e("v_lshl_add_u32 v20, v%d, 3, v19" % vQ)
            e("v_lshlrev_b32 v20, 7, v20")
            e("v_and_b32 v13, 1, v%d" % vC)
            e("v_lshl_add_u32 v20, v13, 3, v20")
            e("v_bfe_u32 v19, v%d, 3, 1" % vC)
            e("v_and_b32 v13, 1, v%d" % vQ)
            e("v_lshl_or_b32 v19, v13, 1, v19")
            e("v_xor_b32 v19, s%d, v19" % sRW)
            e("v_lshlrev_b32 v19, 1, v19")
            e("v_bfe_u32 v13, v%d, 1, 1" % vC)
            e("v_or_b32 v19, v19, v13")
            e("v_lshl_add_u32 v20, v19, 4, v20")
            e("v_add_u32 v13, 0x%x, v20" % LB)
            e("s_lshl_b32 s%d, s%d, 6" % (sT1, sRW))
            e("s_add_u32 s%d, s%d, 0x%x" % (sT1, sT1, L_CS))
            e("v_lshl_add_u32 v16, v%d, 4, s%d" % (vQ, sT1))
            gwait(C_WA2)
        else:
            gwait(C_WB1)
            gwait(C_WB2)
        base = 20 if reg else 13

        def rd(T):
            for hh in range(2):
                e("ds_read_b64_tr_b16 %s, v%d offset:%d" % (vr(48 + 4 * (T % 4) + 2 * hh, 2), base, T * 4096 + hh * 512))
                k.lg.issue(("CS", reg, T))
        for T in range(3):
            rd(T)
        for T in range(16):
            if T + 3 < 16:
                rd(T + 3)
            k.wait_lg(("CS", reg, T))
            mfma(vr(240, 4), vr(48 + 4 * (T % 4), 4), vr(ONES, 4), vr(240, 4) if T else "0")
        k.nop(6)
        e("s_mov_b32 exec_lo, 0x00010001")
        e("s_mov_b32 exec_hi, 0x00010001")
        e("ds_write_b128 v16, v[240:243] offset:%d" % (256 * reg))
        e("s_mov_b64 exec, -1")
        garrive(C_FB if reg else C_FA)
    colsum(0)
    e("s_setprio 0")
    GB = 64

    def ggen():
        t0 = 32
        an, stp = 252, 31
        yield "s_lshl_b32 s%d, s%d, 6" % (sT3, sDB)
        yield "s_lshl4_add_u32 s%d, s%d, s%d" % (sT3, sRW, sT3)
        yield "v_add_u32 v%d, s%d, v%d" % (t0, sT3, vC)
        yield "v_lshlrev_b32 v%d, 1, v%d" % (t0 + 2, vQ)
        yield "v_cvt_f32_u32 v%d, v%d" % (t0 + 1, t0)
        yield "v_cvt_f32_u32 v%d, v%d" % (t0 + 2, t0 + 2)
        yield "v_mul_f32 v%d, %s, v%d" % (t0 + 1, hexf(1.0 / 512), t0 + 1)
        yield "v_mul_f32 v%d, %s, v%d" % (stp, hexf(16.0), t0 + 1)
        for dw in range(4):
            yield "v_add_f32 v%d, %s, v%d" % (an + dw, hexf(float(8 * (dw >> 1) + (dw & 1))), t0 + 2)
        yield "v_fract_f32 v%d, v%d" % (stp, stp)
        for dw in range(4):
            yield "v_mul_f32 v%d, v%d, v%d" % (an + dw, an + dw, t0 + 1)
        yield "v_lshlrev_b32 v%d, 31, v%d" % (t0 + 16, vC)
        yield "v_min_u32 v%d, 1, v%d" % (t0 + 17, vQ)
        yield "v_or_b32 v%d, 0x3f800000, v%d" % (t0 + 16, t0 + 16)
        yield "v_sub_u32 v%d, v%d, 1" % (t0 + 17, t0 + 17)
        yield "v_and_b32 v%d, 0xffff0000, v%d" % (t0 + 17, t0 + 17)
        yield "v_and_b32 v17, 1, v%d" % vC
        yield "v_mul_u32_u24 v17, 0x020202, v17"
        yield "v_lshl_or_b32 v17, v17, 8, v17"
        yield "v_xor_b32 v17, 0x03020100, v17"
        yield "v_bfe_u32 v18, v%d, 1, 1" % vC
        yield "v_add_u32 v%d, 1, v%d" % (t0 + 18, vC)
        yield "v_bfe_u32 v%d, v%d, 1, 1" % (t0 + 18, t0 + 18)
        yield "v_lshlrev_b32 v18, 15, v18"
        yield "v_lshl_or_b32 v18, v%d, 31, v18" % (t0 + 18)
        for T in range(8):
            for dw in range(4):
                yield "v_cos_f32 v%d, v%d" % (t0 + 8 + 2 * dw, an + dw)
                yield "v_sin_f32_e64 v%d, -v%d" % (t0 + 9 + 2 * dw, an + dw)
            for dw in range(4):
                yield "v_add_f32 v%d, v%d, v%d" % (an + dw, an + dw, stp)
            for dw in range(4):
                yield "v_cvt_pk_bf16_f32 v%d, v%d, v%d" % (GB + 4 * T + dw, t0 + 8 + 2 * dw, t0 + 9 + 2 * dw)
            for dw in range(4):
                yield "v_perm_b32 v%d, v%d, v%d, v17" % (GB + 32 + 4 * T + dw, GB + 4 * T + dw, GB + 4 * T + dw)
            for dw in range(4):
                yield "v_xor_b32 v%d, v18, v%d" % (GB + 32 + 4 * T + dw, GB + 32 + 4 * T + dw)
            if T == 0:
                yield "v_bfi_b32 v%d, v%d, v%d, v%d" % (GB, t0 + 17, t0 + 16, GB)
    late_setup(1)
    e("v_add_u32 v6, 0x%x, v%d" % (LB, vZB))
    vFL, vFZ, vDZ = 14, 15, 9
    e("s_xor_b32 s%d, s2, 0x38" % sCC)
    flag_voff(vFZ, 63)
    e("v_and_b32 v%d, 0x1ff, v%d" % (vFL, vFZ))
    e("v_min_u32 v19, 1, v%d" % vQ)
    e("v_mul_u32_u24 v19, 0x%x, v19" % (FW_OFF - FX_OFF))
    e("v_add_u32 v%d, v19, v%d" % (vFL, vFL))
    e("s_cmp_eq_u32 s%d, 0" % sCC)
    e("s_cselect_b32 s%d, 0x%x, 0" % (sT0, 16 * 2048))
    e("v_lshrrev_b32 v19, 1, v%d" % vQ)
    e("v_mul_u32_u24 v19, s%d, v19" % sT0)
    e("v_add_u32 v%d, v19, v%d" % (vFL, vFL))
    e("s_lshr_b32 s%d, s%d, 4" % (sFXC, sCC))
    e("s_lshl2_add_u32 s%d, s%d, s%d" % (sFXC, sFXC, sRW))
    e("s_lshl_b32 s%d, s%d, 9" % (sFXC, sFXC))
    e("s_mov_b32 s%d, 0" % sGB)
    XI, TM, TW, DR, DI, PR, PI, CWL = 32, 32, 48, 208, 216, 224, 228, 232

    def xin(pl, v, tt):
        return XI + 4 * ((pl * 2 + v) * 2 + tt)
    e("v_add_u32 v26, 0x%x, v%d" % (L_C1, vYW))
    e("v_xor_b32 v27, 64, v26")
    e("v_xor_b32 v28, 128, v26")
    e("v_xor_b32 v29, 192, v26")
    e("s_lshr_b32 s%d, s%d, 1" % (sT0, sRW))
    e("s_lshl_b32 s%d, s%d, 7" % (sT0, sT0))
    e("s_and_b32 s%d, s%d, 1" % (sT1, sRW))
    e("s_lshl3_add_u32 s%d, s%d, s%d" % (sT0, sT1, sT0))
    e("v_xor_b32 v10, s%d, v26" % sT0)
    e("v_xor_b32 v11, 64, v10")
    e("v_lshlrev_b32 v12, 5, v%d" % vC)
    e("v_lshl_add_u32 v12, v%d, 3, v12" % vQ)
    e("s_lshl_b32 s%d, s%d, 10" % (sT0, sRW))
    e("v_add_u32 v12, s%d, v12" % sT0)
    e("s_lshl_b32 s%d, s%d, 13" % (sZR, sCC))
    e("s_add_u32 s%d, s%d, 0x%x" % (sZR, sZR, ZT_OFF))
    e("s_add_u32 s%d, s%d, 4096" % (sZI, sZR))
    e("s_mov_b32 s%d, %s" % (sSC, hexf(2.0 ** -19)))
    e("s_cmp_eq_u32 s%d, 0" % sCC)
    e("s_cselect_b32 s%d, 0x%x, s%d" % (sZI, OOB, sZI))
    e("s_cselect_b32 s%d, %s, s%d" % (sSC, hexf(2.0 ** -20), sSC))
    e("s_mov_b32 s%d, 0" % sPL)
    e("s_lshl_b32 s%d, s%d, 3" % (sT0, sT1))
    e("v_add_u32 v19, s%d, v%d" % (sT0, vQ))
    e("v_xor_b32 v30, v19, v%d" % vC)
    e("v_lshlrev_b32 v30, 4, v30")
    e("v_lshl_add_u32 v30, v%d, 8, v30" % vQ)
    e("v_xor_b32 v24, 64, v30")
    e("v_lshrrev_b32 v8, 3, v%d" % vLANE)
    e("v_and_b32 v9, 7, v%d" % vLANE)
    e("v_lshlrev_b32 v19, 1, v%d" % vQ)
    e("v_xor_b32 v19, v19, v9")
    e("v_lshlrev_b32 v19, 4, v19")
    e("v_lshl_add_u32 v%d, v8, 12, v19" % vDZ)
    k.wait_vm("x1st")
    publish("s%d" % sFX)
    xe_load()
    if P("NOFFT", 0):
        e("s_branch L_final")
    k.stamp(6)
    pre = ([] if CCE else list(cconst())) + ["v_mul_f32 v%d, s%d, v%d" % (T2C + i, sSC, T2C + i) for i in range(16)]
    gl = list(ggen())
    GE = P("GE", 152)
    pre += gl[:GE]
    gl = gl[GE:]
    n2 = max(0, len(pre) - P("PFXL", 0))
    for s_ in pre[:n2]:
        e(s_)
    colsum(1)
    poll_issue("pfx", vFL, "s%d" % sFXC, 13)
    for s_ in pre[n2:]:
        e(s_)
    k.stamp(7)
    e("s_setprio %d" % P("CPRIO", 1))
    poll_check("pfx", vFL, "s%d" % sFXC, 13)
    k.stamp(8)

    def gbar_lines():
        return ["    s_add_u32 s%d, s%d, 4" % (sGB, sGB)] + garrive_lines(C_F) + gwait_lines(C_F, "s%d" % sGB)

    def gbar():
        k.lines.extend(gbar_lines())
        k.lg.clear()
    e("s_lshl_b32 s%d, s%d, 13" % (sT0, sCC))
    e("s_lshl_b32 s%d, s%d, 11" % (sT1, sRW))
    e("s_add_u32 s%d, s%d, s%d" % (sT0, sT0, sT1))
    e("s_add_u32 s%d, s%d, 0x%x" % (sT2, sT0, X1C_OFF))
    e("s_add_u32 m0, s%d, 0x%x" % (sT1, L_C1))
    k.nop(1)
    e("buffer_load_dwordx4 v30, %s, s%d offen sc1 lds" % (srd(SWS), sT2))
    k.vm.issue("cin")
    e("buffer_load_dwordx4 v24, %s, s%d offen offset:1024 sc1 lds" % (srd(SWS), sT2))
    k.vm.issue("cin")
    e("s_add_u32 s%d, s%d, 0x%x" % (sT2, sT0, WT_OFF))
    for v in range(2):
        e("buffer_load_dwordx4 %s, v%d, %s, s%d offen offset:%d sc1" % (vr(CWL + 4 * v, 4), vL16, srd(SWS), sT2, v * 1024))
        k.vm.issue("cw")
    e("s_add_u32 s%d, s%d, 0x%x" % (sT2, sT2, 256 * 8192))
    e("s_cmp_eq_u32 s%d, 0" % sCC)
    e("s_cselect_b32 s%d, s%d, 0x%x" % (sT2, sT2, OOB))
    for v in range(2):
        e("buffer_load_dwordx4 %s, v%d, %s, s%d offen offset:%d sc1" % (vr(CWL + 8 + 4 * v, 4), vL16, srd(SWS), sT2, v * 1024))
        k.vm.issue("cw")
    k.wait_vm("cin")
    gbar()
    k.stamp(9)
    k.lab("L_ccol")
    for pl in range(2):
        for v in range(2):
            for tt in range(2):
                e("ds_read_b128 %s, v%d offset:%d" % (vr(xin(pl, v, tt), 4), 26 + 2 * tt + pl, v * 4096))
    e("s_waitcnt lgkmcnt(0)")
    e("s_cmp_eq_u32 s%d, 0" % sCC)
    e("s_cbranch_scc1 L_creal")
    k.lab("L_cplx")
    tail.append("L_creal:")
    tail.append("    s_cmp_eq_u32 s%d, 0" % sPL)
    tail.append("    s_cbranch_scc1 L_c0")
    for i in range(16):
        tail.append("    v_mov_b32 v%d, v%d" % (XI + i, XI + 16 + i))
    tail.append("L_c0:")
    for i in range(16):
        tail.append("    v_mov_b32 v%d, 0" % (XI + 16 + i))
    tail.append("    s_nop 1")
    tail.append("    s_branch L_cplx")
    for v in range(2):
        dr, di = vr(DR + 4 * v, 4), vr(DI + 4 * v, 4)
        for tt in range(2):
            mfma(dr, vr(xin(0, v, tt), 4), vr(C64 + 4 * tt, 4), dr if tt else "0")
            mfma(di, vr(xin(1, v, tt), 4), vr(C64 + 4 * tt, 4), di if tt else "0")
            mfma(dr, vr(xin(1, v, tt), 4), vr(S64 + 4 * tt, 4))
            mfma(di, vr(xin(0, v, tt), 4), vr(N64 + 4 * tt, 4))

    def cmul(cr, ci, conj):
        for h in range(2):
            for i in (4 * h, 4 * h + 2):
                e("v_pk_mul_f32 %s, %s, %s" % (vr(TM + i, 2), vr(DR + i, 2), vr(cr + i, 2)))
                e("v_pk_mul_f32 %s, %s, %s" % (vr(TM + 8 + i, 2), vr(DI + i, 2), vr(cr + i, 2)))
            neg = " neg_lo:[1,0,0] neg_hi:[1,0,0]"
            for i in (4 * h, 4 * h + 2):
                e("v_pk_fma_f32 %s, %s, %s, %s%s" % (vr(TM + i, 2), vr(DI + i, 2), vr(ci + i, 2), vr(TM + i, 2), "" if conj else neg))
                e("v_pk_fma_f32 %s, %s, %s, %s%s" % (vr(TM + 8 + i, 2), vr(DR + i, 2), vr(ci + i, 2), vr(TM + 8 + i, 2), neg if conj else ""))
        for d in range(4):
            e("v_cvt_pk_bf16_f32 v%d, v%d, v%d" % (PR + d, TM + 2 * d, TM + 2 * d + 1))
            e("v_cvt_pk_bf16_f32 v%d, v%d, v%d" % (PI + d, TM + 8 + 2 * d, TM + 9 + 2 * d))
        k.nop(2)
    cmul(T1C, T1S, True)
    pr, pi = vr(PR, 4), vr(PI, 4)
    for v in range(2):
        dr, di = vr(DR + 4 * v, 4), vr(DI + 4 * v, 4)
        mfma(dr, vr(C32 + 4 * v, 4), pr, "0")
        mfma(di, vr(C32 + 4 * v, 4), pi, "0")
        mfma(dr, vr(S32 + 4 * v, 4), pi)
        mfma(di, vr(N32 + 4 * v, 4), pr)
    k.wait_vm("cw")
    for i in range(8):
        e("v_lshlrev_b32 v%d, 16, v%d" % (TW + i, CWL + i))
        e("v_and_b32 v%d, 0xffff0000, v%d" % (TW + 8 + i, CWL + i))
    cmul(TW, TW + 8, False)
    for v in range(2):
        dr, di = vr(DR + 4 * v, 4), vr(DI + 4 * v, 4)
        mfma(dr, pr, vr(C32 + 4 * v, 4), "0")
        mfma(di, pi, vr(C32 + 4 * v, 4), "0")
        mfma(dr, pi, vr(N32 + 4 * v, 4))
        mfma(di, pr, vr(S32 + 4 * v, 4))
    k.nop(4)
    cmul(T2C, T2S, False)
    for v in range(2):
        e("ds_write_b64 v10, %s offset:%d" % (vr(PR + 2 * v, 2), 8192 + v * 4096))
        e("ds_write_b64 v11, %s offset:%d" % (vr(PI + 2 * v, 2), 8192 + v * 4096))
    e("s_waitcnt lgkmcnt(0)")
    gbar()
    for v in range(2):
        for tt in range(2):
            for pl in range(2):
                e("ds_read_b128 %s, v%d offset:%d" % (vr(xin(pl, v, tt), 4), 26 + 2 * tt + pl, 8192 + v * 4096))
                k.lg.issue(("cy", v, tt))
    for v in range(2):
        dr, di = vr(DR + 4 * v, 4), vr(DI + 4 * v, 4)
        for tt in range(2):
            k.wait_lg(("cy", v, tt))
            mfma(dr, vr(C64 + 4 * tt, 4), vr(xin(0, v, tt), 4), dr if tt else "0")
            mfma(di, vr(C64 + 4 * tt, 4), vr(xin(1, v, tt), 4), di if tt else "0")
            mfma(dr, vr(N64 + 4 * tt, 4), vr(xin(1, v, tt), 4))
            mfma(di, vr(S64 + 4 * tt, 4), vr(xin(0, v, tt), 4))
    for v in range(2):
        if v:
            k.nop(4)
        for d in range(2):
            e("v_cvt_pk_bf16_f32 v%d, v%d, v%d" % (PR + 2 * v + d, DR + 4 * v + 2 * d, DR + 4 * v + 2 * d + 1))
            e("v_cvt_pk_bf16_f32 v%d, v%d, v%d" % (PI + 2 * v + d, DI + 4 * v + 2 * d, DI + 4 * v + 2 * d + 1))
        e("buffer_store_dwordx2 %s, v12, %s, s%d offen offset:%d sc1" % (vr(PR + 2 * v, 2), srd(SWS), sZR, v * 512))
        k.vm.issue("zst")
        e("buffer_store_dwordx2 %s, v12, %s, s%d offen offset:%d sc1" % (vr(PI + 2 * v, 2), srd(SWS), sZI, v * 512))
        k.vm.issue("zst")
    e("s_or_b32 s%d, s%d, s%d" % (sT0, sCC, sPL))
    if not P("NO256", 0):
        e("s_cbranch_scc0 L_csecond")
    sec = ["L_csecond:", "    s_mov_b32 s%d, 1" % sPL, "    s_add_u32 s%d, s%d, 4096" % (sZR, sZR)]
    for i in range(8):
        sec.append("    v_mov_b32 v%d, v%d" % (CWL + i, CWL + 8 + i))
    sec.extend(gbar_lines())
    sec.append("    s_branch L_ccol")
    tail.extend(sec)
    k.stamp(10)
    fs(7, 2)
    e("s_lshr_b32 s%d, s%d, 2" % (sT4, sCC))
    e("s_lshl_b32 s%d, s%d, 6" % (sT1, sRW))
    e("s_add_u32 s%d, s%d, s%d" % (sT4, sT4, sT1))
    e("s_lshl_b32 s%d, s%d, 7" % (sT4, sT4))
    e("s_and_b32 s%d, s%d, 3" % (sT1, sCC))
    e("s_lshl2_add_u32 s%d, s%d, s%d" % (sT4, sT1, sT4))
    e("s_add_u32 s%d, s%d, 0x%x" % (sT4, sT4, FZ_OFF))
    sFZC = sFXC
    e("s_lshl2_add_u32 s%d, s%d, s%d" % (sFZC, sWP, sRW))
    e("s_lshl_b32 s%d, s%d, 11" % (sFZC, sFZC))
    e("s_add_u32 s%d, s%d, 0x%x" % (sFZC, sFZC, FZ_OFF))
    e("s_lshl_b32 s%d, s%d, 19" % (sDT, sRW))
    e("s_lshl_b32 s%d, s%d, 10" % (sT1, sWP))
    e("s_add_u32 s%d, s%d, s%d" % (sDT, sDT, sT1))
    e("s_lshl_b32 s%d, s%d, 7" % (sT1, sA))
    e("s_add_u32 s%d, s%d, s%d" % (sDT, sDT, sT1))
    e("s_add_u32 s%d, s%d, 0x%x" % (sDT, sDT, ZT_OFF - 32768))
    e("s_lshl_b32 s%d, s%d, 14" % (sT2, sRW))
    e("s_lshl_b32 s%d, s%d, 6" % (sT1, sRW))
    e("v_xor_b32 v20, s%d, v26" % sT1)
    k.wait_vm("zst")
    fs(7, 3)
    publish("s%d" % sT4)
    e("s_setprio 0")
    for s_ in gl:
        e(s_)
    TRZ = [16, 17, 18, 7]
    for pt in range(4):
        e("v_xor_b32 v%d, %d, v6" % (TRZ[pt], 32 * pt))
    e("s_setprio 1")
    gwait(C_WT)
    fs(7, 4)
    if P("ZSLP", 0):
        e("s_sleep %d" % P("ZSLP", 0))
    poll_issue("pz", vFZ, "s%d" % sFZC, 30)
    if FS == 7:
        k.wait_vm("pz")
    fs(7, 5)
    poll_check("pz", vFZ, "s%d" % sFZC, 30)
    fs(7, 6)
    k.stamp(11)
    for ee in range(16):
        e("s_add_u32 m0, s%d, %d" % (sT2, LB + ee * 1024))
        e("s_add_u32 s%d, s%d, 32768" % (sDT, sDT))
        e("buffer_load_dwordx4 v%d, %s, s%d offen sc1 lds" % (vDZ, srd(SWS), sDT))
        k.vm.issue("Z")
    fs(7, 7)
    e("s_setprio %d" % P("EPRIO", 0))
    k.wait_vm("Z")
    fs(7, 8)
    gbar()
    fs(7, 9)
    AS, ZF = 208, 128

    def zr(T, pt):
        for hh in range(2):
            r = ZF + ((T % 4) * 4 + pt) * 4 + 2 * hh
            e("ds_read_b64_tr_b16 %s, v%d offset:%d" % (vr(r, 2), TRZ[pt], T * 4096 + hh * 2048))
            k.lg.issue(("ZR", T, pt))
    seq = [(T, pt) for T in range(16) for pt in range(4)]
    LA_ = 6
    for n in range(LA_):
        zr(*seq[n])
    for n, (T, pt) in enumerate(seq):
        if n + LA_ < 64:
            zr(*seq[n + LA_])
        k.wait_lg(("ZR", T, pt))
        c = vr(AS + 4 * pt, 4)
        mfma(c, vr(GB + 4 * T, 4), vr(ZF + ((T % 4) * 4 + pt) * 4, 4), c if T else "0")
    k.nop(8)
    for pt in range(4):
        e("ds_write_b128 v20, %s offset:%d" % (vr(AS + 4 * pt, 4), pt * 4096))
    fs(7, 10)
    e("s_branch L_final")
    tail[0:0] = k.lines
    k.lines = main_lines

    e("s_waitcnt vmcnt(0) lgkmcnt(0)")
    k.vm.clear()
    k.lg.clear()
    fs(12, 7)
    e("s_barrier")
    fs(12, 8)
    k.stamp(12)
    YP, SV, U2 = 192, 224, 232
    e("v_add_u32 v10, 0x%x, v%d" % (L_C1, vR0))
    e("v_add_u32 v11, 0x%x, v%d" % (L_C1, vR1))
    for h in range(2):
        e("ds_read_b128 %s, v%d" % (vr(YP + 4 * h, 4), vR0 + h))
        k.lg.issue("yp")
    for h in range(2):
        e("ds_read_b128 %s, v%d" % (vr(SV + 4 * h, 4), 10 + h))
        k.lg.issue("sv")
    for i in range(4):
        e("v_lshlrev_b32 v%d, 16, v%d" % (240 + 2 * i, XV + i))
        e("v_and_b32 v%d, 0xffff0000, v%d" % (241 + 2 * i, XV + i))
    k.wait_lg("yp")
    for i in range(8):
        e("v_mul_f32 v%d, %s, v%d" % (U2 + i, hexf(-1.4426950408889634), YP + i))
    for i in range(8):
        e("v_exp_f32 v%d, v%d" % (U2 + i, U2 + i))
    k.wait_lg("sv")
    for i in range(8):
        e("v_mul_f32 v%d, v%d, v%d" % (YP + i, YP + i, SV + i))
    for i in range(8):
        e("v_add_f32 v%d, 1.0, v%d" % (U2 + i, U2 + i))
    for i in range(8):
        e("v_rcp_f32 v%d, v%d" % (U2 + i, U2 + i))
    k.nop(1)
    for i in range(8):
        e("v_fmac_f32 v%d, v%d, v%d" % (240 + i, YP + i, U2 + i))
    for d in range(4):
        e("v_cvt_pk_bf16_f32 v%d, v%d, v%d" % (SV + d, 240 + 2 * d, 241 + 2 * d))
    e("buffer_store_dwordx4 %s, v%d, %s, s%d offen%s" % (vr(SV, 4), vGO, srd(SOUT), sXO, os.environ.get("OFL", " sc1")))
    e("s_or_b32 s%d, s2, s%d" % (sT0, sRW))
    e("s_or_b32 s%d, s%d, s%d" % (sT0, sT0, sHF))
    e("s_cbranch_scc1 L_noep")
    e("s_mov_b32 s%d, 0x%x" % (sT0, EPOCH_OFF))
    publish("s%d" % sT0)
    k.lab("L_noep")
    k.stamp(13)
    if ENC:
        if "ENCB" in os.environ:
            e("s_cmp_lg_u32 s2, %d" % P("ENCB", 0))
            e("s_cbranch_scc1 L_done")
        e("s_waitcnt lgkmcnt(0)")
        e("s_sub_u32 s97, s%d, s66" % (64 + 2 * ENC))
        e("s_add_u32 s97, s97, 6000")
        k.lab("L_espin")
        e("s_memrealtime s[94:95]")
        e("s_waitcnt lgkmcnt(0)")
        e("s_sub_u32 s96, s94, s66")
        e("s_cmp_lt_u32 s96, s97")
        e("s_cbranch_scc1 L_espin")
    elif DIAG:
        e("s_lshl2_add_u32 s%d, s%d, s%d" % (sT0, sHF, sRW))
        e("v_mov_b32 v2, s%d" % sT0)
        k.stamp_flush(SWS, 0, 2, 8)
    k.lab("L_done")
    e("s_endpgm")
    k.lines += tail
    k.lab("L_end")
    return k


HEADER = open(os.path.join(os.path.dirname(os.path.abspath(__file__)), "header.txt")).read()


def main(out):
    k = gen()
    s = HEADER
    s += "; @launch grid=(256,1,1) block=(512,1,1) lds=163840\n"
    s += '.amdgcn_target "amdgcn-amd-amdhsa--gfx950"\n.text\n'
    s += k.text()
    s += '.section .rodata,"a"\n'
    s += descriptor(k.name, 256, 102 if DIAG else 64)
    open(out, "w").write(s)


if __name__ == "__main__":
    main(sys.argv[1] if len(sys.argv) > 1 else "v13.s")
```

```python
import sys, os
from collections import deque
sys.path.insert(0, os.path.dirname(os.path.abspath(__file__)))
from asmlib import *

NAME = "recurrent_scan__spectral_gfnet__dense_activation_relu__prompt_kernel"


def P(name, default):
    return int(os.environ.get(name, default))


X1C_OFF = 0x0200000
WT_OFF = 0x0400000
H_OFF = 0x0800000
ZT_OFF = 0x1000000
FX_OFF = 0x0000000
FW_OFF = 0x0010000
FH_OFF = 0x0020000
FY_OFF = 0x0048000
YX_OFF = 0x1800000
FHB_D = 0x0008000
FZ_OFF = 0x0030000
EPOCH_OFF = 0x0040000
WS_BYTES = 0x2000000
OOB = 0x7f000000
TAGC = 0x9E3779B9
X_BYTES = 2048 * 512 * 2
W_BYTES = 2048 * 257 * 2
W1_BYTES = 512 * 1792 * 2

SX, SWR, SWI, SW1, SW2, SOUT, SWS = 12, 16, 20, 24, 28, 32, 36
sRW, sPB, sCBK, sF0, sHF, sR, sTAG, sA, sWP, sDB = 3, 4, 5, 6, 7, 8, 9, 10, 11, 40
sXO, sRS = 41, 42
sT0, sT1, sT2, sT3, sT4 = 43, 44, 45, 46, 47
sCNT = 49
sXT, sDT = 0, 1

LA, LB, LS = 0, 65536, 131072
L_C1 = LS
L_WT = LS + 16384
L_SCR = LS + 24576
L_CS, L_ST, L_CNT, L_W256, L_DUM = L_SCR, L_SCR + 1024, L_SCR + 3072, L_SCR + 4096, L_SCR + 6144
XSLOT = [LB, LB + 16384, LB + 32768, LB + 49152, LA, LA + 16384, LA + 32768, LA + 49152]

vLANE, vL16, vC, vQ, vTAG, vCNT = 1, 2, 3, 4, 5, 25
vGO, vR0, vR1, vYW, vZB = 0, 22, 23, 21, 124
C_WA2, C_CSA, C_WB1, C_WB2, C_CSB, C_ST, C_WT, C_F, C_E1, C_L1, C_GY, C_FA, C_FB, C_HB = 0, 4, 8, 12, 16, 20, 24, 28, 32, 36, 40, 44, 48, 52


def srd(n):
    return "s[%d:%d]" % (n, n + 3)


def gen():
    k = K(NAME)
    e = k.e
    tail = []
    FS, ENC = P("FS", 0), P("ENC", 0)
    _stamp = k.stamp

    def stamp_n(i, real=False):
        if ENC:
            if i == 1 or i == ENC:
                _stamp(i, True)
            return
        if FS and 2 <= i <= 13:
            return
        _stamp(i, real)
    k.stamp = stamp_n

    def fs(mode, i):
        if FS == mode:
            _stamp(i)

    side = deque()
    sch = {"gap": 3, "n": 0, "lds": deque()}

    def mfma(d, a, b, c=None):
        e("v_mfma_f32_16x16x32_bf16 %s, %s, %s, %s" % (d, a, b, c if c is not None else d))

    def mf(d, a, b, c=None):
        mfma(d, a, b, c)
        sch["n"] += 1
        for _ in range(P("NL", 1)):
            if sch["lds"]:
                sch["lds"].popleft()()
        if side and sch["n"] % sch["gap"] == 0:
            side.popleft()()

    def flush_lds():
        while sch["lds"]:
            sch["lds"].popleft()()

    def flush_side():
        flush_lds()
        while side:
            side.popleft()()

    def run(items):
        for f in items:
            f()

    def bf16_round(v):
        e("v_cvt_pk_bf16_f32 v%d, v%d, v%d" % (v, v, v))
        e("v_lshlrev_b32 v%d, 16, v%d" % (v, v))

    def publish_lines(soff):
        return ["    s_mov_b64 exec, 1",
                "    buffer_store_dword v%d, off, %s, %s sc1" % (vTAG, srd(SWS), soff),
                "    s_mov_b64 exec, -1"]

    def publish(soff):
        k.lines.extend(publish_lines(soff))
        k.vm.issue("flag")

    pollno = [0]

    def poll_ld(vaddr, soff, vt):
        return "buffer_load_dword v%d, v%d, %s, %s offen sc1" % (vt, vaddr, srd(SWS), soff)

    def poll_issue(tag, vaddr, soff, vt):
        e(poll_ld(vaddr, soff, vt))
        k.vm.issue(tag)

    def poll_check(tag, vaddr, soff, vt, pre=(), slp=None):
        n = pollno[0]
        pollno[0] += 1
        k.wait_vm(tag)
        e("v_cmp_ne_u32 vcc, v%d, v%d" % (vt, vTAG))
        e("s_cmp_lg_u64 vcc, 0")
        e("s_cbranch_scc1 L_slow%d" % n)
        k.lab("L_back%d" % n)
        tail.append("L_slow%d:" % n)
        tail.extend(pre)
        tail.extend(["    s_mov_b32 s%d, 0" % sCNT,
                     "L_spin%d:" % n,
                     "    s_sleep %d" % (P("SLP", 8) if slp is None else slp),
                     "    s_mov_b64 exec, vcc",
                     "    " + poll_ld(vaddr, soff, vt),
                     "    s_mov_b64 exec, -1",
                     "    s_waitcnt vmcnt(0)",
                     "    v_cmp_ne_u32 vcc, v%d, v%d" % (vt, vTAG),
                     "    s_cmp_lg_u64 vcc, 0",
                     "    s_cbranch_scc0 L_back%d" % n,
                     "    s_add_u32 s%d, s%d, 1" % (sCNT, sCNT),
                     "    s_cmp_lt_u32 s%d, 0x40000" % sCNT,
                     "    s_cbranch_scc1 L_spin%d" % n,
                     "    s_branch L_back%d" % n])

    gbn = [0]

    def gwait_lines(off, target):
        n = gbn[0]
        gbn[0] += 1
        chk = ["    ds_read_b32 v19, v%d offset:%d" % (vCNT, off),
               "    s_waitcnt lgkmcnt(0)",
               "    v_readfirstlane_b32 s%d, v19" % sT0,
               "    s_cmp_lt_u32 s%d, %s" % (sT0, target)]
        tail.append("L_gs%d:" % n)
        tail.append("    s_mov_b32 s%d, 0x400000" % sCNT)
        tail.append("L_gb%d:" % n)
        tail.append("    s_sub_u32 s%d, s%d, 1" % (sCNT, sCNT))
        tail.append("    s_cbranch_scc1 L_gx%d" % n)
        tail.append("    s_sleep %d" % (4 if off == C_WT else 1))
        tail.extend(chk)
        tail.append("    s_cbranch_scc1 L_gb%d" % n)
        tail.append("    s_branch L_gx%d" % n)
        return chk + ["    s_cbranch_scc1 L_gs%d" % n, "L_gx%d:" % n]

    def garrive_lines(off):
        return ["    v_mov_b32 v19, 1",
                "    s_mov_b64 exec, 1",
                "    ds_add_u32 v%d, v19 offset:%d" % (vCNT, off),
                "    s_mov_b64 exec, -1"]

    def garrive(off):
        k.lines.extend(garrive_lines(off))
        k.lg.issue("arr")

    def gwait(off, target="4"):
        k.lines.extend(gwait_lines(off, target))
        k.lg.clear()

    def gpeek(off, vt):
        e("ds_read_b32 v%d, v%d offset:%d" % (vt, vCNT, off))
        k.lg.issue(("pk", off))

    def gcheck(off, vt):
        n = gbn[0]
        slow = gwait_lines(off, "4")
        k.wait_lg(("pk", off))
        e("v_readfirstlane_b32 s%d, v%d" % (sT0, vt))
        e("s_cmp_lt_u32 s%d, 4" % sT0)
        e("s_cbranch_scc1 L_gs%d" % n)
        k.lab("L_gx%d" % n)

    def flag_voff(vv, n):
        e("v_min_u32 v19, %d, v%d" % (n, vLANE))
        e("v_lshrrev_b32 v%d, 2, v19" % vv)
        e("v_lshlrev_b32 v%d, 7, v%d" % (vv, vv))
        e("v_and_b32 v19, 3, v19")
        e("v_lshl_add_u32 v%d, v19, 2, v%d" % (vv, vv))

    def xread_addr(v0_):
        e("v_lshrrev_b32 v19, 1, v%d" % vC)
        e("v_xor_b32 v19, v19, v%d" % vQ)
        e("v_lshlrev_b32 v19, 4, v19")
        e("v_lshl_add_u32 v19, v%d, 7, v19" % vC)
        e("s_lshl_b32 s%d, s%d, 12" % (sT0, sRW))
        e("v_add_u32 v%d, s%d, v19" % (v0_, sT0))
        e("v_xor_b32 v%d, 64, v%d" % (v0_ + 1, v0_))
        e("v_add_u32 v%d, 0x%x, v%d" % (v0_ + 2, LB, v0_))
        e("v_add_u32 v%d, 0x%x, v%d" % (v0_ + 3, LB, v0_ + 1))

    def xread(dst, v0_, kk, u, ks, tag):
        hi = XSLOT[kk] >= LB
        e("ds_read_b128 %s, v%d offset:%d" % (dst, v0_ + ks + (2 if hi else 0), XSLOT[kk] % 65536 + u * 2048))
        k.lg.issue(tag)

    def tag_setup():
        e("s_waitcnt lgkmcnt(0)")
        k.lg.clear()
        e("s_add_u32 s%d, s%d, 0x%x" % (sTAG, sTAG, TAGC))
        e("v_mov_b32 v%d, s%d" % (vTAG, sTAG))

    def late_setup(hf):
        e("v_lshrrev_b32 v19, 2, v%d" % vC)
        e("v_lshl_add_u32 v19, v%d, 2, v19" % vQ)
        e("v_bfe_u32 v30, v19, 1, 2")
        e("v_lshlrev_b32 v19, 7, v19")
        e("v_and_b32 v31, 1, v%d" % vC)
        e("v_lshl_add_u32 v19, v31, 3, v19")
        e("v_lshlrev_b32 v30, 1, v30")
        e("v_bfe_u32 v31, v%d, 1, 1" % vC)
        e("v_or_b32 v30, v30, v31")
        e("v_lshl_add_u32 v%d, v30, 4, v19" % vZB)
        e("v_lshrrev_b32 v19, 3, v%d" % vLANE)
        if hf:
            e("v_add_u32 v19, 8, v19")
        e("v_and_b32 v30, 7, v%d" % vLANE)
        e("v_lshlrev_b32 v%d, 15, v19" % vGO)
        e("v_lshl_add_u32 v%d, v30, 4, v%d" % (vGO, vGO))
        e("v_lshlrev_b32 v30, 1, v30")
        e("v_xor_b32 v30, v30, v19")
        e("v_lshlrev_b32 v30, 4, v30")
        e("v_lshl_add_u32 v30, v19, 8, v30")
        e("s_lshl_b32 s%d, s%d, 12" % (sT0, sRW))
        e("v_add_u32 v%d, s%d, v30" % (vR0, sT0))
        e("v_xor_b32 v%d, 16, v%d" % (vR1, vR0))
        e("v_xor_b32 v%d, v%d, v%d" % (vYW, vQ, vC))
        e("v_lshlrev_b32 v%d, 4, v%d" % (vYW, vYW))
        e("v_lshl_add_u32 v%d, v%d, 8, v%d" % (vYW, vC, vYW))
        e("s_lshl_b32 s%d, s%d, 19" % (sXO, sWP))
        e("s_lshl2_add_u32 s%d, s%d, s%d" % (sT0, sA, sRW))
        e("s_lshl_b32 s%d, s%d, 10" % (sT0, sT0))
        e("s_add_u32 s%d, s%d, s%d" % (sXO, sXO, sT0))
        e("s_lshl_b32 s%d, s%d, 7" % (sT0, sDB))
        e("s_add_u32 s%d, s%d, s%d" % (sXO, sXO, sT0))
    XV = 248

    def xe_load():
        e("buffer_load_dwordx4 %s, v%d, %s, s%d offen" % (vr(XV, 4), vGO, srd(SX), sXO))
        k.vm.issue("xe")

    e("s_cmp_ge_u32 s2, 256")
    e("s_cbranch_scc1 L_done")
    k.stamp(0)
    k.stamp(1, real=True)
    e("s_load_dwordx2 s[%d:%d], s[0:1], 0" % (SX, SX + 1))
    e("s_load_dwordx2 s[%d:%d], s[0:1], 32" % (SW1, SW1 + 1))
    e("s_load_dwordx2 s[%d:%d], s[0:1], 64" % (SWS, SWS + 1))
    e("s_load_dwordx2 s[%d:%d], s[0:1], 8" % (SWR, SWR + 1))
    e("s_load_dwordx2 s[%d:%d], s[0:1], 16" % (SWI, SWI + 1))
    e("s_load_dwordx2 s[%d:%d], s[0:1], 40" % (SW2, SW2 + 1))
    e("s_load_dwordx2 s[%d:%d], s[0:1], 48" % (SOUT, SOUT + 1))
    e("v_lshrrev_b32 v19, 6, v0")
    e("s_getpc_b64 s[%d:%d]" % (sT1, sT2))
    k.lab("L_pc")
    e("s_andn2_b32 s%d, s2, 7" % sT0)
    e("v_add_lshl_u32 v20, v19, s%d, 7" % sT0)
    e("v_min_u32 v20, L_end-L_pc-4, v20")
    e("v_mov_b32 v21, s%d" % sT2)
    e("v_add_co_u32 v20, vcc, s%d, v20" % sT1)
    e("v_readfirstlane_b32 s%d, v19" % sHF)
    e("v_and_b32 v%d, 63, v0" % vLANE)
    e("v_addc_co_u32 v21, vcc, 0, v21, vcc")
    e("global_load_dword v247, v[20:21], off")
    k.vm.issue("touch")
    for s_, nb in ((SX, X_BYTES), (SWR, W_BYTES), (SWI, W_BYTES), (SW1, W1_BYTES), (SW2, W1_BYTES), (SOUT, X_BYTES), (SWS, WS_BYTES)):
        e("s_mov_b32 s%d, 0x%x" % (s_ + 2, nb))
        e("s_mov_b32 s%d, 0x00020000" % (s_ + 3))
    e("v_and_b32 v%d, 15, v0" % vC)
    e("v_bfe_u32 v%d, v0, 4, 2" % vQ)
    e("v_lshlrev_b32 v%d, 4, v%d" % (vL16, vLANE))
    e("v_mov_b32 v%d, 0x%x" % (vCNT, L_CNT))
    e("s_and_b32 s%d, s2, 7" % sA)
    e("s_lshr_b32 s%d, s2, 6" % sWP)
    e("s_bfe_u32 s%d, s2, 0x30003" % sDB)
    e("s_and_b32 s%d, s%d, 3" % (sRW, sHF))
    e("s_lshr_b32 s%d, s%d, 1" % (sPB, sA))
    e("s_lshl2_add_u32 s%d, s%d, s%d" % (sPB, sPB, sWP))
    e("s_and_b32 s%d, s%d, 1" % (sT0, sA))
    e("s_lshl3_add_u32 s%d, s%d, s%d" % (sCBK, sT0, sDB))
    e("s_lshl1_add_u32 s%d, s%d, s%d" % (sR, sWP, sDB))
    if P("ROT", 44) == 44:
        e("s_add_u32 s%d, s%d, s%d" % (sR, sWP, sDB))
        e("s_and_b32 s%d, s%d, 1" % (sR, sR))
        e("s_lshl_b32 s%d, s%d, 2" % (sR, sR))
    elif P("ROT", 44) == 66:
        e("s_add_u32 s%d, s%d, s%d" % (sR, sWP, sDB))
        e("s_and_b32 s%d, s%d, 3" % (sR, sR))
        e("s_lshl_b32 s%d, s%d, 1" % (sR, sR))
    else:
        e("s_and_b32 s%d, s%d, %d" % (sR, sR, P("ROT", 44)))
    e("s_lshl2_add_u32 s%d, s%d, s%d" % (sRS, sPB, sRW))
    e("s_lshr_b32 s%d, s%d, 1" % (sA, sPB))
    e("s_and_b32 s%d, s%d, 1" % (sT3, sPB))
    e("s_lshl1_add_u32 s%d, s%d, s%d" % (sWP, sT3, sT0))
    e("s_lshr_b32 s%d, s%d, 2" % (sHF, sHF))
    e("s_cbranch_scc1 L_fft")
    q_vm = list(k.vm.q)

    sXB, sM4, sM2, sHS, sFH, sHB, sFHC, sW2B = 48, 57, 58, 59, 60, 61, 62, 63
    TV = [50, 51, 52, 53, 54, 55, 56]
    sRSW, sCG, sRB = sPB, sHF, sCBK
    e("s_lshl_b32 s%d, s%d, 20" % (sXB, sT3))
    e("s_lshl2_add_u32 s%d, s%d, s%d" % (sT1, sA, sRW))
    e("s_lshl_b32 s%d, s%d, 10" % (sT1, sT1))
    e("s_add_u32 s%d, s%d, s%d" % (sXB, sXB, sT1))
    e("v_lshrrev_b32 v10, 3, v%d" % vLANE)
    e("v_and_b32 v12, 7, v%d" % vLANE)
    e("v_xor_b32 v6, v12, v%d" % vQ)
    e("v_lshlrev_b32 v6, 4, v6")
    e("v_lshl_add_u32 v6, v10, 15, v6")
    e("v_xor_b32 v7, 64, v6")
    e("v_add_u32 v7, 0x40000, v7")
    e("s_lshl_b32 s%d, s%d, 12" % (sM4, sRW))
    e("s_lshl_b32 s%d, s%d, 11" % (sM2, sRW))
    e("s_sub_u32 s%d, s%d, s%d" % (sF0, sCBK, sT0))
    e("s_lshl_b32 s%d, s%d, 8" % (sF0, sF0))
    e("s_cmp_eq_u32 s%d, 7" % sDB)
    e("s_cselect_b32 s%d, 0x%x, s%d" % (sF0, 0x08000000, sF0))
    e("s_waitcnt lgkmcnt(0)")
    e("s_load_dword s%d, s[%d:%d], 0x%x" % (sTAG, SWS, SWS + 1, EPOCH_OFF))

    def xdma(kk):
        def item(ee):
            def f():
                e("s_add_u32 m0, s%d, %d" % (sM4, XSLOT[kk] + ee * 1024))
                if ee == 0:
                    e("s_add_u32 s%d, s%d, %d" % (sXT, sR, kk))
                    e("s_and_b32 s%d, s%d, 7" % (sXT, sXT))
                    e("s_lshl_b32 s%d, s%d, 7" % (sXT, sXT))
                    e("s_add_u32 s%d, s%d, s%d" % (sXT, sXT, sXB))
                elif ee == 2:
                    e("s_add_u32 s%d, s%d, 0x80000" % (sXT, sXT))
                else:
                    k.nop(1)
                e("buffer_load_dwordx4 v%d, %s, s%d offen lds" % (6 + (ee & 1), srd(SX), sXT))
                k.vm.issue(("X", kk))
            return f
        return [item(ee) for ee in range(4)]

    def w1dma(reg, kk):
        off = " offset:128" if reg else ""
        lb = (LA - 128 if reg else LB) + kk * 8192

        def f0():
            e("s_add_u32 s%d, s%d, %d" % (sDT, sR, kk))
            e("s_and_b32 s%d, s%d, 7" % (sDT, sDT))
            e("s_mul_i32 s%d, s%d, %d" % (sDT, sDT, 64 * 3584))
            e("s_add_u32 m0, s%d, %d" % (sM2, lb + 128))
            e("s_add_u32 s%d, s%d, s%d" % (sDT, sDT, sF0))
            if reg:
                e("s_add_u32 s%d, s%d, 128" % (sDT, sDT))
            else:
                e("s_add_u32 m0, s%d, %d" % (sM2, lb))
                k.nop(1)
            e("buffer_load_dwordx4 v8, %s, s%d offen lds" % (srd(SW1), sDT))
            k.vm.issue(("W1", reg, kk))

        def f1():
            e("s_add_u32 m0, s%d, %d" % (sM2, (LA if reg else LB) + kk * 8192 + 1024))
            k.nop(1)
            e("buffer_load_dwordx4 v9, %s, s%d offen lds" % (srd(SW1), sDT))
            k.vm.issue(("W1", reg, kk))
        return [f0, f1]

    def mtouch(sr_):
        e("s_lshl2_add_u32 s%d, s2, s%d" % (sT0, sRW))
        e("s_mul_i32 s%d, s%d, %d" % (sT0, sT0, 14 * 128))
        e("v_lshlrev_b32 v19, 7, v%d" % vLANE)
        e("s_mov_b32 m0, 0x%x" % L_DUM)
        e("s_mov_b64 exec, 0x3fff")
        e("buffer_load_dword v19, %s, s%d offen lds" % (srd(sr_), sT0))
        k.vm.issue("touch")
        e("s_mov_b64 exec, -1")
    T1P, T2P = P("T1P", 1), P("T2P", 4)

    def touches(pos):
        if T1P == pos:
            mtouch(SW1)
        if T2P == pos:
            mtouch(SW2)
    run(xdma(0))
    touches(0)
    run(xdma(1))
    touches(1)
    k.stamp(2)
    e("s_lshl_b32 s%d, s%d, 4" % (sT0, sRW))
    e("v_add_u32 v11, s%d, v10" % sT0)
    e("v_mul_u32_u24 v11, 3584, v11")
    e("v_and_b32 v13, 1, v%d" % vQ)
    e("v_lshlrev_b32 v13, 1, v13")
    e("v_xor_b32 v13, v13, v12")
    e("v_lshl_add_u32 v8, v13, 4, v11")
    e("v_xor_b32 v13, 4, v13")
    e("v_lshl_add_u32 v9, v13, 4, v11")
    e("v_add_u32 v9, %d, v9" % (8 * 3584))
    vWS, vWW, vWR, vD2 = 15, 14, 13, 24
    e("v_lshlrev_b32 v15, 13, v10")
    e("v_lshl_add_u32 v15, v12, 4, v15")
    e("s_lshl_b32 s%d, s%d, 1" % (sT0, sRW))
    e("v_xor_b32 v14, s%d, v12" % sT0)
    e("v_lshlrev_b32 v14, 4, v14")
    e("v_lshl_add_u32 v14, v%d, 7, v14" % vLANE)
    e("v_add_u32 v14, 0x%x, v14" % L_WT)
    e("v_xor_b32 v13, v10, v12")
    e("v_lshlrev_b32 v13, 4, v13")
    e("v_lshl_add_u32 v13, v10, 7, v13")
    e("s_add_u32 s%d, s%d, 0x%x" % (sT0, sM2, L_WT))
    e("v_add_u32 v13, s%d, v13" % sT0)
    e("v_lshlrev_b32 v19, 1, v%d" % vQ)
    e("v_xor_b32 v19, v19, v12")
    e("v_lshlrev_b32 v19, 4, v19")
    e("v_lshl_add_u32 v%d, v10, 10, v19" % vD2)
    xread_addr(26)
    e("v_mov_b32 v19, 0")
    e("v_lshl_add_u32 v30, v%d, 2, v%d" % (vC, vCNT))
    e("ds_write_b32 v30, v19")
    XF, AF, ACC, HO, CS, ONES = 128, 32, 64, 32, 112, 116
    TRB = [16, 17, 18, 20]
    e("v_lshrrev_b32 v19, 2, v%d" % vC)
    e("v_lshl_add_u32 v30, v%d, 3, v19" % vQ)
    e("v_lshlrev_b32 v30, 7, v30")
    e("v_and_b32 v31, 1, v%d" % vC)
    e("v_lshl_add_u32 v30, v31, 3, v30")
    e("v_bfe_u32 v19, v%d, 3, 1" % vC)
    e("v_and_b32 v31, 1, v%d" % vQ)
    e("v_lshl_or_b32 v19, v31, 1, v19")
    e("v_lshlrev_b32 v19, 1, v19")
    e("v_bfe_u32 v31, v%d, 1, 1" % vC)
    e("v_or_b32 v19, v19, v31")
    e("v_lshl_add_u32 v30, v19, 4, v30")
    e("v_add_u32 v30, 0x%x, v30" % LB)
    for l in range(4):
        e("v_xor_b32 v%d, %d, v30" % (TRB[l], 32 * l))
    vCSA, RN, C1 = 99, 120, [108, 112, 116, 124]
    TR2 = [100, 101, 102, 103]
    HV = [104, 105, 106, 107]
    vFH = 106
    def setup_a():
        e("v_lshlrev_b32 v%d, 4, v%d" % (vCSA, vQ))
        e("v_add_u32 v%d, 0x%x, v%d" % (vCSA, L_CS, vCSA))
        e("s_lshl_b32 s%d, s%d, 9" % (sT0, sRW))
        e("s_add_u32 s%d, s%d, 0x%x" % (sT0, sT0, L_ST))
        e("v_lshl_add_u32 v96, v%d, 2, s%d" % (vC, sT0))
        e("s_mul_i32 s%d, s%d, %d" % (sHB, sRS, 2 * 56 * 1024))
        e("s_add_u32 s%d, s%d, 0x%x" % (sHB, sHB, H_OFF))
        e("s_lshl4_add_u32 s%d, s%d, s%d" % (sHS, sF0, sHB))
        e("s_and_b32 s%d, s2, 1" % sT2)
        e("s_lshl1_add_u32 s%d, s%d, s%d" % (sFHC, sPB, sT2))
        e("s_lshl2_add_u32 s%d, s%d, s%d" % (sFHC, sFHC, sRW))
        e("s_lshl_b32 s%d, s%d, 7" % (sFHC, sFHC))
        e("s_add_u32 s%d, s%d, 0x%x" % (sFHC, sFHC, FH_OFF))
        e("s_lshl2_add_u32 s%d, s%d, s%d" % (sFH, sDB, sFHC))
        e("s_mul_i32 s%d, s%d, 7" % (sT0, sT2))
        e("s_lshr_b32 s%d, s2, 6" % sT1)
        e("s_lshl1_add_u32 s%d, s%d, s%d" % (sT1, sT1, sDB))
        e("s_and_b32 s%d, s%d, 7" % (sT1, sT1))
        e("s_cmp_eq_u32 s%d, 7" % sT1)
        e("s_cselect_b32 s%d, 0, s%d" % (sT1, sT1))
        for i in range(7):
            e("s_add_u32 s%d, s%d, s%d" % (TV[i], sT1, sT0))
            if i < 6:
                e("s_add_u32 s%d, s%d, 1" % (sT1, sT1))
                e("s_cmp_eq_u32 s%d, 7" % sT1)
                e("s_cselect_b32 s%d, 0, s%d" % (sT1, sT1))
        e("s_lshl_b32 s%d, s%d, 7" % (sW2B, sDB))
        e("s_lshl_b32 s%d, s%d, 14" % (sT0, sRW))
        e("s_add_u32 s%d, s%d, s%d" % (sW2B, sW2B, sT0))
        e("s_mul_i32 s%d, s%d, %d" % (sT0, sT2, 56 * 1024))
        e("v_add_u32 v%d, s%d, v%d" % (HV[0], sT0, vL16))
        e("s_sub_u32 s%d, %d, s%d" % (sT0, 56 * 1024, sT0))
        e("v_add_u32 v%d, s%d, v%d" % (HV[1], sT0, vL16))
        e("v_min_u32 v19, 6, v%d" % vLANE)
        e("v_lshlrev_b32 v%d, 2, v19" % vFH)
        late_setup(0)
        e("v_add_u32 v30, 0x%x, v%d" % (LB, vZB))
        for l in range(4):
            e("v_xor_b32 v%d, %d, v30" % (TR2[l], 32 * l))

    setup_a()
    run(xdma(2))
    run(xdma(3))
    touches(2)
    tag_setup()
    k.stamp(3)

    def X(u, T):
        return vr(XF + (T * 2 + u) * 4, 4)

    WR16 = 64

    def wloads():
        items = []

        def head():
            e("s_lshr_b32 s%d, s2, 5" % sRSW)
            e("s_and_b32 s%d, s2, 7" % sT1)
            e("s_lshl3_add_u32 s%d, s%d, s%d" % (sRSW, sT1, sRSW))
            e("s_and_b32 s%d, s%d, 3" % (sCG, sDB))
            e("s_lshr_b32 s%d, s%d, 4" % (sT1, sRSW))
            e("s_lshl_b32 s%d, s%d, 4" % (sT1, sT1))
            e("s_lshl1_add_u32 s%d, s%d, s%d" % (sT1, sRW, sT1))
            e("s_and_b32 s%d, s%d, 1" % (sT2, sRSW))
            e("s_lshl3_add_u32 s%d, s%d, s%d" % (sT1, sT2, sT1))
            e("s_bfe_u32 s%d, s%d, 0x30001" % (sT2, sRSW))
            e("s_lshl_b32 s%d, s%d, 8" % (sT2, sT2))
            e("s_add_u32 s%d, s%d, s%d" % (sT1, sT1, sT2))
            e("s_mul_i32 s%d, s%d, 514" % (sT1, sT1))
            e("s_lshl_b32 s%d, s%d, 7" % (sT4, sCG))
            e("s_add_u32 s%d, s%d, s%d" % (sT4, sT4, sT1))
            e("v_lshlrev_b32 v11, 1, v%d" % vLANE)
            e("v_and_b32 v19, 3, v%d" % vLANE)
            e("v_mul_u32_u24 v19, 32896, v19")
            e("v_bfe_u32 v30, v%d, 2, 1" % vLANE)
            e("v_mul_u32_u24 v30, 514, v30")
            e("v_add_u32 v19, v19, v30")
            e("s_cmp_eq_u32 s%d, 3" % sCG)
            e("s_cselect_b32 s%d, s%d, 0x%x" % (sT1, sT1, OOB))
            e("buffer_load_ushort v120, v19, %s, s%d offen offset:512" % (srd(SWR), sT1))
            k.vm.issue("wg")
            e("buffer_load_ushort v121, v19, %s, s%d offen offset:512" % (srd(SWI), sT1))
            k.vm.issue("wg")
        items.append(head)
        nt = " nt" if P("NTW", 1) else ""
        for r in range(4):
            def f(r=r):
                if r:
                    e("s_add_u32 s%d, s%d, 32896" % (sT4, sT4))
                for cb in range(2):
                    for arr, sr_ in ((0, SWR), (1, SWI)):
                        e("buffer_load_ushort v%d, v11, %s, s%d offen offset:%d%s" % (WR16 + 8 * cb + 4 * arr + r, srd(sr_), sT4, 514 * cb, nt))
                        k.vm.issue("wg")
            items.append(f)
        return items

    def wt_a():
        k.wait_vm("wg")
        for cb in range(2):
            for r in range(4):
                e("v_lshl_or_b32 v%d, v%d, 16, v%d" % (WR16 + 8 * cb + r, WR16 + 8 * cb + 4 + r, WR16 + 8 * cb + r))
        e("v_lshl_or_b32 v120, v121, 16, v120")
        e("ds_write_b128 v%d, %s" % (vWW, vr(WR16, 4)))
        k.lg.issue("wtw")
        e("v_xor_b32 v19, 16, v%d" % vWW)
        e("ds_write_b128 v19, %s" % vr(WR16 + 8, 4))
        k.lg.issue("wtw")
        e("s_lshl_b32 s%d, s%d, 5" % (sT0, sRW))
        e("s_add_u32 s%d, s%d, 0x%x" % (sT0, sT0, L_W256))
        e("v_lshl_add_u32 v19, v%d, 2, s%d" % (vLANE, sT0))
        e("s_mov_b64 exec, 0xff")
        e("ds_write_b32 v19, v120")
        k.lg.issue("wtw")
        e("s_mov_b64 exec, -1")

    def wt_b():
        for h in range(2):
            e("ds_read_b128 %s, v%d offset:%d" % (vr(WR16 + 4 * h, 4), vWR, 1024 * h))
            k.lg.issue("wtr")
        e("v_add_u32 v19, 0x%x, v%d" % (L_W256, vL16))
        e("ds_read_b128 %s, v19" % vr(WR16 + 8, 4))
        k.lg.issue("wtr")

    def wt_c():
        k.wait_lg("wtr")
        e("s_lshl2_add_u32 s%d, s%d, s%d" % (sT2, sCG, sRW))
        e("s_lshl_b32 s%d, s%d, 17" % (sT0, sT2))
        e("s_lshl_b32 s%d, s%d, 7" % (sT1, sRSW))
        e("s_add_u32 s%d, s%d, s%d" % (sT0, sT0, sT1))
        e("s_add_u32 s%d, s%d, 0x%x" % (sT0, sT0, WT_OFF))
        e("buffer_store_dwordx4 %s, v%d, %s, s%d offen sc1" % (vr(WR16, 4), vWS, srd(SWS), sT0))
        k.vm.issue("wtst")
        e("s_add_u32 s%d, s%d, 0x10000" % (sT0, sT0))
        e("buffer_store_dwordx4 %s, v%d, %s, s%d offen sc1" % (vr(WR16 + 4, 4), vWS, srd(SWS), sT0))
        k.vm.issue("wtst")
        e("s_add_u32 s%d, s%d, 0x%x" % (sT1, sT1, WT_OFF + 256 * 8192))
        e("s_cmp_eq_u32 s%d, 12" % sT2)
        e("s_cselect_b32 s%d, s%d, 0x%x" % (sT1, sT1, OOB))
        e("s_mov_b64 exec, 0xff")
        e("buffer_store_dwordx4 %s, v%d, %s, s%d offen sc1" % (vr(WR16 + 8, 4), vL16, srd(SWS), sT1))
        k.vm.issue("wtst")
        e("s_mov_b64 exec, -1")

    def wt_d():
        e("s_lshl2_add_u32 s%d, s%d, s%d" % (sT2, sCG, sRW))
        e("s_lshr_b32 s%d, s%d, 2" % (sT1, sRSW))
        e("s_lshl4_add_u32 s%d, s%d, s%d" % (sT0, sT2, sT1))
        e("s_lshl_b32 s%d, s%d, 7" % (sT0, sT0))
        e("s_and_b32 s%d, s%d, 3" % (sT1, sRSW))
        e("s_lshl2_add_u32 s%d, s%d, s%d" % (sT0, sT1, sT0))
        e("s_add_u32 s%d, s%d, 0x%x" % (sT0, sT0, FW_OFF))
        e("s_add_u32 s%d, s%d, 0x%x" % (sT1, sT0, 4 * 2048))
        e("s_cmp_eq_u32 s%d, 12" % sT2)
        e("s_cselect_b32 s%d, s%d, 0x%x" % (sT1, sT1, OOB))
        k.wait_vm("wtst")
        publish("s%d" % sT0)
        publish("s%d" % sT1)
        e("s_mov_b32 s%d, 0" % sHF)

    def xstage(s_):
        for kk in (2 * s_, 2 * s_ + 1):
            for u in range(2):
                for ks in range(2):
                    xread(X(u, 2 * kk + ks), 26, kk, u, ks, ("XR", s_))
    WPOS = P("WPOS", -1)
    if WPOS < 0:
        run(wloads())
    for s_ in range(4):
        k.wait_vm(("X", 2 * s_ + 1))
        if s_:
            k.wait_lg([("XR", s_ - 1)] + (["wtw"] if s_ == WPOS + 3 else []))
        e("s_barrier")
        fs(6, 2 + s_)
        xstage(s_)
        if s_ == WPOS + 3:
            wt_b()
        if s_ < 2:
            run(xdma(4 + 2 * s_) + xdma(5 + 2 * s_))
        WAS = [int(x_) for x_ in os.environ.get("WAS", "0,0,4,8").split(",")]
        for kk in range(WAS[s_ - 1] if s_ else 0, WAS[s_]):
            run(w1dma(0, kk))
        if s_ == WPOS:
            run(wloads())
        touches(3 + s_)
        if s_ == WPOS + 2:
            wt_a()
        if s_ == WPOS + 3:
            wt_c()
    k.wait_vm([("W1", 0, kk) for kk in range(4)])
    k.wait_lg(("XR", 3))
    e("s_barrier")
    k.stamp(4)
    fs(6, 6)


    def rdA(reg, T):
        items = []
        for l in range(4):
            for hh in range(2):
                def f(l=l, hh=hh):
                    e("ds_read_b64_tr_b16 %s, v%d offset:%d" % (vr(AF + (T & 1) * 16 + 4 * l + 2 * hh, 2), TRB[l], T * 4096 + hh * 512))
                    k.lg.issue(("A", reg, T))
                items.append(f)
        return items

    WLE = P("WLE", 4)
    CFB = P("CFB", 10) if WLE else 14

    def gpass(reg, hooks, mid):
        fs(8 + reg, 2)
        run(rdA(reg, 0))
        for T in range(16):
            k.wait_lg(("A", reg, T))
            if T == 7:
                gcheck(mid, 107)
            if T == 6:
                gpeek(mid, 107)
            if T == (CFB if reg else 14):
                gpeek(C_FB if reg else C_FA, 107)
            if T == CFB and reg and WLE:
                gpeek(C_HB, 97)
            if T == 15 and reg == 0:
                gpeek(C_WB1, 97)
            if T == 0 and reg == 1:
                gpeek(C_CSA, 98)
            if T + 1 < 16:
                sch["lds"].extend(rdA(reg, T + 1))
            for l in range(4):
                a = vr(AF + (T & 1) * 16 + 4 * l, 4)
                for u in range(2):
                    c = vr(ACC + (l * 2 + u) * 4, 4)
                    mf(c, a, X(u, T), c if T else "0")
            flush_lds()
            run(hooks.get(T, []))
            if T < 11:
                fs(8 + reg, 3 + T)
        flush_side()

    def c1_fetch(reg):
        def f():
            gcheck(C_FB if reg else C_FA, 107)
            if reg == 0:
                for u in range(2):
                    e("ds_read2_b32 %s, v96 offset0:%d offset1:%d" % (vr(RN + 2 * u, 2), 32 + 16 * u, 16 * u))
                    k.lg.issue(("C1", reg))
            for l in range(4):
                e("ds_read_b128 %s, v%d offset:%d" % (vr(C1[l], 4), vCSA, 256 * reg + 64 * l))
                k.lg.issue(("C1", reg))
        return f

    def h_out(reg, cw, tag):
        garrive(cw)
        e("s_add_u32 s%d, s%d, %d" % (sT2, sHS, 2048 * reg))
        e("s_add_u32 s%d, s%d, %d" % (sT3, sHS, 2048 * reg + 56 * 1024))
        k.wait_lg(("C1", reg))
        for pr in range(2):
            for u in range(2):
                o = HO + (pr * 2 + u) * 4
                for l in (2 * pr, 2 * pr + 1):
                    a = ACC + (l * 2 + u) * 4
                    for r in (0, 2):
                        e("v_pk_fma_f32 %s, %s, %s, %s op_sel_hi:[1,0,1]" % (vr(a + r, 2), vr(C1[l] + r, 2), vr(RN + 2 * u, 2), vr(a + r, 2)))
                for l in (2 * pr, 2 * pr + 1):
                    a = ACC + (l * 2 + u) * 4
                    e("v_cvt_pk_bf16_f32 v%d, v%d, v%d" % (o + (l & 1) * 2, a, a + 1))
                    e("v_cvt_pk_bf16_f32 v%d, v%d, v%d" % (o + (l & 1) * 2 + 1, a + 2, a + 3))
                for i in range(4):
                    e("v_pk_max_i16 v%d, v%d, 0" % (o + i, o + i))
                e("buffer_store_dwordx4 %s, v%d, %s, s%d offen offset:%d sc1" % (vr(o, 4), vL16, srd(SWS), sT2 + u, 1024 * pr))
                k.vm.issue(tag)

    def land(reg, lo, hi, cw):
        def f():
            k.wait_vm([("W1", reg, kk) for kk in range(lo, hi)])
            garrive(cw)
        return f

    sch["gap"] = P("GAPA", 4)
    for kk in range(8):
        side.extend(w1dma(1, kk))
    ha = {3: [land(0, 4, 8, C_WA2)], 11: [land(1, 0, 4, C_WB1)], P("WTD", 2): [wt_d], 13: [land(1, 4, 8, C_WB2)], 14: [c1_fetch(0)]}
    def w2l2(part, nparts):
        def f():
            n = 56 // nparts
            e("s_lshr_b32 s%d, s2, 3" % sT0)
            e("s_lshl2_add_u32 s%d, s%d, s%d" % (sT0, sT0, sRW))
            e("s_and_b32 s%d, s2, 1" % sT1)
            e("s_lshl_b32 s%d, s%d, 7" % (sT1, sT1))
            e("s_add_u32 s%d, s%d, s%d" % (sT0, sT0, sT1))
            e("s_mul_i32 s%d, s%d, %d" % (sT0, sT0, 56 * 128))
            e("v_lshlrev_b32 v19, 7, v%d" % vLANE)
            e("s_mov_b32 m0, 0x%x" % (L_DUM - part * n * 128 % 4096 * 0))
            m = ((1 << n) - 1) << (part * n)
            e("s_mov_b32 exec_lo, 0x%x" % (m & 0xffffffff))
            e("s_mov_b32 exec_hi, 0x%x" % (m >> 32))
            e("buffer_load_dword v19, %s, s%d offen lds" % (srd(SW2), sT0))
            k.vm.issue("touch")
            e("s_mov_b64 exec, -1")
        return f
    W2A = [int(x_) for x_ in os.environ.get("W2A", "").split(",") if x_]
    for i_, T_ in enumerate(W2A):
        ha.setdefault(T_, []).append(w2l2(i_, len(W2A)))
    gpass(0, ha, C_WA2)
    k.stamp(5)
    h_out(0, C_CSA, "ha")
    k.stamp(6)

    for l in range(4):
        e("v_subrev_u32 v%d, 0x%x, v%d" % (TRB[l], LB, TRB[l]))
    gcheck(C_WB1, 97)

    def w2_dma(late, j):
        lb = (LA if late else LB) + j * 8192

        def f0():
            e("s_add_u32 m0, s%d, %d" % (sM2, lb))
            e("s_lshl_b32 s%d, s%d, 17" % (sDT, TV[j]))
            e("s_add_u32 s%d, s%d, s%d" % (sDT, sDT, sW2B))
            if late:
                e("s_add_u32 s%d, s%d, 0x10000" % (sDT, sDT))
            e("buffer_load_dwordx4 v%d, %s, s%d offen lds" % (vD2, srd(SW2), sDT))
            k.vm.issue(("W2", late))

        def f1():
            e("s_add_u32 m0, s%d, %d" % (sM2, lb + 1024))
            e("s_add_u32 s%d, s%d, 8192" % (sDT, sDT))
            e("buffer_load_dwordx4 v%d, %s, s%d offen lds" % (vD2, srd(SW2), sDT))
            k.vm.issue(("W2", late))
        return [f0, f1]

    def rdW(n):
        items = []
        for l in range(4):
            for hh in range(2):
                def f(l=l, hh=hh):
                    e("ds_read_b64_tr_b16 %s, v%d offset:%d" % (vr(AF + (n & 1) * 16 + 4 * l + 2 * hh, 2), TR2[l], (n % 14) * 4096 + hh * 2048))
                    k.lg.issue(("W2R", n))
                items.append(f)
        return items

    def hload(n):
        late, m = n // 14, n % 14

        def item(u):
            def f():
                if u == 0 and m % 2 == 0:
                    e("s_lshl_b32 s%d, s%d, 12" % (sXT, TV[m // 2]))
                    e("s_add_u32 s%d, s%d, s%d" % (sXT, sXT, sHB))
                e("buffer_load_dwordx4 %s, v%d, %s, s%d offen offset:%d sc1" % (X(u, m), HV[u], srd(SWS), sXT, 2048 * late + 1024 * (m & 1)))
                k.vm.issue(("H", n))
            return f
        return [item(0), item(1)]

    def pubHA():
        k.wait_vm("ha")
        publish("s%d" % sFH)
        e("s_add_u32 s%d, s%d, 0x%x" % (sFH, sFH, FHB_D))

    def landW(late, cw):
        def f():
            k.wait_vm(("W2", late))
            garrive(cw)
        return f
    hb = {T: [] for T in range(16)}
    hb[P("W2T0", 0)].append(lambda: gcheck(C_CSA, 98))
    hb[P("W2T0", 0)].append(lambda: [side.extend(w2_dma(0, j)) for j in range(7)])
    hb[CFB].append(c1_fetch(1))
    if WLE:
        hb[8].append(lambda: garrive(C_HB))
        hb[CFB].append(lambda: gcheck(C_HB, 97))
        hb[CFB].append(lambda: [side.extend(w2_dma(1, j)) for j in range(WLE)])
    hb[P("PHA", 3)].append(pubHA)
    HLA = P("HLA", 6)
    HE = P("HE", 17)
    hb[min(HE - 2, P("PPA", 12))].append(lambda: poll_issue("ph", vFH, "s%d" % sFHC, 31))
    if HE < 16:
        def hearly():
            poll_check("ph", vFH, "s%d" % sFHC, 31)
            for n in range(HLA):
                side.extend(hload(n))
            sch["gap"] = 2
        hb[HE].append(hearly)

    def w2touch():
        e("s_lshr_b32 s%d, s2, 6" % sT0)
        e("s_lshl2_add_u32 s%d, s%d, s%d" % (sT0, sT0, sRW))
        e("s_mul_i32 s%d, s%d, 28" % (sT0, sT0))
        e("v_add_u32 v19, s%d, v%d" % (sT0, vLANE))
        e("v_and_b32 v30, 0xffc0, v19")
        e("v_add3_u32 v19, v19, v30, 64")
        e("v_lshlrev_b32 v19, 10, v19")
        e("s_and_b32 s%d, s2, 1" % sT0)
        e("s_mul_i32 s%d, s%d, %d" % (sT0, sT0, 896 * 1024))
        e("s_lshl_b32 s%d, s%d, 7" % (sT1, sDB))
        e("s_add_u32 s%d, s%d, s%d" % (sT0, sT0, sT1))
        e("s_mov_b32 m0, 0x%x" % L_DUM)
        e("s_mov_b64 exec, 0xfffffff")
        e("buffer_load_dword v19, %s, s%d offen lds" % (srd(SW2), sT0))
        k.vm.issue("touch")
        e("s_mov_b64 exec, -1")
    if P("W2L", 99) < 16:
        hb[P("W2L", 99)].append(w2touch)
    hb[P("LE1", 13)].append(landW(0, C_E1))
    sch["gap"] = P("GAPB", 4)
    gpass(1, hb, C_WB2)
    k.stamp(7)
    fs(10, 2)
    if HE == 16:
        poll_check("ph", vFH, "s%d" % sFHC, 31)
        fs(10, 3)
        for n in range(HLA):
            run(hload(n))
    fs(10, 4)
    gpeek(C_E1, 97)
    h_out(1, C_CSB, "hb")
    fs(10, 5)
    if HE == 17:
        poll_check("ph", vFH, "s%d" % sFHC, 31, pre=["    s_waitcnt vmcnt(0)"] + publish_lines("s%d" % sFH))
        for n in range(HLA):
            run(hload(n))
    k.stamp(8)
    gcheck(C_E1, 97)
    run(rdW(0))
    gpeek(C_CSB, 98)
    sch["gap"] = P("GAP3", 2)
    fs(7, 2)
    fs(10, 6)
    LCH = 14 - P("LLA", 4)
    nxt = HLA
    wl = [it for j in range(WLE, 7) for it in w2_dma(1, j)]
    for n in range(28):
        k.wait_lg(("W2R", n))
        if n == LCH:
            poll_check("phb", vFH, "s%d" % sFHC, 31)
        lim = 14 if n < LCH else 28
        cnt = 0
        while nxt < min(lim, n + 1 + HLA) and nxt - 14 < n and cnt < 2:
            side.extend(hload(nxt))
            nxt += 1
            cnt += 1
        if n == 0:
            gcheck(C_CSB, 98)
        if wl:
            side.extend(wl[:2])
            wl = wl[2:]
        k.wait_vm(("H", n))
        if n == P("PHB", 0):
            k.wait_vm("hb")
            publish("s%d" % sFH)
        if n == LCH - P("PPB", 1):
            e("s_add_u32 s%d, s%d, 0x%x" % (sFHC, sFHC, FHB_D))
            poll_issue("phb", vFH, "s%d" % sFHC, 31)
        if n == 10:
            landW(1, C_L1)()
        if n == 12:
            gpeek(C_L1, 107)
        if n == P("ZGO", 18):
            garrive(C_WT)
        if n == 13:
            for l in range(4):
                e("v_subrev_u32 v%d, 0x%x, v%d" % (TR2[l], LB, TR2[l]))
            gcheck(C_L1, 107)
        if n in (20, 21):
            for i in range(4):
                e("v_mov_b32 v%d, v%d" % (128 + 8 * (n - 20) + 2 * i + 1, vTAG))
        if n + 1 < 28:
            sch["lds"].extend(rdW(n + 1))
        for l in range(4):
            a = vr(AF + (n & 1) * 16 + 4 * l, 4)
            for u in range(2):
                c = vr(ACC + (u * 4 + l) * 4, 4)
                mf(c, a, X(u, n % 14), c if n else "0")
        flush_side()
        if n % 3 == 2:
            fs(7, 3 + n // 3)
        if n < 7:
            fs(10, 7 + n)
        if 5 <= n < 17:
            fs(11, n - 3)
        if n == 13:
            k.stamp(9)
    k.stamp(10)
    e("s_lshl2_add_u32 s%d, s2, s%d" % (sT1, sRW))
    e("s_lshl_b32 s%d, s%d, 12" % (sT1, sT1))
    e("s_add_u32 s%d, s%d, 0x%x" % (sT1, sT1, YX_OFF))
    k.nop(1)
    fs(12, 2)
    garrive(C_GY)
    for i in range(4):
        e("v_cvt_pk_bf16_f32 v%d, v%d, v%d" % (128 + 4 * i, ACC + 16 + 4 * i, ACC + 17 + 4 * i))
        e("v_cvt_pk_bf16_f32 v%d, v%d, v%d" % (128 + 4 * i + 2, ACC + 18 + 4 * i, ACC + 19 + 4 * i))
        e("buffer_store_dwordx4 %s, v%d, %s, s%d offen offset:%d sc1" % (vr(128 + 4 * i, 4), vL16, srd(SWS), sT1 + (i >> 2), 1024 * (i & 3)))
        k.vm.issue("yst")
    xe_load()
    e("s_xor_b32 s%d, s%d, 0x4000" % (sT1, sT1))
    e("s_lshl_b32 s%d, s%d, 12" % (sT4, sRW))
    e("v_add_u32 v10, s%d, v%d" % (sT4, vYW))
    for dt in range(1, 4):
        e("v_xor_b32 v%d, %d, v10" % (10 + dt, 64 * dt))
    fs(12, 3)
    gwait(C_GY)
    fs(12, 4)
    if P("YW", 1):
        k.wait_vm("yst")
    fs(12, 5)
    YR = 160
    e("s_mov_b32 s%d, 0" % sCNT)
    k.lab("L_yx")
    for i in range(4):
        e("buffer_load_dwordx4 %s, v%d, %s, s%d offen offset:%d sc1" % (vr(YR + 4 * i, 4), vL16, srd(SWS), sT1 + (i >> 2), 1024 * (i & 3)))
    e("s_waitcnt vmcnt(0)")
    k.vm.clear()
    e("v_min3_u32 v30, v%d, v%d, v%d" % (YR + 1, YR + 3, vTAG))
    e("v_max3_u32 v31, v%d, v%d, v%d" % (YR + 1, YR + 3, vTAG))
    for i in range(1, 4):
        e("v_min3_u32 v30, v%d, v%d, v30" % (YR + 4 * i + 1, YR + 4 * i + 3))
        e("v_max3_u32 v31, v%d, v%d, v31" % (YR + 4 * i + 1, YR + 4 * i + 3))
    e("v_cmp_ne_u32 vcc, v30, v31")
    e("s_cmp_lg_u64 vcc, 0")
    e("s_cbranch_scc1 L_yxs")
    k.lab("L_yxb")
    fs(12, 6)
    tail.extend(["L_yxs:", "    s_add_u32 s%d, s%d, 1" % (sCNT, sCNT), "    s_cmp_lt_u32 s%d, 0x40000" % sCNT,
                 "    s_cbranch_scc0 L_yxb", "    s_sleep 6", "    s_branch L_yx"])
    k.stamp(11)
    e("s_bitcmp1_b32 s2, 0")
    e("s_cselect_b64 vcc, -1, 0")
    e("v_cndmask_b32 v%d, v%d, v%d, vcc" % (RN, RN + 1, RN + 3))
    for i in range(8):
        e("v_and_b32 v%d, 0xffff0000, v%d" % (YR + 2 * i + 1, YR + 2 * i))
        e("v_lshlrev_b32 v%d, 16, v%d" % (YR + 2 * i, YR + 2 * i))
    for i in range(8):
        e("v_pk_add_f32 %s, %s, %s" % (vr(ACC + 2 * i, 2), vr(ACC + 2 * i, 2), vr(YR + 2 * i, 2)))
    for i in range(8):
        e("v_pk_mul_f32 %s, %s, %s op_sel_hi:[1,0]" % (vr(ACC + 2 * i, 2), vr(ACC + 2 * i, 2), vr(RN, 2)))
    for dt in range(4):
        e("ds_write_b128 v%d, %s" % (10 + dt, vr(ACC + 4 * dt, 4)))
    k.lab("L_final")
    main_lines = k.lines

    k.lines = []
    k.vm.q, k.lg.q = list(q_vm), []
    k.lab("L_fft")
    sCC, sPL, sZR, sZI, sSC, sFXC, sGB, sFX = 48, 50, 51, 52, 53, 54, 55, 56
    C64, S64, N64, C32, S32, N32, T1C, T1S, T2C, T2S = 128, 136, 144, 152, 160, 168, 176, 184, 192, 200
    XB, PA, FB, SUM, GR, ONES = 32, 64, 96, 208, 216, 224
    e("s_waitcnt lgkmcnt(0)")
    e("s_load_dword s%d, s[%d:%d], 0x%x" % (sTAG, SWS, SWS + 1, EPOCH_OFF))

    def fgen(tl):
        t = 32
        e("s_lshl_b32 s%d, s%d, 5" % (sT0, sCBK))
        e("v_add_u32 v%d, s%d, v%d" % (t, sT0, vC))
        if tl:
            e("v_add_u32 v%d, 16, v%d" % (t, t))
        e("v_lshrrev_b32 v%d, 1, v%d" % (t + 1, t))
        e("v_and_b32 v%d, 1, v%d" % (t + 2, t))
        e("v_cvt_f32_u32 v%d, v%d" % (t + 2, t + 2))
        e("v_mul_f32 v%d, %s, v%d" % (t + 2, hexf(0.25), t + 2))
        if tl == 0:
            e("v_cmp_eq_u32 vcc, 1, v%d" % t)
            e("v_mov_b32 v%d, 256" % (t + 3))
        e("s_lshl_b32 s%d, s%d, 6" % (sT0, sR))
        if tl == 0:
            e("v_cndmask_b32 v%d, v%d, v%d, vcc" % (t + 1, t + 1, t + 3))
            e("v_cndmask_b32 v%d, v%d, 0, vcc" % (t + 2, t + 2))
        e("v_cvt_f32_u32 v%d, v%d" % (t + 1, t + 1))
        e("v_mul_f32 v%d, %s, v%d" % (t + 1, hexf(1.0 / 512), t + 1))
        e("v_lshl_add_u32 v%d, v%d, 3, s%d" % (t + 3, vQ, sT0))
        e("v_cvt_f32_u32 v%d, v%d" % (t + 3, t + 3))
        e("v_fma_f32 v%d, v%d, v%d, v%d" % (t + 2, t + 3, t + 1, t + 2))
        e("v_fract_f32 v%d, v%d" % (t + 8, t + 2))
        e("v_mul_f32 v%d, %s, v%d" % (t + 3, hexf(32.0), t + 1))
        e("v_fract_f32 v%d, v%d" % (t + 3, t + 3))
        for jj in range(1, 8):
            e("v_add_f32 v%d, v%d, v%d" % (t + 8 + jj, t + 7 + jj, t + 1))
        for Tf in range(4):
            for jj in range(8):
                e("v_cos_f32 v%d, v%d" % (t + 16 + jj, t + 8 + jj))
            if Tf < 3:
                for jj in range(8):
                    e("v_add_f32 v%d, v%d, v%d" % (t + 8 + jj, t + 8 + jj, t + 3))
            else:
                k.nop(1)
            for d in range(4):
                e("v_cvt_pk_bf16_f32 v%d, v%d, v%d" % (FB + 16 * tl + 4 * Tf + d, t + 16 + 2 * d, t + 17 + 2 * d))
    fgen(0)
    fgen(1)
    vSM, vAL, vBE = 16, 17, 18
    e("v_bfe_u32 v19, v%d, 1, 2" % vC)
    e("v_cvt_f32_u32 v19, v19")
    e("v_mul_f32 v19, %s, v19" % hexf(0.25))
    e("v_cos_f32 v%d, v19" % vAL)
    e("v_sin_f32 v%d, v19" % vBE)
    e("v_bfe_u32 v%d, v%d, 1, 1" % (vSM, vC))
    e("v_mul_u32_u24 v%d, 0x8000, v%d" % (vSM, vSM))
    e("v_lshl_or_b32 v%d, v%d, 16, v%d" % (vSM, vSM, vSM))
    e("v_rndne_f32 v%d, v%d" % (vAL, vAL))
    e("v_rndne_f32 v%d, v%d" % (vBE, vBE))
    e("v_lshlrev_b32 v19, 31, v%d" % vC)
    e("v_xor_b32 v%d, v19, v%d" % (vBE, vBE))
    for d in range(4):
        e("v_mov_b32 v%d, 0x3f803f80" % (ONES + d))
    xread_addr(26)
    k.stamp(2)

    def cconst():
        t = 32
        slot = [16 * (jj >> 2) + (jj & 3) for jj in range(8)]
        yield "s_lshl_b32 s%d, s%d, 4" % (sT3, sRW)
        yield "v_add_u32 v%d, s%d, v%d" % (t + 24, sT3, vC)
        yield "v_cvt_f32_u32 v%d, v%d" % (t + 27, vQ)
        yield "v_cvt_f32_u32 v%d, v%d" % (t + 25, t + 24)
        yield "v_mul_f32 v%d, 4.0, v%d" % (t + 27, t + 27)
        yield "v_cvt_f32_u32 v%d, v%d" % (t + 28, vC)
        yield "v_and_b32 v%d, 1, v%d" % (t + 30, vC)
        for jj in range(8):
            yield "v_add_f32 v%d, %s, v%d" % (t + 32 + jj, hexf(float(slot[jj])), t + 27)
        yield "v_mul_u32_u24 v%d, 0x8000, v%d" % (t + 30, t + 30)
        yield "v_mul_f32 v%d, %s, v%d" % (t + 26, hexf(1.0 / 64), t + 25)
        yield "v_lshl_or_b32 v%d, v%d, 16, v%d" % (t + 30, t + 30, t + 30)
        for (scale, Cb, Sb, Nb, flip) in ((t + 26, C64, S64, N64, "v%d" % (t + 30)), (t + 29, C32, S32, N32, "0x80000000")):
            if Cb == C32:
                yield "v_mul_f32 v%d, %s, v%d" % (t + 29, hexf(1.0 / 32), t + 28)
                yield "v_mul_f32 v%d, %s, v%d" % (t + 26, hexf(1.0 / 2048), t + 25)
            for jj in range(8):
                yield "v_mul_f32 v%d, v%d, v%d" % (t + jj, t + 32 + jj, scale)
            for jj in range(8):
                yield "v_cos_f32 v%d, v%d" % (t + 8 + jj, t + jj)
            for jj in range(8):
                yield "v_sin_f32 v%d, v%d" % (t + 16 + jj, t + jj)
            for d in range(4):
                yield "v_cvt_pk_bf16_f32 v%d, v%d, v%d" % (Cb + d, t + 8 + 2 * d, t + 9 + 2 * d)
            for d in range(4):
                yield "v_cvt_pk_bf16_f32 v%d, v%d, v%d" % (Sb + d, t + 16 + 2 * d, t + 17 + 2 * d)
            for d in range(4):
                yield "v_xor_b32 v%d, %s, v%d" % (Cb + 4 + d, flip, Cb + d)
            for d in range(4):
                yield "v_xor_b32 v%d, %s, v%d" % (Sb + 4 + d, flip, Sb + d)
            for d in range(8):
                yield "v_xor_b32 v%d, 0x80008000, v%d" % (Nb + d, Sb + d)
        for i in range(8):
            yield "v_mul_f32 v%d, v%d, v%d" % (t + i, t + 32 + i, t + 26)
        yield "v_cvt_f32_u32 v%d, s%d" % (t + 29, sT3)
        for i in range(8):
            yield "v_cos_f32 v%d, v%d" % (T1C + i, t + i)
            yield "v_sin_f32 v%d, v%d" % (T1S + i, t + i)
        yield "v_mul_f32 v%d, %s, v%d" % (t + 26, hexf(1.0 / 2048), t + 28)
        for r in range(4):
            yield "v_add_f32 v%d, v%d, v%d" % (t + 8 + r, t + 29, t + 32 + r)
        yield "v_add_f32 v%d, %s, v%d" % (t + 25, hexf(16.0 / 2048), t + 26)
        for r in range(4):
            yield "v_mul_f32 v%d, v%d, v%d" % (t + r, t + 8 + r, t + 26)
        for r in range(4):
            yield "v_mul_f32 v%d, v%d, v%d" % (t + 4 + r, t + 8 + r, t + 25)
        for i in range(8):
            yield "v_cos_f32 v%d, v%d" % (T2C + i, t + i)
            yield "v_sin_f32 v%d, v%d" % (T2S + i, t + i)
    CCE = P("CCE", 1)
    if CCE:
        for s_ in cconst():
            e(s_)
    vX1 = 7
    e("v_lshrrev_b32 v7, 1, v%d" % vC)
    e("v_lshlrev_b32 v7, 13, v7")
    e("v_and_b32 v19, 1, v%d" % vC)
    e("v_lshl_add_u32 v7, v19, 6, v7")
    e("v_lshl_add_u32 v7, v%d, 4, v7" % vQ)
    e("s_lshl_b32 s%d, s%d, 9" % (sT0, sRW))
    e("s_add_u32 s%d, s%d, 0x%x" % (sT0, sT0, L_ST))
    e("v_lshl_add_u32 v8, v%d, 2, s%d" % (vC, sT0))
    e("v_lshl_add_u32 v9, v%d, 4, s%d" % (vQ, sT0))
    e("s_lshl4_add_u32 s%d, s%d, s%d" % (sFX, sCBK, sPB))
    e("s_lshl_b32 s%d, s%d, 7" % (sFX, sFX))
    e("s_lshl2_add_u32 s%d, s%d, s%d" % (sFX, sRW, sFX))
    tag_setup()
    k.stamp(3)
    e("s_setprio %d" % P("PRIO", 1))

    def XBf(kk, u, ks):
        return vr(XB + (((kk & 1) * 2 + ks) * 2 + u) * 4, 4)
    for s_ in range(4):
        e("s_barrier")
        fs(6, 2 + s_)
        for kk in (2 * s_, 2 * s_ + 1):
            for ks in range(2):
                for u in range(2):
                    xread(XBf(kk, u, ks), 26, kk, u, ks, ("XR", kk, ks))
        if s_ == 2:
            for i in range(32):
                e("v_xor_b32 v%d, v%d, v%d" % (FB + i, vSM, FB + i))
        for kk in (2 * s_, 2 * s_ + 1):
            for ks in range(2):
                T = 2 * kk + ks
                k.wait_lg(("XR", kk, ks))
                for u in range(2):
                    x = XBf(kk, u, ks)
                    mfma(vr(SUM + 4 * u, 4), vr(ONES, 4), x, vr(SUM + 4 * u, 4) if T else "0")
                    mfma(vr(GR + 4 * u, 4), x, x, vr(GR + 4 * u, 4) if T else "0")
                for u in range(2):
                    x = XBf(kk, u, ks)
                    for tl in range(2):
                        p = vr(PA + ((tl * 2 + ((T >> 2) & 1)) * 2 + u) * 4, 4)
                        mfma(p, x, vr(FB + 16 * tl + 4 * (T & 3), 4), "0" if T in (0, 4) else p)
    e("s_barrier")
    k.stamp(4)
    fs(6, 6)
    e("s_setprio %d" % P("XPRIO", 0))
    e("v_and_b32 v19, 3, v%d" % vC)
    k.nop(2)
    for r in range(1, 4):
        e("v_cmp_eq_u32 vcc, %d, v19" % r)
        k.nop(2)
        for u in range(2):
            e("v_cndmask_b32 v%d, v%d, v%d, vcc" % (GR + 4 * u, GR + 4 * u, GR + 4 * u + r))

    def stat_ops(u):
        m, q2, rs_, nm, d0 = SUM + 4 * u, GR + 4 * u, SUM + 4 * u + 1, SUM + 4 * u + 2, SUM + 4 * u + 3
        rnd = lambda v: ["v_cvt_pk_bf16_f32 v%d, v%d, v%d" % (v, v, v), "v_lshlrev_b32 v%d, 16, v%d" % (v, v)]
        return (["v_mul_f32 v%d, %s, v%d" % (m, hexf(1.0 / 512), m),
                 "v_mul_f32 v%d, %s, v%d" % (q2, hexf(1.0 / 512), q2),
                 "v_fma_f32 v%d, -v%d, v%d, v%d" % (q2, m, m, q2),
                 "v_max_f32 v%d, 0, v%d" % (q2, q2)] + rnd(q2) +
                ["v_add_f32 v%d, %s, v%d" % (q2, hexf(1e-5), q2)] + rnd(q2) +
                ["v_sqrt_f32 v%d, v%d" % (q2, q2), "v_sub_f32 v%d, 0, v%d" % (nm, m)] + rnd(q2) +
                ["v_rcp_f32 v%d, v%d" % (rs_, q2)] + rnd(nm) +
                ["v_add_f32 v%d, v%d, v%d" % (d0, m, nm), "v_mul_f32 v%d, %s, v%d" % (d0, hexf(512.0), d0)])
    for a_, b_ in zip(stat_ops(0), stat_ops(1)):
        e(a_)
        e(b_)
    e("s_mov_b32 exec_lo, 0x00f0000f")
    e("s_mov_b32 exec_hi, 0xf0000f00")
    for u in range(2):
        e("ds_write2_b32 v8, v%d, v%d offset0:%d offset1:%d" % (SUM + 4 * u + 1, SUM + 4 * u + 2, 16 * u, 32 + 16 * u))
        e("ds_write_b32 v8, v%d offset:%d" % (SUM + 4 * u + 3, 256 + 64 * u))
    e("s_mov_b64 exec, -1")
    RT, D0T = XB, XB + 8
    for u in range(2):
        e("ds_read_b128 %s, v9 offset:%d" % (vr(RT + 4 * u, 4), 64 * u))
        e("ds_read_b128 %s, v9 offset:%d" % (vr(D0T + 4 * u, 4), 256 + 64 * u))
    for tl in range(2):
        for i in range(8):
            e("v_fmac_f32 v%d, v%d, v%d" % (PA + 16 * tl + i, vAL, PA + 16 * tl + 8 + i))
        for i in range(8):
            e("v_fmac_f32_dpp v%d, v%d, v%d quad_perm:[1,0,3,2] row_mask:0xf bank_mask:0xf" % (PA + 16 * tl + i, PA + 16 * tl + 8 + i, vBE))
    e("v_or_b32 v19, s%d, v%d" % (sCBK, vC))
    e("v_cmp_eq_u32 vcc, 0, v19")
    e("s_lshl_b32 s%d, s%d, 17" % (sT0, sCBK))
    e("s_lshl2_add_u32 s%d, s%d, s%d" % (sT1, sA, sRW))
    e("s_lshr_b32 s%d, s%d, 1" % (sT2, sWP))
    e("s_lshl1_add_u32 s%d, s%d, s%d" % (sT1, sT1, sT2))
    e("s_lshl_b32 s%d, s%d, 7" % (sT1, sT1))
    e("s_add_u32 s%d, s%d, s%d" % (sT0, sT0, sT1))
    e("s_add_u32 s%d, s%d, 0x%x" % (sT1, sT0, X1C_OFF))
    e("s_add_u32 s%d, s%d, 0x%x" % (sT2, sT0, X1C_OFF + 65536))
    e("s_waitcnt lgkmcnt(0)")
    k.lg.clear()
    for i in range(8):
        e("v_cndmask_b32 v%d, v%d, v%d, vcc" % (PA + i, PA + i, D0T + i))
    for tl in range(2):
        for i in range(8):
            e("v_mul_f32 v%d, v%d, v%d" % (PA + 16 * tl + i, PA + 16 * tl + i, RT + i))
        o = 232 + 4 * tl
        for d in range(4):
            e("v_cvt_pk_bf16_f32 v%d, v%d, v%d" % (o + d, PA + 16 * tl + 2 * d, PA + 16 * tl + 2 * d + 1))
        e("buffer_store_dwordx4 %s, v%d, %s, s%d offen sc1" % (vr(o, 4), vX1, srd(SWS), sT1 + tl))
        k.vm.issue("x1st")
    k.stamp(5)

    def colsum(reg):
        if reg == 0:
            e("v_lshrrev_b32 v19, 2, v%d" % vC)
            e("v_lshl_add_u32 v20, v%d, 3, v19" % vQ)
            e("v_lshlrev_b32 v20, 7, v20")
            e("v_and_b32 v13, 1, v%d" % vC)
            e("v_lshl_add_u32 v20, v13, 3, v20")
            e("v_bfe_u32 v19, v%d, 3, 1" % vC)
            e("v_and_b32 v13, 1, v%d" % vQ)
            e("v_lshl_or_b32 v19, v13, 1, v19")
            e("v_xor_b32 v19, s%d, v19" % sRW)
            e("v_lshlrev_b32 v19, 1, v19")
            e("v_bfe_u32 v13, v%d, 1, 1" % vC)
            e("v_or_b32 v19, v19, v13")
            e("v_lshl_add_u32 v20, v19, 4, v20")
            e("v_add_u32 v13, 0x%x, v20" % LB)
            e("s_lshl_b32 s%d, s%d, 6" % (sT1, sRW))
            e("s_add_u32 s%d, s%d, 0x%x" % (sT1, sT1, L_CS))
            e("v_lshl_add_u32 v16, v%d, 4, s%d" % (vQ, sT1))
            gwait(C_WA2)
        else:
            gwait(C_WB1)
            gwait(C_WB2)
        base = 20 if reg else 13

        def rd(T):
            for hh in range(2):
                e("ds_read_b64_tr_b16 %s, v%d offset:%d" % (vr(48 + 4 * (T % 4) + 2 * hh, 2), base, T * 4096 + hh * 512))
                k.lg.issue(("CS", reg, T))
        for T in range(3):
            rd(T)
        for T in range(16):
            if T + 3 < 16:
                rd(T + 3)
            k.wait_lg(("CS", reg, T))
            mfma(vr(240, 4), vr(48 + 4 * (T % 4), 4), vr(ONES, 4), vr(240, 4) if T else "0")
        k.nop(6)
        e("s_mov_b32 exec_lo, 0x00010001")
        e("s_mov_b32 exec_hi, 0x00010001")
        e("ds_write_b128 v16, v[240:243] offset:%d" % (256 * reg))
        e("s_mov_b64 exec, -1")
        garrive(C_FB if reg else C_FA)
    colsum(0)
    e("s_setprio 0")
    GB = 64

    def ggen():
        t0 = 32
        an, stp = 252, 31
        yield "s_lshl_b32 s%d, s%d, 6" % (sT3, sDB)
        yield "s_lshl4_add_u32 s%d, s%d, s%d" % (sT3, sRW, sT3)
        yield "v_add_u32 v%d, s%d, v%d" % (t0, sT3, vC)
        yield "v_lshlrev_b32 v%d, 1, v%d" % (t0 + 2, vQ)
        yield "v_cvt_f32_u32 v%d, v%d" % (t0 + 1, t0)
        yield "v_cvt_f32_u32 v%d, v%d" % (t0 + 2, t0 + 2)
        yield "v_mul_f32 v%d, %s, v%d" % (t0 + 1, hexf(1.0 / 512), t0 + 1)
        yield "v_mul_f32 v%d, %s, v%d" % (stp, hexf(16.0), t0 + 1)
        for dw in range(4):
            yield "v_add_f32 v%d, %s, v%d" % (an + dw, hexf(float(8 * (dw >> 1) + (dw & 1))), t0 + 2)
        yield "v_fract_f32 v%d, v%d" % (stp, stp)
        for dw in range(4):
            yield "v_mul_f32 v%d, v%d, v%d" % (an + dw, an + dw, t0 + 1)
        yield "v_lshlrev_b32 v%d, 31, v%d" % (t0 + 16, vC)
        yield "v_min_u32 v%d, 1, v%d" % (t0 + 17, vQ)
        yield "v_or_b32 v%d, 0x3f800000, v%d" % (t0 + 16, t0 + 16)
        yield "v_sub_u32 v%d, v%d, 1" % (t0 + 17, t0 + 17)
        yield "v_and_b32 v%d, 0xffff0000, v%d" % (t0 + 17, t0 + 17)
        yield "v_and_b32 v17, 1, v%d" % vC
        yield "v_mul_u32_u24 v17, 0x020202, v17"
        yield "v_lshl_or_b32 v17, v17, 8, v17"
        yield "v_xor_b32 v17, 0x03020100, v17"
        yield "v_bfe_u32 v18, v%d, 1, 1" % vC
        yield "v_add_u32 v%d, 1, v%d" % (t0 + 18, vC)
        yield "v_bfe_u32 v%d, v%d, 1, 1" % (t0 + 18, t0 + 18)
        yield "v_lshlrev_b32 v18, 15, v18"
        yield "v_lshl_or_b32 v18, v%d, 31, v18" % (t0 + 18)
        for T in range(8):
            for dw in range(4):
                yield "v_cos_f32 v%d, v%d" % (t0 + 8 + 2 * dw, an + dw)
                yield "v_sin_f32_e64 v%d, -v%d" % (t0 + 9 + 2 * dw, an + dw)
            for dw in range(4):
                yield "v_add_f32 v%d, v%d, v%d" % (an + dw, an + dw, stp)
            for dw in range(4):
                yield "v_cvt_pk_bf16_f32 v%d, v%d, v%d" % (GB + 4 * T + dw, t0 + 8 + 2 * dw, t0 + 9 + 2 * dw)
            for dw in range(4):
                yield "v_perm_b32 v%d, v%d, v%d, v17" % (GB + 32 + 4 * T + dw, GB + 4 * T + dw, GB + 4 * T + dw)
            for dw in range(4):
                yield "v_xor_b32 v%d, v18, v%d" % (GB + 32 + 4 * T + dw, GB + 32 + 4 * T + dw)
            if T == 0:
                yield "v_bfi_b32 v%d, v%d, v%d, v%d" % (GB, t0 + 17, t0 + 16, GB)
    late_setup(1)
    e("v_add_u32 v6, 0x%x, v%d" % (LB, vZB))
    vFL, vFZ, vDZ = 14, 15, 9
    e("s_xor_b32 s%d, s2, 0x38" % sCC)
    flag_voff(vFZ, 63)
    e("v_and_b32 v%d, 0x1ff, v%d" % (vFL, vFZ))
    e("v_min_u32 v19, 1, v%d" % vQ)
    e("v_mul_u32_u24 v19, 0x%x, v19" % (FW_OFF - FX_OFF))
    e("v_add_u32 v%d, v19, v%d" % (vFL, vFL))
    e("s_cmp_eq_u32 s%d, 0" % sCC)
    e("s_cselect_b32 s%d, 0x%x, 0" % (sT0, 16 * 2048))
    e("v_lshrrev_b32 v19, 1, v%d" % vQ)
    e("v_mul_u32_u24 v19, s%d, v19" % sT0)
    e("v_add_u32 v%d, v19, v%d" % (vFL, vFL))
    e("s_lshr_b32 s%d, s%d, 4" % (sFXC, sCC))
    e("s_lshl2_add_u32 s%d, s%d, s%d" % (sFXC, sFXC, sRW))
    e("s_lshl_b32 s%d, s%d, 9" % (sFXC, sFXC))
    e("s_mov_b32 s%d, 0" % sGB)
    XI, TM, TW, DR, DI, PR, PI, CWL = 32, 32, 48, 208, 216, 224, 228, 232

    def xin(pl, v, tt):
        return XI + 4 * ((pl * 2 + v) * 2 + tt)
    e("v_add_u32 v26, 0x%x, v%d" % (L_C1, vYW))
    e("v_xor_b32 v27, 64, v26")
    e("v_xor_b32 v28, 128, v26")
    e("v_xor_b32 v29, 192, v26")
    e("s_lshr_b32 s%d, s%d, 1" % (sT0, sRW))
    e("s_lshl_b32 s%d, s%d, 7" % (sT0, sT0))
    e("s_and_b32 s%d, s%d, 1" % (sT1, sRW))
    e("s_lshl3_add_u32 s%d, s%d, s%d" % (sT0, sT1, sT0))
    e("v_xor_b32 v10, s%d, v26" % sT0)
    e("v_xor_b32 v11, 64, v10")
    e("v_lshlrev_b32 v12, 5, v%d" % vC)
    e("v_lshl_add_u32 v12, v%d, 3, v12" % vQ)
    e("s_lshl_b32 s%d, s%d, 10" % (sT0, sRW))
    e("v_add_u32 v12, s%d, v12" % sT0)
    e("s_lshl_b32 s%d, s%d, 13" % (sZR, sCC))
    e("s_add_u32 s%d, s%d, 0x%x" % (sZR, sZR, ZT_OFF))
    e("s_add_u32 s%d, s%d, 4096" % (sZI, sZR))
    e("s_mov_b32 s%d, %s" % (sSC, hexf(2.0 ** -19)))
    e("s_cmp_eq_u32 s%d, 0" % sCC)
    e("s_cselect_b32 s%d, 0x%x, s%d" % (sZI, OOB, sZI))
    e("s_cselect_b32 s%d, %s, s%d" % (sSC, hexf(2.0 ** -20), sSC))
    e("s_mov_b32 s%d, 0" % sPL)
    e("s_lshl_b32 s%d, s%d, 3" % (sT0, sT1))
    e("v_add_u32 v19, s%d, v%d" % (sT0, vQ))
    e("v_xor_b32 v30, v19, v%d" % vC)
    e("v_lshlrev_b32 v30, 4, v30")
    e("v_lshl_add_u32 v30, v%d, 8, v30" % vQ)
    e("v_xor_b32 v24, 64, v30")
    e("v_lshrrev_b32 v8, 3, v%d" % vLANE)
    e("v_and_b32 v9, 7, v%d" % vLANE)
    e("v_lshlrev_b32 v19, 1, v%d" % vQ)
    e("v_xor_b32 v19, v19, v9")
    e("v_lshlrev_b32 v19, 4, v19")
    e("v_lshl_add_u32 v%d, v8, 12, v19" % vDZ)
    k.wait_vm("x1st")
    publish("s%d" % sFX)
    xe_load()
    if P("NOFFT", 0):
        e("s_branch L_final")
    k.stamp(6)
    pre = ([] if CCE else list(cconst())) + ["v_mul_f32 v%d, s%d, v%d" % (T2C + i, sSC, T2C + i) for i in range(16)]
    gl = list(ggen())
    GE = P("GE", 152)
    pre += gl[:GE]
    gl = gl[GE:]
    n2 = max(0, len(pre) - P("PFXL", 0))
    cs1 = min(n2, P("CS1", 72))
    for s_ in pre[:cs1]:
        e(s_)
    colsum(1)
    for s_ in pre[cs1:n2]:
        e(s_)
    poll_issue("pfx", vFL, "s%d" % sFXC, 13)
    for s_ in pre[n2:]:
        e(s_)
    k.stamp(7)
    e("s_setprio %d" % P("CPRIO", 1))
    poll_check("pfx", vFL, "s%d" % sFXC, 13)
    k.stamp(8)

    def gbar_lines():
        return ["    s_add_u32 s%d, s%d, 4" % (sGB, sGB)] + garrive_lines(C_F) + gwait_lines(C_F, "s%d" % sGB)

    def gbar():
        k.lines.extend(gbar_lines())
        k.lg.clear()
    e("s_lshl_b32 s%d, s%d, 13" % (sT0, sCC))
    e("s_lshl_b32 s%d, s%d, 11" % (sT1, sRW))
    e("s_add_u32 s%d, s%d, s%d" % (sT0, sT0, sT1))
    e("s_add_u32 s%d, s%d, 0x%x" % (sT2, sT0, X1C_OFF))
    e("s_add_u32 m0, s%d, 0x%x" % (sT1, L_C1))
    k.nop(1)
    e("buffer_load_dwordx4 v30, %s, s%d offen sc1 lds" % (srd(SWS), sT2))
    k.vm.issue("cin")
    e("buffer_load_dwordx4 v24, %s, s%d offen offset:1024 sc1 lds" % (srd(SWS), sT2))
    k.vm.issue("cin")
    e("s_add_u32 s%d, s%d, 0x%x" % (sT2, sT0, WT_OFF))
    for v in range(2):
        e("buffer_load_dwordx4 %s, v%d, %s, s%d offen offset:%d sc1" % (vr(CWL + 4 * v, 4), vL16, srd(SWS), sT2, v * 1024))
        k.vm.issue("cw")
    e("s_add_u32 s%d, s%d, 0x%x" % (sT2, sT2, 256 * 8192))
    e("s_cmp_eq_u32 s%d, 0" % sCC)
    e("s_cselect_b32 s%d, s%d, 0x%x" % (sT2, sT2, OOB))
    for v in range(2):
        e("buffer_load_dwordx4 %s, v%d, %s, s%d offen offset:%d sc1" % (vr(CWL + 8 + 4 * v, 4), vL16, srd(SWS), sT2, v * 1024))
        k.vm.issue("cw")
    k.wait_vm("cin")
    gbar()
    k.stamp(9)
    k.lab("L_ccol")
    for pl in range(2):
        for v in range(2):
            for tt in range(2):
                e("ds_read_b128 %s, v%d offset:%d" % (vr(xin(pl, v, tt), 4), 26 + 2 * tt + pl, v * 4096))
    e("s_waitcnt lgkmcnt(0)")
    e("s_cmp_eq_u32 s%d, 0" % sCC)
    e("s_cbranch_scc1 L_creal")
    k.lab("L_cplx")
    tail.append("L_creal:")
    tail.append("    s_cmp_eq_u32 s%d, 0" % sPL)
    tail.append("    s_cbranch_scc1 L_c0")
    for i in range(16):
        tail.append("    v_mov_b32 v%d, v%d" % (XI + i, XI + 16 + i))
    tail.append("L_c0:")
    for i in range(16):
        tail.append("    v_mov_b32 v%d, 0" % (XI + 16 + i))
    tail.append("    s_nop 1")
    tail.append("    s_branch L_cplx")
    for v in range(2):
        dr, di = vr(DR + 4 * v, 4), vr(DI + 4 * v, 4)
        for tt in range(2):
            mfma(dr, vr(xin(0, v, tt), 4), vr(C64 + 4 * tt, 4), dr if tt else "0")
            mfma(di, vr(xin(1, v, tt), 4), vr(C64 + 4 * tt, 4), di if tt else "0")
            mfma(dr, vr(xin(1, v, tt), 4), vr(S64 + 4 * tt, 4))
            mfma(di, vr(xin(0, v, tt), 4), vr(N64 + 4 * tt, 4))

    def cmul(cr, ci, conj):
        for h in range(2):
            for i in (4 * h, 4 * h + 2):
                e("v_pk_mul_f32 %s, %s, %s" % (vr(TM + i, 2), vr(DR + i, 2), vr(cr + i, 2)))
                e("v_pk_mul_f32 %s, %s, %s" % (vr(TM + 8 + i, 2), vr(DI + i, 2), vr(cr + i, 2)))
            neg = " neg_lo:[1,0,0] neg_hi:[1,0,0]"
            for i in (4 * h, 4 * h + 2):
                e("v_pk_fma_f32 %s, %s, %s, %s%s" % (vr(TM + i, 2), vr(DI + i, 2), vr(ci + i, 2), vr(TM + i, 2), "" if conj else neg))
                e("v_pk_fma_f32 %s, %s, %s, %s%s" % (vr(TM + 8 + i, 2), vr(DR + i, 2), vr(ci + i, 2), vr(TM + 8 + i, 2), neg if conj else ""))
        for d in range(4):
            e("v_cvt_pk_bf16_f32 v%d, v%d, v%d" % (PR + d, TM + 2 * d, TM + 2 * d + 1))
            e("v_cvt_pk_bf16_f32 v%d, v%d, v%d" % (PI + d, TM + 8 + 2 * d, TM + 9 + 2 * d))
        k.nop(2)
    cmul(T1C, T1S, True)
    pr, pi = vr(PR, 4), vr(PI, 4)
    for v in range(2):
        dr, di = vr(DR + 4 * v, 4), vr(DI + 4 * v, 4)
        mfma(dr, vr(C32 + 4 * v, 4), pr, "0")
        mfma(di, vr(C32 + 4 * v, 4), pi, "0")
        mfma(dr, vr(S32 + 4 * v, 4), pi)
        mfma(di, vr(N32 + 4 * v, 4), pr)
    k.wait_vm("cw")
    for i in range(8):
        e("v_lshlrev_b32 v%d, 16, v%d" % (TW + i, CWL + i))
        e("v_and_b32 v%d, 0xffff0000, v%d" % (TW + 8 + i, CWL + i))
    cmul(TW, TW + 8, False)
    for v in range(2):
        dr, di = vr(DR + 4 * v, 4), vr(DI + 4 * v, 4)
        mfma(dr, pr, vr(C32 + 4 * v, 4), "0")
        mfma(di, pi, vr(C32 + 4 * v, 4), "0")
        mfma(dr, pi, vr(N32 + 4 * v, 4))
        mfma(di, pr, vr(S32 + 4 * v, 4))
    k.nop(4)
    cmul(T2C, T2S, False)
    for v in range(2):
        e("ds_write_b64 v10, %s offset:%d" % (vr(PR + 2 * v, 2), 8192 + v * 4096))
        e("ds_write_b64 v11, %s offset:%d" % (vr(PI + 2 * v, 2), 8192 + v * 4096))
    e("s_waitcnt lgkmcnt(0)")
    gbar()
    for v in range(2):
        for tt in range(2):
            for pl in range(2):
                e("ds_read_b128 %s, v%d offset:%d" % (vr(xin(pl, v, tt), 4), 26 + 2 * tt + pl, 8192 + v * 4096))
                k.lg.issue(("cy", v, tt))
    for v in range(2):
        dr, di = vr(DR + 4 * v, 4), vr(DI + 4 * v, 4)
        for tt in range(2):
            k.wait_lg(("cy", v, tt))
            mfma(dr, vr(C64 + 4 * tt, 4), vr(xin(0, v, tt), 4), dr if tt else "0")
            mfma(di, vr(C64 + 4 * tt, 4), vr(xin(1, v, tt), 4), di if tt else "0")
            mfma(dr, vr(N64 + 4 * tt, 4), vr(xin(1, v, tt), 4))
            mfma(di, vr(S64 + 4 * tt, 4), vr(xin(0, v, tt), 4))
    for v in range(2):
        if v:
            k.nop(4)
        for d in range(2):
            e("v_cvt_pk_bf16_f32 v%d, v%d, v%d" % (PR + 2 * v + d, DR + 4 * v + 2 * d, DR + 4 * v + 2 * d + 1))
            e("v_cvt_pk_bf16_f32 v%d, v%d, v%d" % (PI + 2 * v + d, DI + 4 * v + 2 * d, DI + 4 * v + 2 * d + 1))
        e("buffer_store_dwordx2 %s, v12, %s, s%d offen offset:%d sc1" % (vr(PR + 2 * v, 2), srd(SWS), sZR, v * 512))
        k.vm.issue("zst")
        e("buffer_store_dwordx2 %s, v12, %s, s%d offen offset:%d sc1" % (vr(PI + 2 * v, 2), srd(SWS), sZI, v * 512))
        k.vm.issue("zst")
    e("s_or_b32 s%d, s%d, s%d" % (sT0, sCC, sPL))
    if not P("NO256", 0):
        e("s_cbranch_scc0 L_csecond")
    sec = ["L_csecond:", "    s_mov_b32 s%d, 1" % sPL, "    s_add_u32 s%d, s%d, 4096" % (sZR, sZR)]
    for i in range(8):
        sec.append("    v_mov_b32 v%d, v%d" % (CWL + i, CWL + 8 + i))
    sec.extend(gbar_lines())
    sec.append("    s_branch L_ccol")
    tail.extend(sec)
    k.stamp(10)
    fs(7, 2)
    e("s_lshr_b32 s%d, s%d, 2" % (sT4, sCC))
    e("s_lshl_b32 s%d, s%d, 6" % (sT1, sRW))
    e("s_add_u32 s%d, s%d, s%d" % (sT4, sT4, sT1))
    e("s_lshl_b32 s%d, s%d, 7" % (sT4, sT4))
    e("s_and_b32 s%d, s%d, 3" % (sT1, sCC))
    e("s_lshl2_add_u32 s%d, s%d, s%d" % (sT4, sT1, sT4))
    e("s_add_u32 s%d, s%d, 0x%x" % (sT4, sT4, FZ_OFF))
    sFZC = sFXC
    e("s_lshl2_add_u32 s%d, s%d, s%d" % (sFZC, sWP, sRW))
    e("s_lshl_b32 s%d, s%d, 11" % (sFZC, sFZC))
    e("s_add_u32 s%d, s%d, 0x%x" % (sFZC, sFZC, FZ_OFF))
    e("s_lshl_b32 s%d, s%d, 19" % (sDT, sRW))
    e("s_lshl_b32 s%d, s%d, 10" % (sT1, sWP))
    e("s_add_u32 s%d, s%d, s%d" % (sDT, sDT, sT1))
    e("s_lshl_b32 s%d, s%d, 7" % (sT1, sA))
    e("s_add_u32 s%d, s%d, s%d" % (sDT, sDT, sT1))
    e("s_add_u32 s%d, s%d, 0x%x" % (sDT, sDT, ZT_OFF - 32768))
    e("s_lshl_b32 s%d, s%d, 14" % (sT2, sRW))
    e("s_lshl_b32 s%d, s%d, 6" % (sT1, sRW))
    e("v_xor_b32 v20, s%d, v26" % sT1)
    k.wait_vm("zst")
    fs(7, 3)
    publish("s%d" % sT4)
    e("s_setprio 0")
    for s_ in gl:
        e(s_)
    TRZ = [16, 17, 18, 7]
    for pt in range(4):
        e("v_xor_b32 v%d, %d, v6" % (TRZ[pt], 32 * pt))
    e("s_setprio 1")
    gwait(C_WT)
    fs(7, 4)
    if P("ZSLP", 0):
        e("s_sleep %d" % P("ZSLP", 0))
    poll_issue("pz", vFZ, "s%d" % sFZC, 30)
    if FS == 7:
        k.wait_vm("pz")
    fs(7, 5)
    poll_check("pz", vFZ, "s%d" % sFZC, 30)
    fs(7, 6)
    k.stamp(11)
    for ee in range(16):
        e("s_add_u32 m0, s%d, %d" % (sT2, LB + ee * 1024))
        e("s_add_u32 s%d, s%d, 32768" % (sDT, sDT))
        e("buffer_load_dwordx4 v%d, %s, s%d offen sc1 lds" % (vDZ, srd(SWS), sDT))
        k.vm.issue("Z")
    fs(7, 7)
    e("s_setprio %d" % P("EPRIO", 0))
    k.wait_vm("Z")
    fs(7, 8)
    gbar()
    fs(7, 9)
    AS, ZF = 208, 128

    def zr(T, pt):
        for hh in range(2):
            r = ZF + ((T % 4) * 4 + pt) * 4 + 2 * hh
            e("ds_read_b64_tr_b16 %s, v%d offset:%d" % (vr(r, 2), TRZ[pt], T * 4096 + hh * 2048))
            k.lg.issue(("ZR", T, pt))
    seq = [(T, pt) for T in range(16) for pt in range(4)]
    LA_ = 6
    for n in range(LA_):
        zr(*seq[n])
    for n, (T, pt) in enumerate(seq):
        if n + LA_ < 64:
            zr(*seq[n + LA_])
        k.wait_lg(("ZR", T, pt))
        c = vr(AS + 4 * pt, 4)
        mfma(c, vr(GB + 4 * T, 4), vr(ZF + ((T % 4) * 4 + pt) * 4, 4), c if T else "0")
    k.nop(8)
    for pt in range(4):
        e("ds_write_b128 v20, %s offset:%d" % (vr(AS + 4 * pt, 4), pt * 4096))
    fs(7, 10)
    e("s_branch L_final")
    tail[0:0] = k.lines
    k.lines = main_lines

    e("s_waitcnt vmcnt(0) lgkmcnt(0)")
    k.vm.clear()
    k.lg.clear()
    fs(12, 7)
    e("s_barrier")
    fs(12, 8)
    k.stamp(12)
    YP, SV, U2 = 192, 224, 232
    e("v_add_u32 v10, 0x%x, v%d" % (L_C1, vR0))
    e("v_add_u32 v11, 0x%x, v%d" % (L_C1, vR1))
    for h in range(2):
        e("ds_read_b128 %s, v%d" % (vr(YP + 4 * h, 4), vR0 + h))
        k.lg.issue("yp")
    for h in range(2):
        e("ds_read_b128 %s, v%d" % (vr(SV + 4 * h, 4), 10 + h))
        k.lg.issue("sv")
    for i in range(4):
        e("v_lshlrev_b32 v%d, 16, v%d" % (240 + 2 * i, XV + i))
        e("v_and_b32 v%d, 0xffff0000, v%d" % (241 + 2 * i, XV + i))
    k.wait_lg("yp")
    for i in range(8):
        e("v_mul_f32 v%d, %s, v%d" % (U2 + i, hexf(-1.4426950408889634), YP + i))
    for i in range(8):
        e("v_exp_f32 v%d, v%d" % (U2 + i, U2 + i))
    k.wait_lg("sv")
    for i in range(8):
        e("v_mul_f32 v%d, v%d, v%d" % (YP + i, YP + i, SV + i))
    for i in range(8):
        e("v_add_f32 v%d, 1.0, v%d" % (U2 + i, U2 + i))
    for i in range(8):
        e("v_rcp_f32 v%d, v%d" % (U2 + i, U2 + i))
    k.nop(1)
    for i in range(8):
        e("v_fmac_f32 v%d, v%d, v%d" % (240 + i, YP + i, U2 + i))
    for d in range(4):
        e("v_cvt_pk_bf16_f32 v%d, v%d, v%d" % (SV + d, 240 + 2 * d, 241 + 2 * d))
    e("buffer_store_dwordx4 %s, v%d, %s, s%d offen%s" % (vr(SV, 4), vGO, srd(SOUT), sXO, os.environ.get("OFL", " sc1")))
    e("s_or_b32 s%d, s2, s%d" % (sT0, sRW))
    e("s_or_b32 s%d, s%d, s%d" % (sT0, sT0, sHF))
    e("s_cbranch_scc1 L_noep")
    e("s_mov_b32 s%d, 0x%x" % (sT0, EPOCH_OFF))
    publish("s%d" % sT0)
    k.lab("L_noep")
    k.stamp(13)
    if ENC:
        if "ENCB" in os.environ:
            e("s_cmp_lg_u32 s2, %d" % P("ENCB", 0))
            e("s_cbranch_scc1 L_done")
        e("s_waitcnt lgkmcnt(0)")
        e("s_sub_u32 s97, s%d, s66" % (64 + 2 * ENC))
        e("s_add_u32 s97, s97, 6000")
        k.lab("L_espin")
        e("s_memrealtime s[94:95]")
        e("s_waitcnt lgkmcnt(0)")
        e("s_sub_u32 s96, s94, s66")
        e("s_cmp_lt_u32 s96, s97")
        e("s_cbranch_scc1 L_espin")
    elif DIAG:
        e("s_lshl2_add_u32 s%d, s%d, s%d" % (sT0, sHF, sRW))
        e("v_mov_b32 v2, s%d" % sT0)
        k.stamp_flush(SWS, 0, 2, 8)
    k.lab("L_done")
    e("s_endpgm")
    k.lines += tail
    k.lab("L_end")
    return k


HEADER = open(os.path.join(os.path.dirname(os.path.abspath(__file__)), "header.txt")).read()


def main(out):
    k = gen()
    s = HEADER
    s += "; @launch grid=(256,1,1) block=(512,1,1) lds=163840\n"
    s += '.amdgcn_target "amdgcn-amd-amdhsa--gfx950"\n.text\n'
    s += k.text()
    s += '.section .rodata,"a"\n'
    s += descriptor(k.name, 256, 102 if DIAG else 64)
    open(out, "w").write(s)


if __name__ == "__main__":
    main(sys.argv[1] if len(sys.argv) > 1 else "v13.s")
```

```python
import sys, os
from collections import deque
sys.path.insert(0, os.path.dirname(os.path.abspath(__file__)))
from asmlib import *

NAME = "recurrent_scan__spectral_gfnet__dense_activation_relu__prompt_kernel"


def P(name, default):
    return int(os.environ.get(name, default))


X1C_OFF = 0x0200000
WT_OFF = 0x0400000
H_OFF = 0x0800000
ZT_OFF = 0x1000000
FX_OFF = 0x0000000
FW_OFF = 0x0010000
FH_OFF = 0x0020000
FY_OFF = 0x0048000
YX_OFF = 0x1800000
FHB_D = 0x0008000
FZ_OFF = 0x0030000
EPOCH_OFF = 0x0040000
WS_BYTES = 0x2000000
OOB = 0x7f000000
TAGC = 0x9E3779B9
X_BYTES = 2048 * 512 * 2
W_BYTES = 2048 * 257 * 2
W1_BYTES = 512 * 1792 * 2

SX, SWR, SWI, SW1, SW2, SOUT, SWS = 12, 16, 20, 24, 28, 32, 36
sRW, sPB, sCBK, sF0, sHF, sR, sTAG, sA, sWP, sDB = 3, 4, 5, 6, 7, 8, 9, 10, 11, 40
sXO, sRS = 41, 42
sT0, sT1, sT2, sT3, sT4 = 43, 44, 45, 46, 47
sCNT = 49
sXT, sDT = 0, 1

LA, LB, LS = 0, 65536, 131072
L_C1 = LS
L_WT = LS + 16384
L_SCR = LS + 24576
L_CS, L_ST, L_CNT, L_W256, L_DUM = L_SCR, L_SCR + 1024, L_SCR + 3072, L_SCR + 4096, L_SCR + 6144
XSLOT = [LB, LB + 16384, LB + 32768, LB + 49152, LA, LA + 16384, LA + 32768, LA + 49152]

vLANE, vL16, vC, vQ, vTAG, vCNT = 1, 2, 3, 4, 5, 25
vGO, vR0, vR1, vYW, vZB = 0, 22, 23, 21, 124
C_WA2, C_CSA, C_WB1, C_WB2, C_CSB, C_ST, C_WT, C_F, C_E1, C_L1, C_GY, C_FA, C_FB, C_HB = 0, 4, 8, 12, 16, 20, 24, 28, 32, 36, 40, 44, 48, 52


def srd(n):
    return "s[%d:%d]" % (n, n + 3)


def gen():
    k = K(NAME)
    e = k.e
    tail = []
    FS, ENC = P("FS", 0), P("ENC", 0)
    _stamp = k.stamp

    def stamp_n(i, real=False):
        if ENC:
            if i == 1 or i == ENC:
                _stamp(i, True)
            return
        if FS and 2 <= i <= 13:
            return
        _stamp(i, real)
    k.stamp = stamp_n

    def fs(mode, i):
        if FS == mode:
            _stamp(i)

    side = deque()
    sch = {"gap": 3, "n": 0, "lds": deque()}

    def mfma(d, a, b, c=None):
        e("v_mfma_f32_16x16x32_bf16 %s, %s, %s, %s" % (d, a, b, c if c is not None else d))

    def mf(d, a, b, c=None):
        mfma(d, a, b, c)
        sch["n"] += 1
        for _ in range(P("NL", 1)):
            if sch["lds"]:
                sch["lds"].popleft()()
        if side and sch["n"] % sch["gap"] == 0:
            side.popleft()()

    def flush_lds():
        while sch["lds"]:
            sch["lds"].popleft()()

    def flush_side():
        flush_lds()
        while side:
            side.popleft()()

    def run(items):
        for f in items:
            f()

    def bf16_round(v):
        e("v_cvt_pk_bf16_f32 v%d, v%d, v%d" % (v, v, v))
        e("v_lshlrev_b32 v%d, 16, v%d" % (v, v))

    def publish_lines(soff):
        return ["    s_mov_b64 exec, 1",
                "    buffer_store_dword v%d, off, %s, %s sc1" % (vTAG, srd(SWS), soff),
                "    s_mov_b64 exec, -1"]

    def publish(soff):
        k.lines.extend(publish_lines(soff))
        k.vm.issue("flag")

    pollno = [0]

    def poll_ld(vaddr, soff, vt):
        return "buffer_load_dword v%d, v%d, %s, %s offen sc1" % (vt, vaddr, srd(SWS), soff)

    def poll_issue(tag, vaddr, soff, vt):
        e(poll_ld(vaddr, soff, vt))
        k.vm.issue(tag)

    def poll_check(tag, vaddr, soff, vt, pre=(), slp=None):
        n = pollno[0]
        pollno[0] += 1
        k.wait_vm(tag)
        e("v_cmp_ne_u32 vcc, v%d, v%d" % (vt, vTAG))
        e("s_cmp_lg_u64 vcc, 0")
        e("s_cbranch_scc1 L_slow%d" % n)
        k.lab("L_back%d" % n)
        tail.append("L_slow%d:" % n)
        tail.extend(pre)
        tail.extend(["    s_mov_b32 s%d, 0" % sCNT,
                     "L_spin%d:" % n,
                     "    s_sleep %d" % (P("SLP", 8) if slp is None else slp),
                     "    s_mov_b64 exec, vcc",
                     "    " + poll_ld(vaddr, soff, vt),
                     "    s_mov_b64 exec, -1",
                     "    s_waitcnt vmcnt(0)",
                     "    v_cmp_ne_u32 vcc, v%d, v%d" % (vt, vTAG),
                     "    s_cmp_lg_u64 vcc, 0",
                     "    s_cbranch_scc0 L_back%d" % n,
                     "    s_add_u32 s%d, s%d, 1" % (sCNT, sCNT),
                     "    s_cmp_lt_u32 s%d, 0x40000" % sCNT,
                     "    s_cbranch_scc1 L_spin%d" % n,
                     "    s_branch L_back%d" % n])

    gbn = [0]

    def gwait_lines(off, target):
        n = gbn[0]
        gbn[0] += 1
        chk = ["    ds_read_b32 v19, v%d offset:%d" % (vCNT, off),
               "    s_waitcnt lgkmcnt(0)",
               "    v_readfirstlane_b32 s%d, v19" % sT0,
               "    s_cmp_lt_u32 s%d, %s" % (sT0, target)]
        tail.append("L_gs%d:" % n)
        tail.append("    s_mov_b32 s%d, 0x400000" % sCNT)
        tail.append("L_gb%d:" % n)
        tail.append("    s_sub_u32 s%d, s%d, 1" % (sCNT, sCNT))
        tail.append("    s_cbranch_scc1 L_gx%d" % n)
        tail.append("    s_sleep %d" % (4 if off == C_WT else 1))
        tail.extend(chk)
        tail.append("    s_cbranch_scc1 L_gb%d" % n)
        tail.append("    s_branch L_gx%d" % n)
        return chk + ["    s_cbranch_scc1 L_gs%d" % n, "L_gx%d:" % n]

    def garrive_lines(off):
        return ["    v_mov_b32 v19, 1",
                "    s_mov_b64 exec, 1",
                "    ds_add_u32 v%d, v19 offset:%d" % (vCNT, off),
                "    s_mov_b64 exec, -1"]

    def garrive(off):
        k.lines.extend(garrive_lines(off))
        k.lg.issue("arr")

    def gwait(off, target="4"):
        k.lines.extend(gwait_lines(off, target))
        k.lg.clear()

    def gpeek(off, vt):
        e("ds_read_b32 v%d, v%d offset:%d" % (vt, vCNT, off))
        k.lg.issue(("pk", off))

    def gcheck(off, vt):
        n = gbn[0]
        slow = gwait_lines(off, "4")
        k.wait_lg(("pk", off))
        e("v_readfirstlane_b32 s%d, v%d" % (sT0, vt))
        e("s_cmp_lt_u32 s%d, 4" % sT0)
        e("s_cbranch_scc1 L_gs%d" % n)
        k.lab("L_gx%d" % n)

    def flag_voff(vv, n):
        e("v_min_u32 v19, %d, v%d" % (n, vLANE))
        e("v_lshrrev_b32 v%d, 2, v19" % vv)
        e("v_lshlrev_b32 v%d, 7, v%d" % (vv, vv))
        e("v_and_b32 v19, 3, v19")
        e("v_lshl_add_u32 v%d, v19, 2, v%d" % (vv, vv))

    def xread_addr(v0_):
        e("v_lshrrev_b32 v19, 1, v%d" % vC)
        e("v_xor_b32 v19, v19, v%d" % vQ)
        e("v_lshlrev_b32 v19, 4, v19")
        e("v_lshl_add_u32 v19, v%d, 7, v19" % vC)
        e("s_lshl_b32 s%d, s%d, 12" % (sT0, sRW))
        e("v_add_u32 v%d, s%d, v19" % (v0_, sT0))
        e("v_xor_b32 v%d, 64, v%d" % (v0_ + 1, v0_))
        e("v_add_u32 v%d, 0x%x, v%d" % (v0_ + 2, LB, v0_))
        e("v_add_u32 v%d, 0x%x, v%d" % (v0_ + 3, LB, v0_ + 1))

    def xread(dst, v0_, kk, u, ks, tag):
        hi = XSLOT[kk] >= LB
        e("ds_read_b128 %s, v%d offset:%d" % (dst, v0_ + ks + (2 if hi else 0), XSLOT[kk] % 65536 + u * 2048))
        k.lg.issue(tag)

    def tag_setup():
        e("s_waitcnt lgkmcnt(0)")
        k.lg.clear()
        e("s_add_u32 s%d, s%d, 0x%x" % (sTAG, sTAG, TAGC))
        e("v_mov_b32 v%d, s%d" % (vTAG, sTAG))

    def late_setup(hf):
        e("v_lshrrev_b32 v19, 2, v%d" % vC)
        e("v_lshl_add_u32 v19, v%d, 2, v19" % vQ)
        e("v_bfe_u32 v30, v19, 1, 2")
        e("v_lshlrev_b32 v19, 7, v19")
        e("v_and_b32 v31, 1, v%d" % vC)
        e("v_lshl_add_u32 v19, v31, 3, v19")
        e("v_lshlrev_b32 v30, 1, v30")
        e("v_bfe_u32 v31, v%d, 1, 1" % vC)
        e("v_or_b32 v30, v30, v31")
        e("v_lshl_add_u32 v%d, v30, 4, v19" % vZB)
        e("v_lshrrev_b32 v19, 3, v%d" % vLANE)
        if hf:
            e("v_add_u32 v19, 8, v19")
        e("v_and_b32 v30, 7, v%d" % vLANE)
        e("v_lshlrev_b32 v%d, 15, v19" % vGO)
        e("v_lshl_add_u32 v%d, v30, 4, v%d" % (vGO, vGO))
        e("v_lshlrev_b32 v30, 1, v30")
        e("v_xor_b32 v30, v30, v19")
        e("v_lshlrev_b32 v30, 4, v30")
        e("v_lshl_add_u32 v30, v19, 8, v30")
        e("s_lshl_b32 s%d, s%d, 12" % (sT0, sRW))
        e("v_add_u32 v%d, s%d, v30" % (vR0, sT0))
        e("v_xor_b32 v%d, 16, v%d" % (vR1, vR0))
        e("v_xor_b32 v%d, v%d, v%d" % (vYW, vQ, vC))
        e("v_lshlrev_b32 v%d, 4, v%d" % (vYW, vYW))
        e("v_lshl_add_u32 v%d, v%d, 8, v%d" % (vYW, vC, vYW))
        e("s_lshl_b32 s%d, s%d, 19" % (sXO, sWP))
        e("s_lshl2_add_u32 s%d, s%d, s%d" % (sT0, sA, sRW))
        e("s_lshl_b32 s%d, s%d, 10" % (sT0, sT0))
        e("s_add_u32 s%d, s%d, s%d" % (sXO, sXO, sT0))
        e("s_lshl_b32 s%d, s%d, 7" % (sT0, sDB))
        e("s_add_u32 s%d, s%d, s%d" % (sXO, sXO, sT0))
    XV = 248

    def xe_load():
        e("buffer_load_dwordx4 %s, v%d, %s, s%d offen" % (vr(XV, 4), vGO, srd(SX), sXO))
        k.vm.issue("xe")

    e("s_cmp_ge_u32 s2, 256")
    e("s_cbranch_scc1 L_done")
    k.stamp(0)
    k.stamp(1, real=True)
    e("s_load_dwordx2 s[%d:%d], s[0:1], 0" % (SX, SX + 1))
    e("s_load_dwordx2 s[%d:%d], s[0:1], 32" % (SW1, SW1 + 1))
    e("s_load_dwordx2 s[%d:%d], s[0:1], 64" % (SWS, SWS + 1))
    e("s_load_dwordx2 s[%d:%d], s[0:1], 8" % (SWR, SWR + 1))
    e("s_load_dwordx2 s[%d:%d], s[0:1], 16" % (SWI, SWI + 1))
    e("s_load_dwordx2 s[%d:%d], s[0:1], 40" % (SW2, SW2 + 1))
    e("s_load_dwordx2 s[%d:%d], s[0:1], 48" % (SOUT, SOUT + 1))
    e("v_lshrrev_b32 v19, 6, v0")
    e("s_getpc_b64 s[%d:%d]" % (sT1, sT2))
    k.lab("L_pc")
    e("s_andn2_b32 s%d, s2, 7" % sT0)
    e("v_add_lshl_u32 v20, v19, s%d, 7" % sT0)
    e("v_min_u32 v20, L_end-L_pc-4, v20")
    e("v_mov_b32 v21, s%d" % sT2)
    e("v_add_co_u32 v20, vcc, s%d, v20" % sT1)
    e("v_readfirstlane_b32 s%d, v19" % sHF)
    e("v_and_b32 v%d, 63, v0" % vLANE)
    e("v_addc_co_u32 v21, vcc, 0, v21, vcc")
    e("global_load_dword v247, v[20:21], off")
    k.vm.issue("touch")
    for s_, nb in ((SX, X_BYTES), (SWR, W_BYTES), (SWI, W_BYTES), (SW1, W1_BYTES), (SW2, W1_BYTES), (SOUT, X_BYTES), (SWS, WS_BYTES)):
        e("s_mov_b32 s%d, 0x%x" % (s_ + 2, nb))
        e("s_mov_b32 s%d, 0x00020000" % (s_ + 3))
    e("v_and_b32 v%d, 15, v0" % vC)
    e("v_bfe_u32 v%d, v0, 4, 2" % vQ)
    e("v_lshlrev_b32 v%d, 4, v%d" % (vL16, vLANE))
    e("v_mov_b32 v%d, 0x%x" % (vCNT, L_CNT))
    e("s_and_b32 s%d, s2, 7" % sA)
    e("s_lshr_b32 s%d, s2, 6" % sWP)
    e("s_bfe_u32 s%d, s2, 0x30003" % sDB)
    e("s_and_b32 s%d, s%d, 3" % (sRW, sHF))
    e("s_lshr_b32 s%d, s%d, 1" % (sPB, sA))
    e("s_lshl2_add_u32 s%d, s%d, s%d" % (sPB, sPB, sWP))
    e("s_and_b32 s%d, s%d, 1" % (sT0, sA))
    e("s_lshl3_add_u32 s%d, s%d, s%d" % (sCBK, sT0, sDB))
    e("s_lshl1_add_u32 s%d, s%d, s%d" % (sR, sWP, sDB))
    if P("ROT", 44) == 44:
        e("s_add_u32 s%d, s%d, s%d" % (sR, sWP, sDB))
        e("s_and_b32 s%d, s%d, 1" % (sR, sR))
        e("s_lshl_b32 s%d, s%d, 2" % (sR, sR))
    elif P("ROT", 44) == 66:
        e("s_add_u32 s%d, s%d, s%d" % (sR, sWP, sDB))
        e("s_and_b32 s%d, s%d, 3" % (sR, sR))
        e("s_lshl_b32 s%d, s%d, 1" % (sR, sR))
    else:
        e("s_and_b32 s%d, s%d, %d" % (sR, sR, P("ROT", 44)))
    e("s_lshl2_add_u32 s%d, s%d, s%d" % (sRS, sPB, sRW))
    e("s_lshr_b32 s%d, s%d, 1" % (sA, sPB))
    e("s_and_b32 s%d, s%d, 1" % (sT3, sPB))
    e("s_lshl1_add_u32 s%d, s%d, s%d" % (sWP, sT3, sT0))
    e("s_lshr_b32 s%d, s%d, 2" % (sHF, sHF))
    e("s_cbranch_scc1 L_fft")
    q_vm = list(k.vm.q)

    sXB, sM4, sM2, sHS, sFH, sHB, sFHC, sW2B = 48, 57, 58, 59, 60, 61, 62, 63
    TV = [50, 51, 52, 53, 54, 55, 56]
    sRSW, sCG, sRB = sPB, sHF, sCBK
    e("s_lshl_b32 s%d, s%d, 20" % (sXB, sT3))
    e("s_lshl2_add_u32 s%d, s%d, s%d" % (sT1, sA, sRW))
    e("s_lshl_b32 s%d, s%d, 10" % (sT1, sT1))
    e("s_add_u32 s%d, s%d, s%d" % (sXB, sXB, sT1))
    e("v_lshrrev_b32 v10, 3, v%d" % vLANE)
    e("v_and_b32 v12, 7, v%d" % vLANE)
    e("v_xor_b32 v6, v12, v%d" % vQ)
    e("v_lshlrev_b32 v6, 4, v6")
    e("v_lshl_add_u32 v6, v10, 15, v6")
    e("v_xor_b32 v7, 64, v6")
    e("v_add_u32 v7, 0x40000, v7")
    e("s_lshl_b32 s%d, s%d, 12" % (sM4, sRW))
    e("s_lshl_b32 s%d, s%d, 11" % (sM2, sRW))
    e("s_sub_u32 s%d, s%d, s%d" % (sF0, sCBK, sT0))
    e("s_lshl_b32 s%d, s%d, 8" % (sF0, sF0))
    e("s_cmp_eq_u32 s%d, 7" % sDB)
    e("s_cselect_b32 s%d, 0x%x, s%d" % (sF0, 0x08000000, sF0))
    e("s_waitcnt lgkmcnt(0)")
    e("s_load_dword s%d, s[%d:%d], 0x%x" % (sTAG, SWS, SWS + 1, EPOCH_OFF))

    def xdma(kk):
        def item(ee):
            def f():
                e("s_add_u32 m0, s%d, %d" % (sM4, XSLOT[kk] + ee * 1024))
                if ee == 0:
                    e("s_add_u32 s%d, s%d, %d" % (sXT, sR, kk))
                    e("s_and_b32 s%d, s%d, 7" % (sXT, sXT))
                    e("s_lshl_b32 s%d, s%d, 7" % (sXT, sXT))
                    e("s_add_u32 s%d, s%d, s%d" % (sXT, sXT, sXB))
                elif ee == 2:
                    e("s_add_u32 s%d, s%d, 0x80000" % (sXT, sXT))
                else:
                    k.nop(1)
                e("buffer_load_dwordx4 v%d, %s, s%d offen lds" % (6 + (ee & 1), srd(SX), sXT))
                k.vm.issue(("X", kk))
            return f
        return [item(ee) for ee in range(4)]

    def w1dma(reg, kk):
        off = " offset:128" if reg else ""
        lb = (LA - 128 if reg else LB) + kk * 8192

        def f0():
            e("s_add_u32 s%d, s%d, %d" % (sDT, sR, kk))
            e("s_and_b32 s%d, s%d, 7" % (sDT, sDT))
            e("s_mul_i32 s%d, s%d, %d" % (sDT, sDT, 64 * 3584))
            e("s_add_u32 m0, s%d, %d" % (sM2, lb + 128))
            e("s_add_u32 s%d, s%d, s%d" % (sDT, sDT, sF0))
            if reg:
                e("s_add_u32 s%d, s%d, 128" % (sDT, sDT))
            else:
                e("s_add_u32 m0, s%d, %d" % (sM2, lb))
                k.nop(1)
            e("buffer_load_dwordx4 v8, %s, s%d offen lds" % (srd(SW1), sDT))
            k.vm.issue(("W1", reg, kk))

        def f1():
            e("s_add_u32 m0, s%d, %d" % (sM2, (LA if reg else LB) + kk * 8192 + 1024))
            k.nop(1)
            e("buffer_load_dwordx4 v9, %s, s%d offen lds" % (srd(SW1), sDT))
            k.vm.issue(("W1", reg, kk))
        return [f0, f1]

    def mtouch(sr_):
        e("s_lshl2_add_u32 s%d, s2, s%d" % (sT0, sRW))
        e("s_mul_i32 s%d, s%d, %d" % (sT0, sT0, 14 * 128))
        e("v_lshlrev_b32 v19, 7, v%d" % vLANE)
        e("s_mov_b32 m0, 0x%x" % L_DUM)
        e("s_mov_b64 exec, 0x3fff")
        e("buffer_load_dword v19, %s, s%d offen lds" % (srd(sr_), sT0))
        k.vm.issue("touch")
        e("s_mov_b64 exec, -1")
    T1P, T2P = P("T1P", 1), P("T2P", 4)

    def touches(pos):
        if T1P == pos:
            mtouch(SW1)
        if T2P == pos:
            mtouch(SW2)
    run(xdma(0))
    touches(0)
    run(xdma(1))
    touches(1)
    k.stamp(2)
    e("s_lshl_b32 s%d, s%d, 4" % (sT0, sRW))
    e("v_add_u32 v11, s%d, v10" % sT0)
    e("v_mul_u32_u24 v11, 3584, v11")
    e("v_and_b32 v13, 1, v%d" % vQ)
    e("v_lshlrev_b32 v13, 1, v13")
    e("v_xor_b32 v13, v13, v12")
    e("v_lshl_add_u32 v8, v13, 4, v11")
    e("v_xor_b32 v13, 4, v13")
    e("v_lshl_add_u32 v9, v13, 4, v11")
    e("v_add_u32 v9, %d, v9" % (8 * 3584))
    vWS, vWW, vWR, vD2 = 15, 14, 13, 24
    e("v_lshlrev_b32 v15, 13, v10")
    e("v_lshl_add_u32 v15, v12, 4, v15")
    e("s_lshl_b32 s%d, s%d, 1" % (sT0, sRW))
    e("v_xor_b32 v14, s%d, v12" % sT0)
    e("v_lshlrev_b32 v14, 4, v14")
    e("v_lshl_add_u32 v14, v%d, 7, v14" % vLANE)
    e("v_add_u32 v14, 0x%x, v14" % L_WT)
    e("v_xor_b32 v13, v10, v12")
    e("v_lshlrev_b32 v13, 4, v13")
    e("v_lshl_add_u32 v13, v10, 7, v13")
    e("s_add_u32 s%d, s%d, 0x%x" % (sT0, sM2, L_WT))
    e("v_add_u32 v13, s%d, v13" % sT0)
    e("v_lshlrev_b32 v19, 1, v%d" % vQ)
    e("v_xor_b32 v19, v19, v12")
    e("v_lshlrev_b32 v19, 4, v19")
    e("v_lshl_add_u32 v%d, v10, 10, v19" % vD2)
    xread_addr(26)
    e("v_mov_b32 v19, 0")
    e("v_lshl_add_u32 v30, v%d, 2, v%d" % (vC, vCNT))
    e("ds_write_b32 v30, v19")
    XF, AF, ACC, HO, CS, ONES = 128, 32, 64, 32, 112, 116
    TRB = [16, 17, 18, 20]
    e("v_lshrrev_b32 v19, 2, v%d" % vC)
    e("v_lshl_add_u32 v30, v%d, 3, v19" % vQ)
    e("v_lshlrev_b32 v30, 7, v30")
    e("v_and_b32 v31, 1, v%d" % vC)
    e("v_lshl_add_u32 v30, v31, 3, v30")
    e("v_bfe_u32 v19, v%d, 3, 1" % vC)
    e("v_and_b32 v31, 1, v%d" % vQ)
    e("v_lshl_or_b32 v19, v31, 1, v19")
    e("v_lshlrev_b32 v19, 1, v19")
    e("v_bfe_u32 v31, v%d, 1, 1" % vC)
    e("v_or_b32 v19, v19, v31")
    e("v_lshl_add_u32 v30, v19, 4, v30")
    e("v_add_u32 v30, 0x%x, v30" % LB)
    for l in range(4):
        e("v_xor_b32 v%d, %d, v30" % (TRB[l], 32 * l))
    vCSA, RN, C1 = 99, 120, [108, 112, 116, 124]
    TR2 = [100, 101, 102, 103]
    HV = [104, 105, 106, 107]
    vFH = 106
    def setup_a():
        e("v_lshlrev_b32 v%d, 4, v%d" % (vCSA, vQ))
        e("v_add_u32 v%d, 0x%x, v%d" % (vCSA, L_CS, vCSA))
        e("s_lshl_b32 s%d, s%d, 9" % (sT0, sRW))
        e("s_add_u32 s%d, s%d, 0x%x" % (sT0, sT0, L_ST))
        e("v_lshl_add_u32 v96, v%d, 2, s%d" % (vC, sT0))
        e("s_mul_i32 s%d, s%d, %d" % (sHB, sRS, 2 * 56 * 1024))
        e("s_add_u32 s%d, s%d, 0x%x" % (sHB, sHB, H_OFF))
        e("s_lshl4_add_u32 s%d, s%d, s%d" % (sHS, sF0, sHB))
        e("s_and_b32 s%d, s2, 1" % sT2)
        e("s_lshl1_add_u32 s%d, s%d, s%d" % (sFHC, sPB, sT2))
        e("s_lshl2_add_u32 s%d, s%d, s%d" % (sFHC, sFHC, sRW))
        e("s_lshl_b32 s%d, s%d, 7" % (sFHC, sFHC))
        e("s_add_u32 s%d, s%d, 0x%x" % (sFHC, sFHC, FH_OFF))
        e("s_lshl2_add_u32 s%d, s%d, s%d" % (sFH, sDB, sFHC))
        e("s_mul_i32 s%d, s%d, 7" % (sT0, sT2))
        e("s_lshr_b32 s%d, s2, 6" % sT1)
        e("s_lshl1_add_u32 s%d, s%d, s%d" % (sT1, sT1, sDB))
        e("s_and_b32 s%d, s%d, 7" % (sT1, sT1))
        e("s_cmp_eq_u32 s%d, 7" % sT1)
        e("s_cselect_b32 s%d, 0, s%d" % (sT1, sT1))
        for i in range(7):
            e("s_add_u32 s%d, s%d, s%d" % (TV[i], sT1, sT0))
            if i < 6:
                e("s_add_u32 s%d, s%d, 1" % (sT1, sT1))
                e("s_cmp_eq_u32 s%d, 7" % sT1)
                e("s_cselect_b32 s%d, 0, s%d" % (sT1, sT1))
        e("s_lshl_b32 s%d, s%d, 7" % (sW2B, sDB))
        e("s_lshl_b32 s%d, s%d, 14" % (sT0, sRW))
        e("s_add_u32 s%d, s%d, s%d" % (sW2B, sW2B, sT0))
        e("s_mul_i32 s%d, s%d, %d" % (sT0, sT2, 56 * 1024))
        e("v_add_u32 v%d, s%d, v%d" % (HV[0], sT0, vL16))
        e("s_sub_u32 s%d, %d, s%d" % (sT0, 56 * 1024, sT0))
        e("v_add_u32 v%d, s%d, v%d" % (HV[1], sT0, vL16))
        e("v_min_u32 v19, 6, v%d" % vLANE)
        e("v_lshlrev_b32 v%d, 2, v19" % vFH)
        late_setup(0)
        e("v_add_u32 v30, 0x%x, v%d" % (LB, vZB))
        for l in range(4):
            e("v_xor_b32 v%d, %d, v30" % (TR2[l], 32 * l))

    setup_a()
    run(xdma(2))
    run(xdma(3))
    touches(2)
    tag_setup()
    k.stamp(3)

    def X(u, T):
        return vr(XF + (T * 2 + u) * 4, 4)

    WR16 = 64

    def wloads():
        items = []

        def head():
            e("s_lshr_b32 s%d, s2, 5" % sRSW)
            e("s_and_b32 s%d, s2, 7" % sT1)
            e("s_lshl3_add_u32 s%d, s%d, s%d" % (sRSW, sT1, sRSW))
            e("s_and_b32 s%d, s%d, 3" % (sCG, sDB))
            e("s_lshr_b32 s%d, s%d, 4" % (sT1, sRSW))
            e("s_lshl_b32 s%d, s%d, 4" % (sT1, sT1))
            e("s_lshl1_add_u32 s%d, s%d, s%d" % (sT1, sRW, sT1))
            e("s_and_b32 s%d, s%d, 1" % (sT2, sRSW))
            e("s_lshl3_add_u32 s%d, s%d, s%d" % (sT1, sT2, sT1))
            e("s_bfe_u32 s%d, s%d, 0x30001" % (sT2, sRSW))
            e("s_lshl_b32 s%d, s%d, 8" % (sT2, sT2))
            e("s_add_u32 s%d, s%d, s%d" % (sT1, sT1, sT2))
            e("s_mul_i32 s%d, s%d, 514" % (sT1, sT1))
            e("s_lshl_b32 s%d, s%d, 7" % (sT4, sCG))
            e("s_add_u32 s%d, s%d, s%d" % (sT4, sT4, sT1))
            e("v_lshlrev_b32 v11, 1, v%d" % vLANE)
            e("v_and_b32 v19, 3, v%d" % vLANE)
            e("v_mul_u32_u24 v19, 32896, v19")
            e("v_bfe_u32 v30, v%d, 2, 1" % vLANE)
            e("v_mul_u32_u24 v30, 514, v30")
            e("v_add_u32 v19, v19, v30")
            e("s_cmp_eq_u32 s%d, 3" % sCG)
            e("s_cselect_b32 s%d, s%d, 0x%x" % (sT1, sT1, OOB))
            e("buffer_load_ushort v120, v19, %s, s%d offen offset:512" % (srd(SWR), sT1))
            k.vm.issue("wg")
            e("buffer_load_ushort v121, v19, %s, s%d offen offset:512" % (srd(SWI), sT1))
            k.vm.issue("wg")
        items.append(head)
        nt = " nt" if P("NTW", 1) else ""
        for r in range(4):
            def f(r=r):
                if r:
                    e("s_add_u32 s%d, s%d, 32896" % (sT4, sT4))
                for cb in range(2):
                    for arr, sr_ in ((0, SWR), (1, SWI)):
                        e("buffer_load_ushort v%d, v11, %s, s%d offen offset:%d%s" % (WR16 + 8 * cb + 4 * arr + r, srd(sr_), sT4, 514 * cb, nt))
                        k.vm.issue("wg")
            items.append(f)
        return items

    def wt_a():
        k.wait_vm("wg")
        for cb in range(2):
            for r in range(4):
                e("v_lshl_or_b32 v%d, v%d, 16, v%d" % (WR16 + 8 * cb + r, WR16 + 8 * cb + 4 + r, WR16 + 8 * cb + r))
        e("v_lshl_or_b32 v120, v121, 16, v120")
        e("ds_write_b128 v%d, %s" % (vWW, vr(WR16, 4)))
        k.lg.issue("wtw")
        e("v_xor_b32 v19, 16, v%d" % vWW)
        e("ds_write_b128 v19, %s" % vr(WR16 + 8, 4))
        k.lg.issue("wtw")
        e("s_lshl_b32 s%d, s%d, 5" % (sT0, sRW))
        e("s_add_u32 s%d, s%d, 0x%x" % (sT0, sT0, L_W256))
        e("v_lshl_add_u32 v19, v%d, 2, s%d" % (vLANE, sT0))
        e("s_mov_b64 exec, 0xff")
        e("ds_write_b32 v19, v120")
        k.lg.issue("wtw")
        e("s_mov_b64 exec, -1")

    def wt_b():
        for h in range(2):
            e("ds_read_b128 %s, v%d offset:%d" % (vr(WR16 + 4 * h, 4), vWR, 1024 * h))
            k.lg.issue("wtr")
        e("v_add_u32 v19, 0x%x, v%d" % (L_W256, vL16))
        e("ds_read_b128 %s, v19" % vr(WR16 + 8, 4))
        k.lg.issue("wtr")

    def wt_c():
        k.wait_lg("wtr")
        e("s_lshl2_add_u32 s%d, s%d, s%d" % (sT2, sCG, sRW))
        e("s_lshl_b32 s%d, s%d, 17" % (sT0, sT2))
        e("s_lshl_b32 s%d, s%d, 7" % (sT1, sRSW))
        e("s_add_u32 s%d, s%d, s%d" % (sT0, sT0, sT1))
        e("s_add_u32 s%d, s%d, 0x%x" % (sT0, sT0, WT_OFF))
        e("buffer_store_dwordx4 %s, v%d, %s, s%d offen sc1" % (vr(WR16, 4), vWS, srd(SWS), sT0))
        k.vm.issue("wtst")
        e("s_add_u32 s%d, s%d, 0x10000" % (sT0, sT0))
        e("buffer_store_dwordx4 %s, v%d, %s, s%d offen sc1" % (vr(WR16 + 4, 4), vWS, srd(SWS), sT0))
        k.vm.issue("wtst")
        e("s_add_u32 s%d, s%d, 0x%x" % (sT1, sT1, WT_OFF + 256 * 8192))
        e("s_cmp_eq_u32 s%d, 12" % sT2)
        e("s_cselect_b32 s%d, s%d, 0x%x" % (sT1, sT1, OOB))
        e("s_mov_b64 exec, 0xff")
        e("buffer_store_dwordx4 %s, v%d, %s, s%d offen sc1" % (vr(WR16 + 8, 4), vL16, srd(SWS), sT1))
        k.vm.issue("wtst")
        e("s_mov_b64 exec, -1")

    def wt_d():
        e("s_lshl2_add_u32 s%d, s%d, s%d" % (sT2, sCG, sRW))
        e("s_lshr_b32 s%d, s%d, 2" % (sT1, sRSW))
        e("s_lshl4_add_u32 s%d, s%d, s%d" % (sT0, sT2, sT1))
        e("s_lshl_b32 s%d, s%d, 7" % (sT0, sT0))
        e("s_and_b32 s%d, s%d, 3" % (sT1, sRSW))
        e("s_lshl2_add_u32 s%d, s%d, s%d" % (sT0, sT1, sT0))
        e("s_add_u32 s%d, s%d, 0x%x" % (sT0, sT0, FW_OFF))
        e("s_add_u32 s%d, s%d, 0x%x" % (sT1, sT0, 4 * 2048))
        e("s_cmp_eq_u32 s%d, 12" % sT2)
        e("s_cselect_b32 s%d, s%d, 0x%x" % (sT1, sT1, OOB))
        k.wait_vm("wtst")
        publish("s%d" % sT0)
        publish("s%d" % sT1)
        e("s_mov_b32 s%d, 0" % sHF)

    def xstage(s_):
        for kk in (2 * s_, 2 * s_ + 1):
            for u in range(2):
                for ks in range(2):
                    xread(X(u, 2 * kk + ks), 26, kk, u, ks, ("XR", s_))
    WPOS = P("WPOS", -1)
    if WPOS < 0:
        run(wloads())
    for s_ in range(4):
        k.wait_vm(("X", 2 * s_ + 1))
        if s_:
            k.wait_lg([("XR", s_ - 1)] + (["wtw"] if s_ == WPOS + 3 else []))
        e("s_barrier")
        fs(6, 2 + s_)
        xstage(s_)
        if s_ == WPOS + 3:
            wt_b()
        if s_ < 2:
            run(xdma(4 + 2 * s_) + xdma(5 + 2 * s_))
        WAS = [int(x_) for x_ in os.environ.get("WAS", "0,0,4,8").split(",")]
        for kk in range(WAS[s_ - 1] if s_ else 0, WAS[s_]):
            run(w1dma(0, kk))
        if s_ == WPOS:
            run(wloads())
        touches(3 + s_)
        if s_ == WPOS + 2:
            wt_a()
        if s_ == WPOS + 3:
            wt_c()
    k.wait_vm([("W1", 0, kk) for kk in range(4)])
    k.wait_lg(("XR", 3))
    e("s_barrier")
    k.stamp(4)
    fs(6, 6)


    def rdA(reg, T):
        items = []
        for l in range(4):
            for hh in range(2):
                def f(l=l, hh=hh):
                    e("ds_read_b64_tr_b16 %s, v%d offset:%d" % (vr(AF + (T & 1) * 16 + 4 * l + 2 * hh, 2), TRB[l], T * 4096 + hh * 512))
                    k.lg.issue(("A", reg, T))
                items.append(f)
        return items

    WLE = P("WLE", 4)
    CFB = P("CFB", 10) if WLE else 14

    def gpass(reg, hooks, mid):
        fs(8 + reg, 2)
        run(rdA(reg, 0))
        for T in range(16):
            k.wait_lg(("A", reg, T))
            if T == 7:
                gcheck(mid, 107)
            if T == 6:
                gpeek(mid, 107)
            if T == (CFB if reg else 14):
                gpeek(C_FB if reg else C_FA, 107)
            if T == CFB and reg and WLE:
                gpeek(C_HB, 97)
            if T == 15 and reg == 0:
                gpeek(C_WB1, 97)
            if T == 0 and reg == 1:
                gpeek(C_CSA, 98)
            if T + 1 < 16:
                sch["lds"].extend(rdA(reg, T + 1))
            for l in range(4):
                a = vr(AF + (T & 1) * 16 + 4 * l, 4)
                for u in range(2):
                    c = vr(ACC + (l * 2 + u) * 4, 4)
                    mf(c, a, X(u, T), c if T else "0")
            flush_lds()
            run(hooks.get(T, []))
            if T < 11:
                fs(8 + reg, 3 + T)
        flush_side()

    def c1_fetch(reg):
        def f():
            gcheck(C_FB if reg else C_FA, 107)
            if reg == 0:
                for u in range(2):
                    e("ds_read2_b32 %s, v96 offset0:%d offset1:%d" % (vr(RN + 2 * u, 2), 32 + 16 * u, 16 * u))
                    k.lg.issue(("C1", reg))
            for l in range(4):
                e("ds_read_b128 %s, v%d offset:%d" % (vr(C1[l], 4), vCSA, 256 * reg + 64 * l))
                k.lg.issue(("C1", reg))
        return f

    def h_out(reg, cw, tag):
        garrive(cw)
        e("s_add_u32 s%d, s%d, %d" % (sT2, sHS, 2048 * reg))
        e("s_add_u32 s%d, s%d, %d" % (sT3, sHS, 2048 * reg + 56 * 1024))
        k.wait_lg(("C1", reg))
        for pr in range(2):
            for u in range(2):
                o = HO + (pr * 2 + u) * 4
                for l in (2 * pr, 2 * pr + 1):
                    a = ACC + (l * 2 + u) * 4
                    for r in (0, 2):
                        e("v_pk_fma_f32 %s, %s, %s, %s op_sel_hi:[1,0,1]" % (vr(a + r, 2), vr(C1[l] + r, 2), vr(RN + 2 * u, 2), vr(a + r, 2)))
                for l in (2 * pr, 2 * pr + 1):
                    a = ACC + (l * 2 + u) * 4
                    e("v_cvt_pk_bf16_f32 v%d, v%d, v%d" % (o + (l & 1) * 2, a, a + 1))
                    e("v_cvt_pk_bf16_f32 v%d, v%d, v%d" % (o + (l & 1) * 2 + 1, a + 2, a + 3))
                for i in range(4):
                    e("v_pk_max_i16 v%d, v%d, 0" % (o + i, o + i))
                HS = P("HS", 0)
                if HS != 1:
                    e("buffer_store_dwordx4 %s, v%d, %s, s%d offen offset:%d sc1" % (vr(o, 4), vL16, srd(SWS), sT2 + u, 1024 * pr))
                    k.vm.issue(tag)
                if HS:
                    e("buffer_store_dwordx4 %s, v%d, %s, s%d offen offset:%d" % (vr(o, 4), vL16, srd(SWS), sT2 + u, 1024 * pr))
                    k.vm.issue(tag)

    def land(reg, lo, hi, cw):
        def f():
            k.wait_vm([("W1", reg, kk) for kk in range(lo, hi)])
            garrive(cw)
        return f

    sch["gap"] = P("GAPA", 4)
    for kk in range(8):
        side.extend(w1dma(1, kk))
    ha = {3: [land(0, 4, 8, C_WA2)], 11: [land(1, 0, 4, C_WB1)], P("WTD", 2): [wt_d], 13: [land(1, 4, 8, C_WB2)], 14: [c1_fetch(0)]}
    def w2l2(part, nparts):
        def f():
            n = 56 // nparts
            e("s_lshr_b32 s%d, s2, 3" % sT0)
            e("s_lshl2_add_u32 s%d, s%d, s%d" % (sT0, sT0, sRW))
            e("s_and_b32 s%d, s2, 1" % sT1)
            e("s_lshl_b32 s%d, s%d, 7" % (sT1, sT1))
            e("s_add_u32 s%d, s%d, s%d" % (sT0, sT0, sT1))
            e("s_mul_i32 s%d, s%d, %d" % (sT0, sT0, 56 * 128))
            e("v_lshlrev_b32 v19, 7, v%d" % vLANE)
            e("s_mov_b32 m0, 0x%x" % (L_DUM - part * n * 128 % 4096 * 0))
            m = ((1 << n) - 1) << (part * n)
            e("s_mov_b32 exec_lo, 0x%x" % (m & 0xffffffff))
            e("s_mov_b32 exec_hi, 0x%x" % (m >> 32))
            e("buffer_load_dword v19, %s, s%d offen lds" % (srd(SW2), sT0))
            k.vm.issue("touch")
            e("s_mov_b64 exec, -1")
        return f
    W2A = [int(x_) for x_ in os.environ.get("W2A", "").split(",") if x_]
    for i_, T_ in enumerate(W2A):
        ha.setdefault(T_, []).append(w2l2(i_, len(W2A)))
    gpass(0, ha, C_WA2)
    k.stamp(5)
    h_out(0, C_CSA, "ha")
    k.stamp(6)

    for l in range(4):
        e("v_subrev_u32 v%d, 0x%x, v%d" % (TRB[l], LB, TRB[l]))
    gcheck(C_WB1, 97)

    def w2_dma(late, j):
        lb = (LA if late else LB) + j * 8192

        def f0():
            e("s_add_u32 m0, s%d, %d" % (sM2, lb))
            e("s_lshl_b32 s%d, s%d, 17" % (sDT, TV[j]))
            e("s_add_u32 s%d, s%d, s%d" % (sDT, sDT, sW2B))
            if late:
                e("s_add_u32 s%d, s%d, 0x10000" % (sDT, sDT))
            e("buffer_load_dwordx4 v%d, %s, s%d offen lds" % (vD2, srd(SW2), sDT))
            k.vm.issue(("W2", late))

        def f1():
            e("s_add_u32 m0, s%d, %d" % (sM2, lb + 1024))
            e("s_add_u32 s%d, s%d, 8192" % (sDT, sDT))
            e("buffer_load_dwordx4 v%d, %s, s%d offen lds" % (vD2, srd(SW2), sDT))
            k.vm.issue(("W2", late))
        return [f0, f1]

    def rdW(n):
        items = []
        for l in range(4):
            for hh in range(2):
                def f(l=l, hh=hh):
                    e("ds_read_b64_tr_b16 %s, v%d offset:%d" % (vr(AF + (n & 1) * 16 + 4 * l + 2 * hh, 2), TR2[l], (n % 14) * 4096 + hh * 2048))
                    k.lg.issue(("W2R", n))
                items.append(f)
        return items

    def hload(n):
        late, m = n // 14, n % 14

        def item(u):
            def f():
                if u == 0 and m % 2 == 0:
                    e("s_lshl_b32 s%d, s%d, 12" % (sXT, TV[m // 2]))
                    e("s_add_u32 s%d, s%d, s%d" % (sXT, sXT, sHB))
                e("buffer_load_dwordx4 %s, v%d, %s, s%d offen offset:%d sc1" % (X(u, m), HV[u], srd(SWS), sXT, 2048 * late + 1024 * (m & 1)))
                k.vm.issue(("H", n))
            return f
        return [item(0), item(1)]

    def pubHA():
        k.wait_vm("ha")
        publish("s%d" % sFH)
        e("s_add_u32 s%d, s%d, 0x%x" % (sFH, sFH, FHB_D))

    def landW(late, cw):
        def f():
            k.wait_vm(("W2", late))
            garrive(cw)
        return f
    hb = {T: [] for T in range(16)}
    hb[P("W2T0", 0)].append(lambda: gcheck(C_CSA, 98))
    hb[P("W2T0", 0)].append(lambda: [side.extend(w2_dma(0, j)) for j in range(7)])
    hb[CFB].append(c1_fetch(1))
    if WLE:
        hb[8].append(lambda: garrive(C_HB))
        hb[CFB].append(lambda: gcheck(C_HB, 97))
        hb[CFB].append(lambda: [side.extend(w2_dma(1, j)) for j in range(WLE)])
    hb[P("PHA", 3)].append(pubHA)
    HLA = P("HLA", 6)
    HE = P("HE", 17)
    hb[min(HE - 2, P("PPA", 12))].append(lambda: poll_issue("ph", vFH, "s%d" % sFHC, 31))
    if HE < 16:
        def hearly():
            poll_check("ph", vFH, "s%d" % sFHC, 31)
            for n in range(HLA):
                side.extend(hload(n))
            sch["gap"] = 2
        hb[HE].append(hearly)

    def w2touch():
        e("s_lshr_b32 s%d, s2, 6" % sT0)
        e("s_lshl2_add_u32 s%d, s%d, s%d" % (sT0, sT0, sRW))
        e("s_mul_i32 s%d, s%d, 28" % (sT0, sT0))
        e("v_add_u32 v19, s%d, v%d" % (sT0, vLANE))
        e("v_and_b32 v30, 0xffc0, v19")
        e("v_add3_u32 v19, v19, v30, 64")
        e("v_lshlrev_b32 v19, 10, v19")
        e("s_and_b32 s%d, s2, 1" % sT0)
        e("s_mul_i32 s%d, s%d, %d" % (sT0, sT0, 896 * 1024))
        e("s_lshl_b32 s%d, s%d, 7" % (sT1, sDB))
        e("s_add_u32 s%d, s%d, s%d" % (sT0, sT0, sT1))
        e("s_mov_b32 m0, 0x%x" % L_DUM)
        e("s_mov_b64 exec, 0xfffffff")
        e("buffer_load_dword v19, %s, s%d offen lds" % (srd(SW2), sT0))
        k.vm.issue("touch")
        e("s_mov_b64 exec, -1")
    if P("W2L", 99) < 16:
        hb[P("W2L", 99)].append(w2touch)
    hb[P("LE1", 13)].append(landW(0, C_E1))
    sch["gap"] = P("GAPB", 4)
    gpass(1, hb, C_WB2)
    k.stamp(7)
    fs(10, 2)
    if HE == 16:
        poll_check("ph", vFH, "s%d" % sFHC, 31)
        fs(10, 3)
        for n in range(HLA):
            run(hload(n))
    fs(10, 4)
    gpeek(C_E1, 97)
    h_out(1, C_CSB, "hb")
    fs(10, 5)
    if HE == 17:
        poll_check("ph", vFH, "s%d" % sFHC, 31, pre=["    s_waitcnt vmcnt(0)"] + publish_lines("s%d" % sFH))
        for n in range(HLA):
            run(hload(n))
    k.stamp(8)
    gcheck(C_E1, 97)
    run(rdW(0))
    gpeek(C_CSB, 98)
    sch["gap"] = P("GAP3", 2)
    fs(7, 2)
    fs(10, 6)
    LCH = 14 - P("LLA", 5)
    nxt = HLA
    wl = [it for j in range(WLE, 7) for it in w2_dma(1, j)]
    for n in range(28):
        k.wait_lg(("W2R", n))
        if n == LCH:
            poll_check("phb", vFH, "s%d" % sFHC, 31)
        lim = 14 if n < LCH else 28
        cnt = 0
        while nxt < min(lim, n + 1 + HLA) and nxt - 14 < n and cnt < 2:
            side.extend(hload(nxt))
            nxt += 1
            cnt += 1
        if n == 0:
            gcheck(C_CSB, 98)
        if wl:
            side.extend(wl[:2])
            wl = wl[2:]
        k.wait_vm(("H", n))
        if n == P("PHB", 0):
            k.wait_vm("hb")
            publish("s%d" % sFH)
        if n == LCH - P("PPB", 1):
            e("s_add_u32 s%d, s%d, 0x%x" % (sFHC, sFHC, FHB_D))
            poll_issue("phb", vFH, "s%d" % sFHC, 31)
        if n == 10:
            landW(1, C_L1)()
        if n == 12:
            gpeek(C_L1, 107)
        if n == P("ZGO", 17):
            garrive(C_WT)
        if n == 13:
            for l in range(4):
                e("v_subrev_u32 v%d, 0x%x, v%d" % (TR2[l], LB, TR2[l]))
            gcheck(C_L1, 107)
        if n in (20, 21):
            for i in range(4):
                e("v_mov_b32 v%d, v%d" % (128 + 8 * (n - 20) + 2 * i + 1, vTAG))
        if n + 1 < 28:
            sch["lds"].extend(rdW(n + 1))
        for l in range(4):
            a = vr(AF + (n & 1) * 16 + 4 * l, 4)
            for u in range(2):
                c = vr(ACC + (u * 4 + l) * 4, 4)
                mf(c, a, X(u, n % 14), c if n else "0")
        flush_side()
        if n % 3 == 2:
            fs(7, 3 + n // 3)
        if n < 7:
            fs(10, 7 + n)
        if 5 <= n < 17:
            fs(11, n - 3)
        if n == 13:
            k.stamp(9)
    k.stamp(10)
    e("s_lshl2_add_u32 s%d, s2, s%d" % (sT1, sRW))
    e("s_lshl_b32 s%d, s%d, 12" % (sT1, sT1))
    e("s_add_u32 s%d, s%d, 0x%x" % (sT1, sT1, YX_OFF))
    k.nop(1)
    fs(12, 2)
    garrive(C_GY)
    for i in range(4):
        e("v_cvt_pk_bf16_f32 v%d, v%d, v%d" % (128 + 4 * i, ACC + 16 + 4 * i, ACC + 17 + 4 * i))
        e("v_cvt_pk_bf16_f32 v%d, v%d, v%d" % (128 + 4 * i + 2, ACC + 18 + 4 * i, ACC + 19 + 4 * i))
        e("buffer_store_dwordx4 %s, v%d, %s, s%d offen offset:%d sc1" % (vr(128 + 4 * i, 4), vL16, srd(SWS), sT1 + (i >> 2), 1024 * (i & 3)))
        k.vm.issue("yst")
    xe_load()
    e("s_xor_b32 s%d, s%d, 0x4000" % (sT1, sT1))
    e("s_lshl_b32 s%d, s%d, 12" % (sT4, sRW))
    e("v_add_u32 v10, s%d, v%d" % (sT4, vYW))
    for dt in range(1, 4):
        e("v_xor_b32 v%d, %d, v10" % (10 + dt, 64 * dt))
    fs(12, 3)
    gwait(C_GY)
    fs(12, 4)
    if P("YW", 1):
        k.wait_vm("yst")
    fs(12, 5)
    YR = 160
    e("s_mov_b32 s%d, 0" % sCNT)
    k.lab("L_yx")
    for i in range(4):
        e("buffer_load_dwordx4 %s, v%d, %s, s%d offen offset:%d sc1" % (vr(YR + 4 * i, 4), vL16, srd(SWS), sT1 + (i >> 2), 1024 * (i & 3)))
    e("s_waitcnt vmcnt(0)")
    k.vm.clear()
    e("v_min3_u32 v30, v%d, v%d, v%d" % (YR + 1, YR + 3, vTAG))
    e("v_max3_u32 v31, v%d, v%d, v%d" % (YR + 1, YR + 3, vTAG))
    for i in range(1, 4):
        e("v_min3_u32 v30, v%d, v%d, v30" % (YR + 4 * i + 1, YR + 4 * i + 3))
        e("v_max3_u32 v31, v%d, v%d, v31" % (YR + 4 * i + 1, YR + 4 * i + 3))
    e("v_cmp_ne_u32 vcc, v30, v31")
    e("s_cmp_lg_u64 vcc, 0")
    e("s_cbranch_scc1 L_yxs")
    k.lab("L_yxb")
    fs(12, 6)
    tail.extend(["L_yxs:", "    s_add_u32 s%d, s%d, 1" % (sCNT, sCNT), "    s_cmp_lt_u32 s%d, 0x40000" % sCNT,
                 "    s_cbranch_scc0 L_yxb", "    s_sleep 6", "    s_branch L_yx"])
    k.stamp(11)
    e("s_bitcmp1_b32 s2, 0")
    e("s_cselect_b64 vcc, -1, 0")
    e("v_cndmask_b32 v%d, v%d, v%d, vcc" % (RN, RN + 1, RN + 3))
    for i in range(8):
        e("v_and_b32 v%d, 0xffff0000, v%d" % (YR + 2 * i + 1, YR + 2 * i))
        e("v_lshlrev_b32 v%d, 16, v%d" % (YR + 2 * i, YR + 2 * i))
    for i in range(8):
        e("v_pk_add_f32 %s, %s, %s" % (vr(ACC + 2 * i, 2), vr(ACC + 2 * i, 2), vr(YR + 2 * i, 2)))
    for i in range(8):
        e("v_pk_mul_f32 %s, %s, %s op_sel_hi:[1,0]" % (vr(ACC + 2 * i, 2), vr(ACC + 2 * i, 2), vr(RN, 2)))
    for dt in range(4):
        e("ds_write_b128 v%d, %s" % (10 + dt, vr(ACC + 4 * dt, 4)))
    k.lab("L_final")
    main_lines = k.lines

    k.lines = []
    k.vm.q, k.lg.q = list(q_vm), []
    k.lab("L_fft")
    sCC, sPL, sZR, sZI, sSC, sFXC, sGB, sFX = 48, 50, 51, 52, 53, 54, 55, 56
    C64, S64, N64, C32, S32, N32, T1C, T1S, T2C, T2S = 128, 136, 144, 152, 160, 168, 176, 184, 192, 200
    XB, PA, FB, SUM, GR, ONES = 32, 64, 96, 208, 216, 224
    e("s_waitcnt lgkmcnt(0)")
    e("s_load_dword s%d, s[%d:%d], 0x%x" % (sTAG, SWS, SWS + 1, EPOCH_OFF))

    def fgen(tl):
        t = 32
        e("s_lshl_b32 s%d, s%d, 5" % (sT0, sCBK))
        e("v_add_u32 v%d, s%d, v%d" % (t, sT0, vC))
        if tl:
            e("v_add_u32 v%d, 16, v%d" % (t, t))
        e("v_lshrrev_b32 v%d, 1, v%d" % (t + 1, t))
        e("v_and_b32 v%d, 1, v%d" % (t + 2, t))
        e("v_cvt_f32_u32 v%d, v%d" % (t + 2, t + 2))
        e("v_mul_f32 v%d, %s, v%d" % (t + 2, hexf(0.25), t + 2))
        if tl == 0:
            e("v_cmp_eq_u32 vcc, 1, v%d" % t)
            e("v_mov_b32 v%d, 256" % (t + 3))
        e("s_lshl_b32 s%d, s%d, 6" % (sT0, sR))
        if tl == 0:
            e("v_cndmask_b32 v%d, v%d, v%d, vcc" % (t + 1, t + 1, t + 3))
            e("v_cndmask_b32 v%d, v%d, 0, vcc" % (t + 2, t + 2))
        e("v_cvt_f32_u32 v%d, v%d" % (t + 1, t + 1))
        e("v_mul_f32 v%d, %s, v%d" % (t + 1, hexf(1.0 / 512), t + 1))
        e("v_lshl_add_u32 v%d, v%d, 3, s%d" % (t + 3, vQ, sT0))
        e("v_cvt_f32_u32 v%d, v%d" % (t + 3, t + 3))
        e("v_fma_f32 v%d, v%d, v%d, v%d" % (t + 2, t + 3, t + 1, t + 2))
        e("v_fract_f32 v%d, v%d" % (t + 8, t + 2))
        e("v_mul_f32 v%d, %s, v%d" % (t + 3, hexf(32.0), t + 1))
        e("v_fract_f32 v%d, v%d" % (t + 3, t + 3))
        for jj in range(1, 8):
            e("v_add_f32 v%d, v%d, v%d" % (t + 8 + jj, t + 7 + jj, t + 1))
        for Tf in range(4):
            for jj in range(8):
                e("v_cos_f32 v%d, v%d" % (t + 16 + jj, t + 8 + jj))
            if Tf < 3:
                for jj in range(8):
                    e("v_add_f32 v%d, v%d, v%d" % (t + 8 + jj, t + 8 + jj, t + 3))
            else:
                k.nop(1)
            for d in range(4):
                e("v_cvt_pk_bf16_f32 v%d, v%d, v%d" % (FB + 16 * tl + 4 * Tf + d, t + 16 + 2 * d, t + 17 + 2 * d))
    fgen(0)
    fgen(1)
    vSM, vAL, vBE = 16, 17, 18
    e("v_bfe_u32 v19, v%d, 1, 2" % vC)
    e("v_cvt_f32_u32 v19, v19")
    e("v_mul_f32 v19, %s, v19" % hexf(0.25))
    e("v_cos_f32 v%d, v19" % vAL)
    e("v_sin_f32 v%d, v19" % vBE)
    e("v_bfe_u32 v%d, v%d, 1, 1" % (vSM, vC))
    e("v_mul_u32_u24 v%d, 0x8000, v%d" % (vSM, vSM))
    e("v_lshl_or_b32 v%d, v%d, 16, v%d" % (vSM, vSM, vSM))
    e("v_rndne_f32 v%d, v%d" % (vAL, vAL))
    e("v_rndne_f32 v%d, v%d" % (vBE, vBE))
    e("v_lshlrev_b32 v19, 31, v%d" % vC)
    e("v_xor_b32 v%d, v19, v%d" % (vBE, vBE))
    for d in range(4):
        e("v_mov_b32 v%d, 0x3f803f80" % (ONES + d))
    xread_addr(26)
    k.stamp(2)

    def cconst():
        t = 32
        slot = [16 * (jj >> 2) + (jj & 3) for jj in range(8)]
        yield "s_lshl_b32 s%d, s%d, 4" % (sT3, sRW)
        yield "v_add_u32 v%d, s%d, v%d" % (t + 24, sT3, vC)
        yield "v_cvt_f32_u32 v%d, v%d" % (t + 27, vQ)
        yield "v_cvt_f32_u32 v%d, v%d" % (t + 25, t + 24)
        yield "v_mul_f32 v%d, 4.0, v%d" % (t + 27, t + 27)
        yield "v_cvt_f32_u32 v%d, v%d" % (t + 28, vC)
        yield "v_and_b32 v%d, 1, v%d" % (t + 30, vC)
        for jj in range(8):
            yield "v_add_f32 v%d, %s, v%d" % (t + 32 + jj, hexf(float(slot[jj])), t + 27)
        yield "v_mul_u32_u24 v%d, 0x8000, v%d" % (t + 30, t + 30)
        yield "v_mul_f32 v%d, %s, v%d" % (t + 26, hexf(1.0 / 64), t + 25)
        yield "v_lshl_or_b32 v%d, v%d, 16, v%d" % (t + 30, t + 30, t + 30)
        for (scale, Cb, Sb, Nb, flip) in ((t + 26, C64, S64, N64, "v%d" % (t + 30)), (t + 29, C32, S32, N32, "0x80000000")):
            if Cb == C32:
                yield "v_mul_f32 v%d, %s, v%d" % (t + 29, hexf(1.0 / 32), t + 28)
                yield "v_mul_f32 v%d, %s, v%d" % (t + 26, hexf(1.0 / 2048), t + 25)
            for jj in range(8):
                yield "v_mul_f32 v%d, v%d, v%d" % (t + jj, t + 32 + jj, scale)
            for jj in range(8):
                yield "v_cos_f32 v%d, v%d" % (t + 8 + jj, t + jj)
            for jj in range(8):
                yield "v_sin_f32 v%d, v%d" % (t + 16 + jj, t + jj)
            for d in range(4):
                yield "v_cvt_pk_bf16_f32 v%d, v%d, v%d" % (Cb + d, t + 8 + 2 * d, t + 9 + 2 * d)
            for d in range(4):
                yield "v_cvt_pk_bf16_f32 v%d, v%d, v%d" % (Sb + d, t + 16 + 2 * d, t + 17 + 2 * d)
            for d in range(4):
                yield "v_xor_b32 v%d, %s, v%d" % (Cb + 4 + d, flip, Cb + d)
            for d in range(4):
                yield "v_xor_b32 v%d, %s, v%d" % (Sb + 4 + d, flip, Sb + d)
            for d in range(8):
                yield "v_xor_b32 v%d, 0x80008000, v%d" % (Nb + d, Sb + d)
        for i in range(8):
            yield "v_mul_f32 v%d, v%d, v%d" % (t + i, t + 32 + i, t + 26)
        yield "v_cvt_f32_u32 v%d, s%d" % (t + 29, sT3)
        for i in range(8):
            yield "v_cos_f32 v%d, v%d" % (T1C + i, t + i)
            yield "v_sin_f32 v%d, v%d" % (T1S + i, t + i)
        yield "v_mul_f32 v%d, %s, v%d" % (t + 26, hexf(1.0 / 2048), t + 28)
        for r in range(4):
            yield "v_add_f32 v%d, v%d, v%d" % (t + 8 + r, t + 29, t + 32 + r)
        yield "v_add_f32 v%d, %s, v%d" % (t + 25, hexf(16.0 / 2048), t + 26)
        for r in range(4):
            yield "v_mul_f32 v%d, v%d, v%d" % (t + r, t + 8 + r, t + 26)
        for r in range(4):
            yield "v_mul_f32 v%d, v%d, v%d" % (t + 4 + r, t + 8 + r, t + 25)
        for i in range(8):
            yield "v_cos_f32 v%d, v%d" % (T2C + i, t + i)
            yield "v_sin_f32 v%d, v%d" % (T2S + i, t + i)
    CCE = P("CCE", 1)
    if CCE:
        for s_ in cconst():
            e(s_)
    vX1 = 7
    e("v_lshrrev_b32 v7, 1, v%d" % vC)
    e("v_lshlrev_b32 v7, 13, v7")
    e("v_and_b32 v19, 1, v%d" % vC)
    e("v_lshl_add_u32 v7, v19, 6, v7")
    e("v_lshl_add_u32 v7, v%d, 4, v7" % vQ)
    e("s_lshl_b32 s%d, s%d, 9" % (sT0, sRW))
    e("s_add_u32 s%d, s%d, 0x%x" % (sT0, sT0, L_ST))
    e("v_lshl_add_u32 v8, v%d, 2, s%d" % (vC, sT0))
    e("v_lshl_add_u32 v9, v%d, 4, s%d" % (vQ, sT0))
    e("s_lshl4_add_u32 s%d, s%d, s%d" % (sFX, sCBK, sPB))
    e("s_lshl_b32 s%d, s%d, 7" % (sFX, sFX))
    e("s_lshl2_add_u32 s%d, s%d, s%d" % (sFX, sRW, sFX))
    tag_setup()
    k.stamp(3)
    e("s_setprio %d" % P("PRIO", 1))

    def XBf(kk, u, ks):
        return vr(XB + (((kk & 1) * 2 + ks) * 2 + u) * 4, 4)
    for s_ in range(4):
        e("s_barrier")
        fs(6, 2 + s_)
        for kk in (2 * s_, 2 * s_ + 1):
            for ks in range(2):
                for u in range(2):
                    xread(XBf(kk, u, ks), 26, kk, u, ks, ("XR", kk, ks))
        if s_ == 2:
            for i in range(32):
                e("v_xor_b32 v%d, v%d, v%d" % (FB + i, vSM, FB + i))
        for kk in (2 * s_, 2 * s_ + 1):
            for ks in range(2):
                T = 2 * kk + ks
                k.wait_lg(("XR", kk, ks))
                for u in range(2):
                    x = XBf(kk, u, ks)
                    mfma(vr(SUM + 4 * u, 4), vr(ONES, 4), x, vr(SUM + 4 * u, 4) if T else "0")
                    mfma(vr(GR + 4 * u, 4), x, x, vr(GR + 4 * u, 4) if T else "0")
                for u in range(2):
                    x = XBf(kk, u, ks)
                    for tl in range(2):
                        p = vr(PA + ((tl * 2 + ((T >> 2) & 1)) * 2 + u) * 4, 4)
                        mfma(p, x, vr(FB + 16 * tl + 4 * (T & 3), 4), "0" if T in (0, 4) else p)
    e("s_barrier")
    k.stamp(4)
    fs(6, 6)
    e("s_setprio %d" % P("XPRIO", 0))
    e("v_and_b32 v19, 3, v%d" % vC)
    k.nop(2)
    for r in range(1, 4):
        e("v_cmp_eq_u32 vcc, %d, v19" % r)
        k.nop(2)
        for u in range(2):
            e("v_cndmask_b32 v%d, v%d, v%d, vcc" % (GR + 4 * u, GR + 4 * u, GR + 4 * u + r))

    def stat_ops(u):
        m, q2, rs_, nm, d0 = SUM + 4 * u, GR + 4 * u, SUM + 4 * u + 1, SUM + 4 * u + 2, SUM + 4 * u + 3
        rnd = lambda v: ["v_cvt_pk_bf16_f32 v%d, v%d, v%d" % (v, v, v), "v_lshlrev_b32 v%d, 16, v%d" % (v, v)]
        return (["v_mul_f32 v%d, %s, v%d" % (m, hexf(1.0 / 512), m),
                 "v_mul_f32 v%d, %s, v%d" % (q2, hexf(1.0 / 512), q2),
                 "v_fma_f32 v%d, -v%d, v%d, v%d" % (q2, m, m, q2),
                 "v_max_f32 v%d, 0, v%d" % (q2, q2)] + rnd(q2) +
                ["v_add_f32 v%d, %s, v%d" % (q2, hexf(1e-5), q2)] + rnd(q2) +
                ["v_sqrt_f32 v%d, v%d" % (q2, q2), "v_sub_f32 v%d, 0, v%d" % (nm, m)] + rnd(q2) +
                ["v_rcp_f32 v%d, v%d" % (rs_, q2)] + rnd(nm) +
                ["v_add_f32 v%d, v%d, v%d" % (d0, m, nm), "v_mul_f32 v%d, %s, v%d" % (d0, hexf(512.0), d0)])
    for a_, b_ in zip(stat_ops(0), stat_ops(1)):
        e(a_)
        e(b_)
    e("s_mov_b32 exec_lo, 0x00f0000f")
    e("s_mov_b32 exec_hi, 0xf0000f00")
    for u in range(2):
        e("ds_write2_b32 v8, v%d, v%d offset0:%d offset1:%d" % (SUM + 4 * u + 1, SUM + 4 * u + 2, 16 * u, 32 + 16 * u))
        e("ds_write_b32 v8, v%d offset:%d" % (SUM + 4 * u + 3, 256 + 64 * u))
    e("s_mov_b64 exec, -1")
    RT, D0T = XB, XB + 8
    for u in range(2):
        e("ds_read_b128 %s, v9 offset:%d" % (vr(RT + 4 * u, 4), 64 * u))
        e("ds_read_b128 %s, v9 offset:%d" % (vr(D0T + 4 * u, 4), 256 + 64 * u))
    for tl in range(2):
        for i in range(8):
            e("v_fmac_f32 v%d, v%d, v%d" % (PA + 16 * tl + i, vAL, PA + 16 * tl + 8 + i))
        for i in range(8):
            e("v_fmac_f32_dpp v%d, v%d, v%d quad_perm:[1,0,3,2] row_mask:0xf bank_mask:0xf" % (PA + 16 * tl + i, PA + 16 * tl + 8 + i, vBE))
    e("v_or_b32 v19, s%d, v%d" % (sCBK, vC))
    e("v_cmp_eq_u32 vcc, 0, v19")
    e("s_lshl_b32 s%d, s%d, 17" % (sT0, sCBK))
    e("s_lshl2_add_u32 s%d, s%d, s%d" % (sT1, sA, sRW))
    e("s_lshr_b32 s%d, s%d, 1" % (sT2, sWP))
    e("s_lshl1_add_u32 s%d, s%d, s%d" % (sT1, sT1, sT2))
    e("s_lshl_b32 s%d, s%d, 7" % (sT1, sT1))
    e("s_add_u32 s%d, s%d, s%d" % (sT0, sT0, sT1))
    e("s_add_u32 s%d, s%d, 0x%x" % (sT1, sT0, X1C_OFF))
    e("s_add_u32 s%d, s%d, 0x%x" % (sT2, sT0, X1C_OFF + 65536))
    e("s_waitcnt lgkmcnt(0)")
    k.lg.clear()
    for i in range(8):
        e("v_cndmask_b32 v%d, v%d, v%d, vcc" % (PA + i, PA + i, D0T + i))
    for tl in range(2):
        for i in range(8):
            e("v_mul_f32 v%d, v%d, v%d" % (PA + 16 * tl + i, PA + 16 * tl + i, RT + i))
        o = 232 + 4 * tl
        for d in range(4):
            e("v_cvt_pk_bf16_f32 v%d, v%d, v%d" % (o + d, PA + 16 * tl + 2 * d, PA + 16 * tl + 2 * d + 1))
        e("buffer_store_dwordx4 %s, v%d, %s, s%d offen sc1" % (vr(o, 4), vX1, srd(SWS), sT1 + tl))
        k.vm.issue("x1st")
    k.stamp(5)

    def colsum(reg):
        if reg == 0:
            e("v_lshrrev_b32 v19, 2, v%d" % vC)
            e("v_lshl_add_u32 v20, v%d, 3, v19" % vQ)
            e("v_lshlrev_b32 v20, 7, v20")
            e("v_and_b32 v13, 1, v%d" % vC)
            e("v_lshl_add_u32 v20, v13, 3, v20")
            e("v_bfe_u32 v19, v%d, 3, 1" % vC)
            e("v_and_b32 v13, 1, v%d" % vQ)
            e("v_lshl_or_b32 v19, v13, 1, v19")
            e("v_xor_b32 v19, s%d, v19" % sRW)
            e("v_lshlrev_b32 v19, 1, v19")
            e("v_bfe_u32 v13, v%d, 1, 1" % vC)
            e("v_or_b32 v19, v19, v13")
            e("v_lshl_add_u32 v20, v19, 4, v20")
            e("v_add_u32 v13, 0x%x, v20" % LB)
            e("s_lshl_b32 s%d, s%d, 6" % (sT1, sRW))
            e("s_add_u32 s%d, s%d, 0x%x" % (sT1, sT1, L_CS))
            e("v_lshl_add_u32 v16, v%d, 4, s%d" % (vQ, sT1))
            gwait(C_WA2)
        else:
            gwait(C_WB1)
            gwait(C_WB2)
        base = 20 if reg else 13

        def rd(T):
            for hh in range(2):
                e("ds_read_b64_tr_b16 %s, v%d offset:%d" % (vr(48 + 4 * (T % 4) + 2 * hh, 2), base, T * 4096 + hh * 512))
                k.lg.issue(("CS", reg, T))
        for T in range(3):
            rd(T)
        for T in range(16):
            if T + 3 < 16:
                rd(T + 3)
            k.wait_lg(("CS", reg, T))
            mfma(vr(240, 4), vr(48 + 4 * (T % 4), 4), vr(ONES, 4), vr(240, 4) if T else "0")
        k.nop(6)
        e("s_mov_b32 exec_lo, 0x00010001")
        e("s_mov_b32 exec_hi, 0x00010001")
        e("ds_write_b128 v16, v[240:243] offset:%d" % (256 * reg))
        e("s_mov_b64 exec, -1")
        garrive(C_FB if reg else C_FA)
    colsum(0)
    e("s_setprio 0")
    GB = 64

    def ggen():
        t0 = 32
        an, stp = 252, 31
        yield "s_lshl_b32 s%d, s%d, 6" % (sT3, sDB)
        yield "s_lshl4_add_u32 s%d, s%d, s%d" % (sT3, sRW, sT3)
        yield "v_add_u32 v%d, s%d, v%d" % (t0, sT3, vC)
        yield "v_lshlrev_b32 v%d, 1, v%d" % (t0 + 2, vQ)
        yield "v_cvt_f32_u32 v%d, v%d" % (t0 + 1, t0)
        yield "v_cvt_f32_u32 v%d, v%d" % (t0 + 2, t0 + 2)
        yield "v_mul_f32 v%d, %s, v%d" % (t0 + 1, hexf(1.0 / 512), t0 + 1)
        yield "v_mul_f32 v%d, %s, v%d" % (stp, hexf(16.0), t0 + 1)
        for dw in range(4):
            yield "v_add_f32 v%d, %s, v%d" % (an + dw, hexf(float(8 * (dw >> 1) + (dw & 1))), t0 + 2)
        yield "v_fract_f32 v%d, v%d" % (stp, stp)
        for dw in range(4):
            yield "v_mul_f32 v%d, v%d, v%d" % (an + dw, an + dw, t0 + 1)
        yield "v_lshlrev_b32 v%d, 31, v%d" % (t0 + 16, vC)
        yield "v_min_u32 v%d, 1, v%d" % (t0 + 17, vQ)
        yield "v_or_b32 v%d, 0x3f800000, v%d" % (t0 + 16, t0 + 16)
        yield "v_sub_u32 v%d, v%d, 1" % (t0 + 17, t0 + 17)
        yield "v_and_b32 v%d, 0xffff0000, v%d" % (t0 + 17, t0 + 17)
        yield "v_and_b32 v17, 1, v%d" % vC
        yield "v_mul_u32_u24 v17, 0x020202, v17"
        yield "v_lshl_or_b32 v17, v17, 8, v17"
        yield "v_xor_b32 v17, 0x03020100, v17"
        yield "v_bfe_u32 v18, v%d, 1, 1" % vC
        yield "v_add_u32 v%d, 1, v%d" % (t0 + 18, vC)
        yield "v_bfe_u32 v%d, v%d, 1, 1" % (t0 + 18, t0 + 18)
        yield "v_lshlrev_b32 v18, 15, v18"
        yield "v_lshl_or_b32 v18, v%d, 31, v18" % (t0 + 18)
        for T in range(8):
            for dw in range(4):
                yield "v_cos_f32 v%d, v%d" % (t0 + 8 + 2 * dw, an + dw)
                yield "v_sin_f32_e64 v%d, -v%d" % (t0 + 9 + 2 * dw, an + dw)
            for dw in range(4):
                yield "v_add_f32 v%d, v%d, v%d" % (an + dw, an + dw, stp)
            for dw in range(4):
                yield "v_cvt_pk_bf16_f32 v%d, v%d, v%d" % (GB + 4 * T + dw, t0 + 8 + 2 * dw, t0 + 9 + 2 * dw)
            for dw in range(4):
                yield "v_perm_b32 v%d, v%d, v%d, v17" % (GB + 32 + 4 * T + dw, GB + 4 * T + dw, GB + 4 * T + dw)
            for dw in range(4):
                yield "v_xor_b32 v%d, v18, v%d" % (GB + 32 + 4 * T + dw, GB + 32 + 4 * T + dw)
            if T == 0:
                yield "v_bfi_b32 v%d, v%d, v%d, v%d" % (GB, t0 + 17, t0 + 16, GB)
    late_setup(1)
    e("v_add_u32 v6, 0x%x, v%d" % (LB, vZB))
    vFL, vFZ, vDZ = 14, 15, 9
    e("s_xor_b32 s%d, s2, 0x38" % sCC)
    flag_voff(vFZ, 63)
    e("v_and_b32 v%d, 0x1ff, v%d" % (vFL, vFZ))
    e("v_min_u32 v19, 1, v%d" % vQ)
    e("v_mul_u32_u24 v19, 0x%x, v19" % (FW_OFF - FX_OFF))
    e("v_add_u32 v%d, v19, v%d" % (vFL, vFL))
    e("s_cmp_eq_u32 s%d, 0" % sCC)
    e("s_cselect_b32 s%d, 0x%x, 0" % (sT0, 16 * 2048))
    e("v_lshrrev_b32 v19, 1, v%d" % vQ)
    e("v_mul_u32_u24 v19, s%d, v19" % sT0)
    e("v_add_u32 v%d, v19, v%d" % (vFL, vFL))
    e("s_lshr_b32 s%d, s%d, 4" % (sFXC, sCC))
    e("s_lshl2_add_u32 s%d, s%d, s%d" % (sFXC, sFXC, sRW))
    e("s_lshl_b32 s%d, s%d, 9" % (sFXC, sFXC))
    e("s_mov_b32 s%d, 0" % sGB)
    XI, TM, TW, DR, DI, PR, PI, CWL = 32, 32, 48, 208, 216, 224, 228, 232

    def xin(pl, v, tt):
        return XI + 4 * ((pl * 2 + v) * 2 + tt)
    e("v_add_u32 v26, 0x%x, v%d" % (L_C1, vYW))
    e("v_xor_b32 v27, 64, v26")
    e("v_xor_b32 v28, 128, v26")
    e("v_xor_b32 v29, 192, v26")
    e("s_lshr_b32 s%d, s%d, 1" % (sT0, sRW))
    e("s_lshl_b32 s%d, s%d, 7" % (sT0, sT0))
    e("s_and_b32 s%d, s%d, 1" % (sT1, sRW))
    e("s_lshl3_add_u32 s%d, s%d, s%d" % (sT0, sT1, sT0))
    e("v_xor_b32 v10, s%d, v26" % sT0)
    e("v_xor_b32 v11, 64, v10")
    e("v_lshlrev_b32 v12, 5, v%d" % vC)
    e("v_lshl_add_u32 v12, v%d, 3, v12" % vQ)
    e("s_lshl_b32 s%d, s%d, 10" % (sT0, sRW))
    e("v_add_u32 v12, s%d, v12" % sT0)
    e("s_lshl_b32 s%d, s%d, 13" % (sZR, sCC))
    e("s_add_u32 s%d, s%d, 0x%x" % (sZR, sZR, ZT_OFF))
    e("s_add_u32 s%d, s%d, 4096" % (sZI, sZR))
    e("s_mov_b32 s%d, %s" % (sSC, hexf(2.0 ** -19)))
    e("s_cmp_eq_u32 s%d, 0" % sCC)
    e("s_cselect_b32 s%d, 0x%x, s%d" % (sZI, OOB, sZI))
    e("s_cselect_b32 s%d, %s, s%d" % (sSC, hexf(2.0 ** -20), sSC))
    e("s_mov_b32 s%d, 0" % sPL)
    e("s_lshl_b32 s%d, s%d, 3" % (sT0, sT1))
    e("v_add_u32 v19, s%d, v%d" % (sT0, vQ))
    e("v_xor_b32 v30, v19, v%d" % vC)
    e("v_lshlrev_b32 v30, 4, v30")
    e("v_lshl_add_u32 v30, v%d, 8, v30" % vQ)
    e("v_xor_b32 v24, 64, v30")
    e("v_lshrrev_b32 v8, 3, v%d" % vLANE)
    e("v_and_b32 v9, 7, v%d" % vLANE)
    e("v_lshlrev_b32 v19, 1, v%d" % vQ)
    e("v_xor_b32 v19, v19, v9")
    e("v_lshlrev_b32 v19, 4, v19")
    e("v_lshl_add_u32 v%d, v8, 12, v19" % vDZ)
    k.wait_vm("x1st")
    publish("s%d" % sFX)
    xe_load()
    k.stamp(6)
    pre = ([] if CCE else list(cconst())) + ["v_mul_f32 v%d, s%d, v%d" % (T2C + i, sSC, T2C + i) for i in range(16)]
    gl = list(ggen())
    GE = P("GE", 152)
    pre += gl[:GE]
    gl = gl[GE:]
    n2 = max(0, len(pre) - P("PFXL", 0))
    cs1 = min(n2, P("CS1", 72))
    for s_ in pre[:cs1]:
        e(s_)
    colsum(1)
    if P("NOFFT", 0):
        e("s_branch L_final")
    for s_ in pre[cs1:n2]:
        e(s_)
    poll_issue("pfx", vFL, "s%d" % sFXC, 13)
    for s_ in pre[n2:]:
        e(s_)
    k.stamp(7)
    e("s_setprio %d" % P("CPRIO", 1))
    poll_check("pfx", vFL, "s%d" % sFXC, 13)
    k.stamp(8)

    def gbar_lines():
        return ["    s_add_u32 s%d, s%d, 4" % (sGB, sGB)] + garrive_lines(C_F) + gwait_lines(C_F, "s%d" % sGB)

    def gbar():
        k.lines.extend(gbar_lines())
        k.lg.clear()
    e("s_lshl_b32 s%d, s%d, 13" % (sT0, sCC))
    e("s_lshl_b32 s%d, s%d, 11" % (sT1, sRW))
    e("s_add_u32 s%d, s%d, s%d" % (sT0, sT0, sT1))
    e("s_add_u32 s%d, s%d, 0x%x" % (sT2, sT0, X1C_OFF))
    e("s_add_u32 m0, s%d, 0x%x" % (sT1, L_C1))
    k.nop(1)
    e("buffer_load_dwordx4 v30, %s, s%d offen sc1 lds" % (srd(SWS), sT2))
    k.vm.issue("cin")
    e("buffer_load_dwordx4 v24, %s, s%d offen offset:1024 sc1 lds" % (srd(SWS), sT2))
    k.vm.issue("cin")
    e("s_add_u32 s%d, s%d, 0x%x" % (sT2, sT0, WT_OFF))
    for v in range(2):
        e("buffer_load_dwordx4 %s, v%d, %s, s%d offen offset:%d sc1" % (vr(CWL + 4 * v, 4), vL16, srd(SWS), sT2, v * 1024))
        k.vm.issue("cw")
    e("s_add_u32 s%d, s%d, 0x%x" % (sT2, sT2, 256 * 8192))
    e("s_cmp_eq_u32 s%d, 0" % sCC)
    e("s_cselect_b32 s%d, s%d, 0x%x" % (sT2, sT2, OOB))
    for v in range(2):
        e("buffer_load_dwordx4 %s, v%d, %s, s%d offen offset:%d sc1" % (vr(CWL + 8 + 4 * v, 4), vL16, srd(SWS), sT2, v * 1024))
        k.vm.issue("cw")
    k.wait_vm("cin")
    gbar()
    k.stamp(9)
    k.lab("L_ccol")
    for pl in range(2):
        for v in range(2):
            for tt in range(2):
                e("ds_read_b128 %s, v%d offset:%d" % (vr(xin(pl, v, tt), 4), 26 + 2 * tt + pl, v * 4096))
    e("s_waitcnt lgkmcnt(0)")
    e("s_cmp_eq_u32 s%d, 0" % sCC)
    e("s_cbranch_scc1 L_creal")
    k.lab("L_cplx")
    tail.append("L_creal:")
    tail.append("    s_cmp_eq_u32 s%d, 0" % sPL)
    tail.append("    s_cbranch_scc1 L_c0")
    for i in range(16):
        tail.append("    v_mov_b32 v%d, v%d" % (XI + i, XI + 16 + i))
    tail.append("L_c0:")
    for i in range(16):
        tail.append("    v_mov_b32 v%d, 0" % (XI + 16 + i))
    tail.append("    s_nop 1")
    tail.append("    s_branch L_cplx")
    for v in range(2):
        dr, di = vr(DR + 4 * v, 4), vr(DI + 4 * v, 4)
        for tt in range(2):
            mfma(dr, vr(xin(0, v, tt), 4), vr(C64 + 4 * tt, 4), dr if tt else "0")
            mfma(di, vr(xin(1, v, tt), 4), vr(C64 + 4 * tt, 4), di if tt else "0")
            mfma(dr, vr(xin(1, v, tt), 4), vr(S64 + 4 * tt, 4))
            mfma(di, vr(xin(0, v, tt), 4), vr(N64 + 4 * tt, 4))

    def cmul(cr, ci, conj):
        for h in range(2):
            for i in (4 * h, 4 * h + 2):
                e("v_pk_mul_f32 %s, %s, %s" % (vr(TM + i, 2), vr(DR + i, 2), vr(cr + i, 2)))
                e("v_pk_mul_f32 %s, %s, %s" % (vr(TM + 8 + i, 2), vr(DI + i, 2), vr(cr + i, 2)))
            neg = " neg_lo:[1,0,0] neg_hi:[1,0,0]"
            for i in (4 * h, 4 * h + 2):
                e("v_pk_fma_f32 %s, %s, %s, %s%s" % (vr(TM + i, 2), vr(DI + i, 2), vr(ci + i, 2), vr(TM + i, 2), "" if conj else neg))
                e("v_pk_fma_f32 %s, %s, %s, %s%s" % (vr(TM + 8 + i, 2), vr(DR + i, 2), vr(ci + i, 2), vr(TM + 8 + i, 2), neg if conj else ""))
        for d in range(4):
            e("v_cvt_pk_bf16_f32 v%d, v%d, v%d" % (PR + d, TM + 2 * d, TM + 2 * d + 1))
            e("v_cvt_pk_bf16_f32 v%d, v%d, v%d" % (PI + d, TM + 8 + 2 * d, TM + 9 + 2 * d))
        k.nop(2)
    cmul(T1C, T1S, True)
    pr, pi = vr(PR, 4), vr(PI, 4)
    for v in range(2):
        dr, di = vr(DR + 4 * v, 4), vr(DI + 4 * v, 4)
        mfma(dr, vr(C32 + 4 * v, 4), pr, "0")
        mfma(di, vr(C32 + 4 * v, 4), pi, "0")
        mfma(dr, vr(S32 + 4 * v, 4), pi)
        mfma(di, vr(N32 + 4 * v, 4), pr)
    k.wait_vm("cw")
    for i in range(8):
        e("v_lshlrev_b32 v%d, 16, v%d" % (TW + i, CWL + i))
        e("v_and_b32 v%d, 0xffff0000, v%d" % (TW + 8 + i, CWL + i))
    cmul(TW, TW + 8, False)
    for v in range(2):
        dr, di = vr(DR + 4 * v, 4), vr(DI + 4 * v, 4)
        mfma(dr, pr, vr(C32 + 4 * v, 4), "0")
        mfma(di, pi, vr(C32 + 4 * v, 4), "0")
        mfma(dr, pi, vr(N32 + 4 * v, 4))
        mfma(di, pr, vr(S32 + 4 * v, 4))
    k.nop(4)
    cmul(T2C, T2S, False)
    for v in range(2):
        e("ds_write_b64 v10, %s offset:%d" % (vr(PR + 2 * v, 2), 8192 + v * 4096))
        e("ds_write_b64 v11, %s offset:%d" % (vr(PI + 2 * v, 2), 8192 + v * 4096))
    e("s_waitcnt lgkmcnt(0)")
    gbar()
    for v in range(2):
        for tt in range(2):
            for pl in range(2):
                e("ds_read_b128 %s, v%d offset:%d" % (vr(xin(pl, v, tt), 4), 26 + 2 * tt + pl, 8192 + v * 4096))
                k.lg.issue(("cy", v, tt))
    for v in range(2):
        dr, di = vr(DR + 4 * v, 4), vr(DI + 4 * v, 4)
        for tt in range(2):
            k.wait_lg(("cy", v, tt))
            mfma(dr, vr(C64 + 4 * tt, 4), vr(xin(0, v, tt), 4), dr if tt else "0")
            mfma(di, vr(C64 + 4 * tt, 4), vr(xin(1, v, tt), 4), di if tt else "0")
            mfma(dr, vr(N64 + 4 * tt, 4), vr(xin(1, v, tt), 4))
            mfma(di, vr(S64 + 4 * tt, 4), vr(xin(0, v, tt), 4))
    for v in range(2):
        if v:
            k.nop(4)
        for d in range(2):
            e("v_cvt_pk_bf16_f32 v%d, v%d, v%d" % (PR + 2 * v + d, DR + 4 * v + 2 * d, DR + 4 * v + 2 * d + 1))
            e("v_cvt_pk_bf16_f32 v%d, v%d, v%d" % (PI + 2 * v + d, DI + 4 * v + 2 * d, DI + 4 * v + 2 * d + 1))
        e("buffer_store_dwordx2 %s, v12, %s, s%d offen offset:%d sc1" % (vr(PR + 2 * v, 2), srd(SWS), sZR, v * 512))
        k.vm.issue("zst")
        e("buffer_store_dwordx2 %s, v12, %s, s%d offen offset:%d sc1" % (vr(PI + 2 * v, 2), srd(SWS), sZI, v * 512))
        k.vm.issue("zst")
    e("s_or_b32 s%d, s%d, s%d" % (sT0, sCC, sPL))
    if not P("NO256", 0):
        e("s_cbranch_scc0 L_csecond")
    sec = ["L_csecond:", "    s_mov_b32 s%d, 1" % sPL, "    s_add_u32 s%d, s%d, 4096" % (sZR, sZR)]
    for i in range(8):
        sec.append("    v_mov_b32 v%d, v%d" % (CWL + i, CWL + 8 + i))
    sec.extend(gbar_lines())
    sec.append("    s_branch L_ccol")
    tail.extend(sec)
    k.stamp(10)
    fs(7, 2)
    e("s_lshr_b32 s%d, s%d, 2" % (sT4, sCC))
    e("s_lshl_b32 s%d, s%d, 6" % (sT1, sRW))
    e("s_add_u32 s%d, s%d, s%d" % (sT4, sT4, sT1))
    e("s_lshl_b32 s%d, s%d, 7" % (sT4, sT4))
    e("s_and_b32 s%d, s%d, 3" % (sT1, sCC))
    e("s_lshl2_add_u32 s%d, s%d, s%d" % (sT4, sT1, sT4))
    e("s_add_u32 s%d, s%d, 0x%x" % (sT4, sT4, FZ_OFF))
    sFZC = sFXC
    e("s_lshl2_add_u32 s%d, s%d, s%d" % (sFZC, sWP, sRW))
    e("s_lshl_b32 s%d, s%d, 11" % (sFZC, sFZC))
    e("s_add_u32 s%d, s%d, 0x%x" % (sFZC, sFZC, FZ_OFF))
    e("s_lshl_b32 s%d, s%d, 19" % (sDT, sRW))
    e("s_lshl_b32 s%d, s%d, 10" % (sT1, sWP))
    e("s_add_u32 s%d, s%d, s%d" % (sDT, sDT, sT1))
    e("s_lshl_b32 s%d, s%d, 7" % (sT1, sA))
    e("s_add_u32 s%d, s%d, s%d" % (sDT, sDT, sT1))
    e("s_add_u32 s%d, s%d, 0x%x" % (sDT, sDT, ZT_OFF - 32768))
    e("s_lshl_b32 s%d, s%d, 14" % (sT2, sRW))
    e("s_lshl_b32 s%d, s%d, 6" % (sT1, sRW))
    e("v_xor_b32 v20, s%d, v26" % sT1)
    k.wait_vm("zst")
    fs(7, 3)
    publish("s%d" % sT4)
    e("s_setprio 0")
    for s_ in gl:
        e(s_)
    TRZ = [16, 17, 18, 7]
    for pt in range(4):
        e("v_xor_b32 v%d, %d, v6" % (TRZ[pt], 32 * pt))
    e("s_setprio 1")
    gwait(C_WT)
    fs(7, 4)
    if P("ZSLP", 0):
        e("s_sleep %d" % P("ZSLP", 0))
    poll_issue("pz", vFZ, "s%d" % sFZC, 30)
    if FS == 7:
        k.wait_vm("pz")
    fs(7, 5)
    poll_check("pz", vFZ, "s%d" % sFZC, 30)
    fs(7, 6)
    k.stamp(11)
    for ee in range(16):
        e("s_add_u32 m0, s%d, %d" % (sT2, LB + ee * 1024))
        e("s_add_u32 s%d, s%d, 32768" % (sDT, sDT))
        e("buffer_load_dwordx4 v%d, %s, s%d offen sc1 lds" % (vDZ, srd(SWS), sDT))
        k.vm.issue("Z")
    fs(7, 7)
    e("s_setprio %d" % P("EPRIO", 0))
    k.wait_vm("Z")
    fs(7, 8)
    gbar()
    fs(7, 9)
    AS, ZF = 208, 128

    def zr(T, pt):
        for hh in range(2):
            r = ZF + ((T % 4) * 4 + pt) * 4 + 2 * hh
            e("ds_read_b64_tr_b16 %s, v%d offset:%d" % (vr(r, 2), TRZ[pt], T * 4096 + hh * 2048))
            k.lg.issue(("ZR", T, pt))
    seq = [(T, pt) for T in range(16) for pt in range(4)]
    LA_ = 6
    for n in range(LA_):
        zr(*seq[n])
    for n, (T, pt) in enumerate(seq):
        if n + LA_ < 64:
            zr(*seq[n + LA_])
        k.wait_lg(("ZR", T, pt))
        c = vr(AS + 4 * pt, 4)
        mfma(c, vr(GB + 4 * T, 4), vr(ZF + ((T % 4) * 4 + pt) * 4, 4), c if T else "0")
    k.nop(8)
    for pt in range(4):
        e("ds_write_b128 v20, %s offset:%d" % (vr(AS + 4 * pt, 4), pt * 4096))
    fs(7, 10)
    e("s_branch L_final")
    tail[0:0] = k.lines
    k.lines = main_lines

    e("s_waitcnt vmcnt(0) lgkmcnt(0)")
    k.vm.clear()
    k.lg.clear()
    fs(12, 7)
    e("s_barrier")
    fs(12, 8)
    k.stamp(12)
    YP, SV, U2 = 192, 224, 232
    e("v_add_u32 v10, 0x%x, v%d" % (L_C1, vR0))
    e("v_add_u32 v11, 0x%x, v%d" % (L_C1, vR1))
    for h in range(2):
        e("ds_read_b128 %s, v%d" % (vr(YP + 4 * h, 4), vR0 + h))
        k.lg.issue("yp")
    for h in range(2):
        e("ds_read_b128 %s, v%d" % (vr(SV + 4 * h, 4), 10 + h))
        k.lg.issue("sv")
    for i in range(4):
        e("v_lshlrev_b32 v%d, 16, v%d" % (240 + 2 * i, XV + i))
        e("v_and_b32 v%d, 0xffff0000, v%d" % (241 + 2 * i, XV + i))
    k.wait_lg("yp")
    for i in range(8):
        e("v_mul_f32 v%d, %s, v%d" % (U2 + i, hexf(-1.4426950408889634), YP + i))
    for i in range(8):
        e("v_exp_f32 v%d, v%d" % (U2 + i, U2 + i))
    k.wait_lg("sv")
    for i in range(8):
        e("v_mul_f32 v%d, v%d, v%d" % (YP + i, YP + i, SV + i))
    for i in range(8):
        e("v_add_f32 v%d, 1.0, v%d" % (U2 + i, U2 + i))
    for i in range(8):
        e("v_rcp_f32 v%d, v%d" % (U2 + i, U2 + i))
    k.nop(1)
    for i in range(8):
        e("v_fmac_f32 v%d, v%d, v%d" % (240 + i, YP + i, U2 + i))
    for d in range(4):
        e("v_cvt_pk_bf16_f32 v%d, v%d, v%d" % (SV + d, 240 + 2 * d, 241 + 2 * d))
    e("buffer_store_dwordx4 %s, v%d, %s, s%d offen%s" % (vr(SV, 4), vGO, srd(SOUT), sXO, os.environ.get("OFL", " sc1")))
    e("s_or_b32 s%d, s2, s%d" % (sT0, sRW))
    e("s_or_b32 s%d, s%d, s%d" % (sT0, sT0, sHF))
    e("s_cbranch_scc1 L_noep")
    e("s_mov_b32 s%d, 0x%x" % (sT0, EPOCH_OFF))
    publish("s%d" % sT0)
    k.lab("L_noep")
    k.stamp(13)
    if ENC:
        if "ENCB" in os.environ:
            e("s_cmp_lg_u32 s2, %d" % P("ENCB", 0))
            e("s_cbranch_scc1 L_done")
        e("s_waitcnt lgkmcnt(0)")
        e("s_sub_u32 s97, s%d, s66" % (64 + 2 * ENC))
        e("s_add_u32 s97, s97, 6000")
        k.lab("L_espin")
        e("s_memrealtime s[94:95]")
        e("s_waitcnt lgkmcnt(0)")
        e("s_sub_u32 s96, s94, s66")
        e("s_cmp_lt_u32 s96, s97")
        e("s_cbranch_scc1 L_espin")
    elif DIAG:
        e("s_lshl2_add_u32 s%d, s%d, s%d" % (sT0, sHF, sRW))
        e("v_mov_b32 v2, s%d" % sT0)
        k.stamp_flush(SWS, 0, 2, 8)
    k.lab("L_done")
    e("s_endpgm")
    k.lines += tail
    k.lab("L_end")
    return k


HEADER = open(os.path.join(os.path.dirname(os.path.abspath(__file__)), "header.txt")).read()


def main(out):
    k = gen()
    s = HEADER
    s += "; @launch grid=(256,1,1) block=(512,1,1) lds=163840\n"
    s += '.amdgcn_target "amdgcn-amd-amdhsa--gfx950"\n.text\n'
    s += k.text()
    s += '.section .rodata,"a"\n'
    s += descriptor(k.name, 256, 102 if DIAG else 64)
    open(out, "w").write(s)


if __name__ == "__main__":
    main(sys.argv[1] if len(sys.argv) > 1 else "v13.s")
```

```python
import sys, os
from collections import deque
sys.path.insert(0, os.path.dirname(os.path.abspath(__file__)))
from asmlib import *

NAME = "recurrent_scan__spectral_gfnet__dense_activation_relu__prompt_kernel"


def P(name, default):
    return int(os.environ.get(name, default))


X1C_OFF = 0x0200000
WT_OFF = 0x0400000
H_OFF = 0x0800000
ZT_OFF = 0x1000000
FX_OFF = 0x0000000
FW_OFF = 0x0010000
FH_OFF = 0x0020000
FY_OFF = 0x0048000
YX_OFF = 0x1800000
FHB_D = 0x0008000
FZ_OFF = 0x0030000
EPOCH_OFF = 0x0040000
WS_BYTES = 0x2000000
OOB = 0x7f000000
TAGC = 0x9E3779B9
X_BYTES = 2048 * 512 * 2
W_BYTES = 2048 * 257 * 2
W1_BYTES = 512 * 1792 * 2

SX, SWR, SWI, SW1, SW2, SOUT, SWS = 12, 16, 20, 24, 28, 32, 36
sRW, sPB, sCBK, sF0, sHF, sR, sTAG, sA, sWP, sDB = 3, 4, 5, 6, 7, 8, 9, 10, 11, 40
sXO, sRS = 41, 42
sT0, sT1, sT2, sT3, sT4 = 43, 44, 45, 46, 47
sCNT = 49
sXT, sDT = 0, 1

LA, LB, LS = 0, 65536, 131072
L_C1 = LS
L_WT = LS + 16384
L_SCR = LS + 24576
L_CS, L_ST, L_CNT, L_W256, L_DUM = L_SCR, L_SCR + 1024, L_SCR + 3072, L_SCR + 4096, L_SCR + 6144
XSLOT = [LB, LB + 16384, LB + 32768, LB + 49152, LA, LA + 16384, LA + 32768, LA + 49152]

vLANE, vL16, vC, vQ, vTAG, vCNT = 1, 2, 3, 4, 5, 25
vGO, vR0, vR1, vYW, vZB = 0, 22, 23, 21, 124
C_WA2, C_CSA, C_WB1, C_WB2, C_CSB, C_ST, C_WT, C_F, C_E1, C_L1, C_GY, C_FA, C_FB, C_HB = 0, 4, 8, 12, 16, 20, 24, 28, 32, 36, 40, 44, 48, 52


def srd(n):
    return "s[%d:%d]" % (n, n + 3)


def gen():
    k = K(NAME)
    e = k.e
    tail = []
    FS, ENC = P("FS", 0), P("ENC", 0)
    _stamp = k.stamp

    def stamp_n(i, real=False):
        if ENC:
            if i == 1 or i == ENC:
                _stamp(i, True)
            return
        if FS and 2 <= i <= 13:
            return
        _stamp(i, real)
    k.stamp = stamp_n

    def fs(mode, i):
        if FS == mode:
            _stamp(i)

    side = deque()
    sch = {"gap": 3, "n": 0, "lds": deque()}

    def mfma(d, a, b, c=None):
        e("v_mfma_f32_16x16x32_bf16 %s, %s, %s, %s" % (d, a, b, c if c is not None else d))

    def mf(d, a, b, c=None):
        mfma(d, a, b, c)
        sch["n"] += 1
        for _ in range(P("NL", 1)):
            if sch["lds"]:
                sch["lds"].popleft()()
        if side and sch["n"] % sch["gap"] == 0:
            side.popleft()()

    def mf32(d, a, b, c):
        e("v_mfma_f32_32x32x16_bf16 %s, %s, %s, %s" % (d, a, b, c))
        for _ in range(P("NL32", 3)):
            if sch["lds"]:
                sch["lds"].popleft()()
        sch["n"] += 2
        if side and sch["n"] % max(2, sch["gap"] // 2 * 2) == 0:
            side.popleft()()

    def flush_lds():
        while sch["lds"]:
            sch["lds"].popleft()()

    def flush_side():
        flush_lds()
        while side:
            side.popleft()()

    def run(items):
        for f in items:
            f()

    def bf16_round(v):
        e("v_cvt_pk_bf16_f32 v%d, v%d, v%d" % (v, v, v))
        e("v_lshlrev_b32 v%d, 16, v%d" % (v, v))

    def publish_lines(soff):
        return ["    s_mov_b64 exec, 1",
                "    buffer_store_dword v%d, off, %s, %s sc1" % (vTAG, srd(SWS), soff),
                "    s_mov_b64 exec, -1"]

    def publish(soff):
        k.lines.extend(publish_lines(soff))
        k.vm.issue("flag")

    pollno = [0]

    def poll_ld(vaddr, soff, vt):
        return "buffer_load_dword v%d, v%d, %s, %s offen sc1" % (vt, vaddr, srd(SWS), soff)

    def poll_issue(tag, vaddr, soff, vt):
        e(poll_ld(vaddr, soff, vt))
        k.vm.issue(tag)

    def poll_check(tag, vaddr, soff, vt, pre=(), slp=None):
        n = pollno[0]
        pollno[0] += 1
        k.wait_vm(tag)
        e("v_cmp_ne_u32 vcc, v%d, v%d" % (vt, vTAG))
        e("s_cmp_lg_u64 vcc, 0")
        e("s_cbranch_scc1 L_slow%d" % n)
        k.lab("L_back%d" % n)
        tail.append("L_slow%d:" % n)
        tail.extend(pre)
        tail.extend(["    s_mov_b32 s%d, 0" % sCNT,
                     "L_spin%d:" % n,
                     "    s_sleep %d" % (P("SLP", 8) if slp is None else slp),
                     "    s_mov_b64 exec, vcc",
                     "    " + poll_ld(vaddr, soff, vt),
                     "    s_mov_b64 exec, -1",
                     "    s_waitcnt vmcnt(0)",
                     "    v_cmp_ne_u32 vcc, v%d, v%d" % (vt, vTAG),
                     "    s_cmp_lg_u64 vcc, 0",
                     "    s_cbranch_scc0 L_back%d" % n,
                     "    s_add_u32 s%d, s%d, 1" % (sCNT, sCNT),
                     "    s_cmp_lt_u32 s%d, 0x40000" % sCNT,
                     "    s_cbranch_scc1 L_spin%d" % n,
                     "    s_branch L_back%d" % n])

    gbn = [0]

    def gwait_lines(off, target):
        n = gbn[0]
        gbn[0] += 1
        chk = ["    ds_read_b32 v19, v%d offset:%d" % (vCNT, off),
               "    s_waitcnt lgkmcnt(0)",
               "    v_readfirstlane_b32 s%d, v19" % sT0,
               "    s_cmp_lt_u32 s%d, %s" % (sT0, target)]
        tail.append("L_gs%d:" % n)
        tail.append("    s_mov_b32 s%d, 0x400000" % sCNT)
        tail.append("L_gb%d:" % n)
        tail.append("    s_sub_u32 s%d, s%d, 1" % (sCNT, sCNT))
        tail.append("    s_cbranch_scc1 L_gx%d" % n)
        tail.append("    s_sleep %d" % (4 if off == C_WT else 1))
        tail.extend(chk)
        tail.append("    s_cbranch_scc1 L_gb%d" % n)
        tail.append("    s_branch L_gx%d" % n)
        return chk + ["    s_cbranch_scc1 L_gs%d" % n, "L_gx%d:" % n]

    def garrive_lines(off):
        return ["    v_mov_b32 v19, 1",
                "    s_mov_b64 exec, 1",
                "    ds_add_u32 v%d, v19 offset:%d" % (vCNT, off),
                "    s_mov_b64 exec, -1"]

    def garrive(off):
        k.lines.extend(garrive_lines(off))
        k.lg.issue("arr")

    def gwait(off, target="4"):
        k.lines.extend(gwait_lines(off, target))
        k.lg.clear()

    def gpeek(off, vt):
        e("ds_read_b32 v%d, v%d offset:%d" % (vt, vCNT, off))
        k.lg.issue(("pk", off))

    def gcheck(off, vt):
        n = gbn[0]
        slow = gwait_lines(off, "4")
        k.wait_lg(("pk", off))
        e("v_readfirstlane_b32 s%d, v%d" % (sT0, vt))
        e("s_cmp_lt_u32 s%d, 4" % sT0)
        e("s_cbranch_scc1 L_gs%d" % n)
        k.lab("L_gx%d" % n)

    def flag_voff(vv, n):
        e("v_min_u32 v19, %d, v%d" % (n, vLANE))
        e("v_lshrrev_b32 v%d, 2, v19" % vv)
        e("v_lshlrev_b32 v%d, 7, v%d" % (vv, vv))
        e("v_and_b32 v19, 3, v19")
        e("v_lshl_add_u32 v%d, v19, 2, v%d" % (vv, vv))

    def xread_addr(v0_):
        e("v_lshrrev_b32 v19, 1, v%d" % vC)
        e("v_xor_b32 v19, v19, v%d" % vQ)
        e("v_lshlrev_b32 v19, 4, v19")
        e("v_lshl_add_u32 v19, v%d, 7, v19" % vC)
        e("s_lshl_b32 s%d, s%d, 12" % (sT0, sRW))
        e("v_add_u32 v%d, s%d, v19" % (v0_, sT0))
        e("v_xor_b32 v%d, 64, v%d" % (v0_ + 1, v0_))
        e("v_add_u32 v%d, 0x%x, v%d" % (v0_ + 2, LB, v0_))
        e("v_add_u32 v%d, 0x%x, v%d" % (v0_ + 3, LB, v0_ + 1))

    def xread(dst, v0_, kk, u, ks, tag):
        hi = XSLOT[kk] >= LB
        e("ds_read_b128 %s, v%d offset:%d" % (dst, v0_ + ks + (2 if hi else 0), XSLOT[kk] % 65536 + u * 2048))
        k.lg.issue(tag)

    def tag_setup():
        e("s_waitcnt lgkmcnt(0)")
        k.lg.clear()
        e("s_add_u32 s%d, s%d, 0x%x" % (sTAG, sTAG, TAGC))
        e("v_mov_b32 v%d, s%d" % (vTAG, sTAG))

    def late_setup(hf):
        e("v_lshrrev_b32 v19, 2, v%d" % vC)
        e("v_lshl_add_u32 v19, v%d, 2, v19" % vQ)
        e("v_bfe_u32 v30, v19, 1, 2")
        e("v_lshlrev_b32 v19, 7, v19")
        e("v_and_b32 v31, 1, v%d" % vC)
        e("v_lshl_add_u32 v19, v31, 3, v19")
        e("v_lshlrev_b32 v30, 1, v30")
        e("v_bfe_u32 v31, v%d, 1, 1" % vC)
        e("v_or_b32 v30, v30, v31")
        e("v_lshl_add_u32 v%d, v30, 4, v19" % vZB)
        e("v_lshrrev_b32 v19, 3, v%d" % vLANE)
        if hf:
            e("v_add_u32 v19, 8, v19")
        e("v_and_b32 v30, 7, v%d" % vLANE)
        e("v_lshlrev_b32 v%d, 15, v19" % vGO)
        e("v_lshl_add_u32 v%d, v30, 4, v%d" % (vGO, vGO))
        e("v_lshlrev_b32 v30, 1, v30")
        e("v_xor_b32 v30, v30, v19")
        e("v_lshlrev_b32 v30, 4, v30")
        e("v_lshl_add_u32 v30, v19, 8, v30")
        e("s_lshl_b32 s%d, s%d, 12" % (sT0, sRW))
        e("v_add_u32 v%d, s%d, v30" % (vR0, sT0))
        e("v_xor_b32 v%d, 16, v%d" % (vR1, vR0))
        e("v_xor_b32 v%d, v%d, v%d" % (vYW, vQ, vC))
        e("v_lshlrev_b32 v%d, 4, v%d" % (vYW, vYW))
        e("v_lshl_add_u32 v%d, v%d, 8, v%d" % (vYW, vC, vYW))
        e("s_lshl_b32 s%d, s%d, 19" % (sXO, sWP))
        e("s_lshl2_add_u32 s%d, s%d, s%d" % (sT0, sA, sRW))
        e("s_lshl_b32 s%d, s%d, 10" % (sT0, sT0))
        e("s_add_u32 s%d, s%d, s%d" % (sXO, sXO, sT0))
        e("s_lshl_b32 s%d, s%d, 7" % (sT0, sDB))
        e("s_add_u32 s%d, s%d, s%d" % (sXO, sXO, sT0))
    XV = 248

    def xe_load():
        e("buffer_load_dwordx4 %s, v%d, %s, s%d offen" % (vr(XV, 4), vGO, srd(SX), sXO))
        k.vm.issue("xe")

    e("s_cmp_ge_u32 s2, 256")
    e("s_cbranch_scc1 L_done")
    k.stamp(0)
    k.stamp(1, real=True)
    e("s_load_dwordx2 s[%d:%d], s[0:1], 0" % (SX, SX + 1))
    e("s_load_dwordx2 s[%d:%d], s[0:1], 32" % (SW1, SW1 + 1))
    e("s_load_dwordx2 s[%d:%d], s[0:1], 64" % (SWS, SWS + 1))
    e("s_load_dwordx2 s[%d:%d], s[0:1], 8" % (SWR, SWR + 1))
    e("s_load_dwordx2 s[%d:%d], s[0:1], 16" % (SWI, SWI + 1))
    e("s_load_dwordx2 s[%d:%d], s[0:1], 40" % (SW2, SW2 + 1))
    e("s_load_dwordx2 s[%d:%d], s[0:1], 48" % (SOUT, SOUT + 1))
    e("v_lshrrev_b32 v19, 6, v0")
    e("s_getpc_b64 s[%d:%d]" % (sT1, sT2))
    k.lab("L_pc")
    e("s_andn2_b32 s%d, s2, 7" % sT0)
    e("v_add_lshl_u32 v20, v19, s%d, 7" % sT0)
    e("v_min_u32 v20, L_end-L_pc-4, v20")
    e("v_mov_b32 v21, s%d" % sT2)
    e("v_add_co_u32 v20, vcc, s%d, v20" % sT1)
    e("v_readfirstlane_b32 s%d, v19" % sHF)
    e("v_and_b32 v%d, 63, v0" % vLANE)
    e("v_addc_co_u32 v21, vcc, 0, v21, vcc")
    e("global_load_dword v247, v[20:21], off")
    k.vm.issue("touch")
    for s_, nb in ((SX, X_BYTES), (SWR, W_BYTES), (SWI, W_BYTES), (SW1, W1_BYTES), (SW2, W1_BYTES), (SOUT, X_BYTES), (SWS, WS_BYTES)):
        e("s_mov_b32 s%d, 0x%x" % (s_ + 2, nb))
        e("s_mov_b32 s%d, 0x00020000" % (s_ + 3))
    e("v_and_b32 v%d, 15, v0" % vC)
    e("v_bfe_u32 v%d, v0, 4, 2" % vQ)
    e("v_lshlrev_b32 v%d, 4, v%d" % (vL16, vLANE))
    e("v_mov_b32 v%d, 0x%x" % (vCNT, L_CNT))
    e("s_and_b32 s%d, s2, 7" % sA)
    e("s_lshr_b32 s%d, s2, 6" % sWP)
    e("s_bfe_u32 s%d, s2, 0x30003" % sDB)
    e("s_and_b32 s%d, s%d, 3" % (sRW, sHF))
    e("s_lshr_b32 s%d, s%d, 1" % (sPB, sA))
    e("s_lshl2_add_u32 s%d, s%d, s%d" % (sPB, sPB, sWP))
    e("s_and_b32 s%d, s%d, 1" % (sT0, sA))
    e("s_lshl3_add_u32 s%d, s%d, s%d" % (sCBK, sT0, sDB))
    e("s_lshl1_add_u32 s%d, s%d, s%d" % (sR, sWP, sDB))
    if P("ROT", 44) == 44:
        e("s_add_u32 s%d, s%d, s%d" % (sR, sWP, sDB))
        e("s_and_b32 s%d, s%d, 1" % (sR, sR))
        e("s_lshl_b32 s%d, s%d, 2" % (sR, sR))
    elif P("ROT", 44) == 66:
        e("s_add_u32 s%d, s%d, s%d" % (sR, sWP, sDB))
        e("s_and_b32 s%d, s%d, 3" % (sR, sR))
        e("s_lshl_b32 s%d, s%d, 1" % (sR, sR))
    else:
        e("s_and_b32 s%d, s%d, %d" % (sR, sR, P("ROT", 44)))
    e("s_lshl2_add_u32 s%d, s%d, s%d" % (sRS, sPB, sRW))
    e("s_lshr_b32 s%d, s%d, 1" % (sA, sPB))
    e("s_and_b32 s%d, s%d, 1" % (sT3, sPB))
    e("s_lshl1_add_u32 s%d, s%d, s%d" % (sWP, sT3, sT0))
    e("s_lshr_b32 s%d, s%d, 2" % (sHF, sHF))
    e("s_cbranch_scc1 L_fft")
    q_vm = list(k.vm.q)

    sXB, sM4, sM2, sHS, sFH, sHB, sFHC, sW2B = 48, 57, 58, 59, 60, 61, 62, 63
    TV = [50, 51, 52, 53, 54, 55, 56]
    sRSW, sCG, sRB = sPB, sHF, sCBK
    e("s_lshl_b32 s%d, s%d, 20" % (sXB, sT3))
    e("s_lshl2_add_u32 s%d, s%d, s%d" % (sT1, sA, sRW))
    e("s_lshl_b32 s%d, s%d, 10" % (sT1, sT1))
    e("s_add_u32 s%d, s%d, s%d" % (sXB, sXB, sT1))
    e("v_lshrrev_b32 v10, 3, v%d" % vLANE)
    e("v_and_b32 v12, 7, v%d" % vLANE)
    e("v_xor_b32 v6, v12, v%d" % vQ)
    e("v_lshlrev_b32 v6, 4, v6")
    e("v_lshl_add_u32 v6, v10, 15, v6")
    e("v_xor_b32 v7, 64, v6")
    e("v_add_u32 v7, 0x40000, v7")
    e("s_lshl_b32 s%d, s%d, 12" % (sM4, sRW))
    e("s_lshl_b32 s%d, s%d, 11" % (sM2, sRW))
    e("s_sub_u32 s%d, s%d, s%d" % (sF0, sCBK, sT0))
    e("s_lshl_b32 s%d, s%d, 8" % (sF0, sF0))
    e("s_cmp_eq_u32 s%d, 7" % sDB)
    e("s_cselect_b32 s%d, 0x%x, s%d" % (sF0, 0x08000000, sF0))
    e("s_waitcnt lgkmcnt(0)")
    e("s_load_dword s%d, s[%d:%d], 0x%x" % (sTAG, SWS, SWS + 1, EPOCH_OFF))

    def xdma(kk):
        def item(ee):
            def f():
                e("s_add_u32 m0, s%d, %d" % (sM4, XSLOT[kk] + ee * 1024))
                if ee == 0:
                    e("s_add_u32 s%d, s%d, %d" % (sXT, sR, kk))
                    e("s_and_b32 s%d, s%d, 7" % (sXT, sXT))
                    e("s_lshl_b32 s%d, s%d, 7" % (sXT, sXT))
                    e("s_add_u32 s%d, s%d, s%d" % (sXT, sXT, sXB))
                elif ee == 2:
                    e("s_add_u32 s%d, s%d, 0x80000" % (sXT, sXT))
                else:
                    k.nop(1)
                e("buffer_load_dwordx4 v%d, %s, s%d offen lds" % (6 + (ee & 1), srd(SX), sXT))
                k.vm.issue(("X", kk))
            return f
        return [item(ee) for ee in range(4)]

    def w1dma(reg, kk):
        off = " offset:128" if reg else ""
        lb = (LA - 128 if reg else LB) + kk * 8192

        def f0():
            e("s_add_u32 s%d, s%d, %d" % (sDT, sR, kk))
            e("s_and_b32 s%d, s%d, 7" % (sDT, sDT))
            e("s_mul_i32 s%d, s%d, %d" % (sDT, sDT, 64 * 3584))
            e("s_add_u32 m0, s%d, %d" % (sM2, lb + 128))
            e("s_add_u32 s%d, s%d, s%d" % (sDT, sDT, sF0))
            if reg:
                e("s_add_u32 s%d, s%d, 128" % (sDT, sDT))
            else:
                e("s_add_u32 m0, s%d, %d" % (sM2, lb))
                k.nop(1)
            e("buffer_load_dwordx4 v8, %s, s%d offen lds" % (srd(SW1), sDT))
            k.vm.issue(("W1", reg, kk))

        def f1():
            e("s_add_u32 m0, s%d, %d" % (sM2, (LA if reg else LB) + kk * 8192 + 1024))
            k.nop(1)
            e("buffer_load_dwordx4 v9, %s, s%d offen lds" % (srd(SW1), sDT))
            k.vm.issue(("W1", reg, kk))
        return [f0, f1]

    def mtouch(sr_):
        e("s_lshl2_add_u32 s%d, s2, s%d" % (sT0, sRW))
        e("s_mul_i32 s%d, s%d, %d" % (sT0, sT0, 14 * 128))
        e("v_lshlrev_b32 v19, 7, v%d" % vLANE)
        e("s_mov_b32 m0, 0x%x" % L_DUM)
        e("s_mov_b64 exec, 0x3fff")
        e("buffer_load_dword v19, %s, s%d offen lds" % (srd(sr_), sT0))
        k.vm.issue("touch")
        e("s_mov_b64 exec, -1")
    T1P, T2P = P("T1P", 1), P("T2P", 4)

    def touches(pos):
        if T1P == pos:
            mtouch(SW1)
        if T2P == pos:
            mtouch(SW2)
    run(xdma(0))
    touches(0)
    run(xdma(1))
    touches(1)
    k.stamp(2)
    e("s_lshl_b32 s%d, s%d, 4" % (sT0, sRW))
    e("v_add_u32 v11, s%d, v10" % sT0)
    e("v_mul_u32_u24 v11, 3584, v11")
    e("v_and_b32 v13, 1, v%d" % vQ)
    e("v_lshlrev_b32 v13, 1, v13")
    e("v_xor_b32 v13, v13, v12")
    e("v_lshl_add_u32 v8, v13, 4, v11")
    e("v_xor_b32 v13, 4, v13")
    e("v_lshl_add_u32 v9, v13, 4, v11")
    e("v_add_u32 v9, %d, v9" % (8 * 3584))
    vWS, vWW, vWR, vD2 = 15, 14, 13, 24
    e("v_lshlrev_b32 v15, 13, v10")
    e("v_lshl_add_u32 v15, v12, 4, v15")
    e("s_lshl_b32 s%d, s%d, 1" % (sT0, sRW))
    e("v_xor_b32 v14, s%d, v12" % sT0)
    e("v_lshlrev_b32 v14, 4, v14")
    e("v_lshl_add_u32 v14, v%d, 7, v14" % vLANE)
    e("v_add_u32 v14, 0x%x, v14" % L_WT)
    e("v_xor_b32 v13, v10, v12")
    e("v_lshlrev_b32 v13, 4, v13")
    e("v_lshl_add_u32 v13, v10, 7, v13")
    e("s_add_u32 s%d, s%d, 0x%x" % (sT0, sM2, L_WT))
    e("v_add_u32 v13, s%d, v13" % sT0)
    e("v_lshlrev_b32 v19, 1, v%d" % vQ)
    e("v_xor_b32 v19, v19, v12")
    e("v_lshlrev_b32 v19, 4, v19")
    e("v_lshl_add_u32 v%d, v10, 10, v19" % vD2)
    xread_addr(26)
    e("v_mov_b32 v19, 0")
    e("v_lshl_add_u32 v30, v%d, 2, v%d" % (vC, vCNT))
    e("ds_write_b32 v30, v19")
    XF, AF, ACC, HO, CS, ONES = 128, 32, 64, 32, 112, 116
    TRB = [16, 17, 18, 20]
    e("v_lshrrev_b32 v19, 2, v%d" % vC)
    e("v_lshl_add_u32 v30, v%d, 3, v19" % vQ)
    e("v_lshlrev_b32 v30, 7, v30")
    e("v_and_b32 v31, 1, v%d" % vC)
    e("v_lshl_add_u32 v30, v31, 3, v30")
    e("v_bfe_u32 v19, v%d, 3, 1" % vC)
    e("v_and_b32 v31, 1, v%d" % vQ)
    e("v_lshl_or_b32 v19, v31, 1, v19")
    e("v_lshlrev_b32 v19, 1, v19")
    e("v_bfe_u32 v31, v%d, 1, 1" % vC)
    e("v_or_b32 v19, v19, v31")
    e("v_lshl_add_u32 v30, v19, 4, v30")
    e("v_add_u32 v30, 0x%x, v30" % LB)
    for l in range(4):
        e("v_xor_b32 v%d, %d, v30" % (TRB[l], 32 * l))
    vCSA, RN, C1 = 99, 120, [108, 112, 116, 124]
    TR2 = [100, 101, 102, 103]
    HV = [104, 105, 106, 107]
    vFH = 106
    def setup_a():
        e("v_lshlrev_b32 v%d, 4, v%d" % (vCSA, vQ))
        e("v_add_u32 v%d, 0x%x, v%d" % (vCSA, L_CS, vCSA))
        e("s_lshl_b32 s%d, s%d, 9" % (sT0, sRW))
        e("s_add_u32 s%d, s%d, 0x%x" % (sT0, sT0, L_ST))
        e("v_lshl_add_u32 v96, v%d, 2, s%d" % (vC, sT0))
        e("s_mul_i32 s%d, s%d, %d" % (sHB, sRS, 2 * 56 * 1024))
        e("s_add_u32 s%d, s%d, 0x%x" % (sHB, sHB, H_OFF))
        e("s_lshl4_add_u32 s%d, s%d, s%d" % (sHS, sF0, sHB))
        e("s_and_b32 s%d, s2, 1" % sT2)
        e("s_lshl1_add_u32 s%d, s%d, s%d" % (sFHC, sPB, sT2))
        e("s_lshl2_add_u32 s%d, s%d, s%d" % (sFHC, sFHC, sRW))
        e("s_lshl_b32 s%d, s%d, 7" % (sFHC, sFHC))
        e("s_add_u32 s%d, s%d, 0x%x" % (sFHC, sFHC, FH_OFF))
        e("s_lshl2_add_u32 s%d, s%d, s%d" % (sFH, sDB, sFHC))
        e("s_mul_i32 s%d, s%d, 7" % (sT0, sT2))
        e("s_lshr_b32 s%d, s2, 6" % sT1)
        e("s_lshl1_add_u32 s%d, s%d, s%d" % (sT1, sT1, sDB))
        e("s_and_b32 s%d, s%d, 7" % (sT1, sT1))
        e("s_cmp_eq_u32 s%d, 7" % sT1)
        e("s_cselect_b32 s%d, 0, s%d" % (sT1, sT1))
        for i in range(7):
            e("s_add_u32 s%d, s%d, s%d" % (TV[i], sT1, sT0))
            if i < 6:
                e("s_add_u32 s%d, s%d, 1" % (sT1, sT1))
                e("s_cmp_eq_u32 s%d, 7" % sT1)
                e("s_cselect_b32 s%d, 0, s%d" % (sT1, sT1))
        e("s_lshl_b32 s%d, s%d, 7" % (sW2B, sDB))
        e("s_lshl_b32 s%d, s%d, 14" % (sT0, sRW))
        e("s_add_u32 s%d, s%d, s%d" % (sW2B, sW2B, sT0))
        e("s_mul_i32 s%d, s%d, %d" % (sT0, sT2, 56 * 1024))
        e("v_add_u32 v%d, s%d, v%d" % (HV[0], sT0, vL16))
        e("s_sub_u32 s%d, %d, s%d" % (sT0, 56 * 1024, sT0))
        e("v_add_u32 v%d, s%d, v%d" % (HV[1], sT0, vL16))
        e("v_min_u32 v19, 6, v%d" % vLANE)
        e("v_lshlrev_b32 v%d, 2, v19" % vFH)
        late_setup(0)
        e("v_add_u32 v30, 0x%x, v%d" % (LB, vZB))
        for l in range(4):
            e("v_xor_b32 v%d, %d, v30" % (TR2[l], 32 * l))

    setup_a()
    run(xdma(2))
    run(xdma(3))
    touches(2)
    tag_setup()
    k.stamp(3)

    def X(u, T):
        return vr(XF + (T * 2 + u) * 4, 4)

    WR16 = 64

    def wloads():
        items = []

        def head():
            e("s_lshr_b32 s%d, s2, 5" % sRSW)
            e("s_and_b32 s%d, s2, 7" % sT1)
            e("s_lshl3_add_u32 s%d, s%d, s%d" % (sRSW, sT1, sRSW))
            e("s_and_b32 s%d, s%d, 3" % (sCG, sDB))
            e("s_lshr_b32 s%d, s%d, 4" % (sT1, sRSW))
            e("s_lshl_b32 s%d, s%d, 4" % (sT1, sT1))
            e("s_lshl1_add_u32 s%d, s%d, s%d" % (sT1, sRW, sT1))
            e("s_and_b32 s%d, s%d, 1" % (sT2, sRSW))
            e("s_lshl3_add_u32 s%d, s%d, s%d" % (sT1, sT2, sT1))
            e("s_bfe_u32 s%d, s%d, 0x30001" % (sT2, sRSW))
            e("s_lshl_b32 s%d, s%d, 8" % (sT2, sT2))
            e("s_add_u32 s%d, s%d, s%d" % (sT1, sT1, sT2))
            e("s_mul_i32 s%d, s%d, 514" % (sT1, sT1))
            e("s_lshl_b32 s%d, s%d, 7" % (sT4, sCG))
            e("s_add_u32 s%d, s%d, s%d" % (sT4, sT4, sT1))
            e("v_lshlrev_b32 v11, 1, v%d" % vLANE)
            e("v_and_b32 v19, 3, v%d" % vLANE)
            e("v_mul_u32_u24 v19, 32896, v19")
            e("v_bfe_u32 v30, v%d, 2, 1" % vLANE)
            e("v_mul_u32_u24 v30, 514, v30")
            e("v_add_u32 v19, v19, v30")
            e("s_cmp_eq_u32 s%d, 3" % sCG)
            e("s_cselect_b32 s%d, s%d, 0x%x" % (sT1, sT1, OOB))
            e("buffer_load_ushort v120, v19, %s, s%d offen offset:512" % (srd(SWR), sT1))
            k.vm.issue("wg")
            e("buffer_load_ushort v121, v19, %s, s%d offen offset:512" % (srd(SWI), sT1))
            k.vm.issue("wg")
        items.append(head)
        nt = " nt" if P("NTW", 0) else ""
        for r in range(4):
            def f(r=r):
                if r:
                    e("s_add_u32 s%d, s%d, 32896" % (sT4, sT4))
                for cb in range(2):
                    for arr, sr_ in ((0, SWR), (1, SWI)):
                        e("buffer_load_ushort v%d, v11, %s, s%d offen offset:%d%s" % (WR16 + 8 * cb + 4 * arr + r, srd(sr_), sT4, 514 * cb, nt))
                        k.vm.issue("wg")
            items.append(f)
        return items

    def wt_a():
        k.wait_vm("wg")
        for cb in range(2):
            for r in range(4):
                e("v_lshl_or_b32 v%d, v%d, 16, v%d" % (WR16 + 8 * cb + r, WR16 + 8 * cb + 4 + r, WR16 + 8 * cb + r))
        e("v_lshl_or_b32 v120, v121, 16, v120")
        e("ds_write_b128 v%d, %s" % (vWW, vr(WR16, 4)))
        k.lg.issue("wtw")
        e("v_xor_b32 v19, 16, v%d" % vWW)
        e("ds_write_b128 v19, %s" % vr(WR16 + 8, 4))
        k.lg.issue("wtw")
        e("s_lshl_b32 s%d, s%d, 5" % (sT0, sRW))
        e("s_add_u32 s%d, s%d, 0x%x" % (sT0, sT0, L_W256))
        e("v_lshl_add_u32 v19, v%d, 2, s%d" % (vLANE, sT0))
        e("s_mov_b64 exec, 0xff")
        e("ds_write_b32 v19, v120")
        k.lg.issue("wtw")
        e("s_mov_b64 exec, -1")

    def wt_b():
        for h in range(2):
            e("ds_read_b128 %s, v%d offset:%d" % (vr(WR16 + 4 * h, 4), vWR, 1024 * h))
            k.lg.issue("wtr")
        e("v_add_u32 v19, 0x%x, v%d" % (L_W256, vL16))
        e("ds_read_b128 %s, v19" % vr(WR16 + 8, 4))
        k.lg.issue("wtr")

    def wt_c():
        k.wait_lg("wtr")
        e("s_lshl2_add_u32 s%d, s%d, s%d" % (sT2, sCG, sRW))
        e("s_lshl_b32 s%d, s%d, 17" % (sT0, sT2))
        e("s_lshl_b32 s%d, s%d, 7" % (sT1, sRSW))
        e("s_add_u32 s%d, s%d, s%d" % (sT0, sT0, sT1))
        e("s_add_u32 s%d, s%d, 0x%x" % (sT0, sT0, WT_OFF))
        e("buffer_store_dwordx4 %s, v%d, %s, s%d offen sc1" % (vr(WR16, 4), vWS, srd(SWS), sT0))
        k.vm.issue("wtst")
        e("s_add_u32 s%d, s%d, 0x10000" % (sT0, sT0))
        e("buffer_store_dwordx4 %s, v%d, %s, s%d offen sc1" % (vr(WR16 + 4, 4), vWS, srd(SWS), sT0))
        k.vm.issue("wtst")
        e("s_add_u32 s%d, s%d, 0x%x" % (sT1, sT1, WT_OFF + 256 * 8192))
        e("s_cmp_eq_u32 s%d, 12" % sT2)
        e("s_cselect_b32 s%d, s%d, 0x%x" % (sT1, sT1, OOB))
        e("s_mov_b64 exec, 0xff")
        e("buffer_store_dwordx4 %s, v%d, %s, s%d offen sc1" % (vr(WR16 + 8, 4), vL16, srd(SWS), sT1))
        k.vm.issue("wtst")
        e("s_mov_b64 exec, -1")

    def wt_d():
        e("s_lshl2_add_u32 s%d, s%d, s%d" % (sT2, sCG, sRW))
        e("s_lshr_b32 s%d, s%d, 2" % (sT1, sRSW))
        e("s_lshl4_add_u32 s%d, s%d, s%d" % (sT0, sT2, sT1))
        e("s_lshl_b32 s%d, s%d, 7" % (sT0, sT0))
        e("s_and_b32 s%d, s%d, 3" % (sT1, sRSW))
        e("s_lshl2_add_u32 s%d, s%d, s%d" % (sT0, sT1, sT0))
        e("s_add_u32 s%d, s%d, 0x%x" % (sT0, sT0, FW_OFF))
        e("s_add_u32 s%d, s%d, 0x%x" % (sT1, sT0, 4 * 2048))
        e("s_cmp_eq_u32 s%d, 12" % sT2)
        e("s_cselect_b32 s%d, s%d, 0x%x" % (sT1, sT1, OOB))
        k.wait_vm("wtst")
        publish("s%d" % sT0)
        publish("s%d" % sT1)
        e("s_mov_b32 s%d, 0" % sHF)

    def xstage(s_):
        for kk in (2 * s_, 2 * s_ + 1):
            for u in range(2):
                for ks in range(2):
                    xread(X(u, 2 * kk + ks), 26, kk, u, ks, ("XR", s_))
    WPOS = P("WPOS", -1)
    if WPOS < 0:
        run(wloads())
    for s_ in range(4):
        k.wait_vm(("X", 2 * s_ + 1))
        if s_:
            k.wait_lg([("XR", s_ - 1)] + (["wtw"] if s_ == WPOS + 3 else []))
        e("s_barrier")
        fs(6, 2 + s_)
        xstage(s_)
        if s_ == WPOS + 3:
            wt_b()
        if s_ < 2:
            run(xdma(4 + 2 * s_) + xdma(5 + 2 * s_))
        WAS = [int(x_) for x_ in os.environ.get("WAS", "0,0,4,8").split(",")]
        for kk in range(WAS[s_ - 1] if s_ else 0, WAS[s_]):
            run(w1dma(0, kk))
        if s_ == WPOS:
            run(wloads())
        touches(3 + s_)
        if s_ == WPOS + 2:
            wt_a()
        if s_ == WPOS + 3:
            wt_c()
    k.wait_vm([("W1", 0, kk) for kk in range(4)])
    k.wait_lg(("XR", 3))
    e("s_barrier")
    k.stamp(4)
    fs(6, 6)


    def rdA(reg, T):
        items = []
        for l in range(4):
            for hh in range(2):
                def f(l=l, hh=hh):
                    e("ds_read_b64_tr_b16 %s, v%d offset:%d" % (vr(AF + (T & 1) * 16 + 4 * l + 2 * hh, 2), TRB[l], T * 4096 + hh * 512))
                    k.lg.issue(("A", reg, T))
                items.append(f)
        return items

    WLE = P("WLE", 4)
    CFB = P("CFB", 10) if WLE else 14

    def gpass(reg, hooks, mid):
        fs(8 + reg, 2)
        run(rdA(reg, 0))
        for T in range(16):
            k.wait_lg(("A", reg, T))
            if T == 7:
                gcheck(mid, 107)
            if T == 6:
                gpeek(mid, 107)
            if T == (CFB if reg else 14):
                gpeek(C_FB if reg else C_FA, 107)
            if T == CFB and reg and WLE:
                gpeek(C_HB, 97)
            if T == 15 and reg == 0:
                gpeek(C_WB1, 97)
            if T == 0 and reg == 1:
                gpeek(C_CSA, 98)
            if T + 1 < 16:
                sch["lds"].extend(rdA(reg, T + 1))
            for l in range(4):
                a = vr(AF + (T & 1) * 16 + 4 * l, 4)
                if P("M32", 0):
                    c = vr(ACC + 16 * (l & 1), 16)
                    mf32(c, a, X(l >> 1, T), c if (T or l > 1) else "0")
                    continue
                for u in range(2):
                    c = vr(ACC + (l * 2 + u) * 4, 4)
                    mf(c, a, X(u, T), c if T else "0")
            flush_lds()
            run(hooks.get(T, []))
            if T < 11:
                fs(8 + reg, 3 + T)
        flush_side()

    def c1_fetch(reg):
        def f():
            gcheck(C_FB if reg else C_FA, 107)
            if reg == 0:
                for u in range(2):
                    e("ds_read2_b32 %s, v96 offset0:%d offset1:%d" % (vr(RN + 2 * u, 2), 32 + 16 * u, 16 * u))
                    k.lg.issue(("C1", reg))
            for l in range(4):
                e("ds_read_b128 %s, v%d offset:%d" % (vr(C1[l], 4), vCSA, 256 * reg + 64 * l))
                k.lg.issue(("C1", reg))
        return f

    def h_out(reg, cw, tag):
        garrive(cw)
        e("s_add_u32 s%d, s%d, %d" % (sT2, sHS, 2048 * reg))
        e("s_add_u32 s%d, s%d, %d" % (sT3, sHS, 2048 * reg + 56 * 1024))
        k.wait_lg(("C1", reg))
        for pr in range(2):
            for u in range(2):
                o = HO + (pr * 2 + u) * 4
                for l in (2 * pr, 2 * pr + 1):
                    a = ACC + (l * 2 + u) * 4
                    for r in (0, 2):
                        e("v_pk_fma_f32 %s, %s, %s, %s op_sel_hi:[1,0,1]" % (vr(a + r, 2), vr(C1[l] + r, 2), vr(RN + 2 * u, 2), vr(a + r, 2)))
                for l in (2 * pr, 2 * pr + 1):
                    a = ACC + (l * 2 + u) * 4
                    e("v_cvt_pk_bf16_f32 v%d, v%d, v%d" % (o + (l & 1) * 2, a, a + 1))
                    e("v_cvt_pk_bf16_f32 v%d, v%d, v%d" % (o + (l & 1) * 2 + 1, a + 2, a + 3))
                for i in range(4):
                    e("v_pk_max_i16 v%d, v%d, 0" % (o + i, o + i))
                HS = P("HS", 0)
                if HS != 1:
                    e("buffer_store_dwordx4 %s, v%d, %s, s%d offen offset:%d sc1" % (vr(o, 4), vL16, srd(SWS), sT2 + u, 1024 * pr))
                    k.vm.issue(tag)
                if HS:
                    e("buffer_store_dwordx4 %s, v%d, %s, s%d offen offset:%d" % (vr(o, 4), vL16, srd(SWS), sT2 + u, 1024 * pr))
                    k.vm.issue(tag)

    def land(reg, lo, hi, cw):
        def f():
            k.wait_vm([("W1", reg, kk) for kk in range(lo, hi)])
            garrive(cw)
        return f

    sch["gap"] = P("GAPA", 4)
    for kk in range(8):
        side.extend(w1dma(1, kk))
    ha = {P("LWA", 3): [land(0, 4, 8, C_WA2)], P("LB1", 11): [land(1, 0, 4, C_WB1)], P("WTD", 2): [wt_d], P("LB2", 13): [land(1, 4, 8, C_WB2)], 14: [c1_fetch(0)]}
    def w2l2(part, nparts):
        def f():
            n = 56 // nparts
            e("s_lshr_b32 s%d, s2, 3" % sT0)
            e("s_lshl2_add_u32 s%d, s%d, s%d" % (sT0, sT0, sRW))
            e("s_and_b32 s%d, s2, 1" % sT1)
            e("s_lshl_b32 s%d, s%d, 7" % (sT1, sT1))
            e("s_add_u32 s%d, s%d, s%d" % (sT0, sT0, sT1))
            e("s_mul_i32 s%d, s%d, %d" % (sT0, sT0, 56 * 128))
            e("v_lshlrev_b32 v19, 7, v%d" % vLANE)
            e("s_mov_b32 m0, 0x%x" % (L_DUM - part * n * 128 % 4096 * 0))
            m = ((1 << n) - 1) << (part * n)
            e("s_mov_b32 exec_lo, 0x%x" % (m & 0xffffffff))
            e("s_mov_b32 exec_hi, 0x%x" % (m >> 32))
            e("buffer_load_dword v19, %s, s%d offen lds" % (srd(SW2), sT0))
            k.vm.issue("touch")
            e("s_mov_b64 exec, -1")
        return f
    W2A = [int(x_) for x_ in os.environ.get("W2A", "").split(",") if x_]
    for i_, T_ in enumerate(W2A):
        ha.setdefault(T_, []).append(w2l2(i_, len(W2A)))
    gpass(0, ha, C_WA2)
    k.stamp(5)
    h_out(0, C_CSA, "ha")
    k.stamp(6)

    for l in range(4):
        e("v_subrev_u32 v%d, 0x%x, v%d" % (TRB[l], LB, TRB[l]))
    gcheck(C_WB1, 97)

    def w2_dma(late, j):
        lb = (LA if late else LB) + j * 8192

        def f0():
            e("s_add_u32 m0, s%d, %d" % (sM2, lb))
            e("s_lshl_b32 s%d, s%d, 17" % (sDT, TV[j]))
            e("s_add_u32 s%d, s%d, s%d" % (sDT, sDT, sW2B))
            if late:
                e("s_add_u32 s%d, s%d, 0x10000" % (sDT, sDT))
            e("buffer_load_dwordx4 v%d, %s, s%d offen lds" % (vD2, srd(SW2), sDT))
            k.vm.issue(("W2", late))

        def f1():
            e("s_add_u32 m0, s%d, %d" % (sM2, lb + 1024))
            e("s_add_u32 s%d, s%d, 8192" % (sDT, sDT))
            e("buffer_load_dwordx4 v%d, %s, s%d offen lds" % (vD2, srd(SW2), sDT))
            k.vm.issue(("W2", late))
        return [f0, f1]

    def rdW(n):
        items = []
        for l in range(4):
            for hh in range(2):
                def f(l=l, hh=hh):
                    e("ds_read_b64_tr_b16 %s, v%d offset:%d" % (vr(AF + (n & 1) * 16 + 4 * l + 2 * hh, 2), TR2[l], (n % 14) * 4096 + hh * 2048))
                    k.lg.issue(("W2R", n))
                items.append(f)
        return items

    def hload(n):
        late, m = n // 14, n % 14

        def item(u):
            def f():
                if u == 0 and m % 2 == 0:
                    e("s_lshl_b32 s%d, s%d, 12" % (sXT, TV[m // 2]))
                    e("s_add_u32 s%d, s%d, s%d" % (sXT, sXT, sHB))
                e("buffer_load_dwordx4 %s, v%d, %s, s%d offen offset:%d sc1" % (X(u, m), HV[u], srd(SWS), sXT, 2048 * late + 1024 * (m & 1)))
                k.vm.issue(("H", n))
            return f
        return [item(0), item(1)]

    def pubHA():
        k.wait_vm("ha")
        publish("s%d" % sFH)
        e("s_add_u32 s%d, s%d, 0x%x" % (sFH, sFH, FHB_D))

    def landW(late, cw):
        def f():
            k.wait_vm(("W2", late))
            garrive(cw)
        return f
    hb = {T: [] for T in range(16)}
    hb[P("W2T0", 0)].append(lambda: gcheck(C_CSA, 98))
    hb[P("W2T0", 0)].append(lambda: [side.extend(w2_dma(0, j)) for j in range(7)])
    hb[CFB].append(c1_fetch(1))
    if WLE:
        hb[8].append(lambda: garrive(C_HB))
        hb[CFB].append(lambda: gcheck(C_HB, 97))
        hb[CFB].append(lambda: [side.extend(w2_dma(1, j)) for j in range(WLE)])
    hb[P("PHA", 3)].append(pubHA)
    HLA = P("HLA", 6)
    HE = P("HE", 17)
    hb[min(HE - 2, P("PPA", 12))].append(lambda: poll_issue("ph", vFH, "s%d" % sFHC, 31))
    if HE < 16:
        def hearly():
            poll_check("ph", vFH, "s%d" % sFHC, 31)
            for n in range(HLA):
                side.extend(hload(n))
            sch["gap"] = 2
        hb[HE].append(hearly)

    def w2touch():
        e("s_lshr_b32 s%d, s2, 6" % sT0)
        e("s_lshl2_add_u32 s%d, s%d, s%d" % (sT0, sT0, sRW))
        e("s_mul_i32 s%d, s%d, 28" % (sT0, sT0))
        e("v_add_u32 v19, s%d, v%d" % (sT0, vLANE))
        e("v_and_b32 v30, 0xffc0, v19")
        e("v_add3_u32 v19, v19, v30, 64")
        e("v_lshlrev_b32 v19, 10, v19")
        e("s_and_b32 s%d, s2, 1" % sT0)
        e("s_mul_i32 s%d, s%d, %d" % (sT0, sT0, 896 * 1024))
        e("s_lshl_b32 s%d, s%d, 7" % (sT1, sDB))
        e("s_add_u32 s%d, s%d, s%d" % (sT0, sT0, sT1))
        e("s_mov_b32 m0, 0x%x" % L_DUM)
        e("s_mov_b64 exec, 0xfffffff")
        e("buffer_load_dword v19, %s, s%d offen lds" % (srd(SW2), sT0))
        k.vm.issue("touch")
        e("s_mov_b64 exec, -1")
    if P("W2L", 99) < 16:
        hb[P("W2L", 99)].append(w2touch)
    hb[P("LE1", 13)].append(landW(0, C_E1))
    sch["gap"] = P("GAPB", 4)
    gpass(1, hb, C_WB2)
    k.stamp(7)
    fs(10, 2)
    if HE == 16:
        poll_check("ph", vFH, "s%d" % sFHC, 31)
        fs(10, 3)
        for n in range(HLA):
            run(hload(n))
    fs(10, 4)
    gpeek(C_E1, 97)
    h_out(1, C_CSB, "hb")
    fs(10, 5)
    if HE == 17:
        poll_check("ph", vFH, "s%d" % sFHC, 31, pre=["    s_waitcnt vmcnt(0)"] + publish_lines("s%d" % sFH))
        for n in range(HLA):
            run(hload(n))
    k.stamp(8)
    gcheck(C_E1, 97)
    run(rdW(0))
    gpeek(C_CSB, 98)
    sch["gap"] = P("GAP3", 2)
    fs(7, 2)
    fs(10, 6)
    LCH = 14 - P("LLA", 5)
    nxt = HLA
    wl = [it for j in range(WLE, 7) for it in w2_dma(1, j)]
    for n in range(28):
        k.wait_lg(("W2R", n))
        if n == LCH:
            poll_check("phb", vFH, "s%d" % sFHC, 31)
        lim = 14 if n < LCH else 28
        cnt = 0
        while nxt < min(lim, n + 1 + HLA) and nxt - 14 < n and cnt < 2:
            side.extend(hload(nxt))
            nxt += 1
            cnt += 1
        if n == 0:
            gcheck(C_CSB, 98)
        if wl:
            side.extend(wl[:2])
            wl = wl[2:]
        k.wait_vm(("H", n))
        if n == P("PHB", 0):
            k.wait_vm("hb")
            publish("s%d" % sFH)
        if n == LCH - P("PPB", 1):
            e("s_add_u32 s%d, s%d, 0x%x" % (sFHC, sFHC, FHB_D))
            poll_issue("phb", vFH, "s%d" % sFHC, 31)
        if n == 10:
            landW(1, C_L1)()
        if n == 12:
            gpeek(C_L1, 107)
        if n == P("ZGO", 17):
            garrive(C_WT)
        if n == 13:
            for l in range(4):
                e("v_subrev_u32 v%d, 0x%x, v%d" % (TR2[l], LB, TR2[l]))
            gcheck(C_L1, 107)
        if n in (20, 21):
            for i in range(4):
                e("v_mov_b32 v%d, v%d" % (128 + 8 * (n - 20) + 2 * i + 1, vTAG))
        if n + 1 < 28:
            sch["lds"].extend(rdW(n + 1))
        for l in range(4):
            a = vr(AF + (n & 1) * 16 + 4 * l, 4)
            if P("M32", 0):
                c = vr(ACC + 16 * (l & 1), 16)
                mf32(c, a, X(l >> 1, n % 14), c if (n or l > 1) else "0")
                continue
            for u in range(2):
                c = vr(ACC + (u * 4 + l) * 4, 4)
                mf(c, a, X(u, n % 14), c if n else "0")
        flush_side()
        if n % 3 == 2:
            fs(7, 3 + n // 3)
        if n < 7:
            fs(10, 7 + n)
        if 5 <= n < 17:
            fs(11, n - 3)
        if n == 13:
            k.stamp(9)
    k.stamp(10)
    e("s_lshl2_add_u32 s%d, s2, s%d" % (sT1, sRW))
    e("s_lshl_b32 s%d, s%d, 12" % (sT1, sT1))
    e("s_add_u32 s%d, s%d, 0x%x" % (sT1, sT1, YX_OFF))
    k.nop(1)
    fs(12, 2)
    garrive(C_GY)
    for i in range(4):
        e("v_cvt_pk_bf16_f32 v%d, v%d, v%d" % (128 + 4 * i, ACC + 16 + 4 * i, ACC + 17 + 4 * i))
        e("v_cvt_pk_bf16_f32 v%d, v%d, v%d" % (128 + 4 * i + 2, ACC + 18 + 4 * i, ACC + 19 + 4 * i))
        e("buffer_store_dwordx4 %s, v%d, %s, s%d offen offset:%d sc1" % (vr(128 + 4 * i, 4), vL16, srd(SWS), sT1 + (i >> 2), 1024 * (i & 3)))
        k.vm.issue("yst")
    xe_load()
    e("s_xor_b32 s%d, s%d, 0x4000" % (sT1, sT1))
    e("s_lshl_b32 s%d, s%d, 12" % (sT4, sRW))
    e("v_add_u32 v10, s%d, v%d" % (sT4, vYW))
    for dt in range(1, 4):
        e("v_xor_b32 v%d, %d, v10" % (10 + dt, 64 * dt))
    fs(12, 3)
    gwait(C_GY)
    fs(12, 4)
    if P("YW", 1):
        k.wait_vm("yst")
    fs(12, 5)
    YR = 160
    e("s_mov_b32 s%d, 0" % sCNT)
    k.lab("L_yx")
    for i in range(4):
        e("buffer_load_dwordx4 %s, v%d, %s, s%d offen offset:%d sc1" % (vr(YR + 4 * i, 4), vL16, srd(SWS), sT1 + (i >> 2), 1024 * (i & 3)))
    e("s_waitcnt vmcnt(0)")
    k.vm.clear()
    e("v_min3_u32 v30, v%d, v%d, v%d" % (YR + 1, YR + 3, vTAG))
    e("v_max3_u32 v31, v%d, v%d, v%d" % (YR + 1, YR + 3, vTAG))
    for i in range(1, 4):
        e("v_min3_u32 v30, v%d, v%d, v30" % (YR + 4 * i + 1, YR + 4 * i + 3))
        e("v_max3_u32 v31, v%d, v%d, v31" % (YR + 4 * i + 1, YR + 4 * i + 3))
    e("v_cmp_ne_u32 vcc, v30, v31")
    e("s_cmp_lg_u64 vcc, 0")
    e("s_cbranch_scc1 L_yxs")
    k.lab("L_yxb")
    fs(12, 6)
    tail.extend(["L_yxs:", "    s_add_u32 s%d, s%d, 1" % (sCNT, sCNT), "    s_cmp_lt_u32 s%d, 0x40000" % sCNT,
                 "    s_cbranch_scc0 L_yxb", "    s_sleep 6", "    s_branch L_yx"])
    k.stamp(11)
    e("s_bitcmp1_b32 s2, 0")
    e("s_cselect_b64 vcc, -1, 0")
    e("v_cndmask_b32 v%d, v%d, v%d, vcc" % (RN, RN + 1, RN + 3))
    for i in range(8):
        e("v_and_b32 v%d, 0xffff0000, v%d" % (YR + 2 * i + 1, YR + 2 * i))
        e("v_lshlrev_b32 v%d, 16, v%d" % (YR + 2 * i, YR + 2 * i))
    for i in range(8):
        e("v_pk_add_f32 %s, %s, %s" % (vr(ACC + 2 * i, 2), vr(ACC + 2 * i, 2), vr(YR + 2 * i, 2)))
    for i in range(8):
        e("v_pk_mul_f32 %s, %s, %s op_sel_hi:[1,0]" % (vr(ACC + 2 * i, 2), vr(ACC + 2 * i, 2), vr(RN, 2)))
    for dt in range(4):
        e("ds_write_b128 v%d, %s" % (10 + dt, vr(ACC + 4 * dt, 4)))
    k.lab("L_final")
    main_lines = k.lines

    k.lines = []
    k.vm.q, k.lg.q = list(q_vm), []
    k.lab("L_fft")
    sCC, sPL, sZR, sZI, sSC, sFXC, sGB, sFX = 48, 50, 51, 52, 53, 54, 55, 56
    C64, S64, N64, C32, S32, N32, T1C, T1S, T2C, T2S = 128, 136, 144, 152, 160, 168, 176, 184, 192, 200
    XB, PA, FB, SUM, GR, ONES = 32, 64, 96, 208, 216, 224
    e("s_waitcnt lgkmcnt(0)")
    e("s_load_dword s%d, s[%d:%d], 0x%x" % (sTAG, SWS, SWS + 1, EPOCH_OFF))

    def fgen(tl):
        t = 32
        e("s_lshl_b32 s%d, s%d, 5" % (sT0, sCBK))
        e("v_add_u32 v%d, s%d, v%d" % (t, sT0, vC))
        if tl:
            e("v_add_u32 v%d, 16, v%d" % (t, t))
        e("v_lshrrev_b32 v%d, 1, v%d" % (t + 1, t))
        e("v_and_b32 v%d, 1, v%d" % (t + 2, t))
        e("v_cvt_f32_u32 v%d, v%d" % (t + 2, t + 2))
        e("v_mul_f32 v%d, %s, v%d" % (t + 2, hexf(0.25), t + 2))
        if tl == 0:
            e("v_cmp_eq_u32 vcc, 1, v%d" % t)
            e("v_mov_b32 v%d, 256" % (t + 3))
        e("s_lshl_b32 s%d, s%d, 6" % (sT0, sR))
        if tl == 0:
            e("v_cndmask_b32 v%d, v%d, v%d, vcc" % (t + 1, t + 1, t + 3))
            e("v_cndmask_b32 v%d, v%d, 0, vcc" % (t + 2, t + 2))
        e("v_cvt_f32_u32 v%d, v%d" % (t + 1, t + 1))
        e("v_mul_f32 v%d, %s, v%d" % (t + 1, hexf(1.0 / 512), t + 1))
        e("v_lshl_add_u32 v%d, v%d, 3, s%d" % (t + 3, vQ, sT0))
        e("v_cvt_f32_u32 v%d, v%d" % (t + 3, t + 3))
        e("v_fma_f32 v%d, v%d, v%d, v%d" % (t + 2, t + 3, t + 1, t + 2))
        e("v_fract_f32 v%d, v%d" % (t + 8, t + 2))
        e("v_mul_f32 v%d, %s, v%d" % (t + 3, hexf(32.0), t + 1))
        e("v_fract_f32 v%d, v%d" % (t + 3, t + 3))
        for jj in range(1, 8):
            e("v_add_f32 v%d, v%d, v%d" % (t + 8 + jj, t + 7 + jj, t + 1))
        for Tf in range(4):
            for jj in range(8):
                e("v_cos_f32 v%d, v%d" % (t + 16 + jj, t + 8 + jj))
            if Tf < 3:
                for jj in range(8):
                    e("v_add_f32 v%d, v%d, v%d" % (t + 8 + jj, t + 8 + jj, t + 3))
            else:
                k.nop(1)
            for d in range(4):
                e("v_cvt_pk_bf16_f32 v%d, v%d, v%d" % (FB + 16 * tl + 4 * Tf + d, t + 16 + 2 * d, t + 17 + 2 * d))
    fgen(0)
    fgen(1)
    vSM, vAL, vBE = 16, 17, 18
    e("v_bfe_u32 v19, v%d, 1, 2" % vC)
    e("v_cvt_f32_u32 v19, v19")
    e("v_mul_f32 v19, %s, v19" % hexf(0.25))
    e("v_cos_f32 v%d, v19" % vAL)
    e("v_sin_f32 v%d, v19" % vBE)
    e("v_bfe_u32 v%d, v%d, 1, 1" % (vSM, vC))
    e("v_mul_u32_u24 v%d, 0x8000, v%d" % (vSM, vSM))
    e("v_lshl_or_b32 v%d, v%d, 16, v%d" % (vSM, vSM, vSM))
    e("v_rndne_f32 v%d, v%d" % (vAL, vAL))
    e("v_rndne_f32 v%d, v%d" % (vBE, vBE))
    e("v_lshlrev_b32 v19, 31, v%d" % vC)
    e("v_xor_b32 v%d, v19, v%d" % (vBE, vBE))
    for d in range(4):
        e("v_mov_b32 v%d, 0x3f803f80" % (ONES + d))
    xread_addr(26)
    k.stamp(2)

    def cconst():
        t = 32
        slot = [16 * (jj >> 2) + (jj & 3) for jj in range(8)]
        yield "s_lshl_b32 s%d, s%d, 4" % (sT3, sRW)
        yield "v_add_u32 v%d, s%d, v%d" % (t + 24, sT3, vC)
        yield "v_cvt_f32_u32 v%d, v%d" % (t + 27, vQ)
        yield "v_cvt_f32_u32 v%d, v%d" % (t + 25, t + 24)
        yield "v_mul_f32 v%d, 4.0, v%d" % (t + 27, t + 27)
        yield "v_cvt_f32_u32 v%d, v%d" % (t + 28, vC)
        yield "v_and_b32 v%d, 1, v%d" % (t + 30, vC)
        for jj in range(8):
            yield "v_add_f32 v%d, %s, v%d" % (t + 32 + jj, hexf(float(slot[jj])), t + 27)
        yield "v_mul_u32_u24 v%d, 0x8000, v%d" % (t + 30, t + 30)
        yield "v_mul_f32 v%d, %s, v%d" % (t + 26, hexf(1.0 / 64), t + 25)
        yield "v_lshl_or_b32 v%d, v%d, 16, v%d" % (t + 30, t + 30, t + 30)
        for (scale, Cb, Sb, Nb, flip) in ((t + 26, C64, S64, N64, "v%d" % (t + 30)), (t + 29, C32, S32, N32, "0x80000000")):
            if Cb == C32:
                yield "v_mul_f32 v%d, %s, v%d" % (t + 29, hexf(1.0 / 32), t + 28)
                yield "v_mul_f32 v%d, %s, v%d" % (t + 26, hexf(1.0 / 2048), t + 25)
            for jj in range(8):
                yield "v_mul_f32 v%d, v%d, v%d" % (t + jj, t + 32 + jj, scale)
            for jj in range(8):
                yield "v_cos_f32 v%d, v%d" % (t + 8 + jj, t + jj)
            for jj in range(8):
                yield "v_sin_f32 v%d, v%d" % (t + 16 + jj, t + jj)
            for d in range(4):
                yield "v_cvt_pk_bf16_f32 v%d, v%d, v%d" % (Cb + d, t + 8 + 2 * d, t + 9 + 2 * d)
            for d in range(4):
                yield "v_cvt_pk_bf16_f32 v%d, v%d, v%d" % (Sb + d, t + 16 + 2 * d, t + 17 + 2 * d)
            for d in range(4):
                yield "v_xor_b32 v%d, %s, v%d" % (Cb + 4 + d, flip, Cb + d)
            for d in range(4):
                yield "v_xor_b32 v%d, %s, v%d" % (Sb + 4 + d, flip, Sb + d)
            for d in range(8):
                yield "v_xor_b32 v%d, 0x80008000, v%d" % (Nb + d, Sb + d)
        for i in range(8):
            yield "v_mul_f32 v%d, v%d, v%d" % (t + i, t + 32 + i, t + 26)
        yield "v_cvt_f32_u32 v%d, s%d" % (t + 29, sT3)
        for i in range(8):
            yield "v_cos_f32 v%d, v%d" % (T1C + i, t + i)
            yield "v_sin_f32 v%d, v%d" % (T1S + i, t + i)
        yield "v_mul_f32 v%d, %s, v%d" % (t + 26, hexf(1.0 / 2048), t + 28)
        for r in range(4):
            yield "v_add_f32 v%d, v%d, v%d" % (t + 8 + r, t + 29, t + 32 + r)
        yield "v_add_f32 v%d, %s, v%d" % (t + 25, hexf(16.0 / 2048), t + 26)
        for r in range(4):
            yield "v_mul_f32 v%d, v%d, v%d" % (t + r, t + 8 + r, t + 26)
        for r in range(4):
            yield "v_mul_f32 v%d, v%d, v%d" % (t + 4 + r, t + 8 + r, t + 25)
        for i in range(8):
            yield "v_cos_f32 v%d, v%d" % (T2C + i, t + i)
            yield "v_sin_f32 v%d, v%d" % (T2S + i, t + i)
    CCE = P("CCE", 1)
    if CCE:
        for s_ in cconst():
            e(s_)
    e("v_lshrrev_b32 v19, 2, v%d" % vC)
    e("v_lshl_add_u32 v20, v%d, 3, v19" % vQ)
    e("v_lshlrev_b32 v20, 7, v20")
    e("v_and_b32 v13, 1, v%d" % vC)
    e("v_lshl_add_u32 v20, v13, 3, v20")
    e("v_bfe_u32 v19, v%d, 3, 1" % vC)
    e("v_and_b32 v13, 1, v%d" % vQ)
    e("v_lshl_or_b32 v19, v13, 1, v19")
    e("v_xor_b32 v19, s%d, v19" % sRW)
    e("v_lshlrev_b32 v19, 1, v19")
    e("v_bfe_u32 v13, v%d, 1, 1" % vC)
    e("v_or_b32 v19, v19, v13")
    e("v_lshl_add_u32 v20, v19, 4, v20")
    e("v_add_u32 v13, 0x%x, v20" % LB)
    e("s_lshl_b32 s%d, s%d, 6" % (sT1, sRW))
    e("s_add_u32 s%d, s%d, 0x%x" % (sT1, sT1, L_CS))
    e("v_lshl_add_u32 v231, v%d, 4, s%d" % (vQ, sT1))

    def colsum(reg):
        if reg == 0:
            pass
        else:
            gwait(C_WB1)
            gwait(C_WB2)
        base = 20 if reg else 13
        e("s_setprio %d" % P("SPRIO", 0))

        def rd(T):
            for hh in range(2):
                e("ds_read_b64_tr_b16 %s, v%d offset:%d" % (vr(48 + 4 * (T % 4) + 2 * hh, 2), base, T * 4096 + hh * 512))
                k.lg.issue(("CS", reg, T))
        for T in range(3):
            rd(T)
        for T in range(16):
            if T == 5 and reg == 0:
                gwait(C_WA2)
            if T + 3 < 16:
                rd(T + 3)
            k.wait_lg(("CS", reg, T))
            mfma(vr(240, 4), vr(48 + 4 * (T % 4), 4), vr(ONES, 4), vr(240, 4) if T else "0")
        k.nop(6)
        e("s_mov_b32 exec_lo, 0x00010001")
        e("s_mov_b32 exec_hi, 0x00010001")
        e("ds_write_b128 v231, v[240:243] offset:%d" % (256 * reg))
        e("s_mov_b64 exec, -1")
        garrive(C_FB if reg else C_FA)
        e("s_setprio 0")
    CSF = P("CSF", 0)
    vX1 = 7
    e("v_lshrrev_b32 v7, 1, v%d" % vC)
    e("v_lshlrev_b32 v7, 13, v7")
    e("v_and_b32 v19, 1, v%d" % vC)
    e("v_lshl_add_u32 v7, v19, 6, v7")
    e("v_lshl_add_u32 v7, v%d, 4, v7" % vQ)
    e("s_lshl_b32 s%d, s%d, 9" % (sT0, sRW))
    e("s_add_u32 s%d, s%d, 0x%x" % (sT0, sT0, L_ST))
    e("v_lshl_add_u32 v8, v%d, 2, s%d" % (vC, sT0))
    e("v_lshl_add_u32 v9, v%d, 4, s%d" % (vQ, sT0))
    e("s_lshl4_add_u32 s%d, s%d, s%d" % (sFX, sCBK, sPB))
    e("s_lshl_b32 s%d, s%d, 7" % (sFX, sFX))
    e("s_lshl2_add_u32 s%d, s%d, s%d" % (sFX, sRW, sFX))
    tag_setup()
    k.stamp(3)
    e("s_setprio %d" % P("PRIO", 1))

    def XBf(kk, u, ks):
        return vr(XB + (((kk & 1) * 2 + ks) * 2 + u) * 4, 4)
    for s_ in range(4):
        e("s_barrier")
        fs(6, 2 + s_)
        for kk in (2 * s_, 2 * s_ + 1):
            for ks in range(2):
                for u in range(2):
                    xread(XBf(kk, u, ks), 26, kk, u, ks, ("XR", kk, ks))
        if s_ == 2:
            for i in range(32):
                e("v_xor_b32 v%d, v%d, v%d" % (FB + i, vSM, FB + i))
        for kk in (2 * s_, 2 * s_ + 1):
            for ks in range(2):
                T = 2 * kk + ks
                k.wait_lg(("XR", kk, ks))
                for u in range(2):
                    x = XBf(kk, u, ks)
                    mfma(vr(SUM + 4 * u, 4), vr(ONES, 4), x, vr(SUM + 4 * u, 4) if T else "0")
                    mfma(vr(GR + 4 * u, 4), x, x, vr(GR + 4 * u, 4) if T else "0")
                for u in range(2):
                    x = XBf(kk, u, ks)
                    for tl in range(2):
                        p = vr(PA + ((tl * 2 + ((T >> 2) & 1)) * 2 + u) * 4, 4)
                        mfma(p, x, vr(FB + 16 * tl + 4 * (T & 3), 4), "0" if T in (0, 4) else p)
    e("s_barrier")
    k.stamp(4)
    fs(6, 6)
    e("s_setprio %d" % P("XPRIO", 0))
    e("v_and_b32 v19, 3, v%d" % vC)
    k.nop(2)
    for r in range(1, 4):
        e("v_cmp_eq_u32 vcc, %d, v19" % r)
        k.nop(2)
        for u in range(2):
            e("v_cndmask_b32 v%d, v%d, v%d, vcc" % (GR + 4 * u, GR + 4 * u, GR + 4 * u + r))

    def stat_ops(u):
        m, q2, rs_, nm, d0 = SUM + 4 * u, GR + 4 * u, SUM + 4 * u + 1, SUM + 4 * u + 2, SUM + 4 * u + 3
        rnd = lambda v: ["v_cvt_pk_bf16_f32 v%d, v%d, v%d" % (v, v, v), "v_lshlrev_b32 v%d, 16, v%d" % (v, v)]
        return (["v_mul_f32 v%d, %s, v%d" % (m, hexf(1.0 / 512), m),
                 "v_mul_f32 v%d, %s, v%d" % (q2, hexf(1.0 / 512), q2),
                 "v_fma_f32 v%d, -v%d, v%d, v%d" % (q2, m, m, q2),
                 "v_max_f32 v%d, 0, v%d" % (q2, q2)] + rnd(q2) +
                ["v_add_f32 v%d, %s, v%d" % (q2, hexf(1e-5), q2)] + rnd(q2) +
                ["v_sqrt_f32 v%d, v%d" % (q2, q2), "v_sub_f32 v%d, 0, v%d" % (nm, m)] + rnd(q2) +
                ["v_rcp_f32 v%d, v%d" % (rs_, q2)] + rnd(nm) +
                ["v_add_f32 v%d, v%d, v%d" % (d0, m, nm), "v_mul_f32 v%d, %s, v%d" % (d0, hexf(512.0), d0)])
    for a_, b_ in zip(stat_ops(0), stat_ops(1)):
        e(a_)
        e(b_)
    e("s_mov_b32 exec_lo, 0x00f0000f")
    e("s_mov_b32 exec_hi, 0xf0000f00")
    for u in range(2):
        e("ds_write2_b32 v8, v%d, v%d offset0:%d offset1:%d" % (SUM + 4 * u + 1, SUM + 4 * u + 2, 16 * u, 32 + 16 * u))
        e("ds_write_b32 v8, v%d offset:%d" % (SUM + 4 * u + 3, 256 + 64 * u))
    e("s_mov_b64 exec, -1")
    if CSF:
        colsum(0)
    RT, D0T = XB, XB + 8
    for u in range(2):
        e("ds_read_b128 %s, v9 offset:%d" % (vr(RT + 4 * u, 4), 64 * u))
        e("ds_read_b128 %s, v9 offset:%d" % (vr(D0T + 4 * u, 4), 256 + 64 * u))
    for tl in range(2):
        for i in range(8):
            e("v_fmac_f32 v%d, v%d, v%d" % (PA + 16 * tl + i, vAL, PA + 16 * tl + 8 + i))
        for i in range(8):
            e("v_fmac_f32_dpp v%d, v%d, v%d quad_perm:[1,0,3,2] row_mask:0xf bank_mask:0xf" % (PA + 16 * tl + i, PA + 16 * tl + 8 + i, vBE))
    e("v_or_b32 v19, s%d, v%d" % (sCBK, vC))
    e("v_cmp_eq_u32 vcc, 0, v19")
    e("s_lshl_b32 s%d, s%d, 17" % (sT0, sCBK))
    e("s_lshl2_add_u32 s%d, s%d, s%d" % (sT1, sA, sRW))
    e("s_lshr_b32 s%d, s%d, 1" % (sT2, sWP))
    e("s_lshl1_add_u32 s%d, s%d, s%d" % (sT1, sT1, sT2))
    e("s_lshl_b32 s%d, s%d, 7" % (sT1, sT1))
    e("s_add_u32 s%d, s%d, s%d" % (sT0, sT0, sT1))
    e("s_add_u32 s%d, s%d, 0x%x" % (sT1, sT0, X1C_OFF))
    e("s_add_u32 s%d, s%d, 0x%x" % (sT2, sT0, X1C_OFF + 65536))
    e("s_waitcnt lgkmcnt(0)")
    k.lg.clear()
    for i in range(8):
        e("v_cndmask_b32 v%d, v%d, v%d, vcc" % (PA + i, PA + i, D0T + i))
    for tl in range(2):
        for i in range(8):
            e("v_mul_f32 v%d, v%d, v%d" % (PA + 16 * tl + i, PA + 16 * tl + i, RT + i))
        o = 232 + 4 * tl
        for d in range(4):
            e("v_cvt_pk_bf16_f32 v%d, v%d, v%d" % (o + d, PA + 16 * tl + 2 * d, PA + 16 * tl + 2 * d + 1))
        e("buffer_store_dwordx4 %s, v%d, %s, s%d offen sc1" % (vr(o, 4), vX1, srd(SWS), sT1 + tl))
        k.vm.issue("x1st")
    k.stamp(5)
    if not CSF:
        colsum(0)
    e("s_setprio 0")
    GB = 64

    def ggen():
        t0 = 32
        an, stp = 252, 31
        yield "s_lshl_b32 s%d, s%d, 6" % (sT3, sDB)
        yield "s_lshl4_add_u32 s%d, s%d, s%d" % (sT3, sRW, sT3)
        yield "v_add_u32 v%d, s%d, v%d" % (t0, sT3, vC)
        yield "v_lshlrev_b32 v%d, 1, v%d" % (t0 + 2, vQ)
        yield "v_cvt_f32_u32 v%d, v%d" % (t0 + 1, t0)
        yield "v_cvt_f32_u32 v%d, v%d" % (t0 + 2, t0 + 2)
        yield "v_mul_f32 v%d, %s, v%d" % (t0 + 1, hexf(1.0 / 512), t0 + 1)
        yield "v_mul_f32 v%d, %s, v%d" % (stp, hexf(16.0), t0 + 1)
        for dw in range(4):
            yield "v_add_f32 v%d, %s, v%d" % (an + dw, hexf(float(8 * (dw >> 1) + (dw & 1))), t0 + 2)
        yield "v_fract_f32 v%d, v%d" % (stp, stp)
        for dw in range(4):
            yield "v_mul_f32 v%d, v%d, v%d" % (an + dw, an + dw, t0 + 1)
        yield "v_lshlrev_b32 v%d, 31, v%d" % (t0 + 16, vC)
        yield "v_min_u32 v%d, 1, v%d" % (t0 + 17, vQ)
        yield "v_or_b32 v%d, 0x3f800000, v%d" % (t0 + 16, t0 + 16)
        yield "v_sub_u32 v%d, v%d, 1" % (t0 + 17, t0 + 17)
        yield "v_and_b32 v%d, 0xffff0000, v%d" % (t0 + 17, t0 + 17)
        yield "v_and_b32 v17, 1, v%d" % vC
        yield "v_mul_u32_u24 v17, 0x020202, v17"
        yield "v_lshl_or_b32 v17, v17, 8, v17"
        yield "v_xor_b32 v17, 0x03020100, v17"
        yield "v_bfe_u32 v18, v%d, 1, 1" % vC
        yield "v_add_u32 v%d, 1, v%d" % (t0 + 18, vC)
        yield "v_bfe_u32 v%d, v%d, 1, 1" % (t0 + 18, t0 + 18)
        yield "v_lshlrev_b32 v18, 15, v18"
        yield "v_lshl_or_b32 v18, v%d, 31, v18" % (t0 + 18)
        for T in range(8):
            for dw in range(4):
                yield "v_cos_f32 v%d, v%d" % (t0 + 8 + 2 * dw, an + dw)
                yield "v_sin_f32_e64 v%d, -v%d" % (t0 + 9 + 2 * dw, an + dw)
            for dw in range(4):
                yield "v_add_f32 v%d, v%d, v%d" % (an + dw, an + dw, stp)
            for dw in range(4):
                yield "v_cvt_pk_bf16_f32 v%d, v%d, v%d" % (GB + 4 * T + dw, t0 + 8 + 2 * dw, t0 + 9 + 2 * dw)
            for dw in range(4):
                yield "v_perm_b32 v%d, v%d, v%d, v17" % (GB + 32 + 4 * T + dw, GB + 4 * T + dw, GB + 4 * T + dw)
            for dw in range(4):
                yield "v_xor_b32 v%d, v18, v%d" % (GB + 32 + 4 * T + dw, GB + 32 + 4 * T + dw)
            if T == 0:
                yield "v_bfi_b32 v%d, v%d, v%d, v%d" % (GB, t0 + 17, t0 + 16, GB)
    late_setup(1)
    e("v_add_u32 v6, 0x%x, v%d" % (LB, vZB))
    vFL, vFZ, vDZ = 14, 15, 9
    e("s_xor_b32 s%d, s2, 0x38" % sCC)
    flag_voff(vFZ, 63)
    e("v_and_b32 v%d, 0x1ff, v%d" % (vFL, vFZ))
    e("v_min_u32 v19, 1, v%d" % vQ)
    e("v_mul_u32_u24 v19, 0x%x, v19" % (FW_OFF - FX_OFF))
    e("v_add_u32 v%d, v19, v%d" % (vFL, vFL))
    e("s_cmp_eq_u32 s%d, 0" % sCC)
    e("s_cselect_b32 s%d, 0x%x, 0" % (sT0, 16 * 2048))
    e("v_lshrrev_b32 v19, 1, v%d" % vQ)
    e("v_mul_u32_u24 v19, s%d, v19" % sT0)
    e("v_add_u32 v%d, v19, v%d" % (vFL, vFL))
    e("s_lshr_b32 s%d, s%d, 4" % (sFXC, sCC))
    e("s_lshl2_add_u32 s%d, s%d, s%d" % (sFXC, sFXC, sRW))
    e("s_lshl_b32 s%d, s%d, 9" % (sFXC, sFXC))
    e("s_mov_b32 s%d, 0" % sGB)
    XI, TM, TW, DR, DI, PR, PI, CWL = 32, 32, 48, 208, 216, 224, 228, 232

    def xin(pl, v, tt):
        return XI + 4 * ((pl * 2 + v) * 2 + tt)
    e("v_add_u32 v26, 0x%x, v%d" % (L_C1, vYW))
    e("v_xor_b32 v27, 64, v26")
    e("v_xor_b32 v28, 128, v26")
    e("v_xor_b32 v29, 192, v26")
    e("s_lshr_b32 s%d, s%d, 1" % (sT0, sRW))
    e("s_lshl_b32 s%d, s%d, 7" % (sT0, sT0))
    e("s_and_b32 s%d, s%d, 1" % (sT1, sRW))
    e("s_lshl3_add_u32 s%d, s%d, s%d" % (sT0, sT1, sT0))
    e("v_xor_b32 v10, s%d, v26" % sT0)
    e("v_xor_b32 v11, 64, v10")
    e("v_lshlrev_b32 v12, 5, v%d" % vC)
    e("v_lshl_add_u32 v12, v%d, 3, v12" % vQ)
    e("s_lshl_b32 s%d, s%d, 10" % (sT0, sRW))
    e("v_add_u32 v12, s%d, v12" % sT0)
    e("s_lshl_b32 s%d, s%d, 13" % (sZR, sCC))
    e("s_add_u32 s%d, s%d, 0x%x" % (sZR, sZR, ZT_OFF))
    e("s_add_u32 s%d, s%d, 4096" % (sZI, sZR))
    e("s_mov_b32 s%d, %s" % (sSC, hexf(2.0 ** -19)))
    e("s_cmp_eq_u32 s%d, 0" % sCC)
    e("s_cselect_b32 s%d, 0x%x, s%d" % (sZI, OOB, sZI))
    e("s_cselect_b32 s%d, %s, s%d" % (sSC, hexf(2.0 ** -20), sSC))
    e("s_mov_b32 s%d, 0" % sPL)
    e("s_lshl_b32 s%d, s%d, 3" % (sT0, sT1))
    e("v_add_u32 v19, s%d, v%d" % (sT0, vQ))
    e("v_xor_b32 v30, v19, v%d" % vC)
    e("v_lshlrev_b32 v30, 4, v30")
    e("v_lshl_add_u32 v30, v%d, 8, v30" % vQ)
    e("v_xor_b32 v24, 64, v30")
    e("v_lshrrev_b32 v8, 3, v%d" % vLANE)
    e("v_and_b32 v9, 7, v%d" % vLANE)
    e("v_lshlrev_b32 v19, 1, v%d" % vQ)
    e("v_xor_b32 v19, v19, v9")
    e("v_lshlrev_b32 v19, 4, v19")
    e("v_lshl_add_u32 v%d, v8, 12, v19" % vDZ)
    k.wait_vm("x1st")
    publish("s%d" % sFX)
    xe_load()
    k.stamp(6)
    pre = ([] if CCE else list(cconst())) + ["v_mul_f32 v%d, s%d, v%d" % (T2C + i, sSC, T2C + i) for i in range(16)]
    gl = list(ggen())
    GE = P("GE", 152)
    pre += gl[:GE]
    gl = gl[GE:]
    n2 = max(0, len(pre) - P("PFXL", 0))
    cs1 = min(n2, P("CS1", 72))
    for s_ in pre[:cs1]:
        e(s_)
    colsum(1)
    if P("NOFFT", 0):
        e("s_branch L_final")
    for s_ in pre[cs1:n2]:
        e(s_)
    poll_issue("pfx", vFL, "s%d" % sFXC, 13)
    for s_ in pre[n2:]:
        e(s_)
    k.stamp(7)
    e("s_setprio %d" % P("CPRIO", 1))
    poll_check("pfx", vFL, "s%d" % sFXC, 13)
    k.stamp(8)

    def gbar_lines():
        return ["    s_add_u32 s%d, s%d, 4" % (sGB, sGB)] + garrive_lines(C_F) + gwait_lines(C_F, "s%d" % sGB)

    def gbar():
        k.lines.extend(gbar_lines())
        k.lg.clear()
    e("s_lshl_b32 s%d, s%d, 13" % (sT0, sCC))
    e("s_lshl_b32 s%d, s%d, 11" % (sT1, sRW))
    e("s_add_u32 s%d, s%d, s%d" % (sT0, sT0, sT1))
    e("s_add_u32 s%d, s%d, 0x%x" % (sT2, sT0, X1C_OFF))
    e("s_add_u32 m0, s%d, 0x%x" % (sT1, L_C1))
    k.nop(1)
    e("buffer_load_dwordx4 v30, %s, s%d offen sc1 lds" % (srd(SWS), sT2))
    k.vm.issue("cin")
    e("buffer_load_dwordx4 v24, %s, s%d offen offset:1024 sc1 lds" % (srd(SWS), sT2))
    k.vm.issue("cin")
    e("s_add_u32 s%d, s%d, 0x%x" % (sT2, sT0, WT_OFF))
    for v in range(2):
        e("buffer_load_dwordx4 %s, v%d, %s, s%d offen offset:%d sc1" % (vr(CWL + 4 * v, 4), vL16, srd(SWS), sT2, v * 1024))
        k.vm.issue("cw")
    e("s_add_u32 s%d, s%d, 0x%x" % (sT2, sT2, 256 * 8192))
    e("s_cmp_eq_u32 s%d, 0" % sCC)
    e("s_cselect_b32 s%d, s%d, 0x%x" % (sT2, sT2, OOB))
    for v in range(2):
        e("buffer_load_dwordx4 %s, v%d, %s, s%d offen offset:%d sc1" % (vr(CWL + 8 + 4 * v, 4), vL16, srd(SWS), sT2, v * 1024))
        k.vm.issue("cw")
    k.wait_vm("cin")
    gbar()
    k.stamp(9)
    k.lab("L_ccol")
    for pl in range(2):
        for v in range(2):
            for tt in range(2):
                e("ds_read_b128 %s, v%d offset:%d" % (vr(xin(pl, v, tt), 4), 26 + 2 * tt + pl, v * 4096))
    e("s_waitcnt lgkmcnt(0)")
    e("s_cmp_eq_u32 s%d, 0" % sCC)
    e("s_cbranch_scc1 L_creal")
    k.lab("L_cplx")
    tail.append("L_creal:")
    tail.append("    s_cmp_eq_u32 s%d, 0" % sPL)
    tail.append("    s_cbranch_scc1 L_c0")
    for i in range(16):
        tail.append("    v_mov_b32 v%d, v%d" % (XI + i, XI + 16 + i))
    tail.append("L_c0:")
    for i in range(16):
        tail.append("    v_mov_b32 v%d, 0" % (XI + 16 + i))
    tail.append("    s_nop 1")
    tail.append("    s_branch L_cplx")
    for v in range(2):
        dr, di = vr(DR + 4 * v, 4), vr(DI + 4 * v, 4)
        for tt in range(2):
            mfma(dr, vr(xin(0, v, tt), 4), vr(C64 + 4 * tt, 4), dr if tt else "0")
            mfma(di, vr(xin(1, v, tt), 4), vr(C64 + 4 * tt, 4), di if tt else "0")
            mfma(dr, vr(xin(1, v, tt), 4), vr(S64 + 4 * tt, 4))
            mfma(di, vr(xin(0, v, tt), 4), vr(N64 + 4 * tt, 4))

    def cmul(cr, ci, conj):
        for h in range(2):
            for i in (4 * h, 4 * h + 2):
                e("v_pk_mul_f32 %s, %s, %s" % (vr(TM + i, 2), vr(DR + i, 2), vr(cr + i, 2)))
                e("v_pk_mul_f32 %s, %s, %s" % (vr(TM + 8 + i, 2), vr(DI + i, 2), vr(cr + i, 2)))
            neg = " neg_lo:[1,0,0] neg_hi:[1,0,0]"
            for i in (4 * h, 4 * h + 2):
                e("v_pk_fma_f32 %s, %s, %s, %s%s" % (vr(TM + i, 2), vr(DI + i, 2), vr(ci + i, 2), vr(TM + i, 2), "" if conj else neg))
                e("v_pk_fma_f32 %s, %s, %s, %s%s" % (vr(TM + 8 + i, 2), vr(DR + i, 2), vr(ci + i, 2), vr(TM + 8 + i, 2), neg if conj else ""))
        for d in range(4):
            e("v_cvt_pk_bf16_f32 v%d, v%d, v%d" % (PR + d, TM + 2 * d, TM + 2 * d + 1))
            e("v_cvt_pk_bf16_f32 v%d, v%d, v%d" % (PI + d, TM + 8 + 2 * d, TM + 9 + 2 * d))
        k.nop(2)
    cmul(T1C, T1S, True)
    pr, pi = vr(PR, 4), vr(PI, 4)
    for v in range(2):
        dr, di = vr(DR + 4 * v, 4), vr(DI + 4 * v, 4)
        mfma(dr, vr(C32 + 4 * v, 4), pr, "0")
        mfma(di, vr(C32 + 4 * v, 4), pi, "0")
        mfma(dr, vr(S32 + 4 * v, 4), pi)
        mfma(di, vr(N32 + 4 * v, 4), pr)
    k.wait_vm("cw")
    for i in range(8):
        e("v_lshlrev_b32 v%d, 16, v%d" % (TW + i, CWL + i))
        e("v_and_b32 v%d, 0xffff0000, v%d" % (TW + 8 + i, CWL + i))
    cmul(TW, TW + 8, False)
    for v in range(2):
        dr, di = vr(DR + 4 * v, 4), vr(DI + 4 * v, 4)
        mfma(dr, pr, vr(C32 + 4 * v, 4), "0")
        mfma(di, pi, vr(C32 + 4 * v, 4), "0")
        mfma(dr, pi, vr(N32 + 4 * v, 4))
        mfma(di, pr, vr(S32 + 4 * v, 4))
    k.nop(4)
    cmul(T2C, T2S, False)
    for v in range(2):
        e("ds_write_b64 v10, %s offset:%d" % (vr(PR + 2 * v, 2), 8192 + v * 4096))
        e("ds_write_b64 v11, %s offset:%d" % (vr(PI + 2 * v, 2), 8192 + v * 4096))
    e("s_waitcnt lgkmcnt(0)")
    gbar()
    for v in range(2):
        for tt in range(2):
            for pl in range(2):
                e("ds_read_b128 %s, v%d offset:%d" % (vr(xin(pl, v, tt), 4), 26 + 2 * tt + pl, 8192 + v * 4096))
                k.lg.issue(("cy", v, tt))
    for v in range(2):
        dr, di = vr(DR + 4 * v, 4), vr(DI + 4 * v, 4)
        for tt in range(2):
            k.wait_lg(("cy", v, tt))
            mfma(dr, vr(C64 + 4 * tt, 4), vr(xin(0, v, tt), 4), dr if tt else "0")
            mfma(di, vr(C64 + 4 * tt, 4), vr(xin(1, v, tt), 4), di if tt else "0")
            mfma(dr, vr(N64 + 4 * tt, 4), vr(xin(1, v, tt), 4))
            mfma(di, vr(S64 + 4 * tt, 4), vr(xin(0, v, tt), 4))
    for v in range(2):
        if v:
            k.nop(4)
        for d in range(2):
            e("v_cvt_pk_bf16_f32 v%d, v%d, v%d" % (PR + 2 * v + d, DR + 4 * v + 2 * d, DR + 4 * v + 2 * d + 1))
            e("v_cvt_pk_bf16_f32 v%d, v%d, v%d" % (PI + 2 * v + d, DI + 4 * v + 2 * d, DI + 4 * v + 2 * d + 1))
        e("buffer_store_dwordx2 %s, v12, %s, s%d offen offset:%d sc1" % (vr(PR + 2 * v, 2), srd(SWS), sZR, v * 512))
        k.vm.issue("zst")
        e("buffer_store_dwordx2 %s, v12, %s, s%d offen offset:%d sc1" % (vr(PI + 2 * v, 2), srd(SWS), sZI, v * 512))
        k.vm.issue("zst")
    e("s_or_b32 s%d, s%d, s%d" % (sT0, sCC, sPL))
    if not P("NO256", 0):
        e("s_cbranch_scc0 L_csecond")
    sec = ["L_csecond:", "    s_mov_b32 s%d, 1" % sPL, "    s_add_u32 s%d, s%d, 4096" % (sZR, sZR)]
    for i in range(8):
        sec.append("    v_mov_b32 v%d, v%d" % (CWL + i, CWL + 8 + i))
    sec.extend(gbar_lines())
    sec.append("    s_branch L_ccol")
    tail.extend(sec)
    k.stamp(10)
    fs(7, 2)
    e("s_lshr_b32 s%d, s%d, 2" % (sT4, sCC))
    e("s_lshl_b32 s%d, s%d, 6" % (sT1, sRW))
    e("s_add_u32 s%d, s%d, s%d" % (sT4, sT4, sT1))
    e("s_lshl_b32 s%d, s%d, 7" % (sT4, sT4))
    e("s_and_b32 s%d, s%d, 3" % (sT1, sCC))
    e("s_lshl2_add_u32 s%d, s%d, s%d" % (sT4, sT1, sT4))
    e("s_add_u32 s%d, s%d, 0x%x" % (sT4, sT4, FZ_OFF))
    sFZC = sFXC
    e("s_lshl2_add_u32 s%d, s%d, s%d" % (sFZC, sWP, sRW))
    e("s_lshl_b32 s%d, s%d, 11" % (sFZC, sFZC))
    e("s_add_u32 s%d, s%d, 0x%x" % (sFZC, sFZC, FZ_OFF))
    e("s_lshl_b32 s%d, s%d, 19" % (sDT, sRW))
    e("s_lshl_b32 s%d, s%d, 10" % (sT1, sWP))
    e("s_add_u32 s%d, s%d, s%d" % (sDT, sDT, sT1))
    e("s_lshl_b32 s%d, s%d, 7" % (sT1, sA))
    e("s_add_u32 s%d, s%d, s%d" % (sDT, sDT, sT1))
    e("s_add_u32 s%d, s%d, 0x%x" % (sDT, sDT, ZT_OFF - 32768))
    e("s_lshl_b32 s%d, s%d, 14" % (sT2, sRW))
    e("s_lshl_b32 s%d, s%d, 6" % (sT1, sRW))
    e("v_xor_b32 v20, s%d, v26" % sT1)
    k.wait_vm("zst")
    fs(7, 3)
    publish("s%d" % sT4)
    e("s_setprio 0")
    for s_ in gl:
        e(s_)
    TRZ = [16, 17, 18, 7]
    for pt in range(4):
        e("v_xor_b32 v%d, %d, v6" % (TRZ[pt], 32 * pt))
    e("s_setprio 1")
    gwait(C_WT)
    fs(7, 4)
    if P("ZSLP", 0):
        e("s_sleep %d" % P("ZSLP", 0))
    poll_issue("pz", vFZ, "s%d" % sFZC, 30)
    if FS == 7:
        k.wait_vm("pz")
    fs(7, 5)
    poll_check("pz", vFZ, "s%d" % sFZC, 30)
    fs(7, 6)
    k.stamp(11)
    for ee in range(16):
        e("s_add_u32 m0, s%d, %d" % (sT2, LB + ee * 1024))
        e("s_add_u32 s%d, s%d, 32768" % (sDT, sDT))
        e("buffer_load_dwordx4 v%d, %s, s%d offen sc1 lds" % (vDZ, srd(SWS), sDT))
        k.vm.issue("Z")
    fs(7, 7)
    e("s_setprio %d" % P("EPRIO", 0))
    k.wait_vm("Z")
    fs(7, 8)
    gbar()
    fs(7, 9)
    AS, ZF = 208, 128

    def zr(T, pt):
        for hh in range(2):
            r = ZF + ((T % 4) * 4 + pt) * 4 + 2 * hh
            e("ds_read_b64_tr_b16 %s, v%d offset:%d" % (vr(r, 2), TRZ[pt], T * 4096 + hh * 2048))
            k.lg.issue(("ZR", T, pt))
    seq = [(T, pt) for T in range(16) for pt in range(4)]
    LA_ = 6
    for n in range(LA_):
        zr(*seq[n])
    for n, (T, pt) in enumerate(seq):
        if n + LA_ < 64:
            zr(*seq[n + LA_])
        k.wait_lg(("ZR", T, pt))
        c = vr(AS + 4 * pt, 4)
        mfma(c, vr(GB + 4 * T, 4), vr(ZF + ((T % 4) * 4 + pt) * 4, 4), c if T else "0")
    k.nop(8)
    for pt in range(4):
        e("ds_write_b128 v20, %s offset:%d" % (vr(AS + 4 * pt, 4), pt * 4096))
    fs(7, 10)
    e("s_branch L_final")
    tail[0:0] = k.lines
    k.lines = main_lines

    e("s_waitcnt vmcnt(0) lgkmcnt(0)")
    k.vm.clear()
    k.lg.clear()
    fs(12, 7)
    e("s_barrier")
    fs(12, 8)
    k.stamp(12)
    YP, SV, U2 = 192, 224, 232
    e("v_add_u32 v10, 0x%x, v%d" % (L_C1, vR0))
    e("v_add_u32 v11, 0x%x, v%d" % (L_C1, vR1))
    for h in range(2):
        e("ds_read_b128 %s, v%d" % (vr(YP + 4 * h, 4), vR0 + h))
        k.lg.issue("yp")
    for h in range(2):
        e("ds_read_b128 %s, v%d" % (vr(SV + 4 * h, 4), 10 + h))
        k.lg.issue("sv")
    for i in range(4):
        e("v_lshlrev_b32 v%d, 16, v%d" % (240 + 2 * i, XV + i))
        e("v_and_b32 v%d, 0xffff0000, v%d" % (241 + 2 * i, XV + i))
    k.wait_lg("yp")
    for i in range(8):
        e("v_mul_f32 v%d, %s, v%d" % (U2 + i, hexf(-1.4426950408889634), YP + i))
    for i in range(8):
        e("v_exp_f32 v%d, v%d" % (U2 + i, U2 + i))
    k.wait_lg("sv")
    for i in range(8):
        e("v_mul_f32 v%d, v%d, v%d" % (YP + i, YP + i, SV + i))
    for i in range(8):
        e("v_add_f32 v%d, 1.0, v%d" % (U2 + i, U2 + i))
    for i in range(8):
        e("v_rcp_f32 v%d, v%d" % (U2 + i, U2 + i))
    k.nop(1)
    for i in range(8):
        e("v_fmac_f32 v%d, v%d, v%d" % (240 + i, YP + i, U2 + i))
    for d in range(4):
        e("v_cvt_pk_bf16_f32 v%d, v%d, v%d" % (SV + d, 240 + 2 * d, 241 + 2 * d))
    e("buffer_store_dwordx4 %s, v%d, %s, s%d offen%s" % (vr(SV, 4), vGO, srd(SOUT), sXO, os.environ.get("OFL", " sc1")))
    e("s_or_b32 s%d, s2, s%d" % (sT0, sRW))
    e("s_or_b32 s%d, s%d, s%d" % (sT0, sT0, sHF))
    e("s_cbranch_scc1 L_noep")
    e("s_mov_b32 s%d, 0x%x" % (sT0, EPOCH_OFF))
    publish("s%d" % sT0)
    k.lab("L_noep")
    k.stamp(13)
    if ENC:
        if "ENCB" in os.environ:
            e("s_cmp_lg_u32 s2, %d" % P("ENCB", 0))
            e("s_cbranch_scc1 L_done")
        e("s_waitcnt lgkmcnt(0)")
        e("s_sub_u32 s97, s%d, s66" % (64 + 2 * ENC))
        e("s_add_u32 s97, s97, 6000")
        k.lab("L_espin")
        e("s_memrealtime s[94:95]")
        e("s_waitcnt lgkmcnt(0)")
        e("s_sub_u32 s96, s94, s66")
        e("s_cmp_lt_u32 s96, s97")
        e("s_cbranch_scc1 L_espin")
    elif DIAG:
        e("s_lshl2_add_u32 s%d, s%d, s%d" % (sT0, sHF, sRW))
        e("v_mov_b32 v2, s%d" % sT0)
        k.stamp_flush(SWS, 0, 2, 8)
    k.lab("L_done")
    e("s_endpgm")
    k.lines += tail
    k.lab("L_end")
    return k


HEADER = open(os.path.join(os.path.dirname(os.path.abspath(__file__)), "header.txt")).read()


def main(out):
    k = gen()
    s = HEADER
    s += "; @launch grid=(256,1,1) block=(512,1,1) lds=163840\n"
    s += '.amdgcn_target "amdgcn-amd-amdhsa--gfx950"\n.text\n'
    s += k.text()
    s += '.section .rodata,"a"\n'
    s += descriptor(k.name, 256, 102 if DIAG else 64)
    open(out, "w").write(s)


if __name__ == "__main__":
    main(sys.argv[1] if len(sys.argv) > 1 else "v13.s")
```

```python
import sys, os
from collections import deque
sys.path.insert(0, os.path.dirname(os.path.abspath(__file__)))
from asmlib import *

NAME = "recurrent_scan__spectral_gfnet__dense_activation_relu__prompt_kernel"


def P(name, default):
    return int(os.environ.get(name, default))


X1C_OFF = 0x0200000
WT_OFF = 0x0400000
H_OFF = 0x0800000
ZT_OFF = 0x1000000
FX_OFF = 0x0000000
FW_OFF = 0x0010000
FH_OFF = 0x0020000
FY_OFF = 0x0048000
YX_OFF = 0x1800000
FHB_D = 0x0008000
FZ_OFF = 0x0030000
EPOCH_OFF = 0x0040000
WS_BYTES = 0x2000000
OOB = 0x7f000000
TAGC = 0x9E3779B9
X_BYTES = 2048 * 512 * 2
W_BYTES = 2048 * 257 * 2
W1_BYTES = 512 * 1792 * 2

SX, SWR, SWI, SW1, SW2, SOUT, SWS = 12, 16, 20, 24, 28, 32, 36
sRW, sPB, sCBK, sF0, sHF, sR, sTAG, sA, sWP, sDB = 3, 4, 5, 6, 7, 8, 9, 10, 11, 40
sXO, sRS = 41, 42
sT0, sT1, sT2, sT3, sT4 = 43, 44, 45, 46, 47
sCNT = 49
sXT, sDT = 0, 1

LA, LB, LS = 0, 65536, 131072
L_C1 = LS
L_WT = LS + 16384
L_SCR = LS + 24576
L_CS, L_ST, L_CNT, L_W256, L_DUM = L_SCR, L_SCR + 1024, L_SCR + 3072, L_SCR + 4096, L_SCR + 6144
XSLOT = [LB, LB + 16384, LB + 32768, LB + 49152, LA, LA + 16384, LA + 32768, LA + 49152]

vLANE, vL16, vC, vQ, vTAG, vCNT = 1, 2, 3, 4, 5, 25
vGO, vR0, vR1, vYW, vZB = 0, 22, 23, 21, 124
C_WA2, C_CSA, C_WB1, C_WB2, C_CSB, C_ST, C_WT, C_F, C_E1, C_L1, C_GY, C_FA, C_FB, C_HB = 0, 4, 8, 12, 16, 20, 24, 28, 32, 36, 40, 44, 48, 52


def srd(n):
    return "s[%d:%d]" % (n, n + 3)


def gen():
    k = K(NAME)
    e = k.e
    tail = []
    FS, ENC = P("FS", 0), P("ENC", 0)
    _stamp = k.stamp

    def stamp_n(i, real=False):
        if ENC:
            if i == 1 or i == ENC:
                _stamp(i, True)
            return
        if FS and 2 <= i <= 13:
            return
        _stamp(i, real)
    k.stamp = stamp_n

    def fs(mode, i):
        if FS == mode:
            _stamp(i)

    side = deque()
    sch = {"gap": 3, "n": 0, "lds": deque()}

    def mfma(d, a, b, c=None):
        e("v_mfma_f32_16x16x32_bf16 %s, %s, %s, %s" % (d, a, b, c if c is not None else d))

    def mf(d, a, b, c=None):
        mfma(d, a, b, c)
        sch["n"] += 1
        for _ in range(sch.get("nl", P("NL", 1))):
            if sch["lds"]:
                sch["lds"].popleft()()
        if side and sch["n"] % sch["gap"] == 0:
            side.popleft()()

    def mf32(d, a, b, c):
        e("v_mfma_f32_32x32x16_bf16 %s, %s, %s, %s" % (d, a, b, c))
        for _ in range(P("NL32", 3)):
            if sch["lds"]:
                sch["lds"].popleft()()
        sch["n"] += 2
        if side and sch["n"] % max(2, sch["gap"] // 2 * 2) == 0:
            side.popleft()()

    def flush_lds():
        while sch["lds"]:
            sch["lds"].popleft()()

    def flush_side():
        flush_lds()
        while side:
            side.popleft()()

    def run(items):
        for f in items:
            f()

    def bf16_round(v):
        e("v_cvt_pk_bf16_f32 v%d, v%d, v%d" % (v, v, v))
        e("v_lshlrev_b32 v%d, 16, v%d" % (v, v))

    def publish_lines(soff):
        return ["    s_mov_b64 exec, 1",
                "    buffer_store_dword v%d, off, %s, %s sc1" % (vTAG, srd(SWS), soff),
                "    s_mov_b64 exec, -1"]

    def publish(soff):
        k.lines.extend(publish_lines(soff))
        k.vm.issue("flag")

    pollno = [0]

    def poll_ld(vaddr, soff, vt):
        return "buffer_load_dword v%d, v%d, %s, %s offen sc1" % (vt, vaddr, srd(SWS), soff)

    def poll_issue(tag, vaddr, soff, vt):
        e(poll_ld(vaddr, soff, vt))
        k.vm.issue(tag)

    def poll_check(tag, vaddr, soff, vt, pre=(), slp=None):
        n = pollno[0]
        pollno[0] += 1
        k.wait_vm(tag)
        e("v_cmp_ne_u32 vcc, v%d, v%d" % (vt, vTAG))
        e("s_cmp_lg_u64 vcc, 0")
        e("s_cbranch_scc1 L_slow%d" % n)
        k.lab("L_back%d" % n)
        tail.append("L_slow%d:" % n)
        tail.extend(pre)
        tail.extend(["    s_mov_b32 s%d, 0" % sCNT,
                     "L_spin%d:" % n,
                     "    s_sleep %d" % (P("SLP", 8) if slp is None else slp),
                     "    s_mov_b64 exec, vcc",
                     "    " + poll_ld(vaddr, soff, vt),
                     "    s_mov_b64 exec, -1",
                     "    s_waitcnt vmcnt(0)",
                     "    v_cmp_ne_u32 vcc, v%d, v%d" % (vt, vTAG),
                     "    s_cmp_lg_u64 vcc, 0",
                     "    s_cbranch_scc0 L_back%d" % n,
                     "    s_add_u32 s%d, s%d, 1" % (sCNT, sCNT),
                     "    s_cmp_lt_u32 s%d, 0x40000" % sCNT,
                     "    s_cbranch_scc1 L_spin%d" % n,
                     "    s_branch L_back%d" % n])

    gbn = [0]

    def gwait_lines(off, target):
        n = gbn[0]
        gbn[0] += 1
        chk = ["    ds_read_b32 v19, v%d offset:%d" % (vCNT, off),
               "    s_waitcnt lgkmcnt(0)",
               "    v_readfirstlane_b32 s%d, v19" % sT0,
               "    s_cmp_lt_u32 s%d, %s" % (sT0, target)]
        tail.append("L_gs%d:" % n)
        tail.append("    s_mov_b32 s%d, 0x400000" % sCNT)
        tail.append("L_gb%d:" % n)
        tail.append("    s_sub_u32 s%d, s%d, 1" % (sCNT, sCNT))
        tail.append("    s_cbranch_scc1 L_gx%d" % n)
        tail.append("    s_sleep %d" % (4 if off in (C_WT, C_ST) else 1))
        tail.extend(chk)
        tail.append("    s_cbranch_scc1 L_gb%d" % n)
        tail.append("    s_branch L_gx%d" % n)
        return chk + ["    s_cbranch_scc1 L_gs%d" % n, "L_gx%d:" % n]

    def garrive_lines(off):
        return ["    v_mov_b32 v19, 1",
                "    s_mov_b64 exec, 1",
                "    ds_add_u32 v%d, v19 offset:%d" % (vCNT, off),
                "    s_mov_b64 exec, -1"]

    def garrive(off):
        k.lines.extend(garrive_lines(off))
        k.lg.issue("arr")

    def gwait(off, target="4"):
        k.lines.extend(gwait_lines(off, target))
        k.lg.clear()

    def gpeek(off, vt):
        e("ds_read_b32 v%d, v%d offset:%d" % (vt, vCNT, off))
        k.lg.issue(("pk", off))

    def gcheck(off, vt):
        n = gbn[0]
        slow = gwait_lines(off, "4")
        k.wait_lg(("pk", off))
        e("v_readfirstlane_b32 s%d, v%d" % (sT0, vt))
        e("s_cmp_lt_u32 s%d, 4" % sT0)
        e("s_cbranch_scc1 L_gs%d" % n)
        k.lab("L_gx%d" % n)

    def flag_voff(vv, n):
        e("v_min_u32 v19, %d, v%d" % (n, vLANE))
        e("v_lshrrev_b32 v%d, 2, v19" % vv)
        e("v_lshlrev_b32 v%d, 7, v%d" % (vv, vv))
        e("v_and_b32 v19, 3, v19")
        e("v_lshl_add_u32 v%d, v19, 2, v%d" % (vv, vv))

    def xread_addr(v0_):
        e("v_lshrrev_b32 v19, 1, v%d" % vC)
        e("v_xor_b32 v19, v19, v%d" % vQ)
        e("v_lshlrev_b32 v19, 4, v19")
        e("v_lshl_add_u32 v19, v%d, 7, v19" % vC)
        e("s_lshl_b32 s%d, s%d, 12" % (sT0, sRW))
        e("v_add_u32 v%d, s%d, v19" % (v0_, sT0))
        e("v_xor_b32 v%d, 64, v%d" % (v0_ + 1, v0_))
        e("v_add_u32 v%d, 0x%x, v%d" % (v0_ + 2, LB, v0_))
        e("v_add_u32 v%d, 0x%x, v%d" % (v0_ + 3, LB, v0_ + 1))

    def xread(dst, v0_, kk, u, ks, tag):
        hi = XSLOT[kk] >= LB
        e("ds_read_b128 %s, v%d offset:%d" % (dst, v0_ + ks + (2 if hi else 0), XSLOT[kk] % 65536 + u * 2048))
        k.lg.issue(tag)

    def tag_setup():
        e("s_waitcnt lgkmcnt(0)")
        k.lg.clear()
        e("s_add_u32 s%d, s%d, 0x%x" % (sTAG, sTAG, TAGC))
        e("v_mov_b32 v%d, s%d" % (vTAG, sTAG))

    def late_setup(hf):
        e("v_lshrrev_b32 v19, 2, v%d" % vC)
        e("v_lshl_add_u32 v19, v%d, 2, v19" % vQ)
        e("v_bfe_u32 v30, v19, 1, 2")
        e("v_lshlrev_b32 v19, 7, v19")
        e("v_and_b32 v31, 1, v%d" % vC)
        e("v_lshl_add_u32 v19, v31, 3, v19")
        e("v_lshlrev_b32 v30, 1, v30")
        e("v_bfe_u32 v31, v%d, 1, 1" % vC)
        e("v_or_b32 v30, v30, v31")
        e("v_lshl_add_u32 v%d, v30, 4, v19" % vZB)
        e("v_lshrrev_b32 v19, 3, v%d" % vLANE)
        if hf:
            e("v_add_u32 v19, 8, v19")
        e("v_and_b32 v30, 7, v%d" % vLANE)
        e("v_lshlrev_b32 v%d, 15, v19" % vGO)
        e("v_lshl_add_u32 v%d, v30, 4, v%d" % (vGO, vGO))
        e("v_lshlrev_b32 v30, 1, v30")
        e("v_xor_b32 v30, v30, v19")
        e("v_lshlrev_b32 v30, 4, v30")
        e("v_lshl_add_u32 v30, v19, 8, v30")
        e("s_lshl_b32 s%d, s%d, 12" % (sT0, sRW))
        e("v_add_u32 v%d, s%d, v30" % (vR0, sT0))
        e("v_xor_b32 v%d, 16, v%d" % (vR1, vR0))
        e("v_xor_b32 v%d, v%d, v%d" % (vYW, vQ, vC))
        e("v_lshlrev_b32 v%d, 4, v%d" % (vYW, vYW))
        e("v_lshl_add_u32 v%d, v%d, 8, v%d" % (vYW, vC, vYW))
        e("s_lshl_b32 s%d, s%d, 19" % (sXO, sWP))
        e("s_lshl2_add_u32 s%d, s%d, s%d" % (sT0, sA, sRW))
        e("s_lshl_b32 s%d, s%d, 10" % (sT0, sT0))
        e("s_add_u32 s%d, s%d, s%d" % (sXO, sXO, sT0))
        e("s_lshl_b32 s%d, s%d, 7" % (sT0, sDB))
        e("s_add_u32 s%d, s%d, s%d" % (sXO, sXO, sT0))
    XV = 248

    def xe_load():
        e("buffer_load_dwordx4 %s, v%d, %s, s%d offen" % (vr(XV, 4), vGO, srd(SX), sXO))
        k.vm.issue("xe")

    e("s_cmp_ge_u32 s2, 256")
    e("s_cbranch_scc1 L_done")
    k.stamp(0)
    k.stamp(1, real=True)
    e("s_load_dwordx2 s[%d:%d], s[0:1], 0" % (SX, SX + 1))
    e("s_load_dwordx2 s[%d:%d], s[0:1], 32" % (SW1, SW1 + 1))
    e("s_load_dwordx2 s[%d:%d], s[0:1], 64" % (SWS, SWS + 1))
    e("s_load_dwordx2 s[%d:%d], s[0:1], 8" % (SWR, SWR + 1))
    e("s_load_dwordx2 s[%d:%d], s[0:1], 16" % (SWI, SWI + 1))
    e("s_load_dwordx2 s[%d:%d], s[0:1], 40" % (SW2, SW2 + 1))
    e("s_load_dwordx2 s[%d:%d], s[0:1], 48" % (SOUT, SOUT + 1))
    e("v_lshrrev_b32 v19, 6, v0")
    e("s_getpc_b64 s[%d:%d]" % (sT1, sT2))
    k.lab("L_pc")
    e("s_andn2_b32 s%d, s2, 7" % sT0)
    e("v_add_lshl_u32 v20, v19, s%d, 7" % sT0)
    e("v_min_u32 v20, L_end-L_pc-4, v20")
    e("v_mov_b32 v21, s%d" % sT2)
    e("v_add_co_u32 v20, vcc, s%d, v20" % sT1)
    e("v_readfirstlane_b32 s%d, v19" % sHF)
    e("v_and_b32 v%d, 63, v0" % vLANE)
    e("v_addc_co_u32 v21, vcc, 0, v21, vcc")
    e("global_load_dword v247, v[20:21], off")
    k.vm.issue("touch")
    for s_, nb in ((SX, X_BYTES), (SWR, W_BYTES), (SWI, W_BYTES), (SW1, W1_BYTES), (SW2, W1_BYTES), (SOUT, X_BYTES), (SWS, WS_BYTES)):
        e("s_mov_b32 s%d, 0x%x" % (s_ + 2, nb))
        e("s_mov_b32 s%d, 0x00020000" % (s_ + 3))
    e("v_and_b32 v%d, 15, v0" % vC)
    e("v_bfe_u32 v%d, v0, 4, 2" % vQ)
    e("v_lshlrev_b32 v%d, 4, v%d" % (vL16, vLANE))
    e("v_mov_b32 v%d, 0x%x" % (vCNT, L_CNT))
    e("s_and_b32 s%d, s2, 7" % sA)
    e("s_lshr_b32 s%d, s2, 6" % sWP)
    e("s_bfe_u32 s%d, s2, 0x30003" % sDB)
    e("s_and_b32 s%d, s%d, 3" % (sRW, sHF))
    e("s_lshr_b32 s%d, s%d, 1" % (sPB, sA))
    e("s_lshl2_add_u32 s%d, s%d, s%d" % (sPB, sPB, sWP))
    e("s_and_b32 s%d, s%d, 1" % (sT0, sA))
    e("s_lshl3_add_u32 s%d, s%d, s%d" % (sCBK, sT0, sDB))
    e("s_lshl1_add_u32 s%d, s%d, s%d" % (sR, sWP, sDB))
    if P("ROT", 44) == 44:
        e("s_add_u32 s%d, s%d, s%d" % (sR, sWP, sDB))
        e("s_and_b32 s%d, s%d, 1" % (sR, sR))
        e("s_lshl_b32 s%d, s%d, 2" % (sR, sR))
    elif P("ROT", 44) == 66:
        e("s_add_u32 s%d, s%d, s%d" % (sR, sWP, sDB))
        e("s_and_b32 s%d, s%d, 3" % (sR, sR))
        e("s_lshl_b32 s%d, s%d, 1" % (sR, sR))
    else:
        e("s_and_b32 s%d, s%d, %d" % (sR, sR, P("ROT", 44)))
    e("s_lshl2_add_u32 s%d, s%d, s%d" % (sRS, sPB, sRW))
    e("s_lshr_b32 s%d, s%d, 1" % (sA, sPB))
    e("s_and_b32 s%d, s%d, 1" % (sT3, sPB))
    e("s_lshl1_add_u32 s%d, s%d, s%d" % (sWP, sT3, sT0))
    e("s_lshr_b32 s%d, s%d, 2" % (sHF, sHF))
    e("s_cbranch_scc1 L_fft")
    q_vm = list(k.vm.q)

    sXB, sM4, sM2, sHS, sFH, sHB, sFHC, sW2B = 48, 57, 58, 59, 60, 61, 62, 63
    TV = [50, 51, 52, 53, 54, 55, 56]
    sRSW, sCG, sRB = sPB, sHF, sCBK
    e("s_lshl_b32 s%d, s%d, 20" % (sXB, sT3))
    e("s_lshl2_add_u32 s%d, s%d, s%d" % (sT1, sA, sRW))
    e("s_lshl_b32 s%d, s%d, 10" % (sT1, sT1))
    e("s_add_u32 s%d, s%d, s%d" % (sXB, sXB, sT1))
    e("v_lshrrev_b32 v10, 3, v%d" % vLANE)
    e("v_and_b32 v12, 7, v%d" % vLANE)
    e("v_xor_b32 v6, v12, v%d" % vQ)
    e("v_lshlrev_b32 v6, 4, v6")
    e("v_lshl_add_u32 v6, v10, 15, v6")
    e("v_xor_b32 v7, 64, v6")
    e("v_add_u32 v7, 0x40000, v7")
    e("s_lshl_b32 s%d, s%d, 12" % (sM4, sRW))
    e("s_lshl_b32 s%d, s%d, 11" % (sM2, sRW))
    e("s_sub_u32 s%d, s%d, s%d" % (sF0, sCBK, sT0))
    e("s_lshl_b32 s%d, s%d, 8" % (sF0, sF0))
    e("s_cmp_eq_u32 s%d, 7" % sDB)
    e("s_cselect_b32 s%d, 0x%x, s%d" % (sF0, 0x08000000, sF0))
    e("s_waitcnt lgkmcnt(0)")
    e("s_load_dword s%d, s[%d:%d], 0x%x" % (sTAG, SWS, SWS + 1, EPOCH_OFF))

    def xdma(kk):
        def item(ee):
            def f():
                e("s_add_u32 m0, s%d, %d" % (sM4, XSLOT[kk] + ee * 1024))
                if ee == 0:
                    e("s_add_u32 s%d, s%d, %d" % (sXT, sR, kk))
                    e("s_and_b32 s%d, s%d, 7" % (sXT, sXT))
                    e("s_lshl_b32 s%d, s%d, 7" % (sXT, sXT))
                    e("s_add_u32 s%d, s%d, s%d" % (sXT, sXT, sXB))
                elif ee == 2:
                    e("s_add_u32 s%d, s%d, 0x80000" % (sXT, sXT))
                else:
                    k.nop(1)
                e("buffer_load_dwordx4 v%d, %s, s%d offen lds" % (6 + (ee & 1), srd(SX), sXT))
                k.vm.issue(("X", kk))
            return f
        return [item(ee) for ee in range(4)]

    def w1dma(reg, kk):
        off = " offset:128" if reg else ""
        lb = (LA - 128 if reg else LB) + kk * 8192

        def f0():
            e("s_add_u32 s%d, s%d, %d" % (sDT, sR, kk))
            e("s_and_b32 s%d, s%d, 7" % (sDT, sDT))
            e("s_mul_i32 s%d, s%d, %d" % (sDT, sDT, 64 * 3584))
            e("s_add_u32 m0, s%d, %d" % (sM2, lb + 128))
            e("s_add_u32 s%d, s%d, s%d" % (sDT, sDT, sF0))
            if reg:
                e("s_add_u32 s%d, s%d, 128" % (sDT, sDT))
            else:
                e("s_add_u32 m0, s%d, %d" % (sM2, lb))
                k.nop(1)
            e("buffer_load_dwordx4 v8, %s, s%d offen lds" % (srd(SW1), sDT))
            k.vm.issue(("W1", reg, kk))

        def f1():
            e("s_add_u32 m0, s%d, %d" % (sM2, (LA if reg else LB) + kk * 8192 + 1024))
            k.nop(1)
            e("buffer_load_dwordx4 v9, %s, s%d offen lds" % (srd(SW1), sDT))
            k.vm.issue(("W1", reg, kk))
        return [f0, f1]

    def mtouch(sr_):
        e("s_lshl2_add_u32 s%d, s2, s%d" % (sT0, sRW))
        e("s_mul_i32 s%d, s%d, %d" % (sT0, sT0, 14 * 128))
        e("v_lshlrev_b32 v19, 7, v%d" % vLANE)
        e("s_mov_b32 m0, 0x%x" % L_DUM)
        e("s_mov_b64 exec, 0x3fff")
        e("buffer_load_dword v19, %s, s%d offen lds" % (srd(sr_), sT0))
        k.vm.issue("touch")
        e("s_mov_b64 exec, -1")
    T1P, T2P = P("T1P", 1), P("T2P", 4)

    def touches(pos):
        if T1P == pos:
            mtouch(SW1)
        if T2P == pos:
            mtouch(SW2)
    run(xdma(0))
    touches(0)
    run(xdma(1))
    touches(1)
    k.stamp(2)
    e("s_lshl_b32 s%d, s%d, 4" % (sT0, sRW))
    e("v_add_u32 v11, s%d, v10" % sT0)
    e("v_mul_u32_u24 v11, 3584, v11")
    e("v_and_b32 v13, 1, v%d" % vQ)
    e("v_lshlrev_b32 v13, 1, v13")
    e("v_xor_b32 v13, v13, v12")
    e("v_lshl_add_u32 v8, v13, 4, v11")
    e("v_xor_b32 v13, 4, v13")
    e("v_lshl_add_u32 v9, v13, 4, v11")
    e("v_add_u32 v9, %d, v9" % (8 * 3584))
    vWS, vWW, vWR, vD2 = 15, 14, 13, 24
    e("v_lshlrev_b32 v15, 13, v10")
    e("v_lshl_add_u32 v15, v12, 4, v15")
    e("s_lshl_b32 s%d, s%d, 1" % (sT0, sRW))
    e("v_xor_b32 v14, s%d, v12" % sT0)
    e("v_lshlrev_b32 v14, 4, v14")
    e("v_lshl_add_u32 v14, v%d, 7, v14" % vLANE)
    e("v_add_u32 v14, 0x%x, v14" % L_WT)
    e("v_xor_b32 v13, v10, v12")
    e("v_lshlrev_b32 v13, 4, v13")
    e("v_lshl_add_u32 v13, v10, 7, v13")
    e("s_add_u32 s%d, s%d, 0x%x" % (sT0, sM2, L_WT))
    e("v_add_u32 v13, s%d, v13" % sT0)
    e("v_lshlrev_b32 v19, 1, v%d" % vQ)
    e("v_xor_b32 v19, v19, v12")
    e("v_lshlrev_b32 v19, 4, v19")
    e("v_lshl_add_u32 v%d, v10, 10, v19" % vD2)
    xread_addr(26)
    e("v_mov_b32 v19, 0")
    e("v_lshl_add_u32 v30, v%d, 2, v%d" % (vC, vCNT))
    e("ds_write_b32 v30, v19")
    XF, AF, ACC, HO, CS, ONES = 128, 32, 64, 32, 112, 116
    TRB = [16, 17, 18, 20]
    e("v_lshrrev_b32 v19, 2, v%d" % vC)
    e("v_lshl_add_u32 v30, v%d, 3, v19" % vQ)
    e("v_lshlrev_b32 v30, 7, v30")
    e("v_and_b32 v31, 1, v%d" % vC)
    e("v_lshl_add_u32 v30, v31, 3, v30")
    e("v_bfe_u32 v19, v%d, 3, 1" % vC)
    e("v_and_b32 v31, 1, v%d" % vQ)
    e("v_lshl_or_b32 v19, v31, 1, v19")
    e("v_lshlrev_b32 v19, 1, v19")
    e("v_bfe_u32 v31, v%d, 1, 1" % vC)
    e("v_or_b32 v19, v19, v31")
    e("v_lshl_add_u32 v30, v19, 4, v30")
    e("v_add_u32 v30, 0x%x, v30" % LB)
    for l in range(4):
        e("v_xor_b32 v%d, %d, v30" % (TRB[l], 32 * l))
    vCSA, RN, C1 = 99, 120, [108, 112, 116, 124]
    TR2 = [100, 101, 102, 103]
    HV = [104, 105, 106, 107]
    vFH = 106
    def setup_a():
        e("v_lshlrev_b32 v%d, 4, v%d" % (vCSA, vQ))
        e("v_add_u32 v%d, 0x%x, v%d" % (vCSA, L_CS, vCSA))
        e("s_lshl_b32 s%d, s%d, 9" % (sT0, sRW))
        e("s_add_u32 s%d, s%d, 0x%x" % (sT0, sT0, L_ST))
        e("v_lshl_add_u32 v96, v%d, 2, s%d" % (vC, sT0))
        e("s_mul_i32 s%d, s%d, %d" % (sHB, sRS, 2 * 56 * 1024))
        e("s_add_u32 s%d, s%d, 0x%x" % (sHB, sHB, H_OFF))
        e("s_lshl4_add_u32 s%d, s%d, s%d" % (sHS, sF0, sHB))
        e("s_and_b32 s%d, s2, 1" % sT2)
        e("s_lshl1_add_u32 s%d, s%d, s%d" % (sFHC, sPB, sT2))
        e("s_lshl2_add_u32 s%d, s%d, s%d" % (sFHC, sFHC, sRW))
        e("s_lshl_b32 s%d, s%d, 7" % (sFHC, sFHC))
        e("s_add_u32 s%d, s%d, 0x%x" % (sFHC, sFHC, FH_OFF))
        e("s_lshl2_add_u32 s%d, s%d, s%d" % (sFH, sDB, sFHC))
        e("s_mul_i32 s%d, s%d, 7" % (sT0, sT2))
        e("s_lshr_b32 s%d, s2, 6" % sT1)
        e("s_lshl1_add_u32 s%d, s%d, s%d" % (sT1, sT1, sDB))
        e("s_and_b32 s%d, s%d, 7" % (sT1, sT1))
        e("s_cmp_eq_u32 s%d, 7" % sT1)
        e("s_cselect_b32 s%d, 0, s%d" % (sT1, sT1))
        for i in range(7):
            e("s_add_u32 s%d, s%d, s%d" % (TV[i], sT1, sT0))
            if i < 6:
                e("s_add_u32 s%d, s%d, 1" % (sT1, sT1))
                e("s_cmp_eq_u32 s%d, 7" % sT1)
                e("s_cselect_b32 s%d, 0, s%d" % (sT1, sT1))
        e("s_lshl_b32 s%d, s%d, 7" % (sW2B, sDB))
        e("s_lshl_b32 s%d, s%d, 14" % (sT0, sRW))
        e("s_add_u32 s%d, s%d, s%d" % (sW2B, sW2B, sT0))
        e("s_mul_i32 s%d, s%d, %d" % (sT0, sT2, 56 * 1024))
        e("v_add_u32 v%d, s%d, v%d" % (HV[0], sT0, vL16))
        e("s_sub_u32 s%d, %d, s%d" % (sT0, 56 * 1024, sT0))
        e("v_add_u32 v%d, s%d, v%d" % (HV[1], sT0, vL16))
        e("v_min_u32 v19, 6, v%d" % vLANE)
        e("v_lshlrev_b32 v%d, 2, v19" % vFH)
        late_setup(0)
        e("v_add_u32 v30, 0x%x, v%d" % (LB, vZB))
        for l in range(4):
            e("v_xor_b32 v%d, %d, v30" % (TR2[l], 32 * l))

    setup_a()
    run(xdma(2))
    run(xdma(3))
    touches(2)
    tag_setup()
    k.stamp(3)

    def X(u, T):
        return vr(XF + (T * 2 + u) * 4, 4)

    WR16 = 64

    def wloads():
        items = []

        def head():
            e("s_lshr_b32 s%d, s2, 5" % sRSW)
            e("s_and_b32 s%d, s2, 7" % sT1)
            e("s_lshl3_add_u32 s%d, s%d, s%d" % (sRSW, sT1, sRSW))
            e("s_and_b32 s%d, s%d, 3" % (sCG, sDB))
            e("s_lshr_b32 s%d, s%d, 4" % (sT1, sRSW))
            e("s_lshl_b32 s%d, s%d, 4" % (sT1, sT1))
            e("s_lshl1_add_u32 s%d, s%d, s%d" % (sT1, sRW, sT1))
            e("s_and_b32 s%d, s%d, 1" % (sT2, sRSW))
            e("s_lshl3_add_u32 s%d, s%d, s%d" % (sT1, sT2, sT1))
            e("s_bfe_u32 s%d, s%d, 0x30001" % (sT2, sRSW))
            e("s_lshl_b32 s%d, s%d, 8" % (sT2, sT2))
            e("s_add_u32 s%d, s%d, s%d" % (sT1, sT1, sT2))
            e("s_mul_i32 s%d, s%d, 514" % (sT1, sT1))
            e("s_lshl_b32 s%d, s%d, 7" % (sT4, sCG))
            e("s_add_u32 s%d, s%d, s%d" % (sT4, sT4, sT1))
            e("v_lshlrev_b32 v11, 1, v%d" % vLANE)
            e("v_and_b32 v19, 3, v%d" % vLANE)
            e("v_mul_u32_u24 v19, 32896, v19")
            e("v_bfe_u32 v30, v%d, 2, 1" % vLANE)
            e("v_mul_u32_u24 v30, 514, v30")
            e("v_add_u32 v19, v19, v30")
            e("s_cmp_eq_u32 s%d, 3" % sCG)
            e("s_cselect_b32 s%d, s%d, 0x%x" % (sT1, sT1, OOB))
            e("buffer_load_ushort v120, v19, %s, s%d offen offset:512" % (srd(SWR), sT1))
            k.vm.issue("wg")
            e("buffer_load_ushort v121, v19, %s, s%d offen offset:512" % (srd(SWI), sT1))
            k.vm.issue("wg")
        items.append(head)
        nt = " nt" if P("NTW", 0) else ""
        for r in range(4):
            def f(r=r):
                if r:
                    e("s_add_u32 s%d, s%d, 32896" % (sT4, sT4))
                for cb in range(2):
                    for arr, sr_ in ((0, SWR), (1, SWI)):
                        e("buffer_load_ushort v%d, v11, %s, s%d offen offset:%d%s" % (WR16 + 8 * cb + 4 * arr + r, srd(sr_), sT4, 514 * cb, nt))
                        k.vm.issue("wg")
            items.append(f)
        return items

    def wt_a():
        k.wait_vm("wg")
        for cb in range(2):
            for r in range(4):
                e("v_lshl_or_b32 v%d, v%d, 16, v%d" % (WR16 + 8 * cb + r, WR16 + 8 * cb + 4 + r, WR16 + 8 * cb + r))
        e("v_lshl_or_b32 v120, v121, 16, v120")
        e("ds_write_b128 v%d, %s" % (vWW, vr(WR16, 4)))
        k.lg.issue("wtw")
        e("v_xor_b32 v19, 16, v%d" % vWW)
        e("ds_write_b128 v19, %s" % vr(WR16 + 8, 4))
        k.lg.issue("wtw")
        e("s_lshl_b32 s%d, s%d, 5" % (sT0, sRW))
        e("s_add_u32 s%d, s%d, 0x%x" % (sT0, sT0, L_W256))
        e("v_lshl_add_u32 v19, v%d, 2, s%d" % (vLANE, sT0))
        e("s_mov_b64 exec, 0xff")
        e("ds_write_b32 v19, v120")
        k.lg.issue("wtw")
        e("s_mov_b64 exec, -1")

    def wt_b():
        for h in range(2):
            e("ds_read_b128 %s, v%d offset:%d" % (vr(WR16 + 4 * h, 4), vWR, 1024 * h))
            k.lg.issue("wtr")
        e("v_add_u32 v19, 0x%x, v%d" % (L_W256, vL16))
        e("ds_read_b128 %s, v19" % vr(WR16 + 8, 4))
        k.lg.issue("wtr")

    def wt_c():
        k.wait_lg("wtr")
        e("s_lshl2_add_u32 s%d, s%d, s%d" % (sT2, sCG, sRW))
        e("s_lshl_b32 s%d, s%d, 17" % (sT0, sT2))
        e("s_lshl_b32 s%d, s%d, 7" % (sT1, sRSW))
        e("s_add_u32 s%d, s%d, s%d" % (sT0, sT0, sT1))
        e("s_add_u32 s%d, s%d, 0x%x" % (sT0, sT0, WT_OFF))
        e("buffer_store_dwordx4 %s, v%d, %s, s%d offen sc1" % (vr(WR16, 4), vWS, srd(SWS), sT0))
        k.vm.issue("wtst")
        e("s_add_u32 s%d, s%d, 0x10000" % (sT0, sT0))
        e("buffer_store_dwordx4 %s, v%d, %s, s%d offen sc1" % (vr(WR16 + 4, 4), vWS, srd(SWS), sT0))
        k.vm.issue("wtst")
        e("s_add_u32 s%d, s%d, 0x%x" % (sT1, sT1, WT_OFF + 256 * 8192))
        e("s_cmp_eq_u32 s%d, 12" % sT2)
        e("s_cselect_b32 s%d, s%d, 0x%x" % (sT1, sT1, OOB))
        e("s_mov_b64 exec, 0xff")
        e("buffer_store_dwordx4 %s, v%d, %s, s%d offen sc1" % (vr(WR16 + 8, 4), vL16, srd(SWS), sT1))
        k.vm.issue("wtst")
        e("s_mov_b64 exec, -1")

    def wt_d():
        e("s_lshl2_add_u32 s%d, s%d, s%d" % (sT2, sCG, sRW))
        e("s_lshr_b32 s%d, s%d, 2" % (sT1, sRSW))
        e("s_lshl4_add_u32 s%d, s%d, s%d" % (sT0, sT2, sT1))
        e("s_lshl_b32 s%d, s%d, 7" % (sT0, sT0))
        e("s_and_b32 s%d, s%d, 3" % (sT1, sRSW))
        e("s_lshl2_add_u32 s%d, s%d, s%d" % (sT0, sT1, sT0))
        e("s_add_u32 s%d, s%d, 0x%x" % (sT0, sT0, FW_OFF))
        e("s_add_u32 s%d, s%d, 0x%x" % (sT1, sT0, 4 * 2048))
        e("s_cmp_eq_u32 s%d, 12" % sT2)
        e("s_cselect_b32 s%d, s%d, 0x%x" % (sT1, sT1, OOB))
        k.wait_vm("wtst")
        publish("s%d" % sT0)
        publish("s%d" % sT1)
        e("s_mov_b32 s%d, 0" % sHF)

    def xstage(s_):
        for kk in (2 * s_, 2 * s_ + 1):
            for u in range(2):
                for ks in range(2):
                    xread(X(u, 2 * kk + ks), 26, kk, u, ks, ("XR", s_))
    WPOS = P("WPOS", -1)
    if WPOS < 0:
        run(wloads())
    for s_ in range(4):
        k.wait_vm(("X", 2 * s_ + 1))
        if s_:
            k.wait_lg([("XR", s_ - 1)] + (["wtw"] if s_ == WPOS + 3 else []))
        e("s_barrier")
        fs(6, 2 + s_)
        xstage(s_)
        if s_ == WPOS + 3:
            wt_b()
        if s_ < 2:
            run(xdma(4 + 2 * s_) + xdma(5 + 2 * s_))
        WAS = [int(x_) for x_ in os.environ.get("WAS", "0,0,4,8").split(",")]
        for kk in range(WAS[s_ - 1] if s_ else 0, WAS[s_]):
            run(w1dma(0, kk))
        if s_ == WPOS:
            run(wloads())
        touches(3 + s_)
        if s_ == WPOS + 2:
            wt_a()
        if s_ == WPOS + 3:
            wt_c()
    k.wait_vm([("W1", 0, kk) for kk in range(4)])
    k.wait_lg(("XR", 3))
    e("s_barrier")
    k.stamp(4)
    fs(6, 6)


    def rdA(reg, T):
        items = []
        for l in range(4):
            for hh in range(2):
                def f(l=l, hh=hh):
                    e("ds_read_b64_tr_b16 %s, v%d offset:%d" % (vr(AF + (T & 1) * 16 + 4 * l + 2 * hh, 2), TRB[l], T * 4096 + hh * 512))
                    k.lg.issue(("A", reg, T))
                items.append(f)
        return items

    WLE = P("WLE", 4)
    CFB = P("CFB", 10) if WLE else 14

    def gpass(reg, hooks, mid):
        fs(8 + reg, 2)
        run(rdA(reg, 0))
        for T in range(16):
            k.wait_lg(("A", reg, T))
            if T == 7:
                gcheck(mid, 107)
            if T == 6:
                gpeek(mid, 107)
            if T == (CFB if reg else 14):
                gpeek(C_FB if reg else C_FA, 107)
            if T == CFB and reg and WLE:
                gpeek(C_HB, 97)
            if T == 15 and reg == 0:
                gpeek(C_WB1, 97)
            if T == 0 and reg == 1:
                gpeek(C_CSA, 98)
            if T + 1 < 16:
                sch["lds"].extend(rdA(reg, T + 1))
            for l in range(4):
                a = vr(AF + (T & 1) * 16 + 4 * l, 4)
                if P("M32", 0):
                    c = vr(ACC + 16 * (l & 1), 16)
                    mf32(c, a, X(l >> 1, T), c if (T or l > 1) else "0")
                    continue
                for u in range(2):
                    c = vr(ACC + (l * 2 + u) * 4, 4)
                    mf(c, a, X(u, T), c if T else "0")
            flush_lds()
            run(hooks.get(T, []))
            if T < 11:
                fs(8 + reg, 3 + T)
        flush_side()

    def c1_fetch(reg):
        def f():
            gcheck(C_FB if reg else C_FA, 107)
            if reg == 0:
                for u in range(2):
                    e("ds_read2_b32 %s, v96 offset0:%d offset1:%d" % (vr(RN + 2 * u, 2), 32 + 16 * u, 16 * u))
                    k.lg.issue(("C1", reg))
            for l in range(4):
                e("ds_read_b128 %s, v%d offset:%d" % (vr(C1[l], 4), vCSA, 256 * reg + 64 * l))
                k.lg.issue(("C1", reg))
        return f

    def h_out(reg, cw, tag):
        garrive(cw)
        e("s_add_u32 s%d, s%d, %d" % (sT2, sHS, 2048 * reg))
        e("s_add_u32 s%d, s%d, %d" % (sT3, sHS, 2048 * reg + 56 * 1024))
        k.wait_lg(("C1", reg))
        for pr in range(2):
            for u in range(2):
                o = HO + (pr * 2 + u) * 4
                for l in (2 * pr, 2 * pr + 1):
                    a = ACC + (l * 2 + u) * 4
                    for r in (0, 2):
                        e("v_pk_fma_f32 %s, %s, %s, %s op_sel_hi:[1,0,1]" % (vr(a + r, 2), vr(C1[l] + r, 2), vr(RN + 2 * u, 2), vr(a + r, 2)))
                for l in (2 * pr, 2 * pr + 1):
                    a = ACC + (l * 2 + u) * 4
                    e("v_cvt_pk_bf16_f32 v%d, v%d, v%d" % (o + (l & 1) * 2, a, a + 1))
                    e("v_cvt_pk_bf16_f32 v%d, v%d, v%d" % (o + (l & 1) * 2 + 1, a + 2, a + 3))
                for i in range(4):
                    e("v_pk_max_i16 v%d, v%d, 0" % (o + i, o + i))
                HS = P("HS", 0)
                if HS != 1:
                    e("buffer_store_dwordx4 %s, v%d, %s, s%d offen offset:%d sc1" % (vr(o, 4), vL16, srd(SWS), sT2 + u, 1024 * pr))
                    k.vm.issue(tag)
                if HS:
                    e("buffer_store_dwordx4 %s, v%d, %s, s%d offen offset:%d" % (vr(o, 4), vL16, srd(SWS), sT2 + u, 1024 * pr))
                    k.vm.issue(tag)

    def land(reg, lo, hi, cw):
        def f():
            k.wait_vm([("W1", reg, kk) for kk in range(lo, hi)])
            garrive(cw)
        return f

    sch["gap"] = P("GAPA", 4)
    for kk in range(8):
        side.extend(w1dma(1, kk))
    ha = {P("LWA", 3): [land(0, 4, 8, C_WA2)], P("LB1", 11): [land(1, 0, 4, C_WB1)], P("WTD", 2): [wt_d], P("LB2", 13): [land(1, 4, 8, C_WB2)], 14: [c1_fetch(0)]}
    def w2l2(part, nparts):
        def f():
            n = 56 // nparts
            e("s_lshr_b32 s%d, s2, 3" % sT0)
            e("s_lshl2_add_u32 s%d, s%d, s%d" % (sT0, sT0, sRW))
            e("s_and_b32 s%d, s2, 1" % sT1)
            e("s_lshl_b32 s%d, s%d, 7" % (sT1, sT1))
            e("s_add_u32 s%d, s%d, s%d" % (sT0, sT0, sT1))
            e("s_mul_i32 s%d, s%d, %d" % (sT0, sT0, 56 * 128))
            e("v_lshlrev_b32 v19, 7, v%d" % vLANE)
            e("s_mov_b32 m0, 0x%x" % (L_DUM - part * n * 128 % 4096 * 0))
            m = ((1 << n) - 1) << (part * n)
            e("s_mov_b32 exec_lo, 0x%x" % (m & 0xffffffff))
            e("s_mov_b32 exec_hi, 0x%x" % (m >> 32))
            e("buffer_load_dword v19, %s, s%d offen lds" % (srd(SW2), sT0))
            k.vm.issue("touch")
            e("s_mov_b64 exec, -1")
        return f
    W2A = [int(x_) for x_ in os.environ.get("W2A", "").split(",") if x_]
    for i_, T_ in enumerate(W2A):
        ha.setdefault(T_, []).append(w2l2(i_, len(W2A)))
    gpass(0, ha, C_WA2)
    k.stamp(5)
    h_out(0, C_CSA, "ha")
    k.stamp(6)

    for l in range(4):
        e("v_subrev_u32 v%d, 0x%x, v%d" % (TRB[l], LB, TRB[l]))
    gcheck(C_WB1, 97)

    def w2_dma(late, j):
        lb = (LA if late else LB) + j * 8192

        def f0():
            e("s_add_u32 m0, s%d, %d" % (sM2, lb))
            e("s_lshl_b32 s%d, s%d, 17" % (sDT, TV[j]))
            e("s_add_u32 s%d, s%d, s%d" % (sDT, sDT, sW2B))
            if late:
                e("s_add_u32 s%d, s%d, 0x10000" % (sDT, sDT))
            e("buffer_load_dwordx4 v%d, %s, s%d offen lds" % (vD2, srd(SW2), sDT))
            k.vm.issue(("W2", late))

        def f1():
            e("s_add_u32 m0, s%d, %d" % (sM2, lb + 1024))
            e("s_add_u32 s%d, s%d, 8192" % (sDT, sDT))
            e("buffer_load_dwordx4 v%d, %s, s%d offen lds" % (vD2, srd(SW2), sDT))
            k.vm.issue(("W2", late))
        return [f0, f1]

    def rdW(n):
        items = []
        for l in range(4):
            for hh in range(2):
                def f(l=l, hh=hh):
                    e("ds_read_b64_tr_b16 %s, v%d offset:%d" % (vr(AF + (n & 1) * 16 + 4 * l + 2 * hh, 2), TR2[l], (n % 14) * 4096 + hh * 2048))
                    k.lg.issue(("W2R", n))
                items.append(f)
        return items

    def hload(n):
        late, m = n // 14, n % 14

        def item(u):
            def f():
                if u == 0 and m % 2 == 0:
                    e("s_lshl_b32 s%d, s%d, 12" % (sXT, TV[m // 2]))
                    e("s_add_u32 s%d, s%d, s%d" % (sXT, sXT, sHB))
                e("buffer_load_dwordx4 %s, v%d, %s, s%d offen offset:%d sc1" % (X(u, m), HV[u], srd(SWS), sXT, 2048 * late + 1024 * (m & 1)))
                k.vm.issue(("H", n))
            return f
        return [item(0), item(1)]

    def pubHA():
        k.wait_vm("ha")
        publish("s%d" % sFH)
        e("s_add_u32 s%d, s%d, 0x%x" % (sFH, sFH, FHB_D))

    def landW(late, cw):
        def f():
            k.wait_vm(("W2", late))
            garrive(cw)
        return f
    hb = {T: [] for T in range(16)}
    hb[P("W2T0", 0)].append(lambda: gcheck(C_CSA, 98))
    hb[P("W2T0", 0)].append(lambda: [side.extend(w2_dma(0, j)) for j in range(7)])
    hb[CFB].append(c1_fetch(1))
    if WLE:
        hb[8].append(lambda: garrive(C_HB))
        hb[CFB].append(lambda: gcheck(C_HB, 97))
        hb[CFB].append(lambda: [side.extend(w2_dma(1, j)) for j in range(WLE)])
    hb[P("PHA", 3)].append(pubHA)
    HLA = P("HLA", 6)
    HE = P("HE", 17)
    hb[min(HE - 2, P("PPA", 12))].append(lambda: poll_issue("ph", vFH, "s%d" % sFHC, 31))
    if HE < 16:
        def hearly():
            poll_check("ph", vFH, "s%d" % sFHC, 31)
            for n in range(HLA):
                side.extend(hload(n))
            sch["gap"] = P("GAPH", 2)
        hb[HE].append(hearly)

    def w2touch():
        e("s_lshr_b32 s%d, s2, 6" % sT0)
        e("s_lshl2_add_u32 s%d, s%d, s%d" % (sT0, sT0, sRW))
        e("s_mul_i32 s%d, s%d, 28" % (sT0, sT0))
        e("v_add_u32 v19, s%d, v%d" % (sT0, vLANE))
        e("v_and_b32 v30, 0xffc0, v19")
        e("v_add3_u32 v19, v19, v30, 64")
        e("v_lshlrev_b32 v19, 10, v19")
        e("s_and_b32 s%d, s2, 1" % sT0)
        e("s_mul_i32 s%d, s%d, %d" % (sT0, sT0, 896 * 1024))
        e("s_lshl_b32 s%d, s%d, 7" % (sT1, sDB))
        e("s_add_u32 s%d, s%d, s%d" % (sT0, sT0, sT1))
        e("s_mov_b32 m0, 0x%x" % L_DUM)
        e("s_mov_b64 exec, 0xfffffff")
        e("buffer_load_dword v19, %s, s%d offen lds" % (srd(SW2), sT0))
        k.vm.issue("touch")
        e("s_mov_b64 exec, -1")
    if P("W2L", 99) < 16:
        hb[P("W2L", 99)].append(w2touch)
    hb[P("LE1", 13)].append(landW(0, C_E1))
    sch["gap"] = P("GAPB", 4)
    gpass(1, hb, C_WB2)
    k.stamp(7)
    fs(10, 2)
    if HE == 16:
        poll_check("ph", vFH, "s%d" % sFHC, 31)
        fs(10, 3)
        for n in range(HLA):
            run(hload(n))
    fs(10, 4)
    gpeek(C_E1, 97)
    h_out(1, C_CSB, "hb")
    fs(10, 5)
    if HE == 17:
        poll_check("ph", vFH, "s%d" % sFHC, 31, pre=["    s_waitcnt vmcnt(0)"] + publish_lines("s%d" % sFH))
        for n in range(HLA):
            run(hload(n))
    k.stamp(8)
    gcheck(C_E1, 97)
    run(rdW(0))
    gpeek(C_CSB, 98)
    sch["gap"] = P("GAP3", 2)
    sch["nl"] = P("NLD", 1)
    fs(7, 2)
    fs(10, 6)
    LCH = 14 - P("LLA", 5)
    nxt = HLA
    wl = [it for j in range(WLE, 7) for it in w2_dma(1, j)]
    for n in range(28):
        k.wait_lg(("W2R", n))
        if n == LCH:
            poll_check("phb", vFH, "s%d" % sFHC, 31)
        lim = 14 if n < LCH else 28
        cnt = 0
        while nxt < min(lim, n + 1 + HLA) and nxt - 14 < n and cnt < 2:
            side.extend(hload(nxt))
            nxt += 1
            cnt += 1
        if n == 0:
            gcheck(C_CSB, 98)
        if wl:
            side.extend(wl[:2])
            wl = wl[2:]
        k.wait_vm(("H", n))
        if n == P("PHB", 0):
            k.wait_vm("hb")
            publish("s%d" % sFH)
        if n == LCH - P("PPB", 1):
            e("s_add_u32 s%d, s%d, 0x%x" % (sFHC, sFHC, FHB_D))
            poll_issue("phb", vFH, "s%d" % sFHC, 31)
        if n == 10:
            landW(1, C_L1)()
        if n == 12:
            gpeek(C_L1, 107)
        if n == P("ZG1", 8):
            garrive(C_ST)
        if n == P("ZGO", 13):
            garrive(C_WT)
        if n == 13:
            for l in range(4):
                e("v_subrev_u32 v%d, 0x%x, v%d" % (TR2[l], LB, TR2[l]))
            gcheck(C_L1, 107)
        if n in (20, 21):
            for i in range(4):
                e("v_mov_b32 v%d, v%d" % (128 + 8 * (n - 20) + 2 * i + 1, vTAG))
        if n + 1 < 28:
            sch["lds"].extend(rdW(n + 1))
        for l in range(4):
            a = vr(AF + (n & 1) * 16 + 4 * l, 4)
            if P("M32", 0):
                c = vr(ACC + 16 * (l & 1), 16)
                mf32(c, a, X(l >> 1, n % 14), c if (n or l > 1) else "0")
                continue
            for u in range(2):
                c = vr(ACC + (u * 4 + l) * 4, 4)
                mf(c, a, X(u, n % 14), c if n else "0")
        flush_side()
        if n % 3 == 2:
            fs(7, 3 + n // 3)
        if n < 7:
            fs(10, 7 + n)
        if 5 <= n < 17:
            fs(11, n - 3)
        if n == 13:
            k.stamp(9)
    k.stamp(10)
    e("s_lshl2_add_u32 s%d, s2, s%d" % (sT1, sRW))
    e("s_lshl_b32 s%d, s%d, 12" % (sT1, sT1))
    e("s_add_u32 s%d, s%d, 0x%x" % (sT1, sT1, YX_OFF))
    k.nop(1)
    fs(12, 2)
    garrive(C_GY)
    for i in range(4):
        e("v_cvt_pk_bf16_f32 v%d, v%d, v%d" % (128 + 4 * i, ACC + 16 + 4 * i, ACC + 17 + 4 * i))
        e("v_cvt_pk_bf16_f32 v%d, v%d, v%d" % (128 + 4 * i + 2, ACC + 18 + 4 * i, ACC + 19 + 4 * i))
        e("buffer_store_dwordx4 %s, v%d, %s, s%d offen offset:%d sc1" % (vr(128 + 4 * i, 4), vL16, srd(SWS), sT1 + (i >> 2), 1024 * (i & 3)))
        k.vm.issue("yst")
    xe_load()
    e("s_xor_b32 s%d, s%d, 0x4000" % (sT1, sT1))
    e("s_lshl_b32 s%d, s%d, 12" % (sT4, sRW))
    e("v_add_u32 v10, s%d, v%d" % (sT4, vYW))
    for dt in range(1, 4):
        e("v_xor_b32 v%d, %d, v10" % (10 + dt, 64 * dt))
    fs(12, 3)
    gwait(C_GY)
    fs(12, 4)
    if P("YW", 1):
        k.wait_vm("yst")
    fs(12, 5)
    YR = 160
    e("s_mov_b32 s%d, 0" % sCNT)
    k.lab("L_yx")
    for i in range(4):
        e("buffer_load_dwordx4 %s, v%d, %s, s%d offen offset:%d sc1" % (vr(YR + 4 * i, 4), vL16, srd(SWS), sT1 + (i >> 2), 1024 * (i & 3)))
    e("s_waitcnt vmcnt(0)")
    k.vm.clear()
    e("v_min3_u32 v30, v%d, v%d, v%d" % (YR + 1, YR + 3, vTAG))
    e("v_max3_u32 v31, v%d, v%d, v%d" % (YR + 1, YR + 3, vTAG))
    for i in range(1, 4):
        e("v_min3_u32 v30, v%d, v%d, v30" % (YR + 4 * i + 1, YR + 4 * i + 3))
        e("v_max3_u32 v31, v%d, v%d, v31" % (YR + 4 * i + 1, YR + 4 * i + 3))
    e("v_cmp_ne_u32 vcc, v30, v31")
    e("s_cmp_lg_u64 vcc, 0")
    e("s_cbranch_scc1 L_yxs")
    k.lab("L_yxb")
    fs(12, 6)
    tail.extend(["L_yxs:", "    s_add_u32 s%d, s%d, 1" % (sCNT, sCNT), "    s_cmp_lt_u32 s%d, 0x40000" % sCNT,
                 "    s_cbranch_scc0 L_yxb", "    s_sleep 6", "    s_branch L_yx"])
    k.stamp(11)
    e("s_bitcmp1_b32 s2, 0")
    e("s_cselect_b64 vcc, -1, 0")
    e("v_cndmask_b32 v%d, v%d, v%d, vcc" % (RN, RN + 1, RN + 3))
    for i in range(8):
        e("v_and_b32 v%d, 0xffff0000, v%d" % (YR + 2 * i + 1, YR + 2 * i))
        e("v_lshlrev_b32 v%d, 16, v%d" % (YR + 2 * i, YR + 2 * i))
    for i in range(8):
        e("v_pk_add_f32 %s, %s, %s" % (vr(ACC + 2 * i, 2), vr(ACC + 2 * i, 2), vr(YR + 2 * i, 2)))
    for i in range(8):
        e("v_pk_mul_f32 %s, %s, %s op_sel_hi:[1,0]" % (vr(ACC + 2 * i, 2), vr(ACC + 2 * i, 2), vr(RN, 2)))
    for dt in range(4):
        e("ds_write_b128 v%d, %s" % (10 + dt, vr(ACC + 4 * dt, 4)))
    k.lab("L_final")
    main_lines = k.lines

    k.lines = []
    k.vm.q, k.lg.q = list(q_vm), []
    k.lab("L_fft")
    if P("FP0", 0):
        e("s_setprio 1")
    sCC, sPL, sZR, sZI, sSC, sFXC, sGB, sFX = 48, 50, 51, 52, 53, 54, 55, 56
    C64, S64, N64, C32, S32, N32, T1C, T1S, T2C, T2S = 128, 136, 144, 152, 160, 168, 176, 184, 192, 200
    XB, PA, FB, SUM, GR, ONES = 32, 64, 96, 208, 216, 224

    def fgen(tl):
        t = 32
        e("s_lshl_b32 s%d, s%d, 5" % (sT0, sCBK))
        e("v_add_u32 v%d, s%d, v%d" % (t, sT0, vC))
        if tl:
            e("v_add_u32 v%d, 16, v%d" % (t, t))
        e("v_lshrrev_b32 v%d, 1, v%d" % (t + 1, t))
        e("v_and_b32 v%d, 1, v%d" % (t + 2, t))
        e("v_cvt_f32_u32 v%d, v%d" % (t + 2, t + 2))
        e("v_mul_f32 v%d, %s, v%d" % (t + 2, hexf(0.25), t + 2))
        if tl == 0:
            e("v_cmp_eq_u32 vcc, 1, v%d" % t)
            e("v_mov_b32 v%d, 256" % (t + 3))
        e("s_lshl_b32 s%d, s%d, 6" % (sT0, sR))
        if tl == 0:
            e("v_cndmask_b32 v%d, v%d, v%d, vcc" % (t + 1, t + 1, t + 3))
            e("v_cndmask_b32 v%d, v%d, 0, vcc" % (t + 2, t + 2))
        e("v_cvt_f32_u32 v%d, v%d" % (t + 1, t + 1))
        e("v_mul_f32 v%d, %s, v%d" % (t + 1, hexf(1.0 / 512), t + 1))
        e("v_lshl_add_u32 v%d, v%d, 3, s%d" % (t + 3, vQ, sT0))
        e("v_cvt_f32_u32 v%d, v%d" % (t + 3, t + 3))
        e("v_fma_f32 v%d, v%d, v%d, v%d" % (t + 2, t + 3, t + 1, t + 2))
        e("v_fract_f32 v%d, v%d" % (t + 8, t + 2))
        e("v_mul_f32 v%d, %s, v%d" % (t + 3, hexf(32.0), t + 1))
        e("v_fract_f32 v%d, v%d" % (t + 3, t + 3))
        for jj in range(1, 8):
            e("v_add_f32 v%d, v%d, v%d" % (t + 8 + jj, t + 7 + jj, t + 1))
        for Tf in range(4):
            for jj in range(8):
                e("v_cos_f32 v%d, v%d" % (t + 16 + jj, t + 8 + jj))
            if Tf < 3:
                for jj in range(8):
                    e("v_add_f32 v%d, v%d, v%d" % (t + 8 + jj, t + 8 + jj, t + 3))
            else:
                k.nop(1)
            for d in range(4):
                e("v_cvt_pk_bf16_f32 v%d, v%d, v%d" % (FB + 16 * tl + 4 * Tf + d, t + 16 + 2 * d, t + 17 + 2 * d))
    fgen(0)
    e("s_waitcnt lgkmcnt(0)")
    e("s_load_dword s%d, s[%d:%d], 0x%x" % (sTAG, SWS, SWS + 1, EPOCH_OFF))
    fgen(1)
    vSM, vAL, vBE = 16, 17, 18
    e("v_bfe_u32 v19, v%d, 1, 2" % vC)
    e("v_cvt_f32_u32 v19, v19")
    e("v_mul_f32 v19, %s, v19" % hexf(0.25))
    e("v_cos_f32 v%d, v19" % vAL)
    e("v_sin_f32 v%d, v19" % vBE)
    e("v_bfe_u32 v%d, v%d, 1, 1" % (vSM, vC))
    e("v_mul_u32_u24 v%d, 0x8000, v%d" % (vSM, vSM))
    e("v_lshl_or_b32 v%d, v%d, 16, v%d" % (vSM, vSM, vSM))
    e("v_rndne_f32 v%d, v%d" % (vAL, vAL))
    e("v_rndne_f32 v%d, v%d" % (vBE, vBE))
    e("v_lshlrev_b32 v19, 31, v%d" % vC)
    e("v_xor_b32 v%d, v19, v%d" % (vBE, vBE))
    for d in range(4):
        e("v_mov_b32 v%d, 0x3f803f80" % (ONES + d))
    xread_addr(26)
    k.stamp(2)

    def cconst():
        t = 32
        slot = [16 * (jj >> 2) + (jj & 3) for jj in range(8)]
        yield "s_lshl_b32 s%d, s%d, 4" % (sT3, sRW)
        yield "v_add_u32 v%d, s%d, v%d" % (t + 24, sT3, vC)
        yield "v_cvt_f32_u32 v%d, v%d" % (t + 27, vQ)
        yield "v_cvt_f32_u32 v%d, v%d" % (t + 25, t + 24)
        yield "v_mul_f32 v%d, 4.0, v%d" % (t + 27, t + 27)
        yield "v_cvt_f32_u32 v%d, v%d" % (t + 28, vC)
        yield "v_and_b32 v%d, 1, v%d" % (t + 30, vC)
        for jj in range(8):
            yield "v_add_f32 v%d, %s, v%d" % (t + 32 + jj, hexf(float(slot[jj])), t + 27)
        yield "v_mul_u32_u24 v%d, 0x8000, v%d" % (t + 30, t + 30)
        yield "v_mul_f32 v%d, %s, v%d" % (t + 26, hexf(1.0 / 64), t + 25)
        yield "v_lshl_or_b32 v%d, v%d, 16, v%d" % (t + 30, t + 30, t + 30)
        for (scale, Cb, Sb, Nb, flip) in ((t + 26, C64, S64, N64, "v%d" % (t + 30)), (t + 29, C32, S32, N32, "0x80000000")):
            if Cb == C32:
                yield "v_mul_f32 v%d, %s, v%d" % (t + 29, hexf(1.0 / 32), t + 28)
                yield "v_mul_f32 v%d, %s, v%d" % (t + 26, hexf(1.0 / 2048), t + 25)
            for jj in range(8):
                yield "v_mul_f32 v%d, v%d, v%d" % (t + jj, t + 32 + jj, scale)
            for jj in range(8):
                yield "v_cos_f32 v%d, v%d" % (t + 8 + jj, t + jj)
            for jj in range(8):
                yield "v_sin_f32 v%d, v%d" % (t + 16 + jj, t + jj)
            for d in range(4):
                yield "v_cvt_pk_bf16_f32 v%d, v%d, v%d" % (Cb + d, t + 8 + 2 * d, t + 9 + 2 * d)
            for d in range(4):
                yield "v_cvt_pk_bf16_f32 v%d, v%d, v%d" % (Sb + d, t + 16 + 2 * d, t + 17 + 2 * d)
            for d in range(4):
                yield "v_xor_b32 v%d, %s, v%d" % (Cb + 4 + d, flip, Cb + d)
            for d in range(4):
                yield "v_xor_b32 v%d, %s, v%d" % (Sb + 4 + d, flip, Sb + d)
            for d in range(8):
                yield "v_xor_b32 v%d, 0x80008000, v%d" % (Nb + d, Sb + d)
        for i in range(8):
            yield "v_mul_f32 v%d, v%d, v%d" % (t + i, t + 32 + i, t + 26)
        yield "v_cvt_f32_u32 v%d, s%d" % (t + 29, sT3)
        for i in range(8):
            yield "v_cos_f32 v%d, v%d" % (T1C + i, t + i)
            yield "v_sin_f32 v%d, v%d" % (T1S + i, t + i)
        yield "v_mul_f32 v%d, %s, v%d" % (t + 26, hexf(1.0 / 2048), t + 28)
        for r in range(4):
            yield "v_add_f32 v%d, v%d, v%d" % (t + 8 + r, t + 29, t + 32 + r)
        yield "v_add_f32 v%d, %s, v%d" % (t + 25, hexf(16.0 / 2048), t + 26)
        for r in range(4):
            yield "v_mul_f32 v%d, v%d, v%d" % (t + r, t + 8 + r, t + 26)
        for r in range(4):
            yield "v_mul_f32 v%d, v%d, v%d" % (t + 4 + r, t + 8 + r, t + 25)
        for i in range(8):
            yield "v_cos_f32 v%d, v%d" % (T2C + i, t + i)
            yield "v_sin_f32 v%d, v%d" % (T2S + i, t + i)
    CCE = P("CCE", 1)
    if CCE:
        for s_ in cconst():
            e(s_)
    e("v_lshrrev_b32 v19, 2, v%d" % vC)
    e("v_lshl_add_u32 v20, v%d, 3, v19" % vQ)
    e("v_lshlrev_b32 v20, 7, v20")
    e("v_and_b32 v13, 1, v%d" % vC)
    e("v_lshl_add_u32 v20, v13, 3, v20")
    e("v_bfe_u32 v19, v%d, 3, 1" % vC)
    e("v_and_b32 v13, 1, v%d" % vQ)
    e("v_lshl_or_b32 v19, v13, 1, v19")
    e("v_xor_b32 v19, s%d, v19" % sRW)
    e("v_lshlrev_b32 v19, 1, v19")
    e("v_bfe_u32 v13, v%d, 1, 1" % vC)
    e("v_or_b32 v19, v19, v13")
    e("v_lshl_add_u32 v20, v19, 4, v20")
    e("v_add_u32 v13, 0x%x, v20" % LB)
    e("s_lshl_b32 s%d, s%d, 6" % (sT1, sRW))
    e("s_add_u32 s%d, s%d, 0x%x" % (sT1, sT1, L_CS))
    e("v_lshl_add_u32 v231, v%d, 4, s%d" % (vQ, sT1))

    def colsum(reg):
        if reg == 0:
            pass
        else:
            gwait(C_WB1)
            gwait(C_WB2)
        base = 20 if reg else 13
        e("s_setprio %d" % P("SPRIO", 0))

        def rd(T):
            for hh in range(2):
                e("ds_read_b64_tr_b16 %s, v%d offset:%d" % (vr(48 + 4 * (T % 4) + 2 * hh, 2), base, T * 4096 + hh * 512))
                k.lg.issue(("CS", reg, T))
        for T in range(3):
            rd(T)
        for T in range(16):
            if T == 5 and reg == 0:
                gwait(C_WA2)
            if T + 3 < 16:
                rd(T + 3)
            k.wait_lg(("CS", reg, T))
            mfma(vr(240, 4), vr(48 + 4 * (T % 4), 4), vr(ONES, 4), vr(240, 4) if T else "0")
        k.nop(6)
        e("s_mov_b32 exec_lo, 0x00010001")
        e("s_mov_b32 exec_hi, 0x00010001")
        e("ds_write_b128 v231, v[240:243] offset:%d" % (256 * reg))
        e("s_mov_b64 exec, -1")
        garrive(C_FB if reg else C_FA)
        e("s_setprio 0")
    CSF = P("CSF", 0)
    vX1 = 7
    e("v_lshrrev_b32 v7, 1, v%d" % vC)
    e("v_lshlrev_b32 v7, 13, v7")
    e("v_and_b32 v19, 1, v%d" % vC)
    e("v_lshl_add_u32 v7, v19, 6, v7")
    e("v_lshl_add_u32 v7, v%d, 4, v7" % vQ)
    e("s_lshl_b32 s%d, s%d, 9" % (sT0, sRW))
    e("s_add_u32 s%d, s%d, 0x%x" % (sT0, sT0, L_ST))
    e("v_lshl_add_u32 v8, v%d, 2, s%d" % (vC, sT0))
    e("v_lshl_add_u32 v9, v%d, 4, s%d" % (vQ, sT0))
    e("s_lshl4_add_u32 s%d, s%d, s%d" % (sFX, sCBK, sPB))
    e("s_lshl_b32 s%d, s%d, 7" % (sFX, sFX))
    e("s_lshl2_add_u32 s%d, s%d, s%d" % (sFX, sRW, sFX))
    tag_setup()
    k.stamp(3)
    e("s_setprio %d" % P("PRIO", 1))

    def XBf(kk, u, ks):
        return vr(XB + (((kk & 1) * 2 + ks) * 2 + u) * 4, 4)
    for s_ in range(4):
        e("s_barrier")
        fs(6, 2 + s_)
        for kk in (2 * s_, 2 * s_ + 1):
            for ks in range(2):
                for u in range(2):
                    xread(XBf(kk, u, ks), 26, kk, u, ks, ("XR", kk, ks))
        if s_ == 2:
            for i in range(32):
                e("v_xor_b32 v%d, v%d, v%d" % (FB + i, vSM, FB + i))
        for kk in (2 * s_, 2 * s_ + 1):
            for ks in range(2):
                T = 2 * kk + ks
                k.wait_lg(("XR", kk, ks))
                for u in range(2):
                    x = XBf(kk, u, ks)
                    mfma(vr(SUM + 4 * u, 4), vr(ONES, 4), x, vr(SUM + 4 * u, 4) if T else "0")
                    mfma(vr(GR + 4 * u, 4), x, x, vr(GR + 4 * u, 4) if T else "0")
                for u in range(2):
                    x = XBf(kk, u, ks)
                    for tl in range(2):
                        p = vr(PA + ((tl * 2 + ((T >> 2) & 1)) * 2 + u) * 4, 4)
                        mfma(p, x, vr(FB + 16 * tl + 4 * (T & 3), 4), "0" if T in (0, 4) else p)
    e("s_barrier")
    k.stamp(4)
    fs(6, 6)
    e("s_setprio %d" % P("XPRIO", 0))
    e("v_and_b32 v19, 3, v%d" % vC)
    k.nop(2)
    for r in range(1, 4):
        e("v_cmp_eq_u32 vcc, %d, v19" % r)
        k.nop(2)
        for u in range(2):
            e("v_cndmask_b32 v%d, v%d, v%d, vcc" % (GR + 4 * u, GR + 4 * u, GR + 4 * u + r))

    def stat_ops(u):
        m, q2, rs_, nm, d0 = SUM + 4 * u, GR + 4 * u, SUM + 4 * u + 1, SUM + 4 * u + 2, SUM + 4 * u + 3
        rnd = lambda v: ["v_cvt_pk_bf16_f32 v%d, v%d, v%d" % (v, v, v), "v_lshlrev_b32 v%d, 16, v%d" % (v, v)]
        return (["v_mul_f32 v%d, %s, v%d" % (m, hexf(1.0 / 512), m),
                 "v_mul_f32 v%d, %s, v%d" % (q2, hexf(1.0 / 512), q2),
                 "v_fma_f32 v%d, -v%d, v%d, v%d" % (q2, m, m, q2),
                 "v_max_f32 v%d, 0, v%d" % (q2, q2)] + rnd(q2) +
                ["v_add_f32 v%d, %s, v%d" % (q2, hexf(1e-5), q2)] + rnd(q2) +
                ["v_sqrt_f32 v%d, v%d" % (q2, q2), "v_sub_f32 v%d, 0, v%d" % (nm, m)] + rnd(q2) +
                ["v_rcp_f32 v%d, v%d" % (rs_, q2)] + rnd(nm) +
                ["v_add_f32 v%d, v%d, v%d" % (d0, m, nm), "v_mul_f32 v%d, %s, v%d" % (d0, hexf(512.0), d0)])
    for a_, b_ in zip(stat_ops(0), stat_ops(1)):
        e(a_)
        e(b_)
    e("s_mov_b32 exec_lo, 0x00f0000f")
    e("s_mov_b32 exec_hi, 0xf0000f00")
    for u in range(2):
        e("ds_write2_b32 v8, v%d, v%d offset0:%d offset1:%d" % (SUM + 4 * u + 1, SUM + 4 * u + 2, 16 * u, 32 + 16 * u))
        e("ds_write_b32 v8, v%d offset:%d" % (SUM + 4 * u + 3, 256 + 64 * u))
    e("s_mov_b64 exec, -1")
    if CSF:
        colsum(0)
    RT, D0T = XB, XB + 8
    for u in range(2):
        e("ds_read_b128 %s, v9 offset:%d" % (vr(RT + 4 * u, 4), 64 * u))
        e("ds_read_b128 %s, v9 offset:%d" % (vr(D0T + 4 * u, 4), 256 + 64 * u))
    for tl in range(2):
        for i in range(8):
            e("v_fmac_f32 v%d, v%d, v%d" % (PA + 16 * tl + i, vAL, PA + 16 * tl + 8 + i))
        for i in range(8):
            e("v_fmac_f32_dpp v%d, v%d, v%d quad_perm:[1,0,3,2] row_mask:0xf bank_mask:0xf" % (PA + 16 * tl + i, PA + 16 * tl + 8 + i, vBE))
    e("v_or_b32 v19, s%d, v%d" % (sCBK, vC))
    e("v_cmp_eq_u32 vcc, 0, v19")
    e("s_lshl_b32 s%d, s%d, 17" % (sT0, sCBK))
    e("s_lshl2_add_u32 s%d, s%d, s%d" % (sT1, sA, sRW))
    e("s_lshr_b32 s%d, s%d, 1" % (sT2, sWP))
    e("s_lshl1_add_u32 s%d, s%d, s%d" % (sT1, sT1, sT2))
    e("s_lshl_b32 s%d, s%d, 7" % (sT1, sT1))
    e("s_add_u32 s%d, s%d, s%d" % (sT0, sT0, sT1))
    e("s_add_u32 s%d, s%d, 0x%x" % (sT1, sT0, X1C_OFF))
    e("s_add_u32 s%d, s%d, 0x%x" % (sT2, sT0, X1C_OFF + 65536))
    e("s_waitcnt lgkmcnt(0)")
    k.lg.clear()
    for i in range(8):
        e("v_cndmask_b32 v%d, v%d, v%d, vcc" % (PA + i, PA + i, D0T + i))
    for tl in range(2):
        for i in range(8):
            e("v_mul_f32 v%d, v%d, v%d" % (PA + 16 * tl + i, PA + 16 * tl + i, RT + i))
        o = 232 + 4 * tl
        for d in range(4):
            e("v_cvt_pk_bf16_f32 v%d, v%d, v%d" % (o + d, PA + 16 * tl + 2 * d, PA + 16 * tl + 2 * d + 1))
        e("buffer_store_dwordx4 %s, v%d, %s, s%d offen sc1" % (vr(o, 4), vX1, srd(SWS), sT1 + tl))
        k.vm.issue("x1st")
    k.stamp(5)
    if not CSF:
        colsum(0)
    e("s_setprio 0")
    GB = 64

    def ggen():
        t0 = 32
        an, stp = 252, 31
        yield "s_lshl_b32 s%d, s%d, 6" % (sT3, sDB)
        yield "s_lshl4_add_u32 s%d, s%d, s%d" % (sT3, sRW, sT3)
        yield "v_add_u32 v%d, s%d, v%d" % (t0, sT3, vC)
        yield "v_lshlrev_b32 v%d, 1, v%d" % (t0 + 2, vQ)
        yield "v_cvt_f32_u32 v%d, v%d" % (t0 + 1, t0)
        yield "v_cvt_f32_u32 v%d, v%d" % (t0 + 2, t0 + 2)
        yield "v_mul_f32 v%d, %s, v%d" % (t0 + 1, hexf(1.0 / 512), t0 + 1)
        yield "v_mul_f32 v%d, %s, v%d" % (stp, hexf(16.0), t0 + 1)
        for dw in range(4):
            yield "v_add_f32 v%d, %s, v%d" % (an + dw, hexf(float(8 * (dw >> 1) + (dw & 1))), t0 + 2)
        yield "v_fract_f32 v%d, v%d" % (stp, stp)
        for dw in range(4):
            yield "v_mul_f32 v%d, v%d, v%d" % (an + dw, an + dw, t0 + 1)
        yield "v_lshlrev_b32 v%d, 31, v%d" % (t0 + 16, vC)
        yield "v_min_u32 v%d, 1, v%d" % (t0 + 17, vQ)
        yield "v_or_b32 v%d, 0x3f800000, v%d" % (t0 + 16, t0 + 16)
        yield "v_sub_u32 v%d, v%d, 1" % (t0 + 17, t0 + 17)
        yield "v_and_b32 v%d, 0xffff0000, v%d" % (t0 + 17, t0 + 17)
        yield "v_and_b32 v17, 1, v%d" % vC
        yield "v_mul_u32_u24 v17, 0x020202, v17"
        yield "v_lshl_or_b32 v17, v17, 8, v17"
        yield "v_xor_b32 v17, 0x03020100, v17"
        yield "v_bfe_u32 v18, v%d, 1, 1" % vC
        yield "v_add_u32 v%d, 1, v%d" % (t0 + 18, vC)
        yield "v_bfe_u32 v%d, v%d, 1, 1" % (t0 + 18, t0 + 18)
        yield "v_lshlrev_b32 v18, 15, v18"
        yield "v_lshl_or_b32 v18, v%d, 31, v18" % (t0 + 18)
        for T in range(8):
            for dw in range(4):
                yield "v_cos_f32 v%d, v%d" % (t0 + 8 + 2 * dw, an + dw)
                yield "v_sin_f32_e64 v%d, -v%d" % (t0 + 9 + 2 * dw, an + dw)
            for dw in range(4):
                yield "v_add_f32 v%d, v%d, v%d" % (an + dw, an + dw, stp)
            for dw in range(4):
                yield "v_cvt_pk_bf16_f32 v%d, v%d, v%d" % (GB + 4 * T + dw, t0 + 8 + 2 * dw, t0 + 9 + 2 * dw)
            for dw in range(4):
                yield "v_perm_b32 v%d, v%d, v%d, v17" % (GB + 32 + 4 * T + dw, GB + 4 * T + dw, GB + 4 * T + dw)
            for dw in range(4):
                yield "v_xor_b32 v%d, v18, v%d" % (GB + 32 + 4 * T + dw, GB + 32 + 4 * T + dw)
            if T == 0:
                yield "v_bfi_b32 v%d, v%d, v%d, v%d" % (GB, t0 + 17, t0 + 16, GB)
    late_setup(1)
    e("v_add_u32 v6, 0x%x, v%d" % (LB, vZB))
    vFL, vFZ, vDZ = 14, 15, 9
    e("s_xor_b32 s%d, s2, 0x38" % sCC)
    flag_voff(vFZ, 63)
    e("v_and_b32 v%d, 0x1ff, v%d" % (vFL, vFZ))
    e("v_min_u32 v19, 1, v%d" % vQ)
    e("v_mul_u32_u24 v19, 0x%x, v19" % (FW_OFF - FX_OFF))
    e("v_add_u32 v%d, v19, v%d" % (vFL, vFL))
    e("s_cmp_eq_u32 s%d, 0" % sCC)
    e("s_cselect_b32 s%d, 0x%x, 0" % (sT0, 16 * 2048))
    e("v_lshrrev_b32 v19, 1, v%d" % vQ)
    e("v_mul_u32_u24 v19, s%d, v19" % sT0)
    e("v_add_u32 v%d, v19, v%d" % (vFL, vFL))
    e("s_lshr_b32 s%d, s%d, 4" % (sFXC, sCC))
    e("s_lshl2_add_u32 s%d, s%d, s%d" % (sFXC, sFXC, sRW))
    e("s_lshl_b32 s%d, s%d, 9" % (sFXC, sFXC))
    e("s_mov_b32 s%d, 0" % sGB)
    XI, TM, TW, DR, DI, PR, PI, CWL = 32, 32, 48, 208, 216, 224, 228, 232

    def xin(pl, v, tt):
        return XI + 4 * ((pl * 2 + v) * 2 + tt)
    e("v_add_u32 v26, 0x%x, v%d" % (L_C1, vYW))
    e("v_xor_b32 v27, 64, v26")
    e("v_xor_b32 v28, 128, v26")
    e("v_xor_b32 v29, 192, v26")
    e("s_lshr_b32 s%d, s%d, 1" % (sT0, sRW))
    e("s_lshl_b32 s%d, s%d, 7" % (sT0, sT0))
    e("s_and_b32 s%d, s%d, 1" % (sT1, sRW))
    e("s_lshl3_add_u32 s%d, s%d, s%d" % (sT0, sT1, sT0))
    e("v_xor_b32 v10, s%d, v26" % sT0)
    e("v_xor_b32 v11, 64, v10")
    e("v_lshlrev_b32 v12, 5, v%d" % vC)
    e("v_lshl_add_u32 v12, v%d, 3, v12" % vQ)
    e("s_lshl_b32 s%d, s%d, 10" % (sT0, sRW))
    e("v_add_u32 v12, s%d, v12" % sT0)
    e("s_lshl_b32 s%d, s%d, 13" % (sZR, sCC))
    e("s_add_u32 s%d, s%d, 0x%x" % (sZR, sZR, ZT_OFF))
    e("s_add_u32 s%d, s%d, 4096" % (sZI, sZR))
    e("s_mov_b32 s%d, %s" % (sSC, hexf(2.0 ** -19)))
    e("s_cmp_eq_u32 s%d, 0" % sCC)
    e("s_cselect_b32 s%d, 0x%x, s%d" % (sZI, OOB, sZI))
    e("s_cselect_b32 s%d, %s, s%d" % (sSC, hexf(2.0 ** -20), sSC))
    e("s_mov_b32 s%d, 0" % sPL)
    e("s_lshl_b32 s%d, s%d, 3" % (sT0, sT1))
    e("v_add_u32 v19, s%d, v%d" % (sT0, vQ))
    e("v_xor_b32 v30, v19, v%d" % vC)
    e("v_lshlrev_b32 v30, 4, v30")
    e("v_lshl_add_u32 v30, v%d, 8, v30" % vQ)
    e("v_xor_b32 v24, 64, v30")
    e("v_lshrrev_b32 v8, 3, v%d" % vLANE)
    e("v_and_b32 v9, 7, v%d" % vLANE)
    e("v_lshlrev_b32 v19, 1, v%d" % vQ)
    e("v_xor_b32 v19, v19, v9")
    e("v_lshlrev_b32 v19, 4, v19")
    e("v_lshl_add_u32 v%d, v8, 12, v19" % vDZ)
    k.wait_vm("x1st")
    publish("s%d" % sFX)
    xe_load()
    k.stamp(6)
    pre = ([] if CCE else list(cconst())) + ["v_mul_f32 v%d, s%d, v%d" % (T2C + i, sSC, T2C + i) for i in range(16)]
    gl = list(ggen())
    GE = P("GE", 152)
    pre += gl[:GE]
    gl = gl[GE:]
    n2 = max(0, len(pre) - P("PFXL", 0))
    cs1 = min(n2, P("CS1", 72))
    for s_ in pre[:cs1]:
        e(s_)
    colsum(1)
    if P("NOFFT", 0):
        e("s_branch L_final")
    for s_ in pre[cs1:n2]:
        e(s_)
    poll_issue("pfx", vFL, "s%d" % sFXC, 13)
    for s_ in pre[n2:]:
        e(s_)
    k.stamp(7)
    e("s_setprio %d" % P("CPRIO", 1))
    poll_check("pfx", vFL, "s%d" % sFXC, 13)
    k.stamp(8)

    def gbar_lines():
        return ["    s_add_u32 s%d, s%d, 4" % (sGB, sGB)] + garrive_lines(C_F) + gwait_lines(C_F, "s%d" % sGB)

    def gbar():
        k.lines.extend(gbar_lines())
        k.lg.clear()
    e("s_lshl_b32 s%d, s%d, 13" % (sT0, sCC))
    e("s_lshl_b32 s%d, s%d, 11" % (sT1, sRW))
    e("s_add_u32 s%d, s%d, s%d" % (sT0, sT0, sT1))
    e("s_add_u32 s%d, s%d, 0x%x" % (sT2, sT0, X1C_OFF))
    e("s_add_u32 m0, s%d, 0x%x" % (sT1, L_C1))
    k.nop(1)
    e("buffer_load_dwordx4 v30, %s, s%d offen sc1 lds" % (srd(SWS), sT2))
    k.vm.issue("cin")
    e("buffer_load_dwordx4 v24, %s, s%d offen offset:1024 sc1 lds" % (srd(SWS), sT2))
    k.vm.issue("cin")
    e("s_add_u32 s%d, s%d, 0x%x" % (sT2, sT0, WT_OFF))
    for v in range(2):
        e("buffer_load_dwordx4 %s, v%d, %s, s%d offen offset:%d sc1" % (vr(CWL + 4 * v, 4), vL16, srd(SWS), sT2, v * 1024))
        k.vm.issue("cw")
    e("s_add_u32 s%d, s%d, 0x%x" % (sT2, sT2, 256 * 8192))
    e("s_cmp_eq_u32 s%d, 0" % sCC)
    e("s_cselect_b32 s%d, s%d, 0x%x" % (sT2, sT2, OOB))
    for v in range(2):
        e("buffer_load_dwordx4 %s, v%d, %s, s%d offen offset:%d sc1" % (vr(CWL + 8 + 4 * v, 4), vL16, srd(SWS), sT2, v * 1024))
        k.vm.issue("cw")
    k.wait_vm("cin")
    gbar()
    k.stamp(9)
    k.lab("L_ccol")
    for pl in range(2):
        for v in range(2):
            for tt in range(2):
                e("ds_read_b128 %s, v%d offset:%d" % (vr(xin(pl, v, tt), 4), 26 + 2 * tt + pl, v * 4096))
    e("s_waitcnt lgkmcnt(0)")
    e("s_cmp_eq_u32 s%d, 0" % sCC)
    e("s_cbranch_scc1 L_creal")
    k.lab("L_cplx")
    tail.append("L_creal:")
    tail.append("    s_cmp_eq_u32 s%d, 0" % sPL)
    tail.append("    s_cbranch_scc1 L_c0")
    for i in range(16):
        tail.append("    v_mov_b32 v%d, v%d" % (XI + i, XI + 16 + i))
    tail.append("L_c0:")
    for i in range(16):
        tail.append("    v_mov_b32 v%d, 0" % (XI + 16 + i))
    tail.append("    s_nop 1")
    tail.append("    s_branch L_cplx")
    for v in range(2):
        dr, di = vr(DR + 4 * v, 4), vr(DI + 4 * v, 4)
        for tt in range(2):
            mfma(dr, vr(xin(0, v, tt), 4), vr(C64 + 4 * tt, 4), dr if tt else "0")
            mfma(di, vr(xin(1, v, tt), 4), vr(C64 + 4 * tt, 4), di if tt else "0")
            mfma(dr, vr(xin(1, v, tt), 4), vr(S64 + 4 * tt, 4))
            mfma(di, vr(xin(0, v, tt), 4), vr(N64 + 4 * tt, 4))

    def cmul(cr, ci, conj):
        for h in range(2):
            for i in (4 * h, 4 * h + 2):
                e("v_pk_mul_f32 %s, %s, %s" % (vr(TM + i, 2), vr(DR + i, 2), vr(cr + i, 2)))
                e("v_pk_mul_f32 %s, %s, %s" % (vr(TM + 8 + i, 2), vr(DI + i, 2), vr(cr + i, 2)))
            neg = " neg_lo:[1,0,0] neg_hi:[1,0,0]"
            for i in (4 * h, 4 * h + 2):
                e("v_pk_fma_f32 %s, %s, %s, %s%s" % (vr(TM + i, 2), vr(DI + i, 2), vr(ci + i, 2), vr(TM + i, 2), "" if conj else neg))
                e("v_pk_fma_f32 %s, %s, %s, %s%s" % (vr(TM + 8 + i, 2), vr(DR + i, 2), vr(ci + i, 2), vr(TM + 8 + i, 2), neg if conj else ""))
        for d in range(4):
            e("v_cvt_pk_bf16_f32 v%d, v%d, v%d" % (PR + d, TM + 2 * d, TM + 2 * d + 1))
            e("v_cvt_pk_bf16_f32 v%d, v%d, v%d" % (PI + d, TM + 8 + 2 * d, TM + 9 + 2 * d))
        k.nop(2)
    cmul(T1C, T1S, True)
    pr, pi = vr(PR, 4), vr(PI, 4)
    for v in range(2):
        dr, di = vr(DR + 4 * v, 4), vr(DI + 4 * v, 4)
        mfma(dr, vr(C32 + 4 * v, 4), pr, "0")
        mfma(di, vr(C32 + 4 * v, 4), pi, "0")
        mfma(dr, vr(S32 + 4 * v, 4), pi)
        mfma(di, vr(N32 + 4 * v, 4), pr)
    k.wait_vm("cw")
    for i in range(8):
        e("v_lshlrev_b32 v%d, 16, v%d" % (TW + i, CWL + i))
        e("v_and_b32 v%d, 0xffff0000, v%d" % (TW + 8 + i, CWL + i))
    cmul(TW, TW + 8, False)
    for v in range(2):
        dr, di = vr(DR + 4 * v, 4), vr(DI + 4 * v, 4)
        mfma(dr, pr, vr(C32 + 4 * v, 4), "0")
        mfma(di, pi, vr(C32 + 4 * v, 4), "0")
        mfma(dr, pi, vr(N32 + 4 * v, 4))
        mfma(di, pr, vr(S32 + 4 * v, 4))
    k.nop(4)
    cmul(T2C, T2S, False)
    for v in range(2):
        e("ds_write_b64 v10, %s offset:%d" % (vr(PR + 2 * v, 2), 8192 + v * 4096))
        e("ds_write_b64 v11, %s offset:%d" % (vr(PI + 2 * v, 2), 8192 + v * 4096))
    e("s_waitcnt lgkmcnt(0)")
    gbar()
    for v in range(2):
        for tt in range(2):
            for pl in range(2):
                e("ds_read_b128 %s, v%d offset:%d" % (vr(xin(pl, v, tt), 4), 26 + 2 * tt + pl, 8192 + v * 4096))
                k.lg.issue(("cy", v, tt))
    for v in range(2):
        dr, di = vr(DR + 4 * v, 4), vr(DI + 4 * v, 4)
        for tt in range(2):
            k.wait_lg(("cy", v, tt))
            mfma(dr, vr(C64 + 4 * tt, 4), vr(xin(0, v, tt), 4), dr if tt else "0")
            mfma(di, vr(C64 + 4 * tt, 4), vr(xin(1, v, tt), 4), di if tt else "0")
            mfma(dr, vr(N64 + 4 * tt, 4), vr(xin(1, v, tt), 4))
            mfma(di, vr(S64 + 4 * tt, 4), vr(xin(0, v, tt), 4))
    for v in range(2):
        if v:
            k.nop(4)
        for d in range(2):
            e("v_cvt_pk_bf16_f32 v%d, v%d, v%d" % (PR + 2 * v + d, DR + 4 * v + 2 * d, DR + 4 * v + 2 * d + 1))
            e("v_cvt_pk_bf16_f32 v%d, v%d, v%d" % (PI + 2 * v + d, DI + 4 * v + 2 * d, DI + 4 * v + 2 * d + 1))
        e("buffer_store_dwordx2 %s, v12, %s, s%d offen offset:%d sc1" % (vr(PR + 2 * v, 2), srd(SWS), sZR, v * 512))
        k.vm.issue("zst")
        e("buffer_store_dwordx2 %s, v12, %s, s%d offen offset:%d sc1" % (vr(PI + 2 * v, 2), srd(SWS), sZI, v * 512))
        k.vm.issue("zst")
    e("s_or_b32 s%d, s%d, s%d" % (sT0, sCC, sPL))
    if not P("NO256", 0):
        e("s_cbranch_scc0 L_csecond")
    sec = ["L_csecond:", "    s_mov_b32 s%d, 1" % sPL, "    s_add_u32 s%d, s%d, 4096" % (sZR, sZR)]
    for i in range(8):
        sec.append("    v_mov_b32 v%d, v%d" % (CWL + i, CWL + 8 + i))
    sec.extend(gbar_lines())
    sec.append("    s_branch L_ccol")
    tail.extend(sec)
    k.stamp(10)
    fs(7, 2)
    e("s_lshr_b32 s%d, s%d, 2" % (sT4, sCC))
    e("s_lshl_b32 s%d, s%d, 6" % (sT1, sRW))
    e("s_add_u32 s%d, s%d, s%d" % (sT4, sT4, sT1))
    e("s_lshl_b32 s%d, s%d, 7" % (sT4, sT4))
    e("s_and_b32 s%d, s%d, 3" % (sT1, sCC))
    e("s_lshl2_add_u32 s%d, s%d, s%d" % (sT4, sT1, sT4))
    e("s_add_u32 s%d, s%d, 0x%x" % (sT4, sT4, FZ_OFF))
    sFZC = sFXC
    e("s_lshl3_add_u32 s%d, s%d, s%d" % (sFZC, sWP, sRW))
    e("s_lshl_b32 s%d, s%d, 10" % (sFZC, sFZC))
    e("s_add_u32 s%d, s%d, 0x%x" % (sFZC, sFZC, FZ_OFF + 4096))
    e("v_and_b32 v%d, 0x3ff, v%d" % (vFZ, vFZ))
    sZB, sZM = sZR, sZI
    e("s_lshl_b32 s%d, s%d, 18" % (sZB, sRW))
    e("s_lshl_b32 s%d, s%d, 10" % (sT1, sWP))
    e("s_add_u32 s%d, s%d, s%d" % (sZB, sZB, sT1))
    e("s_lshl_b32 s%d, s%d, 7" % (sT1, sA))
    e("s_add_u32 s%d, s%d, s%d" % (sZB, sZB, sT1))
    e("s_lshl_b32 s%d, s%d, 13" % (sZM, sRW))
    e("s_lshl_b32 s%d, s%d, 6" % (sT1, sRW))
    e("v_xor_b32 v20, s%d, v26" % sT1)
    k.wait_vm("zst")
    fs(7, 3)
    publish("s%d" % sT4)
    e("s_setprio 0")
    for s_ in gl:
        e(s_)
    TRZ = [[16, 17, 18, 7], [26, 27, 28, 29]]
    ZH = LB + 57344
    e("v_add_u32 v19, 0x%x, v6" % (ZH - LB))
    for pt in range(4):
        e("v_xor_b32 v%d, %d, v6" % (TRZ[0][pt], 32 * pt))
        e("v_xor_b32 v%d, %d, v19" % (TRZ[1][pt], 32 * pt))
    gbar()
    AS, ZF = 208, 128

    def zr(T, pt):
        for hh in range(2):
            r = ZF + ((T % 4) * 4 + pt) * 4 + 2 * hh
            e("ds_read_b64_tr_b16 %s, v%d offset:%d" % (vr(r, 2), TRZ[T >> 3][pt], (T & 7) * 4096 + hh * 2048))
            k.lg.issue(("ZR", T, pt))

    def zfetch(h_):
        e("s_setprio 1")
        gwait(C_ST if h_ else C_WT)
        poll_issue(("pz", h_), vFZ, "s%d" % sFZC, 30)
        e("s_add_u32 s%d, s%d, 0x%x" % (sDT, sZB, ZT_OFF + h_ * 256 * 4096 - 32768))
        poll_check(("pz", h_), vFZ, "s%d" % sFZC, 30)
        for ee in range(8):
            e("s_add_u32 m0, s%d, %d" % (sZM, (ZH if h_ else LB) + ee * 1024))
            e("s_add_u32 s%d, s%d, 32768" % (sDT, sDT))
            e("buffer_load_dwordx4 v%d, %s, s%d offen sc1 lds" % (vDZ, srd(SWS), sDT))
            k.vm.issue(("Z", h_))
        e("s_setprio %d" % P("EPRIO", 0))

    def ehalf(h_):
        k.wait_vm(("Z", h_))
        gbar()
        seq = [(T, pt) for T in range(8 * h_, 8 * h_ + 8) for pt in range(4)]
        LA_ = 6
        for n in range(LA_):
            zr(*seq[n])
        for n, (T, pt) in enumerate(seq):
            if n + LA_ < 32:
                zr(*seq[n + LA_])
            k.wait_lg(("ZR", T, pt))
            c = vr(AS + 4 * pt, 4)
            mfma(c, vr(GB + 4 * T, 4), vr(ZF + ((T % 4) * 4 + pt) * 4, 4), "0" if T == 8 else c)
    zfetch(1)
    k.stamp(11)
    e("s_sub_u32 s%d, s%d, 4096" % (sFZC, sFZC))
    if P("ZORD", 0):
        zfetch(0)
        ehalf(1)
    else:
        ehalf(1)
        zfetch(0)
    ehalf(0)
    k.nop(8)
    for pt in range(4):
        e("ds_write_b128 v20, %s offset:%d" % (vr(AS + 4 * pt, 4), pt * 4096))
    fs(7, 10)
    e("s_branch L_final")
    tail[0:0] = k.lines
    k.lines = main_lines

    e("s_waitcnt vmcnt(0) lgkmcnt(0)")
    k.vm.clear()
    k.lg.clear()
    fs(12, 7)
    e("s_barrier")
    fs(12, 8)
    k.stamp(12)
    YP, SV, U2 = 192, 224, 232
    e("v_add_u32 v10, 0x%x, v%d" % (L_C1, vR0))
    e("v_add_u32 v11, 0x%x, v%d" % (L_C1, vR1))
    for h in range(2):
        e("ds_read_b128 %s, v%d" % (vr(YP + 4 * h, 4), vR0 + h))
        k.lg.issue("yp")
    for h in range(2):
        e("ds_read_b128 %s, v%d" % (vr(SV + 4 * h, 4), 10 + h))
        k.lg.issue("sv")
    for i in range(4):
        e("v_lshlrev_b32 v%d, 16, v%d" % (240 + 2 * i, XV + i))
        e("v_and_b32 v%d, 0xffff0000, v%d" % (241 + 2 * i, XV + i))
    k.wait_lg("yp")
    for i in range(8):
        e("v_mul_f32 v%d, %s, v%d" % (U2 + i, hexf(-1.4426950408889634), YP + i))
    for i in range(8):
        e("v_exp_f32 v%d, v%d" % (U2 + i, U2 + i))
    k.wait_lg("sv")
    for i in range(8):
        e("v_mul_f32 v%d, v%d, v%d" % (YP + i, YP + i, SV + i))
    for i in range(8):
        e("v_add_f32 v%d, 1.0, v%d" % (U2 + i, U2 + i))
    for i in range(8):
        e("v_rcp_f32 v%d, v%d" % (U2 + i, U2 + i))
    k.nop(1)
    for i in range(8):
        e("v_fmac_f32 v%d, v%d, v%d" % (240 + i, YP + i, U2 + i))
    for d in range(4):
        e("v_cvt_pk_bf16_f32 v%d, v%d, v%d" % (SV + d, 240 + 2 * d, 241 + 2 * d))
    e("buffer_store_dwordx4 %s, v%d, %s, s%d offen%s" % (vr(SV, 4), vGO, srd(SOUT), sXO, os.environ.get("OFL", " sc1")))
    e("s_or_b32 s%d, s2, s%d" % (sT0, sRW))
    e("s_or_b32 s%d, s%d, s%d" % (sT0, sT0, sHF))
    e("s_cbranch_scc1 L_noep")
    e("s_mov_b32 s%d, 0x%x" % (sT0, EPOCH_OFF))
    publish("s%d" % sT0)
    k.lab("L_noep")
    k.stamp(13)
    if ENC:
        if "ENCB" in os.environ:
            e("s_cmp_lg_u32 s2, %d" % P("ENCB", 0))
            e("s_cbranch_scc1 L_done")
        e("s_waitcnt lgkmcnt(0)")
        e("s_sub_u32 s97, s%d, s66" % (64 + 2 * ENC))
        e("s_add_u32 s97, s97, 6000")
        k.lab("L_espin")
        e("s_memrealtime s[94:95]")
        e("s_waitcnt lgkmcnt(0)")
        e("s_sub_u32 s96, s94, s66")
        e("s_cmp_lt_u32 s96, s97")
        e("s_cbranch_scc1 L_espin")
    elif DIAG:
        e("s_lshl2_add_u32 s%d, s%d, s%d" % (sT0, sHF, sRW))
        e("v_mov_b32 v2, s%d" % sT0)
        k.stamp_flush(SWS, 0, 2, 8)
    k.lab("L_done")
    e("s_endpgm")
    k.lines += tail
    k.lab("L_end")
    return k


HEADER = open(os.path.join(os.path.dirname(os.path.abspath(__file__)), "header.txt")).read()


def main(out):
    k = gen()
    s = HEADER
    s += "; @launch grid=(256,1,1) block=(512,1,1) lds=163840\n"
    s += '.amdgcn_target "amdgcn-amd-amdhsa--gfx950"\n.text\n'
    s += k.text()
    s += '.section .rodata,"a"\n'
    s += descriptor(k.name, 256, 102 if DIAG else 64)
    open(out, "w").write(s)


if __name__ == "__main__":
    main(sys.argv[1] if len(sys.argv) > 1 else "v17.s")
```

```python
import sys, os
from collections import deque
sys.path.insert(0, os.path.dirname(os.path.abspath(__file__)))
from asmlib import *

NAME = "recurrent_scan__spectral_gfnet__dense_activation_relu__prompt_kernel"


def P(name, default):
    return int(os.environ.get(name, default))


X1C_OFF = 0x0200000
WT_OFF = 0x0400000
H_OFF = 0x0800000
ZT_OFF = 0x1000000
FX_OFF = 0x0000000
FW_OFF = 0x0010000
FH_OFF = 0x0020000
FY_OFF = 0x0048000
YX_OFF = 0x1800000 if DIAG else 0x1200000
FHB_D = 0x0008000
FZ_OFF = 0x0030000
EPOCH_OFF = 0x0040000
WS_BYTES = 0x2000000 if DIAG else 0x1600000
OOB = 0x7f000000
TAGC = 0x9E3779B9
X_BYTES = 2048 * 512 * 2
W_BYTES = 2048 * 257 * 2
W1_BYTES = 512 * 1792 * 2

SX, SWR, SWI, SW1, SW2, SOUT, SWS = 12, 16, 20, 24, 28, 32, 36
sRW, sPB, sCBK, sF0, sHF, sR, sTAG, sA, sWP, sDB = 3, 4, 5, 6, 7, 8, 9, 10, 11, 40
sXO, sRS = 41, 42
sT0, sT1, sT2, sT3, sT4 = 43, 44, 45, 46, 47
sCNT = 49
sXT, sDT = 0, 1

LA, LB, LS = 0, 65536, 131072
L_C1 = LS
L_WT = LS + 16384
L_SCR = LS + 24576
L_CS, L_ST, L_CNT, L_W256, L_DUM = L_SCR, L_SCR + 1024, L_SCR + 3072, L_SCR + 4096, L_SCR + 6144
XSLOT = [LB, LB + 16384, LB + 32768, LB + 49152, LA, LA + 16384, LA + 32768, LA + 49152]

vLANE, vL16, vC, vQ, vTAG, vCNT = 1, 2, 3, 4, 5, 25
vGO, vR0, vR1, vYW, vZB = 0, 22, 23, 21, 124
C_WA2, C_CSA, C_WB1, C_WB2, C_CSB, C_ST, C_WT, C_F, C_E1, C_L1, C_GY, C_FA, C_FB, C_HB = 0, 4, 8, 12, 16, 20, 24, 28, 32, 36, 40, 44, 48, 52


def srd(n):
    return "s[%d:%d]" % (n, n + 3)


def gen():
    k = K(NAME)
    e = k.e
    tail = []
    FS, ENC = P("FS", 0), P("ENC", 0)
    _stamp = k.stamp

    def stamp_n(i, real=False):
        if ENC:
            if i == 1 or i == ENC:
                _stamp(i, True)
            return
        if FS and 2 <= i <= 13:
            return
        _stamp(i, real)
    k.stamp = stamp_n

    def fs(mode, i):
        if FS == mode:
            _stamp(i)

    side = deque()
    sch = {"gap": 3, "n": 0, "lds": deque()}

    def mfma(d, a, b, c=None):
        e("v_mfma_f32_16x16x32_bf16 %s, %s, %s, %s" % (d, a, b, c if c is not None else d))

    def mf(d, a, b, c=None):
        mfma(d, a, b, c)
        sch["n"] += 1
        for _ in range(sch.get("nl", P("NL", 1))):
            if sch["lds"]:
                sch["lds"].popleft()()
        if side and sch["n"] % sch["gap"] == 0:
            side.popleft()()

    def mf32(d, a, b, c):
        e("v_mfma_f32_32x32x16_bf16 %s, %s, %s, %s" % (d, a, b, c))
        for _ in range(P("NL32", 3)):
            if sch["lds"]:
                sch["lds"].popleft()()
        sch["n"] += 2
        if side and sch["n"] % max(2, sch["gap"] // 2 * 2) == 0:
            side.popleft()()

    def flush_lds():
        while sch["lds"]:
            sch["lds"].popleft()()

    def flush_side():
        flush_lds()
        while side:
            side.popleft()()

    def run(items):
        for f in items:
            f()

    def bf16_round(v):
        e("v_cvt_pk_bf16_f32 v%d, v%d, v%d" % (v, v, v))
        e("v_lshlrev_b32 v%d, 16, v%d" % (v, v))

    def publish_lines(soff):
        return ["    s_mov_b64 exec, 1",
                "    buffer_store_dword v%d, off, %s, %s sc1" % (vTAG, srd(SWS), soff),
                "    s_mov_b64 exec, -1"]

    def publish(soff):
        k.lines.extend(publish_lines(soff))
        k.vm.issue("flag")

    pollno = [0]

    def poll_ld(vaddr, soff, vt):
        return "buffer_load_dword v%d, v%d, %s, %s offen sc1" % (vt, vaddr, srd(SWS), soff)

    def poll_issue(tag, vaddr, soff, vt):
        e(poll_ld(vaddr, soff, vt))
        k.vm.issue(tag)

    def poll_check(tag, vaddr, soff, vt, pre=(), slp=None):
        n = pollno[0]
        pollno[0] += 1
        k.wait_vm(tag)
        e("v_cmp_ne_u32 vcc, v%d, v%d" % (vt, vTAG))
        e("s_cmp_lg_u64 vcc, 0")
        e("s_cbranch_scc1 L_slow%d" % n)
        k.lab("L_back%d" % n)
        tail.append("L_slow%d:" % n)
        tail.extend(pre)
        tail.extend(["    s_mov_b32 s%d, 0" % sCNT,
                     "L_spin%d:" % n,
                     "    s_sleep %d" % (P("SLP", 8) if slp is None else slp),
                     "    s_mov_b64 exec, vcc",
                     "    " + poll_ld(vaddr, soff, vt),
                     "    s_mov_b64 exec, -1",
                     "    s_waitcnt vmcnt(0)",
                     "    v_cmp_ne_u32 vcc, v%d, v%d" % (vt, vTAG),
                     "    s_cmp_lg_u64 vcc, 0",
                     "    s_cbranch_scc0 L_back%d" % n,
                     "    s_add_u32 s%d, s%d, 1" % (sCNT, sCNT),
                     "    s_cmp_lt_u32 s%d, 0x40000" % sCNT,
                     "    s_cbranch_scc1 L_spin%d" % n,
                     "    s_branch L_back%d" % n])

    gbn = [0]

    def gwait_lines(off, target):
        n = gbn[0]
        gbn[0] += 1
        chk = ["    ds_read_b32 v19, v%d offset:%d" % (vCNT, off),
               "    s_waitcnt lgkmcnt(0)",
               "    v_readfirstlane_b32 s%d, v19" % sT0,
               "    s_cmp_lt_u32 s%d, %s" % (sT0, target)]
        tail.append("L_gs%d:" % n)
        tail.append("    s_mov_b32 s%d, 0x400000" % sCNT)
        tail.append("L_gb%d:" % n)
        tail.append("    s_sub_u32 s%d, s%d, 1" % (sCNT, sCNT))
        tail.append("    s_cbranch_scc1 L_gx%d" % n)
        tail.append("    s_sleep %d" % (4 if off in (C_WT, C_ST) else 1))
        tail.extend(chk)
        tail.append("    s_cbranch_scc1 L_gb%d" % n)
        tail.append("    s_branch L_gx%d" % n)
        return chk + ["    s_cbranch_scc1 L_gs%d" % n, "L_gx%d:" % n]

    def garrive_lines(off):
        return ["    v_mov_b32 v19, 1",
                "    s_mov_b64 exec, 1",
                "    ds_add_u32 v%d, v19 offset:%d" % (vCNT, off),
                "    s_mov_b64 exec, -1"]

    def garrive(off):
        k.lines.extend(garrive_lines(off))
        k.lg.issue("arr")

    def gwait(off, target="4"):
        k.lines.extend(gwait_lines(off, target))
        k.lg.clear()

    def gpeek(off, vt):
        e("ds_read_b32 v%d, v%d offset:%d" % (vt, vCNT, off))
        k.lg.issue(("pk", off))

    def gcheck(off, vt):
        n = gbn[0]
        slow = gwait_lines(off, "4")
        k.wait_lg(("pk", off))
        e("v_readfirstlane_b32 s%d, v%d" % (sT0, vt))
        e("s_cmp_lt_u32 s%d, 4" % sT0)
        e("s_cbranch_scc1 L_gs%d" % n)
        k.lab("L_gx%d" % n)

    def flag_voff(vv, n):
        e("v_min_u32 v19, %d, v%d" % (n, vLANE))
        e("v_lshrrev_b32 v%d, 2, v19" % vv)
        e("v_lshlrev_b32 v%d, 7, v%d" % (vv, vv))
        e("v_and_b32 v19, 3, v19")
        e("v_lshl_add_u32 v%d, v19, 2, v%d" % (vv, vv))

    def xread_addr(v0_):
        e("v_lshrrev_b32 v19, 1, v%d" % vC)
        e("v_xor_b32 v19, v19, v%d" % vQ)
        e("v_lshlrev_b32 v19, 4, v19")
        e("v_lshl_add_u32 v19, v%d, 7, v19" % vC)
        e("s_lshl_b32 s%d, s%d, 12" % (sT0, sRW))
        e("v_add_u32 v%d, s%d, v19" % (v0_, sT0))
        e("v_xor_b32 v%d, 64, v%d" % (v0_ + 1, v0_))
        e("v_add_u32 v%d, 0x%x, v%d" % (v0_ + 2, LB, v0_))
        e("v_add_u32 v%d, 0x%x, v%d" % (v0_ + 3, LB, v0_ + 1))

    def xread(dst, v0_, kk, u, ks, tag):
        hi = XSLOT[kk] >= LB
        e("ds_read_b128 %s, v%d offset:%d" % (dst, v0_ + ks + (2 if hi else 0), XSLOT[kk] % 65536 + u * 2048))
        k.lg.issue(tag)

    def tag_setup():
        e("s_waitcnt lgkmcnt(0)")
        k.lg.clear()
        e("s_add_u32 s%d, s%d, 0x%x" % (sTAG, sTAG, TAGC))
        e("v_mov_b32 v%d, s%d" % (vTAG, sTAG))

    def late_setup(hf):
        e("v_lshrrev_b32 v19, 2, v%d" % vC)
        e("v_lshl_add_u32 v19, v%d, 2, v19" % vQ)
        e("v_bfe_u32 v30, v19, 1, 2")
        e("v_lshlrev_b32 v19, 7, v19")
        e("v_and_b32 v31, 1, v%d" % vC)
        e("v_lshl_add_u32 v19, v31, 3, v19")
        e("v_lshlrev_b32 v30, 1, v30")
        e("v_bfe_u32 v31, v%d, 1, 1" % vC)
        e("v_or_b32 v30, v30, v31")
        e("v_lshl_add_u32 v%d, v30, 4, v19" % vZB)
        e("v_lshrrev_b32 v19, 3, v%d" % vLANE)
        if hf:
            e("v_add_u32 v19, 8, v19")
        e("v_and_b32 v30, 7, v%d" % vLANE)
        e("v_lshlrev_b32 v%d, 15, v19" % vGO)
        e("v_lshl_add_u32 v%d, v30, 4, v%d" % (vGO, vGO))
        e("v_lshlrev_b32 v30, 1, v30")
        e("v_xor_b32 v30, v30, v19")
        e("v_lshlrev_b32 v30, 4, v30")
        e("v_lshl_add_u32 v30, v19, 8, v30")
        e("s_lshl_b32 s%d, s%d, 12" % (sT0, sRW))
        e("v_add_u32 v%d, s%d, v30" % (vR0, sT0))
        e("v_xor_b32 v%d, 16, v%d" % (vR1, vR0))
        e("v_xor_b32 v%d, v%d, v%d" % (vYW, vQ, vC))
        e("v_lshlrev_b32 v%d, 4, v%d" % (vYW, vYW))
        e("v_lshl_add_u32 v%d, v%d, 8, v%d" % (vYW, vC, vYW))
        e("s_lshl_b32 s%d, s%d, 19" % (sXO, sWP))
        e("s_lshl2_add_u32 s%d, s%d, s%d" % (sT0, sA, sRW))
        e("s_lshl_b32 s%d, s%d, 10" % (sT0, sT0))
        e("s_add_u32 s%d, s%d, s%d" % (sXO, sXO, sT0))
        e("s_lshl_b32 s%d, s%d, 7" % (sT0, sDB))
        e("s_add_u32 s%d, s%d, s%d" % (sXO, sXO, sT0))
    XV = 248

    def xe_load():
        e("buffer_load_dwordx4 %s, v%d, %s, s%d offen" % (vr(XV, 4), vGO, srd(SX), sXO))
        k.vm.issue("xe")

    e("s_cmp_ge_u32 s2, 256")
    e("s_cbranch_scc1 L_done")
    k.stamp(0)
    k.stamp(1, real=True)
    e("s_load_dwordx2 s[%d:%d], s[0:1], 0" % (SX, SX + 1))
    e("s_load_dwordx2 s[%d:%d], s[0:1], 32" % (SW1, SW1 + 1))
    e("s_load_dwordx2 s[%d:%d], s[0:1], 64" % (SWS, SWS + 1))
    e("s_load_dwordx2 s[%d:%d], s[0:1], 8" % (SWR, SWR + 1))
    e("s_load_dwordx2 s[%d:%d], s[0:1], 16" % (SWI, SWI + 1))
    e("s_load_dwordx2 s[%d:%d], s[0:1], 40" % (SW2, SW2 + 1))
    e("s_load_dwordx2 s[%d:%d], s[0:1], 48" % (SOUT, SOUT + 1))
    e("v_lshrrev_b32 v19, 6, v0")
    e("s_getpc_b64 s[%d:%d]" % (sT1, sT2))
    k.lab("L_pc")
    e("s_andn2_b32 s%d, s2, 7" % sT0)
    e("v_add_lshl_u32 v20, v19, s%d, 7" % sT0)
    e("v_min_u32 v20, L_end-L_pc-4, v20")
    e("v_mov_b32 v21, s%d" % sT2)
    e("v_add_co_u32 v20, vcc, s%d, v20" % sT1)
    e("v_readfirstlane_b32 s%d, v19" % sHF)
    e("v_and_b32 v%d, 63, v0" % vLANE)
    e("v_addc_co_u32 v21, vcc, 0, v21, vcc")
    e("global_load_dword v247, v[20:21], off")
    k.vm.issue("touch")
    for s_, nb in ((SX, X_BYTES), (SWR, W_BYTES), (SWI, W_BYTES), (SW1, W1_BYTES), (SW2, W1_BYTES), (SOUT, X_BYTES), (SWS, WS_BYTES)):
        e("s_mov_b32 s%d, 0x%x" % (s_ + 2, nb))
        e("s_mov_b32 s%d, 0x00020000" % (s_ + 3))
    e("v_and_b32 v%d, 15, v0" % vC)
    e("v_bfe_u32 v%d, v0, 4, 2" % vQ)
    e("v_lshlrev_b32 v%d, 4, v%d" % (vL16, vLANE))
    e("v_mov_b32 v%d, 0x%x" % (vCNT, L_CNT))
    e("s_and_b32 s%d, s2, 7" % sA)
    e("s_lshr_b32 s%d, s2, 6" % sWP)
    e("s_bfe_u32 s%d, s2, 0x30003" % sDB)
    e("s_and_b32 s%d, s%d, 3" % (sRW, sHF))
    e("s_lshr_b32 s%d, s%d, 1" % (sPB, sA))
    e("s_lshl2_add_u32 s%d, s%d, s%d" % (sPB, sPB, sWP))
    e("s_and_b32 s%d, s%d, 1" % (sT0, sA))
    e("s_lshl3_add_u32 s%d, s%d, s%d" % (sCBK, sT0, sDB))
    e("s_lshl1_add_u32 s%d, s%d, s%d" % (sR, sWP, sDB))
    if P("ROT", 44) == 44:
        e("s_add_u32 s%d, s%d, s%d" % (sR, sWP, sDB))
        e("s_and_b32 s%d, s%d, 1" % (sR, sR))
        e("s_lshl_b32 s%d, s%d, 2" % (sR, sR))
    elif P("ROT", 44) == 66:
        e("s_add_u32 s%d, s%d, s%d" % (sR, sWP, sDB))
        e("s_and_b32 s%d, s%d, 3" % (sR, sR))
        e("s_lshl_b32 s%d, s%d, 1" % (sR, sR))
    else:
        e("s_and_b32 s%d, s%d, %d" % (sR, sR, P("ROT", 44)))
    e("s_lshl2_add_u32 s%d, s%d, s%d" % (sRS, sPB, sRW))
    e("s_lshr_b32 s%d, s%d, 1" % (sA, sPB))
    e("s_and_b32 s%d, s%d, 1" % (sT3, sPB))
    e("s_lshl1_add_u32 s%d, s%d, s%d" % (sWP, sT3, sT0))
    e("s_lshr_b32 s%d, s%d, 2" % (sHF, sHF))
    e("s_cbranch_scc1 L_fft")
    q_vm = list(k.vm.q)

    sXB, sM4, sM2, sHS, sFH, sHB, sFHC, sW2B = 48, 57, 58, 59, 60, 61, 62, 63
    TV = [50, 51, 52, 53, 54, 55, 56]
    sRSW, sCG, sRB = sPB, sHF, sCBK
    e("s_lshl_b32 s%d, s%d, 20" % (sXB, sT3))
    e("s_lshl2_add_u32 s%d, s%d, s%d" % (sT1, sA, sRW))
    e("s_lshl_b32 s%d, s%d, 10" % (sT1, sT1))
    e("s_add_u32 s%d, s%d, s%d" % (sXB, sXB, sT1))
    e("v_lshrrev_b32 v10, 3, v%d" % vLANE)
    e("v_and_b32 v12, 7, v%d" % vLANE)
    e("v_xor_b32 v6, v12, v%d" % vQ)
    e("v_lshlrev_b32 v6, 4, v6")
    e("v_lshl_add_u32 v6, v10, 15, v6")
    e("v_xor_b32 v7, 64, v6")
    e("v_add_u32 v7, 0x40000, v7")
    e("s_lshl_b32 s%d, s%d, 12" % (sM4, sRW))
    e("s_lshl_b32 s%d, s%d, 11" % (sM2, sRW))
    e("s_sub_u32 s%d, s%d, s%d" % (sF0, sCBK, sT0))
    e("s_lshl_b32 s%d, s%d, 8" % (sF0, sF0))
    e("s_cmp_eq_u32 s%d, 7" % sDB)
    e("s_cselect_b32 s%d, 0x%x, s%d" % (sF0, 0x08000000, sF0))
    e("s_waitcnt lgkmcnt(0)")
    e("s_load_dword s%d, s[%d:%d], 0x%x" % (sTAG, SWS, SWS + 1, EPOCH_OFF))

    def xdma(kk):
        def item(ee):
            def f():
                e("s_add_u32 m0, s%d, %d" % (sM4, XSLOT[kk] + ee * 1024))
                if ee == 0:
                    e("s_add_u32 s%d, s%d, %d" % (sXT, sR, kk))
                    e("s_and_b32 s%d, s%d, 7" % (sXT, sXT))
                    e("s_lshl_b32 s%d, s%d, 7" % (sXT, sXT))
                    e("s_add_u32 s%d, s%d, s%d" % (sXT, sXT, sXB))
                elif ee == 2:
                    e("s_add_u32 s%d, s%d, 0x80000" % (sXT, sXT))
                else:
                    k.nop(1)
                e("buffer_load_dwordx4 v%d, %s, s%d offen lds" % (6 + (ee & 1), srd(SX), sXT))
                k.vm.issue(("X", kk))
            return f
        return [item(ee) for ee in range(4)]

    def w1dma(reg, kk):
        off = " offset:128" if reg else ""
        lb = (LA - 128 if reg else LB) + kk * 8192

        def f0():
            e("s_add_u32 s%d, s%d, %d" % (sDT, sR, kk))
            e("s_and_b32 s%d, s%d, 7" % (sDT, sDT))
            e("s_mul_i32 s%d, s%d, %d" % (sDT, sDT, 64 * 3584))
            e("s_add_u32 m0, s%d, %d" % (sM2, lb + 128))
            e("s_add_u32 s%d, s%d, s%d" % (sDT, sDT, sF0))
            if reg:
                e("s_add_u32 s%d, s%d, 128" % (sDT, sDT))
            else:
                e("s_add_u32 m0, s%d, %d" % (sM2, lb))
                k.nop(1)
            e("buffer_load_dwordx4 v8, %s, s%d offen lds" % (srd(SW1), sDT))
            k.vm.issue(("W1", reg, kk))

        def f1():
            e("s_add_u32 m0, s%d, %d" % (sM2, (LA if reg else LB) + kk * 8192 + 1024))
            k.nop(1)
            e("buffer_load_dwordx4 v9, %s, s%d offen lds" % (srd(SW1), sDT))
            k.vm.issue(("W1", reg, kk))
        return [f0, f1]

    def mtouch(sr_):
        e("s_lshl2_add_u32 s%d, s2, s%d" % (sT0, sRW))
        e("s_mul_i32 s%d, s%d, %d" % (sT0, sT0, 14 * 128))
        e("v_lshlrev_b32 v19, 7, v%d" % vLANE)
        e("s_mov_b32 m0, 0x%x" % L_DUM)
        e("s_mov_b64 exec, 0x3fff")
        e("buffer_load_dword v19, %s, s%d offen lds" % (srd(sr_), sT0))
        k.vm.issue("touch")
        e("s_mov_b64 exec, -1")
    T1P, T2P = P("T1P", 1), P("T2P", 4)

    def touches(pos):
        if T1P == pos:
            mtouch(SW1)
        if T2P == pos:
            mtouch(SW2)
    run(xdma(0))
    touches(0)
    run(xdma(1))
    touches(1)
    k.stamp(2)
    e("s_lshl_b32 s%d, s%d, 4" % (sT0, sRW))
    e("v_add_u32 v11, s%d, v10" % sT0)
    e("v_mul_u32_u24 v11, 3584, v11")
    e("v_and_b32 v13, 1, v%d" % vQ)
    e("v_lshlrev_b32 v13, 1, v13")
    e("v_xor_b32 v13, v13, v12")
    e("v_lshl_add_u32 v8, v13, 4, v11")
    e("v_xor_b32 v13, 4, v13")
    e("v_lshl_add_u32 v9, v13, 4, v11")
    e("v_add_u32 v9, %d, v9" % (8 * 3584))
    vWS, vWW, vWR, vD2 = 15, 14, 13, 24
    e("v_lshlrev_b32 v15, 13, v10")
    e("v_lshl_add_u32 v15, v12, 4, v15")
    e("s_lshl_b32 s%d, s%d, 1" % (sT0, sRW))
    e("v_xor_b32 v14, s%d, v12" % sT0)
    e("v_lshlrev_b32 v14, 4, v14")
    e("v_lshl_add_u32 v14, v%d, 7, v14" % vLANE)
    e("v_add_u32 v14, 0x%x, v14" % L_WT)
    e("v_xor_b32 v13, v10, v12")
    e("v_lshlrev_b32 v13, 4, v13")
    e("v_lshl_add_u32 v13, v10, 7, v13")
    e("s_add_u32 s%d, s%d, 0x%x" % (sT0, sM2, L_WT))
    e("v_add_u32 v13, s%d, v13" % sT0)
    e("v_lshlrev_b32 v19, 1, v%d" % vQ)
    e("v_xor_b32 v19, v19, v12")
    e("v_lshlrev_b32 v19, 4, v19")
    e("v_lshl_add_u32 v%d, v10, 10, v19" % vD2)
    xread_addr(26)
    e("v_mov_b32 v19, 0")
    e("v_lshl_add_u32 v30, v%d, 2, v%d" % (vC, vCNT))
    e("ds_write_b32 v30, v19")
    XF, AF, ACC, HO, CS, ONES = 128, 32, 64, 32, 112, 116
    TRB = [16, 17, 18, 20]
    e("v_lshrrev_b32 v19, 2, v%d" % vC)
    e("v_lshl_add_u32 v30, v%d, 3, v19" % vQ)
    e("v_lshlrev_b32 v30, 7, v30")
    e("v_and_b32 v31, 1, v%d" % vC)
    e("v_lshl_add_u32 v30, v31, 3, v30")
    e("v_bfe_u32 v19, v%d, 3, 1" % vC)
    e("v_and_b32 v31, 1, v%d" % vQ)
    e("v_lshl_or_b32 v19, v31, 1, v19")
    e("v_lshlrev_b32 v19, 1, v19")
    e("v_bfe_u32 v31, v%d, 1, 1" % vC)
    e("v_or_b32 v19, v19, v31")
    e("v_lshl_add_u32 v30, v19, 4, v30")
    e("v_add_u32 v30, 0x%x, v30" % LB)
    for l in range(4):
        e("v_xor_b32 v%d, %d, v30" % (TRB[l], 32 * l))
    vCSA, RN, C1 = 99, 120, [108, 112, 116, 124]
    TR2 = [100, 101, 102, 103]
    HV = [104, 105, 106, 107]
    vFH = 106
    def setup_a():
        e("v_lshlrev_b32 v%d, 4, v%d" % (vCSA, vQ))
        e("v_add_u32 v%d, 0x%x, v%d" % (vCSA, L_CS, vCSA))
        e("s_lshl_b32 s%d, s%d, 9" % (sT0, sRW))
        e("s_add_u32 s%d, s%d, 0x%x" % (sT0, sT0, L_ST))
        e("v_lshl_add_u32 v96, v%d, 2, s%d" % (vC, sT0))
        e("s_mul_i32 s%d, s%d, %d" % (sHB, sRS, 2 * 56 * 1024))
        e("s_add_u32 s%d, s%d, 0x%x" % (sHB, sHB, H_OFF))
        e("s_lshl4_add_u32 s%d, s%d, s%d" % (sHS, sF0, sHB))
        e("s_and_b32 s%d, s2, 1" % sT2)
        e("s_lshl1_add_u32 s%d, s%d, s%d" % (sFHC, sPB, sT2))
        e("s_lshl2_add_u32 s%d, s%d, s%d" % (sFHC, sFHC, sRW))
        e("s_lshl_b32 s%d, s%d, 7" % (sFHC, sFHC))
        e("s_add_u32 s%d, s%d, 0x%x" % (sFHC, sFHC, FH_OFF))
        e("s_lshl2_add_u32 s%d, s%d, s%d" % (sFH, sDB, sFHC))
        e("s_mul_i32 s%d, s%d, 7" % (sT0, sT2))
        e("s_lshr_b32 s%d, s2, 6" % sT1)
        e("s_lshl1_add_u32 s%d, s%d, s%d" % (sT1, sT1, sDB))
        e("s_and_b32 s%d, s%d, 7" % (sT1, sT1))
        e("s_cmp_eq_u32 s%d, 7" % sT1)
        e("s_cselect_b32 s%d, 0, s%d" % (sT1, sT1))
        for i in range(7):
            e("s_add_u32 s%d, s%d, s%d" % (TV[i], sT1, sT0))
            if i < 6:
                e("s_add_u32 s%d, s%d, 1" % (sT1, sT1))
                e("s_cmp_eq_u32 s%d, 7" % sT1)
                e("s_cselect_b32 s%d, 0, s%d" % (sT1, sT1))
        e("s_lshl_b32 s%d, s%d, 7" % (sW2B, sDB))
        e("s_lshl_b32 s%d, s%d, 14" % (sT0, sRW))
        e("s_add_u32 s%d, s%d, s%d" % (sW2B, sW2B, sT0))
        e("s_mul_i32 s%d, s%d, %d" % (sT0, sT2, 56 * 1024))
        e("v_add_u32 v%d, s%d, v%d" % (HV[0], sT0, vL16))
        e("s_sub_u32 s%d, %d, s%d" % (sT0, 56 * 1024, sT0))
        e("v_add_u32 v%d, s%d, v%d" % (HV[1], sT0, vL16))
        e("v_min_u32 v19, 6, v%d" % vLANE)
        e("v_lshlrev_b32 v%d, 2, v19" % vFH)
        late_setup(0)
        e("v_add_u32 v30, 0x%x, v%d" % (LB, vZB))
        for l in range(4):
            e("v_xor_b32 v%d, %d, v30" % (TR2[l], 32 * l))

    setup_a()
    run(xdma(2))
    run(xdma(3))
    touches(2)
    tag_setup()
    k.stamp(3)

    def X(u, T):
        return vr(XF + (T * 2 + u) * 4, 4)

    WR16 = 64

    def wloads():
        items = []

        def head():
            e("s_lshr_b32 s%d, s2, 5" % sRSW)
            e("s_and_b32 s%d, s2, 7" % sT1)
            e("s_lshl3_add_u32 s%d, s%d, s%d" % (sRSW, sT1, sRSW))
            e("s_and_b32 s%d, s%d, 3" % (sCG, sDB))
            e("s_lshr_b32 s%d, s%d, 4" % (sT1, sRSW))
            e("s_lshl_b32 s%d, s%d, 4" % (sT1, sT1))
            e("s_lshl1_add_u32 s%d, s%d, s%d" % (sT1, sRW, sT1))
            e("s_and_b32 s%d, s%d, 1" % (sT2, sRSW))
            e("s_lshl3_add_u32 s%d, s%d, s%d" % (sT1, sT2, sT1))
            e("s_bfe_u32 s%d, s%d, 0x30001" % (sT2, sRSW))
            e("s_lshl_b32 s%d, s%d, 8" % (sT2, sT2))
            e("s_add_u32 s%d, s%d, s%d" % (sT1, sT1, sT2))
            e("s_mul_i32 s%d, s%d, 514" % (sT1, sT1))
            e("s_lshl_b32 s%d, s%d, 7" % (sT4, sCG))
            e("s_add_u32 s%d, s%d, s%d" % (sT4, sT4, sT1))
            e("v_lshlrev_b32 v11, 1, v%d" % vLANE)
            e("v_and_b32 v19, 3, v%d" % vLANE)
            e("v_mul_u32_u24 v19, 32896, v19")
            e("v_bfe_u32 v30, v%d, 2, 1" % vLANE)
            e("v_mul_u32_u24 v30, 514, v30")
            e("v_add_u32 v19, v19, v30")
            e("s_cmp_eq_u32 s%d, 3" % sCG)
            e("s_cselect_b32 s%d, s%d, 0x%x" % (sT1, sT1, OOB))
            e("buffer_load_ushort v120, v19, %s, s%d offen offset:512" % (srd(SWR), sT1))
            k.vm.issue("wg")
            e("buffer_load_ushort v121, v19, %s, s%d offen offset:512" % (srd(SWI), sT1))
            k.vm.issue("wg")
        items.append(head)
        nt = " nt" if P("NTW", 0) else ""
        for r in range(4):
            def f(r=r):
                if r:
                    e("s_add_u32 s%d, s%d, 32896" % (sT4, sT4))
                for cb in range(2):
                    for arr, sr_ in ((0, SWR), (1, SWI)):
                        e("buffer_load_ushort v%d, v11, %s, s%d offen offset:%d%s" % (WR16 + 8 * cb + 4 * arr + r, srd(sr_), sT4, 514 * cb, nt))
                        k.vm.issue("wg")
            items.append(f)
        return items

    def wt_a():
        k.wait_vm("wg")
        for cb in range(2):
            for r in range(4):
                e("v_lshl_or_b32 v%d, v%d, 16, v%d" % (WR16 + 8 * cb + r, WR16 + 8 * cb + 4 + r, WR16 + 8 * cb + r))
        e("v_lshl_or_b32 v120, v121, 16, v120")
        e("ds_write_b128 v%d, %s" % (vWW, vr(WR16, 4)))
        k.lg.issue("wtw")
        e("v_xor_b32 v19, 16, v%d" % vWW)
        e("ds_write_b128 v19, %s" % vr(WR16 + 8, 4))
        k.lg.issue("wtw")
        e("s_lshl_b32 s%d, s%d, 5" % (sT0, sRW))
        e("s_add_u32 s%d, s%d, 0x%x" % (sT0, sT0, L_W256))
        e("v_lshl_add_u32 v19, v%d, 2, s%d" % (vLANE, sT0))
        e("s_mov_b64 exec, 0xff")
        e("ds_write_b32 v19, v120")
        k.lg.issue("wtw")
        e("s_mov_b64 exec, -1")

    def wt_b():
        for h in range(2):
            e("ds_read_b128 %s, v%d offset:%d" % (vr(WR16 + 4 * h, 4), vWR, 1024 * h))
            k.lg.issue("wtr")
        e("v_add_u32 v19, 0x%x, v%d" % (L_W256, vL16))
        e("ds_read_b128 %s, v19" % vr(WR16 + 8, 4))
        k.lg.issue("wtr")

    def wt_c():
        k.wait_lg("wtr")
        e("s_lshl2_add_u32 s%d, s%d, s%d" % (sT2, sCG, sRW))
        e("s_lshl_b32 s%d, s%d, 17" % (sT0, sT2))
        e("s_lshl_b32 s%d, s%d, 7" % (sT1, sRSW))
        e("s_add_u32 s%d, s%d, s%d" % (sT0, sT0, sT1))
        e("s_add_u32 s%d, s%d, 0x%x" % (sT0, sT0, WT_OFF))
        e("buffer_store_dwordx4 %s, v%d, %s, s%d offen sc1" % (vr(WR16, 4), vWS, srd(SWS), sT0))
        k.vm.issue("wtst")
        e("s_add_u32 s%d, s%d, 0x10000" % (sT0, sT0))
        e("buffer_store_dwordx4 %s, v%d, %s, s%d offen sc1" % (vr(WR16 + 4, 4), vWS, srd(SWS), sT0))
        k.vm.issue("wtst")
        e("s_add_u32 s%d, s%d, 0x%x" % (sT1, sT1, WT_OFF + 256 * 8192))
        e("s_cmp_eq_u32 s%d, 12" % sT2)
        e("s_cselect_b32 s%d, s%d, 0x%x" % (sT1, sT1, OOB))
        e("s_mov_b64 exec, 0xff")
        e("buffer_store_dwordx4 %s, v%d, %s, s%d offen sc1" % (vr(WR16 + 8, 4), vL16, srd(SWS), sT1))
        k.vm.issue("wtst")
        e("s_mov_b64 exec, -1")

    def wt_d():
        e("s_lshl2_add_u32 s%d, s%d, s%d" % (sT2, sCG, sRW))
        e("s_lshr_b32 s%d, s%d, 2" % (sT1, sRSW))
        e("s_lshl4_add_u32 s%d, s%d, s%d" % (sT0, sT2, sT1))
        e("s_lshl_b32 s%d, s%d, 7" % (sT0, sT0))
        e("s_and_b32 s%d, s%d, 3" % (sT1, sRSW))
        e("s_lshl2_add_u32 s%d, s%d, s%d" % (sT0, sT1, sT0))
        e("s_add_u32 s%d, s%d, 0x%x" % (sT0, sT0, FW_OFF))
        e("s_add_u32 s%d, s%d, 0x%x" % (sT1, sT0, 4 * 2048))
        e("s_cmp_eq_u32 s%d, 12" % sT2)
        e("s_cselect_b32 s%d, s%d, 0x%x" % (sT1, sT1, OOB))
        k.wait_vm("wtst")
        publish("s%d" % sT0)
        publish("s%d" % sT1)
        e("s_mov_b32 s%d, 0" % sHF)

    def xstage(s_):
        for kk in (2 * s_, 2 * s_ + 1):
            for u in range(2):
                for ks in range(2):
                    xread(X(u, 2 * kk + ks), 26, kk, u, ks, ("XR", s_))
    WPOS = P("WPOS", -1)
    if WPOS < 0:
        run(wloads())
    for s_ in range(4):
        k.wait_vm(("X", 2 * s_ + 1))
        if s_:
            k.wait_lg([("XR", s_ - 1)] + (["wtw"] if s_ == WPOS + 3 else []))
        e("s_barrier")
        fs(6, 2 + s_)
        xstage(s_)
        if s_ == WPOS + 3:
            wt_b()
        if s_ < 2:
            run(xdma(4 + 2 * s_) + xdma(5 + 2 * s_))
        WAS = [int(x_) for x_ in os.environ.get("WAS", "0,0,4,8").split(",")]
        for kk in range(WAS[s_ - 1] if s_ else 0, WAS[s_]):
            run(w1dma(0, kk))
        if s_ == WPOS:
            run(wloads())
        touches(3 + s_)
        if s_ == WPOS + 2:
            wt_a()
        if s_ == WPOS + 3:
            wt_c()
    k.wait_vm([("W1", 0, kk) for kk in range(4)])
    k.wait_lg(("XR", 3))
    e("s_barrier")
    k.stamp(4)
    fs(6, 6)


    def rdA(reg, T):
        items = []
        for l in range(4):
            for hh in range(2):
                def f(l=l, hh=hh):
                    e("ds_read_b64_tr_b16 %s, v%d offset:%d" % (vr(AF + (T & 1) * 16 + 4 * l + 2 * hh, 2), TRB[l], T * 4096 + hh * 512))
                    k.lg.issue(("A", reg, T))
                items.append(f)
        return items

    WLE = P("WLE", 4)
    CFB = P("CFB", 10) if WLE else 14

    def gpass(reg, hooks, mid):
        fs(8 + reg, 2)
        run(rdA(reg, 0))
        for T in range(16):
            k.wait_lg(("A", reg, T))
            if T == 7:
                gcheck(mid, 107)
            if T == 6:
                gpeek(mid, 107)
            if T == (CFB if reg else 14):
                gpeek(C_FB if reg else C_FA, 107)
            if T == CFB and reg and WLE:
                gpeek(C_HB, 97)
            if T == 15 and reg == 0:
                gpeek(C_WB1, 97)
            if T == 0 and reg == 1:
                gpeek(C_CSA, 98)
            if T + 1 < 16:
                sch["lds"].extend(rdA(reg, T + 1))
            for l in range(4):
                a = vr(AF + (T & 1) * 16 + 4 * l, 4)
                if P("M32", 0):
                    c = vr(ACC + 16 * (l & 1), 16)
                    mf32(c, a, X(l >> 1, T), c if (T or l > 1) else "0")
                    continue
                for u in range(2):
                    c = vr(ACC + (l * 2 + u) * 4, 4)
                    mf(c, a, X(u, T), c if T else "0")
            flush_lds()
            run(hooks.get(T, []))
            if T < 11:
                fs(8 + reg, 3 + T)
        flush_side()

    def c1_fetch(reg):
        def f():
            gcheck(C_FB if reg else C_FA, 107)
            if reg == 0:
                for u in range(2):
                    e("ds_read2_b32 %s, v96 offset0:%d offset1:%d" % (vr(RN + 2 * u, 2), 32 + 16 * u, 16 * u))
                    k.lg.issue(("C1", reg))
            for l in range(4):
                e("ds_read_b128 %s, v%d offset:%d" % (vr(C1[l], 4), vCSA, 256 * reg + 64 * l))
                k.lg.issue(("C1", reg))
        return f

    def h_out(reg, cw, tag):
        garrive(cw)
        e("s_add_u32 s%d, s%d, %d" % (sT2, sHS, 2048 * reg))
        e("s_add_u32 s%d, s%d, %d" % (sT3, sHS, 2048 * reg + 56 * 1024))
        k.wait_lg(("C1", reg))
        for pr in range(2):
            for u in range(2):
                o = HO + (pr * 2 + u) * 4
                for l in (2 * pr, 2 * pr + 1):
                    a = ACC + (l * 2 + u) * 4
                    for r in (0, 2):
                        e("v_pk_fma_f32 %s, %s, %s, %s op_sel_hi:[1,0,1]" % (vr(a + r, 2), vr(C1[l] + r, 2), vr(RN + 2 * u, 2), vr(a + r, 2)))
                for l in (2 * pr, 2 * pr + 1):
                    a = ACC + (l * 2 + u) * 4
                    e("v_cvt_pk_bf16_f32 v%d, v%d, v%d" % (o + (l & 1) * 2, a, a + 1))
                    e("v_cvt_pk_bf16_f32 v%d, v%d, v%d" % (o + (l & 1) * 2 + 1, a + 2, a + 3))
                for i in range(4):
                    e("v_pk_max_i16 v%d, v%d, 0" % (o + i, o + i))
                HS = P("HS", 0)
                if HS != 1:
                    e("buffer_store_dwordx4 %s, v%d, %s, s%d offen offset:%d sc1" % (vr(o, 4), vL16, srd(SWS), sT2 + u, 1024 * pr))
                    k.vm.issue(tag)
                if HS:
                    e("buffer_store_dwordx4 %s, v%d, %s, s%d offen offset:%d" % (vr(o, 4), vL16, srd(SWS), sT2 + u, 1024 * pr))
                    k.vm.issue(tag)

    def land(reg, lo, hi, cw):
        def f():
            k.wait_vm([("W1", reg, kk) for kk in range(lo, hi)])
            garrive(cw)
        return f

    sch["gap"] = P("GAPA", 4)
    for kk in range(8):
        side.extend(w1dma(1, kk))
    ha = {P("LWA", 3): [land(0, 4, 8, C_WA2)], P("LB1", 11): [land(1, 0, 4, C_WB1)], P("WTD", 2): [wt_d], P("LB2", 13): [land(1, 4, 8, C_WB2)], 14: [c1_fetch(0)]}
    def w2l2(part, nparts):
        def f():
            n = 56 // nparts
            e("s_lshr_b32 s%d, s2, 3" % sT0)
            e("s_lshl2_add_u32 s%d, s%d, s%d" % (sT0, sT0, sRW))
            e("s_and_b32 s%d, s2, 1" % sT1)
            e("s_lshl_b32 s%d, s%d, 7" % (sT1, sT1))
            e("s_add_u32 s%d, s%d, s%d" % (sT0, sT0, sT1))
            e("s_mul_i32 s%d, s%d, %d" % (sT0, sT0, 56 * 128))
            e("v_lshlrev_b32 v19, 7, v%d" % vLANE)
            e("s_mov_b32 m0, 0x%x" % (L_DUM - part * n * 128 % 4096 * 0))
            m = ((1 << n) - 1) << (part * n)
            e("s_mov_b32 exec_lo, 0x%x" % (m & 0xffffffff))
            e("s_mov_b32 exec_hi, 0x%x" % (m >> 32))
            e("buffer_load_dword v19, %s, s%d offen lds" % (srd(SW2), sT0))
            k.vm.issue("touch")
            e("s_mov_b64 exec, -1")
        return f
    W2A = [int(x_) for x_ in os.environ.get("W2A", "").split(",") if x_]
    for i_, T_ in enumerate(W2A):
        ha.setdefault(T_, []).append(w2l2(i_, len(W2A)))
    gpass(0, ha, C_WA2)
    k.stamp(5)
    h_out(0, C_CSA, "ha")
    k.stamp(6)

    for l in range(4):
        e("v_subrev_u32 v%d, 0x%x, v%d" % (TRB[l], LB, TRB[l]))
    gcheck(C_WB1, 97)

    def w2_dma(late, j):
        lb = (LA if late else LB) + j * 8192

        def f0():
            e("s_add_u32 m0, s%d, %d" % (sM2, lb))
            e("s_lshl_b32 s%d, s%d, 17" % (sDT, TV[j]))
            e("s_add_u32 s%d, s%d, s%d" % (sDT, sDT, sW2B))
            if late:
                e("s_add_u32 s%d, s%d, 0x10000" % (sDT, sDT))
            e("buffer_load_dwordx4 v%d, %s, s%d offen lds" % (vD2, srd(SW2), sDT))
            k.vm.issue(("W2", late))

        def f1():
            e("s_add_u32 m0, s%d, %d" % (sM2, lb + 1024))
            e("s_add_u32 s%d, s%d, 8192" % (sDT, sDT))
            e("buffer_load_dwordx4 v%d, %s, s%d offen lds" % (vD2, srd(SW2), sDT))
            k.vm.issue(("W2", late))
        return [f0, f1]

    def rdW(n):
        items = []
        for l in range(4):
            for hh in range(2):
                def f(l=l, hh=hh):
                    e("ds_read_b64_tr_b16 %s, v%d offset:%d" % (vr(AF + (n & 1) * 16 + 4 * l + 2 * hh, 2), TR2[l], (n % 14) * 4096 + hh * 2048))
                    k.lg.issue(("W2R", n))
                items.append(f)
        return items

    def hload(n):
        late, m = n // 14, n % 14

        def item(u):
            def f():
                if u == 0 and m % 2 == 0:
                    e("s_lshl_b32 s%d, s%d, 12" % (sXT, TV[m // 2]))
                    e("s_add_u32 s%d, s%d, s%d" % (sXT, sXT, sHB))
                e("buffer_load_dwordx4 %s, v%d, %s, s%d offen offset:%d sc1" % (X(u, m), HV[u], srd(SWS), sXT, 2048 * late + 1024 * (m & 1)))
                k.vm.issue(("H", n))
            return f
        return [item(0), item(1)]

    def pubHA():
        k.wait_vm("ha")
        publish("s%d" % sFH)
        e("s_add_u32 s%d, s%d, 0x%x" % (sFH, sFH, FHB_D))

    def landW(late, cw):
        def f():
            k.wait_vm(("W2", late))
            garrive(cw)
        return f
    hb = {T: [] for T in range(16)}
    hb[P("W2T0", 0)].append(lambda: gcheck(C_CSA, 98))
    hb[P("W2T0", 0)].append(lambda: [side.extend(w2_dma(0, j)) for j in range(7)])
    hb[CFB].append(c1_fetch(1))
    if WLE:
        hb[8].append(lambda: garrive(C_HB))
        hb[CFB].append(lambda: gcheck(C_HB, 97))
        hb[CFB].append(lambda: [side.extend(w2_dma(1, j)) for j in range(WLE)])
    hb[P("PHA", 3)].append(pubHA)
    HLA = P("HLA", 6)
    HE = P("HE", 17)
    hb[min(HE - 2, P("PPA", 12))].append(lambda: poll_issue("ph", vFH, "s%d" % sFHC, 31))
    if HE < 16:
        def hearly():
            poll_check("ph", vFH, "s%d" % sFHC, 31)
            for n in range(HLA):
                side.extend(hload(n))
            sch["gap"] = P("GAPH", 2)
        hb[HE].append(hearly)

    def w2touch():
        e("s_lshr_b32 s%d, s2, 6" % sT0)
        e("s_lshl2_add_u32 s%d, s%d, s%d" % (sT0, sT0, sRW))
        e("s_mul_i32 s%d, s%d, 28" % (sT0, sT0))
        e("v_add_u32 v19, s%d, v%d" % (sT0, vLANE))
        e("v_and_b32 v30, 0xffc0, v19")
        e("v_add3_u32 v19, v19, v30, 64")
        e("v_lshlrev_b32 v19, 10, v19")
        e("s_and_b32 s%d, s2, 1" % sT0)
        e("s_mul_i32 s%d, s%d, %d" % (sT0, sT0, 896 * 1024))
        e("s_lshl_b32 s%d, s%d, 7" % (sT1, sDB))
        e("s_add_u32 s%d, s%d, s%d" % (sT0, sT0, sT1))
        e("s_mov_b32 m0, 0x%x" % L_DUM)
        e("s_mov_b64 exec, 0xfffffff")
        e("buffer_load_dword v19, %s, s%d offen lds" % (srd(SW2), sT0))
        k.vm.issue("touch")
        e("s_mov_b64 exec, -1")
    if P("W2L", 99) < 16:
        hb[P("W2L", 99)].append(w2touch)
    hb[P("LE1", 13)].append(landW(0, C_E1))
    sch["gap"] = P("GAPB", 4)
    gpass(1, hb, C_WB2)
    k.stamp(7)
    fs(10, 2)
    if HE == 16:
        poll_check("ph", vFH, "s%d" % sFHC, 31)
        fs(10, 3)
        for n in range(HLA):
            run(hload(n))
    fs(10, 4)
    gpeek(C_E1, 97)
    h_out(1, C_CSB, "hb")
    fs(10, 5)
    if HE == 17:
        poll_check("ph", vFH, "s%d" % sFHC, 31, pre=["    s_waitcnt vmcnt(0)"] + publish_lines("s%d" % sFH))
        for n in range(HLA):
            run(hload(n))
    k.stamp(8)
    gcheck(C_E1, 97)
    run(rdW(0))
    gpeek(C_CSB, 98)
    sch["gap"] = P("GAP3", 2)
    sch["nl"] = P("NLD", 2)
    fs(7, 2)
    fs(10, 6)
    LCH = 14 - P("LLA", 5)
    nxt = HLA
    wl = [it for j in range(WLE, 7) for it in w2_dma(1, j)]
    for n in range(28):
        k.wait_lg(("W2R", n))
        if n == LCH:
            poll_check("phb", vFH, "s%d" % sFHC, 31)
        lim = 14 if n < LCH else 28
        cnt = 0
        while nxt < min(lim, n + 1 + HLA) and nxt - 14 < n and cnt < 2:
            side.extend(hload(nxt))
            nxt += 1
            cnt += 1
        if n == 0:
            gcheck(C_CSB, 98)
        if wl:
            side.extend(wl[:2])
            wl = wl[2:]
        k.wait_vm(("H", n))
        if n == P("PHB", 0):
            k.wait_vm("hb")
            publish("s%d" % sFH)
        if n == LCH - P("PPB", 1):
            e("s_add_u32 s%d, s%d, 0x%x" % (sFHC, sFHC, FHB_D))
            poll_issue("phb", vFH, "s%d" % sFHC, 31)
        if n == 10:
            landW(1, C_L1)()
        if n == 12:
            gpeek(C_L1, 107)
        if n == P("ZG1", 12):
            garrive(C_ST)
        if n == P("ZGO", 15):
            garrive(C_WT)
        if n == 13:
            for l in range(4):
                e("v_subrev_u32 v%d, 0x%x, v%d" % (TR2[l], LB, TR2[l]))
            gcheck(C_L1, 107)
        if n in (20, 21):
            for i in range(4):
                e("v_mov_b32 v%d, v%d" % (128 + 8 * (n - 20) + 2 * i + 1, vTAG))
        if n + 1 < 28:
            sch["lds"].extend(rdW(n + 1))
        for l in range(4):
            a = vr(AF + (n & 1) * 16 + 4 * l, 4)
            if P("M32", 0):
                c = vr(ACC + 16 * (l & 1), 16)
                mf32(c, a, X(l >> 1, n % 14), c if (n or l > 1) else "0")
                continue
            for u in range(2):
                c = vr(ACC + (u * 4 + l) * 4, 4)
                mf(c, a, X(u, n % 14), c if n else "0")
        flush_side()
        if n % 3 == 2:
            fs(7, 3 + n // 3)
        if n < 7:
            fs(10, 7 + n)
        if 5 <= n < 17:
            fs(11, n - 3)
        if n == 13:
            k.stamp(9)
    k.stamp(10)
    e("s_lshl2_add_u32 s%d, s2, s%d" % (sT1, sRW))
    e("s_lshl_b32 s%d, s%d, 12" % (sT1, sT1))
    e("s_add_u32 s%d, s%d, 0x%x" % (sT1, sT1, YX_OFF))
    k.nop(1)
    fs(12, 2)
    garrive(C_GY)
    for i in range(4):
        e("v_cvt_pk_bf16_f32 v%d, v%d, v%d" % (128 + 4 * i, ACC + 16 + 4 * i, ACC + 17 + 4 * i))
        e("v_cvt_pk_bf16_f32 v%d, v%d, v%d" % (128 + 4 * i + 2, ACC + 18 + 4 * i, ACC + 19 + 4 * i))
        e("buffer_store_dwordx4 %s, v%d, %s, s%d offen offset:%d sc1" % (vr(128 + 4 * i, 4), vL16, srd(SWS), sT1 + (i >> 2), 1024 * (i & 3)))
        k.vm.issue("yst")
    xe_load()
    e("s_xor_b32 s%d, s%d, 0x4000" % (sT1, sT1))
    e("s_lshl_b32 s%d, s%d, 12" % (sT4, sRW))
    e("v_add_u32 v10, s%d, v%d" % (sT4, vYW))
    for dt in range(1, 4):
        e("v_xor_b32 v%d, %d, v10" % (10 + dt, 64 * dt))
    fs(12, 3)
    gwait(C_GY)
    fs(12, 4)
    if P("YW", 1):
        k.wait_vm("yst")
    fs(12, 5)
    YR = 160
    e("s_mov_b32 s%d, 0" % sCNT)
    k.lab("L_yx")
    for i in range(4):
        e("buffer_load_dwordx4 %s, v%d, %s, s%d offen offset:%d sc1" % (vr(YR + 4 * i, 4), vL16, srd(SWS), sT1 + (i >> 2), 1024 * (i & 3)))
    e("s_waitcnt vmcnt(0)")
    k.vm.clear()
    e("v_min3_u32 v30, v%d, v%d, v%d" % (YR + 1, YR + 3, vTAG))
    e("v_max3_u32 v31, v%d, v%d, v%d" % (YR + 1, YR + 3, vTAG))
    for i in range(1, 4):
        e("v_min3_u32 v30, v%d, v%d, v30" % (YR + 4 * i + 1, YR + 4 * i + 3))
        e("v_max3_u32 v31, v%d, v%d, v31" % (YR + 4 * i + 1, YR + 4 * i + 3))
    e("v_cmp_ne_u32 vcc, v30, v31")
    e("s_cmp_lg_u64 vcc, 0")
    e("s_cbranch_scc1 L_yxs")
    k.lab("L_yxb")
    fs(12, 6)
    tail.extend(["L_yxs:", "    s_add_u32 s%d, s%d, 1" % (sCNT, sCNT), "    s_cmp_lt_u32 s%d, 0x40000" % sCNT,
                 "    s_cbranch_scc0 L_yxb", "    s_sleep 6", "    s_branch L_yx"])
    k.stamp(11)
    e("s_bitcmp1_b32 s2, 0")
    e("s_cselect_b64 vcc, -1, 0")
    e("v_cndmask_b32 v%d, v%d, v%d, vcc" % (RN, RN + 1, RN + 3))
    for i in range(8):
        e("v_and_b32 v%d, 0xffff0000, v%d" % (YR + 2 * i + 1, YR + 2 * i))
        e("v_lshlrev_b32 v%d, 16, v%d" % (YR + 2 * i, YR + 2 * i))
    for i in range(8):
        e("v_pk_add_f32 %s, %s, %s" % (vr(ACC + 2 * i, 2), vr(ACC + 2 * i, 2), vr(YR + 2 * i, 2)))
    for i in range(8):
        e("v_pk_mul_f32 %s, %s, %s op_sel_hi:[1,0]" % (vr(ACC + 2 * i, 2), vr(ACC + 2 * i, 2), vr(RN, 2)))
    for dt in range(4):
        e("ds_write_b128 v%d, %s" % (10 + dt, vr(ACC + 4 * dt, 4)))
    k.lab("L_final")
    main_lines = k.lines

    k.lines = []
    k.vm.q, k.lg.q = list(q_vm), []
    k.lab("L_fft")
    if P("FP0", 0):
        e("s_setprio 1")
    sCC, sPL, sZR, sZI, sSC, sFXC, sGB, sFX = 48, 50, 51, 52, 53, 54, 55, 56
    C64, S64, N64, C32, S32, N32, T1C, T1S, T2C, T2S = 128, 136, 144, 152, 160, 168, 176, 184, 192, 200
    XB, PA, FB, SUM, GR, ONES = 32, 64, 96, 208, 216, 224

    def fgen(tl):
        t = 32
        e("s_lshl_b32 s%d, s%d, 5" % (sT0, sCBK))
        e("v_add_u32 v%d, s%d, v%d" % (t, sT0, vC))
        if tl:
            e("v_add_u32 v%d, 16, v%d" % (t, t))
        e("v_lshrrev_b32 v%d, 1, v%d" % (t + 1, t))
        e("v_and_b32 v%d, 1, v%d" % (t + 2, t))
        e("v_cvt_f32_u32 v%d, v%d" % (t + 2, t + 2))
        e("v_mul_f32 v%d, %s, v%d" % (t + 2, hexf(0.25), t + 2))
        if tl == 0:
            e("v_cmp_eq_u32 vcc, 1, v%d" % t)
            e("v_mov_b32 v%d, 256" % (t + 3))
        e("s_lshl_b32 s%d, s%d, 6" % (sT0, sR))
        if tl == 0:
            e("v_cndmask_b32 v%d, v%d, v%d, vcc" % (t + 1, t + 1, t + 3))
            e("v_cndmask_b32 v%d, v%d, 0, vcc" % (t + 2, t + 2))
        e("v_cvt_f32_u32 v%d, v%d" % (t + 1, t + 1))
        e("v_mul_f32 v%d, %s, v%d" % (t + 1, hexf(1.0 / 512), t + 1))
        e("v_lshl_add_u32 v%d, v%d, 3, s%d" % (t + 3, vQ, sT0))
        e("v_cvt_f32_u32 v%d, v%d" % (t + 3, t + 3))
        e("v_fma_f32 v%d, v%d, v%d, v%d" % (t + 2, t + 3, t + 1, t + 2))
        e("v_fract_f32 v%d, v%d" % (t + 8, t + 2))
        e("v_mul_f32 v%d, %s, v%d" % (t + 3, hexf(32.0), t + 1))
        e("v_fract_f32 v%d, v%d" % (t + 3, t + 3))
        for jj in range(1, 8):
            e("v_add_f32 v%d, v%d, v%d" % (t + 8 + jj, t + 7 + jj, t + 1))
        for Tf in range(4):
            for jj in range(8):
                e("v_cos_f32 v%d, v%d" % (t + 16 + jj, t + 8 + jj))
            if Tf < 3:
                for jj in range(8):
                    e("v_add_f32 v%d, v%d, v%d" % (t + 8 + jj, t + 8 + jj, t + 3))
            else:
                k.nop(1)
            for d in range(4):
                e("v_cvt_pk_bf16_f32 v%d, v%d, v%d" % (FB + 16 * tl + 4 * Tf + d, t + 16 + 2 * d, t + 17 + 2 * d))
    def prewarm():
        e("s_lshl2_add_u32 s%d, s2, s%d" % (sT0, sRW))
        e("s_lshl_b32 s%d, s%d, 8" % (sT0, sT0))
        e("v_lshlrev_b32 v19, 7, v%d" % vLANE)
        e("s_mov_b64 exec, 3")
        e("buffer_store_dword v19, v19, %s, s%d offen offset:48 sc1" % (srd(SWS), sT0))
        k.vm.issue("pw")
        e("s_mov_b64 exec, -1")
    PW = P("PW", 0)
    fgen(0)
    e("s_waitcnt lgkmcnt(0)")
    e("s_load_dword s%d, s[%d:%d], 0x%x" % (sTAG, SWS, SWS + 1, EPOCH_OFF))
    if PW == 1:
        prewarm()
    fgen(1)
    vSM, vAL, vBE = 16, 17, 18
    e("v_bfe_u32 v19, v%d, 1, 2" % vC)
    e("v_cvt_f32_u32 v19, v19")
    e("v_mul_f32 v19, %s, v19" % hexf(0.25))
    e("v_cos_f32 v%d, v19" % vAL)
    e("v_sin_f32 v%d, v19" % vBE)
    e("v_bfe_u32 v%d, v%d, 1, 1" % (vSM, vC))
    e("v_mul_u32_u24 v%d, 0x8000, v%d" % (vSM, vSM))
    e("v_lshl_or_b32 v%d, v%d, 16, v%d" % (vSM, vSM, vSM))
    e("v_rndne_f32 v%d, v%d" % (vAL, vAL))
    e("v_rndne_f32 v%d, v%d" % (vBE, vBE))
    e("v_lshlrev_b32 v19, 31, v%d" % vC)
    e("v_xor_b32 v%d, v19, v%d" % (vBE, vBE))
    for d in range(4):
        e("v_mov_b32 v%d, 0x3f803f80" % (ONES + d))
    xread_addr(26)
    k.stamp(2)

    def cconst():
        t = 32
        slot = [16 * (jj >> 2) + (jj & 3) for jj in range(8)]
        yield "s_lshl_b32 s%d, s%d, 4" % (sT3, sRW)
        yield "v_add_u32 v%d, s%d, v%d" % (t + 24, sT3, vC)
        yield "v_cvt_f32_u32 v%d, v%d" % (t + 27, vQ)
        yield "v_cvt_f32_u32 v%d, v%d" % (t + 25, t + 24)
        yield "v_mul_f32 v%d, 4.0, v%d" % (t + 27, t + 27)
        yield "v_cvt_f32_u32 v%d, v%d" % (t + 28, vC)
        yield "v_and_b32 v%d, 1, v%d" % (t + 30, vC)
        for jj in range(8):
            yield "v_add_f32 v%d, %s, v%d" % (t + 32 + jj, hexf(float(slot[jj])), t + 27)
        yield "v_mul_u32_u24 v%d, 0x8000, v%d" % (t + 30, t + 30)
        yield "v_mul_f32 v%d, %s, v%d" % (t + 26, hexf(1.0 / 64), t + 25)
        yield "v_lshl_or_b32 v%d, v%d, 16, v%d" % (t + 30, t + 30, t + 30)
        for (scale, Cb, Sb, Nb, flip) in ((t + 26, C64, S64, N64, "v%d" % (t + 30)), (t + 29, C32, S32, N32, "0x80000000")):
            if Cb == C32:
                yield "v_mul_f32 v%d, %s, v%d" % (t + 29, hexf(1.0 / 32), t + 28)
                yield "v_mul_f32 v%d, %s, v%d" % (t + 26, hexf(1.0 / 2048), t + 25)
            for jj in range(8):
                yield "v_mul_f32 v%d, v%d, v%d" % (t + jj, t + 32 + jj, scale)
            for jj in range(8):
                yield "v_cos_f32 v%d, v%d" % (t + 8 + jj, t + jj)
            for jj in range(8):
                yield "v_sin_f32 v%d, v%d" % (t + 16 + jj, t + jj)
            for d in range(4):
                yield "v_cvt_pk_bf16_f32 v%d, v%d, v%d" % (Cb + d, t + 8 + 2 * d, t + 9 + 2 * d)
            for d in range(4):
                yield "v_cvt_pk_bf16_f32 v%d, v%d, v%d" % (Sb + d, t + 16 + 2 * d, t + 17 + 2 * d)
            for d in range(4):
                yield "v_xor_b32 v%d, %s, v%d" % (Cb + 4 + d, flip, Cb + d)
            for d in range(4):
                yield "v_xor_b32 v%d, %s, v%d" % (Sb + 4 + d, flip, Sb + d)
            for d in range(8):
                yield "v_xor_b32 v%d, 0x80008000, v%d" % (Nb + d, Sb + d)
        for i in range(8):
            yield "v_mul_f32 v%d, v%d, v%d" % (t + i, t + 32 + i, t + 26)
        yield "v_cvt_f32_u32 v%d, s%d" % (t + 29, sT3)
        for i in range(8):
            yield "v_cos_f32 v%d, v%d" % (T1C + i, t + i)
            yield "v_sin_f32 v%d, v%d" % (T1S + i, t + i)
        yield "v_mul_f32 v%d, %s, v%d" % (t + 26, hexf(1.0 / 2048), t + 28)
        for r in range(4):
            yield "v_add_f32 v%d, v%d, v%d" % (t + 8 + r, t + 29, t + 32 + r)
        yield "v_add_f32 v%d, %s, v%d" % (t + 25, hexf(16.0 / 2048), t + 26)
        for r in range(4):
            yield "v_mul_f32 v%d, v%d, v%d" % (t + r, t + 8 + r, t + 26)
        for r in range(4):
            yield "v_mul_f32 v%d, v%d, v%d" % (t + 4 + r, t + 8 + r, t + 25)
        for i in range(8):
            yield "v_cos_f32 v%d, v%d" % (T2C + i, t + i)
            yield "v_sin_f32 v%d, v%d" % (T2S + i, t + i)
    CCE = P("CCE", 1)
    if CCE:
        for s_ in cconst():
            e(s_)
    e("v_lshrrev_b32 v19, 2, v%d" % vC)
    e("v_lshl_add_u32 v20, v%d, 3, v19" % vQ)
    e("v_lshlrev_b32 v20, 7, v20")
    e("v_and_b32 v13, 1, v%d" % vC)
    e("v_lshl_add_u32 v20, v13, 3, v20")
    e("v_bfe_u32 v19, v%d, 3, 1" % vC)
    e("v_and_b32 v13, 1, v%d" % vQ)
    e("v_lshl_or_b32 v19, v13, 1, v19")
    e("v_xor_b32 v19, s%d, v19" % sRW)
    e("v_lshlrev_b32 v19, 1, v19")
    e("v_bfe_u32 v13, v%d, 1, 1" % vC)
    e("v_or_b32 v19, v19, v13")
    e("v_lshl_add_u32 v20, v19, 4, v20")
    e("v_add_u32 v13, 0x%x, v20" % LB)
    e("s_lshl_b32 s%d, s%d, 6" % (sT1, sRW))
    e("s_add_u32 s%d, s%d, 0x%x" % (sT1, sT1, L_CS))
    e("v_lshl_add_u32 v231, v%d, 4, s%d" % (vQ, sT1))

    def colsum(reg):
        if reg == 0:
            pass
        else:
            gwait(C_WB1)
            gwait(C_WB2)
        base = 20 if reg else 13
        e("s_setprio %d" % P("SPRIO", 0))

        def rd(T):
            for hh in range(2):
                e("ds_read_b64_tr_b16 %s, v%d offset:%d" % (vr(48 + 4 * (T % 4) + 2 * hh, 2), base, T * 4096 + hh * 512))
                k.lg.issue(("CS", reg, T))
        for T in range(3):
            rd(T)
        for T in range(16):
            if T == 5 and reg == 0:
                gwait(C_WA2)
            if T + 3 < 16:
                rd(T + 3)
            k.wait_lg(("CS", reg, T))
            mfma(vr(240, 4), vr(48 + 4 * (T % 4), 4), vr(ONES, 4), vr(240, 4) if T else "0")
        k.nop(6)
        e("s_mov_b32 exec_lo, 0x00010001")
        e("s_mov_b32 exec_hi, 0x00010001")
        e("ds_write_b128 v231, v[240:243] offset:%d" % (256 * reg))
        e("s_mov_b64 exec, -1")
        garrive(C_FB if reg else C_FA)
        e("s_setprio 0")
    CSF = P("CSF", 0)
    vX1 = 7
    e("v_lshrrev_b32 v7, 1, v%d" % vC)
    e("v_lshlrev_b32 v7, 13, v7")
    e("v_and_b32 v19, 1, v%d" % vC)
    e("v_lshl_add_u32 v7, v19, 6, v7")
    e("v_lshl_add_u32 v7, v%d, 4, v7" % vQ)
    e("s_lshl_b32 s%d, s%d, 9" % (sT0, sRW))
    e("s_add_u32 s%d, s%d, 0x%x" % (sT0, sT0, L_ST))
    e("v_lshl_add_u32 v8, v%d, 2, s%d" % (vC, sT0))
    e("v_lshl_add_u32 v9, v%d, 4, s%d" % (vQ, sT0))
    e("s_lshl4_add_u32 s%d, s%d, s%d" % (sFX, sCBK, sPB))
    e("s_lshl_b32 s%d, s%d, 7" % (sFX, sFX))
    e("s_lshl2_add_u32 s%d, s%d, s%d" % (sFX, sRW, sFX))
    tag_setup()
    k.stamp(3)
    e("s_setprio %d" % P("PRIO", 1))

    def XBf(kk, u, ks):
        return vr(XB + (((kk & 1) * 2 + ks) * 2 + u) * 4, 4)
    for s_ in range(4):
        e("s_barrier")
        fs(6, 2 + s_)
        for kk in (2 * s_, 2 * s_ + 1):
            for ks in range(2):
                for u in range(2):
                    xread(XBf(kk, u, ks), 26, kk, u, ks, ("XR", kk, ks))
        if PW == 2 + s_:
            prewarm()
        if s_ == 2:
            for i in range(32):
                e("v_xor_b32 v%d, v%d, v%d" % (FB + i, vSM, FB + i))
        for kk in (2 * s_, 2 * s_ + 1):
            for ks in range(2):
                T = 2 * kk + ks
                k.wait_lg(("XR", kk, ks))
                for u in range(2):
                    x = XBf(kk, u, ks)
                    mfma(vr(SUM + 4 * u, 4), vr(ONES, 4), x, vr(SUM + 4 * u, 4) if T else "0")
                    mfma(vr(GR + 4 * u, 4), x, x, vr(GR + 4 * u, 4) if T else "0")
                for u in range(2):
                    x = XBf(kk, u, ks)
                    for tl in range(2):
                        p = vr(PA + ((tl * 2 + ((T >> 2) & 1)) * 2 + u) * 4, 4)
                        mfma(p, x, vr(FB + 16 * tl + 4 * (T & 3), 4), "0" if T in (0, 4) else p)
    e("s_barrier")
    k.stamp(4)
    fs(6, 6)
    e("s_setprio %d" % P("XPRIO", 0))
    e("v_and_b32 v19, 3, v%d" % vC)
    k.nop(2)
    for r in range(1, 4):
        e("v_cmp_eq_u32 vcc, %d, v19" % r)
        k.nop(2)
        for u in range(2):
            e("v_cndmask_b32 v%d, v%d, v%d, vcc" % (GR + 4 * u, GR + 4 * u, GR + 4 * u + r))

    def stat_ops(u):
        m, q2, rs_, nm, d0 = SUM + 4 * u, GR + 4 * u, SUM + 4 * u + 1, SUM + 4 * u + 2, SUM + 4 * u + 3
        rnd = lambda v: ["v_cvt_pk_bf16_f32 v%d, v%d, v%d" % (v, v, v), "v_lshlrev_b32 v%d, 16, v%d" % (v, v)]
        return (["v_mul_f32 v%d, %s, v%d" % (m, hexf(1.0 / 512), m),
                 "v_mul_f32 v%d, %s, v%d" % (q2, hexf(1.0 / 512), q2),
                 "v_fma_f32 v%d, -v%d, v%d, v%d" % (q2, m, m, q2),
                 "v_max_f32 v%d, 0, v%d" % (q2, q2)] + rnd(q2) +
                ["v_add_f32 v%d, %s, v%d" % (q2, hexf(1e-5), q2)] + rnd(q2) +
                ["v_sqrt_f32 v%d, v%d" % (q2, q2), "v_sub_f32 v%d, 0, v%d" % (nm, m)] + rnd(q2) +
                ["v_rcp_f32 v%d, v%d" % (rs_, q2)] + rnd(nm) +
                ["v_add_f32 v%d, v%d, v%d" % (d0, m, nm), "v_mul_f32 v%d, %s, v%d" % (d0, hexf(512.0), d0)])
    for a_, b_ in zip(stat_ops(0), stat_ops(1)):
        e(a_)
        e(b_)
    e("s_mov_b32 exec_lo, 0x00f0000f")
    e("s_mov_b32 exec_hi, 0xf0000f00")
    for u in range(2):
        e("ds_write2_b32 v8, v%d, v%d offset0:%d offset1:%d" % (SUM + 4 * u + 1, SUM + 4 * u + 2, 16 * u, 32 + 16 * u))
        e("ds_write_b32 v8, v%d offset:%d" % (SUM + 4 * u + 3, 256 + 64 * u))
    e("s_mov_b64 exec, -1")
    if CSF:
        colsum(0)
    RT, D0T = XB, XB + 8
    for u in range(2):
        e("ds_read_b128 %s, v9 offset:%d" % (vr(RT + 4 * u, 4), 64 * u))
        e("ds_read_b128 %s, v9 offset:%d" % (vr(D0T + 4 * u, 4), 256 + 64 * u))
    for tl in range(2):
        for i in range(8):
            e("v_fmac_f32 v%d, v%d, v%d" % (PA + 16 * tl + i, vAL, PA + 16 * tl + 8 + i))
        for i in range(8):
            e("v_fmac_f32_dpp v%d, v%d, v%d quad_perm:[1,0,3,2] row_mask:0xf bank_mask:0xf" % (PA + 16 * tl + i, PA + 16 * tl + 8 + i, vBE))
    e("v_or_b32 v19, s%d, v%d" % (sCBK, vC))
    e("v_cmp_eq_u32 vcc, 0, v19")
    e("s_lshl_b32 s%d, s%d, 17" % (sT0, sCBK))
    e("s_lshl2_add_u32 s%d, s%d, s%d" % (sT1, sA, sRW))
    e("s_lshr_b32 s%d, s%d, 1" % (sT2, sWP))
    e("s_lshl1_add_u32 s%d, s%d, s%d" % (sT1, sT1, sT2))
    e("s_lshl_b32 s%d, s%d, 7" % (sT1, sT1))
    e("s_add_u32 s%d, s%d, s%d" % (sT0, sT0, sT1))
    e("s_add_u32 s%d, s%d, 0x%x" % (sT1, sT0, X1C_OFF))
    e("s_add_u32 s%d, s%d, 0x%x" % (sT2, sT0, X1C_OFF + 65536))
    e("s_waitcnt lgkmcnt(0)")
    k.lg.clear()
    for i in range(8):
        e("v_cndmask_b32 v%d, v%d, v%d, vcc" % (PA + i, PA + i, D0T + i))
    for tl in range(2):
        for i in range(8):
            e("v_mul_f32 v%d, v%d, v%d" % (PA + 16 * tl + i, PA + 16 * tl + i, RT + i))
        o = 232 + 4 * tl
        for d in range(4):
            e("v_cvt_pk_bf16_f32 v%d, v%d, v%d" % (o + d, PA + 16 * tl + 2 * d, PA + 16 * tl + 2 * d + 1))
        e("buffer_store_dwordx4 %s, v%d, %s, s%d offen sc1" % (vr(o, 4), vX1, srd(SWS), sT1 + tl))
        k.vm.issue("x1st")
    k.stamp(5)
    if not CSF:
        colsum(0)
    e("s_setprio 0")
    GB = 64

    def ggen():
        t0 = 32
        an, stp = 252, 31
        yield "s_lshl_b32 s%d, s%d, 6" % (sT3, sDB)
        yield "s_lshl4_add_u32 s%d, s%d, s%d" % (sT3, sRW, sT3)
        yield "v_add_u32 v%d, s%d, v%d" % (t0, sT3, vC)
        yield "v_lshlrev_b32 v%d, 1, v%d" % (t0 + 2, vQ)
        yield "v_cvt_f32_u32 v%d, v%d" % (t0 + 1, t0)
        yield "v_cvt_f32_u32 v%d, v%d" % (t0 + 2, t0 + 2)
        yield "v_mul_f32 v%d, %s, v%d" % (t0 + 1, hexf(1.0 / 512), t0 + 1)
        yield "v_mul_f32 v%d, %s, v%d" % (stp, hexf(16.0), t0 + 1)
        for dw in range(4):
            yield "v_add_f32 v%d, %s, v%d" % (an + dw, hexf(float(8 * (dw >> 1) + (dw & 1))), t0 + 2)
        yield "v_fract_f32 v%d, v%d" % (stp, stp)
        for dw in range(4):
            yield "v_mul_f32 v%d, v%d, v%d" % (an + dw, an + dw, t0 + 1)
        yield "v_lshlrev_b32 v%d, 31, v%d" % (t0 + 16, vC)
        yield "v_min_u32 v%d, 1, v%d" % (t0 + 17, vQ)
        yield "v_or_b32 v%d, 0x3f800000, v%d" % (t0 + 16, t0 + 16)
        yield "v_sub_u32 v%d, v%d, 1" % (t0 + 17, t0 + 17)
        yield "v_and_b32 v%d, 0xffff0000, v%d" % (t0 + 17, t0 + 17)
        yield "v_and_b32 v17, 1, v%d" % vC
        yield "v_mul_u32_u24 v17, 0x020202, v17"
        yield "v_lshl_or_b32 v17, v17, 8, v17"
        yield "v_xor_b32 v17, 0x03020100, v17"
        yield "v_bfe_u32 v18, v%d, 1, 1" % vC
        yield "v_add_u32 v%d, 1, v%d" % (t0 + 18, vC)
        yield "v_bfe_u32 v%d, v%d, 1, 1" % (t0 + 18, t0 + 18)
        yield "v_lshlrev_b32 v18, 15, v18"
        yield "v_lshl_or_b32 v18, v%d, 31, v18" % (t0 + 18)
        for T in range(8):
            for dw in range(4):
                yield "v_cos_f32 v%d, v%d" % (t0 + 8 + 2 * dw, an + dw)
                yield "v_sin_f32_e64 v%d, -v%d" % (t0 + 9 + 2 * dw, an + dw)
            for dw in range(4):
                yield "v_add_f32 v%d, v%d, v%d" % (an + dw, an + dw, stp)
            for dw in range(4):
                yield "v_cvt_pk_bf16_f32 v%d, v%d, v%d" % (GB + 4 * T + dw, t0 + 8 + 2 * dw, t0 + 9 + 2 * dw)
            for dw in range(4):
                yield "v_perm_b32 v%d, v%d, v%d, v17" % (GB + 32 + 4 * T + dw, GB + 4 * T + dw, GB + 4 * T + dw)
            for dw in range(4):
                yield "v_xor_b32 v%d, v18, v%d" % (GB + 32 + 4 * T + dw, GB + 32 + 4 * T + dw)
            if T == 0:
                yield "v_bfi_b32 v%d, v%d, v%d, v%d" % (GB, t0 + 17, t0 + 16, GB)
    late_setup(1)
    e("v_add_u32 v6, 0x%x, v%d" % (LB, vZB))
    vFL, vFZ, vDZ = 14, 15, 9
    e("s_xor_b32 s%d, s2, 0x38" % sCC)
    flag_voff(vFZ, 63)
    e("v_and_b32 v%d, 0x1ff, v%d" % (vFL, vFZ))
    e("v_min_u32 v19, 1, v%d" % vQ)
    e("v_mul_u32_u24 v19, 0x%x, v19" % (FW_OFF - FX_OFF))
    e("v_add_u32 v%d, v19, v%d" % (vFL, vFL))
    e("s_cmp_eq_u32 s%d, 0" % sCC)
    e("s_cselect_b32 s%d, 0x%x, 0" % (sT0, 16 * 2048))
    e("v_lshrrev_b32 v19, 1, v%d" % vQ)
    e("v_mul_u32_u24 v19, s%d, v19" % sT0)
    e("v_add_u32 v%d, v19, v%d" % (vFL, vFL))
    e("s_lshr_b32 s%d, s%d, 4" % (sFXC, sCC))
    e("s_lshl2_add_u32 s%d, s%d, s%d" % (sFXC, sFXC, sRW))
    e("s_lshl_b32 s%d, s%d, 9" % (sFXC, sFXC))
    e("s_mov_b32 s%d, 0" % sGB)
    XI, TM, TW, DR, DI, PR, PI, CWL = 32, 32, 48, 208, 216, 224, 228, 232

    def xin(pl, v, tt):
        return XI + 4 * ((pl * 2 + v) * 2 + tt)
    e("v_add_u32 v26, 0x%x, v%d" % (L_C1, vYW))
    e("v_xor_b32 v27, 64, v26")
    e("v_xor_b32 v28, 128, v26")
    e("v_xor_b32 v29, 192, v26")
    e("s_lshr_b32 s%d, s%d, 1" % (sT0, sRW))
    e("s_lshl_b32 s%d, s%d, 7" % (sT0, sT0))
    e("s_and_b32 s%d, s%d, 1" % (sT1, sRW))
    e("s_lshl3_add_u32 s%d, s%d, s%d" % (sT0, sT1, sT0))
    e("v_xor_b32 v10, s%d, v26" % sT0)
    e("v_xor_b32 v11, 64, v10")
    e("v_lshlrev_b32 v12, 5, v%d" % vC)
    e("v_lshl_add_u32 v12, v%d, 3, v12" % vQ)
    e("s_lshl_b32 s%d, s%d, 10" % (sT0, sRW))
    e("v_add_u32 v12, s%d, v12" % sT0)
    e("s_lshl_b32 s%d, s%d, 13" % (sZR, sCC))
    e("s_add_u32 s%d, s%d, 0x%x" % (sZR, sZR, ZT_OFF))
    e("s_add_u32 s%d, s%d, 4096" % (sZI, sZR))
    e("s_mov_b32 s%d, %s" % (sSC, hexf(2.0 ** -19)))
    e("s_cmp_eq_u32 s%d, 0" % sCC)
    e("s_cselect_b32 s%d, 0x%x, s%d" % (sZI, OOB, sZI))
    e("s_cselect_b32 s%d, %s, s%d" % (sSC, hexf(2.0 ** -20), sSC))
    e("s_mov_b32 s%d, 0" % sPL)
    e("s_lshl_b32 s%d, s%d, 3" % (sT0, sT1))
    e("v_add_u32 v19, s%d, v%d" % (sT0, vQ))
    e("v_xor_b32 v30, v19, v%d" % vC)
    e("v_lshlrev_b32 v30, 4, v30")
    e("v_lshl_add_u32 v30, v%d, 8, v30" % vQ)
    e("v_xor_b32 v24, 64, v30")
    e("v_lshrrev_b32 v8, 3, v%d" % vLANE)
    e("v_and_b32 v9, 7, v%d" % vLANE)
    e("v_lshlrev_b32 v19, 1, v%d" % vQ)
    e("v_xor_b32 v19, v19, v9")
    e("v_lshlrev_b32 v19, 4, v19")
    e("v_lshl_add_u32 v%d, v8, 12, v19" % vDZ)
    k.wait_vm("x1st")
    publish("s%d" % sFX)
    if PW == 6:
        prewarm()
    xe_load()
    k.stamp(6)
    pre = ([] if CCE else list(cconst())) + ["v_mul_f32 v%d, s%d, v%d" % (T2C + i, sSC, T2C + i) for i in range(16)]
    gl = list(ggen())
    GE = P("GE", 152)
    pre += gl[:GE]
    gl = gl[GE:]
    n2 = max(0, len(pre) - P("PFXL", 0))
    cs1 = min(n2, P("CS1", 72))
    for s_ in pre[:cs1]:
        e(s_)
    colsum(1)
    if P("NOFFT", 0):
        e("s_branch L_final")
    for s_ in pre[cs1:n2]:
        e(s_)
    poll_issue("pfx", vFL, "s%d" % sFXC, 13)
    for s_ in pre[n2:]:
        e(s_)
    k.stamp(7)
    e("s_setprio %d" % P("CPRIO", 1))
    poll_check("pfx", vFL, "s%d" % sFXC, 13)
    k.stamp(8)

    def gbar_lines():
        return ["    s_add_u32 s%d, s%d, 4" % (sGB, sGB)] + garrive_lines(C_F) + gwait_lines(C_F, "s%d" % sGB)

    def gbar():
        k.lines.extend(gbar_lines())
        k.lg.clear()
    e("s_lshl_b32 s%d, s%d, 13" % (sT0, sCC))
    e("s_lshl_b32 s%d, s%d, 11" % (sT1, sRW))
    e("s_add_u32 s%d, s%d, s%d" % (sT0, sT0, sT1))
    e("s_add_u32 s%d, s%d, 0x%x" % (sT2, sT0, X1C_OFF))
    e("s_add_u32 m0, s%d, 0x%x" % (sT1, L_C1))
    k.nop(1)
    e("buffer_load_dwordx4 v30, %s, s%d offen sc1 lds" % (srd(SWS), sT2))
    k.vm.issue("cin")
    e("buffer_load_dwordx4 v24, %s, s%d offen offset:1024 sc1 lds" % (srd(SWS), sT2))
    k.vm.issue("cin")
    e("s_add_u32 s%d, s%d, 0x%x" % (sT2, sT0, WT_OFF))
    for v in range(2):
        e("buffer_load_dwordx4 %s, v%d, %s, s%d offen offset:%d sc1" % (vr(CWL + 4 * v, 4), vL16, srd(SWS), sT2, v * 1024))
        k.vm.issue("cw")
    e("s_add_u32 s%d, s%d, 0x%x" % (sT2, sT2, 256 * 8192))
    e("s_cmp_eq_u32 s%d, 0" % sCC)
    e("s_cselect_b32 s%d, s%d, 0x%x" % (sT2, sT2, OOB))
    for v in range(2):
        e("buffer_load_dwordx4 %s, v%d, %s, s%d offen offset:%d sc1" % (vr(CWL + 8 + 4 * v, 4), vL16, srd(SWS), sT2, v * 1024))
        k.vm.issue("cw")
    k.wait_vm("cin")
    gbar()
    k.stamp(9)
    k.lab("L_ccol")
    for pl in range(2):
        for v in range(2):
            for tt in range(2):
                e("ds_read_b128 %s, v%d offset:%d" % (vr(xin(pl, v, tt), 4), 26 + 2 * tt + pl, v * 4096))
    e("s_waitcnt lgkmcnt(0)")
    e("s_cmp_eq_u32 s%d, 0" % sCC)
    e("s_cbranch_scc1 L_creal")
    k.lab("L_cplx")
    tail.append("L_creal:")
    tail.append("    s_cmp_eq_u32 s%d, 0" % sPL)
    tail.append("    s_cbranch_scc1 L_c0")
    for i in range(16):
        tail.append("    v_mov_b32 v%d, v%d" % (XI + i, XI + 16 + i))
    tail.append("L_c0:")
    for i in range(16):
        tail.append("    v_mov_b32 v%d, 0" % (XI + 16 + i))
    tail.append("    s_nop 1")
    tail.append("    s_branch L_cplx")
    for v in range(2):
        dr, di = vr(DR + 4 * v, 4), vr(DI + 4 * v, 4)
        for tt in range(2):
            mfma(dr, vr(xin(0, v, tt), 4), vr(C64 + 4 * tt, 4), dr if tt else "0")
            mfma(di, vr(xin(1, v, tt), 4), vr(C64 + 4 * tt, 4), di if tt else "0")
            mfma(dr, vr(xin(1, v, tt), 4), vr(S64 + 4 * tt, 4))
            mfma(di, vr(xin(0, v, tt), 4), vr(N64 + 4 * tt, 4))

    def cmul(cr, ci, conj):
        for h in range(2):
            for i in (4 * h, 4 * h + 2):
                e("v_pk_mul_f32 %s, %s, %s" % (vr(TM + i, 2), vr(DR + i, 2), vr(cr + i, 2)))
                e("v_pk_mul_f32 %s, %s, %s" % (vr(TM + 8 + i, 2), vr(DI + i, 2), vr(cr + i, 2)))
            neg = " neg_lo:[1,0,0] neg_hi:[1,0,0]"
            for i in (4 * h, 4 * h + 2):
                e("v_pk_fma_f32 %s, %s, %s, %s%s" % (vr(TM + i, 2), vr(DI + i, 2), vr(ci + i, 2), vr(TM + i, 2), "" if conj else neg))
                e("v_pk_fma_f32 %s, %s, %s, %s%s" % (vr(TM + 8 + i, 2), vr(DR + i, 2), vr(ci + i, 2), vr(TM + 8 + i, 2), neg if conj else ""))
        for d in range(4):
            e("v_cvt_pk_bf16_f32 v%d, v%d, v%d" % (PR + d, TM + 2 * d, TM + 2 * d + 1))
            e("v_cvt_pk_bf16_f32 v%d, v%d, v%d" % (PI + d, TM + 8 + 2 * d, TM + 9 + 2 * d))
        k.nop(2)
    cmul(T1C, T1S, True)
    pr, pi = vr(PR, 4), vr(PI, 4)
    for v in range(2):
        dr, di = vr(DR + 4 * v, 4), vr(DI + 4 * v, 4)
        mfma(dr, vr(C32 + 4 * v, 4), pr, "0")
        mfma(di, vr(C32 + 4 * v, 4), pi, "0")
        mfma(dr, vr(S32 + 4 * v, 4), pi)
        mfma(di, vr(N32 + 4 * v, 4), pr)
    k.wait_vm("cw")
    for i in range(8):
        e("v_lshlrev_b32 v%d, 16, v%d" % (TW + i, CWL + i))
        e("v_and_b32 v%d, 0xffff0000, v%d" % (TW + 8 + i, CWL + i))
    cmul(TW, TW + 8, False)
    for v in range(2):
        dr, di = vr(DR + 4 * v, 4), vr(DI + 4 * v, 4)
        mfma(dr, pr, vr(C32 + 4 * v, 4), "0")
        mfma(di, pi, vr(C32 + 4 * v, 4), "0")
        mfma(dr, pi, vr(N32 + 4 * v, 4))
        mfma(di, pr, vr(S32 + 4 * v, 4))
    k.nop(4)
    cmul(T2C, T2S, False)
    for v in range(2):
        e("ds_write_b64 v10, %s offset:%d" % (vr(PR + 2 * v, 2), 8192 + v * 4096))
        e("ds_write_b64 v11, %s offset:%d" % (vr(PI + 2 * v, 2), 8192 + v * 4096))
    e("s_waitcnt lgkmcnt(0)")
    gbar()
    for v in range(2):
        for tt in range(2):
            for pl in range(2):
                e("ds_read_b128 %s, v%d offset:%d" % (vr(xin(pl, v, tt), 4), 26 + 2 * tt + pl, 8192 + v * 4096))
                k.lg.issue(("cy", v, tt))
    for v in range(2):
        dr, di = vr(DR + 4 * v, 4), vr(DI + 4 * v, 4)
        for tt in range(2):
            k.wait_lg(("cy", v, tt))
            mfma(dr, vr(C64 + 4 * tt, 4), vr(xin(0, v, tt), 4), dr if tt else "0")
            mfma(di, vr(C64 + 4 * tt, 4), vr(xin(1, v, tt), 4), di if tt else "0")
            mfma(dr, vr(N64 + 4 * tt, 4), vr(xin(1, v, tt), 4))
            mfma(di, vr(S64 + 4 * tt, 4), vr(xin(0, v, tt), 4))
    for v in range(2):
        if v:
            k.nop(4)
        for d in range(2):
            e("v_cvt_pk_bf16_f32 v%d, v%d, v%d" % (PR + 2 * v + d, DR + 4 * v + 2 * d, DR + 4 * v + 2 * d + 1))
            e("v_cvt_pk_bf16_f32 v%d, v%d, v%d" % (PI + 2 * v + d, DI + 4 * v + 2 * d, DI + 4 * v + 2 * d + 1))
        e("buffer_store_dwordx2 %s, v12, %s, s%d offen offset:%d sc1" % (vr(PR + 2 * v, 2), srd(SWS), sZR, v * 512))
        k.vm.issue("zst")
        e("buffer_store_dwordx2 %s, v12, %s, s%d offen offset:%d sc1" % (vr(PI + 2 * v, 2), srd(SWS), sZI, v * 512))
        k.vm.issue("zst")
    e("s_or_b32 s%d, s%d, s%d" % (sT0, sCC, sPL))
    if not P("NO256", 0):
        e("s_cbranch_scc0 L_csecond")
    sec = ["L_csecond:", "    s_mov_b32 s%d, 1" % sPL, "    s_add_u32 s%d, s%d, 4096" % (sZR, sZR)]
    for i in range(8):
        sec.append("    v_mov_b32 v%d, v%d" % (CWL + i, CWL + 8 + i))
    sec.extend(gbar_lines())
    sec.append("    s_branch L_ccol")
    tail.extend(sec)
    k.stamp(10)
    fs(7, 2)
    e("s_lshr_b32 s%d, s%d, 2" % (sT4, sCC))
    e("s_lshl_b32 s%d, s%d, 6" % (sT1, sRW))
    e("s_add_u32 s%d, s%d, s%d" % (sT4, sT4, sT1))
    e("s_lshl_b32 s%d, s%d, 7" % (sT4, sT4))
    e("s_and_b32 s%d, s%d, 3" % (sT1, sCC))
    e("s_lshl2_add_u32 s%d, s%d, s%d" % (sT4, sT1, sT4))
    e("s_add_u32 s%d, s%d, 0x%x" % (sT4, sT4, FZ_OFF))
    sFZC = sFXC
    e("s_lshl3_add_u32 s%d, s%d, s%d" % (sFZC, sWP, sRW))
    e("s_lshl_b32 s%d, s%d, 10" % (sFZC, sFZC))
    e("s_add_u32 s%d, s%d, 0x%x" % (sFZC, sFZC, FZ_OFF + 4096))
    e("v_and_b32 v%d, 0x3ff, v%d" % (vFZ, vFZ))
    sZB, sZM = sZR, sZI
    e("s_lshl_b32 s%d, s%d, 18" % (sZB, sRW))
    e("s_lshl_b32 s%d, s%d, 10" % (sT1, sWP))
    e("s_add_u32 s%d, s%d, s%d" % (sZB, sZB, sT1))
    e("s_lshl_b32 s%d, s%d, 7" % (sT1, sA))
    e("s_add_u32 s%d, s%d, s%d" % (sZB, sZB, sT1))
    e("s_lshl_b32 s%d, s%d, 13" % (sZM, sRW))
    e("s_lshl_b32 s%d, s%d, 6" % (sT1, sRW))
    e("v_xor_b32 v20, s%d, v26" % sT1)
    k.wait_vm("zst")
    fs(7, 3)
    publish("s%d" % sT4)
    e("s_setprio 0")
    for s_ in gl:
        e(s_)
    TRZ = [[16, 17, 18, 7], [26, 27, 28, 29]]
    ZH = LB + 57344
    e("v_add_u32 v19, 0x%x, v6" % (ZH - LB))
    for pt in range(4):
        e("v_xor_b32 v%d, %d, v6" % (TRZ[0][pt], 32 * pt))
        e("v_xor_b32 v%d, %d, v19" % (TRZ[1][pt], 32 * pt))
    gbar()
    AS, ZF = 208, 128

    def zr(T, pt):
        for hh in range(2):
            r = ZF + ((T % 4) * 4 + pt) * 4 + 2 * hh
            e("ds_read_b64_tr_b16 %s, v%d offset:%d" % (vr(r, 2), TRZ[T >> 3][pt], (T & 7) * 4096 + hh * 2048))
            k.lg.issue(("ZR", T, pt))

    def zfetch(h_):
        e("s_setprio 1")
        gwait(C_ST if h_ else C_WT)
        poll_issue(("pz", h_), vFZ, "s%d" % sFZC, 30)
        e("s_add_u32 s%d, s%d, 0x%x" % (sDT, sZB, ZT_OFF + h_ * 256 * 4096 - 32768))
        poll_check(("pz", h_), vFZ, "s%d" % sFZC, 30)
        for ee in range(8):
            e("s_add_u32 m0, s%d, %d" % (sZM, (ZH if h_ else LB) + ee * 1024))
            e("s_add_u32 s%d, s%d, 32768" % (sDT, sDT))
            e("buffer_load_dwordx4 v%d, %s, s%d offen sc1 lds" % (vDZ, srd(SWS), sDT))
            k.vm.issue(("Z", h_))
        e("s_setprio %d" % P("EPRIO", 0))

    def ehalf(h_):
        k.wait_vm(("Z", h_))
        gbar()
        seq = [(T, pt) for T in range(8 * h_, 8 * h_ + 8) for pt in range(4)]
        LA_ = 6
        for n in range(LA_):
            zr(*seq[n])
        for n, (T, pt) in enumerate(seq):
            if n + LA_ < 32:
                zr(*seq[n + LA_])
            k.wait_lg(("ZR", T, pt))
            c = vr(AS + 4 * pt, 4)
            mfma(c, vr(GB + 4 * T, 4), vr(ZF + ((T % 4) * 4 + pt) * 4, 4), "0" if T == 8 else c)
    zfetch(1)
    k.stamp(11)
    e("s_sub_u32 s%d, s%d, 4096" % (sFZC, sFZC))
    if P("ZORD", 1):
        zfetch(0)
        ehalf(1)
    else:
        ehalf(1)
        zfetch(0)
    ehalf(0)
    k.nop(8)
    for pt in range(4):
        e("ds_write_b128 v20, %s offset:%d" % (vr(AS + 4 * pt, 4), pt * 4096))
    fs(7, 10)
    e("s_branch L_final")
    tail[0:0] = k.lines
    k.lines = main_lines

    e("s_waitcnt vmcnt(0) lgkmcnt(0)")
    k.vm.clear()
    k.lg.clear()
    fs(12, 7)
    e("s_barrier")
    fs(12, 8)
    k.stamp(12)
    YP, SV, U2 = 192, 224, 232
    e("v_add_u32 v10, 0x%x, v%d" % (L_C1, vR0))
    e("v_add_u32 v11, 0x%x, v%d" % (L_C1, vR1))
    for h in range(2):
        e("ds_read_b128 %s, v%d" % (vr(YP + 4 * h, 4), vR0 + h))
        k.lg.issue("yp")
    for h in range(2):
        e("ds_read_b128 %s, v%d" % (vr(SV + 4 * h, 4), 10 + h))
        k.lg.issue("sv")
    for i in range(4):
        e("v_lshlrev_b32 v%d, 16, v%d" % (240 + 2 * i, XV + i))
        e("v_and_b32 v%d, 0xffff0000, v%d" % (241 + 2 * i, XV + i))
    k.wait_lg("yp")
    for i in range(8):
        e("v_mul_f32 v%d, %s, v%d" % (U2 + i, hexf(-1.4426950408889634), YP + i))
    for i in range(8):
        e("v_exp_f32 v%d, v%d" % (U2 + i, U2 + i))
    k.wait_lg("sv")
    for i in range(8):
        e("v_mul_f32 v%d, v%d, v%d" % (YP + i, YP + i, SV + i))
    for i in range(8):
        e("v_add_f32 v%d, 1.0, v%d" % (U2 + i, U2 + i))
    for i in range(8):
        e("v_rcp_f32 v%d, v%d" % (U2 + i, U2 + i))
    k.nop(1)
    for i in range(8):
        e("v_fmac_f32 v%d, v%d, v%d" % (240 + i, YP + i, U2 + i))
    for d in range(4):
        e("v_cvt_pk_bf16_f32 v%d, v%d, v%d" % (SV + d, 240 + 2 * d, 241 + 2 * d))
    e("buffer_store_dwordx4 %s, v%d, %s, s%d offen%s" % (vr(SV, 4), vGO, srd(SOUT), sXO, os.environ.get("OFL", " sc1")))
    e("s_or_b32 s%d, s2, s%d" % (sT0, sRW))
    e("s_or_b32 s%d, s%d, s%d" % (sT0, sT0, sHF))
    e("s_cbranch_scc1 L_noep")
    e("s_mov_b32 s%d, 0x%x" % (sT0, EPOCH_OFF))
    publish("s%d" % sT0)
    k.lab("L_noep")
    k.stamp(13)
    if ENC:
        if "ENCB" in os.environ:
            e("s_cmp_lg_u32 s2, %d" % P("ENCB", 0))
            e("s_cbranch_scc1 L_done")
        e("s_waitcnt lgkmcnt(0)")
        e("s_sub_u32 s97, s%d, s66" % (64 + 2 * ENC))
        e("s_add_u32 s97, s97, 6000")
        k.lab("L_espin")
        e("s_memrealtime s[94:95]")
        e("s_waitcnt lgkmcnt(0)")
        e("s_sub_u32 s96, s94, s66")
        e("s_cmp_lt_u32 s96, s97")
        e("s_cbranch_scc1 L_espin")
    elif DIAG:
        e("s_lshl2_add_u32 s%d, s%d, s%d" % (sT0, sHF, sRW))
        e("v_mov_b32 v2, s%d" % sT0)
        k.stamp_flush(SWS, 0, 2, 8)
    k.lab("L_done")
    e("s_endpgm")
    k.lines += tail
    k.lab("L_end")
    return k


HEADER = open(os.path.join(os.path.dirname(os.path.abspath(__file__)), "header.txt")).read()


def main(out):
    k = gen()
    s = HEADER
    s += "; @launch grid=(256,1,1) block=(512,1,1) lds=163840\n"
    s += '.amdgcn_target "amdgcn-amd-amdhsa--gfx950"\n.text\n'
    s += k.text()
    s += '.section .rodata,"a"\n'
    s += descriptor(k.name, 256, 102 if DIAG else 64)
    open(out, "w").write(s)


if __name__ == "__main__":
    main(sys.argv[1] if len(sys.argv) > 1 else "v17.s")
```

```python
import sys, os
from collections import deque
sys.path.insert(0, os.path.dirname(os.path.abspath(__file__)))
from asmlib import *

NAME = "recurrent_scan__spectral_gfnet__dense_activation_relu__prompt_kernel"


def P(name, default):
    return int(os.environ.get(name, default))


X1C_OFF = 0x0200000
WT_OFF = 0x0400000
H_OFF = 0x0800000
ZT_OFF = 0x1000000
FX_OFF = 0x0000000
FW_OFF = 0x0010000
FH_OFF = 0x0020000
FY_OFF = 0x0048000
YX_OFF = 0x1800000 if DIAG else 0x1200000
FHB_D = 0x0008000
FZ_OFF = 0x0030000
EPOCH_OFF = 0x0040000
WS_BYTES = 0x2000000 if DIAG else 0x1600000
OOB = 0x7f000000
TAGC = 0x9E3779B9
X_BYTES = 2048 * 512 * 2
W_BYTES = 2048 * 257 * 2
W1_BYTES = 512 * 1792 * 2

SX, SWR, SWI, SW1, SW2, SOUT, SWS = 12, 16, 20, 24, 28, 32, 36
sRW, sPB, sCBK, sF0, sHF, sR, sTAG, sA, sWP, sDB = 3, 4, 5, 6, 7, 8, 9, 10, 11, 40
sXO, sRS = 41, 42
sT0, sT1, sT2, sT3, sT4 = 43, 44, 45, 46, 47
sCNT = 49
sXT, sDT = 0, 1

LA, LB, LS = 0, 65536, 131072
L_C1 = LS
L_WT = LS + 16384
L_SCR = LS + 24576
L_CS, L_ST, L_CNT, L_W256, L_DUM = L_SCR, L_SCR + 1024, L_SCR + 3072, L_SCR + 4096, L_SCR + 6144
XSLOT = [LB, LB + 16384, LB + 32768, LB + 49152, LA, LA + 16384, LA + 32768, LA + 49152]

vLANE, vL16, vC, vQ, vTAG, vCNT = 1, 2, 3, 4, 5, 25
vGO, vR0, vR1, vYW, vZB = 0, 22, 23, 21, 124
C_WA2, C_CSA, C_WB1, C_WB2, C_CSB, C_ST, C_WT, C_F, C_E1, C_L1, C_GY, C_FA, C_FB, C_HB = 0, 4, 8, 12, 16, 20, 24, 28, 32, 36, 40, 44, 48, 52


def srd(n):
    return "s[%d:%d]" % (n, n + 3)


def gen():
    k = K(NAME)
    e = k.e
    tail = []
    FS, ENC = P("FS", 0), P("ENC", 0)
    _stamp = k.stamp

    def stamp_n(i, real=False):
        if ENC:
            if i == 1 or i == ENC:
                _stamp(i, True)
            return
        if FS and 2 <= i <= 13:
            return
        _stamp(i, real)
    k.stamp = stamp_n

    def fs(mode, i):
        if FS == mode:
            _stamp(i)

    side = deque()
    sch = {"gap": 3, "n": 0, "lds": deque()}

    def mfma(d, a, b, c=None):
        e("v_mfma_f32_16x16x32_bf16 %s, %s, %s, %s" % (d, a, b, c if c is not None else d))

    def mf(d, a, b, c=None):
        mfma(d, a, b, c)
        sch["n"] += 1
        for _ in range(sch.get("nl", P("NL", 1))):
            if sch["lds"]:
                sch["lds"].popleft()()
        if side and sch["n"] % sch["gap"] == 0:
            side.popleft()()

    def mf32(d, a, b, c):
        e("v_mfma_f32_32x32x16_bf16 %s, %s, %s, %s" % (d, a, b, c))
        for _ in range(P("NL32", 3)):
            if sch["lds"]:
                sch["lds"].popleft()()
        sch["n"] += 2
        if side and sch["n"] % max(2, sch["gap"] // 2 * 2) == 0:
            side.popleft()()

    def flush_lds():
        while sch["lds"]:
            sch["lds"].popleft()()

    def flush_side():
        flush_lds()
        while side:
            side.popleft()()

    def run(items):
        for f in items:
            f()

    def bf16_round(v):
        e("v_cvt_pk_bf16_f32 v%d, v%d, v%d" % (v, v, v))
        e("v_lshlrev_b32 v%d, 16, v%d" % (v, v))

    def publish_lines(soff):
        return ["    s_mov_b64 exec, 1",
                "    buffer_store_dword v%d, off, %s, %s sc1" % (vTAG, srd(SWS), soff),
                "    s_mov_b64 exec, -1"]

    def publish(soff):
        k.lines.extend(publish_lines(soff))
        k.vm.issue("flag")

    pollno = [0]

    def poll_ld(vaddr, soff, vt):
        return "buffer_load_dword v%d, v%d, %s, %s offen sc1" % (vt, vaddr, srd(SWS), soff)

    def poll_issue(tag, vaddr, soff, vt):
        e(poll_ld(vaddr, soff, vt))
        k.vm.issue(tag)

    def poll_check(tag, vaddr, soff, vt, pre=(), slp=None):
        n = pollno[0]
        pollno[0] += 1
        k.wait_vm(tag)
        e("v_cmp_ne_u32 vcc, v%d, v%d" % (vt, vTAG))
        e("s_cmp_lg_u64 vcc, 0")
        e("s_cbranch_scc1 L_slow%d" % n)
        k.lab("L_back%d" % n)
        tail.append("L_slow%d:" % n)
        tail.extend(pre)
        tail.extend(["    s_mov_b32 s%d, 0" % sCNT,
                     "L_spin%d:" % n,
                     "    s_sleep %d" % (P("SLP", 8) if slp is None else slp),
                     "    s_mov_b64 exec, vcc",
                     "    " + poll_ld(vaddr, soff, vt),
                     "    s_mov_b64 exec, -1",
                     "    s_waitcnt vmcnt(0)",
                     "    v_cmp_ne_u32 vcc, v%d, v%d" % (vt, vTAG),
                     "    s_cmp_lg_u64 vcc, 0",
                     "    s_cbranch_scc0 L_back%d" % n,
                     "    s_add_u32 s%d, s%d, 1" % (sCNT, sCNT),
                     "    s_cmp_lt_u32 s%d, 0x40000" % sCNT,
                     "    s_cbranch_scc1 L_spin%d" % n,
                     "    s_branch L_back%d" % n])

    gbn = [0]

    def gwait_lines(off, target):
        n = gbn[0]
        gbn[0] += 1
        chk = ["    ds_read_b32 v19, v%d offset:%d" % (vCNT, off),
               "    s_waitcnt lgkmcnt(0)",
               "    v_readfirstlane_b32 s%d, v19" % sT0,
               "    s_cmp_lt_u32 s%d, %s" % (sT0, target)]
        tail.append("L_gs%d:" % n)
        tail.append("    s_mov_b32 s%d, 0x400000" % sCNT)
        tail.append("L_gb%d:" % n)
        tail.append("    s_sub_u32 s%d, s%d, 1" % (sCNT, sCNT))
        tail.append("    s_cbranch_scc1 L_gx%d" % n)
        tail.append("    s_sleep %d" % (4 if off in (C_WT, C_ST) else 1))
        tail.extend(chk)
        tail.append("    s_cbranch_scc1 L_gb%d" % n)
        tail.append("    s_branch L_gx%d" % n)
        return chk + ["    s_cbranch_scc1 L_gs%d" % n, "L_gx%d:" % n]

    def garrive_lines(off):
        return ["    v_mov_b32 v19, 1",
                "    s_mov_b64 exec, 1",
                "    ds_add_u32 v%d, v19 offset:%d" % (vCNT, off),
                "    s_mov_b64 exec, -1"]

    def garrive(off):
        k.lines.extend(garrive_lines(off))
        k.lg.issue("arr")

    def gwait(off, target="4"):
        k.lines.extend(gwait_lines(off, target))
        k.lg.clear()

    def gpeek(off, vt):
        e("ds_read_b32 v%d, v%d offset:%d" % (vt, vCNT, off))
        k.lg.issue(("pk", off))

    def gcheck(off, vt):
        n = gbn[0]
        slow = gwait_lines(off, "4")
        k.wait_lg(("pk", off))
        e("v_readfirstlane_b32 s%d, v%d" % (sT0, vt))
        e("s_cmp_lt_u32 s%d, 4" % sT0)
        e("s_cbranch_scc1 L_gs%d" % n)
        k.lab("L_gx%d" % n)

    def flag_voff(vv, n):
        e("v_min_u32 v19, %d, v%d" % (n, vLANE))
        e("v_lshrrev_b32 v%d, 2, v19" % vv)
        e("v_lshlrev_b32 v%d, 7, v%d" % (vv, vv))
        e("v_and_b32 v19, 3, v19")
        e("v_lshl_add_u32 v%d, v19, 2, v%d" % (vv, vv))

    def xread_addr(v0_):
        e("v_lshrrev_b32 v19, 1, v%d" % vC)
        e("v_xor_b32 v19, v19, v%d" % vQ)
        e("v_lshlrev_b32 v19, 4, v19")
        e("v_lshl_add_u32 v19, v%d, 7, v19" % vC)
        e("s_lshl_b32 s%d, s%d, 12" % (sT0, sRW))
        e("v_add_u32 v%d, s%d, v19" % (v0_, sT0))
        e("v_xor_b32 v%d, 64, v%d" % (v0_ + 1, v0_))
        e("v_add_u32 v%d, 0x%x, v%d" % (v0_ + 2, LB, v0_))
        e("v_add_u32 v%d, 0x%x, v%d" % (v0_ + 3, LB, v0_ + 1))

    def xread(dst, v0_, kk, u, ks, tag):
        hi = XSLOT[kk] >= LB
        e("ds_read_b128 %s, v%d offset:%d" % (dst, v0_ + ks + (2 if hi else 0), XSLOT[kk] % 65536 + u * 2048))
        k.lg.issue(tag)

    def tag_setup():
        e("s_waitcnt lgkmcnt(0)")
        k.lg.clear()
        e("s_add_u32 s%d, s%d, 0x%x" % (sTAG, sTAG, TAGC))
        e("v_mov_b32 v%d, s%d" % (vTAG, sTAG))

    def late_setup(hf):
        e("v_lshrrev_b32 v19, 2, v%d" % vC)
        e("v_lshl_add_u32 v19, v%d, 2, v19" % vQ)
        e("v_bfe_u32 v30, v19, 1, 2")
        e("v_lshlrev_b32 v19, 7, v19")
        e("v_and_b32 v31, 1, v%d" % vC)
        e("v_lshl_add_u32 v19, v31, 3, v19")
        e("v_lshlrev_b32 v30, 1, v30")
        e("v_bfe_u32 v31, v%d, 1, 1" % vC)
        e("v_or_b32 v30, v30, v31")
        e("v_lshl_add_u32 v%d, v30, 4, v19" % vZB)
        e("v_lshrrev_b32 v19, 3, v%d" % vLANE)
        if hf:
            e("v_add_u32 v19, 8, v19")
        e("v_and_b32 v30, 7, v%d" % vLANE)
        e("v_lshlrev_b32 v%d, 15, v19" % vGO)
        e("v_lshl_add_u32 v%d, v30, 4, v%d" % (vGO, vGO))
        e("v_lshlrev_b32 v30, 1, v30")
        e("v_xor_b32 v30, v30, v19")
        e("v_lshlrev_b32 v30, 4, v30")
        e("v_lshl_add_u32 v30, v19, 8, v30")
        e("s_lshl_b32 s%d, s%d, 12" % (sT0, sRW))
        e("v_add_u32 v%d, s%d, v30" % (vR0, sT0))
        e("v_xor_b32 v%d, 16, v%d" % (vR1, vR0))
        e("v_xor_b32 v%d, v%d, v%d" % (vYW, vQ, vC))
        e("v_lshlrev_b32 v%d, 4, v%d" % (vYW, vYW))
        e("v_lshl_add_u32 v%d, v%d, 8, v%d" % (vYW, vC, vYW))
        e("s_lshl_b32 s%d, s%d, 19" % (sXO, sWP))
        e("s_lshl2_add_u32 s%d, s%d, s%d" % (sT0, sA, sRW))
        e("s_lshl_b32 s%d, s%d, 10" % (sT0, sT0))
        e("s_add_u32 s%d, s%d, s%d" % (sXO, sXO, sT0))
        e("s_lshl_b32 s%d, s%d, 7" % (sT0, sDB))
        e("s_add_u32 s%d, s%d, s%d" % (sXO, sXO, sT0))
    XV = 248

    def xe_load():
        e("buffer_load_dwordx4 %s, v%d, %s, s%d offen" % (vr(XV, 4), vGO, srd(SX), sXO))
        k.vm.issue("xe")

    e("s_cmp_ge_u32 s2, 256")
    e("s_cbranch_scc1 L_done")
    k.stamp(0)
    k.stamp(1, real=True)
    e("s_load_dwordx2 s[%d:%d], s[0:1], 0" % (SX, SX + 1))
    e("s_load_dwordx2 s[%d:%d], s[0:1], 32" % (SW1, SW1 + 1))
    e("s_load_dwordx2 s[%d:%d], s[0:1], 64" % (SWS, SWS + 1))
    e("s_load_dwordx2 s[%d:%d], s[0:1], 8" % (SWR, SWR + 1))
    e("s_load_dwordx2 s[%d:%d], s[0:1], 16" % (SWI, SWI + 1))
    e("s_load_dwordx2 s[%d:%d], s[0:1], 40" % (SW2, SW2 + 1))
    e("s_load_dwordx2 s[%d:%d], s[0:1], 48" % (SOUT, SOUT + 1))
    e("v_lshrrev_b32 v19, 6, v0")
    e("s_getpc_b64 s[%d:%d]" % (sT1, sT2))
    k.lab("L_pc")
    e("s_andn2_b32 s%d, s2, 7" % sT0)
    e("v_add_lshl_u32 v20, v19, s%d, 7" % sT0)
    e("v_min_u32 v20, L_end-L_pc-4, v20")
    e("v_mov_b32 v21, s%d" % sT2)
    e("v_add_co_u32 v20, vcc, s%d, v20" % sT1)
    e("v_readfirstlane_b32 s%d, v19" % sHF)
    e("v_and_b32 v%d, 63, v0" % vLANE)
    e("v_addc_co_u32 v21, vcc, 0, v21, vcc")
    e("global_load_dword v247, v[20:21], off")
    k.vm.issue("touch")
    for s_, nb in ((SX, X_BYTES), (SWR, W_BYTES), (SWI, W_BYTES), (SW1, W1_BYTES), (SW2, W1_BYTES), (SOUT, X_BYTES), (SWS, WS_BYTES)):
        e("s_mov_b32 s%d, 0x%x" % (s_ + 2, nb))
        e("s_mov_b32 s%d, 0x00020000" % (s_ + 3))
    e("v_and_b32 v%d, 15, v0" % vC)
    e("v_bfe_u32 v%d, v0, 4, 2" % vQ)
    e("v_lshlrev_b32 v%d, 4, v%d" % (vL16, vLANE))
    e("v_mov_b32 v%d, 0x%x" % (vCNT, L_CNT))
    e("s_and_b32 s%d, s2, 7" % sA)
    e("s_lshr_b32 s%d, s2, 6" % sWP)
    e("s_bfe_u32 s%d, s2, 0x30003" % sDB)
    e("s_and_b32 s%d, s%d, 3" % (sRW, sHF))
    e("s_lshr_b32 s%d, s%d, 1" % (sPB, sA))
    e("s_lshl2_add_u32 s%d, s%d, s%d" % (sPB, sPB, sWP))
    e("s_and_b32 s%d, s%d, 1" % (sT0, sA))
    e("s_lshl3_add_u32 s%d, s%d, s%d" % (sCBK, sT0, sDB))
    e("s_lshl1_add_u32 s%d, s%d, s%d" % (sR, sWP, sDB))
    if P("ROT", 44) == 44:
        e("s_add_u32 s%d, s%d, s%d" % (sR, sWP, sDB))
        e("s_and_b32 s%d, s%d, 1" % (sR, sR))
        e("s_lshl_b32 s%d, s%d, 2" % (sR, sR))
    elif P("ROT", 44) == 66:
        e("s_add_u32 s%d, s%d, s%d" % (sR, sWP, sDB))
        e("s_and_b32 s%d, s%d, 3" % (sR, sR))
        e("s_lshl_b32 s%d, s%d, 1" % (sR, sR))
    else:
        e("s_and_b32 s%d, s%d, %d" % (sR, sR, P("ROT", 44)))
    e("s_lshl2_add_u32 s%d, s%d, s%d" % (sRS, sPB, sRW))
    e("s_lshr_b32 s%d, s%d, 1" % (sA, sPB))
    e("s_and_b32 s%d, s%d, 1" % (sT3, sPB))
    e("s_lshl1_add_u32 s%d, s%d, s%d" % (sWP, sT3, sT0))
    e("s_lshr_b32 s%d, s%d, 2" % (sHF, sHF))
    e("s_cbranch_scc1 L_fft")
    q_vm = list(k.vm.q)

    sXB, sM4, sM2, sHS, sFH, sHB, sFHC, sW2B = 48, 57, 58, 59, 60, 61, 62, 63
    TV = [50, 51, 52, 53, 54, 55, 56]
    sRSW, sCG, sRB = sPB, sHF, sCBK
    e("s_lshl_b32 s%d, s%d, 20" % (sXB, sT3))
    e("s_lshl2_add_u32 s%d, s%d, s%d" % (sT1, sA, sRW))
    e("s_lshl_b32 s%d, s%d, 10" % (sT1, sT1))
    e("s_add_u32 s%d, s%d, s%d" % (sXB, sXB, sT1))
    e("v_lshrrev_b32 v10, 3, v%d" % vLANE)
    e("v_and_b32 v12, 7, v%d" % vLANE)
    e("v_xor_b32 v6, v12, v%d" % vQ)
    e("v_lshlrev_b32 v6, 4, v6")
    e("v_lshl_add_u32 v6, v10, 15, v6")
    e("v_xor_b32 v7, 64, v6")
    e("v_add_u32 v7, 0x40000, v7")
    e("s_lshl_b32 s%d, s%d, 12" % (sM4, sRW))
    e("s_lshl_b32 s%d, s%d, 11" % (sM2, sRW))
    e("s_sub_u32 s%d, s%d, s%d" % (sF0, sCBK, sT0))
    e("s_lshl_b32 s%d, s%d, 8" % (sF0, sF0))
    e("s_cmp_eq_u32 s%d, 7" % sDB)
    e("s_cselect_b32 s%d, 0x%x, s%d" % (sF0, 0x08000000, sF0))
    e("s_waitcnt lgkmcnt(0)")
    e("s_load_dword s%d, s[%d:%d], 0x%x" % (sTAG, SWS, SWS + 1, EPOCH_OFF))

    def xdma(kk):
        def item(ee):
            def f():
                e("s_add_u32 m0, s%d, %d" % (sM4, XSLOT[kk] + ee * 1024))
                if ee == 0:
                    e("s_add_u32 s%d, s%d, %d" % (sXT, sR, kk))
                    e("s_and_b32 s%d, s%d, 7" % (sXT, sXT))
                    e("s_lshl_b32 s%d, s%d, 7" % (sXT, sXT))
                    e("s_add_u32 s%d, s%d, s%d" % (sXT, sXT, sXB))
                elif ee == 2:
                    e("s_add_u32 s%d, s%d, 0x80000" % (sXT, sXT))
                else:
                    k.nop(1)
                e("buffer_load_dwordx4 v%d, %s, s%d offen lds" % (6 + (ee & 1), srd(SX), sXT))
                k.vm.issue(("X", kk))
            return f
        return [item(ee) for ee in range(4)]

    def w1dma(reg, kk):
        off = " offset:128" if reg else ""
        lb = (LA - 128 if reg else LB) + kk * 8192

        def f0():
            e("s_add_u32 s%d, s%d, %d" % (sDT, sR, kk))
            e("s_and_b32 s%d, s%d, 7" % (sDT, sDT))
            e("s_mul_i32 s%d, s%d, %d" % (sDT, sDT, 64 * 3584))
            e("s_add_u32 m0, s%d, %d" % (sM2, lb + 128))
            e("s_add_u32 s%d, s%d, s%d" % (sDT, sDT, sF0))
            if reg:
                e("s_add_u32 s%d, s%d, 128" % (sDT, sDT))
            else:
                e("s_add_u32 m0, s%d, %d" % (sM2, lb))
                k.nop(1)
            e("buffer_load_dwordx4 v8, %s, s%d offen lds" % (srd(SW1), sDT))
            k.vm.issue(("W1", reg, kk))

        def f1():
            e("s_add_u32 m0, s%d, %d" % (sM2, (LA if reg else LB) + kk * 8192 + 1024))
            k.nop(1)
            e("buffer_load_dwordx4 v9, %s, s%d offen lds" % (srd(SW1), sDT))
            k.vm.issue(("W1", reg, kk))
        return [f0, f1]

    def mtouch(sr_):
        e("s_lshl2_add_u32 s%d, s2, s%d" % (sT0, sRW))
        e("s_mul_i32 s%d, s%d, %d" % (sT0, sT0, 14 * 128))
        e("v_lshlrev_b32 v19, 7, v%d" % vLANE)
        e("s_mov_b32 m0, 0x%x" % L_DUM)
        e("s_mov_b64 exec, 0x3fff")
        e("buffer_load_dword v19, %s, s%d offen lds" % (srd(sr_), sT0))
        k.vm.issue("touch")
        e("s_mov_b64 exec, -1")
    T1P, T2P = P("T1P", 1), P("T2P", 4)

    def touches(pos):
        if T1P == pos:
            mtouch(SW1)
        if T2P == pos:
            mtouch(SW2)
    run(xdma(0))
    touches(0)
    run(xdma(1))
    touches(1)
    k.stamp(2)
    e("s_lshl_b32 s%d, s%d, 4" % (sT0, sRW))
    e("v_add_u32 v11, s%d, v10" % sT0)
    e("v_mul_u32_u24 v11, 3584, v11")
    e("v_and_b32 v13, 1, v%d" % vQ)
    e("v_lshlrev_b32 v13, 1, v13")
    e("v_xor_b32 v13, v13, v12")
    e("v_lshl_add_u32 v8, v13, 4, v11")
    e("v_xor_b32 v13, 4, v13")
    e("v_lshl_add_u32 v9, v13, 4, v11")
    e("v_add_u32 v9, %d, v9" % (8 * 3584))
    vWS, vWW, vWR, vD2 = 15, 14, 13, 24
    e("v_lshlrev_b32 v15, 13, v10")
    e("v_lshl_add_u32 v15, v12, 4, v15")
    e("s_lshl_b32 s%d, s%d, 1" % (sT0, sRW))
    e("v_xor_b32 v14, s%d, v12" % sT0)
    e("v_lshlrev_b32 v14, 4, v14")
    e("v_lshl_add_u32 v14, v%d, 7, v14" % vLANE)
    e("v_add_u32 v14, 0x%x, v14" % L_WT)
    e("v_xor_b32 v13, v10, v12")
    e("v_lshlrev_b32 v13, 4, v13")
    e("v_lshl_add_u32 v13, v10, 7, v13")
    e("s_add_u32 s%d, s%d, 0x%x" % (sT0, sM2, L_WT))
    e("v_add_u32 v13, s%d, v13" % sT0)
    e("v_lshlrev_b32 v19, 1, v%d" % vQ)
    e("v_xor_b32 v19, v19, v12")
    e("v_lshlrev_b32 v19, 4, v19")
    e("v_lshl_add_u32 v%d, v10, 10, v19" % vD2)
    xread_addr(26)
    e("v_mov_b32 v19, 0")
    e("v_lshl_add_u32 v30, v%d, 2, v%d" % (vC, vCNT))
    e("ds_write_b32 v30, v19")
    XF, AF, ACC, HO, CS, ONES = 128, 32, 64, 32, 112, 116
    TRB = [16, 17, 18, 20]
    e("v_lshrrev_b32 v19, 2, v%d" % vC)
    e("v_lshl_add_u32 v30, v%d, 3, v19" % vQ)
    e("v_lshlrev_b32 v30, 7, v30")
    e("v_and_b32 v31, 1, v%d" % vC)
    e("v_lshl_add_u32 v30, v31, 3, v30")
    e("v_bfe_u32 v19, v%d, 3, 1" % vC)
    e("v_and_b32 v31, 1, v%d" % vQ)
    e("v_lshl_or_b32 v19, v31, 1, v19")
    e("v_lshlrev_b32 v19, 1, v19")
    e("v_bfe_u32 v31, v%d, 1, 1" % vC)
    e("v_or_b32 v19, v19, v31")
    e("v_lshl_add_u32 v30, v19, 4, v30")
    e("v_add_u32 v30, 0x%x, v30" % LB)
    for l in range(4):
        e("v_xor_b32 v%d, %d, v30" % (TRB[l], 32 * l))
    vCSA, RN, C1 = 99, 120, [108, 112, 116, 124]
    TR2 = [100, 101, 102, 103]
    HV = [104, 105, 106, 107]
    vFH = 106
    def setup_a():
        e("v_lshlrev_b32 v%d, 4, v%d" % (vCSA, vQ))
        e("v_add_u32 v%d, 0x%x, v%d" % (vCSA, L_CS, vCSA))
        e("s_lshl_b32 s%d, s%d, 9" % (sT0, sRW))
        e("s_add_u32 s%d, s%d, 0x%x" % (sT0, sT0, L_ST))
        e("v_lshl_add_u32 v96, v%d, 2, s%d" % (vC, sT0))
        e("s_mul_i32 s%d, s%d, %d" % (sHB, sRS, 2 * 56 * 1024))
        e("s_add_u32 s%d, s%d, 0x%x" % (sHB, sHB, H_OFF))
        e("s_lshl4_add_u32 s%d, s%d, s%d" % (sHS, sF0, sHB))
        e("s_and_b32 s%d, s2, 1" % sT2)
        e("s_lshl1_add_u32 s%d, s%d, s%d" % (sFHC, sPB, sT2))
        e("s_lshl2_add_u32 s%d, s%d, s%d" % (sFHC, sFHC, sRW))
        e("s_lshl_b32 s%d, s%d, 7" % (sFHC, sFHC))
        e("s_add_u32 s%d, s%d, 0x%x" % (sFHC, sFHC, FH_OFF))
        e("s_lshl2_add_u32 s%d, s%d, s%d" % (sFH, sDB, sFHC))
        e("s_mul_i32 s%d, s%d, 7" % (sT0, sT2))
        e("s_lshr_b32 s%d, s2, 6" % sT1)
        e("s_lshl1_add_u32 s%d, s%d, s%d" % (sT1, sT1, sDB))
        e("s_and_b32 s%d, s%d, 7" % (sT1, sT1))
        e("s_cmp_eq_u32 s%d, 7" % sT1)
        e("s_cselect_b32 s%d, 0, s%d" % (sT1, sT1))
        for i in range(7):
            e("s_add_u32 s%d, s%d, s%d" % (TV[i], sT1, sT0))
            if i < 6:
                e("s_add_u32 s%d, s%d, 1" % (sT1, sT1))
                e("s_cmp_eq_u32 s%d, 7" % sT1)
                e("s_cselect_b32 s%d, 0, s%d" % (sT1, sT1))
        e("s_lshl_b32 s%d, s%d, 7" % (sW2B, sDB))
        e("s_lshl_b32 s%d, s%d, 14" % (sT0, sRW))
        e("s_add_u32 s%d, s%d, s%d" % (sW2B, sW2B, sT0))
        e("s_mul_i32 s%d, s%d, %d" % (sT0, sT2, 56 * 1024))
        e("v_add_u32 v%d, s%d, v%d" % (HV[0], sT0, vL16))
        e("s_sub_u32 s%d, %d, s%d" % (sT0, 56 * 1024, sT0))
        e("v_add_u32 v%d, s%d, v%d" % (HV[1], sT0, vL16))
        e("v_min_u32 v19, 6, v%d" % vLANE)
        e("v_lshlrev_b32 v%d, 2, v19" % vFH)
        late_setup(0)
        e("v_add_u32 v30, 0x%x, v%d" % (LB, vZB))
        for l in range(4):
            e("v_xor_b32 v%d, %d, v30" % (TR2[l], 32 * l))

    setup_a()
    run(xdma(2))
    run(xdma(3))
    touches(2)
    tag_setup()
    k.stamp(3)

    def X(u, T):
        return vr(XF + (T * 2 + u) * 4, 4)

    WR16 = 64

    def wloads():
        items = []

        def head():
            e("s_lshr_b32 s%d, s2, 5" % sRSW)
            e("s_and_b32 s%d, s2, 7" % sT1)
            e("s_lshl3_add_u32 s%d, s%d, s%d" % (sRSW, sT1, sRSW))
            e("s_and_b32 s%d, s%d, 3" % (sCG, sDB))
            e("s_lshr_b32 s%d, s%d, 4" % (sT1, sRSW))
            e("s_lshl_b32 s%d, s%d, 4" % (sT1, sT1))
            e("s_lshl1_add_u32 s%d, s%d, s%d" % (sT1, sRW, sT1))
            e("s_and_b32 s%d, s%d, 1" % (sT2, sRSW))
            e("s_lshl3_add_u32 s%d, s%d, s%d" % (sT1, sT2, sT1))
            e("s_bfe_u32 s%d, s%d, 0x30001" % (sT2, sRSW))
            e("s_lshl_b32 s%d, s%d, 8" % (sT2, sT2))
            e("s_add_u32 s%d, s%d, s%d" % (sT1, sT1, sT2))
            e("s_mul_i32 s%d, s%d, 514" % (sT1, sT1))
            e("s_lshl_b32 s%d, s%d, 7" % (sT4, sCG))
            e("s_add_u32 s%d, s%d, s%d" % (sT4, sT4, sT1))
            e("v_lshlrev_b32 v11, 1, v%d" % vLANE)
            e("v_and_b32 v19, 3, v%d" % vLANE)
            e("v_mul_u32_u24 v19, 32896, v19")
            e("v_bfe_u32 v30, v%d, 2, 1" % vLANE)
            e("v_mul_u32_u24 v30, 514, v30")
            e("v_add_u32 v19, v19, v30")
            e("s_cmp_eq_u32 s%d, 3" % sCG)
            e("s_cselect_b32 s%d, s%d, 0x%x" % (sT1, sT1, OOB))
            e("buffer_load_ushort v120, v19, %s, s%d offen offset:512" % (srd(SWR), sT1))
            k.vm.issue("wg")
            e("buffer_load_ushort v121, v19, %s, s%d offen offset:512" % (srd(SWI), sT1))
            k.vm.issue("wg")
        items.append(head)
        nt = " nt" if P("NTW", 0) else ""
        for r in range(4):
            def f(r=r):
                if r:
                    e("s_add_u32 s%d, s%d, 32896" % (sT4, sT4))
                for cb in range(2):
                    for arr, sr_ in ((0, SWR), (1, SWI)):
                        e("buffer_load_ushort v%d, v11, %s, s%d offen offset:%d%s" % (WR16 + 8 * cb + 4 * arr + r, srd(sr_), sT4, 514 * cb, nt))
                        k.vm.issue("wg")
            items.append(f)
        return items

    def wt_a():
        k.wait_vm("wg")
        for cb in range(2):
            for r in range(4):
                e("v_lshl_or_b32 v%d, v%d, 16, v%d" % (WR16 + 8 * cb + r, WR16 + 8 * cb + 4 + r, WR16 + 8 * cb + r))
        e("v_lshl_or_b32 v120, v121, 16, v120")
        e("ds_write_b128 v%d, %s" % (vWW, vr(WR16, 4)))
        k.lg.issue("wtw")
        e("v_xor_b32 v19, 16, v%d" % vWW)
        e("ds_write_b128 v19, %s" % vr(WR16 + 8, 4))
        k.lg.issue("wtw")
        e("s_lshl_b32 s%d, s%d, 5" % (sT0, sRW))
        e("s_add_u32 s%d, s%d, 0x%x" % (sT0, sT0, L_W256))
        e("v_lshl_add_u32 v19, v%d, 2, s%d" % (vLANE, sT0))
        e("s_mov_b64 exec, 0xff")
        e("ds_write_b32 v19, v120")
        k.lg.issue("wtw")
        e("s_mov_b64 exec, -1")

    def wt_b():
        for h in range(2):
            e("ds_read_b128 %s, v%d offset:%d" % (vr(WR16 + 4 * h, 4), vWR, 1024 * h))
            k.lg.issue("wtr")
        e("v_add_u32 v19, 0x%x, v%d" % (L_W256, vL16))
        e("ds_read_b128 %s, v19" % vr(WR16 + 8, 4))
        k.lg.issue("wtr")

    def wt_c():
        k.wait_lg("wtr")
        e("s_lshl2_add_u32 s%d, s%d, s%d" % (sT2, sCG, sRW))
        e("s_lshl_b32 s%d, s%d, 17" % (sT0, sT2))
        e("s_lshl_b32 s%d, s%d, 7" % (sT1, sRSW))
        e("s_add_u32 s%d, s%d, s%d" % (sT0, sT0, sT1))
        e("s_add_u32 s%d, s%d, 0x%x" % (sT0, sT0, WT_OFF))
        e("buffer_store_dwordx4 %s, v%d, %s, s%d offen sc1" % (vr(WR16, 4), vWS, srd(SWS), sT0))
        k.vm.issue("wtst")
        e("s_add_u32 s%d, s%d, 0x10000" % (sT0, sT0))
        e("buffer_store_dwordx4 %s, v%d, %s, s%d offen sc1" % (vr(WR16 + 4, 4), vWS, srd(SWS), sT0))
        k.vm.issue("wtst")
        e("s_add_u32 s%d, s%d, 0x%x" % (sT1, sT1, WT_OFF + 256 * 8192))
        e("s_cmp_eq_u32 s%d, 12" % sT2)
        e("s_cselect_b32 s%d, s%d, 0x%x" % (sT1, sT1, OOB))
        e("s_mov_b64 exec, 0xff")
        e("buffer_store_dwordx4 %s, v%d, %s, s%d offen sc1" % (vr(WR16 + 8, 4), vL16, srd(SWS), sT1))
        k.vm.issue("wtst")
        e("s_mov_b64 exec, -1")

    def wt_d():
        e("s_lshl2_add_u32 s%d, s%d, s%d" % (sT2, sCG, sRW))
        e("s_lshr_b32 s%d, s%d, 2" % (sT1, sRSW))
        e("s_lshl4_add_u32 s%d, s%d, s%d" % (sT0, sT2, sT1))
        e("s_lshl_b32 s%d, s%d, 7" % (sT0, sT0))
        e("s_and_b32 s%d, s%d, 3" % (sT1, sRSW))
        e("s_lshl2_add_u32 s%d, s%d, s%d" % (sT0, sT1, sT0))
        e("s_add_u32 s%d, s%d, 0x%x" % (sT0, sT0, FW_OFF))
        e("s_add_u32 s%d, s%d, 0x%x" % (sT1, sT0, 4 * 2048))
        e("s_cmp_eq_u32 s%d, 12" % sT2)
        e("s_cselect_b32 s%d, s%d, 0x%x" % (sT1, sT1, OOB))
        k.wait_vm("wtst")
        publish("s%d" % sT0)
        publish("s%d" % sT1)
        e("s_mov_b32 s%d, 0" % sHF)

    def xstage(s_):
        for kk in (2 * s_, 2 * s_ + 1):
            for u in range(2):
                for ks in range(2):
                    xread(X(u, 2 * kk + ks), 26, kk, u, ks, ("XR", s_))
    WPOS = P("WPOS", -1)
    if WPOS < 0:
        run(wloads())
    for s_ in range(4):
        k.wait_vm(("X", 2 * s_ + 1))
        if s_:
            k.wait_lg([("XR", s_ - 1)] + (["wtw"] if s_ == WPOS + 3 else []))
        e("s_barrier")
        fs(6, 2 + s_)
        xstage(s_)
        if s_ == WPOS + 3:
            wt_b()
        if s_ < 2:
            run(xdma(4 + 2 * s_) + xdma(5 + 2 * s_))
        WAS = [int(x_) for x_ in os.environ.get("WAS", "0,0,4,8").split(",")]
        for kk in range(WAS[s_ - 1] if s_ else 0, WAS[s_]):
            run(w1dma(0, kk))
        if s_ == WPOS:
            run(wloads())
        touches(3 + s_)
        if s_ == WPOS + 2:
            wt_a()
        if s_ == WPOS + 3:
            wt_c()
    k.wait_vm([("W1", 0, kk) for kk in range(4)])
    k.wait_lg(("XR", 3))
    e("s_barrier")
    k.stamp(4)
    fs(6, 6)


    def rdA(reg, T):
        items = []
        for l in range(4):
            for hh in range(2):
                def f(l=l, hh=hh):
                    e("ds_read_b64_tr_b16 %s, v%d offset:%d" % (vr(AF + (T & 1) * 16 + 4 * l + 2 * hh, 2), TRB[l], T * 4096 + hh * 512))
                    k.lg.issue(("A", reg, T))
                items.append(f)
        return items

    WLE = P("WLE", 4)
    CFB = P("CFB", 10) if WLE else 14

    def gpass(reg, hooks, mid):
        fs(8 + reg, 2)
        run(rdA(reg, 0))
        for T in range(16):
            k.wait_lg(("A", reg, T))
            if T == 7:
                gcheck(mid, 107)
            if T == 6:
                gpeek(mid, 107)
            if T == (CFB if reg else 14):
                gpeek(C_FB if reg else C_FA, 107)
            if T == CFB and reg and WLE:
                gpeek(C_HB, 97)
            if T == 15 and reg == 0:
                gpeek(C_WB1, 97)
            if T == 0 and reg == 1:
                gpeek(C_CSA, 98)
            if T + 1 < 16:
                sch["lds"].extend(rdA(reg, T + 1))
            for l in range(4):
                a = vr(AF + (T & 1) * 16 + 4 * l, 4)
                if P("M32", 0):
                    c = vr(ACC + 16 * (l & 1), 16)
                    mf32(c, a, X(l >> 1, T), c if (T or l > 1) else "0")
                    continue
                for u in range(2):
                    c = vr(ACC + (l * 2 + u) * 4, 4)
                    mf(c, a, X(u, T), c if T else "0")
            flush_lds()
            run(hooks.get(T, []))
            if T < 11:
                fs(8 + reg, 3 + T)
        flush_side()

    def c1_fetch(reg):
        def f():
            gcheck(C_FB if reg else C_FA, 107)
            if reg == 0:
                for u in range(2):
                    e("ds_read2_b32 %s, v96 offset0:%d offset1:%d" % (vr(RN + 2 * u, 2), 32 + 16 * u, 16 * u))
                    k.lg.issue(("C1", reg))
            for l in range(4):
                e("ds_read_b128 %s, v%d offset:%d" % (vr(C1[l], 4), vCSA, 256 * reg + 64 * l))
                k.lg.issue(("C1", reg))
        return f

    def h_out(reg, cw, tag):
        garrive(cw)
        e("s_add_u32 s%d, s%d, %d" % (sT2, sHS, 2048 * reg))
        e("s_add_u32 s%d, s%d, %d" % (sT3, sHS, 2048 * reg + 56 * 1024))
        k.wait_lg(("C1", reg))
        for pr in range(2):
            for u in range(2):
                o = HO + (pr * 2 + u) * 4
                for l in (2 * pr, 2 * pr + 1):
                    a = ACC + (l * 2 + u) * 4
                    for r in (0, 2):
                        e("v_pk_fma_f32 %s, %s, %s, %s op_sel_hi:[1,0,1]" % (vr(a + r, 2), vr(C1[l] + r, 2), vr(RN + 2 * u, 2), vr(a + r, 2)))
                for l in (2 * pr, 2 * pr + 1):
                    a = ACC + (l * 2 + u) * 4
                    e("v_cvt_pk_bf16_f32 v%d, v%d, v%d" % (o + (l & 1) * 2, a, a + 1))
                    e("v_cvt_pk_bf16_f32 v%d, v%d, v%d" % (o + (l & 1) * 2 + 1, a + 2, a + 3))
                for i in range(4):
                    e("v_pk_max_i16 v%d, v%d, 0" % (o + i, o + i))
                HS = P("HS", 0)
                if HS != 1:
                    e("buffer_store_dwordx4 %s, v%d, %s, s%d offen offset:%d sc1" % (vr(o, 4), vL16, srd(SWS), sT2 + u, 1024 * pr))
                    k.vm.issue(tag)
                if HS:
                    e("buffer_store_dwordx4 %s, v%d, %s, s%d offen offset:%d" % (vr(o, 4), vL16, srd(SWS), sT2 + u, 1024 * pr))
                    k.vm.issue(tag)

    def land(reg, lo, hi, cw):
        def f():
            k.wait_vm([("W1", reg, kk) for kk in range(lo, hi)])
            garrive(cw)
        return f

    sch["gap"] = P("GAPA", 4)
    for kk in range(8):
        side.extend(w1dma(1, kk))
    ha = {P("LWA", 3): [land(0, 4, 8, C_WA2)], P("LB1", 11): [land(1, 0, 4, C_WB1)], P("WTD", 2): [wt_d], P("LB2", 13): [land(1, 4, 8, C_WB2)], 14: [c1_fetch(0)]}
    def w2l2(part, nparts):
        def f():
            n = 56 // nparts
            e("s_lshr_b32 s%d, s2, 3" % sT0)
            e("s_lshl2_add_u32 s%d, s%d, s%d" % (sT0, sT0, sRW))
            e("s_and_b32 s%d, s2, 1" % sT1)
            e("s_lshl_b32 s%d, s%d, 7" % (sT1, sT1))
            e("s_add_u32 s%d, s%d, s%d" % (sT0, sT0, sT1))
            e("s_mul_i32 s%d, s%d, %d" % (sT0, sT0, 56 * 128))
            e("v_lshlrev_b32 v19, 7, v%d" % vLANE)
            e("s_mov_b32 m0, 0x%x" % (L_DUM - part * n * 128 % 4096 * 0))
            m = ((1 << n) - 1) << (part * n)
            e("s_mov_b32 exec_lo, 0x%x" % (m & 0xffffffff))
            e("s_mov_b32 exec_hi, 0x%x" % (m >> 32))
            e("buffer_load_dword v19, %s, s%d offen lds" % (srd(SW2), sT0))
            k.vm.issue("touch")
            e("s_mov_b64 exec, -1")
        return f
    W2A = [int(x_) for x_ in os.environ.get("W2A", "").split(",") if x_]
    for i_, T_ in enumerate(W2A):
        ha.setdefault(T_, []).append(w2l2(i_, len(W2A)))
    gpass(0, ha, C_WA2)
    k.stamp(5)
    h_out(0, C_CSA, "ha")
    k.stamp(6)

    for l in range(4):
        e("v_subrev_u32 v%d, 0x%x, v%d" % (TRB[l], LB, TRB[l]))
    gcheck(C_WB1, 97)

    def w2_dma(late, j):
        lb = (LA if late else LB) + j * 8192

        def f0():
            e("s_add_u32 m0, s%d, %d" % (sM2, lb))
            e("s_lshl_b32 s%d, s%d, 17" % (sDT, TV[j]))
            e("s_add_u32 s%d, s%d, s%d" % (sDT, sDT, sW2B))
            if late:
                e("s_add_u32 s%d, s%d, 0x10000" % (sDT, sDT))
            e("buffer_load_dwordx4 v%d, %s, s%d offen lds" % (vD2, srd(SW2), sDT))
            k.vm.issue(("W2", late))

        def f1():
            e("s_add_u32 m0, s%d, %d" % (sM2, lb + 1024))
            e("s_add_u32 s%d, s%d, 8192" % (sDT, sDT))
            e("buffer_load_dwordx4 v%d, %s, s%d offen lds" % (vD2, srd(SW2), sDT))
            k.vm.issue(("W2", late))
        return [f0, f1]

    def rdW(n):
        items = []
        for l in range(4):
            for hh in range(2):
                def f(l=l, hh=hh):
                    e("ds_read_b64_tr_b16 %s, v%d offset:%d" % (vr(AF + (n & 1) * 16 + 4 * l + 2 * hh, 2), TR2[l], (n % 14) * 4096 + hh * 2048))
                    k.lg.issue(("W2R", n))
                items.append(f)
        return items

    def hload(n):
        late, m = n // 14, n % 14

        def item(u):
            def f():
                if u == 0 and m % 2 == 0:
                    e("s_lshl_b32 s%d, s%d, 12" % (sXT, TV[m // 2]))
                    e("s_add_u32 s%d, s%d, s%d" % (sXT, sXT, sHB))
                e("buffer_load_dwordx4 %s, v%d, %s, s%d offen offset:%d sc1" % (X(u, m), HV[u], srd(SWS), sXT, 2048 * late + 1024 * (m & 1)))
                k.vm.issue(("H", n))
            return f
        return [item(0), item(1)]

    def pubHA():
        k.wait_vm("ha")
        publish("s%d" % sFH)
        e("s_add_u32 s%d, s%d, 0x%x" % (sFH, sFH, FHB_D))

    def landW(late, cw):
        def f():
            k.wait_vm(("W2", late))
            garrive(cw)
        return f
    hb = {T: [] for T in range(16)}
    hb[P("W2T0", 0)].append(lambda: gcheck(C_CSA, 98))
    hb[P("W2T0", 0)].append(lambda: [side.extend(w2_dma(0, j)) for j in range(7)])
    hb[CFB].append(c1_fetch(1))
    if WLE:
        hb[8].append(lambda: garrive(C_HB))
        hb[CFB].append(lambda: gcheck(C_HB, 97))
        hb[CFB].append(lambda: [side.extend(w2_dma(1, j)) for j in range(WLE)])
    hb[P("PHA", 3)].append(pubHA)
    HLA = P("HLA", 6)
    HE = P("HE", 17)
    hb[min(HE - 2, P("PPA", 12))].append(lambda: poll_issue("ph", vFH, "s%d" % sFHC, 31))
    if HE < 16:
        def hearly():
            poll_check("ph", vFH, "s%d" % sFHC, 31)
            for n in range(HLA):
                side.extend(hload(n))
            sch["gap"] = P("GAPH", 2)
        hb[HE].append(hearly)

    def w2touch():
        e("s_lshr_b32 s%d, s2, 6" % sT0)
        e("s_lshl2_add_u32 s%d, s%d, s%d" % (sT0, sT0, sRW))
        e("s_mul_i32 s%d, s%d, 28" % (sT0, sT0))
        e("v_add_u32 v19, s%d, v%d" % (sT0, vLANE))
        e("v_and_b32 v30, 0xffc0, v19")
        e("v_add3_u32 v19, v19, v30, 64")
        e("v_lshlrev_b32 v19, 10, v19")
        e("s_and_b32 s%d, s2, 1" % sT0)
        e("s_mul_i32 s%d, s%d, %d" % (sT0, sT0, 896 * 1024))
        e("s_lshl_b32 s%d, s%d, 7" % (sT1, sDB))
        e("s_add_u32 s%d, s%d, s%d" % (sT0, sT0, sT1))
        e("s_mov_b32 m0, 0x%x" % L_DUM)
        e("s_mov_b64 exec, 0xfffffff")
        e("buffer_load_dword v19, %s, s%d offen lds" % (srd(SW2), sT0))
        k.vm.issue("touch")
        e("s_mov_b64 exec, -1")
    if P("W2L", 99) < 16:
        hb[P("W2L", 99)].append(w2touch)
    hb[P("LE1", 13)].append(landW(0, C_E1))
    sch["gap"] = P("GAPB", 4)
    gpass(1, hb, C_WB2)
    k.stamp(7)
    fs(10, 2)
    if HE == 16:
        poll_check("ph", vFH, "s%d" % sFHC, 31)
        fs(10, 3)
        for n in range(HLA):
            run(hload(n))
    fs(10, 4)
    gpeek(C_E1, 97)
    h_out(1, C_CSB, "hb")
    fs(10, 5)
    if HE == 17:
        poll_check("ph", vFH, "s%d" % sFHC, 31, pre=["    s_waitcnt vmcnt(0)"] + publish_lines("s%d" % sFH))
        for n in range(HLA):
            run(hload(n))
    k.stamp(8)
    gcheck(C_E1, 97)
    run(rdW(0))
    gpeek(C_CSB, 98)
    sch["gap"] = P("GAP3", 2)
    sch["nl"] = P("NLD", 2)
    fs(7, 2)
    fs(10, 6)
    LCH = 14 - P("LLA", 5)
    nxt = HLA
    wl = [it for j in range(WLE, 7) for it in w2_dma(1, j)]
    for n in range(28):
        k.wait_lg(("W2R", n))
        if n == LCH:
            poll_check("phb", vFH, "s%d" % sFHC, 31)
        lim = 14 if n < LCH else 28
        cnt = 0
        while nxt < min(lim, n + 1 + HLA) and nxt - 14 < n and cnt < 2:
            side.extend(hload(nxt))
            nxt += 1
            cnt += 1
        if n == 0:
            gcheck(C_CSB, 98)
        if wl:
            side.extend(wl[:2])
            wl = wl[2:]
        k.wait_vm(("H", n))
        if n == P("PHB", 0):
            k.wait_vm("hb")
            publish("s%d" % sFH)
        if n == LCH - P("PPB", 1):
            e("s_add_u32 s%d, s%d, 0x%x" % (sFHC, sFHC, FHB_D))
            poll_issue("phb", vFH, "s%d" % sFHC, 31)
        if n == 10:
            landW(1, C_L1)()
        if n == 12:
            gpeek(C_L1, 107)
        if n == P("ZG1", 12):
            garrive(C_ST)
        if n == P("ZGO", 15):
            garrive(C_WT)
        if n == 13:
            for l in range(4):
                e("v_subrev_u32 v%d, 0x%x, v%d" % (TR2[l], LB, TR2[l]))
            gcheck(C_L1, 107)
        if n in (20, 21):
            for i in range(4):
                e("v_mov_b32 v%d, v%d" % (128 + 8 * (n - 20) + 2 * i + 1, vTAG))
        if n + 1 < 28:
            sch["lds"].extend(rdW(n + 1))
        for l in range(4):
            a = vr(AF + (n & 1) * 16 + 4 * l, 4)
            if P("M32", 0):
                c = vr(ACC + 16 * (l & 1), 16)
                mf32(c, a, X(l >> 1, n % 14), c if (n or l > 1) else "0")
                continue
            for u in range(2):
                c = vr(ACC + (u * 4 + l) * 4, 4)
                mf(c, a, X(u, n % 14), c if n else "0")
        flush_side()
        if n % 3 == 2:
            fs(7, 3 + n // 3)
        if n < 7:
            fs(10, 7 + n)
        if 5 <= n < 17:
            fs(11, n - 3)
        if n == 13:
            k.stamp(9)
    k.stamp(10)
    e("s_lshl2_add_u32 s%d, s2, s%d" % (sT1, sRW))
    e("s_lshl_b32 s%d, s%d, 12" % (sT1, sT1))
    e("s_add_u32 s%d, s%d, 0x%x" % (sT1, sT1, YX_OFF))
    k.nop(1)
    fs(12, 2)
    garrive(C_GY)
    for i in range(4):
        e("v_cvt_pk_bf16_f32 v%d, v%d, v%d" % (128 + 4 * i, ACC + 16 + 4 * i, ACC + 17 + 4 * i))
        e("v_cvt_pk_bf16_f32 v%d, v%d, v%d" % (128 + 4 * i + 2, ACC + 18 + 4 * i, ACC + 19 + 4 * i))
        e("buffer_store_dwordx4 %s, v%d, %s, s%d offen offset:%d sc1" % (vr(128 + 4 * i, 4), vL16, srd(SWS), sT1 + (i >> 2), 1024 * (i & 3)))
        k.vm.issue("yst")
    xe_load()
    e("s_xor_b32 s%d, s%d, 0x4000" % (sT1, sT1))
    e("s_lshl_b32 s%d, s%d, 12" % (sT4, sRW))
    e("v_add_u32 v10, s%d, v%d" % (sT4, vYW))
    for dt in range(1, 4):
        e("v_xor_b32 v%d, %d, v10" % (10 + dt, 64 * dt))
    fs(12, 3)
    gwait(C_GY)
    fs(12, 4)
    if P("YW", 1):
        k.wait_vm("yst")
    fs(12, 5)
    YR = 160
    e("s_mov_b32 s%d, 0" % sCNT)
    k.lab("L_yx")
    for i in range(4):
        e("buffer_load_dwordx4 %s, v%d, %s, s%d offen offset:%d sc1" % (vr(YR + 4 * i, 4), vL16, srd(SWS), sT1 + (i >> 2), 1024 * (i & 3)))
    e("s_waitcnt vmcnt(0)")
    k.vm.clear()
    e("v_min3_u32 v30, v%d, v%d, v%d" % (YR + 1, YR + 3, vTAG))
    e("v_max3_u32 v31, v%d, v%d, v%d" % (YR + 1, YR + 3, vTAG))
    for i in range(1, 4):
        e("v_min3_u32 v30, v%d, v%d, v30" % (YR + 4 * i + 1, YR + 4 * i + 3))
        e("v_max3_u32 v31, v%d, v%d, v31" % (YR + 4 * i + 1, YR + 4 * i + 3))
    e("v_cmp_ne_u32 vcc, v30, v31")
    e("s_cmp_lg_u64 vcc, 0")
    e("s_cbranch_scc1 L_yxs")
    k.lab("L_yxb")
    fs(12, 6)
    tail.extend(["L_yxs:", "    s_add_u32 s%d, s%d, 1" % (sCNT, sCNT), "    s_cmp_lt_u32 s%d, 0x40000" % sCNT,
                 "    s_cbranch_scc0 L_yxb", "    s_sleep 6", "    s_branch L_yx"])
    k.stamp(11)
    e("s_bitcmp1_b32 s2, 0")
    e("s_cselect_b64 vcc, -1, 0")
    e("v_cndmask_b32 v%d, v%d, v%d, vcc" % (RN, RN + 1, RN + 3))
    for i in range(8):
        e("v_and_b32 v%d, 0xffff0000, v%d" % (YR + 2 * i + 1, YR + 2 * i))
        e("v_lshlrev_b32 v%d, 16, v%d" % (YR + 2 * i, YR + 2 * i))
    for i in range(8):
        e("v_pk_add_f32 %s, %s, %s" % (vr(ACC + 2 * i, 2), vr(ACC + 2 * i, 2), vr(YR + 2 * i, 2)))
    for i in range(8):
        e("v_pk_mul_f32 %s, %s, %s op_sel_hi:[1,0]" % (vr(ACC + 2 * i, 2), vr(ACC + 2 * i, 2), vr(RN, 2)))
    for dt in range(4):
        e("ds_write_b128 v%d, %s" % (10 + dt, vr(ACC + 4 * dt, 4)))
    k.lab("L_final")
    main_lines = k.lines

    k.lines = []
    k.vm.q, k.lg.q = list(q_vm), []
    k.lab("L_fft")
    if P("FP0", 0):
        e("s_setprio 1")
    sCC, sPL, sZR, sZI, sSC, sFXC, sGB, sFX = 48, 50, 51, 52, 53, 54, 55, 56
    C64, S64, N64, C32, S32, N32, T1C, T1S, T2C, T2S = 128, 136, 144, 152, 160, 168, 176, 184, 192, 200
    XB, PA, FB, SUM, GR, ONES = 32, 64, 96, 208, 216, 224

    def fgen(tl):
        t = 32
        e("s_lshl_b32 s%d, s%d, 5" % (sT0, sCBK))
        e("v_add_u32 v%d, s%d, v%d" % (t, sT0, vC))
        if tl:
            e("v_add_u32 v%d, 16, v%d" % (t, t))
        e("v_lshrrev_b32 v%d, 1, v%d" % (t + 1, t))
        e("v_and_b32 v%d, 1, v%d" % (t + 2, t))
        e("v_cvt_f32_u32 v%d, v%d" % (t + 2, t + 2))
        e("v_mul_f32 v%d, %s, v%d" % (t + 2, hexf(0.25), t + 2))
        if tl == 0:
            e("v_cmp_eq_u32 vcc, 1, v%d" % t)
            e("v_mov_b32 v%d, 256" % (t + 3))
        e("s_lshl_b32 s%d, s%d, 6" % (sT0, sR))
        if tl == 0:
            e("v_cndmask_b32 v%d, v%d, v%d, vcc" % (t + 1, t + 1, t + 3))
            e("v_cndmask_b32 v%d, v%d, 0, vcc" % (t + 2, t + 2))
        e("v_cvt_f32_u32 v%d, v%d" % (t + 1, t + 1))
        e("v_mul_f32 v%d, %s, v%d" % (t + 1, hexf(1.0 / 512), t + 1))
        e("v_lshl_add_u32 v%d, v%d, 3, s%d" % (t + 3, vQ, sT0))
        e("v_cvt_f32_u32 v%d, v%d" % (t + 3, t + 3))
        e("v_fma_f32 v%d, v%d, v%d, v%d" % (t + 2, t + 3, t + 1, t + 2))
        e("v_fract_f32 v%d, v%d" % (t + 8, t + 2))
        e("v_mul_f32 v%d, %s, v%d" % (t + 3, hexf(32.0), t + 1))
        e("v_fract_f32 v%d, v%d" % (t + 3, t + 3))
        for jj in range(1, 8):
            e("v_add_f32 v%d, v%d, v%d" % (t + 8 + jj, t + 7 + jj, t + 1))
        for Tf in range(4):
            for jj in range(8):
                e("v_cos_f32 v%d, v%d" % (t + 16 + jj, t + 8 + jj))
            if Tf < 3:
                for jj in range(8):
                    e("v_add_f32 v%d, v%d, v%d" % (t + 8 + jj, t + 8 + jj, t + 3))
            else:
                k.nop(1)
            for d in range(4):
                e("v_cvt_pk_bf16_f32 v%d, v%d, v%d" % (FB + 16 * tl + 4 * Tf + d, t + 16 + 2 * d, t + 17 + 2 * d))
    def prewarm():
        e("s_lshl2_add_u32 s%d, s2, s%d" % (sT0, sRW))
        e("s_lshl_b32 s%d, s%d, 8" % (sT0, sT0))
        e("v_lshlrev_b32 v19, 7, v%d" % vLANE)
        e("s_mov_b64 exec, 3")
        e("buffer_store_dword v19, v19, %s, s%d offen offset:48 sc1" % (srd(SWS), sT0))
        k.vm.issue("pw")
        e("s_mov_b64 exec, -1")
    PW = P("PW", 0)
    fgen(0)
    e("s_waitcnt lgkmcnt(0)")
    e("s_load_dword s%d, s[%d:%d], 0x%x" % (sTAG, SWS, SWS + 1, EPOCH_OFF))
    if PW == 1:
        prewarm()
    fgen(1)
    vSM, vAL, vBE = 16, 17, 18
    e("v_bfe_u32 v19, v%d, 1, 2" % vC)
    e("v_cvt_f32_u32 v19, v19")
    e("v_mul_f32 v19, %s, v19" % hexf(0.25))
    e("v_cos_f32 v%d, v19" % vAL)
    e("v_sin_f32 v%d, v19" % vBE)
    e("v_bfe_u32 v%d, v%d, 1, 1" % (vSM, vC))
    e("v_mul_u32_u24 v%d, 0x8000, v%d" % (vSM, vSM))
    e("v_lshl_or_b32 v%d, v%d, 16, v%d" % (vSM, vSM, vSM))
    e("v_rndne_f32 v%d, v%d" % (vAL, vAL))
    e("v_rndne_f32 v%d, v%d" % (vBE, vBE))
    e("v_lshlrev_b32 v19, 31, v%d" % vC)
    e("v_xor_b32 v%d, v19, v%d" % (vBE, vBE))
    for d in range(4):
        e("v_mov_b32 v%d, 0x3f803f80" % (ONES + d))
    xread_addr(26)
    k.stamp(2)

    def cconst():
        t = 32
        slot = [16 * (jj >> 2) + (jj & 3) for jj in range(8)]
        yield "s_lshl_b32 s%d, s%d, 4" % (sT3, sRW)
        yield "v_add_u32 v%d, s%d, v%d" % (t + 24, sT3, vC)
        yield "v_cvt_f32_u32 v%d, v%d" % (t + 27, vQ)
        yield "v_cvt_f32_u32 v%d, v%d" % (t + 25, t + 24)
        yield "v_mul_f32 v%d, 4.0, v%d" % (t + 27, t + 27)
        yield "v_cvt_f32_u32 v%d, v%d" % (t + 28, vC)
        yield "v_and_b32 v%d, 1, v%d" % (t + 30, vC)
        for jj in range(8):
            yield "v_add_f32 v%d, %s, v%d" % (t + 32 + jj, hexf(float(slot[jj])), t + 27)
        yield "v_mul_u32_u24 v%d, 0x8000, v%d" % (t + 30, t + 30)
        yield "v_mul_f32 v%d, %s, v%d" % (t + 26, hexf(1.0 / 64), t + 25)
        yield "v_lshl_or_b32 v%d, v%d, 16, v%d" % (t + 30, t + 30, t + 30)
        for (scale, Cb, Sb, Nb, flip) in ((t + 26, C64, S64, N64, "v%d" % (t + 30)), (t + 29, C32, S32, N32, "0x80000000")):
            if Cb == C32:
                yield "v_mul_f32 v%d, %s, v%d" % (t + 29, hexf(1.0 / 32), t + 28)
                yield "v_mul_f32 v%d, %s, v%d" % (t + 26, hexf(1.0 / 2048), t + 25)
            for jj in range(8):
                yield "v_mul_f32 v%d, v%d, v%d" % (t + jj, t + 32 + jj, scale)
            for jj in range(8):
                yield "v_cos_f32 v%d, v%d" % (t + 8 + jj, t + jj)
            for jj in range(8):
                yield "v_sin_f32 v%d, v%d" % (t + 16 + jj, t + jj)
            for d in range(4):
                yield "v_cvt_pk_bf16_f32 v%d, v%d, v%d" % (Cb + d, t + 8 + 2 * d, t + 9 + 2 * d)
            for d in range(4):
                yield "v_cvt_pk_bf16_f32 v%d, v%d, v%d" % (Sb + d, t + 16 + 2 * d, t + 17 + 2 * d)
            for d in range(4):
                yield "v_xor_b32 v%d, %s, v%d" % (Cb + 4 + d, flip, Cb + d)
            for d in range(4):
                yield "v_xor_b32 v%d, %s, v%d" % (Sb + 4 + d, flip, Sb + d)
            for d in range(8):
                yield "v_xor_b32 v%d, 0x80008000, v%d" % (Nb + d, Sb + d)
        for i in range(8):
            yield "v_mul_f32 v%d, v%d, v%d" % (t + i, t + 32 + i, t + 26)
        yield "v_cvt_f32_u32 v%d, s%d" % (t + 29, sT3)
        for i in range(8):
            yield "v_cos_f32 v%d, v%d" % (T1C + i, t + i)
            yield "v_sin_f32 v%d, v%d" % (T1S + i, t + i)
        yield "v_mul_f32 v%d, %s, v%d" % (t + 26, hexf(1.0 / 2048), t + 28)
        for r in range(4):
            yield "v_add_f32 v%d, v%d, v%d" % (t + 8 + r, t + 29, t + 32 + r)
        yield "v_add_f32 v%d, %s, v%d" % (t + 25, hexf(16.0 / 2048), t + 26)
        for r in range(4):
            yield "v_mul_f32 v%d, v%d, v%d" % (t + r, t + 8 + r, t + 26)
        for r in range(4):
            yield "v_mul_f32 v%d, v%d, v%d" % (t + 4 + r, t + 8 + r, t + 25)
        for i in range(8):
            yield "v_cos_f32 v%d, v%d" % (T2C + i, t + i)
            yield "v_sin_f32 v%d, v%d" % (T2S + i, t + i)
    CCE = P("CCE", 1)
    if CCE:
        for s_ in cconst():
            e(s_)
    e("v_lshrrev_b32 v19, 2, v%d" % vC)
    e("v_lshl_add_u32 v20, v%d, 3, v19" % vQ)
    e("v_lshlrev_b32 v20, 7, v20")
    e("v_and_b32 v13, 1, v%d" % vC)
    e("v_lshl_add_u32 v20, v13, 3, v20")
    e("v_bfe_u32 v19, v%d, 3, 1" % vC)
    e("v_and_b32 v13, 1, v%d" % vQ)
    e("v_lshl_or_b32 v19, v13, 1, v19")
    e("v_xor_b32 v19, s%d, v19" % sRW)
    e("v_lshlrev_b32 v19, 1, v19")
    e("v_bfe_u32 v13, v%d, 1, 1" % vC)
    e("v_or_b32 v19, v19, v13")
    e("v_lshl_add_u32 v20, v19, 4, v20")
    e("v_add_u32 v13, 0x%x, v20" % LB)
    e("s_lshl_b32 s%d, s%d, 6" % (sT1, sRW))
    e("s_add_u32 s%d, s%d, 0x%x" % (sT1, sT1, L_CS))
    e("v_lshl_add_u32 v231, v%d, 4, s%d" % (vQ, sT1))

    def colsum(reg):
        if reg == 0:
            pass
        else:
            gwait(C_WB1)
            gwait(C_WB2)
        base = 20 if reg else 13
        e("s_setprio %d" % P("SPRIO", 0))

        def rd(T):
            for hh in range(2):
                e("ds_read_b64_tr_b16 %s, v%d offset:%d" % (vr(48 + 4 * (T % 4) + 2 * hh, 2), base, T * 4096 + hh * 512))
                k.lg.issue(("CS", reg, T))
        for T in range(3):
            rd(T)
        for T in range(16):
            if T == 5 and reg == 0:
                gwait(C_WA2)
            if T + 3 < 16:
                rd(T + 3)
            k.wait_lg(("CS", reg, T))
            mfma(vr(240, 4), vr(48 + 4 * (T % 4), 4), vr(ONES, 4), vr(240, 4) if T else "0")
        k.nop(6)
        e("s_mov_b32 exec_lo, 0x00010001")
        e("s_mov_b32 exec_hi, 0x00010001")
        e("ds_write_b128 v231, v[240:243] offset:%d" % (256 * reg))
        e("s_mov_b64 exec, -1")
        garrive(C_FB if reg else C_FA)
        e("s_setprio 0")
    CSF = P("CSF", 0)
    vX1 = 7
    e("v_lshrrev_b32 v7, 1, v%d" % vC)
    e("v_lshlrev_b32 v7, 13, v7")
    e("v_and_b32 v19, 1, v%d" % vC)
    e("v_lshl_add_u32 v7, v19, 6, v7")
    e("v_lshl_add_u32 v7, v%d, 4, v7" % vQ)
    e("s_lshl_b32 s%d, s%d, 9" % (sT0, sRW))
    e("s_add_u32 s%d, s%d, 0x%x" % (sT0, sT0, L_ST))
    e("v_lshl_add_u32 v8, v%d, 2, s%d" % (vC, sT0))
    e("v_lshl_add_u32 v9, v%d, 4, s%d" % (vQ, sT0))
    e("s_lshl4_add_u32 s%d, s%d, s%d" % (sFX, sCBK, sPB))
    e("s_lshl_b32 s%d, s%d, 7" % (sFX, sFX))
    e("s_lshl2_add_u32 s%d, s%d, s%d" % (sFX, sRW, sFX))
    tag_setup()
    k.stamp(3)
    e("s_setprio %d" % P("PRIO", 1))

    def XBf(kk, u, ks):
        return vr(XB + (((kk & 1) * 2 + ks) * 2 + u) * 4, 4)
    for s_ in range(4):
        e("s_barrier")
        fs(6, 2 + s_)
        for kk in (2 * s_, 2 * s_ + 1):
            for ks in range(2):
                for u in range(2):
                    xread(XBf(kk, u, ks), 26, kk, u, ks, ("XR", kk, ks))
        if PW == 2 + s_:
            prewarm()
        if s_ == 2:
            for i in range(32):
                e("v_xor_b32 v%d, v%d, v%d" % (FB + i, vSM, FB + i))
        for kk in (2 * s_, 2 * s_ + 1):
            for ks in range(2):
                T = 2 * kk + ks
                k.wait_lg(("XR", kk, ks))
                for u in range(2):
                    x = XBf(kk, u, ks)
                    mfma(vr(SUM + 4 * u, 4), vr(ONES, 4), x, vr(SUM + 4 * u, 4) if T else "0")
                    mfma(vr(GR + 4 * u, 4), x, x, vr(GR + 4 * u, 4) if T else "0")
                for u in range(2):
                    x = XBf(kk, u, ks)
                    for tl in range(2):
                        p = vr(PA + ((tl * 2 + ((T >> 2) & 1)) * 2 + u) * 4, 4)
                        mfma(p, x, vr(FB + 16 * tl + 4 * (T & 3), 4), "0" if T in (0, 4) else p)
    e("s_barrier")
    k.stamp(4)
    fs(6, 6)
    e("s_setprio %d" % P("XPRIO", 0))
    e("v_and_b32 v19, 3, v%d" % vC)
    k.nop(2)
    for r in range(1, 4):
        e("v_cmp_eq_u32 vcc, %d, v19" % r)
        k.nop(2)
        for u in range(2):
            e("v_cndmask_b32 v%d, v%d, v%d, vcc" % (GR + 4 * u, GR + 4 * u, GR + 4 * u + r))

    def stat_ops(u):
        m, q2, rs_, nm, d0 = SUM + 4 * u, GR + 4 * u, SUM + 4 * u + 1, SUM + 4 * u + 2, SUM + 4 * u + 3
        rnd = lambda v: ["v_cvt_pk_bf16_f32 v%d, v%d, v%d" % (v, v, v), "v_lshlrev_b32 v%d, 16, v%d" % (v, v)]
        return (["v_mul_f32 v%d, %s, v%d" % (m, hexf(1.0 / 512), m),
                 "v_mul_f32 v%d, %s, v%d" % (q2, hexf(1.0 / 512), q2),
                 "v_fma_f32 v%d, -v%d, v%d, v%d" % (q2, m, m, q2),
                 "v_max_f32 v%d, 0, v%d" % (q2, q2)] + rnd(q2) +
                ["v_add_f32 v%d, %s, v%d" % (q2, hexf(1e-5), q2)] + rnd(q2) +
                ["v_sqrt_f32 v%d, v%d" % (q2, q2), "v_sub_f32 v%d, 0, v%d" % (nm, m)] + rnd(q2) +
                ["v_rcp_f32 v%d, v%d" % (rs_, q2)] + rnd(nm) +
                ["v_add_f32 v%d, v%d, v%d" % (d0, m, nm), "v_mul_f32 v%d, %s, v%d" % (d0, hexf(512.0), d0)])
    for a_, b_ in zip(stat_ops(0), stat_ops(1)):
        e(a_)
        e(b_)
    e("s_mov_b32 exec_lo, 0x00f0000f")
    e("s_mov_b32 exec_hi, 0xf0000f00")
    for u in range(2):
        e("ds_write2_b32 v8, v%d, v%d offset0:%d offset1:%d" % (SUM + 4 * u + 1, SUM + 4 * u + 2, 16 * u, 32 + 16 * u))
        e("ds_write_b32 v8, v%d offset:%d" % (SUM + 4 * u + 3, 256 + 64 * u))
    e("s_mov_b64 exec, -1")
    if CSF:
        colsum(0)
    RT, D0T = XB, XB + 8
    for u in range(2):
        e("ds_read_b128 %s, v9 offset:%d" % (vr(RT + 4 * u, 4), 64 * u))
        e("ds_read_b128 %s, v9 offset:%d" % (vr(D0T + 4 * u, 4), 256 + 64 * u))
    for tl in range(2):
        for i in range(8):
            e("v_fmac_f32 v%d, v%d, v%d" % (PA + 16 * tl + i, vAL, PA + 16 * tl + 8 + i))
        for i in range(8):
            e("v_fmac_f32_dpp v%d, v%d, v%d quad_perm:[1,0,3,2] row_mask:0xf bank_mask:0xf" % (PA + 16 * tl + i, PA + 16 * tl + 8 + i, vBE))
    e("v_or_b32 v19, s%d, v%d" % (sCBK, vC))
    e("v_cmp_eq_u32 vcc, 0, v19")
    e("s_lshl_b32 s%d, s%d, 17" % (sT0, sCBK))
    e("s_lshl2_add_u32 s%d, s%d, s%d" % (sT1, sA, sRW))
    e("s_lshr_b32 s%d, s%d, 1" % (sT2, sWP))
    e("s_lshl1_add_u32 s%d, s%d, s%d" % (sT1, sT1, sT2))
    e("s_lshl_b32 s%d, s%d, 7" % (sT1, sT1))
    e("s_add_u32 s%d, s%d, s%d" % (sT0, sT0, sT1))
    e("s_add_u32 s%d, s%d, 0x%x" % (sT1, sT0, X1C_OFF))
    e("s_add_u32 s%d, s%d, 0x%x" % (sT2, sT0, X1C_OFF + 65536))
    e("s_waitcnt lgkmcnt(0)")
    k.lg.clear()
    for i in range(8):
        e("v_cndmask_b32 v%d, v%d, v%d, vcc" % (PA + i, PA + i, D0T + i))
    for tl in range(2):
        for i in range(8):
            e("v_mul_f32 v%d, v%d, v%d" % (PA + 16 * tl + i, PA + 16 * tl + i, RT + i))
        o = 232 + 4 * tl
        for d in range(4):
            e("v_cvt_pk_bf16_f32 v%d, v%d, v%d" % (o + d, PA + 16 * tl + 2 * d, PA + 16 * tl + 2 * d + 1))
        e("buffer_store_dwordx4 %s, v%d, %s, s%d offen sc1" % (vr(o, 4), vX1, srd(SWS), sT1 + tl))
        k.vm.issue("x1st")
    k.stamp(5)
    if not CSF:
        colsum(0)
    e("s_setprio 0")
    GB = 64

    def ggen():
        t0 = 32
        an, stp = 252, 31
        yield "s_lshl_b32 s%d, s%d, 6" % (sT3, sDB)
        yield "s_lshl4_add_u32 s%d, s%d, s%d" % (sT3, sRW, sT3)
        yield "v_add_u32 v%d, s%d, v%d" % (t0, sT3, vC)
        yield "v_lshlrev_b32 v%d, 1, v%d" % (t0 + 2, vQ)
        yield "v_cvt_f32_u32 v%d, v%d" % (t0 + 1, t0)
        yield "v_cvt_f32_u32 v%d, v%d" % (t0 + 2, t0 + 2)
        yield "v_mul_f32 v%d, %s, v%d" % (t0 + 1, hexf(1.0 / 512), t0 + 1)
        yield "v_mul_f32 v%d, %s, v%d" % (stp, hexf(16.0), t0 + 1)
        for dw in range(4):
            yield "v_add_f32 v%d, %s, v%d" % (an + dw, hexf(float(8 * (dw >> 1) + (dw & 1))), t0 + 2)
        yield "v_fract_f32 v%d, v%d" % (stp, stp)
        for dw in range(4):
            yield "v_mul_f32 v%d, v%d, v%d" % (an + dw, an + dw, t0 + 1)
        yield "v_lshlrev_b32 v%d, 31, v%d" % (t0 + 16, vC)
        yield "v_min_u32 v%d, 1, v%d" % (t0 + 17, vQ)
        yield "v_or_b32 v%d, 0x3f800000, v%d" % (t0 + 16, t0 + 16)
        yield "v_sub_u32 v%d, v%d, 1" % (t0 + 17, t0 + 17)
        yield "v_and_b32 v%d, 0xffff0000, v%d" % (t0 + 17, t0 + 17)
        yield "v_and_b32 v17, 1, v%d" % vC
        yield "v_mul_u32_u24 v17, 0x020202, v17"
        yield "v_lshl_or_b32 v17, v17, 8, v17"
        yield "v_xor_b32 v17, 0x03020100, v17"
        yield "v_bfe_u32 v18, v%d, 1, 1" % vC
        yield "v_add_u32 v%d, 1, v%d" % (t0 + 18, vC)
        yield "v_bfe_u32 v%d, v%d, 1, 1" % (t0 + 18, t0 + 18)
        yield "v_lshlrev_b32 v18, 15, v18"
        yield "v_lshl_or_b32 v18, v%d, 31, v18" % (t0 + 18)
        for T in range(8):
            for dw in range(4):
                yield "v_cos_f32 v%d, v%d" % (t0 + 8 + 2 * dw, an + dw)
                yield "v_sin_f32_e64 v%d, -v%d" % (t0 + 9 + 2 * dw, an + dw)
            for dw in range(4):
                yield "v_add_f32 v%d, v%d, v%d" % (an + dw, an + dw, stp)
            for dw in range(4):
                yield "v_cvt_pk_bf16_f32 v%d, v%d, v%d" % (GB + 4 * T + dw, t0 + 8 + 2 * dw, t0 + 9 + 2 * dw)
            for dw in range(4):
                yield "v_perm_b32 v%d, v%d, v%d, v17" % (GB + 32 + 4 * T + dw, GB + 4 * T + dw, GB + 4 * T + dw)
            for dw in range(4):
                yield "v_xor_b32 v%d, v18, v%d" % (GB + 32 + 4 * T + dw, GB + 32 + 4 * T + dw)
            if T == 0:
                yield "v_bfi_b32 v%d, v%d, v%d, v%d" % (GB, t0 + 17, t0 + 16, GB)
    late_setup(1)
    e("v_add_u32 v6, 0x%x, v%d" % (LB, vZB))
    vFL, vFZ, vDZ = 14, 15, 9
    e("s_xor_b32 s%d, s2, 0x38" % sCC)
    flag_voff(vFZ, 63)
    e("v_and_b32 v%d, 0x1ff, v%d" % (vFL, vFZ))
    e("v_min_u32 v19, 1, v%d" % vQ)
    e("v_mul_u32_u24 v19, 0x%x, v19" % (FW_OFF - FX_OFF))
    e("v_add_u32 v%d, v19, v%d" % (vFL, vFL))
    e("s_cmp_eq_u32 s%d, 0" % sCC)
    e("s_cselect_b32 s%d, 0x%x, 0" % (sT0, 16 * 2048))
    e("v_lshrrev_b32 v19, 1, v%d" % vQ)
    e("v_mul_u32_u24 v19, s%d, v19" % sT0)
    e("v_add_u32 v%d, v19, v%d" % (vFL, vFL))
    e("s_lshr_b32 s%d, s%d, 4" % (sFXC, sCC))
    e("s_lshl2_add_u32 s%d, s%d, s%d" % (sFXC, sFXC, sRW))
    e("s_lshl_b32 s%d, s%d, 9" % (sFXC, sFXC))
    e("s_mov_b32 s%d, 0" % sGB)
    XI, TM, TW, DR, DI, PR, PI, CWL = 32, 32, 48, 208, 216, 224, 228, 232

    def xin(pl, v, tt):
        return XI + 4 * ((pl * 2 + v) * 2 + tt)
    e("v_add_u32 v26, 0x%x, v%d" % (L_C1, vYW))
    e("v_xor_b32 v27, 64, v26")
    e("v_xor_b32 v28, 128, v26")
    e("v_xor_b32 v29, 192, v26")
    e("s_lshr_b32 s%d, s%d, 1" % (sT0, sRW))
    e("s_lshl_b32 s%d, s%d, 7" % (sT0, sT0))
    e("s_and_b32 s%d, s%d, 1" % (sT1, sRW))
    e("s_lshl3_add_u32 s%d, s%d, s%d" % (sT0, sT1, sT0))
    e("v_xor_b32 v10, s%d, v26" % sT0)
    e("v_xor_b32 v11, 64, v10")
    e("v_lshlrev_b32 v12, 5, v%d" % vC)
    e("v_lshl_add_u32 v12, v%d, 3, v12" % vQ)
    e("s_lshl_b32 s%d, s%d, 10" % (sT0, sRW))
    e("v_add_u32 v12, s%d, v12" % sT0)
    e("s_lshl_b32 s%d, s%d, 13" % (sZR, sCC))
    e("s_add_u32 s%d, s%d, 0x%x" % (sZR, sZR, ZT_OFF))
    e("s_add_u32 s%d, s%d, 4096" % (sZI, sZR))
    e("s_mov_b32 s%d, %s" % (sSC, hexf(2.0 ** -19)))
    e("s_cmp_eq_u32 s%d, 0" % sCC)
    e("s_cselect_b32 s%d, 0x%x, s%d" % (sZI, OOB, sZI))
    e("s_cselect_b32 s%d, %s, s%d" % (sSC, hexf(2.0 ** -20), sSC))
    e("s_mov_b32 s%d, 0" % sPL)
    e("s_lshl_b32 s%d, s%d, 3" % (sT0, sT1))
    e("v_add_u32 v19, s%d, v%d" % (sT0, vQ))
    e("v_xor_b32 v30, v19, v%d" % vC)
    e("v_lshlrev_b32 v30, 4, v30")
    e("v_lshl_add_u32 v30, v%d, 8, v30" % vQ)
    e("v_xor_b32 v24, 64, v30")
    e("v_lshrrev_b32 v8, 3, v%d" % vLANE)
    e("v_and_b32 v9, 7, v%d" % vLANE)
    e("v_lshlrev_b32 v19, 1, v%d" % vQ)
    e("v_xor_b32 v19, v19, v9")
    e("v_lshlrev_b32 v19, 4, v19")
    e("v_lshl_add_u32 v%d, v8, 12, v19" % vDZ)
    k.wait_vm("x1st")
    publish("s%d" % sFX)
    if PW == 6:
        prewarm()
    xe_load()
    k.stamp(6)
    pre = ([] if CCE else list(cconst())) + ["v_mul_f32 v%d, s%d, v%d" % (T2C + i, sSC, T2C + i) for i in range(16)]
    gl = list(ggen())
    GE = P("GE", 152)
    pre += gl[:GE]
    gl = gl[GE:]
    n2 = max(0, len(pre) - P("PFXL", 0))
    cs1 = min(n2, P("CS1", 72))
    for s_ in pre[:cs1]:
        e(s_)
    colsum(1)
    if P("NOFFT", 0):
        e("s_branch L_final")
    for s_ in pre[cs1:n2]:
        e(s_)
    if P("SP", 0):
        Q = [16, 20, 56, 60]
        e("s_mov_b32 s%d, s%d" % (sT3, sTAG))
        e("s_mov_b32 s%d, s%d" % (sT4, sTAG))
        e("s_mov_b32 s%d, 0" % sCNT)
        k.lab("L_sp")
        for i in range(4):
            e("s_add_u32 s%d, s%d, %d" % (sT0, sFXC, 128 * i))
            e("s_load_dwordx4 s[%d:%d], s[%d:%d], s%d glc" % (Q[i], Q[i] + 3, SWS, SWS + 1, sT0))
        e("s_waitcnt lgkmcnt(0)")
        k.lg.clear()
        for i in range(4):
            for h in range(2):
                e("s_xor_b64 s[%d:%d], s[%d:%d], s[%d:%d]" % (Q[i] + 2 * h, Q[i] + 2 * h + 1, Q[i] + 2 * h, Q[i] + 2 * h + 1, sT3, sT4))
        for i in range(4):
            e("s_or_b64 s[%d:%d], s[%d:%d], s[%d:%d]" % (Q[i], Q[i] + 1, Q[i], Q[i] + 1, Q[i] + 2, Q[i] + 3))
        e("s_or_b64 s[16:17], s[16:17], s[20:21]")
        e("s_or_b64 s[56:57], s[56:57], s[60:61]")
        e("s_or_b64 s[16:17], s[16:17], s[56:57]")
        e("s_cbranch_scc0 L_spx")
        e("s_sleep %d" % P("SPS", 4))
        e("s_add_u32 s%d, s%d, 1" % (sCNT, sCNT))
        e("s_cmp_lt_u32 s%d, 0x40000" % sCNT)
        e("s_cbranch_scc1 L_sp")
        k.lab("L_spx")
    poll_issue("pfx", vFL, "s%d" % sFXC, 13)
    for s_ in pre[n2:]:
        e(s_)
    k.stamp(7)
    e("s_setprio %d" % P("CPRIO", 1))
    poll_check("pfx", vFL, "s%d" % sFXC, 13)
    k.stamp(8)

    def gbar_lines():
        return ["    s_add_u32 s%d, s%d, 4" % (sGB, sGB)] + garrive_lines(C_F) + gwait_lines(C_F, "s%d" % sGB)

    def gbar():
        k.lines.extend(gbar_lines())
        k.lg.clear()
    e("s_lshl_b32 s%d, s%d, 13" % (sT0, sCC))
    e("s_lshl_b32 s%d, s%d, 11" % (sT1, sRW))
    e("s_add_u32 s%d, s%d, s%d" % (sT0, sT0, sT1))
    e("s_add_u32 s%d, s%d, 0x%x" % (sT2, sT0, X1C_OFF))
    e("s_add_u32 m0, s%d, 0x%x" % (sT1, L_C1))
    k.nop(1)
    e("buffer_load_dwordx4 v30, %s, s%d offen sc1 lds" % (srd(SWS), sT2))
    k.vm.issue("cin")
    e("buffer_load_dwordx4 v24, %s, s%d offen offset:1024 sc1 lds" % (srd(SWS), sT2))
    k.vm.issue("cin")
    e("s_add_u32 s%d, s%d, 0x%x" % (sT2, sT0, WT_OFF))
    for v in range(2):
        e("buffer_load_dwordx4 %s, v%d, %s, s%d offen offset:%d sc1" % (vr(CWL + 4 * v, 4), vL16, srd(SWS), sT2, v * 1024))
        k.vm.issue("cw")
    e("s_add_u32 s%d, s%d, 0x%x" % (sT2, sT2, 256 * 8192))
    e("s_cmp_eq_u32 s%d, 0" % sCC)
    e("s_cselect_b32 s%d, s%d, 0x%x" % (sT2, sT2, OOB))
    for v in range(2):
        e("buffer_load_dwordx4 %s, v%d, %s, s%d offen offset:%d sc1" % (vr(CWL + 8 + 4 * v, 4), vL16, srd(SWS), sT2, v * 1024))
        k.vm.issue("cw")
    k.wait_vm("cin")
    gbar()
    k.stamp(9)
    k.lab("L_ccol")
    for pl in range(2):
        for v in range(2):
            for tt in range(2):
                e("ds_read_b128 %s, v%d offset:%d" % (vr(xin(pl, v, tt), 4), 26 + 2 * tt + pl, v * 4096))
    e("s_waitcnt lgkmcnt(0)")
    e("s_cmp_eq_u32 s%d, 0" % sCC)
    e("s_cbranch_scc1 L_creal")
    k.lab("L_cplx")
    tail.append("L_creal:")
    tail.append("    s_cmp_eq_u32 s%d, 0" % sPL)
    tail.append("    s_cbranch_scc1 L_c0")
    for i in range(16):
        tail.append("    v_mov_b32 v%d, v%d" % (XI + i, XI + 16 + i))
    tail.append("L_c0:")
    for i in range(16):
        tail.append("    v_mov_b32 v%d, 0" % (XI + 16 + i))
    tail.append("    s_nop 1")
    tail.append("    s_branch L_cplx")
    for v in range(2):
        dr, di = vr(DR + 4 * v, 4), vr(DI + 4 * v, 4)
        for tt in range(2):
            mfma(dr, vr(xin(0, v, tt), 4), vr(C64 + 4 * tt, 4), dr if tt else "0")
            mfma(di, vr(xin(1, v, tt), 4), vr(C64 + 4 * tt, 4), di if tt else "0")
            mfma(dr, vr(xin(1, v, tt), 4), vr(S64 + 4 * tt, 4))
            mfma(di, vr(xin(0, v, tt), 4), vr(N64 + 4 * tt, 4))

    def cmul(cr, ci, conj):
        for h in range(2):
            for i in (4 * h, 4 * h + 2):
                e("v_pk_mul_f32 %s, %s, %s" % (vr(TM + i, 2), vr(DR + i, 2), vr(cr + i, 2)))
                e("v_pk_mul_f32 %s, %s, %s" % (vr(TM + 8 + i, 2), vr(DI + i, 2), vr(cr + i, 2)))
            neg = " neg_lo:[1,0,0] neg_hi:[1,0,0]"
            for i in (4 * h, 4 * h + 2):
                e("v_pk_fma_f32 %s, %s, %s, %s%s" % (vr(TM + i, 2), vr(DI + i, 2), vr(ci + i, 2), vr(TM + i, 2), "" if conj else neg))
                e("v_pk_fma_f32 %s, %s, %s, %s%s" % (vr(TM + 8 + i, 2), vr(DR + i, 2), vr(ci + i, 2), vr(TM + 8 + i, 2), neg if conj else ""))
        for d in range(4):
            e("v_cvt_pk_bf16_f32 v%d, v%d, v%d" % (PR + d, TM + 2 * d, TM + 2 * d + 1))
            e("v_cvt_pk_bf16_f32 v%d, v%d, v%d" % (PI + d, TM + 8 + 2 * d, TM + 9 + 2 * d))
        k.nop(2)
    cmul(T1C, T1S, True)
    pr, pi = vr(PR, 4), vr(PI, 4)
    for v in range(2):
        dr, di = vr(DR + 4 * v, 4), vr(DI + 4 * v, 4)
        mfma(dr, vr(C32 + 4 * v, 4), pr, "0")
        mfma(di, vr(C32 + 4 * v, 4), pi, "0")
        mfma(dr, vr(S32 + 4 * v, 4), pi)
        mfma(di, vr(N32 + 4 * v, 4), pr)
    k.wait_vm("cw")
    for i in range(8):
        e("v_lshlrev_b32 v%d, 16, v%d" % (TW + i, CWL + i))
        e("v_and_b32 v%d, 0xffff0000, v%d" % (TW + 8 + i, CWL + i))
    cmul(TW, TW + 8, False)
    for v in range(2):
        dr, di = vr(DR + 4 * v, 4), vr(DI + 4 * v, 4)
        mfma(dr, pr, vr(C32 + 4 * v, 4), "0")
        mfma(di, pi, vr(C32 + 4 * v, 4), "0")
        mfma(dr, pi, vr(N32 + 4 * v, 4))
        mfma(di, pr, vr(S32 + 4 * v, 4))
    k.nop(4)
    cmul(T2C, T2S, False)
    for v in range(2):
        e("ds_write_b64 v10, %s offset:%d" % (vr(PR + 2 * v, 2), 8192 + v * 4096))
        e("ds_write_b64 v11, %s offset:%d" % (vr(PI + 2 * v, 2), 8192 + v * 4096))
    e("s_waitcnt lgkmcnt(0)")
    gbar()
    for v in range(2):
        for tt in range(2):
            for pl in range(2):
                e("ds_read_b128 %s, v%d offset:%d" % (vr(xin(pl, v, tt), 4), 26 + 2 * tt + pl, 8192 + v * 4096))
                k.lg.issue(("cy", v, tt))
    for v in range(2):
        dr, di = vr(DR + 4 * v, 4), vr(DI + 4 * v, 4)
        for tt in range(2):
            k.wait_lg(("cy", v, tt))
            mfma(dr, vr(C64 + 4 * tt, 4), vr(xin(0, v, tt), 4), dr if tt else "0")
            mfma(di, vr(C64 + 4 * tt, 4), vr(xin(1, v, tt), 4), di if tt else "0")
            mfma(dr, vr(N64 + 4 * tt, 4), vr(xin(1, v, tt), 4))
            mfma(di, vr(S64 + 4 * tt, 4), vr(xin(0, v, tt), 4))
    for v in range(2):
        if v:
            k.nop(4)
        for d in range(2):
            e("v_cvt_pk_bf16_f32 v%d, v%d, v%d" % (PR + 2 * v + d, DR + 4 * v + 2 * d, DR + 4 * v + 2 * d + 1))
            e("v_cvt_pk_bf16_f32 v%d, v%d, v%d" % (PI + 2 * v + d, DI + 4 * v + 2 * d, DI + 4 * v + 2 * d + 1))
        e("buffer_store_dwordx2 %s, v12, %s, s%d offen offset:%d sc1" % (vr(PR + 2 * v, 2), srd(SWS), sZR, v * 512))
        k.vm.issue("zst")
        e("buffer_store_dwordx2 %s, v12, %s, s%d offen offset:%d sc1" % (vr(PI + 2 * v, 2), srd(SWS), sZI, v * 512))
        k.vm.issue("zst")
    e("s_or_b32 s%d, s%d, s%d" % (sT0, sCC, sPL))
    if not P("NO256", 0):
        e("s_cbranch_scc0 L_csecond")
    sec = ["L_csecond:", "    s_mov_b32 s%d, 1" % sPL, "    s_add_u32 s%d, s%d, 4096" % (sZR, sZR)]
    for i in range(8):
        sec.append("    v_mov_b32 v%d, v%d" % (CWL + i, CWL + 8 + i))
    sec.extend(gbar_lines())
    sec.append("    s_branch L_ccol")
    tail.extend(sec)
    k.stamp(10)
    fs(7, 2)
    e("s_lshr_b32 s%d, s%d, 2" % (sT4, sCC))
    e("s_lshl_b32 s%d, s%d, 6" % (sT1, sRW))
    e("s_add_u32 s%d, s%d, s%d" % (sT4, sT4, sT1))
    e("s_lshl_b32 s%d, s%d, 7" % (sT4, sT4))
    e("s_and_b32 s%d, s%d, 3" % (sT1, sCC))
    e("s_lshl2_add_u32 s%d, s%d, s%d" % (sT4, sT1, sT4))
    e("s_add_u32 s%d, s%d, 0x%x" % (sT4, sT4, FZ_OFF))
    sFZC = sFXC
    e("s_lshl3_add_u32 s%d, s%d, s%d" % (sFZC, sWP, sRW))
    e("s_lshl_b32 s%d, s%d, 10" % (sFZC, sFZC))
    e("s_add_u32 s%d, s%d, 0x%x" % (sFZC, sFZC, FZ_OFF + 4096))
    e("v_and_b32 v%d, 0x3ff, v%d" % (vFZ, vFZ))
    sZB, sZM = sZR, sZI
    e("s_lshl_b32 s%d, s%d, 18" % (sZB, sRW))
    e("s_lshl_b32 s%d, s%d, 10" % (sT1, sWP))
    e("s_add_u32 s%d, s%d, s%d" % (sZB, sZB, sT1))
    e("s_lshl_b32 s%d, s%d, 7" % (sT1, sA))
    e("s_add_u32 s%d, s%d, s%d" % (sZB, sZB, sT1))
    e("s_lshl_b32 s%d, s%d, 13" % (sZM, sRW))
    e("s_lshl_b32 s%d, s%d, 6" % (sT1, sRW))
    e("v_xor_b32 v20, s%d, v26" % sT1)
    k.wait_vm("zst")
    fs(7, 3)
    publish("s%d" % sT4)
    e("s_setprio 0")
    for s_ in gl:
        e(s_)
    TRZ = [[16, 17, 18, 7], [26, 27, 28, 29]]
    ZH = LB + 57344
    e("v_add_u32 v19, 0x%x, v6" % (ZH - LB))
    for pt in range(4):
        e("v_xor_b32 v%d, %d, v6" % (TRZ[0][pt], 32 * pt))
        e("v_xor_b32 v%d, %d, v19" % (TRZ[1][pt], 32 * pt))
    gbar()
    AS, ZF = 208, 128

    def zr(T, pt):
        for hh in range(2):
            r = ZF + ((T % 4) * 4 + pt) * 4 + 2 * hh
            e("ds_read_b64_tr_b16 %s, v%d offset:%d" % (vr(r, 2), TRZ[T >> 3][pt], (T & 7) * 4096 + hh * 2048))
            k.lg.issue(("ZR", T, pt))

    def zfetch(h_):
        e("s_setprio 1")
        gwait(C_ST if h_ else C_WT)
        poll_issue(("pz", h_), vFZ, "s%d" % sFZC, 30)
        e("s_add_u32 s%d, s%d, 0x%x" % (sDT, sZB, ZT_OFF + h_ * 256 * 4096 - 32768))
        poll_check(("pz", h_), vFZ, "s%d" % sFZC, 30)
        for ee in range(8):
            e("s_add_u32 m0, s%d, %d" % (sZM, (ZH if h_ else LB) + ee * 1024))
            e("s_add_u32 s%d, s%d, 32768" % (sDT, sDT))
            e("buffer_load_dwordx4 v%d, %s, s%d offen sc1 lds" % (vDZ, srd(SWS), sDT))
            k.vm.issue(("Z", h_))
        e("s_setprio %d" % P("EPRIO", 0))

    def ehalf(h_):
        k.wait_vm(("Z", h_))
        gbar()
        seq = [(T, pt) for T in range(8 * h_, 8 * h_ + 8) for pt in range(4)]
        LA_ = 6
        for n in range(LA_):
            zr(*seq[n])
        for n, (T, pt) in enumerate(seq):
            if n + LA_ < 32:
                zr(*seq[n + LA_])
            k.wait_lg(("ZR", T, pt))
            c = vr(AS + 4 * pt, 4)
            mfma(c, vr(GB + 4 * T, 4), vr(ZF + ((T % 4) * 4 + pt) * 4, 4), "0" if T == 8 else c)
    zfetch(1)
    k.stamp(11)
    e("s_sub_u32 s%d, s%d, 4096" % (sFZC, sFZC))
    if P("ZORD", 1):
        zfetch(0)
        ehalf(1)
    else:
        ehalf(1)
        zfetch(0)
    ehalf(0)
    k.nop(8)
    for pt in range(4):
        e("ds_write_b128 v20, %s offset:%d" % (vr(AS + 4 * pt, 4), pt * 4096))
    fs(7, 10)
    e("s_branch L_final")
    tail[0:0] = k.lines
    k.lines = main_lines

    e("s_waitcnt vmcnt(0) lgkmcnt(0)")
    k.vm.clear()
    k.lg.clear()
    fs(12, 7)
    e("s_barrier")
    fs(12, 8)
    k.stamp(12)
    YP, SV, U2 = 192, 224, 232
    e("v_add_u32 v10, 0x%x, v%d" % (L_C1, vR0))
    e("v_add_u32 v11, 0x%x, v%d" % (L_C1, vR1))
    for h in range(2):
        e("ds_read_b128 %s, v%d" % (vr(YP + 4 * h, 4), vR0 + h))
        k.lg.issue("yp")
    for h in range(2):
        e("ds_read_b128 %s, v%d" % (vr(SV + 4 * h, 4), 10 + h))
        k.lg.issue("sv")
    for i in range(4):
        e("v_lshlrev_b32 v%d, 16, v%d" % (240 + 2 * i, XV + i))
        e("v_and_b32 v%d, 0xffff0000, v%d" % (241 + 2 * i, XV + i))
    k.wait_lg("yp")
    for i in range(8):
        e("v_mul_f32 v%d, %s, v%d" % (U2 + i, hexf(-1.4426950408889634), YP + i))
    for i in range(8):
        e("v_exp_f32 v%d, v%d" % (U2 + i, U2 + i))
    k.wait_lg("sv")
    for i in range(8):
        e("v_mul_f32 v%d, v%d, v%d" % (YP + i, YP + i, SV + i))
    for i in range(8):
        e("v_add_f32 v%d, 1.0, v%d" % (U2 + i, U2 + i))
    for i in range(8):
        e("v_rcp_f32 v%d, v%d" % (U2 + i, U2 + i))
    k.nop(1)
    for i in range(8):
        e("v_fmac_f32 v%d, v%d, v%d" % (240 + i, YP + i, U2 + i))
    for d in range(4):
        e("v_cvt_pk_bf16_f32 v%d, v%d, v%d" % (SV + d, 240 + 2 * d, 241 + 2 * d))
    e("buffer_store_dwordx4 %s, v%d, %s, s%d offen%s" % (vr(SV, 4), vGO, srd(SOUT), sXO, os.environ.get("OFL", " sc1")))
    e("s_or_b32 s%d, s2, s%d" % (sT0, sRW))
    e("s_or_b32 s%d, s%d, s%d" % (sT0, sT0, sHF))
    e("s_cbranch_scc1 L_noep")
    e("s_mov_b32 s%d, 0x%x" % (sT0, EPOCH_OFF))
    publish("s%d" % sT0)
    k.lab("L_noep")
    k.stamp(13)
    if ENC:
        if "ENCB" in os.environ:
            e("s_cmp_lg_u32 s2, %d" % P("ENCB", 0))
            e("s_cbranch_scc1 L_done")
        e("s_waitcnt lgkmcnt(0)")
        e("s_sub_u32 s97, s%d, s66" % (64 + 2 * ENC))
        e("s_add_u32 s97, s97, 6000")
        k.lab("L_espin")
        e("s_memrealtime s[94:95]")
        e("s_waitcnt lgkmcnt(0)")
        e("s_sub_u32 s96, s94, s66")
        e("s_cmp_lt_u32 s96, s97")
        e("s_cbranch_scc1 L_espin")
    elif DIAG:
        e("s_lshl2_add_u32 s%d, s%d, s%d" % (sT0, sHF, sRW))
        e("v_mov_b32 v2, s%d" % sT0)
        k.stamp_flush(SWS, 0, 2, 8)
    k.lab("L_done")
    e("s_endpgm")
    k.lines += tail
    k.lab("L_end")
    return k


HEADER = open(os.path.join(os.path.dirname(os.path.abspath(__file__)), "header.txt")).read()


DOC = """; Generated by gen/gen17.py (own generator). One persistent workgroup per CU, 8 waves:
"""


def main(out):
    k = gen()
    s = HEADER
    s += "; @launch grid=(256,1,1) block=(512,1,1) lds=163840\n"
    s += '.amdgcn_target "amdgcn-amd-amdhsa--gfx950"\n.text\n'
    s += DOC
    s += k.text()
    s += '.section .rodata,"a"\n'
    s += descriptor(k.name, 256, 102 if DIAG else 64)
    open(out, "w").write(s)


if __name__ == "__main__":
    main(sys.argv[1] if len(sys.argv) > 1 else "v17.s")
```

```python
import sys, os
from collections import deque
sys.path.insert(0, os.path.dirname(os.path.abspath(__file__)))
from asmlib import *

NAME = "recurrent_scan__spectral_gfnet__dense_activation_relu__prompt_kernel"


def P(name, default):
    return int(os.environ.get(name, default))


X1C_OFF = 0x0200000
WT_OFF = 0x0400000
H_OFF = 0x0800000
ZT_OFF = 0x1000000
FX_OFF = 0x0000000
FW_OFF = 0x0010000
FH_OFF = 0x0100000
FY_OFF = 0x0048000
YX_OFF = 0x1800000 if DIAG else 0x1200000
FHB_D = 0x0020000
FZ_OFF = 0x0030000
EPOCH_OFF = 0x0040000
WS_BYTES = 0x2000000 if DIAG else 0x1600000
OOB = 0x7f000000
TAGC = 0x9E3779B9
X_BYTES = 2048 * 512 * 2
W_BYTES = 2048 * 257 * 2
W1_BYTES = 512 * 1792 * 2

SX, SWR, SWI, SW1, SW2, SOUT, SWS = 12, 16, 20, 24, 28, 32, 36
sRW, sPB, sCBK, sF0, sHF, sR, sTAG, sA, sWP, sDB = 3, 4, 5, 6, 7, 8, 9, 10, 11, 40
sXO, sRS = 41, 42
sT0, sT1, sT2, sT3, sT4 = 43, 44, 45, 46, 47
sCNT = 49
sXT, sDT = 0, 1

LA, LB, LS = 0, 65536, 131072
L_C1 = LS
L_WT = LS + 16384
L_SCR = LS + 24576
L_CS, L_ST, L_CNT, L_W256, L_DUM = L_SCR, L_SCR + 1024, L_SCR + 3072, L_SCR + 4096, L_SCR + 6144
XSLOT = [LB, LB + 16384, LB + 32768, LB + 49152, LA, LA + 16384, LA + 32768, LA + 49152]

vLANE, vL16, vC, vQ, vTAG, vCNT = 1, 2, 3, 4, 5, 25
vGO, vR0, vR1, vYW, vZB = 0, 22, 23, 21, 124
C_WA2, C_CSA, C_WB1, C_WB2, C_CSB, C_ST, C_WT, C_F, C_E1, C_L1, C_GY, C_FA, C_FB, C_HB = 0, 4, 8, 12, 16, 20, 24, 28, 32, 36, 40, 44, 48, 52


def srd(n):
    return "s[%d:%d]" % (n, n + 3)


def gen():
    k = K(NAME)
    e = k.e
    tail = []
    FS, ENC = P("FS", 0), P("ENC", 0)
    _stamp = k.stamp

    def stamp_n(i, real=False):
        if ENC:
            if i == 1 or i == ENC:
                _stamp(i, True)
            return
        if FS and 2 <= i <= 13:
            return
        _stamp(i, real)
    k.stamp = stamp_n

    def fs(mode, i):
        if FS == mode:
            _stamp(i)

    side = deque()
    sch = {"gap": 3, "n": 0, "lds": deque()}

    def mfma(d, a, b, c=None):
        e("v_mfma_f32_16x16x32_bf16 %s, %s, %s, %s" % (d, a, b, c if c is not None else d))

    def mf(d, a, b, c=None):
        mfma(d, a, b, c)
        sch["n"] += 1
        for _ in range(sch.get("nl", P("NL", 1))):
            if sch["lds"]:
                sch["lds"].popleft()()
        if side and sch["n"] % sch["gap"] == 0:
            side.popleft()()

    def mf32(d, a, b, c):
        e("v_mfma_f32_32x32x16_bf16 %s, %s, %s, %s" % (d, a, b, c))
        for _ in range(P("NL32", 3)):
            if sch["lds"]:
                sch["lds"].popleft()()
        sch["n"] += 2
        if side and sch["n"] % max(2, sch["gap"] // 2 * 2) == 0:
            side.popleft()()

    def flush_lds():
        while sch["lds"]:
            sch["lds"].popleft()()

    def flush_side():
        flush_lds()
        while side:
            side.popleft()()

    def run(items):
        for f in items:
            f()

    def bf16_round(v):
        e("v_cvt_pk_bf16_f32 v%d, v%d, v%d" % (v, v, v))
        e("v_lshlrev_b32 v%d, 16, v%d" % (v, v))

    def publish_lines(soff):
        return ["    s_mov_b64 exec, 1",
                "    buffer_store_dword v%d, off, %s, %s sc1" % (vTAG, srd(SWS), soff),
                "    s_mov_b64 exec, -1"]

    def publish(soff):
        k.lines.extend(publish_lines(soff))
        k.vm.issue("flag")

    pollno = [0]

    def poll_ld(vaddr, soff, vt):
        return "buffer_load_dword v%d, v%d, %s, %s offen sc1" % (vt, vaddr, srd(SWS), soff)

    def poll_issue(tag, vaddr, soff, vt):
        e(poll_ld(vaddr, soff, vt))
        k.vm.issue(tag)

    def poll_check(tag, vaddr, soff, vt, pre=(), slp=None):
        n = pollno[0]
        pollno[0] += 1
        k.wait_vm(tag)
        e("v_cmp_ne_u32 vcc, v%d, v%d" % (vt, vTAG))
        e("s_cmp_lg_u64 vcc, 0")
        e("s_cbranch_scc1 L_slow%d" % n)
        k.lab("L_back%d" % n)
        tail.append("L_slow%d:" % n)
        tail.extend(pre)
        tail.extend(["    s_mov_b32 s%d, 0" % sCNT,
                     "L_spin%d:" % n,
                     "    s_sleep %d" % (P("SLP", 8) if slp is None else slp),
                     "    s_mov_b64 exec, vcc",
                     "    " + poll_ld(vaddr, soff, vt),
                     "    s_mov_b64 exec, -1",
                     "    s_waitcnt vmcnt(0)",
                     "    v_cmp_ne_u32 vcc, v%d, v%d" % (vt, vTAG),
                     "    s_cmp_lg_u64 vcc, 0",
                     "    s_cbranch_scc0 L_back%d" % n,
                     "    s_add_u32 s%d, s%d, 1" % (sCNT, sCNT),
                     "    s_cmp_lt_u32 s%d, 0x40000" % sCNT,
                     "    s_cbranch_scc1 L_spin%d" % n,
                     "    s_branch L_back%d" % n])

    gbn = [0]

    def gwait_lines(off, target):
        n = gbn[0]
        gbn[0] += 1
        chk = ["    ds_read_b32 v19, v%d offset:%d" % (vCNT, off),
               "    s_waitcnt lgkmcnt(0)",
               "    v_readfirstlane_b32 s%d, v19" % sT0,
               "    s_cmp_lt_u32 s%d, %s" % (sT0, target)]
        tail.append("L_gs%d:" % n)
        tail.append("    s_mov_b32 s%d, 0x400000" % sCNT)
        tail.append("L_gb%d:" % n)
        tail.append("    s_sub_u32 s%d, s%d, 1" % (sCNT, sCNT))
        tail.append("    s_cbranch_scc1 L_gx%d" % n)
        tail.append("    s_sleep %d" % (4 if off in (C_WT, C_ST) else 1))
        tail.extend(chk)
        tail.append("    s_cbranch_scc1 L_gb%d" % n)
        tail.append("    s_branch L_gx%d" % n)
        return chk + ["    s_cbranch_scc1 L_gs%d" % n, "L_gx%d:" % n]

    def garrive_lines(off):
        return ["    v_mov_b32 v19, 1",
                "    s_mov_b64 exec, 1",
                "    ds_add_u32 v%d, v19 offset:%d" % (vCNT, off),
                "    s_mov_b64 exec, -1"]

    def garrive(off):
        k.lines.extend(garrive_lines(off))
        k.lg.issue("arr")

    def gwait(off, target="4"):
        k.lines.extend(gwait_lines(off, target))
        k.lg.clear()

    def gpeek(off, vt):
        e("ds_read_b32 v%d, v%d offset:%d" % (vt, vCNT, off))
        k.lg.issue(("pk", off))

    def gcheck(off, vt):
        n = gbn[0]
        slow = gwait_lines(off, "4")
        k.wait_lg(("pk", off))
        e("v_readfirstlane_b32 s%d, v%d" % (sT0, vt))
        e("s_cmp_lt_u32 s%d, 4" % sT0)
        e("s_cbranch_scc1 L_gs%d" % n)
        k.lab("L_gx%d" % n)

    def flag_voff(vv, n):
        e("v_min_u32 v19, %d, v%d" % (n, vLANE))
        e("v_lshrrev_b32 v%d, 2, v19" % vv)
        e("v_lshlrev_b32 v%d, 7, v%d" % (vv, vv))
        e("v_and_b32 v19, 3, v19")
        e("v_lshl_add_u32 v%d, v19, 2, v%d" % (vv, vv))

    def xread_addr(v0_):
        e("v_lshrrev_b32 v19, 1, v%d" % vC)
        e("v_xor_b32 v19, v19, v%d" % vQ)
        e("v_lshlrev_b32 v19, 4, v19")
        e("v_lshl_add_u32 v19, v%d, 7, v19" % vC)
        e("s_lshl_b32 s%d, s%d, 12" % (sT0, sRW))
        e("v_add_u32 v%d, s%d, v19" % (v0_, sT0))
        e("v_xor_b32 v%d, 64, v%d" % (v0_ + 1, v0_))
        e("v_add_u32 v%d, 0x%x, v%d" % (v0_ + 2, LB, v0_))
        e("v_add_u32 v%d, 0x%x, v%d" % (v0_ + 3, LB, v0_ + 1))

    def xread(dst, v0_, kk, u, ks, tag):
        hi = XSLOT[kk] >= LB
        e("ds_read_b128 %s, v%d offset:%d" % (dst, v0_ + ks + (2 if hi else 0), XSLOT[kk] % 65536 + u * 2048))
        k.lg.issue(tag)

    def tag_setup():
        e("s_waitcnt lgkmcnt(0)")
        k.lg.clear()
        e("s_add_u32 s%d, s%d, 0x%x" % (sTAG, sTAG, TAGC))
        e("v_mov_b32 v%d, s%d" % (vTAG, sTAG))

    def late_setup(hf):
        e("v_lshrrev_b32 v19, 2, v%d" % vC)
        e("v_lshl_add_u32 v19, v%d, 2, v19" % vQ)
        e("v_bfe_u32 v30, v19, 1, 2")
        e("v_lshlrev_b32 v19, 7, v19")
        e("v_and_b32 v31, 1, v%d" % vC)
        e("v_lshl_add_u32 v19, v31, 3, v19")
        e("v_lshlrev_b32 v30, 1, v30")
        e("v_bfe_u32 v31, v%d, 1, 1" % vC)
        e("v_or_b32 v30, v30, v31")
        e("v_lshl_add_u32 v%d, v30, 4, v19" % vZB)
        e("v_lshrrev_b32 v19, 3, v%d" % vLANE)
        if hf:
            e("v_add_u32 v19, 8, v19")
        e("v_and_b32 v30, 7, v%d" % vLANE)
        e("v_lshlrev_b32 v%d, 15, v19" % vGO)
        e("v_lshl_add_u32 v%d, v30, 4, v%d" % (vGO, vGO))
        e("v_lshlrev_b32 v30, 1, v30")
        e("v_xor_b32 v30, v30, v19")
        e("v_lshlrev_b32 v30, 4, v30")
        e("v_lshl_add_u32 v30, v19, 8, v30")
        e("s_lshl_b32 s%d, s%d, 12" % (sT0, sRW))
        e("v_add_u32 v%d, s%d, v30" % (vR0, sT0))
        e("v_xor_b32 v%d, 16, v%d" % (vR1, vR0))
        e("v_xor_b32 v%d, v%d, v%d" % (vYW, vQ, vC))
        e("v_lshlrev_b32 v%d, 4, v%d" % (vYW, vYW))
        e("v_lshl_add_u32 v%d, v%d, 8, v%d" % (vYW, vC, vYW))
        e("s_lshl_b32 s%d, s%d, 19" % (sXO, sWP))
        e("s_lshl2_add_u32 s%d, s%d, s%d" % (sT0, sA, sRW))
        e("s_lshl_b32 s%d, s%d, 10" % (sT0, sT0))
        e("s_add_u32 s%d, s%d, s%d" % (sXO, sXO, sT0))
        e("s_lshl_b32 s%d, s%d, 7" % (sT0, sDB))
        e("s_add_u32 s%d, s%d, s%d" % (sXO, sXO, sT0))
    XV = 248

    def xe_load():
        e("buffer_load_dwordx4 %s, v%d, %s, s%d offen" % (vr(XV, 4), vGO, srd(SX), sXO))
        k.vm.issue("xe")

    e("s_cmp_ge_u32 s2, 256")
    e("s_cbranch_scc1 L_done")
    k.stamp(0)
    k.stamp(1, real=True)
    e("s_load_dwordx2 s[%d:%d], s[0:1], 0" % (SX, SX + 1))
    e("s_load_dwordx2 s[%d:%d], s[0:1], 32" % (SW1, SW1 + 1))
    e("s_load_dwordx2 s[%d:%d], s[0:1], 64" % (SWS, SWS + 1))
    e("s_load_dwordx2 s[%d:%d], s[0:1], 8" % (SWR, SWR + 1))
    e("s_load_dwordx2 s[%d:%d], s[0:1], 16" % (SWI, SWI + 1))
    e("s_load_dwordx2 s[%d:%d], s[0:1], 40" % (SW2, SW2 + 1))
    e("s_load_dwordx2 s[%d:%d], s[0:1], 48" % (SOUT, SOUT + 1))
    e("v_lshrrev_b32 v19, 6, v0")
    e("s_getpc_b64 s[%d:%d]" % (sT1, sT2))
    k.lab("L_pc")
    e("s_andn2_b32 s%d, s2, 7" % sT0)
    e("v_add_lshl_u32 v20, v19, s%d, 7" % sT0)
    e("v_min_u32 v20, L_end-L_pc-4, v20")
    e("v_mov_b32 v21, s%d" % sT2)
    e("v_add_co_u32 v20, vcc, s%d, v20" % sT1)
    e("v_readfirstlane_b32 s%d, v19" % sHF)
    e("v_and_b32 v%d, 63, v0" % vLANE)
    e("v_addc_co_u32 v21, vcc, 0, v21, vcc")
    e("global_load_dword v247, v[20:21], off")
    k.vm.issue("touch")
    for s_, nb in ((SX, X_BYTES), (SWR, W_BYTES), (SWI, W_BYTES), (SW1, W1_BYTES), (SW2, W1_BYTES), (SOUT, X_BYTES), (SWS, WS_BYTES)):
        e("s_mov_b32 s%d, 0x%x" % (s_ + 2, nb))
        e("s_mov_b32 s%d, 0x00020000" % (s_ + 3))
    e("v_and_b32 v%d, 15, v0" % vC)
    e("v_bfe_u32 v%d, v0, 4, 2" % vQ)
    e("v_lshlrev_b32 v%d, 4, v%d" % (vL16, vLANE))
    e("v_mov_b32 v%d, 0x%x" % (vCNT, L_CNT))
    e("s_and_b32 s%d, s2, 7" % sA)
    e("s_lshr_b32 s%d, s2, 6" % sWP)
    e("s_bfe_u32 s%d, s2, 0x30003" % sDB)
    e("s_and_b32 s%d, s%d, 3" % (sRW, sHF))
    e("s_lshr_b32 s%d, s%d, 1" % (sPB, sA))
    e("s_lshl2_add_u32 s%d, s%d, s%d" % (sPB, sPB, sWP))
    e("s_and_b32 s%d, s%d, 1" % (sT0, sA))
    e("s_lshl3_add_u32 s%d, s%d, s%d" % (sCBK, sT0, sDB))
    e("s_lshl1_add_u32 s%d, s%d, s%d" % (sR, sWP, sDB))
    if P("ROT", 44) == 44:
        e("s_add_u32 s%d, s%d, s%d" % (sR, sWP, sDB))
        e("s_and_b32 s%d, s%d, 1" % (sR, sR))
        e("s_lshl_b32 s%d, s%d, 2" % (sR, sR))
    elif P("ROT", 44) == 66:
        e("s_add_u32 s%d, s%d, s%d" % (sR, sWP, sDB))
        e("s_and_b32 s%d, s%d, 3" % (sR, sR))
        e("s_lshl_b32 s%d, s%d, 1" % (sR, sR))
    else:
        e("s_and_b32 s%d, s%d, %d" % (sR, sR, P("ROT", 44)))
    e("s_lshl2_add_u32 s%d, s%d, s%d" % (sRS, sPB, sRW))
    e("s_lshr_b32 s%d, s%d, 1" % (sA, sPB))
    e("s_and_b32 s%d, s%d, 1" % (sT3, sPB))
    e("s_lshl1_add_u32 s%d, s%d, s%d" % (sWP, sT3, sT0))
    e("s_lshr_b32 s%d, s%d, 2" % (sHF, sHF))
    e("s_cbranch_scc1 L_fft")
    q_vm = list(k.vm.q)

    sXB, sM4, sM2, sHS, sFH, sHB, sFHC, sW2B = 48, 57, 58, 59, 60, 61, 62, 63
    TV = [50, 51, 52, 53, 54, 55, 56]
    sRSW, sCG, sRB = sPB, sHF, sCBK
    e("s_lshl_b32 s%d, s%d, 20" % (sXB, sT3))
    e("s_lshl2_add_u32 s%d, s%d, s%d" % (sT1, sA, sRW))
    e("s_lshl_b32 s%d, s%d, 10" % (sT1, sT1))
    e("s_add_u32 s%d, s%d, s%d" % (sXB, sXB, sT1))
    e("v_lshrrev_b32 v10, 3, v%d" % vLANE)
    e("v_and_b32 v12, 7, v%d" % vLANE)
    e("v_xor_b32 v6, v12, v%d" % vQ)
    e("v_lshlrev_b32 v6, 4, v6")
    e("v_lshl_add_u32 v6, v10, 15, v6")
    e("v_xor_b32 v7, 64, v6")
    e("v_add_u32 v7, 0x40000, v7")
    e("s_lshl_b32 s%d, s%d, 12" % (sM4, sRW))
    e("s_lshl_b32 s%d, s%d, 11" % (sM2, sRW))
    e("s_sub_u32 s%d, s%d, s%d" % (sF0, sCBK, sT0))
    e("s_lshl_b32 s%d, s%d, 8" % (sF0, sF0))
    e("s_cmp_eq_u32 s%d, 7" % sDB)
    e("s_cselect_b32 s%d, 0x%x, s%d" % (sF0, 0x08000000, sF0))
    e("s_waitcnt lgkmcnt(0)")
    e("s_load_dword s%d, s[%d:%d], 0x%x" % (sTAG, SWS, SWS + 1, EPOCH_OFF))

    def xdma(kk):
        def item(ee):
            def f():
                e("s_add_u32 m0, s%d, %d" % (sM4, XSLOT[kk] + ee * 1024))
                if ee == 0:
                    e("s_add_u32 s%d, s%d, %d" % (sXT, sR, kk))
                    e("s_and_b32 s%d, s%d, 7" % (sXT, sXT))
                    e("s_lshl_b32 s%d, s%d, 7" % (sXT, sXT))
                    e("s_add_u32 s%d, s%d, s%d" % (sXT, sXT, sXB))
                elif ee == 2:
                    e("s_add_u32 s%d, s%d, 0x80000" % (sXT, sXT))
                else:
                    k.nop(1)
                e("buffer_load_dwordx4 v%d, %s, s%d offen lds" % (6 + (ee & 1), srd(SX), sXT))
                k.vm.issue(("X", kk))
            return f
        return [item(ee) for ee in range(4)]

    def w1dma(reg, kk):
        off = " offset:128" if reg else ""
        lb = (LA - 128 if reg else LB) + kk * 8192

        def f0():
            e("s_add_u32 s%d, s%d, %d" % (sDT, sR, kk))
            e("s_and_b32 s%d, s%d, 7" % (sDT, sDT))
            e("s_mul_i32 s%d, s%d, %d" % (sDT, sDT, 64 * 3584))
            e("s_add_u32 m0, s%d, %d" % (sM2, lb + 128))
            e("s_add_u32 s%d, s%d, s%d" % (sDT, sDT, sF0))
            if reg:
                e("s_add_u32 s%d, s%d, 128" % (sDT, sDT))
            else:
                e("s_add_u32 m0, s%d, %d" % (sM2, lb))
                k.nop(1)
            e("buffer_load_dwordx4 v8, %s, s%d offen lds" % (srd(SW1), sDT))
            k.vm.issue(("W1", reg, kk))

        def f1():
            e("s_add_u32 m0, s%d, %d" % (sM2, (LA if reg else LB) + kk * 8192 + 1024))
            k.nop(1)
            e("buffer_load_dwordx4 v9, %s, s%d offen lds" % (srd(SW1), sDT))
            k.vm.issue(("W1", reg, kk))
        return [f0, f1]

    def mtouch(sr_):
        e("s_lshl2_add_u32 s%d, s2, s%d" % (sT0, sRW))
        e("s_mul_i32 s%d, s%d, %d" % (sT0, sT0, 14 * 128))
        e("v_lshlrev_b32 v19, 7, v%d" % vLANE)
        e("s_mov_b32 m0, 0x%x" % L_DUM)
        e("s_mov_b64 exec, 0x3fff")
        e("buffer_load_dword v19, %s, s%d offen lds" % (srd(sr_), sT0))
        k.vm.issue("touch")
        e("s_mov_b64 exec, -1")
    T1P, T2P = P("T1P", 1), P("T2P", 4)

    def touches(pos):
        if T1P == pos:
            mtouch(SW1)
        if T2P == pos:
            mtouch(SW2)
    run(xdma(0))
    touches(0)
    run(xdma(1))
    touches(1)
    k.stamp(2)
    e("s_lshl_b32 s%d, s%d, 4" % (sT0, sRW))
    e("v_add_u32 v11, s%d, v10" % sT0)
    e("v_mul_u32_u24 v11, 3584, v11")
    e("v_and_b32 v13, 1, v%d" % vQ)
    e("v_lshlrev_b32 v13, 1, v13")
    e("v_xor_b32 v13, v13, v12")
    e("v_lshl_add_u32 v8, v13, 4, v11")
    e("v_xor_b32 v13, 4, v13")
    e("v_lshl_add_u32 v9, v13, 4, v11")
    e("v_add_u32 v9, %d, v9" % (8 * 3584))
    vWS, vWW, vWR, vD2 = 15, 14, 13, 24
    e("v_lshlrev_b32 v15, 13, v10")
    e("v_lshl_add_u32 v15, v12, 4, v15")
    e("s_lshl_b32 s%d, s%d, 1" % (sT0, sRW))
    e("v_xor_b32 v14, s%d, v12" % sT0)
    e("v_lshlrev_b32 v14, 4, v14")
    e("v_lshl_add_u32 v14, v%d, 7, v14" % vLANE)
    e("v_add_u32 v14, 0x%x, v14" % L_WT)
    e("v_xor_b32 v13, v10, v12")
    e("v_lshlrev_b32 v13, 4, v13")
    e("v_lshl_add_u32 v13, v10, 7, v13")
    e("s_add_u32 s%d, s%d, 0x%x" % (sT0, sM2, L_WT))
    e("v_add_u32 v13, s%d, v13" % sT0)
    e("v_lshlrev_b32 v19, 1, v%d" % vQ)
    e("v_xor_b32 v19, v19, v12")
    e("v_lshlrev_b32 v19, 4, v19")
    e("v_lshl_add_u32 v%d, v10, 10, v19" % vD2)
    xread_addr(26)
    e("v_mov_b32 v19, 0")
    e("v_lshl_add_u32 v30, v%d, 2, v%d" % (vC, vCNT))
    e("ds_write_b32 v30, v19")
    XF, AF, ACC, HO, CS, ONES = 128, 32, 64, 32, 112, 116
    TRB = [16, 17, 18, 20]
    e("v_lshrrev_b32 v19, 2, v%d" % vC)
    e("v_lshl_add_u32 v30, v%d, 3, v19" % vQ)
    e("v_lshlrev_b32 v30, 7, v30")
    e("v_and_b32 v31, 1, v%d" % vC)
    e("v_lshl_add_u32 v30, v31, 3, v30")
    e("v_bfe_u32 v19, v%d, 3, 1" % vC)
    e("v_and_b32 v31, 1, v%d" % vQ)
    e("v_lshl_or_b32 v19, v31, 1, v19")
    e("v_lshlrev_b32 v19, 1, v19")
    e("v_bfe_u32 v31, v%d, 1, 1" % vC)
    e("v_or_b32 v19, v19, v31")
    e("v_lshl_add_u32 v30, v19, 4, v30")
    e("v_add_u32 v30, 0x%x, v30" % LB)
    for l in range(4):
        e("v_xor_b32 v%d, %d, v30" % (TRB[l], 32 * l))
    vCSA, RN, C1 = 99, 120, [108, 112, 116, 124]
    TR2 = [100, 101, 102, 103]
    HV = [104, 105, 106, 107]
    vFH = 106
    def setup_a():
        e("v_lshlrev_b32 v%d, 4, v%d" % (vCSA, vQ))
        e("v_add_u32 v%d, 0x%x, v%d" % (vCSA, L_CS, vCSA))
        e("s_lshl_b32 s%d, s%d, 9" % (sT0, sRW))
        e("s_add_u32 s%d, s%d, 0x%x" % (sT0, sT0, L_ST))
        e("v_lshl_add_u32 v96, v%d, 2, s%d" % (vC, sT0))
        e("s_mul_i32 s%d, s%d, %d" % (sHB, sRS, 2 * 56 * 1024))
        e("s_add_u32 s%d, s%d, 0x%x" % (sHB, sHB, H_OFF))
        e("s_lshl4_add_u32 s%d, s%d, s%d" % (sHS, sF0, sHB))
        e("s_and_b32 s%d, s2, 1" % sT2)
        e("s_lshl1_add_u32 s%d, s%d, s%d" % (sFHC, sPB, sT2))
        e("s_lshl2_add_u32 s%d, s%d, s%d" % (sFHC, sFHC, sRW))
        FHS = P("FHS", 7)
        e("s_lshl_b32 s%d, s%d, %d" % (sFHC, sFHC, max(7, FHS + 3)))
        e("s_add_u32 s%d, s%d, 0x%x" % (sFHC, sFHC, FH_OFF))
        e("s_lshl_b32 s%d, s%d, %d" % (sFH, sDB, FHS))
        e("s_add_u32 s%d, s%d, s%d" % (sFH, sFH, sFHC))
        e("s_mul_i32 s%d, s%d, 7" % (sT0, sT2))
        e("s_lshr_b32 s%d, s2, 6" % sT1)
        e("s_lshl1_add_u32 s%d, s%d, s%d" % (sT1, sT1, sDB))
        e("s_and_b32 s%d, s%d, 7" % (sT1, sT1))
        e("s_cmp_eq_u32 s%d, 7" % sT1)
        e("s_cselect_b32 s%d, 0, s%d" % (sT1, sT1))
        for i in range(7):
            e("s_add_u32 s%d, s%d, s%d" % (TV[i], sT1, sT0))
            if i < 6:
                e("s_add_u32 s%d, s%d, 1" % (sT1, sT1))
                e("s_cmp_eq_u32 s%d, 7" % sT1)
                e("s_cselect_b32 s%d, 0, s%d" % (sT1, sT1))
        e("s_lshl_b32 s%d, s%d, 7" % (sW2B, sDB))
        e("s_lshl_b32 s%d, s%d, 14" % (sT0, sRW))
        e("s_add_u32 s%d, s%d, s%d" % (sW2B, sW2B, sT0))
        e("s_mul_i32 s%d, s%d, %d" % (sT0, sT2, 56 * 1024))
        e("v_add_u32 v%d, s%d, v%d" % (HV[0], sT0, vL16))
        e("s_sub_u32 s%d, %d, s%d" % (sT0, 56 * 1024, sT0))
        e("v_add_u32 v%d, s%d, v%d" % (HV[1], sT0, vL16))
        e("v_min_u32 v19, 6, v%d" % vLANE)
        e("v_lshlrev_b32 v%d, %d, v19" % (vFH, FHS))
        late_setup(0)
        e("v_add_u32 v30, 0x%x, v%d" % (LB, vZB))
        for l in range(4):
            e("v_xor_b32 v%d, %d, v30" % (TR2[l], 32 * l))

    setup_a()
    run(xdma(2))
    run(xdma(3))
    touches(2)
    tag_setup()
    k.stamp(3)

    def X(u, T):
        return vr(XF + (T * 2 + u) * 4, 4)

    WR16 = 64

    def wloads():
        items = []

        def head():
            e("s_lshr_b32 s%d, s2, 5" % sRSW)
            e("s_and_b32 s%d, s2, 7" % sT1)
            e("s_lshl3_add_u32 s%d, s%d, s%d" % (sRSW, sT1, sRSW))
            e("s_and_b32 s%d, s%d, 3" % (sCG, sDB))
            e("s_lshr_b32 s%d, s%d, 4" % (sT1, sRSW))
            e("s_lshl_b32 s%d, s%d, 4" % (sT1, sT1))
            e("s_lshl1_add_u32 s%d, s%d, s%d" % (sT1, sRW, sT1))
            e("s_and_b32 s%d, s%d, 1" % (sT2, sRSW))
            e("s_lshl3_add_u32 s%d, s%d, s%d" % (sT1, sT2, sT1))
            e("s_bfe_u32 s%d, s%d, 0x30001" % (sT2, sRSW))
            e("s_lshl_b32 s%d, s%d, 8" % (sT2, sT2))
            e("s_add_u32 s%d, s%d, s%d" % (sT1, sT1, sT2))
            e("s_mul_i32 s%d, s%d, 514" % (sT1, sT1))
            e("s_lshl_b32 s%d, s%d, 7" % (sT4, sCG))
            e("s_add_u32 s%d, s%d, s%d" % (sT4, sT4, sT1))
            e("v_lshlrev_b32 v11, 1, v%d" % vLANE)
            e("v_and_b32 v19, 3, v%d" % vLANE)
            e("v_mul_u32_u24 v19, 32896, v19")
            e("v_bfe_u32 v30, v%d, 2, 1" % vLANE)
            e("v_mul_u32_u24 v30, 514, v30")
            e("v_add_u32 v19, v19, v30")
            e("s_cmp_eq_u32 s%d, 3" % sCG)
            e("s_cselect_b32 s%d, s%d, 0x%x" % (sT1, sT1, OOB))
            e("buffer_load_ushort v120, v19, %s, s%d offen offset:512" % (srd(SWR), sT1))
            k.vm.issue("wg")
            e("buffer_load_ushort v121, v19, %s, s%d offen offset:512" % (srd(SWI), sT1))
            k.vm.issue("wg")
        items.append(head)
        nt = " nt" if P("NTW", 0) else ""
        for r in range(4):
            def f(r=r):
                if r:
                    e("s_add_u32 s%d, s%d, 32896" % (sT4, sT4))
                for cb in range(2):
                    for arr, sr_ in ((0, SWR), (1, SWI)):
                        e("buffer_load_ushort v%d, v11, %s, s%d offen offset:%d%s" % (WR16 + 8 * cb + 4 * arr + r, srd(sr_), sT4, 514 * cb, nt))
                        k.vm.issue("wg")
            items.append(f)
        return items

    def wt_a():
        k.wait_vm("wg")
        for cb in range(2):
            for r in range(4):
                e("v_lshl_or_b32 v%d, v%d, 16, v%d" % (WR16 + 8 * cb + r, WR16 + 8 * cb + 4 + r, WR16 + 8 * cb + r))
        e("v_lshl_or_b32 v120, v121, 16, v120")
        e("ds_write_b128 v%d, %s" % (vWW, vr(WR16, 4)))
        k.lg.issue("wtw")
        e("v_xor_b32 v19, 16, v%d" % vWW)
        e("ds_write_b128 v19, %s" % vr(WR16 + 8, 4))
        k.lg.issue("wtw")
        e("s_lshl_b32 s%d, s%d, 5" % (sT0, sRW))
        e("s_add_u32 s%d, s%d, 0x%x" % (sT0, sT0, L_W256))
        e("v_lshl_add_u32 v19, v%d, 2, s%d" % (vLANE, sT0))
        e("s_mov_b64 exec, 0xff")
        e("ds_write_b32 v19, v120")
        k.lg.issue("wtw")
        e("s_mov_b64 exec, -1")

    def wt_b():
        for h in range(2):
            e("ds_read_b128 %s, v%d offset:%d" % (vr(WR16 + 4 * h, 4), vWR, 1024 * h))
            k.lg.issue("wtr")
        e("v_add_u32 v19, 0x%x, v%d" % (L_W256, vL16))
        e("ds_read_b128 %s, v19" % vr(WR16 + 8, 4))
        k.lg.issue("wtr")

    def wt_c():
        k.wait_lg("wtr")
        e("s_lshl2_add_u32 s%d, s%d, s%d" % (sT2, sCG, sRW))
        e("s_lshl_b32 s%d, s%d, 17" % (sT0, sT2))
        e("s_lshl_b32 s%d, s%d, 7" % (sT1, sRSW))
        e("s_add_u32 s%d, s%d, s%d" % (sT0, sT0, sT1))
        e("s_add_u32 s%d, s%d, 0x%x" % (sT0, sT0, WT_OFF))
        e("buffer_store_dwordx4 %s, v%d, %s, s%d offen sc1" % (vr(WR16, 4), vWS, srd(SWS), sT0))
        k.vm.issue("wtst")
        e("s_add_u32 s%d, s%d, 0x10000" % (sT0, sT0))
        e("buffer_store_dwordx4 %s, v%d, %s, s%d offen sc1" % (vr(WR16 + 4, 4), vWS, srd(SWS), sT0))
        k.vm.issue("wtst")
        e("s_add_u32 s%d, s%d, 0x%x" % (sT1, sT1, WT_OFF + 256 * 8192))
        e("s_cmp_eq_u32 s%d, 12" % sT2)
        e("s_cselect_b32 s%d, s%d, 0x%x" % (sT1, sT1, OOB))
        e("s_mov_b64 exec, 0xff")
        e("buffer_store_dwordx4 %s, v%d, %s, s%d offen sc1" % (vr(WR16 + 8, 4), vL16, srd(SWS), sT1))
        k.vm.issue("wtst")
        e("s_mov_b64 exec, -1")

    def wt_d():
        e("s_lshl2_add_u32 s%d, s%d, s%d" % (sT2, sCG, sRW))
        e("s_lshr_b32 s%d, s%d, 2" % (sT1, sRSW))
        e("s_lshl4_add_u32 s%d, s%d, s%d" % (sT0, sT2, sT1))
        e("s_lshl_b32 s%d, s%d, 7" % (sT0, sT0))
        e("s_and_b32 s%d, s%d, 3" % (sT1, sRSW))
        e("s_lshl2_add_u32 s%d, s%d, s%d" % (sT0, sT1, sT0))
        e("s_add_u32 s%d, s%d, 0x%x" % (sT0, sT0, FW_OFF))
        e("s_add_u32 s%d, s%d, 0x%x" % (sT1, sT0, 4 * 2048))
        e("s_cmp_eq_u32 s%d, 12" % sT2)
        e("s_cselect_b32 s%d, s%d, 0x%x" % (sT1, sT1, OOB))
        k.wait_vm("wtst")
        publish("s%d" % sT0)
        publish("s%d" % sT1)
        e("s_mov_b32 s%d, 0" % sHF)

    def xstage(s_):
        for kk in (2 * s_, 2 * s_ + 1):
            for u in range(2):
                for ks in range(2):
                    xread(X(u, 2 * kk + ks), 26, kk, u, ks, ("XR", s_))
    WPOS = P("WPOS", -1)
    if WPOS < 0:
        run(wloads())
    for s_ in range(4):
        k.wait_vm(("X", 2 * s_ + 1))
        if s_:
            k.wait_lg([("XR", s_ - 1)] + (["wtw"] if s_ == WPOS + 3 else []))
        e("s_barrier")
        fs(6, 2 + s_)
        xstage(s_)
        if s_ == WPOS + 3:
            wt_b()
        if s_ < 2:
            run(xdma(4 + 2 * s_) + xdma(5 + 2 * s_))
        WAS = [int(x_) for x_ in os.environ.get("WAS", "0,0,4,8").split(",")]
        for kk in range(WAS[s_ - 1] if s_ else 0, WAS[s_]):
            run(w1dma(0, kk))
        if s_ == WPOS:
            run(wloads())
        touches(3 + s_)
        if s_ == WPOS + 2:
            wt_a()
        if s_ == WPOS + 3:
            wt_c()
    k.wait_vm([("W1", 0, kk) for kk in range(4)])
    k.wait_lg(("XR", 3))
    e("s_barrier")
    k.stamp(4)
    fs(6, 6)


    def rdA(reg, T):
        items = []
        for l in range(4):
            for hh in range(2):
                def f(l=l, hh=hh):
                    e("ds_read_b64_tr_b16 %s, v%d offset:%d" % (vr(AF + (T & 1) * 16 + 4 * l + 2 * hh, 2), TRB[l], T * 4096 + hh * 512))
                    k.lg.issue(("A", reg, T))
                items.append(f)
        return items

    WLE = P("WLE", 4)
    CFB = P("CFB", 10) if WLE else 14

    def gpass(reg, hooks, mid):
        fs(8 + reg, 2)
        run(rdA(reg, 0))
        for T in range(16):
            k.wait_lg(("A", reg, T))
            if T == 7:
                gcheck(mid, 107)
            if T == 6:
                gpeek(mid, 107)
            if T == (CFB if reg else 14):
                gpeek(C_FB if reg else C_FA, 107)
            if T == CFB and reg and WLE:
                gpeek(C_HB, 97)
            if T == 15 and reg == 0:
                gpeek(C_WB1, 97)
            if T == 0 and reg == 1:
                gpeek(C_CSA, 98)
            if T + 1 < 16:
                sch["lds"].extend(rdA(reg, T + 1))
            for l in range(4):
                a = vr(AF + (T & 1) * 16 + 4 * l, 4)
                if P("M32", 0):
                    c = vr(ACC + 16 * (l & 1), 16)
                    mf32(c, a, X(l >> 1, T), c if (T or l > 1) else "0")
                    continue
                for u in range(2):
                    c = vr(ACC + (l * 2 + u) * 4, 4)
                    mf(c, a, X(u, T), c if T else "0")
            flush_lds()
            run(hooks.get(T, []))
            if T < 11:
                fs(8 + reg, 3 + T)
        flush_side()

    def c1_fetch(reg):
        def f():
            gcheck(C_FB if reg else C_FA, 107)
            if reg == 0:
                for u in range(2):
                    e("ds_read2_b32 %s, v96 offset0:%d offset1:%d" % (vr(RN + 2 * u, 2), 32 + 16 * u, 16 * u))
                    k.lg.issue(("C1", reg))
            for l in range(4):
                e("ds_read_b128 %s, v%d offset:%d" % (vr(C1[l], 4), vCSA, 256 * reg + 64 * l))
                k.lg.issue(("C1", reg))
        return f

    def h_out(reg, cw, tag):
        garrive(cw)
        e("s_add_u32 s%d, s%d, %d" % (sT2, sHS, 2048 * reg))
        e("s_add_u32 s%d, s%d, %d" % (sT3, sHS, 2048 * reg + 56 * 1024))
        k.wait_lg(("C1", reg))
        for pr in range(2):
            for u in range(2):
                o = HO + (pr * 2 + u) * 4
                for l in (2 * pr, 2 * pr + 1):
                    a = ACC + (l * 2 + u) * 4
                    for r in (0, 2):
                        e("v_pk_fma_f32 %s, %s, %s, %s op_sel_hi:[1,0,1]" % (vr(a + r, 2), vr(C1[l] + r, 2), vr(RN + 2 * u, 2), vr(a + r, 2)))
                for l in (2 * pr, 2 * pr + 1):
                    a = ACC + (l * 2 + u) * 4
                    e("v_cvt_pk_bf16_f32 v%d, v%d, v%d" % (o + (l & 1) * 2, a, a + 1))
                    e("v_cvt_pk_bf16_f32 v%d, v%d, v%d" % (o + (l & 1) * 2 + 1, a + 2, a + 3))
                for i in range(4):
                    e("v_pk_max_i16 v%d, v%d, 0" % (o + i, o + i))
                HS = P("HS", 0)
                if HS != 1:
                    e("buffer_store_dwordx4 %s, v%d, %s, s%d offen offset:%d sc1" % (vr(o, 4), vL16, srd(SWS), sT2 + u, 1024 * pr))
                    k.vm.issue(tag)
                if HS:
                    e("buffer_store_dwordx4 %s, v%d, %s, s%d offen offset:%d" % (vr(o, 4), vL16, srd(SWS), sT2 + u, 1024 * pr))
                    k.vm.issue(tag)

    def land(reg, lo, hi, cw):
        def f():
            k.wait_vm([("W1", reg, kk) for kk in range(lo, hi)])
            garrive(cw)
        return f

    sch["gap"] = P("GAPA", 4)
    for kk in range(8):
        side.extend(w1dma(1, kk))
    ha = {P("LWA", 3): [land(0, 4, 8, C_WA2)], P("LB1", 11): [land(1, 0, 4, C_WB1)], P("WTD", 2): [wt_d], P("LB2", 13): [land(1, 4, 8, C_WB2)], 14: [c1_fetch(0)]}
    def w2l2(part, nparts):
        def f():
            n = 56 // nparts
            e("s_lshr_b32 s%d, s2, 3" % sT0)
            e("s_lshl2_add_u32 s%d, s%d, s%d" % (sT0, sT0, sRW))
            e("s_and_b32 s%d, s2, 1" % sT1)
            e("s_lshl_b32 s%d, s%d, 7" % (sT1, sT1))
            e("s_add_u32 s%d, s%d, s%d" % (sT0, sT0, sT1))
            e("s_mul_i32 s%d, s%d, %d" % (sT0, sT0, 56 * 128))
            e("v_lshlrev_b32 v19, 7, v%d" % vLANE)
            e("s_mov_b32 m0, 0x%x" % (L_DUM - part * n * 128 % 4096 * 0))
            m = ((1 << n) - 1) << (part * n)
            e("s_mov_b32 exec_lo, 0x%x" % (m & 0xffffffff))
            e("s_mov_b32 exec_hi, 0x%x" % (m >> 32))
            e("buffer_load_dword v19, %s, s%d offen lds" % (srd(SW2), sT0))
            k.vm.issue("touch")
            e("s_mov_b64 exec, -1")
        return f
    W2A = [int(x_) for x_ in os.environ.get("W2A", "").split(",") if x_]
    for i_, T_ in enumerate(W2A):
        ha.setdefault(T_, []).append(w2l2(i_, len(W2A)))
    gpass(0, ha, C_WA2)
    k.stamp(5)
    h_out(0, C_CSA, "ha")
    k.stamp(6)

    for l in range(4):
        e("v_subrev_u32 v%d, 0x%x, v%d" % (TRB[l], LB, TRB[l]))
    gcheck(C_WB1, 97)

    def w2_dma(late, j):
        lb = (LA if late else LB) + j * 8192

        def f0():
            e("s_add_u32 m0, s%d, %d" % (sM2, lb))
            e("s_lshl_b32 s%d, s%d, 17" % (sDT, TV[j]))
            e("s_add_u32 s%d, s%d, s%d" % (sDT, sDT, sW2B))
            if late:
                e("s_add_u32 s%d, s%d, 0x10000" % (sDT, sDT))
            e("buffer_load_dwordx4 v%d, %s, s%d offen lds" % (vD2, srd(SW2), sDT))
            k.vm.issue(("W2", late))

        def f1():
            e("s_add_u32 m0, s%d, %d" % (sM2, lb + 1024))
            e("s_add_u32 s%d, s%d, 8192" % (sDT, sDT))
            e("buffer_load_dwordx4 v%d, %s, s%d offen lds" % (vD2, srd(SW2), sDT))
            k.vm.issue(("W2", late))
        return [f0, f1]

    def rdW(n):
        items = []
        for l in range(4):
            for hh in range(2):
                def f(l=l, hh=hh):
                    e("ds_read_b64_tr_b16 %s, v%d offset:%d" % (vr(AF + (n & 1) * 16 + 4 * l + 2 * hh, 2), TR2[l], (n % 14) * 4096 + hh * 2048))
                    k.lg.issue(("W2R", n))
                items.append(f)
        return items

    def hload(n):
        late, m = n // 14, n % 14

        def item(u):
            def f():
                if u == 0 and m % 2 == 0:
                    e("s_lshl_b32 s%d, s%d, 12" % (sXT, TV[m // 2]))
                    e("s_add_u32 s%d, s%d, s%d" % (sXT, sXT, sHB))
                e("buffer_load_dwordx4 %s, v%d, %s, s%d offen offset:%d sc1" % (X(u, m), HV[u], srd(SWS), sXT, 2048 * late + 1024 * (m & 1)))
                k.vm.issue(("H", n))
            return f
        return [item(0), item(1)]

    def pubHA():
        k.wait_vm("ha")
        publish("s%d" % sFH)
        e("s_add_u32 s%d, s%d, 0x%x" % (sFH, sFH, FHB_D))

    def landW(late, cw):
        def f():
            k.wait_vm(("W2", late))
            garrive(cw)
        return f
    hb = {T: [] for T in range(16)}
    hb[P("W2T0", 0)].append(lambda: gcheck(C_CSA, 98))
    hb[P("W2T0", 0)].append(lambda: [side.extend(w2_dma(0, j)) for j in range(7)])
    hb[CFB].append(c1_fetch(1))
    if WLE:
        hb[8].append(lambda: garrive(C_HB))
        hb[CFB].append(lambda: gcheck(C_HB, 97))
        hb[CFB].append(lambda: [side.extend(w2_dma(1, j)) for j in range(WLE)])
    hb[P("PHA", 3)].append(pubHA)
    HLA = P("HLA", 6)
    HE = P("HE", 17)
    hb[min(HE - 2, P("PPA", 12))].append(lambda: poll_issue("ph", vFH, "s%d" % sFHC, 31))
    if HE < 16:
        def hearly():
            poll_check("ph", vFH, "s%d" % sFHC, 31)
            for n in range(HLA):
                side.extend(hload(n))
            sch["gap"] = P("GAPH", 2)
        hb[HE].append(hearly)

    def w2touch():
        e("s_lshr_b32 s%d, s2, 6" % sT0)
        e("s_lshl2_add_u32 s%d, s%d, s%d" % (sT0, sT0, sRW))
        e("s_mul_i32 s%d, s%d, 28" % (sT0, sT0))
        e("v_add_u32 v19, s%d, v%d" % (sT0, vLANE))
        e("v_and_b32 v30, 0xffc0, v19")
        e("v_add3_u32 v19, v19, v30, 64")
        e("v_lshlrev_b32 v19, 10, v19")
        e("s_and_b32 s%d, s2, 1" % sT0)
        e("s_mul_i32 s%d, s%d, %d" % (sT0, sT0, 896 * 1024))
        e("s_lshl_b32 s%d, s%d, 7" % (sT1, sDB))
        e("s_add_u32 s%d, s%d, s%d" % (sT0, sT0, sT1))
        e("s_mov_b32 m0, 0x%x" % L_DUM)
        e("s_mov_b64 exec, 0xfffffff")
        e("buffer_load_dword v19, %s, s%d offen lds" % (srd(SW2), sT0))
        k.vm.issue("touch")
        e("s_mov_b64 exec, -1")
    if P("W2L", 99) < 16:
        hb[P("W2L", 99)].append(w2touch)
    hb[P("LE1", 13)].append(landW(0, C_E1))
    sch["gap"] = P("GAPB", 4)
    gpass(1, hb, C_WB2)
    k.stamp(7)
    fs(10, 2)
    if HE == 16:
        poll_check("ph", vFH, "s%d" % sFHC, 31)
        fs(10, 3)
        for n in range(HLA):
            run(hload(n))
    fs(10, 4)
    gpeek(C_E1, 97)
    h_out(1, C_CSB, "hb")
    fs(10, 5)
    if HE == 17:
        poll_check("ph", vFH, "s%d" % sFHC, 31, pre=["    s_waitcnt vmcnt(0)"] + publish_lines("s%d" % sFH))
        for n in range(HLA):
            run(hload(n))
    k.stamp(8)
    gcheck(C_E1, 97)
    run(rdW(0))
    gpeek(C_CSB, 98)
    sch["gap"] = P("GAP3", 2)
    sch["nl"] = P("NLD", 2)
    fs(7, 2)
    fs(10, 6)
    LCH = 14 - P("LLA", 5)
    nxt = HLA
    wl = [it for j in range(WLE, 7) for it in w2_dma(1, j)]
    for n in range(28):
        k.wait_lg(("W2R", n))
        if n == LCH:
            poll_check("phb", vFH, "s%d" % sFHC, 31)
        lim = 14 if n < LCH else 28
        cnt = 0
        while nxt < min(lim, n + 1 + HLA) and nxt - 14 < n and cnt < 2:
            side.extend(hload(nxt))
            nxt += 1
            cnt += 1
        if n == 0:
            gcheck(C_CSB, 98)
        if wl:
            side.extend(wl[:2])
            wl = wl[2:]
        k.wait_vm(("H", n))
        if n == P("PHB", 0):
            k.wait_vm("hb")
            publish("s%d" % sFH)
        if n == LCH - P("PPB", 1):
            e("s_add_u32 s%d, s%d, 0x%x" % (sFHC, sFHC, FHB_D))
            poll_issue("phb", vFH, "s%d" % sFHC, 31)
        if n == 10:
            landW(1, C_L1)()
        if n == 12:
            gpeek(C_L1, 107)
        if n == P("ZG1", 12):
            garrive(C_ST)
        if n == P("ZGO", 15):
            garrive(C_WT)
        if n == 13:
            for l in range(4):
                e("v_subrev_u32 v%d, 0x%x, v%d" % (TR2[l], LB, TR2[l]))
            gcheck(C_L1, 107)
        if n in (20, 21):
            for i in range(4):
                e("v_mov_b32 v%d, v%d" % (128 + 8 * (n - 20) + 2 * i + 1, vTAG))
        if n + 1 < 28:
            sch["lds"].extend(rdW(n + 1))
        for l in range(4):
            a = vr(AF + (n & 1) * 16 + 4 * l, 4)
            if P("M32", 0):
                c = vr(ACC + 16 * (l & 1), 16)
                mf32(c, a, X(l >> 1, n % 14), c if (n or l > 1) else "0")
                continue
            for u in range(2):
                c = vr(ACC + (u * 4 + l) * 4, 4)
                mf(c, a, X(u, n % 14), c if n else "0")
        flush_side()
        if n % 3 == 2:
            fs(7, 3 + n // 3)
        if n < 7:
            fs(10, 7 + n)
        if 5 <= n < 17:
            fs(11, n - 3)
        if n == 13:
            k.stamp(9)
    k.stamp(10)
    e("s_lshl2_add_u32 s%d, s2, s%d" % (sT1, sRW))
    e("s_lshl_b32 s%d, s%d, 12" % (sT1, sT1))
    e("s_add_u32 s%d, s%d, 0x%x" % (sT1, sT1, YX_OFF))
    k.nop(1)
    fs(12, 2)
    garrive(C_GY)
    for i in range(4):
        e("v_cvt_pk_bf16_f32 v%d, v%d, v%d" % (128 + 4 * i, ACC + 16 + 4 * i, ACC + 17 + 4 * i))
        e("v_cvt_pk_bf16_f32 v%d, v%d, v%d" % (128 + 4 * i + 2, ACC + 18 + 4 * i, ACC + 19 + 4 * i))
        e("buffer_store_dwordx4 %s, v%d, %s, s%d offen offset:%d sc1" % (vr(128 + 4 * i, 4), vL16, srd(SWS), sT1 + (i >> 2), 1024 * (i & 3)))
        k.vm.issue("yst")
    xe_load()
    e("s_xor_b32 s%d, s%d, 0x4000" % (sT1, sT1))
    e("s_lshl_b32 s%d, s%d, 12" % (sT4, sRW))
    e("v_add_u32 v10, s%d, v%d" % (sT4, vYW))
    for dt in range(1, 4):
        e("v_xor_b32 v%d, %d, v10" % (10 + dt, 64 * dt))
    fs(12, 3)
    gwait(C_GY)
    fs(12, 4)
    if P("YW", 1):
        k.wait_vm("yst")
    fs(12, 5)
    YR = 160
    e("s_mov_b32 s%d, 0" % sCNT)
    k.lab("L_yx")
    for i in range(4):
        e("buffer_load_dwordx4 %s, v%d, %s, s%d offen offset:%d sc1" % (vr(YR + 4 * i, 4), vL16, srd(SWS), sT1 + (i >> 2), 1024 * (i & 3)))
    e("s_waitcnt vmcnt(0)")
    k.vm.clear()
    e("v_min3_u32 v30, v%d, v%d, v%d" % (YR + 1, YR + 3, vTAG))
    e("v_max3_u32 v31, v%d, v%d, v%d" % (YR + 1, YR + 3, vTAG))
    for i in range(1, 4):
        e("v_min3_u32 v30, v%d, v%d, v30" % (YR + 4 * i + 1, YR + 4 * i + 3))
        e("v_max3_u32 v31, v%d, v%d, v31" % (YR + 4 * i + 1, YR + 4 * i + 3))
    e("v_cmp_ne_u32 vcc, v30, v31")
    e("s_cmp_lg_u64 vcc, 0")
    e("s_cbranch_scc1 L_yxs")
    k.lab("L_yxb")
    fs(12, 6)
    tail.extend(["L_yxs:", "    s_add_u32 s%d, s%d, 1" % (sCNT, sCNT), "    s_cmp_lt_u32 s%d, 0x40000" % sCNT,
                 "    s_cbranch_scc0 L_yxb", "    s_sleep 6", "    s_branch L_yx"])
    k.stamp(11)
    e("s_bitcmp1_b32 s2, 0")
    e("s_cselect_b64 vcc, -1, 0")
    e("v_cndmask_b32 v%d, v%d, v%d, vcc" % (RN, RN + 1, RN + 3))
    for i in range(8):
        e("v_and_b32 v%d, 0xffff0000, v%d" % (YR + 2 * i + 1, YR + 2 * i))
        e("v_lshlrev_b32 v%d, 16, v%d" % (YR + 2 * i, YR + 2 * i))
    for i in range(8):
        e("v_pk_add_f32 %s, %s, %s" % (vr(ACC + 2 * i, 2), vr(ACC + 2 * i, 2), vr(YR + 2 * i, 2)))
    for i in range(8):
        e("v_pk_mul_f32 %s, %s, %s op_sel_hi:[1,0]" % (vr(ACC + 2 * i, 2), vr(ACC + 2 * i, 2), vr(RN, 2)))
    for dt in range(4):
        e("ds_write_b128 v%d, %s" % (10 + dt, vr(ACC + 4 * dt, 4)))
    k.lab("L_final")
    main_lines = k.lines

    k.lines = []
    k.vm.q, k.lg.q = list(q_vm), []
    k.lab("L_fft")
    if P("FP0", 0):
        e("s_setprio 1")
    sCC, sPL, sZR, sZI, sSC, sFXC, sGB, sFX = 48, 50, 51, 52, 53, 54, 55, 56
    C64, S64, N64, C32, S32, N32, T1C, T1S, T2C, T2S = 128, 136, 144, 152, 160, 168, 176, 184, 192, 200
    XB, PA, FB, SUM, GR, ONES = 32, 64, 96, 208, 216, 224

    def fgen(tl):
        t = 32
        e("s_lshl_b32 s%d, s%d, 5" % (sT0, sCBK))
        e("v_add_u32 v%d, s%d, v%d" % (t, sT0, vC))
        if tl:
            e("v_add_u32 v%d, 16, v%d" % (t, t))
        e("v_lshrrev_b32 v%d, 1, v%d" % (t + 1, t))
        e("v_and_b32 v%d, 1, v%d" % (t + 2, t))
        e("v_cvt_f32_u32 v%d, v%d" % (t + 2, t + 2))
        e("v_mul_f32 v%d, %s, v%d" % (t + 2, hexf(0.25), t + 2))
        if tl == 0:
            e("v_cmp_eq_u32 vcc, 1, v%d" % t)
            e("v_mov_b32 v%d, 256" % (t + 3))
        e("s_lshl_b32 s%d, s%d, 6" % (sT0, sR))
        if tl == 0:
            e("v_cndmask_b32 v%d, v%d, v%d, vcc" % (t + 1, t + 1, t + 3))
            e("v_cndmask_b32 v%d, v%d, 0, vcc" % (t + 2, t + 2))
        e("v_cvt_f32_u32 v%d, v%d" % (t + 1, t + 1))
        e("v_mul_f32 v%d, %s, v%d" % (t + 1, hexf(1.0 / 512), t + 1))
        e("v_lshl_add_u32 v%d, v%d, 3, s%d" % (t + 3, vQ, sT0))
        e("v_cvt_f32_u32 v%d, v%d" % (t + 3, t + 3))
        e("v_fma_f32 v%d, v%d, v%d, v%d" % (t + 2, t + 3, t + 1, t + 2))
        e("v_fract_f32 v%d, v%d" % (t + 8, t + 2))
        e("v_mul_f32 v%d, %s, v%d" % (t + 3, hexf(32.0), t + 1))
        e("v_fract_f32 v%d, v%d" % (t + 3, t + 3))
        for jj in range(1, 8):
            e("v_add_f32 v%d, v%d, v%d" % (t + 8 + jj, t + 7 + jj, t + 1))
        for Tf in range(4):
            for jj in range(8):
                e("v_cos_f32 v%d, v%d" % (t + 16 + jj, t + 8 + jj))
            if Tf < 3:
                for jj in range(8):
                    e("v_add_f32 v%d, v%d, v%d" % (t + 8 + jj, t + 8 + jj, t + 3))
            else:
                k.nop(1)
            for d in range(4):
                e("v_cvt_pk_bf16_f32 v%d, v%d, v%d" % (FB + 16 * tl + 4 * Tf + d, t + 16 + 2 * d, t + 17 + 2 * d))
    def prewarm():
        e("s_lshl2_add_u32 s%d, s2, s%d" % (sT0, sRW))
        e("s_lshl_b32 s%d, s%d, 8" % (sT0, sT0))
        e("v_lshlrev_b32 v19, 7, v%d" % vLANE)
        e("s_mov_b64 exec, 3")
        e("buffer_store_dword v19, v19, %s, s%d offen offset:48 sc1" % (srd(SWS), sT0))
        k.vm.issue("pw")
        e("s_mov_b64 exec, -1")
    PW = P("PW", 0)
    fgen(0)
    e("s_waitcnt lgkmcnt(0)")
    e("s_load_dword s%d, s[%d:%d], 0x%x" % (sTAG, SWS, SWS + 1, EPOCH_OFF))
    if PW == 1:
        prewarm()
    fgen(1)
    vSM, vAL, vBE = 16, 17, 18
    e("v_bfe_u32 v19, v%d, 1, 2" % vC)
    e("v_cvt_f32_u32 v19, v19")
    e("v_mul_f32 v19, %s, v19" % hexf(0.25))
    e("v_cos_f32 v%d, v19" % vAL)
    e("v_sin_f32 v%d, v19" % vBE)
    e("v_bfe_u32 v%d, v%d, 1, 1" % (vSM, vC))
    e("v_mul_u32_u24 v%d, 0x8000, v%d" % (vSM, vSM))
    e("v_lshl_or_b32 v%d, v%d, 16, v%d" % (vSM, vSM, vSM))
    e("v_rndne_f32 v%d, v%d" % (vAL, vAL))
    e("v_rndne_f32 v%d, v%d" % (vBE, vBE))
    e("v_lshlrev_b32 v19, 31, v%d" % vC)
    e("v_xor_b32 v%d, v19, v%d" % (vBE, vBE))
    for d in range(4):
        e("v_mov_b32 v%d, 0x3f803f80" % (ONES + d))
    xread_addr(26)
    k.stamp(2)

    def cconst():
        t = 32
        slot = [16 * (jj >> 2) + (jj & 3) for jj in range(8)]
        yield "s_lshl_b32 s%d, s%d, 4" % (sT3, sRW)
        yield "v_add_u32 v%d, s%d, v%d" % (t + 24, sT3, vC)
        yield "v_cvt_f32_u32 v%d, v%d" % (t + 27, vQ)
        yield "v_cvt_f32_u32 v%d, v%d" % (t + 25, t + 24)
        yield "v_mul_f32 v%d, 4.0, v%d" % (t + 27, t + 27)
        yield "v_cvt_f32_u32 v%d, v%d" % (t + 28, vC)
        yield "v_and_b32 v%d, 1, v%d" % (t + 30, vC)
        for jj in range(8):
            yield "v_add_f32 v%d, %s, v%d" % (t + 32 + jj, hexf(float(slot[jj])), t + 27)
        yield "v_mul_u32_u24 v%d, 0x8000, v%d" % (t + 30, t + 30)
        yield "v_mul_f32 v%d, %s, v%d" % (t + 26, hexf(1.0 / 64), t + 25)
        yield "v_lshl_or_b32 v%d, v%d, 16, v%d" % (t + 30, t + 30, t + 30)
        for (scale, Cb, Sb, Nb, flip) in ((t + 26, C64, S64, N64, "v%d" % (t + 30)), (t + 29, C32, S32, N32, "0x80000000")):
            if Cb == C32:
                yield "v_mul_f32 v%d, %s, v%d" % (t + 29, hexf(1.0 / 32), t + 28)
                yield "v_mul_f32 v%d, %s, v%d" % (t + 26, hexf(1.0 / 2048), t + 25)
            for jj in range(8):
                yield "v_mul_f32 v%d, v%d, v%d" % (t + jj, t + 32 + jj, scale)
            for jj in range(8):
                yield "v_cos_f32 v%d, v%d" % (t + 8 + jj, t + jj)
            for jj in range(8):
                yield "v_sin_f32 v%d, v%d" % (t + 16 + jj, t + jj)
            for d in range(4):
                yield "v_cvt_pk_bf16_f32 v%d, v%d, v%d" % (Cb + d, t + 8 + 2 * d, t + 9 + 2 * d)
            for d in range(4):
                yield "v_cvt_pk_bf16_f32 v%d, v%d, v%d" % (Sb + d, t + 16 + 2 * d, t + 17 + 2 * d)
            for d in range(4):
                yield "v_xor_b32 v%d, %s, v%d" % (Cb + 4 + d, flip, Cb + d)
            for d in range(4):
                yield "v_xor_b32 v%d, %s, v%d" % (Sb + 4 + d, flip, Sb + d)
            for d in range(8):
                yield "v_xor_b32 v%d, 0x80008000, v%d" % (Nb + d, Sb + d)
        for i in range(8):
            yield "v_mul_f32 v%d, v%d, v%d" % (t + i, t + 32 + i, t + 26)
        yield "v_cvt_f32_u32 v%d, s%d" % (t + 29, sT3)
        for i in range(8):
            yield "v_cos_f32 v%d, v%d" % (T1C + i, t + i)
            yield "v_sin_f32 v%d, v%d" % (T1S + i, t + i)
        yield "v_mul_f32 v%d, %s, v%d" % (t + 26, hexf(1.0 / 2048), t + 28)
        for r in range(4):
            yield "v_add_f32 v%d, v%d, v%d" % (t + 8 + r, t + 29, t + 32 + r)
        yield "v_add_f32 v%d, %s, v%d" % (t + 25, hexf(16.0 / 2048), t + 26)
        for r in range(4):
            yield "v_mul_f32 v%d, v%d, v%d" % (t + r, t + 8 + r, t + 26)
        for r in range(4):
            yield "v_mul_f32 v%d, v%d, v%d" % (t + 4 + r, t + 8 + r, t + 25)
        for i in range(8):
            yield "v_cos_f32 v%d, v%d" % (T2C + i, t + i)
            yield "v_sin_f32 v%d, v%d" % (T2S + i, t + i)
    CCE = P("CCE", 1)
    if CCE:
        for s_ in cconst():
            e(s_)
    e("v_lshrrev_b32 v19, 2, v%d" % vC)
    e("v_lshl_add_u32 v20, v%d, 3, v19" % vQ)
    e("v_lshlrev_b32 v20, 7, v20")
    e("v_and_b32 v13, 1, v%d" % vC)
    e("v_lshl_add_u32 v20, v13, 3, v20")
    e("v_bfe_u32 v19, v%d, 3, 1" % vC)
    e("v_and_b32 v13, 1, v%d" % vQ)
    e("v_lshl_or_b32 v19, v13, 1, v19")
    e("v_xor_b32 v19, s%d, v19" % sRW)
    e("v_lshlrev_b32 v19, 1, v19")
    e("v_bfe_u32 v13, v%d, 1, 1" % vC)
    e("v_or_b32 v19, v19, v13")
    e("v_lshl_add_u32 v20, v19, 4, v20")
    e("v_add_u32 v13, 0x%x, v20" % LB)
    e("s_lshl_b32 s%d, s%d, 6" % (sT1, sRW))
    e("s_add_u32 s%d, s%d, 0x%x" % (sT1, sT1, L_CS))
    e("v_lshl_add_u32 v231, v%d, 4, s%d" % (vQ, sT1))

    def colsum(reg):
        if reg == 0:
            pass
        else:
            gwait(C_WB1)
            gwait(C_WB2)
        base = 20 if reg else 13
        e("s_setprio %d" % P("SPRIO", 0))

        def rd(T):
            for hh in range(2):
                e("ds_read_b64_tr_b16 %s, v%d offset:%d" % (vr(48 + 4 * (T % 4) + 2 * hh, 2), base, T * 4096 + hh * 512))
                k.lg.issue(("CS", reg, T))
        for T in range(3):
            rd(T)
        for T in range(16):
            if T == 5 and reg == 0:
                gwait(C_WA2)
            if T + 3 < 16:
                rd(T + 3)
            k.wait_lg(("CS", reg, T))
            mfma(vr(240, 4), vr(48 + 4 * (T % 4), 4), vr(ONES, 4), vr(240, 4) if T else "0")
        k.nop(6)
        e("s_mov_b32 exec_lo, 0x00010001")
        e("s_mov_b32 exec_hi, 0x00010001")
        e("ds_write_b128 v231, v[240:243] offset:%d" % (256 * reg))
        e("s_mov_b64 exec, -1")
        garrive(C_FB if reg else C_FA)
        e("s_setprio 0")
    CSF = P("CSF", 0)
    vX1 = 7
    e("v_lshrrev_b32 v7, 1, v%d" % vC)
    e("v_lshlrev_b32 v7, 13, v7")
    e("v_and_b32 v19, 1, v%d" % vC)
    e("v_lshl_add_u32 v7, v19, 6, v7")
    e("v_lshl_add_u32 v7, v%d, 4, v7" % vQ)
    e("s_lshl_b32 s%d, s%d, 9" % (sT0, sRW))
    e("s_add_u32 s%d, s%d, 0x%x" % (sT0, sT0, L_ST))
    e("v_lshl_add_u32 v8, v%d, 2, s%d" % (vC, sT0))
    e("v_lshl_add_u32 v9, v%d, 4, s%d" % (vQ, sT0))
    e("s_lshl4_add_u32 s%d, s%d, s%d" % (sFX, sCBK, sPB))
    e("s_lshl_b32 s%d, s%d, 7" % (sFX, sFX))
    e("s_lshl2_add_u32 s%d, s%d, s%d" % (sFX, sRW, sFX))
    tag_setup()
    k.stamp(3)
    e("s_setprio %d" % P("PRIO", 1))

    def XBf(kk, u, ks):
        return vr(XB + (((kk & 1) * 2 + ks) * 2 + u) * 4, 4)
    for s_ in range(4):
        e("s_barrier")
        fs(6, 2 + s_)
        for kk in (2 * s_, 2 * s_ + 1):
            for ks in range(2):
                for u in range(2):
                    xread(XBf(kk, u, ks), 26, kk, u, ks, ("XR", kk, ks))
        if PW == 2 + s_:
            prewarm()
        if s_ == 2:
            for i in range(32):
                e("v_xor_b32 v%d, v%d, v%d" % (FB + i, vSM, FB + i))
        for kk in (2 * s_, 2 * s_ + 1):
            for ks in range(2):
                T = 2 * kk + ks
                k.wait_lg(("XR", kk, ks))
                for u in range(2):
                    x = XBf(kk, u, ks)
                    mfma(vr(SUM + 4 * u, 4), vr(ONES, 4), x, vr(SUM + 4 * u, 4) if T else "0")
                    mfma(vr(GR + 4 * u, 4), x, x, vr(GR + 4 * u, 4) if T else "0")
                for u in range(2):
                    x = XBf(kk, u, ks)
                    for tl in range(2):
                        p = vr(PA + ((tl * 2 + ((T >> 2) & 1)) * 2 + u) * 4, 4)
                        mfma(p, x, vr(FB + 16 * tl + 4 * (T & 3), 4), "0" if T in (0, 4) else p)
    e("s_barrier")
    k.stamp(4)
    fs(6, 6)
    e("s_setprio %d" % P("XPRIO", 0))
    e("v_and_b32 v19, 3, v%d" % vC)
    k.nop(2)
    for r in range(1, 4):
        e("v_cmp_eq_u32 vcc, %d, v19" % r)
        k.nop(2)
        for u in range(2):
            e("v_cndmask_b32 v%d, v%d, v%d, vcc" % (GR + 4 * u, GR + 4 * u, GR + 4 * u + r))

    def stat_ops(u):
        m, q2, rs_, nm, d0 = SUM + 4 * u, GR + 4 * u, SUM + 4 * u + 1, SUM + 4 * u + 2, SUM + 4 * u + 3
        rnd = lambda v: ["v_cvt_pk_bf16_f32 v%d, v%d, v%d" % (v, v, v), "v_lshlrev_b32 v%d, 16, v%d" % (v, v)]
        return (["v_mul_f32 v%d, %s, v%d" % (m, hexf(1.0 / 512), m),
                 "v_mul_f32 v%d, %s, v%d" % (q2, hexf(1.0 / 512), q2),
                 "v_fma_f32 v%d, -v%d, v%d, v%d" % (q2, m, m, q2),
                 "v_max_f32 v%d, 0, v%d" % (q2, q2)] + rnd(q2) +
                ["v_add_f32 v%d, %s, v%d" % (q2, hexf(1e-5), q2)] + rnd(q2) +
                ["v_sqrt_f32 v%d, v%d" % (q2, q2), "v_sub_f32 v%d, 0, v%d" % (nm, m)] + rnd(q2) +
                ["v_rcp_f32 v%d, v%d" % (rs_, q2)] + rnd(nm) +
                ["v_add_f32 v%d, v%d, v%d" % (d0, m, nm), "v_mul_f32 v%d, %s, v%d" % (d0, hexf(512.0), d0)])
    for a_, b_ in zip(stat_ops(0), stat_ops(1)):
        e(a_)
        e(b_)
    e("s_mov_b32 exec_lo, 0x00f0000f")
    e("s_mov_b32 exec_hi, 0xf0000f00")
    for u in range(2):
        e("ds_write2_b32 v8, v%d, v%d offset0:%d offset1:%d" % (SUM + 4 * u + 1, SUM + 4 * u + 2, 16 * u, 32 + 16 * u))
        e("ds_write_b32 v8, v%d offset:%d" % (SUM + 4 * u + 3, 256 + 64 * u))
    e("s_mov_b64 exec, -1")
    if CSF:
        colsum(0)
    RT, D0T = XB, XB + 8
    for u in range(2):
        e("ds_read_b128 %s, v9 offset:%d" % (vr(RT + 4 * u, 4), 64 * u))
        e("ds_read_b128 %s, v9 offset:%d" % (vr(D0T + 4 * u, 4), 256 + 64 * u))
    for tl in range(2):
        for i in range(8):
            e("v_fmac_f32 v%d, v%d, v%d" % (PA + 16 * tl + i, vAL, PA + 16 * tl + 8 + i))
        for i in range(8):
            e("v_fmac_f32_dpp v%d, v%d, v%d quad_perm:[1,0,3,2] row_mask:0xf bank_mask:0xf" % (PA + 16 * tl + i, PA + 16 * tl + 8 + i, vBE))
    e("v_or_b32 v19, s%d, v%d" % (sCBK, vC))
    e("v_cmp_eq_u32 vcc, 0, v19")
    e("s_lshl_b32 s%d, s%d, 17" % (sT0, sCBK))
    e("s_lshl2_add_u32 s%d, s%d, s%d" % (sT1, sA, sRW))
    e("s_lshr_b32 s%d, s%d, 1" % (sT2, sWP))
    e("s_lshl1_add_u32 s%d, s%d, s%d" % (sT1, sT1, sT2))
    e("s_lshl_b32 s%d, s%d, 7" % (sT1, sT1))
    e("s_add_u32 s%d, s%d, s%d" % (sT0, sT0, sT1))
    e("s_add_u32 s%d, s%d, 0x%x" % (sT1, sT0, X1C_OFF))
    e("s_add_u32 s%d, s%d, 0x%x" % (sT2, sT0, X1C_OFF + 65536))
    e("s_waitcnt lgkmcnt(0)")
    k.lg.clear()
    for i in range(8):
        e("v_cndmask_b32 v%d, v%d, v%d, vcc" % (PA + i, PA + i, D0T + i))
    for tl in range(2):
        for i in range(8):
            e("v_mul_f32 v%d, v%d, v%d" % (PA + 16 * tl + i, PA + 16 * tl + i, RT + i))
        o = 232 + 4 * tl
        for d in range(4):
            e("v_cvt_pk_bf16_f32 v%d, v%d, v%d" % (o + d, PA + 16 * tl + 2 * d, PA + 16 * tl + 2 * d + 1))
        e("buffer_store_dwordx4 %s, v%d, %s, s%d offen sc1" % (vr(o, 4), vX1, srd(SWS), sT1 + tl))
        k.vm.issue("x1st")
    k.stamp(5)
    if not CSF:
        colsum(0)
    e("s_setprio 0")
    GB = 64

    def ggen():
        t0 = 32
        an, stp = 252, 31
        yield "s_lshl_b32 s%d, s%d, 6" % (sT3, sDB)
        yield "s_lshl4_add_u32 s%d, s%d, s%d" % (sT3, sRW, sT3)
        yield "v_add_u32 v%d, s%d, v%d" % (t0, sT3, vC)
        yield "v_lshlrev_b32 v%d, 1, v%d" % (t0 + 2, vQ)
        yield "v_cvt_f32_u32 v%d, v%d" % (t0 + 1, t0)
        yield "v_cvt_f32_u32 v%d, v%d" % (t0 + 2, t0 + 2)
        yield "v_mul_f32 v%d, %s, v%d" % (t0 + 1, hexf(1.0 / 512), t0 + 1)
        yield "v_mul_f32 v%d, %s, v%d" % (stp, hexf(16.0), t0 + 1)
        for dw in range(4):
            yield "v_add_f32 v%d, %s, v%d" % (an + dw, hexf(float(8 * (dw >> 1) + (dw & 1))), t0 + 2)
        yield "v_fract_f32 v%d, v%d" % (stp, stp)
        for dw in range(4):
            yield "v_mul_f32 v%d, v%d, v%d" % (an + dw, an + dw, t0 + 1)
        yield "v_lshlrev_b32 v%d, 31, v%d" % (t0 + 16, vC)
        yield "v_min_u32 v%d, 1, v%d" % (t0 + 17, vQ)
        yield "v_or_b32 v%d, 0x3f800000, v%d" % (t0 + 16, t0 + 16)
        yield "v_sub_u32 v%d, v%d, 1" % (t0 + 17, t0 + 17)
        yield "v_and_b32 v%d, 0xffff0000, v%d" % (t0 + 17, t0 + 17)
        yield "v_and_b32 v17, 1, v%d" % vC
        yield "v_mul_u32_u24 v17, 0x020202, v17"
        yield "v_lshl_or_b32 v17, v17, 8, v17"
        yield "v_xor_b32 v17, 0x03020100, v17"
        yield "v_bfe_u32 v18, v%d, 1, 1" % vC
        yield "v_add_u32 v%d, 1, v%d" % (t0 + 18, vC)
        yield "v_bfe_u32 v%d, v%d, 1, 1" % (t0 + 18, t0 + 18)
        yield "v_lshlrev_b32 v18, 15, v18"
        yield "v_lshl_or_b32 v18, v%d, 31, v18" % (t0 + 18)
        for T in range(8):
            for dw in range(4):
                yield "v_cos_f32 v%d, v%d" % (t0 + 8 + 2 * dw, an + dw)
                yield "v_sin_f32_e64 v%d, -v%d" % (t0 + 9 + 2 * dw, an + dw)
            for dw in range(4):
                yield "v_add_f32 v%d, v%d, v%d" % (an + dw, an + dw, stp)
            for dw in range(4):
                yield "v_cvt_pk_bf16_f32 v%d, v%d, v%d" % (GB + 4 * T + dw, t0 + 8 + 2 * dw, t0 + 9 + 2 * dw)
            for dw in range(4):
                yield "v_perm_b32 v%d, v%d, v%d, v17" % (GB + 32 + 4 * T + dw, GB + 4 * T + dw, GB + 4 * T + dw)
            for dw in range(4):
                yield "v_xor_b32 v%d, v18, v%d" % (GB + 32 + 4 * T + dw, GB + 32 + 4 * T + dw)
            if T == 0:
                yield "v_bfi_b32 v%d, v%d, v%d, v%d" % (GB, t0 + 17, t0 + 16, GB)
    late_setup(1)
    e("v_add_u32 v6, 0x%x, v%d" % (LB, vZB))
    vFL, vFZ, vDZ = 14, 15, 9
    e("s_xor_b32 s%d, s2, 0x38" % sCC)
    flag_voff(vFZ, 63)
    e("v_and_b32 v%d, 0x1ff, v%d" % (vFL, vFZ))
    e("v_min_u32 v19, 1, v%d" % vQ)
    e("v_mul_u32_u24 v19, 0x%x, v19" % (FW_OFF - FX_OFF))
    e("v_add_u32 v%d, v19, v%d" % (vFL, vFL))
    e("s_cmp_eq_u32 s%d, 0" % sCC)
    e("s_cselect_b32 s%d, 0x%x, 0" % (sT0, 16 * 2048))
    e("v_lshrrev_b32 v19, 1, v%d" % vQ)
    e("v_mul_u32_u24 v19, s%d, v19" % sT0)
    e("v_add_u32 v%d, v19, v%d" % (vFL, vFL))
    e("s_lshr_b32 s%d, s%d, 4" % (sFXC, sCC))
    e("s_lshl2_add_u32 s%d, s%d, s%d" % (sFXC, sFXC, sRW))
    e("s_lshl_b32 s%d, s%d, 9" % (sFXC, sFXC))
    e("s_mov_b32 s%d, 0" % sGB)
    XI, TM, TW, DR, DI, PR, PI, CWL = 32, 32, 48, 208, 216, 224, 228, 232

    def xin(pl, v, tt):
        return XI + 4 * ((pl * 2 + v) * 2 + tt)
    e("v_add_u32 v26, 0x%x, v%d" % (L_C1, vYW))
    e("v_xor_b32 v27, 64, v26")
    e("v_xor_b32 v28, 128, v26")
    e("v_xor_b32 v29, 192, v26")
    e("s_lshr_b32 s%d, s%d, 1" % (sT0, sRW))
    e("s_lshl_b32 s%d, s%d, 7" % (sT0, sT0))
    e("s_and_b32 s%d, s%d, 1" % (sT1, sRW))
    e("s_lshl3_add_u32 s%d, s%d, s%d" % (sT0, sT1, sT0))
    e("v_xor_b32 v10, s%d, v26" % sT0)
    e("v_xor_b32 v11, 64, v10")
    e("v_lshlrev_b32 v12, 5, v%d" % vC)
    e("v_lshl_add_u32 v12, v%d, 3, v12" % vQ)
    e("s_lshl_b32 s%d, s%d, 10" % (sT0, sRW))
    e("v_add_u32 v12, s%d, v12" % sT0)
    e("s_lshl_b32 s%d, s%d, 13" % (sZR, sCC))
    e("s_add_u32 s%d, s%d, 0x%x" % (sZR, sZR, ZT_OFF))
    e("s_add_u32 s%d, s%d, 4096" % (sZI, sZR))
    e("s_mov_b32 s%d, %s" % (sSC, hexf(2.0 ** -19)))
    e("s_cmp_eq_u32 s%d, 0" % sCC)
    e("s_cselect_b32 s%d, 0x%x, s%d" % (sZI, OOB, sZI))
    e("s_cselect_b32 s%d, %s, s%d" % (sSC, hexf(2.0 ** -20), sSC))
    e("s_mov_b32 s%d, 0" % sPL)
    e("s_lshl_b32 s%d, s%d, 3" % (sT0, sT1))
    e("v_add_u32 v19, s%d, v%d" % (sT0, vQ))
    e("v_xor_b32 v30, v19, v%d" % vC)
    e("v_lshlrev_b32 v30, 4, v30")
    e("v_lshl_add_u32 v30, v%d, 8, v30" % vQ)
    e("v_xor_b32 v24, 64, v30")
    e("v_lshrrev_b32 v8, 3, v%d" % vLANE)
    e("v_and_b32 v9, 7, v%d" % vLANE)
    e("v_lshlrev_b32 v19, 1, v%d" % vQ)
    e("v_xor_b32 v19, v19, v9")
    e("v_lshlrev_b32 v19, 4, v19")
    e("v_lshl_add_u32 v%d, v8, 12, v19" % vDZ)
    k.wait_vm("x1st")
    publish("s%d" % sFX)
    if PW == 6:
        prewarm()
    xe_load()
    k.stamp(6)
    pre = ([] if CCE else list(cconst())) + ["v_mul_f32 v%d, s%d, v%d" % (T2C + i, sSC, T2C + i) for i in range(16)]
    gl = list(ggen())
    GE = P("GE", 152)
    pre += gl[:GE]
    gl = gl[GE:]
    n2 = max(0, len(pre) - P("PFXL", 0))
    cs1 = min(n2, P("CS1", 72))
    for s_ in pre[:cs1]:
        e(s_)
    colsum(1)
    if P("NOFFT", 0):
        e("s_branch L_final")
    for s_ in pre[cs1:n2]:
        e(s_)
    if P("SP", 0):
        Q = [16, 20, 56, 60]
        e("s_mov_b32 s%d, s%d" % (sT3, sTAG))
        e("s_mov_b32 s%d, s%d" % (sT4, sTAG))
        e("s_mov_b32 s%d, 0" % sCNT)
        k.lab("L_sp")
        for i in range(4):
            e("s_add_u32 s%d, s%d, %d" % (sT0, sFXC, 128 * i))
            e("s_load_dwordx4 s[%d:%d], s[%d:%d], s%d glc" % (Q[i], Q[i] + 3, SWS, SWS + 1, sT0))
        e("s_waitcnt lgkmcnt(0)")
        k.lg.clear()
        for i in range(4):
            for h in range(2):
                e("s_xor_b64 s[%d:%d], s[%d:%d], s[%d:%d]" % (Q[i] + 2 * h, Q[i] + 2 * h + 1, Q[i] + 2 * h, Q[i] + 2 * h + 1, sT3, sT4))
        for i in range(4):
            e("s_or_b64 s[%d:%d], s[%d:%d], s[%d:%d]" % (Q[i], Q[i] + 1, Q[i], Q[i] + 1, Q[i] + 2, Q[i] + 3))
        e("s_or_b64 s[16:17], s[16:17], s[20:21]")
        e("s_or_b64 s[56:57], s[56:57], s[60:61]")
        e("s_or_b64 s[16:17], s[16:17], s[56:57]")
        e("s_cbranch_scc0 L_spx")
        e("s_sleep %d" % P("SPS", 4))
        e("s_add_u32 s%d, s%d, 1" % (sCNT, sCNT))
        e("s_cmp_lt_u32 s%d, 0x40000" % sCNT)
        e("s_cbranch_scc1 L_sp")
        k.lab("L_spx")
    poll_issue("pfx", vFL, "s%d" % sFXC, 13)
    for s_ in pre[n2:]:
        e(s_)
    k.stamp(7)
    e("s_setprio %d" % P("CPRIO", 1))
    poll_check("pfx", vFL, "s%d" % sFXC, 13)
    k.stamp(8)

    def gbar_lines():
        return ["    s_add_u32 s%d, s%d, 4" % (sGB, sGB)] + garrive_lines(C_F) + gwait_lines(C_F, "s%d" % sGB)

    def gbar():
        k.lines.extend(gbar_lines())
        k.lg.clear()
    e("s_lshl_b32 s%d, s%d, 13" % (sT0, sCC))
    e("s_lshl_b32 s%d, s%d, 11" % (sT1, sRW))
    e("s_add_u32 s%d, s%d, s%d" % (sT0, sT0, sT1))
    e("s_add_u32 s%d, s%d, 0x%x" % (sT2, sT0, X1C_OFF))
    e("s_add_u32 m0, s%d, 0x%x" % (sT1, L_C1))
    k.nop(1)
    e("buffer_load_dwordx4 v30, %s, s%d offen sc1 lds" % (srd(SWS), sT2))
    k.vm.issue("cin")
    e("buffer_load_dwordx4 v24, %s, s%d offen offset:1024 sc1 lds" % (srd(SWS), sT2))
    k.vm.issue("cin")
    e("s_add_u32 s%d, s%d, 0x%x" % (sT2, sT0, WT_OFF))
    for v in range(2):
        e("buffer_load_dwordx4 %s, v%d, %s, s%d offen offset:%d sc1" % (vr(CWL + 4 * v, 4), vL16, srd(SWS), sT2, v * 1024))
        k.vm.issue("cw")
    e("s_add_u32 s%d, s%d, 0x%x" % (sT2, sT2, 256 * 8192))
    e("s_cmp_eq_u32 s%d, 0" % sCC)
    e("s_cselect_b32 s%d, s%d, 0x%x" % (sT2, sT2, OOB))
    for v in range(2):
        e("buffer_load_dwordx4 %s, v%d, %s, s%d offen offset:%d sc1" % (vr(CWL + 8 + 4 * v, 4), vL16, srd(SWS), sT2, v * 1024))
        k.vm.issue("cw")
    k.wait_vm("cin")
    gbar()
    k.stamp(9)
    k.lab("L_ccol")
    for pl in range(2):
        for v in range(2):
            for tt in range(2):
                e("ds_read_b128 %s, v%d offset:%d" % (vr(xin(pl, v, tt), 4), 26 + 2 * tt + pl, v * 4096))
    e("s_waitcnt lgkmcnt(0)")
    e("s_cmp_eq_u32 s%d, 0" % sCC)
    e("s_cbranch_scc1 L_creal")
    k.lab("L_cplx")
    tail.append("L_creal:")
    tail.append("    s_cmp_eq_u32 s%d, 0" % sPL)
    tail.append("    s_cbranch_scc1 L_c0")
    for i in range(16):
        tail.append("    v_mov_b32 v%d, v%d" % (XI + i, XI + 16 + i))
    tail.append("L_c0:")
    for i in range(16):
        tail.append("    v_mov_b32 v%d, 0" % (XI + 16 + i))
    tail.append("    s_nop 1")
    tail.append("    s_branch L_cplx")
    for v in range(2):
        dr, di = vr(DR + 4 * v, 4), vr(DI + 4 * v, 4)
        for tt in range(2):
            mfma(dr, vr(xin(0, v, tt), 4), vr(C64 + 4 * tt, 4), dr if tt else "0")
            mfma(di, vr(xin(1, v, tt), 4), vr(C64 + 4 * tt, 4), di if tt else "0")
            mfma(dr, vr(xin(1, v, tt), 4), vr(S64 + 4 * tt, 4))
            mfma(di, vr(xin(0, v, tt), 4), vr(N64 + 4 * tt, 4))

    def cmul(cr, ci, conj):
        for h in range(2):
            for i in (4 * h, 4 * h + 2):
                e("v_pk_mul_f32 %s, %s, %s" % (vr(TM + i, 2), vr(DR + i, 2), vr(cr + i, 2)))
                e("v_pk_mul_f32 %s, %s, %s" % (vr(TM + 8 + i, 2), vr(DI + i, 2), vr(cr + i, 2)))
            neg = " neg_lo:[1,0,0] neg_hi:[1,0,0]"
            for i in (4 * h, 4 * h + 2):
                e("v_pk_fma_f32 %s, %s, %s, %s%s" % (vr(TM + i, 2), vr(DI + i, 2), vr(ci + i, 2), vr(TM + i, 2), "" if conj else neg))
                e("v_pk_fma_f32 %s, %s, %s, %s%s" % (vr(TM + 8 + i, 2), vr(DR + i, 2), vr(ci + i, 2), vr(TM + 8 + i, 2), neg if conj else ""))
        for d in range(4):
            e("v_cvt_pk_bf16_f32 v%d, v%d, v%d" % (PR + d, TM + 2 * d, TM + 2 * d + 1))
            e("v_cvt_pk_bf16_f32 v%d, v%d, v%d" % (PI + d, TM + 8 + 2 * d, TM + 9 + 2 * d))
        k.nop(2)
    cmul(T1C, T1S, True)
    pr, pi = vr(PR, 4), vr(PI, 4)
    for v in range(2):
        dr, di = vr(DR + 4 * v, 4), vr(DI + 4 * v, 4)
        mfma(dr, vr(C32 + 4 * v, 4), pr, "0")
        mfma(di, vr(C32 + 4 * v, 4), pi, "0")
        mfma(dr, vr(S32 + 4 * v, 4), pi)
        mfma(di, vr(N32 + 4 * v, 4), pr)
    k.wait_vm("cw")
    for i in range(8):
        e("v_lshlrev_b32 v%d, 16, v%d" % (TW + i, CWL + i))
        e("v_and_b32 v%d, 0xffff0000, v%d" % (TW + 8 + i, CWL + i))
    cmul(TW, TW + 8, False)
    for v in range(2):
        dr, di = vr(DR + 4 * v, 4), vr(DI + 4 * v, 4)
        mfma(dr, pr, vr(C32 + 4 * v, 4), "0")
        mfma(di, pi, vr(C32 + 4 * v, 4), "0")
        mfma(dr, pi, vr(N32 + 4 * v, 4))
        mfma(di, pr, vr(S32 + 4 * v, 4))
    k.nop(4)
    cmul(T2C, T2S, False)
    for v in range(2):
        e("ds_write_b64 v10, %s offset:%d" % (vr(PR + 2 * v, 2), 8192 + v * 4096))
        e("ds_write_b64 v11, %s offset:%d" % (vr(PI + 2 * v, 2), 8192 + v * 4096))
    e("s_waitcnt lgkmcnt(0)")
    gbar()
    for v in range(2):
        for tt in range(2):
            for pl in range(2):
                e("ds_read_b128 %s, v%d offset:%d" % (vr(xin(pl, v, tt), 4), 26 + 2 * tt + pl, 8192 + v * 4096))
                k.lg.issue(("cy", v, tt))
    for v in range(2):
        dr, di = vr(DR + 4 * v, 4), vr(DI + 4 * v, 4)
        for tt in range(2):
            k.wait_lg(("cy", v, tt))
            mfma(dr, vr(C64 + 4 * tt, 4), vr(xin(0, v, tt), 4), dr if tt else "0")
            mfma(di, vr(C64 + 4 * tt, 4), vr(xin(1, v, tt), 4), di if tt else "0")
            mfma(dr, vr(N64 + 4 * tt, 4), vr(xin(1, v, tt), 4))
            mfma(di, vr(S64 + 4 * tt, 4), vr(xin(0, v, tt), 4))
    for v in range(2):
        if v:
            k.nop(4)
        for d in range(2):
            e("v_cvt_pk_bf16_f32 v%d, v%d, v%d" % (PR + 2 * v + d, DR + 4 * v + 2 * d, DR + 4 * v + 2 * d + 1))
            e("v_cvt_pk_bf16_f32 v%d, v%d, v%d" % (PI + 2 * v + d, DI + 4 * v + 2 * d, DI + 4 * v + 2 * d + 1))
        e("buffer_store_dwordx2 %s, v12, %s, s%d offen offset:%d sc1" % (vr(PR + 2 * v, 2), srd(SWS), sZR, v * 512))
        k.vm.issue("zst")
        e("buffer_store_dwordx2 %s, v12, %s, s%d offen offset:%d sc1" % (vr(PI + 2 * v, 2), srd(SWS), sZI, v * 512))
        k.vm.issue("zst")
    e("s_or_b32 s%d, s%d, s%d" % (sT0, sCC, sPL))
    if not P("NO256", 0):
        e("s_cbranch_scc0 L_csecond")
    sec = ["L_csecond:", "    s_mov_b32 s%d, 1" % sPL, "    s_add_u32 s%d, s%d, 4096" % (sZR, sZR)]
    for i in range(8):
        sec.append("    v_mov_b32 v%d, v%d" % (CWL + i, CWL + 8 + i))
    sec.extend(gbar_lines())
    sec.append("    s_branch L_ccol")
    tail.extend(sec)
    k.stamp(10)
    fs(7, 2)
    e("s_lshr_b32 s%d, s%d, 2" % (sT4, sCC))
    e("s_lshl_b32 s%d, s%d, 6" % (sT1, sRW))
    e("s_add_u32 s%d, s%d, s%d" % (sT4, sT4, sT1))
    e("s_lshl_b32 s%d, s%d, 7" % (sT4, sT4))
    e("s_and_b32 s%d, s%d, 3" % (sT1, sCC))
    e("s_lshl2_add_u32 s%d, s%d, s%d" % (sT4, sT1, sT4))
    e("s_add_u32 s%d, s%d, 0x%x" % (sT4, sT4, FZ_OFF))
    sFZC = sFXC
    e("s_lshl3_add_u32 s%d, s%d, s%d" % (sFZC, sWP, sRW))
    e("s_lshl_b32 s%d, s%d, 10" % (sFZC, sFZC))
    e("s_add_u32 s%d, s%d, 0x%x" % (sFZC, sFZC, FZ_OFF + 4096))
    e("v_and_b32 v%d, 0x3ff, v%d" % (vFZ, vFZ))
    sZB, sZM = sZR, sZI
    e("s_lshl_b32 s%d, s%d, 18" % (sZB, sRW))
    e("s_lshl_b32 s%d, s%d, 10" % (sT1, sWP))
    e("s_add_u32 s%d, s%d, s%d" % (sZB, sZB, sT1))
    e("s_lshl_b32 s%d, s%d, 7" % (sT1, sA))
    e("s_add_u32 s%d, s%d, s%d" % (sZB, sZB, sT1))
    e("s_lshl_b32 s%d, s%d, 13" % (sZM, sRW))
    e("s_lshl_b32 s%d, s%d, 6" % (sT1, sRW))
    e("v_xor_b32 v20, s%d, v26" % sT1)
    k.wait_vm("zst")
    fs(7, 3)
    publish("s%d" % sT4)
    e("s_setprio 0")
    for s_ in gl:
        e(s_)
    TRZ = [[16, 17, 18, 7], [26, 27, 28, 29]]
    ZH = LB + 57344
    e("v_add_u32 v19, 0x%x, v6" % (ZH - LB))
    for pt in range(4):
        e("v_xor_b32 v%d, %d, v6" % (TRZ[0][pt], 32 * pt))
        e("v_xor_b32 v%d, %d, v19" % (TRZ[1][pt], 32 * pt))
    gbar()
    AS, ZF = 208, 128

    def zr(T, pt):
        for hh in range(2):
            r = ZF + ((T % 4) * 4 + pt) * 4 + 2 * hh
            e("ds_read_b64_tr_b16 %s, v%d offset:%d" % (vr(r, 2), TRZ[T >> 3][pt], (T & 7) * 4096 + hh * 2048))
            k.lg.issue(("ZR", T, pt))

    def zfetch(h_):
        e("s_setprio 1")
        gwait(C_ST if h_ else C_WT)
        poll_issue(("pz", h_), vFZ, "s%d" % sFZC, 30)
        e("s_add_u32 s%d, s%d, 0x%x" % (sDT, sZB, ZT_OFF + h_ * 256 * 4096 - 32768))
        poll_check(("pz", h_), vFZ, "s%d" % sFZC, 30)
        for ee in range(8):
            e("s_add_u32 m0, s%d, %d" % (sZM, (ZH if h_ else LB) + ee * 1024))
            e("s_add_u32 s%d, s%d, 32768" % (sDT, sDT))
            e("buffer_load_dwordx4 v%d, %s, s%d offen sc1 lds" % (vDZ, srd(SWS), sDT))
            k.vm.issue(("Z", h_))
        e("s_setprio %d" % P("EPRIO", 0))

    def ehalf(h_):
        k.wait_vm(("Z", h_))
        gbar()
        seq = [(T, pt) for T in range(8 * h_, 8 * h_ + 8) for pt in range(4)]
        LA_ = 6
        for n in range(LA_):
            zr(*seq[n])
        for n, (T, pt) in enumerate(seq):
            if n + LA_ < 32:
                zr(*seq[n + LA_])
            k.wait_lg(("ZR", T, pt))
            c = vr(AS + 4 * pt, 4)
            mfma(c, vr(GB + 4 * T, 4), vr(ZF + ((T % 4) * 4 + pt) * 4, 4), "0" if T == 8 else c)
    zfetch(1)
    k.stamp(11)
    e("s_sub_u32 s%d, s%d, 4096" % (sFZC, sFZC))
    if P("ZORD", 1):
        zfetch(0)
        ehalf(1)
    else:
        ehalf(1)
        zfetch(0)
    ehalf(0)
    k.nop(8)
    for pt in range(4):
        e("ds_write_b128 v20, %s offset:%d" % (vr(AS + 4 * pt, 4), pt * 4096))
    fs(7, 10)
    e("s_branch L_final")
    tail[0:0] = k.lines
    k.lines = main_lines

    e("s_waitcnt vmcnt(0) lgkmcnt(0)")
    k.vm.clear()
    k.lg.clear()
    fs(12, 7)
    e("s_barrier")
    fs(12, 8)
    k.stamp(12)
    YP, SV, U2 = 192, 224, 232
    e("v_add_u32 v10, 0x%x, v%d" % (L_C1, vR0))
    e("v_add_u32 v11, 0x%x, v%d" % (L_C1, vR1))
    for h in range(2):
        e("ds_read_b128 %s, v%d" % (vr(YP + 4 * h, 4), vR0 + h))
        k.lg.issue("yp")
    for h in range(2):
        e("ds_read_b128 %s, v%d" % (vr(SV + 4 * h, 4), 10 + h))
        k.lg.issue("sv")
    for i in range(4):
        e("v_lshlrev_b32 v%d, 16, v%d" % (240 + 2 * i, XV + i))
        e("v_and_b32 v%d, 0xffff0000, v%d" % (241 + 2 * i, XV + i))
    k.wait_lg("yp")
    for i in range(8):
        e("v_mul_f32 v%d, %s, v%d" % (U2 + i, hexf(-1.4426950408889634), YP + i))
    for i in range(8):
        e("v_exp_f32 v%d, v%d" % (U2 + i, U2 + i))
    k.wait_lg("sv")
    for i in range(8):
        e("v_mul_f32 v%d, v%d, v%d" % (YP + i, YP + i, SV + i))
    for i in range(8):
        e("v_add_f32 v%d, 1.0, v%d" % (U2 + i, U2 + i))
    for i in range(8):
        e("v_rcp_f32 v%d, v%d" % (U2 + i, U2 + i))
    k.nop(1)
    for i in range(8):
        e("v_fmac_f32 v%d, v%d, v%d" % (240 + i, YP + i, U2 + i))
    for d in range(4):
        e("v_cvt_pk_bf16_f32 v%d, v%d, v%d" % (SV + d, 240 + 2 * d, 241 + 2 * d))
    e("buffer_store_dwordx4 %s, v%d, %s, s%d offen%s" % (vr(SV, 4), vGO, srd(SOUT), sXO, os.environ.get("OFL", " sc1")))
    e("s_or_b32 s%d, s2, s%d" % (sT0, sRW))
    e("s_or_b32 s%d, s%d, s%d" % (sT0, sT0, sHF))
    e("s_cbranch_scc1 L_noep")
    e("s_mov_b32 s%d, 0x%x" % (sT0, EPOCH_OFF))
    publish("s%d" % sT0)
    k.lab("L_noep")
    k.stamp(13)
    if ENC:
        if "ENCB" in os.environ:
            e("s_cmp_lg_u32 s2, %d" % P("ENCB", 0))
            e("s_cbranch_scc1 L_done")
        e("s_waitcnt lgkmcnt(0)")
        e("s_sub_u32 s97, s%d, s66" % (64 + 2 * ENC))
        e("s_add_u32 s97, s97, 6000")
        k.lab("L_espin")
        e("s_memrealtime s[94:95]")
        e("s_waitcnt lgkmcnt(0)")
        e("s_sub_u32 s96, s94, s66")
        e("s_cmp_lt_u32 s96, s97")
        e("s_cbranch_scc1 L_espin")
    elif DIAG:
        e("s_lshl2_add_u32 s%d, s%d, s%d" % (sT0, sHF, sRW))
        e("v_mov_b32 v2, s%d" % sT0)
        k.stamp_flush(SWS, 0, 2, 8)
    k.lab("L_done")
    e("s_endpgm")
    k.lines += tail
    k.lab("L_end")
    return k


HEADER = open(os.path.join(os.path.dirname(os.path.abspath(__file__)), "header.txt")).read()


DOC = """; Generated by gen/gen17.py (own generator). One persistent workgroup per CU, 8 waves:
"""


def main(out):
    k = gen()
    s = HEADER
    s += "; @launch grid=(256,1,1) block=(512,1,1) lds=163840\n"
    s += '.amdgcn_target "amdgcn-amd-amdhsa--gfx950"\n.text\n'
    s += DOC
    s += k.text()
    s += '.section .rodata,"a"\n'
    s += descriptor(k.name, 256, 102 if DIAG else 64)
    open(out, "w").write(s)


if __name__ == "__main__":
    main(sys.argv[1] if len(sys.argv) > 1 else "v17.s")
```
